```python
import torch

def _softmax(x, axis=-1):
    return torch.softmax(x, dim=axis)
def _gelu(x):
    return torch.nn.functional.gelu(x, approximate="tanh")
def _silu(x):
    return torch.nn.functional.silu(x)
def _sigmoid(x):
    return torch.sigmoid(x)
def _layernorm(x, axis=-1, eps=1e-5):
    m = x.mean(dim=axis, keepdim=True)
    v = x.var(dim=axis, keepdim=True, unbiased=False)
    return (x - m) / torch.sqrt(v + eps)
def _scatter_add(tgt, idx, src, axis=0):
    return tgt.clone().index_add_(axis, idx, src)
def _segment_sum(src, seg, n):
    out = torch.zeros((n,) + src.shape[1:], dtype=src.dtype)
    return out.index_add_(0, seg, src)
def _pad(x, pw):
    flat = tuple(v for pair in reversed(pw) for v in pair)
    return torch.nn.functional.pad(x, flat)

kernel_name = 'standalone__hybrid_graph_tf_graphgps__graph'

def setup_inputs():

    _w = (lambda a: (lambda t: t.to(torch.bfloat16) if t.is_floating_point() else t)(torch.as_tensor(a)))
    N, deg, D = 10000, 16, 256
    E = N * deg
    src = (lambda lo, hi, *s: torch.randint(lo, hi, s))(0, N, E).to(torch.int64)
    dst = (lambda lo, hi, *s: torch.randint(lo, hi, s))(0, N, E).to(torch.int64)
    deg_cnt = torch.bincount(dst, minlength=N).to(float) + 1.0
    sc = 1.0 / float(D) ** 0.5
    return {
        "x": _w((lambda *s: torch.randn(*s, dtype=torch.bfloat16) * 0.05)(N, D)),
        "src": _w(src),
        "dst": _w(dst),
        "deg_inv": _w((1.0 / deg_cnt).to(float)),
        "w_msg": _w((lambda *s: torch.randn(*s, dtype=torch.bfloat16) * 0.2)(D, D) * sc),
        "wq": _w((lambda *s: torch.randn(*s, dtype=torch.bfloat16) * 1.6)(D, D) * sc),
        "wk": _w((lambda *s: torch.randn(*s, dtype=torch.bfloat16) * 1.6)(D, D) * sc),
        "wv": _w((lambda *s: torch.randn(*s, dtype=torch.bfloat16) * 0.2)(D, D) * sc),
        "w_out": _w((lambda *s: torch.randn(*s, dtype=torch.bfloat16) * 0.2)(D, D) * sc),
    }

def reference(x, src, dst, deg_inv, w_msg, wq, wk, wv, w_out):
    N, D = x.shape[0], x.shape[1]
    h = _layernorm(x, axis=-1)
    m_e = torch.einsum('nd,de->ne', h, w_msg)
    h_local = _segment_sum(m_e[src], dst, N) * deg_inv[:, None]
    q = torch.einsum('nd,de->ne', h, wq)
    k = torch.einsum('nd,de->ne', h, wk)
    v = torch.einsum('nd,de->ne', h, wv)
    logits = torch.einsum('id,jd->ij', q, k) / (float(D) ** 0.5)
    attn = _softmax(logits, axis=-1)
    h_global = torch.einsum('ij,jd->id', attn, v)
    y = torch.einsum('nd,de->ne', h_local + h_global, w_out)
    return x + y
```

```python
import sys, os
here = os.path.dirname(os.path.abspath(__file__))
sys.path.insert(0, here)
import gen, hazard
DEFAULTS = {"k1": {"st": " sc1", "code_end": "L3_end", "late": 1, "npre": 2, "rc": 3, "nopk": 2}, "k2": {"map": 1, "sper": 2, "st": " sc1", "gdma": [52, 53, 57, 61, 65], "new": 32, "light": 1, "trun": 5, "half": 1, "mle": 3, "ccap": [3, 3, 3, 2, 2, 2, 2, 2], "cnts": [51, 51, 52, 53, 53, 53]}, "k3": {"map": 1, "d": 6, "order": "m3", "nopk": 1}}
def kernels(opt=None):
    opt0 = opt or {}
    opt = {k: dict(v, **(opt0.get(k) or {})) for k, v in DEFAULTS.items()}
    if opt0.get('old') or opt0.get('emu1'): opt['k2']['new'] = 16
    if opt0.get('old'):
        del opt['k2']['gdma']
        import gen_k1, gen_k2, gen_k3
        return [gen_k1.kernel_desc(opt['k1']), gen_k2.kernel_desc(opt['k2']), gen_k3.kernel_desc(opt['k3'])]
    import gen_k2n
    ks = []
    if opt0.get('nok3'): opt['k1']['code_end'] = 'L2_end'
    if opt0.get('emu1'):
        import gen_k1; ks.append(gen_k1.kernel_desc(opt['k1']))
    else:
        import gen_k1n; ks.append(gen_k1n.kernel_desc(opt['k1']))
    ks.append(gen_k2n.kernel_desc(opt['k2']))
    if not opt0.get('nok3'):
        import importlib; ks.append(importlib.import_module(opt0.get('k3mod', 'gen_k3n')).kernel_desc(opt['k3']))
    return ks
if __name__ == "__main__":
    import json
    opt = json.loads(sys.argv[2]) if len(sys.argv) > 2 else {}
    ks = kernels(opt)
    for k in ks:
        e = hazard.check(k['body'], k['name'])
        assert not e, "\n".join(e)
    out = sys.argv[1] if len(sys.argv) > 1 else os.path.join(here, "..", "standalone__hybrid_graph_tf_graphgps__graph.s")
    open(out, "w").write(gen.build_file(ks))
    print("wrote", out, os.path.getsize(out))
```

```python
import sys, os
sys.path.insert(0, os.path.dirname(os.path.abspath(__file__)))
from layout import *

HEADER = open(os.path.join(os.path.dirname(os.path.abspath(__file__)), "..", "standalone__hybrid_graph_tf_graphgps__graph.s.ref")).read().split("; Override launch geometry")[0]

RT_OFF = 240 << 20
def rt_wrap(body, kidx):
    pre = "s_memrealtime s[92:93]\n"
    post = f"""
s_mov_b64 exec, -1
s_waitcnt vmcnt(0) lgkmcnt(0)
s_memrealtime s[94:95]
s_load_dwordx2 s[96:97], s[0:1], 88
s_waitcnt lgkmcnt(0)
s_add_u32 s96, s96, 0x{RT_OFF + kidx * 65536:x}
s_addc_u32 s97, s97, 0
s_mov_b32 s98, 0x10000
s_mov_b32 s99, 0x00020000
s_not_b32 s94, s94
s_lshl_b32 s93, s2, 6
v_mov_b32 v0, s92
v_mov_b32 v1, s94
v_mov_b32 v2, 0
s_getreg_b32 s95, hwreg(HW_REG_XCC_ID)
v_mov_b32 v3, s95
s_mov_b64 exec, 1
buffer_atomic_umin v0, v2, s[96:99], s93 offen
buffer_atomic_umin v1, v2, s[96:99], s93 offen offset:4
buffer_atomic_umin v3, v2, s[96:99], s93 offen offset:8
s_waitcnt vmcnt(0)
"""
    return pre + body + post

def kernel_text(name, body, vgpr, accum, sgpr=102):
    code = f""".globl {name}
.p2align 8
.type {name},@function
{name}:
{body}
s_endpgm
"""
    desc = f""".p2align 6
.amdhsa_kernel {name}
  .amdhsa_next_free_vgpr {vgpr}
  .amdhsa_next_free_sgpr {sgpr}
  .amdhsa_accum_offset {accum}
  .amdhsa_group_segment_fixed_size 0
  .amdhsa_kernarg_size 96
  .amdhsa_user_sgpr_count 2
  .amdhsa_user_sgpr_kernarg_segment_ptr 1
  .amdhsa_system_sgpr_workgroup_id_x 1
.end_amdhsa_kernel
"""
    return code, desc

def build_file(kernels, rt=False):
    s = HEADER
    for k in kernels:
        s += f"; @launch kernel={k['name']} grid=({k['grid']},1,1) block=({k['block']},1,1) lds={k['lds']}\n"
    s += '.amdgcn_target "amdgcn-amd-amdhsa--gfx950"\n.text\n'
    descs = []
    for ki, k in enumerate(kernels):
        c, d = kernel_text(k['name'], rt_wrap(k['body'], ki) if rt else k['body'], k['vgpr'], k['accum'])
        s += c
        descs.append(d)
    s += '.section .rodata,"a"\n' + "".join(descs)
    return s
```

```python
from layout import *

L_W0 = 4096
LIST_B = 20480
L_WS = LIST_B + 1024
PADV = 0xffff
assert ((4096 + 3 * BN) // 4 + BN // 4 + 31) // 32 * 32 + 40 <= LIST_B // 16

VL = 1; VN16 = 2; VG = 3
CNT = 4; CP = 5
VOFF = 6
VCB = 7
VONE = 16; VFOUR = 17
MINV = [18, 19, 20, 21]
CB = 24
GS = 28
VS = 32; VT = 33; VT2 = 34; VCA = 35
VLB = 36
VFL = 37
VRD = 38
VST = 39
SELA = 40; SELB = 44
ACC = 48
IDXA = [52, 56]
AD = 60
PK = 64
PV = 66
VFILL = 68
VPAD = 72
IDX = 128
E = 192

S_B, S_W, S_PASS, S_LIM, S_NIT, S_IT, S_F, S_SO, S_T, S_512, S_EO = 40, 41, 42, 43, 44, 45, 46, 47, 48, 49, 50
SRD_C, SRD_E, SRD_G, SRD_H = 8, 12, 16, 20


def wave_reduce(A, v, t, op):
    for m in ("row_shr:1", "row_shr:2", "row_shr:4", "row_shr:8", "row_bcast:15 row_mask:0xa", "row_bcast:31 row_mask:0xc"):
        A("s_nop 1")
        A(f"{op}_dpp v{v}, v{v}, v{v} {m}" + (" row_mask:0xf" if "mask" not in m else "") + " bank_mask:0xf")


def gen_edge(o, opt):
    A = o.append
    timing = opt.get('timing')
    NEW = opt.get('new', 16); ECAP = 163840 // NEW; LPS = 64 // NEW; LS = LPS.bit_length() - 1; PER = 4096 // NEW
    nst = [0]
    def stamp():
        if timing:
            A("s_memtime s[98:99]")
            A("s_waitcnt lgkmcnt(0)")
            A(f"v_writelane_b32 v126, s98, {nst[0]}")
            nst[0] += 1
    A("LE_start:")
    A("s_cmp_ge_u32 s37, 32")
    A("s_cbranch_scc1 L2_end")
    A("v_lshrrev_b32 v1, 6, v0")
    A("s_sub_u32 s37, s37, 30")
    A("s_lshl_b32 s35, s35, 1")
    A(f"v_readfirstlane_b32 s{S_W}, v1")
    A("s_add_u32 s35, s35, s37")
    A("s_mul_i32 s35, s35, %d" % (3 if opt.get('light') else 4))
    A(f"s_add_u32 s{S_B}, s35, s{S_W}")
    if opt.get('light'):
        A(f"s_cmp_ge_u32 s{S_W}, 3")
        A("s_cbranch_scc1 L2_end")
    A("LE_common:")
    A(f"v_and_b32 v{VL}, 63, v0")
    if opt.get('wexit'):
        A(f"s_cmp_ge_u32 s{S_W}, {opt['wexit']}")
        A("s_cbranch_scc1 L2_end")
    A(f"s_mov_b32 s{S_PASS}, 0")
    A(f"s_mov_b32 s{S_512}, 512")
    A(f"v_lshrrev_b32 v{VT}, {LS}, v{VL}")
    A(f"v_and_b32 v{VT2}, {LPS-1}, v{VL}")
    A(f"v_mul_u32_u24 v{VOFF}, 0x{ECAP*4:x}, v{VT}")
    A(f"v_lshl_add_u32 v{VOFF}, v{VT2}, 4, v{VOFF}")
    A(f"v_lshlrev_b32 v{VT}, 2, v{VT}")
    A(f"s_mul_i32 s{S_EO}, s{S_B}, {NEW*ECAP*4}")
    A(f"s_mul_i32 s{S_T}, s{S_B}, {NEW*4}")
    A("s_waitcnt lgkmcnt(0)")
    if timing:
        A("s_mov_b32 s100, s62")
    srd_from(o, SRD_C, 4, ECNT_OFF, NBK * NEW * 4)
    srd_from(o, SRD_E, 4, EDGE_OFF, EDGE_BYTES)
    A(f"buffer_load_dword v{CNT}, v{VT}, {sr(SRD_C)}, s{S_T} offen")
    def eloads():
        for k in range(16):
            A(f"buffer_load_dwordx4 {vr(E + k*4)}, v{VOFF}, {sr(SRD_E)}, s{S_EO} offen offset:{k*16*LPS}")
    eloads()
    srd_from(o, SRD_G, 4, ME_OFF, ME_BYTES)
    srd_from(o, SRD_H, 4, HL_OFF, HL_BYTES)
    A(f"v_lshlrev_b32 v{CP}, 2, v{VT2}")
    A(f"v_and_b32 v{VN16}, 15, v{VL}")
    A(f"v_lshrrev_b32 v{VG}, 4, v{VL}")
    A(f"v_mov_b32 v{VONE}, 1")
    A(f"v_mov_b32 v{VFOUR}, 4")
    A(f"v_and_b32 v{VT}, 1, v{VN16}")
    A(f"v_lshlrev_b32 v{VT}, 4, v{VT}")
    A(f"v_lshlrev_b32 v{VT}, v{VT}, v{VONE}")
    A(f"v_mul_u32_u24 v{VT}, 0x3f80, v{VT}")
    A(f"v_lshrrev_b32 v{VT2}, 1, v{VN16}")
    for k in range(8):
        A(f"v_cmp_eq_u32 vcc, {k}, v{VT2}")
        A("s_nop 1")
        A(f"v_cndmask_b32 v{SELA + k}, 0, v{VT}, vcc")
    A(f"v_lshlrev_b32 v{VST}, 5, v{VN16}")
    A(f"v_lshl_add_u32 v{VST}, v{VG}, 3, v{VST}")
    A(f"v_lshlrev_b32 v{VN16}, 4, v{VN16}")
    A(f"s_mul_i32 s{S_T}, s{S_W}, {L_WS}")
    A(f"s_add_u32 s{S_T}, s{S_T}, {L_W0}")
    A(f"v_mov_b32 v{VLB}, s{S_T}")
    A(f"v_lshl_add_u32 v{VRD}, v{VG}, 2, v{VLB}")
    A(f"s_lshl_b32 s36, s{S_W}, 10")
    A(f"v_mov_b32 v{VCB}, s36")
    A(f"v_lshlrev_b32 v{VCA}, 4, v{VL}")
    A(f"v_add_u32 v{VFILL}, s{S_T}, v{VCA}")
    A(f"v_add_u32 v{VCA}, s36, v{VCA}")
    A(f"v_lshlrev_b32 v{VT}, 2, v{VL}")
    for k in range(4):
        A(f"v_mov_b32 v{VPAD+k}, 0x{PADV:x}")
    for k in range(4):
        A(f"v_cmp_gt_u32 vcc, {BN - k}, v{VT}")
        A(f"v_mov_b32 v{ACC+k}, 0")
        A("s_nop 0")
        A(f"v_cndmask_b32 v{MINV[k]}, 0, v{VONE}, vcc")
    A("LE_pass:")
    A(f"ds_write_b128 v{VCA}, {vr(ACC)}")
    for k in range(LIST_B // 1024):
        A(f"ds_write_b128 v{VFILL}, {vr(VPAD)} offset:{k*1024}")
    A(f"v_lshl_add_u32 v{VS}, v{VL}, 2, v{VLB}")
    A(f"ds_write_b32 v{VS}, v{ACC} offset:{LIST_B}")
    stamp()
    A("s_waitcnt vmcnt(16)")
    stamp()
    A(f"v_sub_u32 v{VS}, v{CNT}, v{CP}")
    def slots(lab, fn, wait=False):
        for k in range(16):
            if wait: A(f"s_waitcnt vmcnt({15-k})")
            for j in range(4):
                A(f"v_cmpx_lt_i32 vcc, {4*LPS*k+j}, v{VS}")
                if j == 0: A(f"s_cbranch_execz {lab}")
                fn(4 * k + j)
        A(f"{lab}:")
        A("s_mov_b64 exec, -1")
    def f_count(s):
        A(f"v_mad_u32_u16 v{IDX+s}, v{E+s}, 1, v{VCB} op_sel:[1,0,0,0]")
        A(f"ds_add_u32 v{IDX+s}, v{VONE}")
    slots("LE_c", f_count, True)
    stamp()
    A(f"ds_read_b128 {vr(CB)}, v{VCA}")
    A("s_waitcnt lgkmcnt(0)")
    for k in range(4):
        A(f"v_add_u32 v{CB+k}, 3, v{CB+k}")
        A(f"v_lshrrev_b32 v{CB+k}, 2, v{CB+k}")
        A(f"v_max_u32 v{CB+k}, v{CB+k}, v{MINV[k]}")
    A(f"v_add_u32 v{VT}, v{CB}, v{CB+1}")
    A(f"v_add3_u32 v{VT}, v{VT}, v{CB+2}, v{CB+3}")
    A(f"v_mov_b32 v{PK}, v{VT}")
    wave_reduce(A, PK, None, "v_add_u32")
    A("s_nop 1")
    A(f"v_readlane_b32 s{S_NIT}, v{PK}, 63")
    A(f"v_sub_u32 v{GS}, v{PK}, v{VT}")
    for k in range(1, 4):
        A(f"v_add_u32 v{GS+k}, v{GS+k-1}, v{CB+k-1}")
    for k in range(4):
        A(f"v_add3_u32 v{VT}, v{GS+k}, v{CB+k}, -1")
        A(f"v_lshlrev_b32 v{VT2}, v{VT}, v{MINV[k]}")
        A(f"v_lshrrev_b32 v{VT}, 5, v{VT}")
        A(f"v_lshl_add_u32 v{VT}, v{VT}, 2, v{VLB}")
        A(f"ds_or_b32 v{VT}, v{VT2} offset:{LIST_B}")
        A(f"v_lshl_add_u32 v{GS+k}, v{GS+k}, 4, v{VLB}")
    A(f"ds_write_b128 v{VCA}, {vr(GS)}")
    A(f"s_add_u32 s{S_NIT}, s{S_NIT}, 31")
    A(f"s_lshr_b32 s{S_NIT}, s{S_NIT}, 5")
    stamp()
    slots("LE_p", lambda s: A(f"ds_add_rtn_u32 v{IDX+s}, v{IDX+s}, v{VFOUR}"))
    A(f"v_lshl_add_u32 v{VT}, v{VL}, 2, v{VLB}")
    A(f"ds_read_b32 v{VFL}, v{VT} offset:{LIST_B}")
    A("s_waitcnt lgkmcnt(0)")
    slots("LE_w", lambda s: A(f"ds_write_b32 v{IDX+s}, v{E+s}"))
    stamp()
    A(f"v_mov_b32 v{VT2}, v{VRD}")
    NBT = 8
    def idx_read(b, par):
        i = IDXA[par]
        A(f"ds_read2_b32 v[{i}:{i+1}], v{VT2} offset0:{b*16} offset1:{b*16+4}")
        A(f"ds_read2_b32 v[{i+2}:{i+3}], v{VT2} offset0:{b*16+8} offset1:{b*16+12}")
    gl = opt.get('gl', '')
    def issue(b):
        par = b % 2
        A("s_waitcnt lgkmcnt(0)")
        idx_read(b + 1, 1 - par)
        for i in range(4):
            A(f"v_mad_u32_u16 v{AD+i}, v{IDXA[par]+i}, s{S_512}, v{VN16}")
        for i in range(4):
            r = (b * 4 + i) * 8
            A(f"buffer_load_dwordx4 {ar(r)}, v{AD+i}, {sr(SRD_G)}, 0 offen{gl}")
            A(f"buffer_load_dwordx4 {ar(r+4)}, v{AD+i}, {sr(SRD_G)}, 0 offen offset:256{gl}")
    idx_read(0, 0)
    for b in range(NBT):
        issue(b)
    A(f"v_add_u32 v{VT2}, {NBT*64}, v{VT2}")
    A(f"s_mov_b32 s{S_IT}, 0")
    A(f"s_mul_i32 s{S_SO}, s{S_B}, {BN*512}")
    A("LE_loop:")
    A(f"v_readlane_b32 s{S_F}, v{VFL}, s{S_IT}")
    A(f"s_add_u32 s{S_IT}, s{S_IT}, 1")
    for b in range(NBT):
        A(f"s_waitcnt vmcnt({(NBT-1)*8})")
        for i in range(4):
            g = b * 4 + i
            r = g * 8
            A(f"v_mfma_f32_16x16x32_bf16 {vr(ACC)}, {ar(r)}, {vr(SELA)}, {vr(ACC)}")
            A(f"v_mfma_f32_16x16x32_bf16 {vr(ACC)}, {ar(r+4)}, {vr(SELB)}, {vr(ACC)}")
            A(f"s_bitcmp1_b32 s{S_F}, {g}")
            A(f"s_cbranch_scc0 LE_nf{g}")
            A(f"s_cmp_eq_u32 s{S_PASS}, 0")
            A(f"s_cbranch_scc1 LE_fl{g}")
            A(f"buffer_load_dwordx2 v[{PV}:{PV+1}], v{VST}, {sr(SRD_H)}, s{S_SO} offen sc1")
            A("s_waitcnt vmcnt(0)")
            for k in range(2):
                A(f"v_lshlrev_b32 v{PK}, 16, v{PV+k}")
                A(f"v_and_b32 v{PK+1}, 0xffff0000, v{PV+k}")
                A(f"v_add_f32 v{ACC+2*k}, v{ACC+2*k}, v{PK}")
                A(f"v_add_f32 v{ACC+2*k+1}, v{ACC+2*k+1}, v{PK+1}")
            A(f"LE_fl{g}:")
            A("s_nop 3")
            A(f"v_cvt_pk_bf16_f32 v{PK}, v{ACC}, v{ACC+1}")
            A(f"v_cvt_pk_bf16_f32 v{PK+1}, v{ACC+2}, v{ACC+3}")
            for k in range(4):
                A(f"v_mov_b32 v{ACC+k}, 0")
            A(f"buffer_store_dwordx2 v[{PK}:{PK+1}], v{VST}, {sr(SRD_H)}, s{S_SO} offen{opt.get('ste', '')}")
            A(f"s_add_u32 s{S_SO}, s{S_SO}, 512")
            A(f"LE_nf{g}:")
        issue(b)
    A(f"v_add_u32 v{VT2}, {NBT*64}, v{VT2}")
    A(f"s_cmp_lt_u32 s{S_IT}, s{S_NIT}")
    A("s_cbranch_scc1 LE_loop")
    stamp()
    A(f"s_add_u32 s{S_PASS}, s{S_PASS}, 1")
    A(f"s_mul_i32 s{S_LIM}, s{S_PASS}, {PER}")
    A(f"v_cmp_lt_u32 vcc, s{S_LIM}, v{CNT}")
    A("s_cbranch_vccz LE_done")
    A(f"s_cmp_ge_u32 s{S_PASS}, {ECAP // PER}")
    A("s_cbranch_scc1 LE_done")
    A("s_waitcnt vmcnt(0) lgkmcnt(0)")
    A(f"s_add_u32 s{S_EO}, s{S_EO}, {PER*4}")
    A(f"v_add_u32 v{CP}, 0x{PER:x}, v{CP}")
    eloads()
    A("s_branch LE_pass")
    A("LE_done:")
    if opt.get('tpf'):
        A("s_getpc_b64 s[64:65]")
        A("LE_pc:")
        A("s_sub_u32 s64, s64, LE_pc-L2_tail_0")
        A("s_subb_u32 s65, s65, 0")
        A("s_mov_b32 s66, L2_rare_site0-L2_tail_0")
        A("s_mov_b32 s67, 0x00020000")
        A("s_mov_b64 exec, -1")
        A(f"v_lshlrev_b32 v1, 7, v{VL}")
        for k in range(3):
            A(f"s_movk_i32 s68, 0x{k*8192:x}")
            A(f"buffer_load_dword v{2+k}, v1, s[64:67], s68 offen")
    if timing:
        A("s_waitcnt vmcnt(0)")
        stamp()
        A(f"v_subrev_u32 v0, s100, v126")
        A("s_memrealtime s[98:99]")
        A("s_waitcnt lgkmcnt(0)")
        A("v_writelane_b32 v0, s98, 7")
        A("s_mov_b32 s62, 0x200000\ns_mov_b32 s63, 0x00020000")
        A(f"s_lshl_b32 s35, s{S_B}, 8")
        A(f"s_add_u32 s35, s35, 0x100000")
        A(f"v_lshlrev_b32 v1, 2, v{VL}")
        A(f"buffer_store_dword v0, v1, s[60:63], s35 offen")
    A("s_branch L2_end")
```

```python
from layout import *
from sched import *
import struct, math

K1_LDS = 163840
RA, RB, RB2 = 0, 65536, 81920
AUGP = 544
AUG = K1_LDS - 2304
SCR = {4: 131072, 2: 147456}

SRD_X, SRD_W1, SRD_W2, SRD_O, SRD_T = 40, 44, 48, 52, 56
S_W, S_ROLE, S_ROT, S_SCALE, S_EPS, S_R256 = 60, 61, 62, 63, 64, 65
SKW, SKX, SK2, SO, S_M0, S_ROW0, S_HI = 66, 74, 82, 90, 98, 99, 15
A_GRAM, A_SUM, A_CS, A_ONES, A_SEL = 128, 144, 160, 176, 180

MF32 = "v_mfma_f32_16x16x32_bf16"
MF16 = "v_mfma_f32_16x16x16_bf16"


class Regs:
    def __init__(s, NB, R=None):
        s.R = R or (7 if NB == 4 else 9)
        s.RING = 192
        p = 192 + 4 * s.R
        s.REC = p; p += 4 * NB
        s.VA = p; p += 8
        s.VAUG = p; p += 1
        s.VCW = p; p += 1
        s.VOUT = p; p += 1
        s.VS = p; p += 3
        if NB == 2:
            s.VW2 = p; p += 2
            s.VDL = p; p += 1
        assert p <= 255, p
        s.VD = 255
        s.T = 160 if NB == 4 else 128
        p = 128 if NB == 4 else 160
        s.VC = p; p += 2
        s.VX = p; p += 2
        s.VXR = p; p += 2
        s.VW = p; p += 2


def role_prog(role, opt):
    NB = 4 if role == 'qk' else 2
    G = Regs(NB, opt.get('R%d' % NB))
    st = Stream()
    stx = opt.get('st', '')
    X = lambda t, b: ar((t * NB + b) * 4)
    def acc1(f, b):
        if NB == 2 or f < 8: return (f * NB + b) * 4
        return [128, 160, 0, 32][(f - 8) // 2] + ((f & 1) * 4 + b) * 4
    def acc2(f, b):
        return 128 + (f * 2 + b) * 4 if f < 8 else ((2 * (f - 8) + 1) * 2 + b) * 4
    def rd(va, off):
        return lambda h: (lambda r: f"ds_read_b64_tr_b16 v[{r+2*h}:{r+2*h+1}], v{va} offset:{off}")
    def wreads(va, t, hs):
        return [rd(va, t * 8192)(0), rd(va, t * 8192 + hs)(1)]
    nst = [0]
    def stamp(kind=0):
        if not opt.get('timing') or kind != opt.get('skind', 0): return []
        nst[0] += 1
        return [V(f"s_memtime s[{16+2*nst[0]}:{17+2*nst[0]}]", cost=0)]
    def dma(which, reg, t, H, tag, needs=()):
        srd, vw, so = (SRD_W1, G.VW, SKW + t) if which == 1 else (SRD_W2, G.VW2, SK2 + t)
        return [V(f"s_add_u32 m0, s{S_M0}, 0x{reg + t*8192 - H*256:x}", needs=needs),
                V("s_nop 0", cost=0),
                VM(f"buffer_load_dwordx4 v{vw}, {sr(srd)}, s{so} offen offset:{H*256} lds"),
                VM(f"buffer_load_dwordx4 v{vw+1}, {sr(srd)}, s{so} offen offset:{H*256+1024} lds", tag=tag)]
    xslot = lambda p, b: (p * NB + b) % 8
    def xd(p, b):
        needs = [('x', 2 * p - 3, b)] if p * NB + b >= 8 else []
        return [V(f"s_add_u32 m0, s{S_M0}, 0x{RB + xslot(p,b)*8192:x}", needs=needs),
                V("s_nop 0", cost=0),
                VM(f"buffer_load_dwordx4 v{G.VX}, {sr(SRD_X)}, s{SKX+p*NB+b} offen lds"),
                VM(f"buffer_load_dwordx4 v{G.VX+1}, {sr(SRD_X)}, s{SKX+p*NB+b} offen offset:1024 lds", tag=('xd', p, b))]
    def xr(p, b):
        return [W(('xd', p, b))] + [LD(f"ds_read_b128 {X(2*p+e,b)}, v{G.VXR+e} offset:{xslot(p,b)*8192}", tag=('x', 2 * p + e, b)) for e in range(2)]
    fr = []
    bar = lambda *tags: [W(*tags), V("s_barrier")]
    for t in range(8):
        for e in range(2):
            cs = ar(A_CS + e * 4)
            mf = [lambda r, cs=cs, t=t: f"{MF32} {cs}, {vr(r)}, {ar(A_ONES)}, {cs if t else 0}"]
            for b in range(e * NB // 2, (e + 1) * NB // 2):
                gr = ar(A_GRAM + b * 4); sm = ar(A_SUM)
                mf.append(lambda r, gr=gr, t=t, b=b: f"{MF32} {gr}, {X(t,b)}, {X(t,b)}, {gr if t else 0}")
                mf.append(lambda r, sm=sm, t=t, b=b: f"{MF32} {sm}, {ar(A_SEL+b*4)}, {X(t,b)}, {sm if (t or b) else 0}")
            d = dict(reads=wreads(G.VC + e, t, 1024), mf=mf)
            if e == 0:
                d['pre'] = bar(('wa', t)); d['needs'] = [('x', t, b) for b in range(NB)]; d['mark'] = ('A', t)
            fr.append(d)
        for f in range(8):
            mf = [(lambda r, f=f, b=b, t=t: f"{MF32} {vr(acc1(f,b))}, {vr(r)}, {X(t,b)}, {vr(acc1(f,b)) if t else 0}") for b in range(NB)]
            fr.append(dict(reads=wreads(G.VA + f, t, 1024), mf=mf, mark=('Af', t, f)))
    for t in range(8):
        for e in range(2):
            cs = ar(A_CS + 8 + e * 4)
            d = dict(reads=wreads(G.VC + e, t, 1024), mf=[lambda r, cs=cs, t=t: f"{MF32} {cs}, {vr(r)}, {ar(A_ONES)}, {cs if t else 0}"], mark=('csB', t, e))
            if t == 0:
                d['pre'] = (bar(('wb', 7)) if e == 0 else []) + [V(f"v_add_u32 v{G.VC+e}, s{S_HI}, v{G.VC+e}")]
            fr.append(d)
    def aug(f, first=False):
        mf = [(lambda r, b=b: f"{MF16} {vr(acc1(f,b))}, v[{r}:{r+1}], v[{G.REC+4*b}:{G.REC+4*b+1}], {vr(acc1(f,b))}") for b in range(NB)]
        d = dict(reads=[lambda r: f"ds_read_b64_tr_b16 v[{r}:{r+1}], v{G.VAUG} offset:{f*32}"], mf=mf, mark=('fix', f))
        if first:
            d['pre'] = bar('csw') ; d['needs'] = [('rec', NB - 1)]
        return d
    npre = 1 if NB == 4 else 2
    for f in range(8, 16):
        for t in range(8):
            mf = [(lambda r, f=f, b=b, t=t: f"{MF32} {vr(acc1(f,b))}, {vr(r)}, {X(t,b)}, {vr(acc1(f,b)) if t else 0}") for b in range(NB)]
            d = dict(reads=wreads(G.VA + f - 8, t, 1024), mf=mf, mark=('B', f, t))
            if t == 0: d['pre'] = [V(f"v_add_u32 v{G.VA+f-8}, s{S_HI}, v{G.VA+f-8}")]
            fr.append(d)
        if f == 8 + npre - 1:
            for ff in range(8 + npre): fr.append(aug(ff, ff == 0))
        elif f >= 8 + npre:
            fr.append(aug(f))
    if NB == 2:
        def m2(f, b, u):
            a = vr(acc2(f, b)); v = vr(acc1(2 * u, b))
            return lambda r: f"{MF32} {a}, {v}, {vr(r)}, {a if u else 0}"
        for u in range(8):
            for f in range(8):
                d = dict(reads=wreads(G.VA + f, u, 4096), mf=[m2(f, b, u) for b in range(2)], mark=('A2', u, f), pre=[])
                if f == 0 and u == 0: d['pre'] += bar(('w2a', 3))
                if f == 0 and u == 1: d['pre'] += [V("s_barrier"), V(None, cost=0)]
                if f == 0 and u == 4: d['pre'] += bar(('w2a', 7))
                if u == 0: d['pre'].append(V(f"v_add_u32 v{G.VA+f}, v{G.VDL}, v{G.VA+f}"))
                fr.append(d)
        for f in range(8, 16):
            for u in range(8):
                d = dict(reads=wreads(G.VA + f - 8, u, 4096), mf=[m2(f, b, u) for b in range(2)], mark=('B2', f, u), pre=[])
                if f == 8 and u == 0: d['pre'] += bar(('w2b', 5))
                if u == 0: d['pre'].append(V(f"v_add_u32 v{G.VA+f-8}, 0x{RB2:x}, v{G.VA+f-8}"))
                fr.append(d)
    order = [('wa', 0)] + [('xd', 0, b) for b in range(NB)] + [('wa', 1), ('wa', 2)]
    for p in range(1, 4):
        order += [('xd', p, b) for b in range(NB)] + [('wa', c) for c in (2 * p + 1, 2 * p + 2) if c < 8]
    order += [('wb', c) for c in range(8)]
    lastx = {}
    for it in order:
        if it[0] == 'xd': lastx[xslot(it[1], it[2])] = it[1:]
    def item(it):
        if it[0] == 'wa': return dma(1, RA, it[1], 0, it)
        if it[0] == 'wb': return dma(1, RB, it[1], 1, it, [('x', 2 * lastx[it[1]][0] + 1, lastx[it[1]][1])])
        return xd(it[1], it[2])
    NPRE = opt.get('npre', 6)
    pre = []
    for it in order[:NPRE]: pre += item(it)
    if opt.get('touch', 0):
        pre.append(VM(f"buffer_load_dword v{G.VD}, v10, {sr(SRD_X)}, s8 offen"))
        pre.append(VM(f"buffer_load_dword v{G.VD}, v10, {sr(SRD_T)}, s9 offen"))
    setup2(pre, role, G, NB)
    pre += stamp()
    for b in range(NB): pre += xr(0, b)
    st.pre = pre
    mk, span = ring_build(st, fr, G.R, G.RING)
    idx = {f['mark']: i for i, f in enumerate(fr) if 'mark' in f}
    first = lambda m: span[idx[m]][0]
    last = lambda m: span[idx[m]][1]
    pregap = lambda m: span[idx[m] - G.R + 1][0]
    for s in stamp(): st.put(0, s)
    for t in range(1, 8):
        for s in stamp(1): st.put(first(('A', t)), s)
    PACE, LATG = opt.get('pace', 8), opt.get('latg', 40)
    pos = 0; xrpos = {(0, b): -1 for b in range(NB)}
    def place_xr(p, b, g):
        g = min(g + LATG, first(('A', 2 * p)) - 12 - 2 * (NB - 1 - b))
        xrpos[(p, b)] = st.fill(xr(p, b), g)
    for it in order[:NPRE]:
        if it[0] == 'xd' and it[1]: place_xr(it[1], it[2], 0)
    for it in order[NPRE:]:
        if it[0] == 'xd' and it[1] * NB + it[2] >= 8: pos = max(pos, xrpos[(it[1] - 2, it[2])] + 8)
        if it[0] == 'wb': pos = max(pos, xrpos[lastx[it[1]]] + 8)
        if it[0] == 'wa': assert pos < pregap(('A', it[1])) - 4, (it, pos)
        if it[0] == 'wb': assert pos < pregap(('csB', 0, 0)) - 4, (it, pos)
        g = st.fill(item(it), pos)
        if it[0] == 'xd': place_xr(it[1], it[2], g)
        pos = max(pos + PACE, g)
    T = G.T
    q = []
    for b in range(NB):
        q.append(LD(f"ds_write_b128 v{G.VS}, {ar(A_GRAM+4*b)} offset:{b*1024}"))
    q.append(LD(f"ds_read_b32 v{T}, v{G.VS+1}", tag='gr'))
    q.append(V(f"v_accvgpr_read_b32 v{T+1}, a{A_SUM}"))
    def cs_post(h):
        q = []
        for e in range(2):
            c = T + 8 + e * 12
            for r in range(4): q.append(V(f"v_accvgpr_read_b32 v{c+r}, a{A_CS+h*8+e*4+r}"))
            for lv in range(3):
                q.append(V(f"v_cvt_pk_bf16_f32 v{c+4}, v{c}, v{c+1}"))
                q.append(V(f"v_cvt_pk_bf16_f32 v{c+5}, v{c+2}, v{c+3}"))
                if lv < 2:
                    q.append(V(f"v_lshlrev_b32 v{c+6}, 16, v{c+4}"))
                    q.append(V(f"v_and_b32 v{c+7}, 0xffff0000, v{c+4}"))
                    q.append(V(f"v_lshlrev_b32 v{c+8}, 16, v{c+5}"))
                    q.append(V(f"v_and_b32 v{c+9}, 0xffff0000, v{c+5}"))
                q.append(LD(f"ds_write_b64 v{G.VCW}, v[{c+4}:{c+5}] offset:{lv*AUGP + e*32 + h*256}", tag='csw'))
                if lv < 2:
                    for r in range(4): q.append(V(f"v_sub_f32 v{c+r}, v{c+r}, v{c+6+r}"))
        return q
    qa = cs_post(0)
    q += qa[:8]
    q += [V(f"v_mul_f32 v{T+1}, s{S_R256}, v{T+1}"),
          W('gr'),
          V(f"v_mul_f32 v{T}, s{S_R256}, v{T}"),
          V(f"v_fma_f32 v{T}, -v{T+1}, v{T+1}, v{T}"),
          V(f"v_max_f32 v{T}, 0, v{T}"),
          V(f"v_cvt_pk_bf16_f32 v{T}, v{T}, v{T}"),
          V(f"v_cvt_pk_bf16_f32 v{T+4}, -v{T+1}, -v{T+1}"),
          V(f"v_and_b32 v{T}, 0xffff0000, v{T}"),
          V(f"v_add_f32 v{T}, s{S_EPS}, v{T}"),
          V(f"v_cvt_pk_bf16_f32 v{T}, v{T}, v{T}"),
          V(f"v_and_b32 v{T}, 0xffff0000, v{T}"),
          V(f"v_sqrt_f32 v{T}, v{T}", cost=2),
          V(f"v_mov_b32 v{T+5}, v{T+4}"),
          V(f"v_cvt_pk_bf16_f32 v{T}, v{T}, v{T}"),
          V(f"v_and_b32 v{T}, 0xffff0000, v{T}"),
          V(f"v_rcp_f32 v{T}, v{T}", cost=2),
          qa[8],
          V(f"v_mul_f32 v{T+6}, s{S_SCALE}, v{T}"),
          LD(f"ds_write_b128 v{G.VS}, {vr(T+4)}")]
    for b in range(NB):
        q.append(LD(f"ds_read_b128 {vr(G.REC+4*b)}, v{G.VS+2} offset:{b*256}", tag=('rec', b)))
    q += qa[9:]
    gx = pregap(('fix', 0))
    g = st.fill(q, first(('Af', 7, 0)) + 5, gx - 1)
    g = st.fill(cs_post(1), max(g, last(('csB', 7, 1)) + 6), gx - 1)
    for s in stamp(): st.put(first(('csB', 0, 0)), s)
    for s in stamp(): st.put(first(('fix', 0)), s)
    if NB == 2:
        grp = [dma(2, RA, u, 0, ('w2a', u)) for u in range(8)] + [dma(2, RB2, u, 1, ('w2b', u)) for u in (6, 7)]
        st.spread(grp, gx + 1, pregap(('A2', 0, 0)) - 8)
        g1d = pregap(('A2', 1, 0))
        st.spread([dma(2, RB2, u, 1, ('w2b', u)) for u in range(6)], g1d + 1, first(('A2', 4, 0)))
    def so_qk(u, b): return f"s{SO + b + (4 if u >= 4 else 0)} offen offset:{(u%4)*1024}"
    def epi1(u, b):
        A0, A1 = acc1(2 * u, b), acc1(2 * u + 1, b); a = G.REC + 4 * b + 2
        q = [V(f"v_mul_f32 v{A0+r}, v{A0+r}, v{a}") for r in range(4)]
        q += [V(f"v_mul_f32 v{A1+r}, v{A1+r}, v{a}") for r in range(2)]
        q += [V(f"v_cvt_pk_bf16_f32 v{A0}, v{A0}, v{A0+1}"), V(f"v_cvt_pk_bf16_f32 v{A0+1}, v{A0+2}, v{A0+3}")]
        q += [V(f"v_mul_f32 v{A1+r}, v{A1+r}, v{a}") for r in range(2, 4)]
        q += [V(f"v_cvt_pk_bf16_f32 v{A0+2}, v{A1}, v{A1+1}"), V(f"v_cvt_pk_bf16_f32 v{A0+3}, v{A1+2}, v{A1+3}")]
        if NB == 4:
            q.append(VM(f"buffer_store_dwordx4 {vr(A0)}, v{G.VOUT}, {sr(SRD_O)}, {so_qk(u,b)}{stx}"))
        return q
    def pack2(A0, A1):
        return [V(f"v_cvt_pk_bf16_f32 v{A0}, v{A0}, v{A0+1}"), V(f"v_cvt_pk_bf16_f32 v{A0+1}, v{A0+2}, v{A0+3}"),
                V(f"v_cvt_pk_bf16_f32 v{A0+2}, v{A1}, v{A1+1}"), V(f"v_cvt_pk_bf16_f32 v{A0+3}, v{A1+2}, v{A1+3}")]
    LAG = opt.get('lag', 5)
    g = 0
    nm = st.n()
    tail = []
    for u in range(8):
        for b in range(NB):
            e = first(('fix', 2 * u + 1)) + b + LAG
            if e > nm - 1:
                if not tail: tail.append(V("s_nop 7"))
                tail += epi1(u, b); continue
            g = st.fill(epi1(u, b), max(g, e), None if NB == 4 else first(('A2', u, 0)) - 3)
        if NB == 4:
            if u == 0: assert g < first(('B', 12, 0)) - 2
            if u == 1: assert g < first(('B', 14, 0)) - 2
        else:
            assert g < first(('A2', u, 0)) - 1, (u, g, first(('A2', u, 0)))
    if NB == 2:
        for s in stamp(): st.put(first(('A2', 0, 0)), s)
        for s in stamp(): st.put(first(('B2', 8, 0)), s)
        def done2(f): return last(('A2', 7, f)) if f < 8 else last(('B2', f, 7))
        items = []
        if role == 'v':
            for f in range(16):
                q = pack2(acc2(f, 0), acc2(f, 1))
                q.append(VM(f"buffer_store_dwordx4 {vr(acc2(f,0))}, v{G.VOUT}, {sr(SRD_O)}, s{SO+f//4} offen offset:{(f%4)*1024}{stx}"))
                items.append((done2(f), q))
        else:
            def grp(b, H, k):
                n = 2 * H + b
                S = (G.REC, G.REC + 4) if n == 0 else (acc2(2 * n, 0), acc2(2 * n + 1, 0))
                Q = lambda f: acc2(8 * H + f, b)
                O = [S[0], S[1], Q(0), Q(1)]
                q = []
                for r in range(4):
                    q.append(V(f"v_cvt_pk_bf16_f32 v{O[r]+k}, v{Q(2*k)+r}, v{Q(2*k+1)+r}"))
                if k == 3:
                    for r in range(4):
                        q.append(VM(f"buffer_store_dwordx4 {vr(O[r])}, v{G.VOUT}, {sr(SRD_O)}, s{SO+b} offen offset:{r*512+H*256}{stx}"))
                return (done2(8 * H + 2 * k + 1) - 1 + b, q)
            items += [grp(b, 0, k) for b in range(2) for k in range(4)]
            items += [grp(b, 1, k) for k in range(4) for b in range(2)]
        for e, q in items:
            e += LAG
            if e > nm - 1:
                if not tail: tail.append(V("s_nop 7"))
                tail += q; continue
            g = st.fill(q, max(g, e))
    for x in tail: st.put(nm - 1, x)
    for s in stamp(): st.put(nm - 1, s)
    em = Emitter()
    o = em.emit(st.seq())
    if opt.get('verbose'): print(role, st.stats(), "auto waits", em.auto, "lines", len(o))
    return o


def setup1(A, role, G, NB):
    if NB == 4:
        A("s_mul_i32 s6, s3, 5"); A("s_add_u32 s6, s6, s4"); A("s_lshl_b32 s6, s6, 8"); A(f"s_lshl_b32 s7, s{S_W}, 6")
    else:
        A("s_mul_i32 s6, s3, 10"); A("s_add_u32 s6, s6, s4"); A("s_lshl_b32 s6, s6, 7"); A(f"s_lshl_b32 s7, s{S_W}, 5")
    A(f"s_add_u32 s{S_ROW0}, s6, s7")
    A(f"s_lshl_b32 s6, s{S_ROW0}, 9")
    A("v_lshrrev_b32 v5, 3, v2")
    A("v_and_b32 v6, 6, v5")
    A("v_and_b32 v7, 7, v2")
    A("v_xor_b32 v6, v6, v7")
    A("v_lshlrev_b32 v5, 9, v5")
    A("v_lshl_add_u32 v5, v6, 4, v5")
    A(f"v_add_u32 v{G.VX}, s6, v5")
    A(f"v_add_u32 v{G.VX+1}, 0xc00, v{G.VX}")
    A(f"s_lshr_b32 s7, s{S_ROT}, 1")
    for p in range(2):
        A(f"s_xor_b32 s6, s7, {p}")
        A(f"s_lshl_b32 s{SKX+p*NB}, s6, 7")
        for b in range(1, NB): A(f"s_add_u32 s{SKX+p*NB+b}, s{SKX+p*NB}, {b*8192}")
    A(f"s_and_b32 s6, s{S_W}, 1"); A("s_lshl_b32 s6, s6, 2")
    A("v_lshrrev_b32 v5, 1, v3")
    A("v_xor_b32 v6, v5, v4")
    A("v_and_b32 v7, 1, v3")
    A("v_lshlrev_b32 v7, 4, v7")
    A("v_lshl_add_u32 v7, v4, 9, v7")
    A(f"s_lshl_b32 s7, s{S_W}, 12")
    A("v_add_u32 v7, s7, v7")
    A("v_xor_b32 v8, s6, v6")
    A(f"v_lshl_add_u32 v{G.VW}, v8, 5, v7")
    A(f"v_add_u32 v{G.VW+1}, 0x400, v{G.VW}")
    A("v_lshlrev_b32 v10, 7, v2")


def setup2(pre, role, G, NB):
    A = lambda t: pre.append(V(t))
    if NB == 2:
        A(f"v_lshl_add_u32 v{G.VW2}, v6, 5, v7")
        A("v_xor_b32 v8, 4, v6")
        A(f"v_lshl_add_u32 v{G.VW2+1}, v8, 5, v7")
        A(f"v_add_u32 v{G.VW2+1}, 0x400, v{G.VW2+1}")
        A(f"v_lshlrev_b32 v5, 10, v4")
        A(f"v_sub_u32 v{G.VDL}, 0x{(-65536) & 0xffffffff:x}, v5")
        for u in range(8): A(f"s_mov_b32 s{SK2+u}, 0x{u*16384:x}")
        o = []; srd_from(o, SRD_W2, 32, 0, 131072)
        for t in o: A(t)
    A("v_lshrrev_b32 v5, 2, v3")
    A("v_and_b32 v6, 3, v3")
    A("v_and_b32 v7, 1, v4")
    A("v_lshl_or_b32 v7, v7, 2, v5")
    A("v_lshl_add_u32 v8, v4, 3, v5")
    A("v_lshlrev_b32 v8, 8, v8")
    A("v_lshl_add_u32 v8, v6, 3, v8")
    for f in range(8):
        A(f"v_xor_b32 v9, {f}, v7")
        A(f"v_lshl_add_u32 v{G.VA+f}, v9, 5, v8")
    A(f"s_lshl_b32 s6, s{S_W}, 1")
    A(f"v_xor_b32 v9, s6, v7")
    A(f"v_lshl_add_u32 v{G.VC}, v9, 5, v8")
    A(f"v_xor_b32 v9, 1, v9")
    A(f"v_lshl_add_u32 v{G.VC+1}, v9, 5, v8")
    A("v_cmp_eq_u32 vcc, 0, v4")
    A("v_mov_b32 v11, 0"); A("v_mov_b32 v12, 0"); A("v_mov_b32 v13, 0")
    A("v_cndmask_b32 v9, 3, v5, vcc")
    A(f"v_mul_u32_u24 v9, {AUGP}, v9")
    A(f"v_lshl_add_u32 v9, v6, 3, v9")
    A(f"v_add_u32 v{G.VAUG}, 0x{AUG:x}, v9")
    A(f"v_lshlrev_b32 v9, 3, v2")
    A(f"v_add_u32 v9, 0x{AUG + 3*AUGP:x}, v9")
    pre.append(LD("ds_write_b64 v9, v[12:13]"))
    A(f"s_lshl_b32 s6, s{S_W}, 6")
    A(f"s_add_u32 s6, s6, 0x{AUG:x}")
    A(f"v_lshl_add_u32 v{G.VCW}, v4, 3, s6")
    A(f"s_mul_i32 s6, s{S_W}, {NB*1024}")
    A(f"s_add_u32 s6, s6, 0x{SCR[NB]:x}")
    A(f"v_lshl_add_u32 v{G.VS}, v2, 4, s6")
    A(f"v_lshl_add_u32 v{G.VS+2}, v3, 4, s6")
    A(f"v_and_b32 v9, {NB-1}, v4")
    A(f"v_lshl_add_u32 v9, v9, 10, v{G.VS+2}")
    A(f"v_lshl_add_u32 v9, v5, 8, v9")
    A(f"v_lshl_add_u32 v{G.VS+1}, v6, 2, v9")
    A("v_mov_b32 v9, 0x3f803f80")
    A(f"v_and_b32 v8, {NB-1}, v5")
    for k in range(4): A(f"v_accvgpr_write_b32 a{A_ONES+k}, v9")
    for b in range(NB):
        A(f"v_cmp_eq_u32 vcc, {b}, v8")
        A("s_nop 1")
        A("v_cndmask_b32 v7, v11, v9, vcc")
        for k in range(4): A(f"v_accvgpr_write_b32 a{A_SEL+4*b+k}, v7")
    for t in range(3, 8):
        A(f"s_xor_b32 s6, s{S_ROT}, {t}")
        A(f"s_lshl_b32 s{SKW+t}, s6, 14")
    A(f"s_lshr_b32 s7, s{S_ROT}, 1")
    for p in range(2, 4):
        A(f"s_xor_b32 s6, s7, {p}")
        A(f"s_lshl_b32 s{SKX+p*NB}, s6, 7")
        for b in range(1, NB): A(f"s_add_u32 s{SKX+p*NB+b}, s{SKX+p*NB}, {b*8192}")
    A(f"s_and_b32 s6, s{S_ROT}, 1")
    A(f"s_lshl_b32 s6, s6, 2")
    A(f"v_and_b32 v7, 6, v3")
    A(f"v_xor_b32 v7, v7, v4")
    A(f"v_xor_b32 v7, s6, v7")
    A(f"s_add_u32 s6, s{S_M0}, 0x{RB:x}")
    A(f"v_lshl_add_u32 v8, v3, 7, s6")
    A(f"v_lshl_add_u32 v{G.VXR}, v7, 4, v8")
    A(f"v_xor_b32 v{G.VXR+1}, 64, v{G.VXR}")
    A(f"s_mov_b32 s{S_EPS}, 0x3727c5ac")
    A(f"s_mov_b32 s{S_R256}, 0x3b800000")
    A(f"s_mov_b32 s{S_HI}, 0x10000")
    o = []
    A(f"s_lshl_b32 s{SO}, s{S_ROW0}, 9")
    if role == 'qk':
        qs = struct.unpack('<I', struct.pack('<f', math.log2(math.e) / 16))[0]
        A(f"s_cmp_eq_u32 s{S_ROLE}, 0")
        A(f"s_cselect_b32 s{S_SCALE}, 0x{qs:x}, 1.0")
        A(f"s_cselect_b32 s6, 0x{QF_OFF:x}, 0x{KF_OFF:x}")
        srd_from(o, SRD_O, 38, 0, QF_BYTES, 6)
        for b in range(1, 4): A(f"s_add_u32 s{SO+b}, s{SO}, {b*8192}")
        for b in range(4): A(f"s_add_u32 s{SO+4+b}, s{SO+b}, 4096")
        A(f"v_lshlrev_b32 v{G.VOUT}, 4, v2")
    elif role == 'v':
        A(f"s_mov_b32 s{S_SCALE}, 1.0")
        srd_from(o, SRD_O, 38, VF_OFF, VF_BYTES)
        for b in range(1, 4): A(f"s_add_u32 s{SO+b}, s{SO}, {b*4096}")
        A(f"v_lshlrev_b32 v{G.VOUT}, 4, v2")
    else:
        A(f"s_mov_b32 s{S_SCALE}, 1.0")
        srd_from(o, SRD_O, 38, ME_OFF, ME_BYTES)
        A(f"s_add_u32 s{SO+1}, s{SO}, 8192")
        A(f"v_lshlrev_b32 v{G.VOUT}, 4, v3")
        A(f"v_lshl_add_u32 v{G.VOUT}, v4, 11, v{G.VOUT}")
    for t in o: A(t)


def edge_prog(opt):
    o = []; A = o.append
    L_CNT = 65536
    D0, S0, B0 = 16, 56, 96
    SRD_D, SRD_S, SRD_E, SRD_C = 40, 44, 48, 52
    A("s_lshl_b32 s5, s4, 2")
    A(f"s_add_u32 s5, s5, s{S_W}")
    A(f"s_mul_i32 s6, s5, {E // 64 * 4}")
    A("v_lshlrev_b32 v5, 4, v2")
    A("v_lshlrev_b32 v6, 2, v2")
    A(f"v_add_u32 v6, 0x{L_CNT:x}, v6")
    A("v_mov_b32 v7, 0")
    A("ds_write_b32 v6, v7")
    A("s_mov_b32 s7, 4096"); A("s_mov_b32 s8, 8192")
    A("s_waitcnt lgkmcnt(0)")
    srd_from(o, SRD_D, 20, 0, E // 64 * 4, 6)
    srd_from(o, SRD_S, 18, 0, E // 64 * 4, 6)
    so = lambda i: ("0", "s7", "s8")[i // 4] + f" offen offset:{(i%4)*1024}"
    for i in range(10):
        A(f"buffer_load_dwordx4 {vr(D0+4*i)}, v5, {sr(SRD_D)}, {so(i)}")
        A(f"buffer_load_dwordx4 {vr(S0+4*i)}, v5, {sr(SRD_S)}, {so(i)}")
    srd_from(o, SRD_E, 38, EDGE_OFF, EDGE_BYTES)
    srd_from(o, SRD_C, 38, ECNT_OFF, ECNT_BYTES)
    A(f"s_mov_b32 s9, {BMAGIC}")
    A(f"s_mov_b32 s10, {-BN & 0xffffffff}")
    A(f"s_mov_b32 s11, 0x{L_CNT:x}")
    A("v_mov_b32 v7, 1")
    A(f"v_cmp_gt_u32 vcc, {E // 64 // 4 - 576}, v2")
    A("s_mov_b64 s[12:13], vcc")
    A("s_barrier")
    def place(i):
        for k in range(4):
            d, s, b = D0 + 4 * i + k, S0 + 4 * i + k, B0 + 4 * i + k
            A(f"v_and_b32 v8, 0xff, v{d}")
            A(f"v_lshlrev_b32 v8, 2, v8")
            A(f"v_lshl_add_u32 v8, v{b}, 10, v8")
            A(f"ds_write_b32 v8, v{s}")
    for i in range(10):
        A(f"s_waitcnt vmcnt({2*(9-i)})")
        if i == 9: A("s_mov_b64 exec, s[12:13]")
        for k in range(4):
            d, s, b = D0 + 4 * i + k, S0 + 4 * i + k, B0 + 4 * i + k
            A(f"v_mul_u32_u24 v{b}, s9, v{d}")
            A(f"v_lshrrev_b32 v{b}, {BSHIFT}, v{b}")
            A(f"v_mad_i32_i24 v{d}, v{b}, s10, v{d}")
            A(f"v_lshl_or_b32 v{s}, v{d}, 18, v{s}")
            A(f"v_lshl_add_u32 v{d}, v{b}, 2, s11")
            A(f"ds_add_rtn_u32 v{d}, v{d}, v7")
        if i == 9: A("s_mov_b64 exec, -1")
        if i:
            A("s_waitcnt lgkmcnt(4)")
            place(i - 1)
    A("s_mov_b64 exec, s[12:13]")
    A("s_waitcnt lgkmcnt(4)")
    place(9)
    A("s_mov_b64 exec, -1")
    A("s_waitcnt lgkmcnt(0)")
    A("s_barrier")
    A("ds_read_b32 v8, v6")
    A(f"s_lshl_b32 s6, s{S_W}, 14")
    A("v_add_u32 v9, s6, v5")
    for k in range(16):
        A(f"ds_read_b128 {vr(136+4*k)}, v9 offset:{k*1024}")
    A(f"s_mul_i32 s6, s{S_W}, {16*NEW*ECAP*4}")
    A(f"s_mul_i32 s7, s4, {ECAP*4}")
    A("s_add_u32 s6, s6, s7")
    A("v_lshlrev_b32 v9, 6, v2")
    A("s_lshl_b32 s8, s4, 2")
    A(f"s_cmp_eq_u32 s{S_W}, 0")
    A("s_cselect_b32 s8, s8, 0x7fff0000")
    A("s_waitcnt lgkmcnt(15)")
    A(f"buffer_store_dword v8, v9, {sr(SRD_C)}, s8 offen")
    A(f"v_cmp_lt_u32 vcc, 0x100, v8")
    A("s_cbranch_vccnz L1_eslow")
    for k in range(16):
        A(f"s_waitcnt lgkmcnt({15-k})")
        A(f"buffer_store_dwordx4 {vr(136+4*k)}, v5, {sr(SRD_E)}, s6 offen")
        A(f"s_add_u32 s6, s6, {NEW*ECAP*4}")
    A("s_branch L1_fin")
    A("L1_eslow:")
    A(f"s_mov_b32 s9, {NEW*ECAP*4}")
    for i in range(10):
        if i == 9: A("s_mov_b64 exec, s[12:13]")
        for k in range(4):
            d, s, b = D0 + 4 * i + k, S0 + 4 * i + k, B0 + 4 * i + k
            A(f"v_mul_u32_u24 v{b}, s9, v{b}")
            A(f"v_lshl_add_u32 v{b}, v{d}, 2, v{b}")
            A(f"buffer_store_dword v{s}, v{b}, {sr(SRD_E)}, s7 offen")
    A("s_mov_b64 exec, -1")
    return o


def gen_k1(opt=None):
    opt = opt or {}
    o = []
    A = o.append
    A("s_getpc_b64 s[56:57]")
    A("s_load_dwordx16 s[16:31], s[0:1], 0")
    A("s_load_dwordx8 s[32:39], s[0:1], 64")
    if opt.get('timing'):
        A("s_memtime s[100:101]")
    A("s_cmp_ge_u32 s2, 256")
    A("s_cbranch_scc1 L1_end")
    A("v_lshrrev_b32 v1, 6, v0")
    A("v_and_b32 v2, 63, v0")
    A("s_and_b32 s3, s2, 7")
    A(f"v_readfirstlane_b32 s{S_W}, v1")
    A("s_lshr_b32 s4, s2, 3")
    A("s_lshl_b32 s5, s4, 2")
    A(f"s_add_u32 s5, s5, s{S_W}")
    if opt.get('cpf', 1):
        A("s_and_b32 s56, s56, 0xffffff00")
        A(f"s_mov_b32 s58, {opt.get('code_end', 'L1_end')}-k1_kernel")
        A("s_mov_b32 s59, 0x00020000")
        A("s_and_b32 s6, s5, 15")
        A("s_lshl_b32 s6, s6, 13")
        A("v_lshlrev_b32 v10, 7, v2")
        A("buffer_load_dword v255, v10, s[56:59], s6 offen")
    A("v_and_b32 v3, 15, v2")
    A("v_lshrrev_b32 v4, 4, v2")
    A(f"s_and_b32 s{S_ROT}, s4, {opt.get('rotm', 7)}")
    A(f"s_lshl_b32 s{S_M0}, s{S_W}, 11")
    for t in range(3):
        A(f"s_xor_b32 s6, s{S_ROT}, {t}")
        A(f"s_lshl_b32 s{SKW+t}, s6, 14")
    A("s_sub_u32 s6, s5, 80")
    A("s_cmp_ge_u32 s5, 80")
    A("s_cselect_b32 s6, s6, s5")
    A("s_mul_i32 s8, s3, 80")
    A("s_add_u32 s8, s8, s6")
    A("s_lshl_b32 s8, s8, 13")
    A("s_cmp_ge_u32 s4, 10")
    A("s_cbranch_scc1 L1_notqk")
    def head(role, wptr):
        NB = 4 if role == 'qk' else 2
        G = Regs(NB, opt.get('R%d' % NB))
        setup1(A, role, G, NB)
        A("s_lshl_b32 s5, s4, 2")
        A(f"s_add_u32 s5, s5, s{S_W}")
        A("s_and_b32 s9, s5, 15")
        A("s_lshl_b32 s9, s9, 13")
        A("s_waitcnt lgkmcnt(0)")
        if role == 'qk':
            A(f"s_cmp_eq_u32 s{S_ROLE}, 0")
            A("s_cselect_b32 s6, s26, s28"); A("s_cselect_b32 s7, s27, s29")
            srd_from(o, SRD_W1, 6, 0, 131072)
            srd_from(o, SRD_X, 16, 0, N * 512)
            srd_from(o, SRD_T, 6, 0, 131072)
        else:
            srd_from(o, SRD_W1, wptr, 0, 131072)
            srd_from(o, SRD_X, 16, 0, N * 512)
            A("s_bitcmp1_b32 s5, 4")
            A(f"s_cselect_b32 s6, s32, s{wptr}"); A(f"s_cselect_b32 s7, s33, s{wptr+1}")
            srd_from(o, SRD_T, 6, 0, 131072)
    A(f"s_cmp_ge_u32 s4, 5")
    A(f"s_cselect_b32 s{S_ROLE}, 1, 0")
    A(f"s_mul_i32 s6, s{S_ROLE}, 5")
    A("s_sub_u32 s4, s4, s6")
    head('qk', None)
    o += role_prog('qk', opt)
    A("s_branch L1_fin")
    A("L1_notqk:")
    A("s_cmp_ge_u32 s4, 20")
    A("s_cbranch_scc1 L1_notv")
    A(f"s_mov_b32 s{S_ROLE}, 2")
    A("s_sub_u32 s4, s4, 10")
    head('v', 30)
    o += role_prog('v', opt)
    A("s_branch L1_fin")
    A("L1_notv:")
    A("s_cmp_ge_u32 s4, 30")
    A("s_cbranch_scc1 L1_edge")
    A(f"s_mov_b32 s{S_ROLE}, 3")
    A("s_sub_u32 s4, s4, 20")
    head('m', 24)
    o += role_prog('m', opt)
    A("s_branch L1_fin")
    A("L1_edge:")
    A(f"s_mov_b32 s{S_ROLE}, 4")
    A("s_sub_u32 s4, s4, 30")
    A("s_lshl_b32 s3, s3, 1")
    A("s_add_u32 s4, s4, s3")
    o += edge_prog(opt)
    A("L1_fin:")
    if opt.get('timing'):
        A("s_memtime s[4:5]")
        A("s_waitcnt vmcnt(0)")
        A("s_memtime s[6:7]")
        A("s_waitcnt lgkmcnt(0)")
        for k in range(7):
            A(f"v_writelane_b32 v0, s{18+2*k}, {k}")
        A("v_writelane_b32 v0, s4, 7")
        A("v_writelane_b32 v0, s6, 8")
        A(f"v_subrev_u32 v0, s100, v0")
        A(f"v_writelane_b32 v0, s{S_ROLE}, 63")
        srd_from(o, 4, 34, 0, 1 << 20)
        A(f"s_lshl_b32 s8, s2, 2")
        A(f"s_add_u32 s8, s8, s{S_W}")
        A(f"s_lshl_b32 s8, s8, 8")
        A(f"v_mbcnt_lo_u32_b32 v1, -1, 0")
        A(f"v_mbcnt_hi_u32_b32 v1, -1, v1")
        A(f"v_lshlrev_b32 v1, 2, v1")
        A(f"buffer_store_dword v0, v1, s[4:7], s8 offen")
    A("L1_end:")
    return "\n".join(o)


def kernel_desc(opt=None):
    return dict(name="k1_kernel", body=gen_k1(opt), vgpr=512, accum=256, grid=256, block=256, lds=K1_LDS)

if __name__ == "__main__":
    import hazard
    t = gen_k1({'verbose': 1})
    e = hazard.check(t, "k1")
    print("\n".join(e[:30])); print(len(e), "hazards;", len(t.split("\n")), "lines")
```

```python
from layout import *
from sched import *
import hazard
import struct, math

K1_LDS = 163840
SRD_X, SRD_W1, SRD_W2, SRD_O, SRD_H = 40, 44, 48, 52, 56
S_W, S_ROLE, S_ROT, S_M0, S_XO = 60, 61, 62, 63, 64
SK1, SK2, SO, S_SC, S_EPS, S_R256, S_MASK = 66, 74, 82, 86, 88, 89, 90
VL16, VWQ, VWK, VTR, VK, VH, VQW, VQ, VHW = 16, 17, 21, 25, 29, 31, 33, 35, 36
MF32 = "v_mfma_f32_16x16x32_bf16"
DPP = " row_mask:0xf bank_mask:0x%x"


def gemm_prog(role, opt):
    NW = opt.get('nw', 8); NF = 16 // NW; CW = 16 * NF; NPC = NF; CH = NPC * 1024; RS = 32 * NF
    main = role == 'q'
    NRB = opt.get('nrb', 3) if main else 4
    RPW = 16 * NRB // NW; NL = RPW // 2
    IMG = NRB * 8192
    RC = (K1_LDS - (2 if main else 1) * IMG) // NW // CH
    RC = min(RC, opt.get('rc', 8))
    WSZ = RC * CH
    HIMG = NW * WSZ; QIMG = HIMG + IMG
    assert QIMG + (IMG if main else 0) <= K1_LDS
    stx = opt.get('st', '')
    p = VHW + NL; p = (p + 3) // 4 * 4
    HP = p; p += NL * 4
    ACC1 = p; p += NF * NRB * 4
    LN0 = p
    ACC2 = p; p += NF * NRB * 4 if main else 0
    RW, RB = opt.get('rw', 6 if NW == 8 else 10), opt.get('rb', 4 if NW == 8 else 3) * NRB
    WR = p; p += RW * 4
    BR = p; p += RB * 4
    assert p <= 255, p
    nst = [0]
    def stamp(kind=0):
        if not opt.get('timing') or kind != opt.get('skind', 0) or (kind and not main): return []
        nst[0] += 1
        assert nst[0] <= 8
        return [V(f"s_memtime s[{14+2*nst[0]}:{15+2*nst[0]}]", cost=0)]
    pre = []
    A = lambda t: pre.append(V(t))
    A(f"v_lshlrev_b32 v{VL16}, 4, v2")
    A(f"s_mul_i32 s{S_M0}, s{S_W}, {WSZ}")
    if main:
        A(f"s_mul_i32 s6, s4, {NRB*8192}")
        A(f"s_mul_i32 s7, s{S_W}, {RPW*512}")
        A(f"s_add_u32 s{S_XO}, s6, s7")
        A(f"s_add_u32 s{S_XO+1}, s{S_XO}, 4096")
    else:
        A("s_and_b32 s6, s4, 3")
        A(f"s_lshl_b32 s6, s6, 6")
        A(f"s_mul_i32 s7, s{S_W}, {RPW}")
        A("s_add_u32 s6, s6, s7")
        A("v_lshrrev_b32 v5, 5, v2")
        A("v_and_b32 v6, 31, v2")
        A("v_lshlrev_b32 v6, 4, v6")
        A("s_cmp_ge_u32 s4, 4")
        A("s_cselect_b64 vcc, -1, 0")
        for j in range(NL):
            A(f"v_add3_u32 v7, v5, s6, {2*j}")
            A("v_and_b32 v8, 0x80, v7")
            A("v_bfe_u32 v9, v7, 2, 1"); A("v_lshl_or_b32 v8, v9, 6, v8")
            A("v_bfe_u32 v9, v7, 4, 1"); A("v_lshl_or_b32 v8, v9, 5, v8")
            A("v_and_b32 v9, 3, v7"); A("v_lshl_or_b32 v8, v9, 3, v8")
            A("v_bfe_u32 v9, v7, 5, 2"); A("v_lshl_or_b32 v8, v9, 1, v8")
            A("v_bfe_u32 v9, v7, 3, 1"); A("v_or_b32 v8, v9, v8")
            A("v_cndmask_b32 v8, v8, v7, vcc")
            A(f"v_lshl_add_u32 v{HP+4*j}, v8, 9, v6")
    A(f"s_lshl_b32 s7, s{S_W}, {(CW*2).bit_length()-1}")
    if NW == 4:
        A("v_lshrrev_b32 v5, 3, v2")
        A("v_and_b32 v6, 7, v2")
        A("v_and_b32 v7, 2, v5")
        A("v_xor_b32 v6, v6, v7")
        A("v_lshl_add_u32 v5, v5, 9, s7")
        A(f"v_lshl_add_u32 v{VWQ}, v6, 4, v5")
        A("v_xor_b32 v6, 4, v6")
        A(f"v_lshl_add_u32 v{VWQ+1}, v6, 4, v5")
        A(f"v_add_u32 v{VWQ+1}, 0xc00, v{VWQ+1}")
        A(f"v_add_u32 v{VWQ+2}, 0x1800, v{VWQ}")
        A(f"v_add_u32 v{VWQ+3}, 0x1800, v{VWQ+1}")
    else:
        A("v_lshrrev_b32 v5, 2, v2")
        A("v_and_b32 v6, 3, v2")
        A("v_lshrrev_b32 v7, 5, v2")
        A("v_lshlrev_b32 v7, 1, v7")
        A("v_xor_b32 v6, v6, v7")
        A("v_lshl_add_u32 v5, v5, 9, s7")
        A(f"v_lshl_add_u32 v{VWQ}, v6, 4, v5")
        A(f"v_add_u32 v{VWQ+1}, 0x1c00, v{VWQ}")
    for t in range(8):
        A(f"s_xor_b32 s6, s{S_ROT}, {t}")
        A(f"s_lshl_b32 s{SK1+t}, s6, 14")
    A("s_waitcnt lgkmcnt(0)")
    o = []
    if main:
        srd_from(o, SRD_X, 16, 0, N * 512); srd_from(o, SRD_W1, 26, 0, 131072)
    else:
        o += ["s_cmp_ge_u32 s4, 4", "s_cselect_b32 s6, s30, s24", "s_cselect_b32 s7, s31, s25"]
        srd_from(o, SRD_X, 6, 0, 131072); srd_from(o, SRD_W1, 32, 0, 131072)
    for t in o: A(t)
    xso = lambda j: f"s{S_XO + j // 4} offen offset:{(j % 4) * 1024}"
    for j in range(NL):
        if main: pre.append(VM(f"buffer_load_dwordx4 {vr(HP+4*j)}, v{VL16}, {sr(SRD_X)}, {xso(j)}", tag=('x', j)))
        else: pre.append(VM(f"buffer_load_dwordx4 {vr(HP+4*j)}, v{HP+4*j}, {sr(SRD_X)}, 0 offen", tag=('x', j)))
    NCH = 16 if main else 8
    def dma(c, needs=()):
        srd, vw, so = (SRD_W1, VWQ, SK1 + c) if c < 8 else (SRD_W2, VWK, SK2 + c - 8)
        q = [V(f"s_add_u32 m0, s{S_M0}, 0x{(c % RC) * CH:x}", needs=needs), V("s_nop 0", cost=0)]
        for k in range(NPC):
            q.append(VM(f"buffer_load_dwordx4 v{vw+k}, {sr(srd)}, s{so} offen offset:{k*1024} lds", tag=('c', c) if k == NPC - 1 else None))
        return q
    NPRE = min(opt.get('npre', RC), RC)
    TCH = opt.get('touch', 0)
    if TCH and main:
        o = []; srd_from(o, SRD_W2, 28, 0, 131072)
        for t in o: A(t)
        A(f"s_sub_u32 s6, s5, {(opt.get('new', 32) + 8) // 8 * NW + 16}")
        A("s_lshl_b32 s7, s6, 13")
        A("s_cmp_lt_u32 s6, 16")
        A("s_cselect_b32 s7, s7, 0x7fff0000")
        pre.append(VM(f"buffer_load_dword v255, v10, {sr(SRD_W2)}, s7 offen"))
        if TCH > 1:
            A(f"s_sub_u32 s6, s6, 16")
            A("s_lshl_b32 s7, s6, 13")
            A("s_cmp_lt_u32 s6, 16")
            A("s_cselect_b32 s7, s7, 0x7fff0000")
            pre.append(VM(f"buffer_load_dword v255, v10, {sr(SRD_W1)}, s7 offen"))
    for c in range(NPRE): pre += dma(c)
    A("v_bfe_u32 v5, v2, 2, 3")
    A(f"v_xor_b32 v5, s{S_ROT}, v5")
    A("v_and_b32 v6, 3, v2")
    A("v_lshlrev_b32 v7, 10, v5")
    A("v_lshl_add_u32 v7, v6, 8, v7")
    A(f"v_add_u32 v7, 0x{HIMG:x}, v7")
    A("v_and_b32 v5, 1, v5")
    A("v_lshl_or_b32 v6, v5, 2, v6")
    A("v_lshrrev_b32 v5, 5, v2")
    A(f"s_mul_i32 s6, s{S_W}, {RPW}")
    for j in range(NL):
        A(f"v_add3_u32 v8, v5, s6, {2*j}")
        A("v_lshrrev_b32 v9, 4, v8")
        A("v_lshl_add_u32 v9, v9, 13, v7")
        A("v_and_b32 v8, 15, v8")
        A("v_xor_b32 v8, v8, v6")
        A(f"v_lshl_add_u32 v{VHW+j}, v8, 4, v9")
    A("v_xor_b32 v5, v3, v4")
    A("v_lshlrev_b32 v5, 4, v5")
    A("v_lshl_add_u32 v5, v4, 8, v5")
    A(f"v_add_u32 v{VH}, 0x{HIMG:x}, v5")
    A(f"v_xor_b32 v{VH+1}, 64, v{VH}")
    A("v_lshrrev_b32 v5, 2, v3")
    A("v_and_b32 v6, 3, v3")
    A("v_and_b32 v7, 1, v4")
    if NW == 4:
        A("v_lshlrev_b32 v7, 2, v7"); A("v_and_b32 v8, 2, v5"); A("v_or_b32 v7, v7, v8")
    else:
        A("v_lshlrev_b32 v7, 1, v7")
    A("v_lshl_add_u32 v8, v4, 3, v5")
    A(f"v_lshlrev_b32 v8, {RS.bit_length()-1}, v8")
    A(f"v_add_u32 v8, s{S_M0}, v8")
    if main:
        A("v_and_b32 v9, 1, v6"); A("v_lshl_add_u32 v8, v9, 3, v8")
        A("v_lshrrev_b32 v6, 1, v6")
    A("v_xor_b32 v6, v6, v7")
    for f in range(NF):
        if main:
            A(f"v_xor_b32 v9, {2*f}, v6"); A(f"v_lshl_add_u32 v{VTR+f}, v9, 4, v8")
        elif f % 2 == 0:
            A(f"v_xor_b32 v9, {2*f}, v6"); A(f"v_lshl_add_u32 v{VTR+f}, v9, 4, v8")
        else:
            A(f"v_add_u32 v{VTR+f}, 8, v{VTR+f-1}")
    o = []
    if main:
        A("v_lshrrev_b32 v5, 3, v2")
        A("v_and_b32 v6, 7, v2")
        A("v_lshrrev_b32 v7, 1, v5")
        A("v_xor_b32 v6, v6, v7")
        A("v_and_b32 v7, 4, v5")
        A("v_add_u32 v5, v5, v7")
        A(f"s_mul_i32 s6, s{S_W}, {CW*512}")
        A("v_lshl_add_u32 v5, v5, 9, s6")
        A(f"v_lshl_add_u32 v{VWK}, v6, 4, v5")
        A("v_xor_b32 v6, 4, v6")
        A(f"v_lshl_add_u32 v{VWK+1}, v6, 4, v5")
        A(f"v_add_u32 v{VWK+1}, 0x{16*512-1024:x}, v{VWK+1}")
        if NW == 4:
            A(f"v_mov_b32 v{VWK+2}, v{VWK}")
            A(f"v_mov_b32 v{VWK+3}, v{VWK+1}")
        A(f"s_lshr_b32 s7, s{S_ROT}, 1")
        for tp in range(4):
            A(f"s_xor_b32 s6, s7, {tp}")
            A(f"s_lshl_b32 s{SK2+2*tp}, s6, 7")
            A(f"s_add_u32 s{SK2+2*tp+1}, s{SK2+2*tp}, {(4 if NW == 8 else 32)*512}")
        A(f"s_and_b32 s6, s{S_ROT}, 1"); A("s_lshl_b32 s6, s6, 2")
        A("v_lshrrev_b32 v5, 1, v3")
        A("v_xor_b32 v5, v5, v4")
        A("v_xor_b32 v5, s6, v5")
        A(f"v_lshl_add_u32 v6, v3, 7, s{S_M0}")
        A(f"v_lshl_add_u32 v{VK}, v5, 4, v6")
        A(f"v_xor_b32 v{VK+1}, 64, v{VK}")
        A(f"s_mul_i32 s6, s{S_W}, {NF//2}")
        A(f"s_xor_b32 s6, s6, s{S_ROT}")
        A("s_lshl_b32 s6, s6, 10")
        A(f"s_add_u32 s6, s6, 0x{QIMG:x}")
        A("v_lshrrev_b32 v5, 1, v4"); A("v_and_b32 v6, 1, v4")
        A("v_lshl_add_u32 v5, v5, 8, s6")
        A("v_lshl_add_u32 v5, v6, 3, v5")
        A(f"v_lshl_add_u32 v{VQW}, v3, 4, v5")
        A(f"v_xor_b32 v{VQW+1}, 0x400, v{VQW}")
        A(f"v_add_u32 v{VQ}, 0x{QIMG:x}, v{VL16}")
        srd_from(o, SRD_W2, 26 if opt.get('w2same') else 28, 0, 131072)
        srd_from(o, SRD_O, 38, QF_OFF, QF_BYTES)
        srd_from(o, SRD_H, 38, H_OFF, NB16 * 8192)
        A(f"s_mul_i32 s6, s4, {NRB*8192}")
        A(f"s_mul_i32 s7, s{S_W}, {NF//2*1024}")
        A(f"s_add_u32 s{SO}, s6, s7")
        for b in range(1, NRB): A(f"s_add_u32 s{SO+b}, s{SO}, {b*8192}")
        qs = struct.unpack('<I', struct.pack('<f', math.log2(math.e) / 16))[0]
        A(f"s_mov_b32 s{S_SC}, 0x{qs:x}"); A(f"s_mov_b32 s{S_SC+1}, 0x{qs:x}")
        A(f"s_mov_b32 s{S_EPS}, 0x3727c5ac"); A(f"s_mov_b32 s{S_R256}, 0x3b800000"); A(f"s_mov_b32 s{S_MASK}, 0xffff0000")
    else:
        srd_from(o, SRD_O, 38, WF_OFF, 262144)
        A("s_lshr_b32 s6, s4, 2"); A("s_lshl_b32 s6, s6, 17")
        A("s_and_b32 s7, s4, 3"); A("s_lshl_b32 s7, s7, 12")
        A("s_add_u32 s6, s6, s7")
        A(f"s_mul_i32 s7, s{S_W}, {NF//2*16384}")
        A(f"s_add_u32 s{SO}, s6, s7")
        A(f"s_add_u32 s{SO+1}, s{SO}, 16384")
    for t in o: A(t)
    pre += stamp()
    rest = [x for c in range(NPRE, min(RC, NCH)) for x in [dma(c)]]
    def more(force=False):
        if rest and (force or not opt.get('late')): pre.extend(rest.pop(0))
    if main:
        U = lambda j: LN0 + 8 * j
        SQ = LN0 + 8 * NL
        for j in range(NL):
            x, u, s = HP + 4 * j, U(j), SQ + 4 * j
            pre.append(W(('x', j)))
            if j == 0: pre += stamp()
            for k in range(4):
                A(f"v_lshlrev_b32 v{u+2*k}, 16, v{x+k}")
                A(f"v_and_b32 v{u+2*k+1}, s{S_MASK}, v{x+k}")
            if opt.get('nopk', 0) >= 3:
                A(f"v_add_f32 v{s}, v{u}, v{u+1}"); A(f"v_mul_f32 v{s+2}, v{u}, v{u}")
                A(f"v_add_f32 v{s+1}, v{u+2}, v{u+3}"); A(f"v_mul_f32 v{s+3}, v{u+1}, v{u+1}")
                for k in range(2, 8):
                    if k >= 4: A(f"v_add_f32 v{s+(k&1)}, v{s+(k&1)}, v{u+k}")
                    A(f"v_fmac_f32 v{s+2+(k&1)}, v{u+k}, v{u+k}")
                A(f"v_add_f32 v{s}, v{s}, v{s+1}"); A(f"v_add_f32 v{s+2}, v{s+2}, v{s+3}")
            else:
                A(f"v_pk_add_f32 {vr(s,2)}, {vr(u,2)}, {vr(u+2,2)}")
                A(f"v_pk_mul_f32 {vr(s+2,2)}, {vr(u,2)}, {vr(u,2)}")
                A(f"v_pk_add_f32 {vr(x,2)}, {vr(u+4,2)}, {vr(u+6,2)}")
                A(f"v_pk_fma_f32 {vr(s+2,2)}, {vr(u+2,2)}, {vr(u+2,2)}, {vr(s+2,2)}")
                A(f"v_pk_add_f32 {vr(s,2)}, {vr(s,2)}, {vr(x,2)}")
                A(f"v_pk_fma_f32 {vr(s+2,2)}, {vr(u+4,2)}, {vr(u+4,2)}, {vr(s+2,2)}")
                A(f"v_add_f32 v{s}, v{s}, v{s+1}")
                A(f"v_pk_fma_f32 {vr(s+2,2)}, {vr(u+6,2)}, {vr(u+6,2)}, {vr(s+2,2)}")
                A(f"v_add_f32 v{s+2}, v{s+2}, v{s+3}")
            more()
        for j in range(NL): A(f"v_permlane16_swap_b32 v{SQ+4*j}, v{SQ+4*j+2}")
        for j in range(NL): A(f"v_add_f32 v{SQ+4*j}, v{SQ+4*j}, v{SQ+4*j+2}")
        def merge(regs, mode, m0, m1, off):
            out = []
            for a in range(0, len(regs), 2):
                (ra, la) = regs[a]
                d = ra + off
                if a + 1 < len(regs):
                    rb_, lb = regs[a + 1]
                    A(f"v_add_f32_dpp v{d}, v{ra}, v{ra} {mode}" + DPP % m0)
                    A(f"v_add_f32_dpp v{d}, v{rb_}, v{rb_} {mode}" + DPP % m1)
                    sh = 8 if m1 == 0xc else 4
                    out.append((d, {**la, **{k: v + sh for k, v in lb.items()}}))
                else:
                    A(f"v_add_f32_dpp v{d}, v{ra}, v{ra} {mode}" + DPP % 0xf)
                    out.append((d, la))
            return out
        regs = [(SQ + 4 * j, {j: 0}) for j in range(NL)]
        regs = merge(regs, "row_ror:8", 0x3, 0xc, 1)
        regs = merge(regs, "row_half_mirror", 0x5, 0xa, 1)
        for qp in ("[1,0,3,2]", "[2,3,0,1]"):
            for r, _ in regs: A(f"v_add_f32_dpp v{r}, v{r}, v{r} quad_perm:{qp}" + DPP % 0xf)
        for r, _ in regs: A(f"v_mov_b32 v{r+1}, v{r}")
        for r, _ in regs: A(f"v_permlane16_swap_b32 v{r+1}, v{r}")
        ops = lambda r: [f"v_mul_f32 v{r+1}, s{S_R256}, v{r+1}", f"v_mul_f32 v{r}, s{S_R256}, v{r}",
                         f"v_fma_f32 v{r}, -v{r+1}, v{r+1}, v{r}", f"v_cvt_pk_bf16_f32 v{r+1}, v{r+1}, v{r+1}", f"v_max_f32 v{r}, 0, v{r}",
                         f"v_cvt_pk_bf16_f32 v{r}, v{r}, v{r}", f"v_and_b32 v{r}, s{S_MASK}, v{r}", f"v_add_f32 v{r}, s{S_EPS}, v{r}",
                         f"v_cvt_pk_bf16_f32 v{r}, v{r}, v{r}", f"v_and_b32 v{r}, s{S_MASK}, v{r}", f"v_sqrt_f32 v{r}, v{r}",
                         f"v_and_b32 v{r+1}, s{S_MASK}, v{r+1}",
                         f"v_cvt_pk_bf16_f32 v{r}, v{r}, v{r}", f"v_and_b32 v{r}, s{S_MASK}, v{r}", f"v_rcp_f32 v{r}, v{r}",
                         f"v_mul_f32 v{r+1}, -v{r+1}, v{r}"]
        for tt in zip(*[ops(r) for r, _ in regs]):
            for t in tt: A(t)
        for r, lm in regs:
            for j, ln in lm.items():
                A(f"v_mov_b64_dpp {vr(SQ+4*j,2)}, {vr(r,2)} row_newbcast:{ln} row_mask:0xf bank_mask:0xf")
        for j in range(NL):
            x, u, s = HP + 4 * j, U(j), SQ + 4 * j
            for k in range(4):
                if opt.get('nopk', 0) >= 1:
                    for z in range(2): A(f"v_fma_f32 v{u+2*k+z}, v{u+2*k+z}, v{s}, v{s+1}")
                else: A(f"v_pk_fma_f32 {vr(u+2*k,2)}, {vr(u+2*k,2)}, {vr(s,2)}, {vr(s,2)} op_sel:[0,0,1] op_sel_hi:[1,0,1]")
            for k in range(4):
                A(f"v_cvt_pk_bf16_f32 v{x+k}, v{u+2*k}, v{u+2*k+1}")
            pre.append(LD(f"ds_write_b128 v{VHW+j}, {vr(x)}", tag='hw'))
            more()
    else:
        for j in range(NL):
            pre.append(LD(f"ds_write_b128 v{VHW+j}, {vr(HP+4*j)}", tag='hw', needs=[('x', j)]))
    pre += stamp()
    while rest and opt.get('late', 0) < 2: more(True)
    st = Stream(); st.pre = pre
    wf, bf = [], []
    wreg = lambda k: WR + (k % RW) * 4
    breg = lambda k: BR + (k % RB) * 4
    def use(lst, k, n):
        lst[k].setdefault('first', n); lst[k]['last'] = n
    def mf(acc, wk, bk, first):
        a, b = (wreg(wk), breg(bk)) if main else (breg(bk), wreg(wk))
        n = st.mfma(f"{MF32} {vr(acc)}, {vr(a)}, {vr(b)}, {0 if first else vr(acc)}", needs=[('w', wk), ('b', bk)])
        use(wf, wk, n); use(bf, bk, n); return n
    acc1 = lambda f, rb: ACC1 + (f * NRB + rb) * 4
    acc2 = lambda f, rb: ACC2 + (rb * NF + f) * 4
    done1, done2 = {}, {}
    for t in range(8):
        sl = (t % RC) * CH
        b0 = len(bf)
        for rb in range(NRB):
            bf.append(dict(reads=[f"ds_read_b128 {vr(breg(b0+rb))}, v{VH + (t & 1)} offset:{rb*8192 + t*1024}"], ph=0))
        for f in range(NF):
            k = len(wf); r = wreg(k)
            wf.append(dict(reads=[f"ds_read_b64_tr_b16 v[{r+2*hh}:{r+2*hh+1}], v{VTR+f} offset:{sl + hh*4*RS}" for hh in range(2)], chunk=t))
            for rb in range(NRB): done1[(f, rb)] = mf(acc1(f, rb), k, b0 + rb, t == 0)
    n1 = st.n()
    if main:
        for tp in range(4):
            b0 = len(bf)
            for e in range(2):
                for rb in range(NRB):
                    bf.append(dict(reads=[f"ds_read_b128 {vr(breg(b0+e*NRB+rb))}, v{VQ} offset:{rb*8192 + (2*tp+e)*1024}"], ph=1))
            for bh in range(2):
                c = 8 + 2 * tp + bh; sl = (c % RC) * CH
                for bl in range(NF // 2):
                    b = bh * (NF // 2) + bl
                    for e in range(2):
                        k = len(wf)
                        wf.append(dict(reads=[f"ds_read_b128 {vr(wreg(k))}, v{VK+e} offset:{sl + bl*2048}"], chunk=c))
                        for rb in range(NRB): done2[(b, rb)] = mf(acc2(b, rb), k, b0 + e * NRB + rb, tp == 0 and e == 0)
    nm = st.n()
    LAG = opt.get('lag', 3); LA = opt.get('la', 2 * NRB)
    def place_w(lo, hi, g):
        for k in range(lo, hi):
            d = wf[k]
            g = max(g, d['first'] - LA - 1, wf[k - RW]['last'] if k >= RW else -1)
            for i, r in enumerate(d['reads']):
                st.put(g, LD(r, tag=('w', k) if i == len(d['reads']) - 1 else None, needs=[('c', d['chunk'])]))
            d['g'] = g
            if k % (2 * NF) == 0:
                for s in stamp(1): st.put(g, s)
        return g
    def place_b(lo, hi, g):
        for k in range(lo, hi):
            d = bf[k]
            g = max(g, d['first'] - LA - 1, bf[k - RB]['last'] if k >= RB else -1)
            st.put(g, LD(d['reads'][0], tag=('b', k)))
        return g
    nw1, nb1 = 8 * NF, 8 * NRB
    npw = min(opt.get('npw', NF), RW)
    place_w(0, npw, -1)
    st.put(-1, W('hw')); st.put(-1, V("s_barrier"))
    for s in stamp(): st.put(-1, s)
    place_b(0, nb1, -1)
    gg = -1
    while rest:
        for x in rest.pop(0): st.put(gg, x)
        gg += opt.get('lpace', 2)
    g = place_w(npw, nw1, -1)
    if main:
        items = sorted(done1.items(), key=lambda kv: kv[1])
        for (f, rb), n in items:
            a = acc1(f, rb)
            q = [V(f"v_cvt_pk_bf16_f32 v{a}, v{a}, v{a+1}"), V(f"v_cvt_pk_bf16_f32 v{a+1}, v{a+2}, v{a+3}"),
                 LD(f"ds_write_b64 v{VQW + (f >> 1)}, v[{a}:{a+1}] offset:{rb*8192 + (f & 1)*512}", tag='qw')]
            for x in q: st.put(min(n + LAG, n1 - 1), x)
        k = nw1
        while k < len(wf) and k < nw1 + opt.get('npw2', NF) and wf[k - RW]['last'] <= n1 - 1: k += 1
        place_w(nw1, k, max(g, n1 - 1))
        for s in stamp(): st.put(n1 - 1, s)
        st.put(n1 - 1, W('qw')); st.put(n1 - 1, V("s_barrier"))
        for s in stamp(): st.put(n1 - 1, s)
        place_b(nb1, len(bf), n1 - 1)
        place_w(k, len(wf), n1 - 1)
    lastw = {}
    for k, d in enumerate(wf): lastw[d['chunk']] = k
    gl = 0
    for c in range(RC, NCH):
        k = lastw[c - RC]
        gl = wf[k]['first']
        firstk = min(kk for kk, d in enumerate(wf) if d['chunk'] == c)
        assert gl < wf[firstk]['g'], (c, gl, wf[firstk]['g'])
        for x in dma(c, [('w', k)]): st.put(gl, x)
    if main:
        hs = [VM(f"buffer_store_dwordx4 {vr(HP+4*j)}, v{VL16}, {sr(SRD_H)}, {xso(j)}{stx}") for j in range(NL)]
        st.fill(hs, gl + 1)
        items = sorted(((max(done2[(2 * u, rb)], done2[(2 * u + 1, rb)]), u, rb) for u in range(NF // 2) for rb in range(NRB)))
        for n, u, rb in items:
            a = acc2(2 * u, rb)
            if n + LAG < nm - 1 or opt.get('nopk', 0) >= 2:
                q = [V(f"v_mul_f32 v{a+r}, s{S_SC}, v{a+r}") for r in range(8)]
            else:
                q = [V(f"v_pk_mul_f32 {vr(a+2*r,2)}, {vr(a+2*r,2)}, {sr(S_SC,2)}") for r in range(4)]
            q += [V(f"v_cvt_pk_bf16_f32 v{a+r}, v{a+2*r}, v{a+2*r+1}") for r in range(4)]
            q.append(VM(f"buffer_store_dwordx4 {vr(a)}, v{VL16}, {sr(SRD_O)}, s{SO+rb} offen offset:{u*1024}{opt.get('stq', stx)}"))
            for x in q: st.put(min(n + LAG, nm - 1), x)
    else:
        items = sorted((max(done1[(f, 2 * tl)], done1[(f, 2 * tl + 1)]), f, tl) for f in range(NF) for tl in range(2))
        for n, f, tl in items:
            a = acc1(f, 2 * tl)
            q = [V(f"v_cvt_pk_bf16_f32 v{a+r}, v{a+2*r}, v{a+2*r+1}") for r in range(4)]
            q.append(VM(f"buffer_store_dwordx4 {vr(a)}, v{VL16}, {sr(SRD_O)}, s{SO + (f >> 1)} offen offset:{tl*2048 + (f & 1)*1024}{opt.get('stw', stx)}"))
            for x in q: st.put(min(n + LAG, nm - 1), x)
    for s in stamp(): st.put(nm - 1, s)
    em = Emitter()
    o = hazard.fix(em.emit(st.seq()))
    if opt.get('verbose'): print(role, st.stats(), "regs", p, "RC", RC, "lines", len(o))
    return o


def edge_prog(opt):
    NW = opt.get('nw', 8); NEW = opt.get('new', 32); ECAP = 163840 // NEW; CAPB = 4096 // NEW
    NTH = 64 * NW
    NQ = E // NEW // 4
    NR = (NQ + NTH - 1) // NTH; LASTN = NQ - (NR - 1) * NTH
    o = []; A = o.append
    L_CNT = 65536
    D0, S0, B0, C0 = 16, 16 + 4 * NR, 16 + 8 * NR, 16 + 12 * NR
    SRD_D, SRD_S, SRD_E, SRD_C = 40, 44, 48, 52
    A(f"s_mul_i32 s6, s4, {NQ * 16}")
    A("v_lshlrev_b32 v5, 4, v0")
    A("v_lshlrev_b32 v6, 2, v2")
    A(f"v_add_u32 v6, 0x{L_CNT:x}, v6")
    A("v_mov_b32 v7, 0")
    A("ds_write_b32 v6, v7")
    for i in range(NR): A(f"s_mov_b32 s{66+i}, {i * NTH * 16}")
    A("s_waitcnt lgkmcnt(0)")
    srd_from(o, SRD_D, 20, 0, NQ * 16, 6)
    srd_from(o, SRD_S, 18, 0, NQ * 16, 6)
    for i in range(NR): A(f"buffer_load_dwordx4 {vr(D0+4*i)}, v5, {sr(SRD_D)}, s{66+i} offen")
    for i in range(NR): A(f"buffer_load_dwordx4 {vr(S0+4*i)}, v5, {sr(SRD_S)}, s{66+i} offen")
    srd_from(o, SRD_E, 38, EDGE_OFF, EDGE_BYTES)
    srd_from(o, SRD_C, 38, ECNT_OFF, NBK * NEW * 4)
    A(f"s_mov_b32 s9, {BMAGIC}")
    A(f"s_mov_b32 s10, {-BN & 0xffffffff}")
    A(f"s_mov_b32 s11, 0x{L_CNT:x}")
    A("v_mov_b32 v7, 1")
    A(f"v_cmp_gt_u32 vcc, 0x{LASTN:x}, v0")
    A("s_mov_b64 s[12:13], vcc")
    A("s_barrier")
    for i in range(NR):
        A(f"s_waitcnt vmcnt({2*NR-1-i})")
        if i == NR - 1: A("s_mov_b64 exec, s[12:13]")
        for k in range(4):
            d, b, c = D0 + 4 * i + k, B0 + 4 * i + k, C0 + 4 * i + k
            A(f"v_mul_u32_u24 v{b}, s9, v{d}")
            A(f"v_lshrrev_b32 v{b}, {BSHIFT}, v{b}")
            A(f"v_lshl_add_u32 v{c}, v{b}, 2, s11")
            A(f"ds_add_rtn_u32 v{c}, v{c}, v7")
            A(f"v_mad_i32_i24 v{d}, v{b}, s10, v{d}")
    A("s_mov_b64 exec, -1")
    for i in range(NR):
        A(f"s_waitcnt vmcnt({NR-1-i}) lgkmcnt({min(15, 4*(NR-1 if i == NR-1 else NR-2))})")
        if i == NR - 1: A("s_mov_b64 exec, s[12:13]")
        for k in range(4):
            d, s, b, c = D0 + 4 * i + k, S0 + 4 * i + k, B0 + 4 * i + k, C0 + 4 * i + k
            A(f"v_and_b32 v8, 0x{CAPB-1:x}, v{c}")
            A(f"v_lshl_or_b32 v{s}, v{d}, 18, v{s}")
            A(f"v_lshlrev_b32 v8, 2, v8")
            A(f"v_lshl_add_u32 v8, v{b}, {(CAPB*4).bit_length()-1}, v8")
            A(f"ds_write_b32 v8, v{s}")
    A("s_mov_b64 exec, -1")
    A("s_waitcnt lgkmcnt(0)")
    A("s_barrier")
    NC = 64 * CAPB * 4 // (NTH * 16)
    BPI = 1024 // (CAPB * 4)
    R0 = C0 + 4 * NR
    A("ds_read_b32 v8, v6")
    A(f"s_mul_i32 s6, s{S_W}, {NC*1024}")
    A("v_lshlrev_b32 v10, 4, v2")
    A("v_add_u32 v9, s6, v10")
    for k in range(NC): A(f"ds_read_b128 {vr(R0+4*k)}, v9 offset:{k*1024}")
    if BPI > 1:
        assert BPI == 2
        A("v_lshrrev_b32 v11, 5, v2")
        A(f"v_mul_u32_u24 v11, 0x{NEW*ECAP*4 - 512:x}, v11")
        A("v_add_u32 v10, v10, v11")
    A(f"s_mul_i32 s6, s{S_W}, {NC*BPI*NEW*ECAP*4}")
    A(f"s_mul_i32 s7, s4, {ECAP*4}")
    A("s_add_u32 s6, s6, s7")
    A(f"v_lshlrev_b32 v9, {(NEW*4).bit_length()-1}, v2")
    A("s_lshl_b32 s8, s4, 2")
    A(f"s_cmp_eq_u32 s{S_W}, 0")
    A("s_cselect_b32 s8, s8, 0x7fff0000")
    A(f"s_waitcnt lgkmcnt({NC})")
    A(f"buffer_store_dword v8, v9, {sr(SRD_C)}, s8 offen{opt.get('ste', '')}")
    A(f"v_cmp_lt_u32 vcc, 0x{CAPB:x}, v8")
    A("s_cbranch_vccnz L1_eslow")
    for k in range(NC):
        A(f"s_waitcnt lgkmcnt({NC-1-k})")
        A(f"buffer_store_dwordx4 {vr(R0+4*k)}, v10, {sr(SRD_E)}, s6 offen{opt.get('ste', '')}")
        A(f"s_add_u32 s6, s6, {BPI*NEW*ECAP*4}")
    A("s_branch L1_fin")
    A("L1_eslow:")
    A(f"s_mov_b32 s9, {NEW*ECAP*4}")
    for i in range(NR):
        for k in range(4):
            b, c = B0 + 4 * i + k, C0 + 4 * i + k
            A(f"v_mul_u32_u24 v{b}, s9, v{b}")
            A(f"v_lshl_add_u32 v{b}, v{c}, 2, v{b}")
    for i in range(NR):
        if i == NR - 1: A("s_mov_b64 exec, s[12:13]")
        for k in range(4):
            A(f"buffer_store_dword v{S0 + 4 * i + k}, v{B0 + 4 * i + k}, {sr(SRD_E)}, s7 offen")
    A("s_mov_b64 exec, -1")
    return hazard.fix(o)


def gen_k1(opt=None):
    opt = opt or {}
    NW = opt.get('nw', 8); NRB = opt.get('nrb', 3); NEW = opt.get('new', 32)
    NMAIN = (NB16 + NRB - 1) // NRB
    o = []
    A = o.append
    A("s_getpc_b64 s[56:57]")
    A("s_load_dwordx16 s[16:31], s[0:1], 0")
    A("s_load_dwordx8 s[32:39], s[0:1], 64")
    if opt.get('timing'):
        A("s_memtime s[100:101]")
    A(f"s_cmp_ge_u32 s2, {opt.get('nact', NMAIN) + NEW + 8}")
    A("s_cbranch_scc1 L1_end")
    A("v_lshrrev_b32 v1, 6, v0")
    A("v_and_b32 v2, 63, v0")
    A("s_lshr_b32 s3, s2, 3")
    A(f"v_readfirstlane_b32 s{S_W}, v1")
    A(f"s_mul_i32 s5, s3, {NW}")
    A(f"s_add_u32 s5, s5, s{S_W}")
    if opt.get('cpf', 1):
        A("s_and_b32 s56, s56, 0xffffff00")
        A(f"s_mov_b32 s58, {opt.get('code_end', 'L1_end')}-k1_kernel")
        A("s_mov_b32 s59, 0x00020000")
        A("s_and_b32 s6, s5, 15")
        A("s_lshl_b32 s6, s6, 13")
        A("v_lshlrev_b32 v10, 7, v2")
        A("buffer_load_dword v255, v10, s[56:59], s6 offen")
    A("v_and_b32 v3, 15, v2")
    A("v_lshrrev_b32 v4, 4, v2")
    A(f"s_and_b32 s{S_ROT}, s3, {opt.get('rotm', 7)}")
    A(f"s_sub_u32 s4, s2, {NEW + 8}")
    A(f"s_cmp_lt_u32 s2, {NEW + 8}")
    A("s_cbranch_scc1 L1_notq")
    A(f"s_mov_b32 s{S_ROLE}, 0")
    o += gemm_prog('q', opt)
    A("s_branch L1_fin")
    A("L1_notq:")
    A(f"s_sub_u32 s4, s2, {NEW}")
    A(f"s_cmp_lt_u32 s2, {NEW}")
    A("s_cbranch_scc1 L1_edge")
    A(f"s_mov_b32 s{S_ROLE}, 1")
    o += gemm_prog('w', opt)
    A("s_branch L1_fin")
    A("L1_edge:")
    A(f"s_mov_b32 s{S_ROLE}, 4")
    A("s_mov_b32 s4, s2")
    o += edge_prog(opt)
    A("L1_fin:")
    if opt.get('timing'):
        A("s_memtime s[4:5]")
        A("s_waitcnt vmcnt(0)")
        A("s_memtime s[6:7]")
        A("s_waitcnt lgkmcnt(0)")
        for k in range(8):
            A(f"v_writelane_b32 v0, s{16+2*k}, {k}")
        A("v_writelane_b32 v0, s4, 8")
        A("v_writelane_b32 v0, s6, 9")
        A(f"v_subrev_u32 v0, s100, v0")
        A(f"v_writelane_b32 v0, s{S_ROLE}, 63")
        srd_from(o, 4, 34, 0, 1 << 20)
        A(f"s_mul_i32 s8, s2, {NW}")
        A(f"s_add_u32 s8, s8, s{S_W}")
        A(f"s_lshl_b32 s8, s8, 8")
        A(f"v_mbcnt_lo_u32_b32 v1, -1, 0")
        A(f"v_mbcnt_hi_u32_b32 v1, -1, v1")
        A(f"v_lshlrev_b32 v1, 2, v1")
        A(f"buffer_store_dword v0, v1, s[4:7], s8 offen")
    A("L1_end:")
    return "\n".join(o)


def kernel_desc(opt=None):
    opt = opt or {}
    NW = opt.get('nw', 8); NRB = opt.get('nrb', 3); NEW = opt.get('new', 32)
    return dict(name="k1_kernel", body=gen_k1(opt), vgpr=256, accum=256, grid=(NB16 + NRB - 1) // NRB + NEW + 8, block=64 * NW, lds=K1_LDS)

if __name__ == "__main__":
    import sys, json
    t = gen_k1(dict(json.loads(sys.argv[1]) if len(sys.argv) > 1 else {}, verbose=1))
    e = hazard.check(t, "k1")
    print("\n".join(e[:30])); print(len(e), "hazards;", len(t.split("\n")), "lines")
    open('k1n.s', 'w').write(t)
```

```python
from layout import *

def Q(qb, ds): return (qb * 8 + ds) * 4
S_BASE = [128, 144]
def S(h, qb): return S_BASE[h] + qb * 4
P_BASE = [160, 176]
def P(p, qb): return P_BASE[p] + qb * 4
def NEGM(qb): return 192 + qb * 4
RING = 4
def F(i): return 208 + (i % RING) * 4
LA = [224 + i for i in range(4)]
LB = [228 + i for i in range(4)]
ET = [232 + i for i in range(8)]
VADDR = 240
VDMA = 241
VT0, VT1 = 242, 243
M = [244 + i for i in range(4)]
VLANE16 = 248
def O(fb, qb): return (fb * 4 + qb) * 4

SRD_Q, SRD_K, SRD_V, SRD_OP, SRD_ML = 8, 12, 16, 20, 24
S_OFF, S_M0, S_CNT, S_THR, S_MASK, S_WAVE, S_SITE = 28, 30, 31, 32, 33, 34, 36


def vr(b, n=4): return f"v[{b}:{b+n-1}]"
def ar(b, n=4): return f"a[{b}:{b+n-1}]"


class Seg:
    def __init__(self):
        self.mf = []
        self.gap = []
        self.pre = []

    def add_mfma(self, t):
        self.mf.append(t)
        self.gap.append([])

    def used(self, g):
        return sum(c for c, _ in self.gap[g])

    def put(self, g, text, cost=1):
        if g < 0:
            self.pre.append((cost, text))
        else:
            self.gap[g].append((cost, text))

    def fill(self, queue, g0, g1, cap=2):
        g = g0
        for cost, text in queue:
            while g < g1 and self.used(g) + cost > cap:
                g += 1
            self.gap[g].append((cost, text))
        return g

    def text(self):
        o = [t for _, t in self.pre]
        for m, gp in zip(self.mf, self.gap):
            o.append(m)
            o += [t for _, t in gp]
        return o


def qk_block(h, off, cinit):
    fr = []
    for ds in range(8):
        ms = []
        for qb in range(4):
            c = cinit(qb) if ds == 0 else vr(S(h, qb))
            ms.append(lambda f, qb=qb, ds=ds, c=c: f"v_mfma_f32_16x16x32_bf16 {vr(S(h,qb))}, {vr(f)}, {vr(Q(qb,ds))}, {c}")
        fr.append((off + ds * 1024, ms))
    return fr


def pv_block(p, off, fb0):
    fr = []
    for fb in range(fb0, fb0 + 8):
        ms = []
        for qb in range(4):
            ms.append(lambda f, qb=qb, fb=fb: f"v_mfma_f32_16x16x32_bf16 {ar(O(fb,qb))}, {vr(f)}, {vr(P(p,qb))}, {ar(O(fb,qb))}")
        fr.append((off + fb * 1024, ms))
    return fr


def build_seg(frags, next_offs, hook=None):
    sg = Seg()
    n = len(frags)
    assert n % RING == 0
    offs = [o for o, _ in frags] + list(next_offs)
    for i, (off, ms) in enumerate(frags):
        for m in ms:
            sg.add_mfma(m(F(i)))
    issued = RING
    sg.put(-1, f"s_waitcnt lgkmcnt({min(issued, len(offs)) - 1 - 0})")
    for i in range(n):
        g = 4 * i + 3
        nxt = i + RING
        if nxt < len(offs):
            if nxt == n and hook:
                for c, t in hook:
                    sg.put(g, t, c)
            sg.put(g, f"ds_read_b128 {vr(F(nxt))}, v{VADDR} offset:{offs[nxt]}")
            issued = nxt + 1
        if i + 1 < n:
            sg.put(g, f"s_waitcnt lgkmcnt({issued - 1 - (i + 1)})")
    return sg


def softmax_queue(h, pn, site):
    lin, lout = (LA, LB) if h == 0 else (LB, LA)
    q = []
    for qb in range(4):
        e = ET[(qb % 2) * 4:(qb % 2) * 4 + 4]
        s = S(h, qb)
        q.append((2, f"v_exp_f32 v{e[0]}, v{s}"))
        q.append((2, f"v_exp_f32 v{e[1]}, v{s+1}"))
        q.append((2, f"v_exp_f32 v{e[2]}, v{s+2}"))
        q.append((1, f"v_add_f32 v{lout[qb]}, v{lin[qb]}, v{e[0]}"))
        q.append((1, f"v_cvt_pk_bf16_f32 v{P(pn,qb)+2*h}, v{e[0]}, v{e[1]}"))
        q.append((2, f"v_exp_f32 v{e[3]}, v{s+3}"))
        q.append((1, f"v_add_f32 v{lout[qb]}, v{lout[qb]}, v{e[1]}"))
        q.append((1, f"v_add_f32 v{lout[qb]}, v{lout[qb]}, v{e[2]}"))
        q.append((1, f"v_add_f32 v{lout[qb]}, v{lout[qb]}, v{e[3]}"))
        q.append((1, f"v_cvt_pk_bf16_f32 v{P(pn,qb)+2*h+1}, v{e[2]}, v{e[3]}"))
    q.append((1, f"v_max3_f32 v{VT0}, v{lout[0]}, v{lout[1]}, v{lout[2]}"))
    q.append((1, f"v_max_f32 v{VT0}, v{VT0}, v{lout[3]}"))
    q.append((1, f"v_cmp_lt_f32 vcc, s{S_THR}, v{VT0}"))
    q.append((1, f"s_cbranch_vccnz L2_rare_site{site}\nL2_ret{site}:"))
    return q


def dma_group(sg, g0, which, opt):
    srd = SRD_V if which == 0 else SRD_K
    if which == 0:
        sg.put(g0, f"s_mov_b32 m0, s{S_M0}")
    else:
        sg.put(g0, f"s_add_u32 m0, s{S_M0}, 0x4000")
    gs = [g0 + 1, g0 + 2, g0 + 4, g0 + 5] if opt.get('dma_spread', 1) else [g0 + 1, g0 + 1, g0 + 2, g0 + 2]
    for k in range(4):
        sg.put(gs[k], f"buffer_load_dwordx4 v{VDMA}, s[{srd}:{srd+3}], s{S_OFF} offen offset:{k*1024}{opt.get('dl','')} lds")


def body(p, kind, sites, opt):
    B = p * 32768
    Bn = (1 - p) * 32768
    negm = lambda qb: vr(NEGM(qb))
    fr = pv_block(p, B, 0)
    if kind != 'tail1':
        fr += qk_block(1, B + 16384, negm)
    fr += pv_block(p, B, 8)
    if kind == 'loop':
        fr += qk_block(0, B + 16384 + 8192, negm)
    hook = []
    if kind == 'loop':
        hook = [(1, "s_waitcnt vmcnt(%d)" % (16 if opt.get('dma2') else 8)), (1, "s_barrier")]
        if opt.get('nobar'): hook = hook[:2 - opt['nobar']]
    elif kind == 'tail2':
        hook = [(1, "s_waitcnt vmcnt(0)"), (1, "s_barrier")]
    if p == 1:
        hook.append((1, f"v_xor_b32 v{VADDR}, 0x10000, v{VADDR}"))
    nxt = [Bn + i * 1024 for i in range(RING)] if kind != 'tail1' else []
    sg = build_seg(fr, nxt, hook)
    if kind == 'loop':
        if opt.get('dma', 1):
            dma_group(sg, 0, 0, opt)
            dma_group(sg, 64, 1, opt)
            if opt.get('dma2'):
                for g0, srd in ((32, SRD_V), (96, SRD_K)):
                    sg.put(g0, f"s_mov_b32 m0, s52")
                    for k, d in enumerate((1, 2, 4, 5)):
                        sg.put(g0 + d, f"buffer_load_dwordx4 v{VDMA}, s[{srd}:{srd+3}], s53 offen offset:{k*1024} lds")
                sg.put(110, f"s_xor_b32 s53, s{S_OFF}, 0x200000")
        sg.put(70, f"s_add_u32 s{S_OFF}, s{S_OFF}, 0x4000")
        sg.put(70, f"s_add_u32 s{S_M0}, s{S_M0}, 0x8000")
        sg.put(6, f"s_sub_u32 s{S_CNT}, s{S_CNT}, 1")
        sg.put(126, f"s_and_b32 s{S_M0}, s{S_M0}, 0x1ffff")
        sg.put(126, f"s_cmp_eq_u32 s{S_CNT}, 0")
    if kind == 'tail2':
        q = []
        for qb in range(4):
            for r in range(4):
                q.append((1, f"v_add_f32 v{NEGM(qb)+r}, s{S_MASK}, v{NEGM(qb)+r}"))
        sg.fill(q, 0, 28)
    if kind != 'tail1' and opt.get('valu', 1):
        def flt(q):
            if opt.get('nochk'): q = q[:-4] + [(0, q[-1][1].split("\n")[1])]
            if opt.get('noexp'): q = [(1, x.replace('v_exp_f32', 'v_mov_b32')) if 'v_exp' in x else (c, x) for c, x in q]
            return q
        g = sg.fill(flt(softmax_queue(0, 1 - p, sites[0])), 8, 70)
        assert g <= 70, g
        last = 125 if kind == 'loop' else len(sg.mf) - 1
        g = sg.fill(flt(softmax_queue(1, 1 - p, sites[1])), 72, last)
    return sg


def rare_code(p, h, sites):
    pn = 1 - p
    lin, lout = (LA, LB) if h == 0 else (LB, LA)
    o = []
    for st in sites:
        o.append(f"L2_rare_site{st}:")
        o.append(f"s_mov_b32 s{S_SITE}, {st}")
        o.append(f"s_branch L2_rare_{p}_{h}")
    o.append(f"L2_rare_{p}_{h}:")
    o.append("s_nop 15")
    o.append("s_nop 15")
    DL = ET[0:4]
    FF = ET[4:8]
    for qb in range(4):
        s = S(h, qb)
        d = DL[qb]
        o.append(f"v_log_f32 v{VT1}, v{lin[qb]}")
        o.append(f"v_max3_f32 v{d}, v{s}, v{s+1}, v{s+2}")
        o.append(f"v_max3_f32 v{d}, v{d}, v{s+3}, v{VT1}")
        o.append(f"v_mov_b32 v{VT1}, v{d}")
        o.append("s_nop 1")
        o.append(f"v_permlane32_swap_b32 v{d}, v{VT1}")
        o.append("s_nop 1")
        o.append(f"v_max_f32 v{d}, v{d}, v{VT1}")
        o.append(f"v_mov_b32 v{VT1}, v{d}")
        o.append("s_nop 1")
        o.append(f"v_permlane16_swap_b32 v{d}, v{VT1}")
        o.append("s_nop 1")
        o.append(f"v_max_f32 v{d}, v{d}, v{VT1}")
        o.append(f"v_ceil_f32 v{d}, v{d}")
        o.append(f"v_max_f32 v{d}, 0, v{d}")
        o.append(f"v_sub_f32 v{VT1}, 0, v{d}")
        o.append(f"v_exp_f32 v{FF[qb]}, v{VT1}")
        o.append("s_nop 1")
        o.append(f"v_mul_f32 v{lin[qb]}, v{lin[qb]}, v{FF[qb]}")
        o.append(f"v_add_f32 v{M[qb]}, v{M[qb]}, v{d}")
        for r in range(4):
            o.append(f"v_sub_f32 v{NEGM(qb)+r}, v{NEGM(qb)+r}, v{d}")
            o.append(f"v_sub_f32 v{S(0,qb)+r}, v{S(0,qb)+r}, v{d}")
            o.append(f"v_sub_f32 v{S(1,qb)+r}, v{S(1,qb)+r}, v{d}")
        regs = [P(p, qb) + r for r in range(4)] + ([] if h == 0 else [P(pn, qb) + r for r in range(2)])
        for r in regs:
            o.append(f"v_lshlrev_b32 v{VT0}, 16, v{r}")
            o.append(f"v_and_b32 v{VT1}, 0xffff0000, v{r}")
            o.append(f"v_mul_f32 v{VT0}, v{VT0}, v{FF[qb]}")
            o.append(f"v_mul_f32 v{VT1}, v{VT1}, v{FF[qb]}")
            o.append(f"v_cvt_pk_bf16_f32 v{r}, v{VT0}, v{VT1}")
    for qb in range(4):
        s = S(h, qb)
        e = ET[0:4]
        for r in range(4):
            o.append(f"v_exp_f32 v{e[r]}, v{s+r}")
        o.append("s_nop 1")
        o.append(f"v_add_f32 v{lout[qb]}, v{lin[qb]}, v{e[0]}")
        for r in range(1, 4):
            o.append(f"v_add_f32 v{lout[qb]}, v{lout[qb]}, v{e[r]}")
        o.append(f"v_cvt_pk_bf16_f32 v{P(pn,qb)+2*h}, v{e[0]}, v{e[1]}")
        o.append(f"v_cvt_pk_bf16_f32 v{P(pn,qb)+2*h+1}, v{e[2]}, v{e[3]}")
    o.append("s_branch L2_rare_common")
    return o


def rare_common(all_sites):
    FF = ET[4:8]
    o = ["L2_rare_common:"]
    for fb in range(16):
        for qb in range(4):
            for r in range(4):
                a = O(fb, qb) + r
                t = ET[r]
                o.append(f"v_accvgpr_read_b32 v{t}, a{a}")
            for r in range(4):
                o.append(f"v_mul_f32 v{ET[r]}, v{ET[r]}, v{FF[qb]}")
            for r in range(4):
                o.append(f"v_accvgpr_write_b32 a{O(fb,qb)+r}, v{ET[r]}")
    o.append("s_nop 3")
    for st in all_sites[:-1]:
        o.append(f"s_cmp_eq_u32 s{S_SITE}, {st}")
        o.append(f"s_cbranch_scc1 L2_ret{st}")
    o.append(f"s_branch L2_ret{all_sites[-1]}")
    return o


def srd(o, d, off, nbytes, extra_sgpr=None):
    o.append(f"s_add_u32 s{d}, s4, 0x{off & 0xffffffff:x}")
    o.append(f"s_addc_u32 s{d+1}, s5, 0")
    if extra_sgpr is not None:
        o.append(f"s_add_u32 s{d}, s{d}, s{extra_sgpr}")
        o.append(f"s_addc_u32 s{d+1}, s{d+1}, 0")
    o.append(f"s_mov_b32 s{d+2}, 0x{nbytes:x}")
    o.append(f"s_mov_b32 s{d+3}, 0x00020000")


def epilogue(sg_tail, opt):
    conv = []
    for t in range(8):
        q = []
        for qb in range(4):
            st = (t * 4 + qb) * 4
            tmp = [128 + (qb % 2) * 8 + r for r in range(8)]
            for k in range(8):
                q.append((1, f"v_accvgpr_read_b32 v{tmp[k]}, a{O(2*t+k//4,qb)+k%4}"))
            for r in range(4):
                q.append((1, f"v_cvt_pk_bf16_f32 v{st+r}, v{tmp[2*r]}, v{tmp[2*r+1]}"))
            so = 40 + qb if t < 4 else 44 + qb
            q.append((1, f"buffer_store_dwordx4 {vr(st)}, v{VDMA}, s[{SRD_OP}:{SRD_OP+3}], s{so} offen offset:{(t%4)*1024}{opt.get('st','')}"))
        conv.append(q)
    nm = len(sg_tail.mf)
    assert nm == 64
    sg_tail.fill([(1, f"v_and_b32 v{VDMA}, 0x30, v{VLANE16}"),
                  (1, f"v_and_b32 v{VT0}, 0xc0, v{VLANE16}"),
                  (1, f"v_lshl_or_b32 v{VDMA}, v{VT0}, 2, v{VDMA}"),
                  (1, f"v_bfe_u32 v{VT0}, v{VLANE16}, 8, 1"),
                  (1, f"v_lshl_or_b32 v{VDMA}, v{VT0}, 7, v{VDMA}"),
                  (1, f"v_bfe_u32 v{VT0}, v{VLANE16}, 9, 1"),
                  (1, f"v_lshl_or_b32 v{VDMA}, v{VT0}, 6, v{VDMA}")], 0, 10)
    for t in range(8):
        g0 = 8 * t + 12
        if g0 <= nm - 1:
            sg_tail.fill(conv[t], g0, min(g0 + 7, nm - 1), cap=7)
        else:
            sg_tail.put(nm - 1, "s_nop 7")
            for c, x in conv[t]:
                sg_tail.put(nm - 1, x, c)
    o = sg_tail.text()
    for qb in range(4):
        l = LA[qb]
        o.append(f"v_mov_b32 v{VT1}, v{l}")
        o.append("s_nop 1")
        o.append(f"v_permlane32_swap_b32 v{l}, v{VT1}")
        o.append("s_nop 1")
        o.append(f"v_add_f32 v{l}, v{l}, v{VT1}")
        o.append(f"v_mov_b32 v{VT1}, v{l}")
        o.append("s_nop 1")
        o.append(f"v_permlane16_swap_b32 v{l}, v{VT1}")
        o.append("s_nop 1")
        o.append(f"v_add_f32 v{ET[2*qb+1]}, v{l}, v{VT1}")
        o.append(f"v_mov_b32 v{ET[2*qb]}, v{M[qb]}")
    o.append(f"v_lshrrev_b32 v{VT0}, 1, v{VLANE16}")
    o.append("s_mov_b64 exec, 0xffff")
    for qb in range(4):
        o.append(f"buffer_store_dwordx2 v[{ET[2*qb]}:{ET[2*qb+1]}], v{VT0}, s[{SRD_ML}:{SRD_ML+3}], s48 offen offset:{qb*512}{opt.get('st','')}")
    return o


def prologue2(o, opt, T):
    A = o.append
    Z = ET[0]
    for r in range(4):
        A(f"v_mov_b32 v{Z+r}, 0")
    nvm = [6]
    qidx = {}
    zi = 0
    for ds in range(8):
        for qb in range(4):
            so = 40 + qb if ds < 4 else 44 + qb
            A(f"buffer_load_dwordx4 {vr(Q(qb,ds))}, v{VLANE16}, s[{SRD_Q}:{SRD_Q+3}], s{so} offen offset:{(ds%4)*1024}")
            nvm[0] += 1
            qidx[(ds, qb)] = nvm[0]
            if qb % 2 == 1:
                A(f"v_mfma_f32_32x32x16_bf16 a[{16*zi}:{16*zi+15}], {vr(Z)}, {vr(Z)}, 0")
                zi += 1
    T(1)
    A(f"s_add_u32 s{SRD_K}, s{SRD_K}, 24576")
    A(f"s_addc_u32 s{SRD_K+1}, s{SRD_K+1}, 0")
    A(f"s_mov_b32 s{SRD_K+2}, 0x{KF_BYTES-24576:x}")
    A(f"s_lshl_b32 s{S_M0}, s{S_WAVE}, 12")
    A(f"v_add_u32 v{VDMA}, s{S_M0}, v{VLANE16}")
    A(f"v_add_u32 v{VADDR}, 0x10000, v{VLANE16}")
    items = []
    for st in range(2):
        items.append((0, f"s_mov_b32 m0, s{S_M0}\ns_nop 0"))
        for k in range(4):
            items.append((1, f"buffer_load_dwordx4 v{VDMA}, s[{SRD_V}:{SRD_V+3}], s{S_OFF} offen offset:{k*1024} lds"))
        items.append((0, f"s_add_u32 m0, s{S_M0}, 0x4000\ns_nop 0"))
        for k in range(4):
            items.append((1, f"buffer_load_dwordx4 v{VDMA}, s[{SRD_K}:{SRD_K+3}], s{S_OFF} offen offset:{k*1024} lds"))
        items.append((0, f"s_add_u32 s{S_OFF}, s{S_OFF}, 0x4000\ns_add_u32 s{S_M0}, s{S_M0}, 0x8000"))
    spre = opt.get('spre', 0)
    while spre > 0:
        v, t = items.pop(0)
        A(t); nvm[0] += v; spre -= v
    T(2)
    A(f"s_waitcnt vmcnt({nvm[0]-6})")
    A("s_barrier")
    T(3)
    TB = P_BASE[1]
    dst = [S_BASE[0], S_BASE[1], TB]
    fr = []
    for ds in range(8):
        for b in range(3):
            ms = []
            for qb in range(4):
                d = vr(dst[b] + 4 * qb)
                ms.append(lambda f, qb=qb, ds=ds, d=d: f"v_mfma_f32_16x16x32_bf16 {d}, {vr(f)}, {vr(Q(qb,ds))}, {d if ds else '0'}")
            fr.append((32768 + b * 8192 + ds * 1024, ms))
    for i in range(RING):
        A(f"ds_read_b128 {vr(F(i))}, v{VADDR} offset:{fr[i][0]}")
    sg = build_seg(fr, [])
    per = opt.get('sper', 3)
    for ds in range(8):
        g = 12 * ds - 1
        sg.put(g, f"s_waitcnt vmcnt({nvm[0]-qidx[(ds,3)]})")
        k = 0
        gg = g + 2
        while items and (k < per or ds == 7):
            v, t = items.pop(0)
            sg.put(min(gg, 95), t); nvm[0] += v; k += v; gg += 2
    o += sg.text()
    T(6)
    R4 = range(4)
    s0 = lambda qb: S(0, qb)
    s1 = lambda qb: S(1, qb)
    for qb in R4: A(f"v_max3_f32 v{M[qb]}, v{s0(qb)}, v{s0(qb)+1}, v{s0(qb)+2}")
    for qb in R4: A(f"v_max3_f32 v{M[qb]}, v{M[qb]}, v{s0(qb)+3}, v{s1(qb)}")
    for qb in R4: A(f"v_max3_f32 v{M[qb]}, v{M[qb]}, v{s1(qb)+1}, v{s1(qb)+2}")
    for qb in R4: A(f"v_max_f32 v{M[qb]}, v{M[qb]}, v{s1(qb)+3}")
    for sw in ("v_permlane32_swap_b32", "v_permlane16_swap_b32"):
        for qb in R4: A(f"v_mov_b32 v{ET[qb]}, v{M[qb]}")
        for qb in R4: A(f"{sw} v{M[qb]}, v{ET[qb]}")
        for qb in R4: A(f"v_max_f32 v{M[qb]}, v{M[qb]}, v{ET[qb]}")
    for h in range(2):
        for qb in R4:
            for r in R4: A(f"v_sub_f32 v{S(h,qb)+r}, v{S(h,qb)+r}, v{M[qb]}")
            for r in R4: A(f"v_exp_f32 v{S(h,qb)+r}, v{S(h,qb)+r}")
            if h == 0:
                for r in R4: A(f"v_sub_f32 v{NEGM(qb)+r}, 0, v{M[qb]}")
        if h == 0:
            A("s_waitcnt vmcnt(8)")
            A("s_barrier")
            A(f"v_xor_b32 v{VADDR}, 0x10000, v{VADDR}")
            for i in range(RING):
                A(f"ds_read_b128 {vr(F(i))}, v{VADDR} offset:{i*1024}")
    T(7)
    for h in range(2):
        for qb in R4:
            s = S(h, qb)
            A(f"v_cvt_pk_bf16_f32 v{P(0,qb)+2*h}, v{s}, v{s+1}")
            A(f"v_cvt_pk_bf16_f32 v{P(0,qb)+2*h+1}, v{s+2}, v{s+3}")
    for qb in R4: A(f"v_add_f32 v{LA[qb]}, v{s0(qb)}, v{s0(qb)+1}")
    for qb in R4: A(f"v_add_f32 v{LB[qb]}, v{s0(qb)+2}, v{s0(qb)+3}")
    for r in R4:
        for qb in R4:
            t = LA if r % 2 == 0 else LB
            A(f"v_add_f32 v{t[qb]}, v{t[qb]}, v{s1(qb)+r}")
    for qb in R4: A(f"v_add_f32 v{LA[qb]}, v{LA[qb]}, v{LB[qb]}")
    for qb in R4:
        for r in R4: A(f"v_sub_f32 v{s0(qb)+r}, v{TB+4*qb+r}, v{M[qb]}")


def gen_k2(opt=None):
    opt = opt or {}
    o = []
    A = o.append
    def T(i):
        if opt.get('timing'): A(f"s_memtime s[{74+2*i}:{75+2*i}]")
    A("s_load_dwordx2 s[4:5], s[0:1], %d" % KA_WS)
    if opt.get('timing'):
        A("s_load_dwordx2 s[60:61], s[0:1], %d" % KA_OUT)
        A("s_memtime s[62:63]")
        A("s_memrealtime s[64:65]")
    A("s_and_b32 s35, s2, 7")
    A("s_lshr_b32 s37, s2, 3")
    A("s_cmp_ge_u32 s37, 30")
    A("s_cbranch_scc1 LE_start")
    if opt.get('map', 0) == 0:
        A("s_mul_i32 s35, s35, 30")
        A("s_add_u32 s35, s35, s37")
        A("s_mul_i32 s37, s35, 1639")
        A("s_lshr_b32 s37, s37, 16")
        A("s_mul_i32 s38, s37, 40")
        A("s_sub_u32 s38, s35, s38")
    elif opt['map'] == 2:
        A("s_mul_i32 s38, s37, 26")
        A("s_lshr_b32 s38, s38, 8")
        A("s_mul_i32 s39, s38, 10")
        A("s_sub_u32 s39, s37, s39")
        A("s_and_b32 s37, s35, 1")
        A("s_mul_i32 s37, s37, 3")
        A("s_add_u32 s37, s37, s38")
        A("s_lshr_b32 s35, s35, 1")
        A("s_mul_i32 s38, s35, 10")
        A("s_add_u32 s38, s38, s39")
    else:
        A("s_mul_i32 s38, s37, 52")
        A("s_lshr_b32 s38, s38, 8")
        A("s_mul_i32 s39, s38, 5")
        A("s_sub_u32 s39, s37, s39")
        A("s_mov_b32 s37, s38")
        A("s_mul_i32 s38, s35, 5")
        A("s_add_u32 s38, s38, s39")
    A("v_lshrrev_b32 v1, 6, v0")
    A(f"v_and_b32 v{VLANE16}, 63, v0")
    A(f"v_lshlrev_b32 v{VLANE16}, 4, v{VLANE16}")
    A(f"v_readfirstlane_b32 s{S_WAVE}, v1")
    base = NT // NSPLIT
    assert NT - base * NSPLIT == 1
    na, nb = opt.get('na', base), opt.get('nb', base)
    A(f"s_mul_i32 s39, s37, {na}")
    A(f"s_mul_i32 s35, s37, {nb}")
    A(f"s_add_u32 s35, s35, {3*(na-nb)}")
    A("s_cmp_lt_u32 s37, 3")
    A("s_cselect_b32 s39, s39, s35")
    A(f"s_cselect_b32 s{S_CNT}, {na-2}, {nb-2}")
    A(f"s_cmp_eq_u32 s37, {NSPLIT-1}")
    A(f"s_cselect_b32 s{S_CNT}, {NT-3*na-2*nb-2}, s{S_CNT}")
    A(f"s_cselect_b32 s{S_MASK}, 0xff800000, 0")
    A(f"s_mov_b32 s{S_THR}, 0x5d800000")
    A("s_waitcnt lgkmcnt(0)")
    T(0)
    srd(o, SRD_Q, QF_OFF, QF_BYTES)
    srd(o, SRD_K, KF_OFF, KF_BYTES)
    srd(o, SRD_V, VF_OFF, VF_BYTES)
    A(f"s_mul_i32 s35, s37, 0x{OP_STRIDE:x}")
    srd(o, SRD_OP, OP_OFF, QF_BYTES, 35)
    A(f"s_mul_i32 s35, s37, 0x{ML_STRIDE:x}")
    srd(o, SRD_ML, ML_OFF, NB16 * 512, 35)
    A(f"s_lshl_b32 s{S_OFF}, s39, 14")
    A(f"s_mul_i32 s35, s{S_WAVE}, 6144")
    A(f"v_add_u32 v{VDMA}, s35, v{VLANE16}")
    A(f"s_add_u32 m0, s35, 98304")
    A("s_nop 0")
    for k in range(4):
        A(f"buffer_load_dwordx4 v{VDMA}, s[{SRD_K}:{SRD_K+3}], s{S_OFF} offen offset:{k*1024} lds")
    A(f"s_add_u32 m0, s35, {98304+4096}")
    A(f"s_add_u32 s41, s{S_OFF}, 4096")
    for k in range(2):
        A(f"buffer_load_dwordx4 v{VDMA}, s[{SRD_K}:{SRD_K+3}], s41 offen offset:{k*1024} lds")
    A(f"s_lshl_b32 s35, s38, 4")
    A(f"s_lshl_b32 s41, s{S_WAVE}, 2")
    A(f"s_add_u32 s35, s35, s41")
    A(f"s_lshl_b32 s40, s35, 13")
    for qb in range(1, 4):
        A(f"s_add_u32 s{40+qb}, s40, {qb*8192}")
    for qb in range(4):
        A(f"s_add_u32 s{44+qb}, s{40+qb}, 4096")
    A(f"s_lshl_b32 s48, s35, 9")
    if opt.get('pro2', 1):
        prologue2(o, opt, T)
    else:
        for ds in range(8):
            for qb in range(4):
                so = 40 + qb if ds < 4 else 44 + qb
                A(f"buffer_load_dwordx4 {vr(Q(qb,ds))}, v{VLANE16}, s[{SRD_Q}:{SRD_Q+3}], s{so} offen offset:{(ds%4)*1024}")
        T(1)
        A(f"s_add_u32 s{SRD_K}, s{SRD_K}, 24576")
        A(f"s_addc_u32 s{SRD_K+1}, s{SRD_K+1}, 0")
        A(f"s_mov_b32 s{SRD_K+2}, 0x{KF_BYTES-24576:x}")
        A(f"s_lshl_b32 s{S_M0}, s{S_WAVE}, 12")
        A(f"v_add_u32 v{VDMA}, s{S_M0}, v{VLANE16}")
        for st in range(2):
            A(f"s_mov_b32 m0, s{S_M0}")
            A("s_nop 0")
            for k in range(4):
                A(f"buffer_load_dwordx4 v{VDMA}, s[{SRD_V}:{SRD_V+3}], s{S_OFF} offen offset:{k*1024} lds")
            A(f"s_add_u32 m0, s{S_M0}, 0x4000")
            A("s_nop 0")
            for k in range(4):
                A(f"buffer_load_dwordx4 v{VDMA}, s[{SRD_K}:{SRD_K+3}], s{S_OFF} offen offset:{k*1024} lds")
            A(f"s_add_u32 s{S_OFF}, s{S_OFF}, 0x4000")
            A(f"s_add_u32 s{S_M0}, s{S_M0}, 0x8000")
        T(2)
        for i in range(256):
            A(f"v_accvgpr_write_b32 a{i}, 0")
        T(3)
        A(f"v_add_u32 v{VADDR}, 0x10000, v{VLANE16}")
        A("s_waitcnt vmcnt(48)")
        A("s_barrier")
        for i in range(RING):
            A(f"ds_read_b128 {vr(F(i))}, v{VADDR} offset:{32768 + i*1024}")
        T(4)
        A("s_waitcnt vmcnt(16)")
        T(5)
        zero = lambda qb: "0"
        fr = qk_block(0, 32768, zero) + qk_block(1, 32768 + 8192, zero)
        sg = build_seg(fr, [32768 + 16384 + i * 1024 for i in range(RING)])
        o += sg.text()
        A("s_nop 7")
        T(6)
        for qb in range(4):
            m = M[qb]
            s0, s1 = S(0, qb), S(1, qb)
            A(f"v_max3_f32 v{m}, v{s0}, v{s0+1}, v{s0+2}")
            A(f"v_max3_f32 v{m}, v{m}, v{s0+3}, v{s1}")
            A(f"v_max3_f32 v{m}, v{m}, v{s1+1}, v{s1+2}")
            A(f"v_max_f32 v{m}, v{m}, v{s1+3}")
            A(f"v_mov_b32 v{VT1}, v{m}")
            A("s_nop 1")
            A(f"v_permlane32_swap_b32 v{m}, v{VT1}")
            A("s_nop 1")
            A(f"v_max_f32 v{m}, v{m}, v{VT1}")
            A(f"v_mov_b32 v{VT1}, v{m}")
            A("s_nop 1")
            A(f"v_permlane16_swap_b32 v{m}, v{VT1}")
            A("s_nop 1")
            A(f"v_max_f32 v{m}, v{m}, v{VT1}")
            for r in range(4):
                A(f"v_sub_f32 v{NEGM(qb)+r}, 0, v{m}")
            for r in range(4):
                A(f"v_sub_f32 v{s0+r}, v{s0+r}, v{m}")
                A(f"v_sub_f32 v{s1+r}, v{s1+r}, v{m}")
            for r in range(4):
                A(f"v_exp_f32 v{ET[r]}, v{s0+r}")
            A("s_nop 0")
            A(f"v_add_f32 v{LB[qb]}, v{ET[0]}, v{ET[1]}")
            A(f"v_add_f32 v{LB[qb]}, v{LB[qb]}, v{ET[2]}")
            A(f"v_add_f32 v{LB[qb]}, v{LB[qb]}, v{ET[3]}")
            A(f"v_cvt_pk_bf16_f32 v{P(0,qb)}, v{ET[0]}, v{ET[1]}")
            A(f"v_cvt_pk_bf16_f32 v{P(0,qb)+1}, v{ET[2]}, v{ET[3]}")
        T(7)
        negm = lambda qb: vr(NEGM(qb))
        fr = qk_block(0, 32768 + 16384, negm)
        hook = [(1, "s_waitcnt vmcnt(8)"), (1, "s_barrier"), (1, f"v_xor_b32 v{VADDR}, 0x10000, v{VADDR}")]
        sg = build_seg(fr, [i * 1024 for i in range(RING)], hook)
        q = softmax_queue(1, 0, 99)[:-4]
        sg.fill(q, 0, 31)
        o += sg.text()
    A("s_nop 1")
    if opt.get('timing'):
        A("s_memtime s[66:67]")
        A("s_waitcnt lgkmcnt(0)")
    sites = {}
    n = 0
    for kind in ('loop', 'tail2'):
        for p in (0, 1):
            sites[(kind, p)] = (n, n + 1)
            n += 2
    if opt.get('dma2'):
        A(f"s_lshl_b32 s52, s{S_WAVE}, 12")
        A("s_add_u32 s52, s52, 0x20000")
        A(f"s_xor_b32 s53, s{S_OFF}, 0x200000")
    A(".p2align 6")
    A("L2_loop:")
    o += body(0, 'loop', sites[('loop', 0)], opt).text()
    A("s_cbranch_scc1 L2_tail_1")
    o += body(1, 'loop', sites[('loop', 1)], opt).text()
    A("s_cbranch_scc0 L2_loop")
    for p in (0, 1):
        A(f"L2_tail_{p}:")
        if opt.get('timing'):
            A("s_memtime s[68:69]")
            A("s_waitcnt lgkmcnt(0)")
        o += body(p, 'tail2', sites[('tail2', p)], opt).text()
        A("s_nop 1")
        T(8)
        o += epilogue(body(1 - p, 'tail1', None, opt), opt)
        T(9)
        A("s_branch L2_fin")
    if opt.get('valu', 1):
        for p in (0, 1):
            for h in (0, 1):
                o += rare_code(p, h, [sites[('loop', p)][h], sites[('tail2', p)][h]])
        o += rare_common(list(range(n)))
    import gen_eg
    gen_eg.gen_edge(o, opt)
    A("L2_fin:")
    if opt.get('timing'):
        A("s_mov_b64 exec, -1")
        A("s_waitcnt vmcnt(0)")
        A("s_memtime s[70:71]")
        A("s_memrealtime s[72:73]")
        A("s_waitcnt lgkmcnt(0)")
        A("s_sub_u32 s66, s66, s62")
        A("s_sub_u32 s68, s68, s62")
        A("s_sub_u32 s70, s70, s62")
        for i in range(10):
            A(f"s_sub_u32 s{74+2*i}, s{74+2*i}, s62\nv_mov_b32 v{4+i}, s{74+2*i}")
        A("v_mov_b32 v14, s64\nv_mov_b32 v15, s72")
        A("s_sub_u32 s72, s72, s64")
        A("v_mov_b32 v0, s66\nv_mov_b32 v1, s68\nv_mov_b32 v2, s70\nv_mov_b32 v3, s72")
        A("s_mov_b32 s62, 0x100000\ns_mov_b32 s63, 0x00020000")
        A(f"s_lshl_b32 s35, s2, 2")
        A(f"s_add_u32 s35, s35, s{S_WAVE}")
        A(f"s_lshl_b32 s35, s35, 10")
        A(f"buffer_store_dwordx4 v[0:3], v{VLANE16}, s[60:63], s35 offen")
        A("s_add_u32 s35, s35, 0x200000\ns_mov_b32 s62, 0x800000")
        for k in range(3):
            A(f"buffer_store_dwordx4 v[{4+4*k}:{7+4*k}], v{VLANE16}, s[60:63], s35 offen")
            A("s_add_u32 s35, s35, 0x100000")
    A("L2_end:")
    return "\n".join(o)


def kernel_desc(opt=None):
    return dict(name="k2_kernel", body=gen_k2(opt), vgpr=512, accum=256, grid=256, block=256, lds=163840 if (opt or {}).get('dma2') else 131072)
```

```python
from layout import *

def Q(qb, ds): return (qb * 8 + ds) * 4
S_BASE = [128, 144]
def S(h, qb): return S_BASE[h] + qb * 4
P_BASE = [160, 176]
def P(p, qb): return P_BASE[p] + qb * 4
def NEGM(qb): return 192 + qb * 4
RING = 4
def F(i): return 208 + (i % RING) * 4
LA = [224 + i for i in range(4)]
LB = [228 + i for i in range(4)]
ET = [232 + i for i in range(8)]
VK = 240
VTR = [249, 250]
VDMA = 241
VT0, VT1 = 242, 243
M = [244 + i for i in range(4)]
VLANE16 = 248
KB = [VK, 251, 252]
VSP = 253
RD = 254
def O(fb, qb): return (fb * 4 + qb) * 4

SRD_Q, SRD_K, SRD_OP, SRD_ML = 8, 12, 20, 24
S_OFF, S_M0, S_CNT, S_THR, S_MASK, S_WAVE, S_SITE = 28, 30, 31, 32, 33, 34, 36


def vr(b, n=4): return f"v[{b}:{b+n-1}]"
def ar(b, n=4): return f"a[{b}:{b+n-1}]"


class Seg:
    def __init__(self):
        self.mf = []
        self.gap = []
        self.pre = []

    def add_mfma(self, t):
        self.mf.append(t)
        self.gap.append([])

    def used(self, g):
        return sum(c for c, _ in self.gap[g])

    def put(self, g, text, cost=1):
        if g < 0:
            self.pre.append((cost, text))
        else:
            self.gap[g].append((cost, text))

    def fill(self, queue, g0, g1, cap=2):
        g = g0
        for cost, text in queue:
            while g < g1 and self.used(g) + cost > cap:
                g += 1
            self.gap[g].append((cost, text))
        return g

    def text(self):
        o = [t for _, t in self.pre]
        for m, gp in zip(self.mf, self.gap):
            o.append(m)
            o += [t for _, t in gp]
        return o


def foff(kb, c): return (c >> 1) * 4096 + kb * 2048 + (c & 1) * 512

def kread(off):
    return [lambda f: f"ds_read_b128 {vr(f)}, v{VK} offset:{off}"]

def vread(off, fb):
    return [lambda f, kb=kb: f"ds_read_b64_tr_b16 v[{f+2*kb}:{f+2*kb+1}], v{VTR[fb & 1]} offset:{off + foff(kb, fb >> 1)}" for kb in range(2)]


def qk_block(h, off, cinit):
    fr = []
    for ds in range(8):
        ms = []
        for qb in range(4):
            c = cinit(qb) if ds == 0 else vr(S(h, qb))
            ms.append(lambda f, qb=qb, ds=ds, c=c: f"v_mfma_f32_16x16x32_bf16 {vr(S(h,qb))}, {vr(f)}, {vr(Q(qb,ds))}, {c}")
        fr.append((kread(off + foff(h, ds)), ms))
    return fr


def pv_block(p, off, fb0):
    fr = []
    for fb in range(fb0, fb0 + 8):
        ms = []
        for qb in range(4):
            ms.append(lambda f, qb=qb, fb=fb: f"v_mfma_f32_16x16x32_bf16 {ar(O(fb,qb))}, {vr(f)}, {vr(P(p,qb))}, {ar(O(fb,qb))}")
        fr.append((vread(off, fb), ms))
    return fr


def build_seg(frags, next_reads):
    sg = Seg()
    n = len(frags)
    assert n % RING == 0
    rds = [r for r, _ in frags] + list(next_reads)
    for i, (_, ms) in enumerate(frags):
        for m in ms:
            sg.add_mfma(m(F(i)))
    issued = []
    for i in range(RING): issued += [i] * len(rds[i])
    def wait(g, i):
        last = max(k for k, x in enumerate(issued) if x == i)
        assert issued.count(i) == len(rds[i])
        sg.put(g, f"s_waitcnt lgkmcnt({len(issued) - 1 - last})")
    wait(-1, 0)
    for i in range(n):
        g = 4 * i + 3
        nxt = i + RING
        late = []
        if nxt < len(rds):
            r = rds[nxt]
            now = r[:1] if i + 1 < n else r
            late = r[len(now):]
            for x in now:
                sg.put(g, x(F(nxt))); issued.append(nxt)
        if i + 1 < n: wait(g, i + 1)
        for x in late:
            sg.put(g + 1, x(F(nxt))); issued.append(nxt)
    return sg


def softmax_queue(h, pn, site):
    lin, lout = (LA, LB) if h == 0 else (LB, LA)
    if callable(pn):
        pf = pn; P = lambda _, qb: pf(qb)
    else:
        P = globals()['P']
    q = []
    for qb in range(4):
        e = ET[(qb % 2) * 4:(qb % 2) * 4 + 4]
        s = S(h, qb)
        q.append((2, f"v_exp_f32 v{e[0]}, v{s}"))
        q.append((2, f"v_exp_f32 v{e[1]}, v{s+1}"))
        q.append((2, f"v_exp_f32 v{e[2]}, v{s+2}"))
        q.append((1, f"v_add_f32 v{lout[qb]}, v{lin[qb]}, v{e[0]}"))
        q.append((1, f"v_cvt_pk_bf16_f32 v{P(pn,qb)+2*h}, v{e[0]}, v{e[1]}"))
        q.append((2, f"v_exp_f32 v{e[3]}, v{s+3}"))
        q.append((1, f"v_add_f32 v{lout[qb]}, v{lout[qb]}, v{e[1]}"))
        q.append((1, f"v_add_f32 v{lout[qb]}, v{lout[qb]}, v{e[2]}"))
        q.append((1, f"v_add_f32 v{lout[qb]}, v{lout[qb]}, v{e[3]}"))
        q.append((1, f"v_cvt_pk_bf16_f32 v{P(pn,qb)+2*h+1}, v{e[2]}, v{e[3]}"))
    q.append((1, f"v_max3_f32 v{VT0}, v{lout[0]}, v{lout[1]}, v{lout[2]}"))
    q.append((1, f"v_max_f32 v{VT0}, v{VT0}, v{lout[3]}"))
    q.append((1, f"v_cmp_lt_f32 vcc, s{S_THR}, v{VT0}"))
    q.append((1, f"s_cbranch_vccnz L2_rare_site{site}\nL2_ret{site}:"))
    return q


def body(p, kind, sites, opt):
    B = p * 16384
    Bn = (1 - p) * 16384
    negm = lambda qb: vr(NEGM(qb))
    fr = pv_block(p, B, 0)
    if kind != 'tail1':
        fr += qk_block(1, Bn, negm)
    fr += pv_block(p, B, 8)
    if kind == 'loop':
        fr += qk_block(0, B, negm)
    nxt = [vread(Bn, i) for i in range(RING)] if kind != 'tail1' else []
    sg = build_seg(fr, nxt)
    if kind == 'loop':
        gb = opt.get('gbar', 81)
        gd = opt.get('gdma', [0, 1, 2, 5, 6])
        if not opt.get('nobar'):
            sg.put(gb, "s_waitcnt vmcnt(%d)" % sum(1 for x in gd[1:] if x < gb))
            sg.put(gb, "s_barrier")
        assert all(x != gb for x in gd) and gb < 83
        sg.put(gd[0], f"s_mov_b32 m0, s{S_M0}")
        for k in range(4):
            sg.put(gd[k + 1], f"buffer_load_dwordx4 v{VDMA}, s[{SRD_K}:{SRD_K+3}], s{S_OFF} offen offset:{k*1024}{opt.get('dl','')} lds")
        sg.put(125, f"s_add_u32 s{S_OFF}, s{S_OFF}, 0x4000")
        sg.put(125, f"s_add_u32 s{S_M0}, s{S_M0}, 0x4000")
        sg.put(122, f"s_sub_u32 s{S_CNT}, s{S_CNT}, 1")
        sg.put(126, f"s_and_b32 s{S_M0}, s{S_M0}, 0x1ffff")
        sg.put(126, f"s_cmp_eq_u32 s{S_CNT}, 0")
        if p == 0:
            sg.put(70, f"v_add_u32 v{VK}, 0x8000, v{VK}")
            sg.put(70, f"v_and_b32 v{VK}, 0x1ffff, v{VK}")
    if kind == 'tail2':
        sg.put(2, "s_waitcnt vmcnt(0)")
    if p == 1 and kind != 'tail1':
        g = 84 if kind == 'loop' else 81
        sg.put(g, f"v_add_u32 v{VTR[0]}, 0x8000, v{VTR[0]}")
        sg.put(g, f"v_and_b32 v{VTR[0]}, 0x1ffff, v{VTR[0]}")
        sg.put(g + 1, f"v_xor_b32 v{VTR[1]}, 32, v{VTR[0]}")
    if kind != 'tail1' and opt.get('valu', 1):
        def flt(q):
            if opt.get('nochk'): q = q[:-4] + [(0, q[-1][1].split("\n")[1])]
            if opt.get('noexp'): q = [(1, x.replace('v_exp_f32', 'v_mov_b32')) if 'v_exp' in x else (c, x) for c, x in q]
            return q
        g = sg.fill(flt(softmax_queue(0, 1 - p, sites[0])), opt.get('g0', 8), 71)
        if opt.get('verbose'): print(kind, p, "sm0 end", g)
        last = 124 if kind == 'loop' else len(sg.mf) - 1
        g = sg.fill(flt(softmax_queue(1, 1 - p, sites[1])), 72, last)
        if opt.get('verbose'): print(kind, p, "sm1 end", g, "over", [(i, sg.used(i)) for i in range(len(sg.mf)) if sg.used(i) > 2])
    return sg


def rare_code(p, h, sites, pt=None, live=None, spills=()):
    if pt is None:
        pt = lambda qb: P(1 - p, qb)
        live = [lambda qb: P(p, qb)]
    lin, lout = (LA, LB) if h == 0 else (LB, LA)
    o = []
    for st in sites:
        o.append(f"L2_rare_site{st}:")
        o.append(f"s_mov_b32 s{S_SITE}, {st}")
        o.append(f"s_branch L2_rare_{p}_{h}")
    o.append(f"L2_rare_{p}_{h}:")
    o.append("s_nop 15")
    o.append("s_nop 15")
    o.append("s_waitcnt lgkmcnt(0)")
    DL = ET[0:4]
    FF = ET[4:8]
    for qb in range(4):
        s = S(h, qb)
        d = DL[qb]
        o.append(f"v_log_f32 v{VT1}, v{lin[qb]}")
        o.append(f"v_max3_f32 v{d}, v{s}, v{s+1}, v{s+2}")
        o.append(f"v_max3_f32 v{d}, v{d}, v{s+3}, v{VT1}")
        o.append(f"v_mov_b32 v{VT1}, v{d}")
        o.append("s_nop 1")
        o.append(f"v_permlane32_swap_b32 v{d}, v{VT1}")
        o.append("s_nop 1")
        o.append(f"v_max_f32 v{d}, v{d}, v{VT1}")
        o.append(f"v_mov_b32 v{VT1}, v{d}")
        o.append("s_nop 1")
        o.append(f"v_permlane16_swap_b32 v{d}, v{VT1}")
        o.append("s_nop 1")
        o.append(f"v_max_f32 v{d}, v{d}, v{VT1}")
        o.append(f"v_ceil_f32 v{d}, v{d}")
        o.append(f"v_max_f32 v{d}, 0, v{d}")
        o.append(f"v_sub_f32 v{VT1}, 0, v{d}")
        o.append(f"v_exp_f32 v{FF[qb]}, v{VT1}")
        o.append("s_nop 1")
        o.append(f"v_mul_f32 v{lin[qb]}, v{lin[qb]}, v{FF[qb]}")
        o.append(f"v_add_f32 v{M[qb]}, v{M[qb]}, v{d}")
        for r in range(4):
            o.append(f"v_sub_f32 v{NEGM(qb)+r}, v{NEGM(qb)+r}, v{d}")
            o.append(f"v_sub_f32 v{S(0,qb)+r}, v{S(0,qb)+r}, v{d}")
            o.append(f"v_sub_f32 v{S(1,qb)+r}, v{S(1,qb)+r}, v{d}")
        regs = [f(qb) + r for f in live for r in range(4)] + ([] if h == 0 else [pt(qb) + r for r in range(2)])
        def scale(r):
            o.append(f"v_lshlrev_b32 v{VT0}, 16, v{r}")
            o.append(f"v_and_b32 v{VT1}, 0xffff0000, v{r}")
            o.append(f"v_mul_f32 v{VT0}, v{VT0}, v{FF[qb]}")
            o.append(f"v_mul_f32 v{VT1}, v{VT1}, v{FF[qb]}")
            o.append(f"v_cvt_pk_bf16_f32 v{r}, v{VT0}, v{VT1}")
        for r in regs: scale(r)
        for k in spills:
            for hh in range(2):
                off = k * 4096 + qb * 1024 + hh * 8
                o.append(f"ds_read_b64 v[{RD}:{RD+1}], v{VSP} offset:{off}")
                o.append("s_waitcnt lgkmcnt(0)")
                scale(RD); scale(RD + 1)
                o.append(f"ds_write_b64 v{VSP}, v[{RD}:{RD+1}] offset:{off}")
                o.append("s_waitcnt lgkmcnt(0)")
    for qb in range(4):
        s = S(h, qb)
        e = ET[0:4]
        for r in range(4):
            o.append(f"v_exp_f32 v{e[r]}, v{s+r}")
        o.append("s_nop 1")
        o.append(f"v_add_f32 v{lout[qb]}, v{lin[qb]}, v{e[0]}")
        for r in range(1, 4):
            o.append(f"v_add_f32 v{lout[qb]}, v{lout[qb]}, v{e[r]}")
        o.append(f"v_cvt_pk_bf16_f32 v{pt(qb)+2*h}, v{e[0]}, v{e[1]}")
        o.append(f"v_cvt_pk_bf16_f32 v{pt(qb)+2*h+1}, v{e[2]}, v{e[3]}")
    o.append("s_branch L2_rare_common")
    return o


def rare_common(all_sites):
    FF = ET[4:8]
    o = ["L2_rare_common:"]
    for fb in range(16):
        for qb in range(4):
            for r in range(4):
                a = O(fb, qb) + r
                t = ET[r]
                o.append(f"v_accvgpr_read_b32 v{t}, a{a}")
            for r in range(4):
                o.append(f"v_mul_f32 v{ET[r]}, v{ET[r]}, v{FF[qb]}")
            for r in range(4):
                o.append(f"v_accvgpr_write_b32 a{O(fb,qb)+r}, v{ET[r]}")
    o.append("s_nop 3")
    for st in all_sites[:-1]:
        o.append(f"s_cmp_eq_u32 s{S_SITE}, {st}")
        o.append(f"s_cbranch_scc1 L2_ret{st}")
    o.append(f"s_branch L2_ret{all_sites[-1]}")
    return o


def srd(o, d, off, nbytes, extra_sgpr=None):
    o.append(f"s_add_u32 s{d}, s4, 0x{off & 0xffffffff:x}")
    o.append(f"s_addc_u32 s{d+1}, s5, 0")
    if extra_sgpr is not None:
        o.append(f"s_add_u32 s{d}, s{d}, s{extra_sgpr}")
        o.append(f"s_addc_u32 s{d+1}, s{d+1}, 0")
    o.append(f"s_mov_b32 s{d+2}, 0x{nbytes:x}")
    o.append(f"s_mov_b32 s{d+3}, 0x00020000")


def epilogue(sg_tail, opt):
    conv = []
    for t in range(8):
        q = []
        for qb in range(4):
            st = (t * 4 + qb) * 4
            tmp = [128 + (qb % 2) * 8 + r for r in range(8)]
            for k in range(8):
                q.append((1, f"v_accvgpr_read_b32 v{tmp[k]}, a{O(2*t+k//4,qb)+k%4}"))
            for r in range(4):
                q.append((1, f"v_cvt_pk_bf16_f32 v{st+r}, v{tmp[2*r]}, v{tmp[2*r+1]}"))
            so = 40 + qb if t < 4 else 44 + qb
            q.append((1, f"buffer_store_dwordx4 {vr(st)}, v{VLANE16}, s[{SRD_OP}:{SRD_OP+3}], s{so} offen offset:{(t%4)*1024}{opt.get('st','')}"))
        conv.append(q)
    nm = len(sg_tail.mf)
    assert nm == 64
    for t in range(8):
        g0 = 8 * t + 12
        if g0 <= nm - 1:
            sg_tail.fill(conv[t], g0, min(g0 + 7, nm - 1), cap=7)
        else:
            sg_tail.put(nm - 1, "s_nop 7")
            for c, x in conv[t]:
                sg_tail.put(nm - 1, x, c)
    return sg_tail.text() + ml_store(opt)


def ml_store(opt):
    o = []
    for qb in range(4):
        l = LA[qb]
        o.append(f"v_mov_b32 v{VT1}, v{l}")
        o.append("s_nop 1")
        o.append(f"v_permlane32_swap_b32 v{l}, v{VT1}")
        o.append("s_nop 1")
        o.append(f"v_add_f32 v{l}, v{l}, v{VT1}")
        o.append(f"v_mov_b32 v{VT1}, v{l}")
        o.append("s_nop 1")
        o.append(f"v_permlane16_swap_b32 v{l}, v{VT1}")
        o.append("s_nop 1")
        o.append(f"v_add_f32 v{ET[2*qb+1]}, v{l}, v{VT1}")
        o.append(f"v_mov_b32 v{ET[2*qb]}, v{M[qb]}")
    o.append(f"v_lshlrev_b32 v{VT0}, 2, v{VLANE16}")
    o.append("s_mov_b64 exec, 0xffff")
    for qb in range(4):
        o.append(f"buffer_store_dwordx2 v[{ET[2*qb]}:{ET[2*qb+1]}], v{VT0}, s[{SRD_ML}:{SRD_ML+3}], s48 offen offset:{qb*1024}{opt.get('st','')}")
    return o


def tail_run(p, T, site0, opt):
    negm = lambda qb: vr(NEGM(qb))
    VB = [VTR, [Q(0, 3), Q(0, 3) + 1], [Q(0, 3) + 2, Q(0, 3) + 3]]
    nsp = max(T - 3, 0)
    def ploc(k, final=True):
        if k == T - 1: return lambda qb: Q(qb, 0)
        if k < nsp and final: return lambda qb, k=k: Q(qb, 1 + k)
        return lambda qb, k=k: P((p + k) & 1, qb)
    def kfr(k, h):
        i = (1 - p) + (k - 1)
        fr = []
        for ds in range(8):
            off = (i & 1) * 16384 + foff(h, ds)
            rd = [lambda f, off=off, i=i: f"ds_read_b128 {vr(f)}, v{KB[i >> 1]} offset:{off}"]
            ms = []
            for qb in range(4):
                c = negm(qb) if ds == 0 else vr(S(h, qb))
                ms.append(lambda f, qb=qb, ds=ds, c=c: f"v_mfma_f32_16x16x32_bf16 {vr(S(h,qb))}, {vr(f)}, {vr(Q(qb,ds))}, {c}")
            fr.append((rd, ms))
        return fr
    def vfr(k, fb, final=True):
        i = p + k
        rd = [lambda f, kb=kb: f"ds_read_b64_tr_b16 v[{f+2*kb}:{f+2*kb+1}], v{VB[i >> 1][fb & 1]} offset:{(i & 1) * 16384 + foff(kb, fb >> 1)}" for kb in range(2)]
        pl = ploc(k, final)
        ms = [lambda f, qb=qb: f"v_mfma_f32_16x16x32_bf16 {ar(O(fb,qb))}, {vr(f)}, {vr(pl(qb))}, {ar(O(fb,qb))}" for qb in range(4)]
        return (rd, ms)
    fr = [vfr(0, fb, False) for fb in range(4)]
    blocks = [(1, 1)] + [(k, h) for k in range(2, T) for h in range(2)]
    for k, h in blocks: fr += kfr(k, h)
    G = 4 * len(fr)
    lead = opt.get('lead', 44)
    order = []
    fb = 0
    while 4 * len(order) < lead or fb % 2:
        order += [(k, fb) for k in range(T - 1) if not (k == 0 and fb < 4)]
        fb += 1
    glast = G + 4 * len(order)
    order += [(T - 1, x) for x in range(fb)]
    for x in range(fb, 16):
        order += [(k, x) for k in range(T) if not (k == 0 and x < 4)]
    done = {}
    for i, (k, x) in enumerate(order): done[x] = G + 4 * i + 3
    fr += [vfr(k, x) for k, x in order]
    sg = build_seg(fr, [])
    nm = len(sg.mf)
    if opt.get('timing'):
        for i, gg in enumerate([30, 47, 111, G - 1, glast, (glast + nm) // 2, nm - 20]):
            sg.put(gg, f"s_memtime s[{74+2*i}:{75+2*i}]", 0)
    g = 0
    for k in range(3, T):
        sg.put(g, f"s_mov_b32 m0, s{S_M0}")
        for j in range(4):
            sg.put(g + 1 + j, f"buffer_load_dwordx4 v{VDMA}, s[{SRD_K}:{SRD_K+3}], s{S_OFF} offen offset:{j*1024} lds")
        if k + 1 < T:
            sg.put(g + 5, f"s_add_u32 s{S_OFF}, s{S_OFF}, 0x4000\ns_add_u32 s{S_M0}, s{S_M0}, 0x4000\ns_and_b32 s{S_M0}, s{S_M0}, 0x1ffff", 2)
        g += 6
    for k in range(2, T):
        gb = 16 + 32 * (2 * k - 3) - 15
        sg.put(gb, f"s_waitcnt vmcnt({4 * (T - 1 - k)})")
        sg.put(gb, "s_barrier")
    sg.put(1, f"v_add_u32 v{VSP}, s50, v{VLANE16}")
    for b in (1, 2):
        if 2 * b <= (1 - p) + (T - 2):
            sg.put(12 + b, f"v_add_u32 v{KB[b]}, 0x{0x8000*b:x}, v{VK}")
            sg.put(12 + b, f"v_and_b32 v{KB[b]}, 0x1ffff, v{KB[b]}")
    GL = G - 32
    for b in (1, 2):
        if 2 * b <= p + T - 1:
            sg.put(GL + 13 + b, f"v_add_u32 v{VB[b][0]}, 0x{0x8000*b:x}, v{VTR[0]}")
            sg.put(GL + 13 + b, f"v_and_b32 v{VB[b][0]}, 0x1ffff, v{VB[b][0]}")
            sg.put(GL + 16, f"v_xor_b32 v{VB[b][1]}, 32, v{VB[b][0]}")
    for k in range(nsp):
        gs = 16 if k == 0 else 16 + 32 * 2 * k
        for qb in range(4):
            sg.put(gs + qb, f"ds_write_b128 v{VSP}, {vr(ploc(k, False)(qb))} offset:{k*4096 + qb*1024}")
            sg.put(GL + 4 * (k + 2) + 1 + (qb & 1) + (qb >> 1) * 4, f"ds_read_b128 {vr(ploc(k)(qb))}, v{VSP} offset:{k*4096 + qb*1024}")
    rare = []
    sites = []
    sms = [(k, h) for k in range(1, T) for h in range(2)]
    cap = opt.get('tcap', 3)
    for i, (k, h) in enumerate(sms):
        st = site0 + i
        sites.append(st)
        g0 = 6 if i == 0 else 16 + 32 * i + (4 if i == len(sms) - 2 else 1)
        g1 = 16 + 32 * i + 31 if i < len(sms) - 1 else glast - 2
        q = softmax_queue(h, ploc(k, False), st)
        c = 2 if (i == 0 or i == len(sms) - 1) else cap
        ge = sg.fill(q[:-1], g0, g1, cap=c)
        sg.put(max(ge, g1 - 2) if i == len(sms) - 2 or i == 0 or (h == 0 and 1 <= k - 1 < nsp) else ge, q[-1][1])
        late = i >= len(sms) - 2
        live = [ploc(j, late) for j in range(k) if late or j >= nsp or (j > 0 and i < 2 * j)]
        spl = [j for j in range(nsp) if j < k and not late and not (j > 0 and i < 2 * j)]
        rare += rare_code(f"t{p}_{i}", h, [st], ploc(k, False), live, spl)
        if opt.get('verbose'): print("tail", p, "sm", k, h, "end", ge, "of", g1, "live", [f(0) for f in live], "spill", spl)
    g = glast
    ccap = opt.get('ccap', 3)
    if opt.get('mle'):
        q = [(1, f"v_lshlrev_b32 v{VT0}, 2, v{VLANE16}")]
        for f in ("v_mov_b32 v{e}, v{l}", "v_permlane32_swap_b32 v{l}, v{e}", "v_add_f32 v{l}, v{l}, v{e}", "v_mov_b32 v{e}, v{l}",
                  "v_permlane16_swap_b32 v{l}, v{e}", "v_add_f32 v{e1}, v{l}, v{e}", "v_mov_b32 v{e}, v{m}"):
            q += [(1, f.format(e=ET[2*qb], e1=ET[2*qb+1], l=LA[qb], m=M[qb])) for qb in range(4)]
        q.append((3, "\n".join(ml_store(opt)[-5:] + ["s_mov_b64 exec, -1"])))
        g = sg.fill(q, g, nm - 1, cap=opt['mle'])
    for t in range(8):
        q = []
        for qb in range(4):
            stg = Q(qb, 4 + t % 4)
            tmp = [128 + (qb % 4) * 8 + r for r in range(8)]
            for k in range(8):
                q.append((1, f"v_accvgpr_read_b32 v{tmp[k]}, a{O(2*t+k//4,qb)+k%4}"))
            for r in range(4):
                q.append((1, f"v_cvt_pk_bf16_f32 v{stg+r}, v{tmp[2*r]}, v{tmp[2*r+1]}"))
            so = 40 + qb if t < 4 else 44 + qb
            q.append((1, f"buffer_store_dwordx4 {vr(stg)}, v{VLANE16}, s[{SRD_OP}:{SRD_OP+3}], s{so} offen offset:{(t%4)*1024}{opt.get('st','')}"))
        if opt.get('nost'): q = [x for x in q if 'store' not in x[1]]
        if opt.get('nocv'): q = [x for x in q if 'store' in x[1]]
        cc = ccap[t] if isinstance(ccap, list) else ccap
        px = opt.get('plainx', 4 * opt.get('plain', 8))
        q = [(c, x.replace(opt.get('st', ''), '') if (4 * t + i // 13 >= px if px >= 0 else 4 * t + i // 13 < -px) else x) for i, (c, x) in enumerate(q)]
        if opt.get('half'):
            qa = [x for i, x in enumerate(q) if i % 13 in (0, 1, 2, 3, 8, 9)]
            q = [x for i, x in enumerate(q) if i % 13 not in (0, 1, 2, 3, 8, 9)]
            g = sg.fill(qa, max(g, done[2*t] + 3), nm - 1, cap=cc)
        g0 = max(g, max(done[2*t], done[2*t+1]) + 3)
        if g0 > nm - 1:
            if not opt.get('half'): sg.put(nm - 1, "s_nop 7")
            g0 = nm - 1
        g = sg.fill(q, g0, nm - 1, cap=cc)
        if opt.get('verbose'): print("  conv", t, g0, g, "of", nm)
    return sg.text() + ([] if opt.get('mle') else ml_store(opt)), rare, sites


def light(o, opt, TT):
    A = o.append
    LB0 = 0x16000
    KF = 32; VF = 96; OV = lambda fb: 160 + fb * 4 if fb < 8 else 0
    QL = lambda ds: ds * 4
    KFr = lambda h, ds: 32 + (h * 8 + ds) * 4
    VFr = lambda fb: 96 + fb * 4
    SL = [160, 164]; PL = 168; MM, LL, FF, T0, T1 = 172, 173, 174, 175, 176
    AK, AV0, AV1 = 177, 178, 179
    TM = 180
    MK = NEGM(0)
    S_N, S_SL, S_DS, S_T = 51, 52, 53, 54
    A("LT_start:")
    A("s_waitcnt lgkmcnt(0)")
    srd(o, SRD_K, H_OFF, 0)
    A(f"s_mov_b32 s{SRD_K+2}, s49")
    srd(o, SRD_Q, QF_OFF, QF_BYTES)
    A(f"s_mov_b32 s40, {39 * 16 * 8192}")
    A(f"s_mov_b32 s44, {39 * 16 * 8192 + 4096}")
    for ds in range(8):
        A(f"buffer_load_dwordx4 {vr(QL(ds))}, v{VLANE16}, s[{SRD_Q}:{SRD_Q+3}], s{40 if ds < 4 else 44} offen offset:{(ds%4)*1024}")
    def dma(so):
        for w in range(4):
            A(f"s_add_u32 m0, s{S_DS}, {LB0 + w*4096}")
            A(f"s_add_u32 s{S_T}, s{so}, {w*128}")
            for k in range(4):
                A(f"buffer_load_dwordx4 v{VDMA}, s[{SRD_K}:{SRD_K+3}], s{S_T} offen offset:{k*1024} lds")
        A(f"s_add_u32 s{S_DS}, s{S_DS}, 0x4000")
        A(f"s_and_b32 s{S_DS}, s{S_DS}, 0xffff")
    A(f"s_mov_b32 s{S_DS}, 0")
    dma(39)
    for i in range(2):
        dma(S_OFF)
        A(f"s_add_u32 s{S_OFF}, s{S_OFF}, 0x4000")
    A(f"s_mul_i32 s35, s37, 0x{OP_STRIDE:x}")
    srd(o, SRD_OP, OP_OFF, QF_BYTES, 35)
    srd(o, SRD_ML, ML_OFF, NB16 * 1024)
    A(f"s_lshl_b32 s48, s37, 3")
    A(f"s_add_u32 s48, s48, {39 * 16 * 1024}")
    lds_addrs(A)
    A(f"s_add_u32 s{S_N}, s{S_CNT}, {TT or 2}")
    A(f"s_mov_b32 s{S_SL}, {LB0}")
    A(f"v_mov_b32 v{MM}, 0xff800000")
    A(f"v_mov_b32 v{LL}, 0")
    for r in range(64): A(f"v_accvgpr_write_b32 a{r}, 0")
    A("LT_loop:")
    dma(S_OFF)
    A(f"s_add_u32 s{S_OFF}, s{S_OFF}, 0x4000")
    A(f"v_add_u32 v{AK}, s{S_SL}, v{VK}")
    A(f"v_add_u32 v{AV0}, s{S_SL}, v{VTR[0]}")
    A(f"v_add_u32 v{AV1}, s{S_SL}, v{VTR[1]}")
    A(f"s_add_u32 s{S_SL}, s{S_SL}, 0x4000")
    A(f"s_cmp_eq_u32 s{S_SL}, {LB0 + 0x10000}")
    A(f"s_cselect_b32 s{S_SL}, {LB0}, s{S_SL}")
    A("s_waitcnt vmcnt(48)")
    for ds in range(8):
        for h in range(2):
            A(f"ds_read_b128 {vr(KFr(h, ds))}, v{AK} offset:{foff(h, ds)}")
    for ds in range(8):
        A(f"s_waitcnt lgkmcnt({14 - 2*ds})")
        for h in range(2):
            A(f"v_mfma_f32_16x16x32_bf16 {vr(SL[h])}, {vr(KFr(h, ds))}, {vr(QL(ds))}, {vr(SL[h]) if ds else vr(MK)}")
    for fb in range(16):
        for kb in range(2):
            A(f"ds_read_b64_tr_b16 v[{VFr(fb)+2*kb}:{VFr(fb)+2*kb+1}], v{AV1 if fb & 1 else AV0} offset:{foff(kb, fb >> 1)}")
    for r in range(4): A(f"v_mov_b32 v{MK+r}, 0")
    A("s_nop 7")
    A(f"v_max3_f32 v{T0}, v{SL[0]}, v{SL[0]+1}, v{SL[0]+2}")
    A(f"v_max3_f32 v{T0}, v{T0}, v{SL[0]+3}, v{SL[1]}")
    A(f"v_max3_f32 v{T0}, v{T0}, v{SL[1]+1}, v{SL[1]+2}")
    A(f"v_max3_f32 v{T0}, v{T0}, v{SL[1]+3}, v{MM}")
    for sw in ("v_permlane32_swap_b32", "v_permlane16_swap_b32"):
        A(f"v_mov_b32 v{T1}, v{T0}")
        A("s_nop 1")
        A(f"{sw} v{T0}, v{T1}")
        A("s_nop 1")
        A(f"v_max_f32 v{T0}, v{T0}, v{T1}")
    A(f"v_sub_f32 v{FF}, v{MM}, v{T0}")
    A(f"v_exp_f32 v{FF}, v{FF}")
    A(f"v_mov_b32 v{MM}, v{T0}")
    for r in range(8): A(f"v_sub_f32 v{SL[0]+r}, v{SL[0]+r}, v{MM}")
    for r in range(8): A(f"v_exp_f32 v{SL[0]+r}, v{SL[0]+r}")
    A(f"v_mul_f32 v{LL}, v{LL}, v{FF}")
    for r in range(4): A(f"v_cvt_pk_bf16_f32 v{PL+r}, v{SL[0]+2*r}, v{SL[0]+2*r+1}")
    A(f"v_cmp_neq_f32 vcc, 1.0, v{FF}")
    for r in range(8): A(f"v_add_f32 v{LL}, v{LL}, v{SL[0]+r}")
    A("s_cbranch_vccz LT_nors")
    for c in range(8):
        for r in range(8): A(f"v_accvgpr_read_b32 v{TM+r}, a{8*c+r}")
        for r in range(8): A(f"v_mul_f32 v{TM+r}, v{TM+r}, v{FF}")
        for r in range(8): A(f"v_accvgpr_write_b32 a{8*c+r}, v{TM+r}")
    A("LT_nors:")
    A("s_waitcnt lgkmcnt(0)")
    A("s_nop 1")
    for fb in range(16):
        A(f"v_mfma_f32_16x16x32_bf16 {ar(fb*4)}, {vr(VFr(fb))}, {vr(PL)}, {ar(fb*4)}")
    A(f"s_sub_u32 s{S_N}, s{S_N}, 1")
    A(f"s_cmp_lg_u32 s{S_N}, 0")
    A("s_cbranch_scc1 LT_loop")
    A("s_nop 15")
    for t in range(8):
        for r in range(8): A(f"v_accvgpr_read_b32 v{TM+r}, a{8*t+r}")
        for r in range(4): A(f"v_cvt_pk_bf16_f32 v{32+4*t+r}, v{TM+2*r}, v{TM+2*r+1}")
        A(f"buffer_store_dwordx4 {vr(32+4*t)}, v{VLANE16}, s[{SRD_OP}:{SRD_OP+3}], s{40 if t < 4 else 44} offen offset:{(t%4)*1024}{opt.get('st','')}")
    for sw in ("v_permlane32_swap_b32", "v_permlane16_swap_b32"):
        A(f"v_mov_b32 v{T1}, v{LL}")
        A("s_nop 1")
        A(f"{sw} v{LL}, v{T1}")
        A("s_nop 1")
        A(f"v_add_f32 v{LL}, v{LL}, v{T1}")
    A(f"v_lshlrev_b32 v{T0}, 2, v{VLANE16}")
    A("s_mov_b64 exec, 0xffff")
    A(f"buffer_store_dwordx2 v[{MM}:{LL}], v{T0}, s[{SRD_ML}:{SRD_ML+3}], s48 offen{opt.get('st','')}")
    A("s_waitcnt vmcnt(0)")
    A("s_branch L2_fin")


def lds_addrs(A):
    L = VLANE16
    A(f"v_bfe_u32 v{VK}, v{L}, 4, 3")
    A(f"v_lshlrev_b32 v{VK}, 6, v{VK}")
    A(f"v_bfe_u32 v{VT0}, v{L}, 7, 1")
    A(f"v_lshl_or_b32 v{VK}, v{VT0}, 10, v{VK}")
    A(f"v_bfe_u32 v{VT0}, v{L}, 8, 2")
    A(f"v_lshl_or_b32 v{VK}, v{VT0}, 4, v{VK}")
    A(f"v_bfe_u32 v{VT0}, v{L}, 6, 1")
    A(f"v_lshlrev_b32 v{VT0}, 5, v{VT0}")
    A(f"v_xor_b32 v{VK}, v{VK}, v{VT0}")
    A(f"v_and_b32 v{VTR[0]}, 0x1c0, v{L}")
    A(f"v_bfe_u32 v{VT0}, v{L}, 9, 1")
    A(f"v_lshl_or_b32 v{VTR[0]}, v{VT0}, 10, v{VTR[0]}")
    A(f"v_bfe_u32 v{VT0}, v{L}, 8, 1")
    A(f"v_lshl_or_b32 v{VTR[0]}, v{VT0}, 5, v{VTR[0]}")
    A(f"v_bfe_u32 v{VT0}, v{L}, 4, 2")
    A(f"v_lshl_or_b32 v{VTR[0]}, v{VT0}, 3, v{VTR[0]}")
    A(f"v_xor_b32 v{VTR[1]}, 32, v{VTR[0]}")
    A(f"v_bfe_i32 v{VT0}, v{L}, 8, 1")
    for r in range(4):
        A(f"v_and_b32 v{NEGM(0)+r}, s{S_MASK}, v{VT0}")


def prologue2(o, opt, T):
    A = o.append
    Z = ET[0]
    for r in range(4):
        A(f"v_mov_b32 v{Z+r}, 0")
    nvm = [6]
    qidx = {}
    zi = 0
    for ds in range(8):
        for qb in range(4):
            so = 40 + qb if ds < 4 else 44 + qb
            A(f"buffer_load_dwordx4 {vr(Q(qb,ds))}, v{VLANE16}, s[{SRD_Q}:{SRD_Q+3}], s{so} offen offset:{(ds%4)*1024}")
            nvm[0] += 1
            qidx[(ds, qb)] = nvm[0]
            if qb % 2 == 1:
                A(f"v_mfma_f32_32x32x16_bf16 a[{16*zi}:{16*zi+15}], {vr(Z)}, {vr(Z)}, 0")
                zi += 1
    T(1)
    lds_addrs(A)
    items = []
    dm = lambda k: (1, f"buffer_load_dwordx4 v{VDMA}, s[{SRD_K}:{SRD_K+3}], s{S_OFF} offen offset:{k*1024} lds")
    items += [dm(2), dm(3)]
    items.append((0, f"s_add_u32 s{S_OFF}, s{S_OFF}, 0x4000\ns_add_u32 m0, s{S_M0}, 0x8000\ns_nop 0"))
    items += [dm(k) for k in range(4)]
    items.append((0, f"s_add_u32 s{S_OFF}, s{S_OFF}, 0x4000\ns_add_u32 s{S_M0}, s{S_M0}, 0xc000"))
    spre = opt.get('spre', 0)
    while spre > 0:
        v, t = items.pop(0)
        A(t); nvm[0] += v; spre -= v
    T(2)
    A(f"s_waitcnt vmcnt({nvm[0]-6})")
    A("s_barrier")
    T(3)
    TB = P_BASE[1]
    dst = [S_BASE[0], S_BASE[1], TB]
    fr = []
    for ds in range(8):
        for b in range(3):
            ms = []
            for qb in range(4):
                d = vr(dst[b] + 4 * qb)
                c0 = vr(NEGM(0)) if b < 2 else '0'
                ms.append(lambda f, qb=qb, ds=ds, d=d, c0=c0: f"v_mfma_f32_16x16x32_bf16 {d}, {vr(f)}, {vr(Q(qb,ds))}, {d if ds else c0}")
            fr.append((kread((b >> 1) * 16384 + foff(b & 1, ds)), ms))
    for i in range(RING):
        A(fr[i][0][0](F(i)))
    sg = build_seg(fr, [])
    per = opt.get('sper', 3)
    for ds in range(8):
        g = 12 * ds - 1
        sg.put(g, f"s_waitcnt vmcnt({nvm[0]-qidx[(ds,3)]})")
        k = 0
        gg = g + 2
        while items and (k < per or ds == 7):
            v, t = items.pop(0)
            sg.put(min(gg, 95), t); nvm[0] += v; k += v; gg += 2
    o += sg.text()
    T(6)
    R4 = range(4)
    s0 = lambda qb: S(0, qb)
    s1 = lambda qb: S(1, qb)
    for qb in R4: A(f"v_max3_f32 v{M[qb]}, v{s0(qb)}, v{s0(qb)+1}, v{s0(qb)+2}")
    for qb in R4: A(f"v_max3_f32 v{M[qb]}, v{M[qb]}, v{s0(qb)+3}, v{s1(qb)}")
    for qb in R4: A(f"v_max3_f32 v{M[qb]}, v{M[qb]}, v{s1(qb)+1}, v{s1(qb)+2}")
    for qb in R4: A(f"v_max_f32 v{M[qb]}, v{M[qb]}, v{s1(qb)+3}")
    for sw in ("v_permlane32_swap_b32", "v_permlane16_swap_b32"):
        for qb in R4: A(f"v_mov_b32 v{ET[qb]}, v{M[qb]}")
        for qb in R4: A(f"{sw} v{M[qb]}, v{ET[qb]}")
        for qb in R4: A(f"v_max_f32 v{M[qb]}, v{M[qb]}, v{ET[qb]}")
    for h in range(2):
        for qb in R4:
            for r in R4: A(f"v_sub_f32 v{S(h,qb)+r}, v{S(h,qb)+r}, v{M[qb]}")
            for r in R4: A(f"v_exp_f32 v{S(h,qb)+r}, v{S(h,qb)+r}")
            if h == 0:
                for r in R4: A(f"v_sub_f32 v{NEGM(qb)+r}, 0, v{M[qb]}")
        if h == 0:
            A("s_waitcnt vmcnt(4)")
            A("s_barrier")
            for i in range(RING):
                for x in vread(0, i): A(x(F(i)))
    T(7)
    for h in range(2):
        for qb in R4:
            s = S(h, qb)
            A(f"v_cvt_pk_bf16_f32 v{P(0,qb)+2*h}, v{s}, v{s+1}")
            A(f"v_cvt_pk_bf16_f32 v{P(0,qb)+2*h+1}, v{s+2}, v{s+3}")
    for qb in R4: A(f"v_add_f32 v{LA[qb]}, v{s0(qb)}, v{s0(qb)+1}")
    for qb in R4: A(f"v_add_f32 v{LB[qb]}, v{s0(qb)+2}, v{s0(qb)+3}")
    for r in R4:
        for qb in R4:
            t = LA if r % 2 == 0 else LB
            A(f"v_add_f32 v{t[qb]}, v{t[qb]}, v{s1(qb)+r}")
    for qb in R4: A(f"v_add_f32 v{LA[qb]}, v{LA[qb]}, v{LB[qb]}")
    for qb in R4:
        for r in R4: A(f"v_sub_f32 v{s0(qb)+r}, v{TB+4*qb+r}, v{M[qb]}")


def gen_k2(opt=None):
    opt = opt or {}
    o = []
    A = o.append
    def T(i):
        if opt.get('timing'): A(f"s_memtime s[{74+2*i}:{75+2*i}]")
    A("s_load_dwordx2 s[4:5], s[0:1], %d" % KA_WS)
    if opt.get('timing'):
        A("s_load_dwordx2 s[60:61], s[0:1], %d" % KA_OUT)
        A("s_memtime s[62:63]")
        A("s_memrealtime s[64:65]")
    A("s_and_b32 s35, s2, 7")
    A("s_lshr_b32 s37, s2, 3")
    A("s_cmp_ge_u32 s37, 30")
    A("s_cbranch_scc1 LE_start")
    if opt.get('map', 1) == 1:
        A("s_mul_i32 s38, s37, 52")
        A("s_lshr_b32 s38, s38, 8")
        A("s_mul_i32 s39, s38, 5")
        A("s_sub_u32 s39, s37, s39")
        A("s_mov_b32 s37, s38")
        A("s_mul_i32 s38, s35, 5")
        A("s_add_u32 s38, s38, s39")
    else:
        A("s_mul_i32 s38, s37, 26")
        A("s_lshr_b32 s38, s38, 8")
        A("s_mul_i32 s39, s38, 10")
        A("s_sub_u32 s39, s37, s39")
        A("s_and_b32 s37, s35, 1")
        A("s_mul_i32 s37, s37, 3")
        A("s_add_u32 s37, s37, s38")
        A("s_lshr_b32 s38, s35, 1")
        A("s_mul_i32 s38, s38, 10")
        A("s_add_u32 s38, s38, s39")
    A("v_lshrrev_b32 v1, 6, v0")
    A(f"v_and_b32 v{VLANE16}, 63, v0")
    A(f"v_lshlrev_b32 v{VLANE16}, 4, v{VLANE16}")
    A(f"v_readfirstlane_b32 s{S_WAVE}, v1")
    cnts = opt.get('cnts', [52, 52, 52, 52, 52, 53])
    assert sum(cnts) == NT and len(cnts) == NSPLIT
    st = [sum(cnts[:i]) for i in range(NSPLIT)] + [NT - 1]
    pk = sum(x << (9 * i) for i, x in enumerate(st))
    A(f"s_mov_b32 s50, 0x{pk & 0xffffffff:x}")
    A(f"s_mov_b32 s51, 0x{pk >> 32:x}")
    A(f"s_mul_i32 s39, s37, 9")
    A(f"s_lshr_b64 s[50:51], s[50:51], s39")
    A(f"s_and_b32 s39, s50, 0x1ff")
    A(f"s_bfe_u32 s49, s50, 0x90009")
    A(f"s_sub_u32 s{S_CNT}, s49, s39")
    TT = opt.get('trun', 0)
    A(f"s_sub_u32 s{S_CNT}, s{S_CNT}, {TT or 2}")
    A(f"s_lshl_b32 s39, s39, 14")
    A(f"s_lshl_b32 s49, s49, 14")
    A(f"s_add_u32 s{S_OFF}, s39, 0x4000")
    A(f"s_cmp_eq_u32 s37, {NSPLIT-1}")
    A(f"s_addc_u32 s{S_CNT}, s{S_CNT}, 0")
    A(f"s_cmp_eq_u32 s37, {NSPLIT-1}")
    A(f"s_cselect_b32 s{S_OFF}, s39, s{S_OFF}")
    A(f"s_cselect_b32 s39, {(NT-1)*16384}, s39")
    A(f"s_cselect_b32 s49, {NT*16384}, s49")
    A(f"s_cselect_b32 s{S_MASK}, 0xff800000, 0")
    A(f"s_mov_b32 s{S_THR}, 0x5d800000")
    A("v_and_b32 v2, 63, v0")
    A("v_bfe_u32 v3, v2, 3, 2")
    A("v_bfe_u32 v4, v2, 2, 1")
    A(f"v_lshlrev_b32 v{VDMA}, 12, v3")
    A(f"v_lshl_or_b32 v{VDMA}, v4, 9, v{VDMA}")
    A(f"v_lshl_or_b32 v{VDMA}, v1, 7, v{VDMA}")
    A("v_lshrrev_b32 v4, 5, v2")
    A(f"v_lshl_or_b32 v{VDMA}, v4, 6, v{VDMA}")
    A("v_and_b32 v3, 2, v3")
    A("v_and_b32 v4, 3, v2")
    A("v_xor_b32 v3, v3, v4")
    A(f"v_lshl_or_b32 v{VDMA}, v3, 4, v{VDMA}")
    if opt.get('light'):
        A("s_cmp_eq_u32 s38, 39")
        A("s_cbranch_scc1 LT_disp")
    A(f"s_lshl_b32 s{S_M0}, s{S_WAVE}, 12")
    A(f"s_lshl_b32 s50, s{S_WAVE}, 13")
    A(f"s_add_u32 s50, s50, 0x20000")
    A(f"s_mov_b32 m0, s{S_M0}")
    A("s_waitcnt lgkmcnt(0)")
    T(0)
    srd(o, SRD_K, H_OFF, 0)
    A(f"s_mov_b32 s{SRD_K+2}, s49")
    for k in range(4):
        A(f"buffer_load_dwordx4 v{VDMA}, s[{SRD_K}:{SRD_K+3}], s39 offen offset:{k*1024} lds")
    A(f"s_add_u32 m0, s{S_M0}, 0x4000")
    srd(o, SRD_Q, QF_OFF, QF_BYTES)
    for k in range(2):
        A(f"buffer_load_dwordx4 v{VDMA}, s[{SRD_K}:{SRD_K+3}], s{S_OFF} offen offset:{k*1024} lds")
    A(f"s_mul_i32 s35, s37, 0x{OP_STRIDE:x}")
    srd(o, SRD_OP, OP_OFF, QF_BYTES, 35)
    srd(o, SRD_ML, ML_OFF, NB16 * 1024)
    A(f"s_lshl_b32 s35, s38, 4")
    A(f"s_lshl_b32 s41, s{S_WAVE}, 2")
    A(f"s_add_u32 s35, s35, s41")
    A(f"s_lshl_b32 s40, s35, 13")
    for qb in range(1, 4):
        A(f"s_add_u32 s{40+qb}, s40, {qb*8192}")
    for qb in range(4):
        A(f"s_add_u32 s{44+qb}, s{40+qb}, 4096")
    A(f"s_lshl_b32 s48, s35, 10")
    A(f"s_lshl_b32 s35, s37, 3")
    A(f"s_add_u32 s48, s48, s35")
    prologue2(o, opt, T)
    A("s_nop 1")
    if opt.get('timing'):
        A("s_memtime s[66:67]")
        A("s_waitcnt lgkmcnt(0)")
    sites = {}
    n = 0
    for kind in ('loop', 'tail2'):
        for p in (0, 1):
            sites[(kind, p)] = (n, n + 1)
            n += 2
    rares = []; alls = list(range(4 if TT else n))
    A(".p2align 6")
    A("L2_loop:")
    o += body(0, 'loop', sites[('loop', 0)], opt).text()
    A("s_cbranch_scc1 L2_tail_1")
    o += body(1, 'loop', sites[('loop', 1)], opt).text()
    A("s_cbranch_scc0 L2_loop")
    for p in (0, 1):
        A(f"L2_tail_{p}:")
        if opt.get('timing'):
            A("s_memtime s[68:69]")
            A("s_waitcnt lgkmcnt(0)")
        if TT:
            tl, rr, ss = tail_run(p, TT, len(alls), opt)
            o += tl; rares += rr; alls += ss
        else:
            o += body(p, 'tail2', sites[('tail2', p)], opt).text()
            A("s_nop 1")
            T(8)
            o += epilogue(body(1 - p, 'tail1', None, opt), opt)
        T(9)
        A("s_branch L2_fin")
    if opt.get('valu', 1):
        for p in (0, 1):
            for h in (0, 1):
                o += rare_code(p, h, [sites[('loop', p)][h]] + ([] if TT else [sites[('tail2', p)][h]]))
        o += rares
        o += rare_common(alls)
    import gen_eg
    if opt.get('light'):
        A("LT_disp:")
        A(f"s_cmp_eq_u32 s{S_WAVE}, 0")
        A("s_cbranch_scc1 LT_start")
        A(f"s_mov_b32 s{gen_eg.S_W}, s{S_WAVE}")
        A(f"s_mul_i32 s{gen_eg.S_B}, s{S_WAVE}, 6")
        A(f"s_add_u32 s{gen_eg.S_B}, s{gen_eg.S_B}, s37")
        A(f"s_add_u32 s{gen_eg.S_B}, s{gen_eg.S_B}, 42")
        A(f"s_cmp_lt_u32 s{gen_eg.S_B}, {NBK}")
        A("s_cbranch_scc1 LE_common")
        A("s_branch L2_end")
        light(o, opt, TT)
    gen_eg.gen_edge(o, opt)
    A("L2_fin:")
    if opt.get('timing'):
        A("s_mov_b64 exec, -1")
        A("s_waitcnt vmcnt(0)")
        A("s_memtime s[70:71]")
        A("s_memrealtime s[72:73]")
        A("s_waitcnt lgkmcnt(0)")
        A("s_sub_u32 s66, s66, s62")
        A("s_sub_u32 s68, s68, s62")
        A("s_sub_u32 s70, s70, s62")
        for i in range(10):
            A(f"s_sub_u32 s{74+2*i}, s{74+2*i}, s62\nv_mov_b32 v{4+i}, s{74+2*i}")
        A("v_mov_b32 v14, s64\nv_mov_b32 v15, s72")
        A("s_sub_u32 s72, s72, s64")
        A("v_mov_b32 v0, s66\nv_mov_b32 v1, s68\nv_mov_b32 v2, s70\nv_mov_b32 v3, s72")
        A("s_mov_b32 s62, 0x100000\ns_mov_b32 s63, 0x00020000")
        A(f"s_lshl_b32 s35, s2, 2")
        A(f"s_add_u32 s35, s35, s{S_WAVE}")
        A(f"s_lshl_b32 s35, s35, 10")
        A(f"buffer_store_dwordx4 v[0:3], v{VLANE16}, s[60:63], s35 offen")
        A("s_add_u32 s35, s35, 0x200000\ns_mov_b32 s62, 0x800000")
        for k in range(3):
            A(f"buffer_store_dwordx4 v[{4+4*k}:{7+4*k}], v{VLANE16}, s[60:63], s35 offen")
            A("s_add_u32 s35, s35, 0x100000")
    A("L2_end:")
    return "\n".join(o)


def kernel_desc(opt=None):
    return dict(name="k2_kernel", body=gen_k2(opt), vgpr=512, accum=256, grid=256, block=256, lds=163840 if (opt or {}).get('trun', 0) > 3 or (opt or {}).get('light') else 131072)
```

```python
from layout import *

def gen_k3(opt=None):
    opt = opt or {}
    o = []
    A = o.append
    A("s_load_dwordx2 s[4:5], s[0:1], %d" % KA_X)
    A("s_load_dwordx2 s[6:7], s[0:1], %d" % KA_DEG)
    A("s_load_dwordx2 s[8:9], s[0:1], %d" % KA_OUT)
    A("s_load_dwordx2 s[10:11], s[0:1], %d" % KA_WS)
    if opt.get('map', 0):
        A("s_cmp_ge_u32 s2, 640")
        A("s_cbranch_scc1 L3_end")
        A("s_and_b32 s3, s2, 7")
        A("s_lshr_b32 s2, s2, 3")
        A("s_mul_i32 s3, s3, 80")
        A("s_add_u32 s2, s2, s3")
    A("s_cmp_ge_u32 s2, 625")
    A("s_cbranch_scc1 L3_end")
    A("v_and_b32 v1, 63, v0")
    A("v_lshrrev_b32 v2, 6, v0")
    A("v_bfe_u32 v5, v1, 1, 4")
    A("v_and_b32 v8, 1, v1")
    A("v_lshrrev_b32 v6, 5, v1")
    A("v_lshl_add_u32 v6, v2, 1, v6")
    A("v_lshlrev_b32 v4, 3, v5")
    A("v_lshrrev_b32 v3, 2, v5")
    A("v_lshl_add_u32 v3, v6, 2, v3")
    A("v_lshl_add_u32 v3, v3, 2, v8")
    A("v_and_b32 v7, 3, v5")
    A("v_lshl_add_u32 v3, v3, 2, v7")
    A("v_lshlrev_b32 v3, 4, v3")
    A("v_lshlrev_b32 v7, 1, v5")
    A("v_lshlrev_b32 v5, 9, v5")
    A("v_lshl_add_u32 v5, v6, 6, v5")
    A("v_lshl_add_u32 v5, v8, 4, v5")
    HO = 32
    A("s_lshl_b32 s12, s2, 13")
    A("s_lshl_b32 s13, s2, 9")
    A("s_lshl_b32 s14, s2, 5")
    A("s_waitcnt lgkmcnt(0)")
    SX, SD, SO, SP, SM, SH = 16, 20, 24, 28, 32, 36
    srd_from(o, SM, 10, ML_OFF, (NSPLIT - 1) * ML_STRIDE + NB16 * 512)
    srd_from(o, SP, 10, OP_OFF, (NSPLIT - 1) * OP_STRIDE + QF_BYTES)
    ML = 8
    OPR = 20
    XR = 68; HR = 76; DG = 84
    for s in range(NSPLIT):
        A(f"s_add_u32 s{40+s}, s13, 0x{s*ML_STRIDE:x}")
        A(f"buffer_load_dwordx2 v[{ML+2*s}:{ML+2*s+1}], v4, {sr(SM)}, s{40+s} offen")
    for s in range(NSPLIT):
        A(f"s_add_u32 s{48+s}, s12, 0x{s*OP_STRIDE:x}")
        for h in range(2):
            A(f"buffer_load_dwordx4 {vr(OPR+(s*2+h)*4)}, v3, {sr(SP)}, s{48+s} offen offset:{h*128}")
    srd_from(o, SH, 10, HL_OFF, HL_BYTES)
    srd_from(o, SX, 4, 0, N * 512)
    srd_from(o, SD, 6, 0, N * 2)
    srd_from(o, SO, 8, 0, N * 512)
    for h in range(2):
        A(f"buffer_load_dwordx4 {vr(HR+4*h)}, v5, {sr(SH)}, s12 offen offset:{h*HO}")
    for h in range(2):
        A(f"buffer_load_dwordx4 {vr(XR+4*h)}, v5, {sr(SX)}, s12 offen offset:{h*HO}")
    A(f"buffer_load_ushort v{DG}, v7, {sr(SD)}, s14 offen")
    A("s_mov_b32 s15, 0xffff0000")
    A("s_waitcnt vmcnt(17)")
    m = lambda s: ML + 2 * s
    l = lambda s: ML + 2 * s + 1
    A(f"v_max3_f32 v1, v{m(0)}, v{m(1)}, v{m(2)}")
    A(f"v_max3_f32 v2, v{m(3)}, v{m(4)}, v{m(5)}")
    A(f"v_max_f32 v1, v1, v2")
    for s in range(NSPLIT):
        A(f"v_sub_f32 v{m(s)}, v{m(s)}, v1")
    for s in range(NSPLIT):
        A(f"v_exp_f32 v{m(s)}, v{m(s)}")
    A("s_nop 0")
    A(f"v_mul_f32 v2, v{m(0)}, v{l(0)}")
    for s in range(1, NSPLIT):
        A(f"v_fmac_f32 v2, v{m(s)}, v{l(s)}")
    A("v_rcp_f32 v2, v2")
    A("s_nop 0")
    for s in range(NSPLIT):
        A(f"v_mul_f32 v{m(s)}, v{m(s)}, v2")
    ACC = 88
    T = 104
    n = 0
    for s in range(NSPLIT):
        for h in range(2):
            A(f"s_waitcnt vmcnt({16 - (s*2+h)})")
            r = OPR + (s * 2 + h) * 4
            for k in range(4):
                t = T + (n % 4) * 2; n += 1
                a = ACC + (k // 2) * 8 + (h * 2 + k % 2) * 2
                A(f"v_lshlrev_b32 v{t}, 16, v{r+k}")
                A(f"v_and_b32 v{t+1}, s15, v{r+k}")
                if s == 0:
                    A(f"v_pk_mul_f32 v[{a}:{a+1}], v[{t}:{t+1}], v[{m(s)}:{m(s)+1}] op_sel_hi:[1,0]")
                else:
                    A(f"v_pk_fma_f32 v[{a}:{a+1}], v[{t}:{t+1}], v[{m(s)}:{m(s)+1}], v[{a}:{a+1}] op_sel_hi:[1,0,1]")
    A("s_waitcnt vmcnt(0)")
    A(f"v_lshlrev_b32 v{DG}, 16, v{DG}")
    for h in range(2):
        for k in range(4):
            t = T + (n % 4) * 2; n += 1
            a = ACC + h * 8 + k * 2
            A(f"v_lshlrev_b32 v{t}, 16, v{HR+4*h+k}")
            A(f"v_and_b32 v{t+1}, s15, v{HR+4*h+k}")
            A(f"v_pk_fma_f32 v[{a}:{a+1}], v[{t}:{t+1}], v[{DG}:{DG+1}], v[{a}:{a+1}] op_sel_hi:[1,0,1]")
            t = T + (n % 4) * 2; n += 1
            A(f"v_lshlrev_b32 v{t}, 16, v{XR+4*h+k}")
            A(f"v_and_b32 v{t+1}, s15, v{XR+4*h+k}")
            A(f"v_pk_add_f32 v[{a}:{a+1}], v[{t}:{t+1}], v[{a}:{a+1}]")
            A(f"v_cvt_pk_bf16_f32 v{OPR+4*h+k}, v{a}, v{a+1}")
        A(f"buffer_store_dwordx4 {vr(OPR+4*h)}, v5, {sr(SO)}, s12 offen offset:{h*HO}")
    A("L3_end:")
    return "\n".join(o)


def kernel_desc(opt=None):
    return dict(name="k3_kernel", body=gen_k3(opt), vgpr=112, accum=112, grid=640 if (opt or {}).get('map') else 625, block=256, lds=0)
```

```python
import re
REG = re.compile(r'\b([vas])(\d+)\b|\b([vas])\[(\d+):(\d+)\]|\b(vcc|exec|m0|scc)\b')
TRANS = ('v_exp_f32', 'v_log_f32', 'v_rcp_f32', 'v_rsq_f32', 'v_sqrt_f32', 'v_sin_f32', 'v_cos_f32')

def regs(op):
    out = set()
    for m in REG.finditer(op):
        if m.group(1):
            out.add((m.group(1), int(m.group(2))))
        elif m.group(3):
            for i in range(int(m.group(4)), int(m.group(5)) + 1):
                out.add((m.group(3), i))
        else:
            n = m.group(6)
            if n == 'vcc':
                out.add(('s', 106)); out.add(('s', 107))
            elif n == 'exec':
                out.add(('s', 126)); out.add(('s', 127))
            elif n == 'm0':
                out.add(('s', 124))
    return out

def split_ops(s):
    ops, d, cur = [], 0, ''
    for ch in s:
        if ch == '[': d += 1
        if ch == ']': d -= 1
        if ch == ',' and d == 0:
            ops.append(cur.strip()); cur = ''
        else:
            cur += ch
    if cur.strip(): ops.append(cur.strip())
    return ops

class I:
    pass

def parse(line):
    line = line.split(';')[0].split('//')[0].strip()
    if not line or line.endswith(':') or line.startswith('.'):
        return None
    p = line.split(None, 1)
    i = I(); i.text = line; i.op = p[0]
    ops = split_ops(p[1]) if len(p) > 1 else []
    i.ops = ops
    op = i.op
    i.mfma = op.startswith('v_mfma')
    i.valu = op.startswith('v_') and not i.mfma
    i.vmem = op.startswith('buffer_') or op.startswith('global_')
    i.ds = op.startswith('ds_')
    i.salu = op.startswith('s_')
    i.lds_dma = i.vmem and re.search(r'\blds\b', line) is not None
    i.dpp = 'dpp' in line or 'row_' in line or 'quad_perm' in line
    i.ws = 1
    if op == 's_nop':
        i.ws = int(ops[0], 0) + 1
    nd = 1
    if op.startswith(('buffer_store', 'global_store', 's_cmp', 's_bitcmp', 's_cbranch', 's_branch', 's_waitcnt', 's_barrier', 's_nop', 's_endpgm', 's_setprio', 's_sleep', 's_setpc')) or i.lds_dma:
        nd = 0
    if i.ds and not (op.startswith('ds_read') or 'rtn' in op or 'permute' in op or 'swizzle' in op):
        nd = 0
    if op.startswith(('buffer_atomic', 'global_atomic')):
        nd = 0
    i.dst = set(); i.src = set()
    for k, o in enumerate(ops):
        r = regs(o)
        if k < nd: i.dst |= r
        else: i.src |= r
    if 'swap' in op and i.valu:
        i.dst |= regs(ops[1]); i.src |= regs(ops[0])
    if op.startswith(('v_cndmask_b32', 'v_addc', 'v_subb')) and len(ops) == 3:
        i.src |= regs('vcc')
    if op.startswith('v_fmac') or op.startswith('v_dot2c') or op.startswith('v_writelane'):
        i.src |= i.dst
    if op.startswith(('v_add_co', 'v_sub_co')):
        i.dst |= regs(ops[1]); i.src -= regs(ops[1])
    if op.startswith('s_and_saveexec') or op.startswith('s_or_saveexec'):
        i.dst |= regs('exec')
    if i.mfma:
        i.A = regs(ops[1]); i.B = regs(ops[2]); i.C = regs(ops[3]); i.Dtxt = ops[0]; i.Ctxt = ops[3]
        i.passes = 8 if '32x32' in op else 4
    if op.startswith(('buffer_store_dwordx4', 'buffer_store_dwordx3', 'global_store_dwordx4')):
        i.wide = regs(ops[0]) if op.startswith('buffer') else regs(ops[1])
    else:
        i.wide = set()
    return i

def check(text, name=''):
    ins = [x for x in (parse(l) for l in text.split('\n')) if x]
    errs = []
    for n, c in enumerate(ins):
        dist = 0
        for k in range(n - 1, max(-1, n - 24), -1):
            p = ins[k]
            need = 0; why = ''
            def req(v, w):
                nonlocal need, why
                if v > need: need, why = v, w
            if p.valu:
                vd = {r for r in p.dst if r[0] in 'va'}
                sd = {r for r in p.dst if r[0] == 's'}
                if c.mfma and vd & (c.A | c.B | c.C): req(2, 'valu->mfma')
                if p.op.startswith(TRANS) and c.valu and not c.op.startswith(TRANS) and vd & c.src: req(1, 'trans->valu')
                if p.op.startswith(TRANS) and (c.vmem or c.ds) and vd & c.src: req(1, 'trans->mem')
                if c.op.startswith(('v_readlane', 'v_readfirstlane')) and vd & c.src: req(1, 'valu->readlane')
                if c.op.startswith('v_permlane') and vd & (c.src | c.dst): req(2, 'valu->permlane')
                if c.dpp and vd & c.src: req(2, 'valu->dpp')
                if sd:
                    if c.vmem and sd & c.src: req(5, 'valu sgpr->vmem')
                    if c.valu and sd & c.src: req(2, 'valu sgpr->valu')
                    if c.op.startswith(('v_readlane', 'v_writelane')) and len(c.ops) > 2 and sd & regs(c.ops[2]): req(4, 'valu sgpr->lanesel')
            if p.mfma:
                D = p.dst
                big = 8 if p.passes == 4 else 12
                if c.mfma:
                    if D & (c.A | c.B): req(big, 'mfma D->A/B')
                    if D & c.C and not (p.Dtxt == c.Ctxt and p.passes == c.passes): req(big - 2, 'mfma D->C overlap')
                    if D & c.dst and not (p.Dtxt == c.Ctxt): req(big, 'mfma WAW mfma')
                elif (c.valu or c.vmem or c.ds) and D & (c.src | c.dst): req(big, 'mfma D->use')
                if c.valu and p.C & c.dst: req(3 if p.passes == 4 else 7, 'mfma C WAR')
            if p.wide and (c.valu or c.mfma) and p.wide & c.dst: req(2, 'store data WAR')
            if p.salu and ('s', 124) in p.dst and c.lds_dma: req(1, 'm0->lds dma')
            if need > dist:
                errs.append(f"{name}: {why}: need {need} have {dist}\n    {p.text}\n    {c.text}")
            dist += p.ws
            if dist >= 20: break
    return errs

def fix(lines):
    out = []
    for l in lines:
        for t in l.split('\n'):
            c = parse(t)
            if c is not None:
                while True:
                    win = [x for x, p in out[-24:] if p is not None] + [t]
                    e = [m for m in check_last(win)]
                    if not e: break
                    need = max(e)
                    out.append((f"s_nop {need-1}", parse(f"s_nop {need-1}")))
            out.append((t, c))
    return [t for t, _ in out]

def check_last(win):
    errs = check("\n".join(win[:-1]))
    errs2 = check("\n".join(win))
    new = errs2[len(errs):]
    return [int(re.search(r'need (\d+) have (\d+)', m).group(1)) - int(re.search(r'need (\d+) have (\d+)', m).group(2)) for m in new]
```

```python
N = 10000
D = 256
E = 160000
NB16 = 626
NT = 313
FRAGBLK = 8192
QF_OFF = 0
KF_OFF = 8 << 20
VF_OFF = 16 << 20
ME_OFF = 104 << 20
H_OFF = ME_OFF
WF_OFF = 16 << 20
A_OFF = 17 << 20
OP_OFF = 32 << 20
OP_STRIDE = 6 << 20
ML_OFF = 96 << 20
ML_STRIDE = 1 << 20
HL_OFF = 112 << 20
ECNT_OFF = 120 << 20
EDGE_OFF = 128 << 20
TIM_OFF = 208 << 20
QF_BYTES = NB16 * FRAGBLK
KF_BYTES = NB16 * FRAGBLK
VF_BYTES = NT * 16384
ME_BYTES = N * 512
HL_BYTES = N * 512
NSPLIT = 6
NQT = 40
K1_WGS = 256
EPW = E // K1_WGS
NBK = 64
BN = 157
BMAGIC, BSHIFT = 6679, 20
NEW = 16
ECAP = 10240
ECNT_BYTES = NBK * NEW * 4
EDGE_BYTES = NBK * NEW * ECAP * 4
assert all((d * BMAGIC) >> BSHIFT == d // BN for d in range(N)) and NBK * BN >= N
KA_X, KA_SRC, KA_DST, KA_DEG, KA_WMSG, KA_WQ, KA_WK, KA_WV, KA_WOUT, KA_OUT, KA_DBG, KA_WS = [8 * i for i in range(12)]


def vr(b, n=4): return f"v[{b}:{b+n-1}]"
def ar(b, n=4): return f"a[{b}:{b+n-1}]"
def sr(b, n=4): return f"s[{b}:{b+n-1}]"


class Seg:
    def __init__(self):
        self.mf = []
        self.gap = []
        self.pre = []

    def add_mfma(self, t):
        self.mf.append(t)
        self.gap.append([])

    def used(self, g):
        return sum(c for c, _ in self.gap[g])

    def put(self, g, text, cost=1):
        if g < 0:
            self.pre.append((cost, text))
        else:
            self.gap[g].append((cost, text))

    def fill(self, queue, g0, g1, cap=2):
        g = g0
        for cost, text in queue:
            while g < g1 and self.used(g) + cost > cap:
                g += 1
            self.gap[g].append((cost, text))
        return g

    def text(self):
        o = [t for _, t in self.pre]
        for m, gp in zip(self.mf, self.gap):
            o.append(m)
            o += [t for _, t in gp]
        return o


def srd_from(o, d, plo, off, nbytes, extra_sgpr=None):
    o.append(f"s_add_u32 s{d}, s{plo}, 0x{off & 0xffffffff:x}")
    o.append(f"s_addc_u32 s{d+1}, s{plo+1}, 0")
    if extra_sgpr is not None:
        o.append(f"s_add_u32 s{d}, s{d}, s{extra_sgpr}")
        o.append(f"s_addc_u32 s{d+1}, s{d+1}, 0")
    if isinstance(nbytes, str):
        o.append(f"s_mov_b32 s{d+2}, {nbytes}")
    else:
        o.append(f"s_mov_b32 s{d+2}, 0x{nbytes:x}")
    o.append(f"s_mov_b32 s{d+3}, 0x00020000")
```

```python
class Ins:
    __slots__ = ('t', 'cost', 'cls', 'tag', 'needs')
    def __init__(self, t, cost=1, cls=None, tag=None, needs=()):
        self.t, self.cost, self.cls, self.tag, self.needs = t, cost, cls, tag, tuple(needs)

def V(t, cost=1, needs=()): return Ins(t, cost, needs=needs)
def LD(t, tag=None, needs=()): return Ins(t, 1, 'lgkm', tag, needs)
def VM(t, tag=None, needs=()): return Ins(t, 1, 'vm', tag, needs)
def W(*tags): return Ins(None, 1, needs=tags)

class Stream:
    def __init__(self):
        self.pre = []
        self.mf = []
        self.gap = []
    def n(self): return len(self.mf)
    def mfma(self, t, needs=()):
        self.mf.append(Ins(t, 0, needs=needs)); self.gap.append([]); return len(self.mf) - 1
    def used(self, g): return sum(i.cost for i in self.gap[g])
    def put(self, g, ins):
        if isinstance(ins, str): ins = V(ins)
        (self.pre if g < 0 else self.gap[g]).append(ins)
    def fill(self, queue, g0, g1=None, cap=2):
        if g1 is None: g1 = self.n() - 1
        g = g0
        for ins in queue:
            if isinstance(ins, int):
                g = min(g + ins, g1); continue
            if isinstance(ins, str): ins = V(ins)
            while g < g1 and self.used(g) + ins.cost > cap: g += 1
            self.gap[g].append(ins)
        return g
    def spread(self, groups, g0, g1):
        n = len(groups); e = g0
        for k, grp in enumerate(groups):
            g = max(g0 + (g1 - g0) * k // n, e)
            e = self.fill(grp, g, g1)
    def seq(self):
        o = list(self.pre)
        for m, gp in zip(self.mf, self.gap):
            o.append(m); o += gp
        return o
    def stats(self, cap=2):
        over = sum(max(0, self.used(g) - cap) for g in range(self.n() - 1))
        return dict(mfma=self.n(), units=sum(self.used(g) for g in range(self.n())), over=over, tail=self.used(self.n() - 1))

MAXC = {'lgkm': 15, 'vm': 63}
class Emitter:
    def __init__(self, split=0):
        self.cnt = {'lgkm': 0, 'vm': 0}; self.done = {'lgkm': 0, 'vm': 0}; self.pos = {}; self.o = []; self.auto = 0
        self.split = split; self.kind = []; self.vdone = set()
    def emit(self, seq):
        for ins in seq:
            if isinstance(ins, str): ins = V(ins)
            if ins.needs:
                w = {}
                for tag in ins.needs:
                    cls, idx = self.pos[tag]
                    if cls == 'vm' and self.split:
                        if idx not in self.vdone: w.setdefault('vs', []).append(idx)
                        continue
                    if idx >= self.done[cls]: w[cls] = max(w.get(cls, -1), idx)
                if w:
                    s = "s_waitcnt"
                    if 'vs' in w:
                        K = self.kind
                        yo = lambda i: sum(1 for j in range(i + 1, len(K)) if K[j] == K[i] or (K[i] and self.split == 1))
                        n = min(min(yo(i) for i in w['vs']), 63)
                        s += f" vmcnt({n})"
                        self.vdone |= {i for i in range(len(K)) if yo(i) >= n}
                    for cls in ('vm', 'lgkm'):
                        if cls in w:
                            n = min(self.cnt[cls] - 1 - w[cls], MAXC[cls])
                            s += f" {cls}cnt({n})"
                            self.done[cls] = self.cnt[cls] - n
                    self.o.append(s)
                    if ins.t is not None: self.auto += 1
            if ins.t is not None: self.o.append(ins.t)
            if ins.cls:
                if ins.tag is not None:
                    self.pos[ins.tag] = (ins.cls, self.cnt[ins.cls])
                self.cnt[ins.cls] += 1
                if ins.cls == 'vm': self.kind.append(ins.t.rstrip().endswith(' lds'))
        return self.o

def ring_build(st, frags, R, base, pair=True):
    F = lambda i: base + (i % R) * 4
    span = []; marks = {}
    for i, fr in enumerate(frags):
        a = st.n()
        if 'mark' in fr: marks[fr['mark']] = a
        for k, m in enumerate(fr['mf']):
            nd = [('f', i)] if fr['reads'] else []
            st.mfma(m(F(i)), needs=nd + list(fr.get('needs', ())))
        span.append((a, st.n() - 1))
    def issue(j, gaps):
        fr = frags[j]
        for x in fr.get('pre', ()): st.put(gaps[0], x)
        for k, r in enumerate(fr['reads']):
            st.put(gaps[min(k, len(gaps) - 1)], LD(r(F(j)), tag=('f', j) if k == len(fr['reads']) - 1 else None))
    for j in range(min(R - 1, len(frags))): issue(j, [-1])
    covered = -1
    def wait(i, g):
        nonlocal covered
        if i <= covered or i >= len(frags): return
        tags = [('f', i)] + list(frags[i].get('needs', ()))
        covered = i
        if pair and i + 1 < len(frags) and len(frags[i]['mf']) <= 2 and not frags[i + 1].get('needs') and not frags[i + 1].get('nopair'):
            tags.append(('f', i + 1)); covered = i + 1
        st.put(g, W(*tags))
    wait(0, -1)
    for i in range(len(frags)):
        a, b = span[i]
        j = i + R - 1
        if j < len(frags): issue(j, list(range(a, b + 1)))
        wait(i + 1, b)
    return marks, span
```

```python
import sys, os
sys.path.insert(0, os.path.dirname(os.path.abspath(__file__)))
import gen, buildn
ks = buildn.kernels({})
def emp(n): return dict(name=f"e{n}_kernel", body="s_nop 0", vgpr=64, accum=64, grid=8, block=64, lds=0)
def build(order, path):
    allk = ks + [k for k in order if k['name'].startswith('e')]
    s = gen.build_file(allk)
    lines = s.split("\n")
    la = [l for l in lines if l.startswith("; @launch")]
    rest = [l for l in lines if not l.startswith("; @launch")]
    idx = next(i for i, l in enumerate(lines) if l.startswith("; @launch"))
    byname = {l.split("kernel=")[1].split()[0]: l for l in la}
    new = rest[:idx] + [byname[k['name']] for k in order] + rest[idx:]
    open(path, "w").write("\n".join(new))
build(ks, "../ab/base.s")
build([emp(0)] + ks, "../ab/e_first.s")
build(ks + [emp(0)], "../ab/e_last.s")
build(ks[:1] + [emp(0)] + ks[1:], "../ab/e_mid.s")
build([emp(0), emp(1)] + ks, "../ab/e_first2.s")
```

```python
import re
VOP12 = ('v_exp_f32', 'v_add_f32', 'v_sub_f32', 'v_mul_f32', 'v_max_f32', 'v_min_f32', 'v_mov_b32', 'v_and_b32', 'v_or_b32', 'v_xor_b32',
         'v_add_u32', 'v_sub_u32', 'v_subrev_u32', 'v_lshlrev_b32', 'v_lshrrev_b32', 'v_rcp_f32', 'v_log_f32', 'v_sqrt_f32', 'v_ceil_f32', 'v_fmac_f32',
         'v_mul_u32_u24', 'v_max_u32', 'v_cndmask_b32', 'v_rsq_f32', 'v_cvt_f32_u32', 'v_readfirstlane_b32', 'v_permlane32_swap_b32', 'v_permlane16_swap_b32',
         'v_min_u32', 'v_subrev_f32', 'v_swap_b32', 'v_ashrrev_i32', 'v_cvt_u32_f32', 'v_not_b32')
NOPROMO = ('v_swap_b32', 'v_readfirstlane_b32', 'v_permlane32_swap_b32', 'v_permlane16_swap_b32', 'v_cndmask_b32', 'v_fmac_f32')
INL = re.compile(r'^(-?\d+|0x[0-9a-f]+|-?\d+\.\d+)$')
def is_lit(op):
    op = op.strip()
    if not INL.match(op): return bool(re.match(r'^[A-Za-z_.L][\w.]*\s*[-+]', op)) and not re.match(r'^(v|s|a)\d|^(v|s|a)\[|^vcc|^exec|^m0|^scc', op)
    if '.' in op: return float(op) not in (0.0, 0.5, 1.0, 2.0, 4.0, -0.5, -1.0, -2.0, -4.0)
    v = int(op, 0)
    if -16 <= v <= 64: return False
    return v not in (0x3f000000, 0x3f800000, 0x40000000, 0x40800000, 0xbf000000, 0xbf800000, 0xc0000000, 0xc0800000, 0xffffffff)
def info(line):
    t = line.split(';')[0].strip()
    p = t.split(None, 1); op = p[0]; ops = [x.strip() for x in re.split(r',(?![^\[]*\])', p[1])] if len(p) > 1 else []
    if op.endswith('_e64'): return 8, False
    base = op[:-4] if op.endswith('_e32') else op
    if op.startswith(('v_mfma', 'ds_', 'buffer_', 'global_', 's_load', 's_memtime', 's_memrealtime', 'v_accvgpr')): return 8, False
    if 'dpp' in op or 'row_' in t or 'quad_perm' in t: return 8, False
    if op.startswith('s_'):
        if op.startswith(('s_waitcnt', 's_nop', 's_barrier', 's_cbranch', 's_branch', 's_endpgm', 's_sleep', 's_setprio', 's_movk', 's_getreg', 's_setreg_b32', 's_cmpk', 's_addk')): return 4, False
        return (8 if any(is_lit(o) for o in ops) else 4), False
    if base.startswith(('v_cmp_', 'v_cmpx_')):
        if ops[0] != 'vcc' or not re.match(r'^v\d', ops[2]): return 8, False
        if is_lit(ops[1]): return 8, False
        return 4, not base.startswith('v_cmpx')
    if base in VOP12:
        if any(o.startswith(('-', '|')) and not INL.match(o) for o in ops) or 'op_sel' in t or 'clamp' in t or 'mul:' in t: return 8, False
        if len(ops) >= 3 and not re.match(r'^v\d', ops[2]): return 8, False
        if base == 'v_cndmask_b32' and len(ops) == 4 and ops[3] != 'vcc': return 8, False
        if is_lit(ops[1]): return 8, False
        return 4, base not in NOPROMO
    return 8, False
def run(text, wm=3, w8=1, shift=0):
    lines = text.split("\n")
    idx = []
    for i, l in enumerate(lines):
        t = l.split(';')[0].strip()
        if not t or t.endswith(':'): continue
        if t.startswith('.'): idx.append((i, None, None)); continue
        idx.append((i,) + info(l))
    INF = 1 << 60
    cost = [0, INF] if not shift else [INF, 0]; back = []
    for i, sz, pr in idx:
        if sz is None:
            b = 0 if cost[0] <= cost[1] else 1
            back.append({0: (b, 0)}); cost = [cost[b], INF]; continue
        n = [INF, INF]; bk = {}
        w = wm if lines[i].strip().startswith('v_mfma') else w8
        for p in (0, 1):
            if cost[p] >= INF: continue
            for e in ((0, 1) if pr else (0,)):
                s = 8 if e else sz
                c = cost[p] + (w if s == 8 and p else 0) + (0.01 if e else 0)
                q = p ^ (s == 4)
                if c < n[q]: n[q] = c; bk[q] = (p, e)
        cost = n; back.append(bk)
    p = 0 if cost[0] <= cost[1] else 1
    for (i, sz, pr), bk in zip(reversed(idx), reversed(back)):
        q, e = bk[p]
        if e:
            t = lines[i].split(None, 1); lines[i] = t[0].replace('_e32', '') + "_e64 " + t[1]
        p = q
    return "\n".join(lines)
def check(text, dis, name):
    d = dis.split("\n"); s = [i for i, l in enumerate(d) if f'<{name}>:' in l][0]
    got = []
    for l in d[s:]:
        m = re.search(r'^\s+(\S+).*//\s*([0-9A-F]+):\s*((?:[0-9A-F]{8}\s*)+)', l)
        if m: got.append((m.group(1), len(m.group(3).split()) * 4))
    k = 0; bad = 0
    for l in text.split("\n"):
        t = l.split(';')[0].strip()
        if not t or t.endswith(':'): continue
        if t.startswith('.'):
            while got[k][0] == 's_nop' : k += 1
            continue
        if info(l)[0] != got[k][1]: bad += 1; print("size mismatch", l, got[k])
        k += 1
    return bad
```

```python
from layout import *

L_W0 = 4096
LIST_B = 20480
L_WS = LIST_B + 1024
PADV = 0xffff
assert ((4096 + 3 * BN) // 4 + BN // 4 + 31) // 32 * 32 + 40 <= LIST_B // 16

VL = 1; VN16 = 2; VG = 3
CNT = 4; CP = 5
VOFF = 6
VCB = 7
VONE = 16; VFOUR = 17
MINV = [18, 19, 20, 21]
CB = 24
GS = 28
VS = 32; VT = 33; VT2 = 34; VCA = 35
VLB = 36
VFL = 37
VRD = 38
VST = 39
SELA = 40; SELB = 44
ACC = 48
IDXA = [52, 56]
AD = 60
PK = 64
PV = 66
VFILL = 68
VPAD = 72
IDX = 128
E = 192

S_B, S_W, S_PASS, S_LIM, S_NIT, S_IT, S_F, S_SO, S_T, S_512, S_EO = 40, 41, 42, 43, 44, 45, 46, 47, 48, 49, 50
SRD_C, SRD_E, SRD_G, SRD_H = 8, 12, 16, 20


def wave_reduce(A, v, t, op):
    for m in ("row_shr:1", "row_shr:2", "row_shr:4", "row_shr:8", "row_bcast:15 row_mask:0xa", "row_bcast:31 row_mask:0xc"):
        A("s_nop 1")
        A(f"{op}_dpp v{v}, v{v}, v{v} {m}" + (" row_mask:0xf" if "mask" not in m else "") + " bank_mask:0xf")


def gen_edge(o, opt):
    A = o.append
    timing = opt.get('timing')
    NEW = opt.get('new', 16); ECAP = 163840 // NEW; LPS = 64 // NEW; LS = LPS.bit_length() - 1; PER = 4096 // NEW
    nst = [0]
    def stamp():
        if timing:
            A("s_memtime s[98:99]")
            A("s_waitcnt lgkmcnt(0)")
            A(f"v_writelane_b32 v126, s98, {nst[0]}")
            nst[0] += 1
    A("LE_start:")
    A("s_cmp_ge_u32 s37, 32")
    A("s_cbranch_scc1 L2_end")
    A("v_lshrrev_b32 v1, 6, v0")
    A("s_sub_u32 s37, s37, 30")
    A("s_lshl_b32 s35, s35, 1")
    A(f"v_readfirstlane_b32 s{S_W}, v1")
    A("s_add_u32 s35, s35, s37")
    A("s_mul_i32 s35, s35, %d" % (3 if opt.get('light') else 4))
    A(f"s_add_u32 s{S_B}, s35, s{S_W}")
    if opt.get('light'):
        A(f"s_cmp_ge_u32 s{S_W}, 3")
        A("s_cbranch_scc1 L2_end")
    A("LE_common:")
    A(f"v_and_b32 v{VL}, 63, v0")
    if opt.get('wexit'):
        A(f"s_cmp_ge_u32 s{S_W}, {opt['wexit']}")
        A("s_cbranch_scc1 L2_end")
    A(f"s_mov_b32 s{S_PASS}, 0")
    A(f"s_mov_b32 s{S_512}, 512")
    A(f"v_lshrrev_b32 v{VT}, {LS}, v{VL}")
    A(f"v_and_b32 v{VT2}, {LPS-1}, v{VL}")
    A(f"v_mul_u32_u24 v{VOFF}, 0x{ECAP*4:x}, v{VT}")
    A(f"v_lshl_add_u32 v{VOFF}, v{VT2}, 4, v{VOFF}")
    A(f"v_lshlrev_b32 v{VT}, 2, v{VT}")
    A(f"s_mul_i32 s{S_EO}, s{S_B}, {NEW*ECAP*4}")
    A(f"s_mul_i32 s{S_T}, s{S_B}, {NEW*4}")
    A("s_waitcnt lgkmcnt(0)")
    if timing:
        A("s_mov_b32 s100, s62")
    srd_from(o, SRD_C, 4, ECNT_OFF, NBK * NEW * 4)
    srd_from(o, SRD_E, 4, EDGE_OFF, EDGE_BYTES)
    A(f"buffer_load_dword v{CNT}, v{VT}, {sr(SRD_C)}, s{S_T} offen")
    def eloads():
        for k in range(16):
            A(f"buffer_load_dwordx4 {vr(E + k*4)}, v{VOFF}, {sr(SRD_E)}, s{S_EO} offen offset:{k*16*LPS}")
    eloads()
    srd_from(o, SRD_G, 4, ME_OFF, ME_BYTES)
    srd_from(o, SRD_H, 4, HL_OFF, HL_BYTES)
    A(f"v_lshlrev_b32 v{CP}, 2, v{VT2}")
    A(f"v_and_b32 v{VN16}, 15, v{VL}")
    A(f"v_lshrrev_b32 v{VG}, 4, v{VL}")
    A(f"v_mov_b32 v{VONE}, 1")
    A(f"v_mov_b32 v{VFOUR}, 4")
    A(f"v_and_b32 v{VT}, 1, v{VN16}")
    A(f"v_lshlrev_b32 v{VT}, 4, v{VT}")
    A(f"v_lshlrev_b32 v{VT}, v{VT}, v{VONE}")
    A(f"v_mul_u32_u24 v{VT}, 0x3f80, v{VT}")
    A(f"v_lshrrev_b32 v{VT2}, 1, v{VN16}")
    for k in range(8):
        A(f"v_cmp_eq_u32 vcc, {k}, v{VT2}")
        A("s_nop 1")
        A(f"v_cndmask_b32 v{SELA + k}, 0, v{VT}, vcc")
    A(f"v_lshlrev_b32 v{VST}, 5, v{VN16}")
    A(f"v_lshl_add_u32 v{VST}, v{VG}, 3, v{VST}")
    A(f"v_lshlrev_b32 v{VN16}, 4, v{VN16}")
    A(f"s_mul_i32 s{S_T}, s{S_W}, {L_WS}")
    A(f"s_add_u32 s{S_T}, s{S_T}, {L_W0}")
    A(f"v_mov_b32 v{VLB}, s{S_T}")
    A(f"v_lshl_add_u32 v{VRD}, v{VG}, 2, v{VLB}")
    A(f"s_lshl_b32 s36, s{S_W}, 10")
    A(f"v_mov_b32 v{VCB}, s36")
    A(f"v_lshlrev_b32 v{VCA}, 4, v{VL}")
    A(f"v_add_u32 v{VFILL}, s{S_T}, v{VCA}")
    A(f"v_add_u32 v{VCA}, s36, v{VCA}")
    A(f"v_lshlrev_b32 v{VT}, 2, v{VL}")
    for k in range(4):
        A(f"v_mov_b32 v{VPAD+k}, 0x{PADV:x}")
    for k in range(4):
        A(f"v_cmp_gt_u32 vcc, {BN - k}, v{VT}")
        A(f"v_mov_b32 v{ACC+k}, 0")
        A("s_nop 0")
        A(f"v_cndmask_b32 v{MINV[k]}, 0, v{VONE}, vcc")
    A("LE_pass:")
    A(f"ds_write_b128 v{VCA}, {vr(ACC)}")
    for k in range(LIST_B // 1024):
        A(f"ds_write_b128 v{VFILL}, {vr(VPAD)} offset:{k*1024}")
    A(f"v_lshl_add_u32 v{VS}, v{VL}, 2, v{VLB}")
    A(f"ds_write_b32 v{VS}, v{ACC} offset:{LIST_B}")
    stamp()
    A("s_waitcnt vmcnt(16)")
    stamp()
    A(f"v_sub_u32 v{VS}, v{CNT}, v{CP}")
    def slots(lab, fn, wait=False):
        for k in range(16):
            if wait: A(f"s_waitcnt vmcnt({15-k})")
            for j in range(4):
                A(f"v_cmpx_lt_i32 vcc, {4*LPS*k+j}, v{VS}")
                if j == 0: A(f"s_cbranch_execz {lab}")
                fn(4 * k + j)
        A(f"{lab}:")
        A("s_mov_b64 exec, -1")
    def f_count(s):
        A(f"v_mad_u32_u16 v{IDX+s}, v{E+s}, 1, v{VCB} op_sel:[1,0,0,0]")
        A(f"ds_add_u32 v{IDX+s}, v{VONE}")
    slots("LE_c", f_count, True)
    stamp()
    A(f"ds_read_b128 {vr(CB)}, v{VCA}")
    A("s_waitcnt lgkmcnt(0)")
    for k in range(4):
        A(f"v_add_u32 v{CB+k}, 3, v{CB+k}")
        A(f"v_lshrrev_b32 v{CB+k}, 2, v{CB+k}")
        A(f"v_max_u32 v{CB+k}, v{CB+k}, v{MINV[k]}")
    A(f"v_add_u32 v{VT}, v{CB}, v{CB+1}")
    A(f"v_add3_u32 v{VT}, v{VT}, v{CB+2}, v{CB+3}")
    A(f"v_mov_b32 v{PK}, v{VT}")
    wave_reduce(A, PK, None, "v_add_u32")
    A("s_nop 1")
    A(f"v_readlane_b32 s{S_NIT}, v{PK}, 63")
    A(f"v_sub_u32 v{GS}, v{PK}, v{VT}")
    for k in range(1, 4):
        A(f"v_add_u32 v{GS+k}, v{GS+k-1}, v{CB+k-1}")
    for k in range(4):
        A(f"v_add3_u32 v{VT}, v{GS+k}, v{CB+k}, -1")
        A(f"v_lshlrev_b32 v{VT2}, v{VT}, v{MINV[k]}")
        A(f"v_lshrrev_b32 v{VT}, 5, v{VT}")
        A(f"v_lshl_add_u32 v{VT}, v{VT}, 2, v{VLB}")
        A(f"ds_or_b32 v{VT}, v{VT2} offset:{LIST_B}")
        A(f"v_lshl_add_u32 v{GS+k}, v{GS+k}, 4, v{VLB}")
    A(f"ds_write_b128 v{VCA}, {vr(GS)}")
    A(f"s_add_u32 s{S_NIT}, s{S_NIT}, 31")
    A(f"s_lshr_b32 s{S_NIT}, s{S_NIT}, 5")
    stamp()
    slots("LE_p", lambda s: A(f"ds_add_rtn_u32 v{IDX+s}, v{IDX+s}, v{VFOUR}"))
    A(f"v_lshl_add_u32 v{VT}, v{VL}, 2, v{VLB}")
    A(f"ds_read_b32 v{VFL}, v{VT} offset:{LIST_B}")
    A("s_waitcnt lgkmcnt(0)")
    slots("LE_w", lambda s: A(f"ds_write_b32 v{IDX+s}, v{E+s}"))
    stamp()
    A(f"v_mov_b32 v{VT2}, v{VRD}")
    NBT = 8
    def idx_read(b, par):
        i = IDXA[par]
        A(f"ds_read2_b32 v[{i}:{i+1}], v{VT2} offset0:{b*16} offset1:{b*16+4}")
        A(f"ds_read2_b32 v[{i+2}:{i+3}], v{VT2} offset0:{b*16+8} offset1:{b*16+12}")
    gl = opt.get('gl', '')
    def issue(b):
        par = b % 2
        A("s_waitcnt lgkmcnt(0)")
        idx_read(b + 1, 1 - par)
        for i in range(4):
            A(f"v_mad_u32_u16 v{AD+i}, v{IDXA[par]+i}, s{S_512}, v{VN16}")
        for i in range(4):
            r = (b * 4 + i) * 8
            A(f"buffer_load_dwordx4 {ar(r)}, v{AD+i}, {sr(SRD_G)}, 0 offen{gl}")
            A(f"buffer_load_dwordx4 {ar(r+4)}, v{AD+i}, {sr(SRD_G)}, 0 offen offset:256{gl}")
    idx_read(0, 0)
    for b in range(NBT):
        issue(b)
    A(f"v_add_u32 v{VT2}, {NBT*64}, v{VT2}")
    A(f"s_mov_b32 s{S_IT}, 0")
    A(f"s_mul_i32 s{S_SO}, s{S_B}, {BN*512}")
    A("LE_loop:")
    A(f"v_readlane_b32 s{S_F}, v{VFL}, s{S_IT}")
    A(f"s_add_u32 s{S_IT}, s{S_IT}, 1")
    for b in range(NBT):
        A(f"s_waitcnt vmcnt({(NBT-1)*8})")
        for i in range(4):
            g = b * 4 + i
            r = g * 8
            A(f"v_mfma_f32_16x16x32_bf16 {vr(ACC)}, {ar(r)}, {vr(SELA)}, {vr(ACC)}")
            A(f"v_mfma_f32_16x16x32_bf16 {vr(ACC)}, {ar(r+4)}, {vr(SELB)}, {vr(ACC)}")
            A(f"s_bitcmp1_b32 s{S_F}, {g}")
            A(f"s_cbranch_scc0 LE_nf{g}")
            A(f"s_cmp_eq_u32 s{S_PASS}, 0")
            A(f"s_cbranch_scc1 LE_fl{g}")
            A(f"buffer_load_dwordx2 v[{PV}:{PV+1}], v{VST}, {sr(SRD_H)}, s{S_SO} offen sc1")
            A("s_waitcnt vmcnt(0)")
            for k in range(2):
                A(f"v_lshlrev_b32 v{PK}, 16, v{PV+k}")
                A(f"v_and_b32 v{PK+1}, 0xffff0000, v{PV+k}")
                A(f"v_add_f32 v{ACC+2*k}, v{ACC+2*k}, v{PK}")
                A(f"v_add_f32 v{ACC+2*k+1}, v{ACC+2*k+1}, v{PK+1}")
            A(f"LE_fl{g}:")
            A("s_nop 3")
            A(f"v_cvt_pk_bf16_f32 v{PK}, v{ACC}, v{ACC+1}")
            A(f"v_cvt_pk_bf16_f32 v{PK+1}, v{ACC+2}, v{ACC+3}")
            for k in range(4):
                A(f"v_mov_b32 v{ACC+k}, 0")
            A(f"buffer_store_dwordx2 v[{PK}:{PK+1}], v{VST}, {sr(SRD_H)}, s{S_SO} offen{opt.get('ste', '')}")
            A(f"s_add_u32 s{S_SO}, s{S_SO}, 512")
            A(f"LE_nf{g}:")
        issue(b)
    A(f"v_add_u32 v{VT2}, {NBT*64}, v{VT2}")
    A(f"s_cmp_lt_u32 s{S_IT}, s{S_NIT}")
    A("s_cbranch_scc1 LE_loop")
    stamp()
    A(f"s_add_u32 s{S_PASS}, s{S_PASS}, 1")
    A(f"s_mul_i32 s{S_LIM}, s{S_PASS}, {PER}")
    A(f"v_cmp_lt_u32 vcc, s{S_LIM}, v{CNT}")
    A("s_cbranch_vccz LE_done")
    A(f"s_cmp_ge_u32 s{S_PASS}, {ECAP // PER}")
    A("s_cbranch_scc1 LE_done")
    A("s_waitcnt vmcnt(0) lgkmcnt(0)")
    A(f"s_add_u32 s{S_EO}, s{S_EO}, {PER*4}")
    A(f"v_add_u32 v{CP}, 0x{PER:x}, v{CP}")
    eloads()
    A("s_branch LE_pass")
    A("LE_done:")
    if opt.get('fuse'):
        import gen_f
        srd_from(o, 24, 4, gen_f.FLAG_OFF, gen_f.NFLAG * gen_f.fstr(opt))
        A(f"s_add_u32 s{S_T}, s{S_B}, {gen_f.HLF0}")
        A(f"s_mul_i32 s{S_T}, s{S_T}, {gen_f.fstr(opt)}")
        A("s_waitcnt vmcnt(0)")
        gen_f.publish(A, 24, S_T, VT, opt)
    if opt.get('tpf'):
        A("s_getpc_b64 s[64:65]")
        A("LE_pc:")
        A("s_sub_u32 s64, s64, LE_pc-L2_tail_0")
        A("s_subb_u32 s65, s65, 0")
        A("s_mov_b32 s66, L2_rare_site0-L2_tail_0")
        A("s_mov_b32 s67, 0x00020000")
        A("s_mov_b64 exec, -1")
        A(f"v_lshlrev_b32 v1, 7, v{VL}")
        for k in range(3):
            A(f"s_movk_i32 s68, 0x{k*8192:x}")
            A(f"buffer_load_dword v{2+k}, v1, s[64:67], s68 offen")
    if timing:
        A("s_waitcnt vmcnt(0)")
        stamp()
        A(f"v_subrev_u32 v0, s100, v126")
        A("s_memrealtime s[98:99]")
        A("s_waitcnt lgkmcnt(0)")
        A("v_writelane_b32 v0, s98, 7")
        A("s_add_u32 s60, s4, 0x%x\ns_addc_u32 s61, s5, 0" % TIM_OFF)
        A("s_mov_b32 s62, 0x200000\ns_mov_b32 s63, 0x00020000")
        A(f"s_lshl_b32 s35, s{S_B}, 8")
        A(f"s_add_u32 s35, s35, 0x100000")
        A(f"v_lshlrev_b32 v1, 2, v{VL}")
        A(f"buffer_store_dword v0, v1, s[60:63], s35 offen")
    A("s_branch L2_end")
```

```python
from layout import *
from sched import *
import hazard

MF32 = "v_mfma_f32_16x16x32_bf16"
FLAG_OFF = 124 << 20
NFLAG = 2048
HLF0 = 1280
OOB = 0x70000000
SF = 16
SX, SW, SP, SM, SD, SO = 8, 8, 20, 24, 12, 44
P_X, P_DG, P_OUT = 52, 54, 56
S_XO, S_XO2, S_PO, S_PO2, S_MLO, S_FO, S_HF0, S_HF1, S_G0, S_G1 = 6, 7, 29, 51, 58, 59, 94, 95, 96, 97
S_HB, S_X1 = 98, 99
S_WAVE, S_SPB = 34, 50
VLANE16 = 248
VH0, VH1, VHF0, VHF1 = 44, 45, 46, 47
VDGR, VPOLL, VE0, VE1 = 76, 77, 78, 79
ACC, BF, ZA, WT, T, XR = 160, 208, 128, 144, 232, 152
VW0, VW1, VML, VBH0, VBH1, VT0, VT1, VTR, VWW, VWR, VZ, VZR, DG, VPF = 240, 241, 242, 243, 244, 245, 246, 247, 249, 250, 251, 252, 253, 156
DIAG = 0
POOL = [r for r in range(24, 128, 8) if r not in (40, 72, 104)]
VMK, VIL = 157, 40
S_WO = 32
WO = [32, 33, 35, 36, 37, 38, 39, 48]
S_TMP = [49, 60 - 60 + 3]
S_SPIN = 100


def fstr(opt): return opt.get('fstr', 128)


def prologue(A, o, opt):
    FS = fstr(opt)
    srd_from(o, SF, 4, FLAG_OFF, NFLAG * FS)
    A("s_mul_i32 s6, s37, 3")
    A("s_cmp_eq_u32 s37, 5")
    A("s_cselect_b32 s6, 14, s6")
    A("s_lshl_b32 s7, s38, 4")
    A("s_add_u32 s3, s6, s7")
    A(f"s_mul_i32 s7, s38, 6")
    A("s_add_u32 s7, s7, s37")
    A(f"s_cmp_eq_u32 s7, {38 * 6 + 5}")
    A("s_cselect_b32 s7, 0, s37")
    A("s_cmp_lt_u32 s7, 4")
    A(f"s_mov_b32 s{S_XO2}, 0x{OOB:x}")
    A(f"s_cselect_b32 s{S_XO2}, 0x4000, s{S_XO2}")
    A(f"s_cselect_b32 s{S_G1}, 2, 1")
    A(f"s_add_u32 s{S_G1}, s{S_G1}, s3")
    A(f"s_lshl_b32 s{S_PO}, s3, 13")
    A(f"s_lshl_b32 s{S_MLO}, s3, 10")
    A(f"s_lshl_b32 s{S_XO}, s{S_WAVE}, 7")
    A(f"s_add_u32 s{S_XO}, s{S_XO}, s{S_PO}")
    A(f"s_lshl_b32 s{S_FO}, s{S_WAVE}, 11")
    A(f"s_add_u32 s{S_PO}, s{S_PO}, s{S_FO}")
    A(f"s_add_u32 s{S_PO2}, s{S_PO}, s{S_XO2}")
    A(f"s_add_u32 s{S_XO2}, s{S_XO}, s{S_XO2}")
    A(f"s_add_u32 s{S_X1}, s{S_XO}, 0x2000")
    A(f"s_lshl_b32 s{S_HF0}, s3, 4")
    A(f"s_lshl_b32 s{S_HF1}, s{S_G1}, 4")
    A(f"s_add_u32 s{S_HF1}, s{S_HF1}, 15")
    for r in (S_HF0, S_HF1):
        A(f"s_mul_i32 s{r}, s{r}, {BMAGIC}")
        A(f"s_lshr_b32 s{r}, s{r}, {BSHIFT}")
        A(f"s_add_u32 s{r}, s{r}, {HLF0}")
        A(f"s_mul_i32 s{r}, s{r}, {FS}")
    A(f"s_lshr_b32 s{S_G0}, s3, 2")
    A(f"s_lshr_b32 s{S_G1}, s{S_G1}, 2")
    A(f"s_sub_u32 s{S_G1}, s{S_G1}, s{S_G0}")
    A(f"s_mul_i32 s{S_G0}, s{S_G0}, {8 * FS}")
    A(f"s_mul_i32 s{S_G1}, s{S_G1}, {8 * FS}")
    A(f"s_lshl_b32 s{S_FO}, s38, 2")
    A(f"s_add_u32 s{S_FO}, s{S_FO}, s{S_WAVE}")
    A(f"s_lshl_b32 s{S_FO}, s{S_FO}, 3")
    A(f"s_add_u32 s{S_FO}, s{S_FO}, s37")
    A(f"s_mul_i32 s{S_FO}, s{S_FO}, {FS}")


def publish(A, srd, soff, vt, opt):
    A(f"v_mov_b32 v{vt}, 1")
    A("s_mov_b64 exec, 1")
    A(f"buffer_store_dword v{vt}, off, {sr(srd)}, s{soff} sc1")
    A("s_mov_b64 exec, -1")


def xo(rb): return [S_XO, S_X1, S_XO2][rb]


def early(p, opt):
    q = []
    A = lambda t, c=1: q.append((c, t))
    FS = fstr(opt)
    L = VLANE16
    if opt.get('cpf2'):
        A(f"s_getpc_b64 s[8:9]\nLF_pc{p}:")
        A(f"s_add_u32 s8, s8, L2_F-LF_pc{p}")
        A("s_addc_u32 s9, s9, 0")
        A("s_mov_b32 s10, L2_Fend-L2_F")
        A("s_mov_b32 s11, 0x00020000")
        A(f"v_lshlrev_b32 v{VE0}, 2, v{L}")
        A(f"s_lshl_b32 s3, s{S_WAVE}, 12")
        A(f"buffer_load_dword v{VTD + 2}, v{VE0}, s[8:11], s3 offen")
    A(f"buffer_load_dword v{VHF0}, off, {sr(SF)}, s{S_HF0} sc1")
    A(f"buffer_load_dword v{VHF1}, off, {sr(SF)}, s{S_HF1} sc1 ; HLFLAG")
    A(f"v_lshrrev_b32 v{VE0}, 8, v{L}")
    A(f"v_lshlrev_b32 v{VE0}, 4, v{VE0}")
    A(f"v_xor_b32 v{VE0}, v{VE0}, v{L}")
    A(f"v_and_b32 v{VE0}, 0x70, v{VE0}")
    A(f"v_lshrrev_b32 v{VH0}, 7, v{L}")
    A(f"v_lshl_or_b32 v{VH0}, v{VH0}, 9, v{VE0}")
    A(f"v_xor_b32 v{VH1}, 0x1040, v{VH0}")
    o = []
    srd_from(o, SX, P_X, 0, N * 512); srd_from(o, SD, P_DG, 0, N * 2)
    for t in o: A(t)
    A(f"v_bfe_u32 v{VE0}, v{L}, 4, 3")
    A(f"v_min_u32 v{VE0}, 5, v{VE0}")
    A(f"v_mul_u32_u24 v{VE0}, {FS}, v{VE0}" if FS <= 64 else f"v_lshlrev_b32 v{VE0}, {FS.bit_length()-1}, v{VE0}")
    A(f"v_bfe_u32 v{VE1}, v{L}, 7, 1")
    A(f"v_mul_u32_u24 v{VE1}, s{S_G1}, v{VE1}")
    A(f"v_add3_u32 v{VPOLL}, v{VE1}, s{S_G0}, v{VE0}")
    if opt.get('tch'):
        A(f"v_bfe_u32 v{VE0}, v{L}, 7, 2")
        A(f"v_bfe_u32 v{VE1}, v{L}, 4, 3")
        A(f"v_lshlrev_b32 v{VE1}, 7, v{VE1}")
        A(f"v_lshl_or_b32 v{VE1}, v{VE0}, 13, v{VE1}")
        A(f"v_lshrrev_b32 v{VE0}, 9, v{L}")
        A(f"v_lshl_or_b32 v{VTA}, v{VE0}, 10, v{VE1}")
    A(f"v_lshrrev_b32 v{VDGR}, 3, v{L}")
    A(f"s_lshr_b32 s3, s{S_MLO}, 5")
    A(f"s_mov_b32 exec_hi, 0xffff\nbuffer_load_ushort v{VDGR}, v{VDGR}, {sr(SD)}, s3 offen\ns_mov_b32 exec_hi, -1", 3)
    A(f"s_mov_b32 m0, s{S_SPB}", 2)
    for k in range(6):
        A(f"buffer_load_dwordx4 v{VH0 + k % 2}, {sr(SX)}, s{xo(k // 2)} offen lds" + (f"\ns_add_u32 m0, s{S_SPB}, {(k + 1) * 1024}" if k < 5 else ""), 2)
    if opt.get('fwe', 1):
        for t in wsetup(): A(t)
    return q


SHE = 12
def tail_entry(p):
    return [f"s_mul_i32 s3, s{S_WAVE}, 0xc00", f"s_add_u32 s{S_HB}, s30, 0x{(3 - p) * 0x4000:x}", f"s_and_b32 s{S_HB}, s{S_HB}, 0x1ffff",
            f"s_sub_u32 s{S_HB}, s{S_HB}, s3"]


def early_hl(p, opt):
    q = []
    A = lambda t, c=1: q.append((c, t))
    o = []; srd_from(o, SHE, 4, HL_OFF, HL_BYTES)
    for t in o: A(t)
    A("WAIT HLFLAG")
    A(f"v_and_b32 v{VHF0}, v{VHF0}, v{VHF1}")
    A(f"s_nop 0\nv_readfirstlane_b32 s3, v{VHF0}", 2)
    A(f"s_cmp_eq_u32 s3, 0\ns_cbranch_scc1 LF_hl_{p}\nLF_hlret_{p}:", 2)
    A(f"s_mov_b32 m0, s{S_HB}", 2)
    for k in range(6):
        A(f"buffer_load_dwordx4 v{VH0 + k % 2}, {sr(SHE)}, s{xo(k // 2)} offen sc1 lds" + (f"\ns_add_u32 m0, s{S_HB}, {(k + 1) * 4096}" if k < 5 else ""), 2)
    return q


def fix_waithl(lines):
    lines = [x for l in lines for x in l.split("\n")]
    for b, l in enumerate(lines):
        if l.startswith("WAIT "):
            a = max(i for i, x in enumerate(lines) if x.endswith("; " + l[5:]))
            n = sum(1 for x in lines[a + 1:b] if x.startswith("buffer_"))
            assert a < b and n < 64, (l, a, b, n)
            lines[b] = f"s_waitcnt vmcnt({n})"
    return lines


VTA, VTD = 108, 109
def touch(t, opt):
    return f"buffer_load_dword v{VTD + (t // 2) % 3}, v{VTA}, s[20:23], s{40 if t < 4 else 44} offen offset:{(t % 4) * 1024}{opt.get('tld', '')}"


def hl_spin(p):
    o = [f"LF_hl_{p}:", f"s_mov_b32 s{S_SPIN}, 0x10000", f"LF_hl2_{p}:",
         f"buffer_load_dword v{VHF0}, off, {sr(SF)}, s{S_HF0} sc1", f"buffer_load_dword v{VHF1}, off, {sr(SF)}, s{S_HF1} sc1",
         f"s_sub_u32 s{S_SPIN}, s{S_SPIN}, 1", f"s_cbranch_scc1 LF_hlret_{p}",
         "s_waitcnt vmcnt(0)", f"v_and_b32 v{VHF0}, v{VHF0}, v{VHF1}", "s_nop 0", f"v_readfirstlane_b32 s3, v{VHF0}", "s_cmp_eq_u32 s3, 0",
         f"s_cbranch_scc1 LF_hl2_{p}", f"s_branch LF_hlret_{p}"]
    return o


R = lambda s, n: s * n
ORDERS = {
    'g1': R("a", 12) + "F" + R("a", 20) + "P|" + "mmm" + R("0bb", 6) + "|" + R("1bbb", 6) + "|" + "2b2b2|222|",
    'g2': R("a", 12) + "F" + R("a", 20) + R("b", 8) + "P|" + "mmm" + R("0bb", 6) + "|" + R("1bb", 6) + "|" + "222|222|",
    'g3': R("a", 12) + "F" + R("a", 20) + R("b", 32) + "P|" + "mmm" + R("0", 6) + "|" + R("1", 6) + "|" + "222|222|",
    'g4': R("b", 12) + "F" + R("b", 20) + "P|" + "mmm" + R("0aa", 6) + "|" + R("1aaa", 6) + "|" + "2a2a2|222|",
    'g5': R("a", 12) + "F" + R("a", 20) + "P|" + "mmm" + R("0", 6) + "|" + R("1bbbb", 6) + "|" + "2bbbb2bbbb2|222|",
}


def final(opt, stamp=None):
    stamp = stamp or (lambda A: None)
    q = []
    A = lambda t, **k: q.append(V(t, **k))
    L = VLANE16
    na = opt.get('fna', 0)
    nb = max(0, na - 32); na = min(na, 32)
    if not opt.get('fwe', 1):
        for t in wsetup(): A(t)
    late = []
    B = lambda t: late.append(V(t))
    o = []
    srd_from(o, SP, 4, OP_OFF, (NSPLIT - 1) * OP_STRIDE + QF_BYTES)
    srd_from(o, SO, P_OUT, 0, N * 512)
    late2 = [V(t) for t in o]
    if opt.get('foob'): late2 += [V(f"s_mov_b32 s{S_PO}, 0x{OOB:x}"), V(f"s_mov_b32 s{S_PO2}, 0x{OOB:x}")]
    B(f"v_lshlrev_b32 v{VML}, 2, v{L}")
    B(f"v_bfe_u32 v{T}, v{L}, 5, 3")
    B(f"v_lshrrev_b32 v{T+2}, 8, v{L}")
    B(f"v_xor_b32 v{T}, v{T}, v{T+2}")
    B(f"v_bfe_u32 v{T+1}, v{L}, 4, 3")
    B(f"v_lshlrev_b32 v{T+1}, 7, v{T+1}")
    B(f"v_lshl_or_b32 v{T}, v{T}, 4, v{T+1}")
    B(f"v_bfe_u32 v{T+1}, v{L}, 7, 1")
    B(f"s_lshl_b32 s3, s{S_WAVE}, 10")
    B(f"s_sub_u32 s3, s{S_HB}, s3")
    B(f"v_lshl_add_u32 v{VBH0}, v{T+1}, 12, v{T}")
    B(f"v_add_u32 v{VBH0}, s3, v{VBH0}")
    B(f"v_xor_b32 v{VBH1}, 64, v{VBH0}")
    B(f"v_lshl_add_u32 v{VT0}, v{T+1}, 10, v{T}")
    B(f"v_add_u32 v{VT0}, s{S_SPB}, v{VT0}")
    B(f"v_xor_b32 v{VT1}, 64, v{VT0}")
    B(f"v_add_u32 v{VTR}, s{S_SPB}, v{L}")
    B(f"s_add_u32 s3, s3, 0x8000")
    B(f"s_and_b32 s3, s3, 0x1ffff")
    B(f"v_add_u32 v{VZR}, s3, v{L}")
    B(f"s_lshl_b32 s3, s{S_WAVE}, 11")
    B(f"v_add_u32 v{VZ}, s3, v{VZR}")
    B(f"s_add_u32 s3, s{S_SPB}, 6144")
    B(f"v_lshl_add_u32 v{VWW}, v{L}, 1, s3")
    B(f"v_and_b32 v{T}, 0xf0, v{L}")
    B(f"v_lshl_add_u32 v{VWR}, v{T}, 1, s3")
    B(f"v_lshrrev_b32 v{T}, 4, v{T}")
    B(f"v_lshlrev_b32 v{T+2}, 2, v{T+2}")
    B(f"v_sub_u32 v{T}, v{T}, v{T+2}")
    B(f"v_and_b32 v{T+1}, 1, v{T}")
    B(f"v_lshlrev_b32 v{T+1}, 4, v{T+1}")
    B(f"v_mov_b32 v{T+2}, 0xffff")
    B(f"v_lshlrev_b32 v{T+1}, v{T+1}, v{T+2}")
    B(f"v_lshrrev_b32 v{T}, 1, v{T}")
    for k in range(2):
        B(f"v_cmp_eq_u32 vcc, {k}, v{T}")
        B(f"v_cndmask_b32 v{VMK+k}, 0, v{T+1}, vcc")
    B(f"s_mov_b32 s{S_SPIN}, 0x10000")
    B(f"s_mov_b32 s101, 0xffff0000")
    S_MASK = 101
    order = opt.get('forder', 'g1'); order = ORDERS.get(order, order)
    order = order.replace('a', '', na).replace('b', '', nb)
    D = opt.get('fd', 12)
    Lq = []; cnt = {'a': na, 'b': nb}; bar = set()
    for ch in order:
        if ch == '|': bar.add(len(Lq) - 1); continue
        Lq.append((ch, cnt.get(ch, 0))); cnt[ch] = cnt.get(ch, 0) + 1
    assert cnt == dict(F=1, P=1, m=3, a=32, b=32, **{'0': 6, '1': 6, '2': 6}), cnt
    wgt = lambda e: {'F': 0, 'P': 0}.get(e[0], 2 if e[0] in '012' else 1)
    free = list(POOL); reg = {}; low = [99]
    MLR = ZA
    ld = opt.get('fld', ' sc1')
    def issue(z, e):
        Z = lambda t: z.append(V(t))
        ch, k = e
        if ch == 'F':
            z.append(W('ost')); stamp(Z)
            Z(f"v_mov_b32 v{VPF}, 1"); Z("s_mov_b64 exec, 1")
            z.append(VM(f"buffer_store_dword v{VPF}, off, {sr(SF)}, s{S_FO} sc1", tag=e)); Z("s_mov_b64 exec, -1")
            z.extend(late2)
        elif ch == 'P':
            z.append(('POLL',))
        elif ch == 'm':
            if k == 0: Z("s_mov_b32 exec_hi, 0xffff")
            z.append(VM(f"buffer_load_dwordx4 {vr(MLR + 4*k)}, v{VML}, {sr(SM)}, s{S_MLO} offen offset:{16*k} sc1", tag=e))
            if k == 2: Z("s_mov_b32 exec_hi, -1")
        elif ch in '012':
            r = reg[e] = free.pop(0); low[0] = min(low[0], len(free))
            rb = int(ch); j, sp = k // 3, k % 3
            for u in range(2):
                so = S_TMP[u]
                Z(f"s_add_u32 s{so}, s{S_PO2 if rb == 2 else S_PO}, 0x{(2*sp+u) * OP_STRIDE + (8192 if rb == 1 else 0):x}")
                z.append(VM(f"buffer_load_dwordx4 {vr(r + 4*u)}, v{L}, {sr(SP)}, s{so} offen offset:{j*1024}{ld}", tag=e if u else None))
        else:
            z.append(VM(wload('ab'.index(ch), k), tag=e))
    tn = [0]
    def tmp():
        tn[0] += 1; return T + (tn[0] % 4) * 2
    diag = lambda rb, sp: DIAG + (rb % 2) * 12 + sp * 4
    def wt(z, rb):
        z.append(LD(f"ds_read_b128 {vr(WT)}, v{VWR} offset:{rb*512}"))
        z.append(LD(f"ds_read_b128 {vr(WT+4)}, v{VWR} offset:{rb*512+16}", tag=('wt', rb)))
    def dbuild(z, rb):
        for s in range(NSPLIT):
            for k in range(2): z.append(V(f"v_and_b32 v{diag(rb, s // 2) + 2*(s % 2) + k}, v{WT+s}, v{VMK+k}", needs=[('wt', rb)]))
        z.append(V(f"v_mov_b32 v{VIL+rb}, v{WT+6}"))
    def dg_setup(z):
        z.append(V(f"v_lshlrev_b32 v{XR}, 16, v{VDGR}"))
        z.append(LD(f"ds_write_b32 v{VWW}, v{XR} offset:28"))
        for rb in range(3): z.append(LD(f"ds_read_b32 v{DG+rb}, v{VWR} offset:{rb*512+28}", tag='dg'))
    def weights(z):
        Z = lambda t: z.append(V(t))
        m = lambda s: MLR + 2 * s
        l = lambda s: m(s) + 1
        Z(f"v_max3_f32 v{T}, v{m(0)}, v{m(1)}, v{m(2)}")
        Z(f"v_max3_f32 v{T+1}, v{m(3)}, v{m(4)}, v{m(5)}")
        Z(f"v_max_f32 v{T}, v{T}, v{T+1}")
        Z(f"v_subrev_f32 v{T}, 0x42fe0000, v{T}")
        for s in range(NSPLIT): Z(f"v_sub_f32 v{m(s)}, v{m(s)}, v{T}")
        for s in range(NSPLIT): Z(f"v_cvt_u32_f32 v{m(s)}, v{m(s)}")
        for s in range(NSPLIT): Z(f"v_lshlrev_b32 v{T+2+s}, 23, v{m(s)}")
        Z(f"v_mul_f32 v{T}, v{T+2}, v{l(0)}")
        for s in range(1, NSPLIT): Z(f"v_fmac_f32 v{T}, v{T+2+s}, v{l(s)}")
        Z(f"v_rcp_f32 v{WT+6}, v{T}")
        for s in range(NSPLIT): Z(f"v_mul_u32_u24 v{WT+s}, 0x800080, v{m(s)}")
        z.append(LD(f"ds_write_b128 v{VWW}, {vr(WT)}"))
        z.append(LD(f"ds_write_b96 v{VWW}, {vr(WT+4, 3)} offset:16"))
        wt(z, 0); dbuild(z, 0); wt(z, 1)
    zw = set(); zok = set(); hok = [False]
    acc = lambda rb, j, b: ACC + ((rb * 2 + j) * 2 + b) * 4
    post = []
    def cstep(vq, ms, rb, k):
        j, sp = k // 3, k % 3
        r = reg[(str(rb), k)]; zd = ZA + 8 * j
        pre = [V(f"v_swap_b32 v{r+2}, v{r+4}"), V(f"v_swap_b32 v{r+3}, v{r+5}")]
        for h in range(2):
            ms.append(Ins(f"{MF32} {vr(zd+4*h)}, {vr(r+4*h)}, {vr(diag(rb, sp))}, {vr(zd+4*h) if sp else 0}", 0))
        free.append(r)
        if sp == 2:
            z = [V(f"v_mul_f32 v{zd+c}, v{zd+c}, v{VIL+rb}") for c in range(8)]
            z += [V(f"v_cvt_pk_bf16_f32 v{zd+c}, v{zd+2*c}, v{zd+2*c+1}") for c in range(4)]
            z.append(LD(f"ds_write_b128 v{VZ}, {vr(zd)} offset:{rb*8192 + j*1024}", tag='z'))
            post.append(((rb, j), z))
        if k == 0 and rb < 2:
            dbuild(vq, rb + 1)
            if rb == 0: wt(vq, 2)
        return pre
    nxt = {(m, rb): list(range(8)) for m in range(2) for rb in range(3)}
    groups = []; arrived = {('a', k) for k in range(na)} | {('b', k) for k in range(nb)}; barpos = [0]
    def fma_x(z, rb):
        for j in range(2):
            z.append(LD(f"ds_read_b128 {vr(XR)}, v{VT0+j} offset:{rb*2048}", tag='xr'))
            for c in range(4):
                t = tmp(); a = acc(rb, j, 0) + 2 * c
                z.append(V(f"v_lshlrev_b32 v{t}, 16, v{XR+c}", needs=['xr', 'dg']))
                z.append(V(f"v_and_b32 v{t+1}, s{S_MASK}, v{XR+c}"))
                z.append(V(f"v_fma_f32 v{a}, v{a}, v{DG+rb}, v{t}"))
                z.append(V(f"v_fma_f32 v{a+1}, v{a+1}, v{DG+rb}, v{t+1}"))
    def ep(z, rb):
        for j in range(2):
            a = acc(rb, j, 0)
            for c in range(4): z.append(V(f"v_cvt_pk_bf16_f32 v{a+c}, v{a+2*c}, v{a+2*c+1}"))
            z.append(LD(f"ds_write_b128 v{VT0+j}, {vr(a)} offset:{rb*2048}"))
        for u in range(2): z.append(LD(f"ds_read_b128 {vr(acc(rb, u, 1))}, v{VTR} offset:{rb*2048 + u*1024}", tag=('y', rb, u)))
        for u in range(2):
            z.append(VM(f"buffer_store_dwordx4 {vr(acc(rb, u, 1))}, v{VH0+u}, {sr(SO)}, s{xo(rb)} offen{opt.get('fst', '')}", needs=[('y', rb, u)]))
    pend = []; blk = set()
    def pick(cap):
        ms = []; n = 0
        while n < cap:
            cand = []
            for (m, rb), ts in nxt.items():
                if m == 0 and not hok[0]: continue
                if m == 1 and (nxt[(0, rb)] or ('fma', rb) in pend or rb in blk): continue
                for t in ts:
                    if m == 1 and (rb, t % 2) not in zok: continue
                    if ('ab'[m], 4 * t + 3) not in arrived: continue
                    cand.append((-m, rb if opt.get('frbm', 1) else 0, t, rb)); break
            if not cand: break
            m, _, t, rb = min(cand); m = -m
            g = len(groups); groups.append((m, t, rb, barpos[0] if m == 1 or not groups else groups[-1][3], m == 0 and len(nxt[(m, rb)]) == 8))
            ms += [('G', g, b) for b in range(4)]
            nxt[(m, rb)].remove(t); n += 1
            if not nxt[(m, rb)]: pend.append(('fma' if m == 0 else 'ep', rb))
        return ms
    def merge(ms, vq):
        per = opt.get('fper', 2)
        while ms or vq:
            if ms: q.append(ms.pop(0))
            k = 0
            while vq and (k < per or not ms):
                x = vq.pop(0); q.append(x); k += 2 if (x.t or '').startswith('v_swap') else 1
    def take_pend(vq):
        blk.clear()
        for p in list(pend):
            pend.remove(p); (fma_x if p[0] == 'fma' else ep)(vq, p[1]); blk.add(p[1])
    def take_post(vq):
        for u, z in post: vq += z; zw.add(u)
        post.clear()
    ni = [0]
    def issue_n(z, k, d):
        while ni[0] < len(Lq) and sum(wgt(e) for e in Lq[k + 1:ni[0] + 1]) <= d:
            e = Lq[ni[0]]
            if e[0] in '012' and not free: break
            if e[0] == 'P': stamp(lambda t: z.append(V(t)))
            issue(z, e); ni[0] += 1
            if e[0] == 'P':
                stamp(lambda t: z.append(V(t))); k = ni[0] - 1; d = opt.get('fd1', D)
    pidx = [k for k, e in enumerate(Lq) if e[0] == 'P'][0]
    fidx = [k for k, e in enumerate(Lq) if e[0] == 'F'][0]
    while ni[0] < fidx: issue(q, Lq[ni[0]]); ni[0] += 1
    stamp(A)
    q.extend(late)
    issue(q, Lq[fidx]); ni[0] += 1
    for k, e in enumerate(Lq):
        if e == ('m', 0):
            for rnd in range(4):
                vq = []; take_pend(vq)
                issue_n(vq, pidx, opt.get('fd1', D) + (rnd + 1) * opt.get('fx', 3))
                merge(pick(8), vq)
        if e[0] not in 'FP': q.append(W(e))
        arrived.add(e)
        vq = []; ms = []; pre = []
        if k < pidx: issue_n(q, k, D)
        else: issue_n(vq, k, D)
        take_post(vq)
        take_pend(vq)
        if e == ('m', 2): weights(vq)
        if e[0] in '012': pre = cstep(vq, ms, int(e[0]), e[1])
        fill = pick(opt.get('fcap', 2)) if k > pidx else []
        merge(fill[:2] + ms + fill[2:] if len(fill) >= 2 else ms, pre + vq) if len(fill) >= 2 else (q.extend(pre), merge(ms + fill, vq))
        if k in bar:
            vq = []; take_post(vq); merge(pick(opt.get('fcapb', 1)), vq)
            if not hok[0]:
                q.append(W('ost')); dg_setup(q); hok[0] = True
            if zw - zok: q.append(W('z'))
            A("s_barrier"); q.append(('BAR', len(q))); barpos[0] = len(q) - 1
            stamp(A)
            zok |= zw
    while any(nxt.values()) or pend:
        vq = []; take_pend(vq); merge(pick(99), vq)
    NR = 6
    Fr = lambda n: BF + (n % NR) * 4
    def rd(n):
        m, t, rb = groups[n][:3]
        if m == 0: s = f"ds_read_b128 {vr(Fr(n))}, v{VBH0 + (t & 1)} offset:{rb*8192 + (t >> 1)*1024}"
        else: s = f"ds_read_b128 {vr(Fr(n))}, v{VZR} offset:{rb*8192 + t*1024}"
        return LD(s, tag=('f', n))
    out = []; nr = 0; done = -1
    for pos, it in enumerate(q):
        if isinstance(it, tuple) and it[0] == 'G':
            n, b = it[1], it[2]; m, t, rb, _, first = groups[n]
            assert nr > n
            a = acc(rb, b >> 1, b & 1)
            out.append(Ins(f"{MF32} {vr(a)}, {ar(m*128 + (4*t + b)*4)}, {vr(Fr(n))}, {0 if first else vr(a)}", 0, needs=[('f', n)]))
            if b == 0:
                done = n - 1
                if nr < len(groups) and nr <= done + NR and groups[nr][3] <= pos: out.append(rd(nr)); nr += 1
            if b == 3: done = n
        elif isinstance(it, tuple) and it[0] == 'BAR':
            while nr < len(groups) and nr <= done + NR - 1 and groups[nr][3] <= pos: out.append(rd(nr)); nr += 1
        else: out.append(it)
    em = Emitter(); em.pos['ost'] = ('vm', 0); em.cnt['vm'] = 1; em.kind.append(False)
    for it in out:
        if isinstance(it, tuple):
            em.o += ["s_mov_b64 exec, 0xffff", "LF_poll:", f"buffer_load_dword v{VPF}, v{VPOLL}, {sr(SF)}, 0 offen sc1",
                     f"s_sub_u32 s{S_SPIN}, s{S_SPIN}, 1", "s_cbranch_scc1 LF_go", "s_waitcnt vmcnt(0)", f"v_cmp_eq_u32 vcc, 0, v{VPF}", "s_nop 1",
                     "s_cbranch_vccnz LF_poll", "LF_go:", "s_mov_b64 exec, -1"]
            em.cnt['vm'] += 1; em.done['vm'] = em.cnt['vm']; em.kind.append(False)
        else: em.emit([it])
    o = hazard.fix(em.o)
    if opt.get('verbose'): print("final: min free", low[0], "lines", len(o), "nops", sum(1 for x in o if x.startswith('s_nop')))
    return o


def wsetup():
    o = []
    srd_from(o, SW, 4, WF_OFF, 262144)
    o += [f"s_lshl_b32 s3, s{S_WAVE}, 15", f"v_add_u32 v{VW0}, s3, v{VLANE16}", f"v_add_u32 v{VW1}, 0x4000, v{VW0}"]
    return o + [f"s_mov_b32 s{WO[k]}, 0x{(k >> 2) * 131072 + (k & 3) * 4096:x}" for k in range(8)]


def wload(m, k):
    t, j, b = k >> 2, (k >> 1) & 1, k & 1
    return f"buffer_load_dwordx4 {ar(m*128 + 4*k)}, v{VW0 + j}, {sr(SW)}, s{WO[m*4 + (t >> 1)]} offen offset:{(t & 1)*2048 + b*1024}"
```

```python
from layout import *
from sched import *
import hazard
import struct, math

K1_LDS = 163840
SRD_X, SRD_W1, SRD_W2, SRD_O, SRD_H = 40, 44, 48, 52, 56
S_W, S_ROLE, S_ROT, S_M0, S_XO = 60, 61, 62, 63, 64
SK1, SK2, SO, S_SC, S_EPS, S_R256, S_MASK = 66, 74, 82, 86, 88, 89, 90
VL16, VWQ, VWK, VTR, VK, VH, VQW, VQ, VHW = 16, 17, 21, 25, 29, 31, 33, 35, 36
MF32 = "v_mfma_f32_16x16x32_bf16"
DPP = " row_mask:0xf bank_mask:0x%x"


def gemm_prog(role, opt):
    NW = opt.get('nw', 8); NF = 16 // NW; CW = 16 * NF; NPC = NF; CH = NPC * 1024; RS = 32 * NF
    main = role == 'q'
    NRB = opt.get('nrb', 3) if main else 4
    RPW = 16 * NRB // NW; NL = RPW // 2
    IMG = NRB * 8192
    RC = (K1_LDS - (2 if main else 1) * IMG) // NW // CH
    RC = min(RC, opt.get('rc', 8))
    WSZ = RC * CH
    HIMG = NW * WSZ; QIMG = HIMG + IMG
    assert QIMG + (IMG if main else 0) <= K1_LDS
    stx = opt.get('st', '')
    p = VHW + NL; p = (p + 3) // 4 * 4
    HP = p; p += NL * 4
    ACC1 = p; p += NF * NRB * 4
    LN0 = p
    ACC2 = p; p += NF * NRB * 4 if main else 0
    RW, RB = opt.get('rw', 6 if NW == 8 else 10), opt.get('rb', 4 if NW == 8 else 3) * NRB
    WR = p; p += RW * 4
    BR = p; p += RB * 4
    assert p <= 255, p
    nst = [0]
    def stamp(kind=0):
        if not opt.get('timing') or kind != opt.get('skind', 0) or (kind and not main): return []
        nst[0] += 1
        assert nst[0] <= 8
        return [V(f"s_memtime s[{14+2*nst[0]}:{15+2*nst[0]}]", cost=0)]
    pre = []
    A = lambda t: pre.append(V(t))
    A(f"v_lshlrev_b32 v{VL16}, 4, v2")
    A(f"s_mul_i32 s{S_M0}, s{S_W}, {WSZ}")
    if main:
        A(f"s_mul_i32 s6, s4, {NRB*8192}")
        A(f"s_mul_i32 s7, s{S_W}, {RPW*512}")
        A(f"s_add_u32 s{S_XO}, s6, s7")
        A(f"s_add_u32 s{S_XO+1}, s{S_XO}, 4096")
    else:
        A("s_and_b32 s6, s4, 3")
        A(f"s_lshl_b32 s6, s6, 6")
        A(f"s_mul_i32 s7, s{S_W}, {RPW}")
        A("s_add_u32 s6, s6, s7")
        A("v_lshrrev_b32 v5, 5, v2")
        A("v_and_b32 v6, 31, v2")
        A("v_lshlrev_b32 v6, 4, v6")
        A("s_cmp_ge_u32 s4, 4")
        A("s_cselect_b64 vcc, -1, 0")
        for j in range(NL):
            A(f"v_add3_u32 v7, v5, s6, {2*j}")
            A("v_and_b32 v8, 0x80, v7")
            A("v_bfe_u32 v9, v7, 2, 1"); A("v_lshl_or_b32 v8, v9, 6, v8")
            A("v_bfe_u32 v9, v7, 4, 1"); A("v_lshl_or_b32 v8, v9, 5, v8")
            A("v_and_b32 v9, 3, v7"); A("v_lshl_or_b32 v8, v9, 3, v8")
            A("v_bfe_u32 v9, v7, 5, 2"); A("v_lshl_or_b32 v8, v9, 1, v8")
            A("v_bfe_u32 v9, v7, 3, 1"); A("v_or_b32 v8, v9, v8")
            A("v_cndmask_b32 v8, v8, v7, vcc")
            A(f"v_lshl_add_u32 v{HP+4*j}, v8, 9, v6")
    A(f"s_lshl_b32 s7, s{S_W}, {(CW*2).bit_length()-1}")
    if NW == 4:
        A("v_lshrrev_b32 v5, 3, v2")
        A("v_and_b32 v6, 7, v2")
        A("v_and_b32 v7, 2, v5")
        A("v_xor_b32 v6, v6, v7")
        A("v_lshl_add_u32 v5, v5, 9, s7")
        A(f"v_lshl_add_u32 v{VWQ}, v6, 4, v5")
        A("v_xor_b32 v6, 4, v6")
        A(f"v_lshl_add_u32 v{VWQ+1}, v6, 4, v5")
        A(f"v_add_u32 v{VWQ+1}, 0xc00, v{VWQ+1}")
        A(f"v_add_u32 v{VWQ+2}, 0x1800, v{VWQ}")
        A(f"v_add_u32 v{VWQ+3}, 0x1800, v{VWQ+1}")
    else:
        A("v_lshrrev_b32 v5, 2, v2")
        A("v_and_b32 v6, 3, v2")
        A("v_lshrrev_b32 v7, 5, v2")
        A("v_lshlrev_b32 v7, 1, v7")
        A("v_xor_b32 v6, v6, v7")
        A("v_lshl_add_u32 v5, v5, 9, s7")
        A(f"v_lshl_add_u32 v{VWQ}, v6, 4, v5")
        A(f"v_add_u32 v{VWQ+1}, 0x1c00, v{VWQ}")
    for t in range(8):
        A(f"s_xor_b32 s6, s{S_ROT}, {t}")
        A(f"s_lshl_b32 s{SK1+t}, s6, 14")
    A("s_waitcnt lgkmcnt(0)")
    o = []
    if main:
        srd_from(o, SRD_X, 16, 0, N * 512); srd_from(o, SRD_W1, 26, 0, 131072)
    else:
        o += ["s_cmp_ge_u32 s4, 4", "s_cselect_b32 s6, s30, s24", "s_cselect_b32 s7, s31, s25"]
        srd_from(o, SRD_X, 6, 0, 131072); srd_from(o, SRD_W1, 32, 0, 131072)
    for t in o: A(t)
    xso = lambda j: f"s{S_XO + j // 4} offen offset:{(j % 4) * 1024}"
    for j in range(NL):
        if main: pre.append(VM(f"buffer_load_dwordx4 {vr(HP+4*j)}, v{VL16}, {sr(SRD_X)}, {xso(j)}", tag=('x', j)))
        else: pre.append(VM(f"buffer_load_dwordx4 {vr(HP+4*j)}, v{HP+4*j}, {sr(SRD_X)}, 0 offen", tag=('x', j)))
    NCH = 16 if main else 8
    def dma(c, needs=()):
        srd, vw, so = (SRD_W1, VWQ, SK1 + c) if c < 8 else (SRD_W2, VWK, SK2 + c - 8)
        q = [V(f"s_add_u32 m0, s{S_M0}, 0x{(c % RC) * CH:x}", needs=needs), V("s_nop 0", cost=0)]
        for k in range(NPC):
            q.append(VM(f"buffer_load_dwordx4 v{vw+k}, {sr(srd)}, s{so} offen offset:{k*1024} lds", tag=('c', c) if k == NPC - 1 else None))
        return q
    NPRE = min(opt.get('npre', RC), RC)
    TCH = opt.get('touch', 0)
    if TCH and main:
        o = []; srd_from(o, SRD_W2, 28, 0, 131072)
        for t in o: A(t)
        A(f"s_sub_u32 s6, s5, {(opt.get('new', 32) + 8) // 8 * NW + 16}")
        A("s_lshl_b32 s7, s6, 13")
        A("s_cmp_lt_u32 s6, 16")
        A("s_cselect_b32 s7, s7, 0x7fff0000")
        pre.append(VM(f"buffer_load_dword v255, v10, {sr(SRD_W2)}, s7 offen"))
        if TCH > 1:
            A(f"s_sub_u32 s6, s6, 16")
            A("s_lshl_b32 s7, s6, 13")
            A("s_cmp_lt_u32 s6, 16")
            A("s_cselect_b32 s7, s7, 0x7fff0000")
            pre.append(VM(f"buffer_load_dword v255, v10, {sr(SRD_W1)}, s7 offen"))
    for c in range(NPRE): pre += dma(c)
    A("v_bfe_u32 v5, v2, 2, 3")
    A(f"v_xor_b32 v5, s{S_ROT}, v5")
    A("v_and_b32 v6, 3, v2")
    A("v_lshlrev_b32 v7, 10, v5")
    A("v_lshl_add_u32 v7, v6, 8, v7")
    A(f"v_add_u32 v7, 0x{HIMG:x}, v7")
    A("v_and_b32 v5, 1, v5")
    A("v_lshl_or_b32 v6, v5, 2, v6")
    A("v_lshrrev_b32 v5, 5, v2")
    A(f"s_mul_i32 s6, s{S_W}, {RPW}")
    for j in range(NL):
        A(f"v_add3_u32 v8, v5, s6, {2*j}")
        A("v_lshrrev_b32 v9, 4, v8")
        A("v_lshl_add_u32 v9, v9, 13, v7")
        A("v_and_b32 v8, 15, v8")
        A("v_xor_b32 v8, v8, v6")
        A(f"v_lshl_add_u32 v{VHW+j}, v8, 4, v9")
    A("v_xor_b32 v5, v3, v4")
    A("v_lshlrev_b32 v5, 4, v5")
    A("v_lshl_add_u32 v5, v4, 8, v5")
    A(f"v_add_u32 v{VH}, 0x{HIMG:x}, v5")
    A(f"v_xor_b32 v{VH+1}, 64, v{VH}")
    A("v_lshrrev_b32 v5, 2, v3")
    A("v_and_b32 v6, 3, v3")
    A("v_and_b32 v7, 1, v4")
    if NW == 4:
        A("v_lshlrev_b32 v7, 2, v7"); A("v_and_b32 v8, 2, v5"); A("v_or_b32 v7, v7, v8")
    else:
        A("v_lshlrev_b32 v7, 1, v7")
    A("v_lshl_add_u32 v8, v4, 3, v5")
    A(f"v_lshlrev_b32 v8, {RS.bit_length()-1}, v8")
    A(f"v_add_u32 v8, s{S_M0}, v8")
    if main:
        A("v_and_b32 v9, 1, v6"); A("v_lshl_add_u32 v8, v9, 3, v8")
        A("v_lshrrev_b32 v6, 1, v6")
    A("v_xor_b32 v6, v6, v7")
    for f in range(NF):
        if main:
            A(f"v_xor_b32 v9, {2*f}, v6"); A(f"v_lshl_add_u32 v{VTR+f}, v9, 4, v8")
        elif f % 2 == 0:
            A(f"v_xor_b32 v9, {2*f}, v6"); A(f"v_lshl_add_u32 v{VTR+f}, v9, 4, v8")
        else:
            A(f"v_add_u32 v{VTR+f}, 8, v{VTR+f-1}")
    o = []
    if main:
        A("v_lshrrev_b32 v5, 3, v2")
        A("v_and_b32 v6, 7, v2")
        A("v_lshrrev_b32 v7, 1, v5")
        A("v_xor_b32 v6, v6, v7")
        A("v_and_b32 v7, 4, v5")
        A("v_add_u32 v5, v5, v7")
        A(f"s_mul_i32 s6, s{S_W}, {CW*512}")
        A("v_lshl_add_u32 v5, v5, 9, s6")
        A(f"v_lshl_add_u32 v{VWK}, v6, 4, v5")
        A("v_xor_b32 v6, 4, v6")
        A(f"v_lshl_add_u32 v{VWK+1}, v6, 4, v5")
        A(f"v_add_u32 v{VWK+1}, 0x{16*512-1024:x}, v{VWK+1}")
        if NW == 4:
            A(f"v_mov_b32 v{VWK+2}, v{VWK}")
            A(f"v_mov_b32 v{VWK+3}, v{VWK+1}")
        A(f"s_lshr_b32 s7, s{S_ROT}, 1")
        for tp in range(4):
            A(f"s_xor_b32 s6, s7, {tp}")
            A(f"s_lshl_b32 s{SK2+2*tp}, s6, 7")
            A(f"s_add_u32 s{SK2+2*tp+1}, s{SK2+2*tp}, {(4 if NW == 8 else 32)*512}")
        A(f"s_and_b32 s6, s{S_ROT}, 1"); A("s_lshl_b32 s6, s6, 2")
        A("v_lshrrev_b32 v5, 1, v3")
        A("v_xor_b32 v5, v5, v4")
        A("v_xor_b32 v5, s6, v5")
        A(f"v_lshl_add_u32 v6, v3, 7, s{S_M0}")
        A(f"v_lshl_add_u32 v{VK}, v5, 4, v6")
        A(f"v_xor_b32 v{VK+1}, 64, v{VK}")
        A(f"s_mul_i32 s6, s{S_W}, {NF//2}")
        A(f"s_xor_b32 s6, s6, s{S_ROT}")
        A("s_lshl_b32 s6, s6, 10")
        A(f"s_add_u32 s6, s6, 0x{QIMG:x}")
        A("v_lshrrev_b32 v5, 1, v4"); A("v_and_b32 v6, 1, v4")
        A("v_lshl_add_u32 v5, v5, 8, s6")
        A("v_lshl_add_u32 v5, v6, 3, v5")
        A(f"v_lshl_add_u32 v{VQW}, v3, 4, v5")
        A(f"v_xor_b32 v{VQW+1}, 0x400, v{VQW}")
        A(f"v_add_u32 v{VQ}, 0x{QIMG:x}, v{VL16}")
        srd_from(o, SRD_W2, 26 if opt.get('w2same') else 28, 0, 131072)
        srd_from(o, SRD_O, 38, QF_OFF, QF_BYTES)
        srd_from(o, SRD_H, 38, H_OFF, NB16 * 8192)
        A(f"s_mul_i32 s6, s4, {NRB*8192}")
        A(f"s_mul_i32 s7, s{S_W}, {NF//2*1024}")
        A(f"s_add_u32 s{SO}, s6, s7")
        for b in range(1, NRB): A(f"s_add_u32 s{SO+b}, s{SO}, {b*8192}")
        qs = struct.unpack('<I', struct.pack('<f', math.log2(math.e) / 16))[0]
        A(f"s_mov_b32 s{S_SC}, 0x{qs:x}"); A(f"s_mov_b32 s{S_SC+1}, 0x{qs:x}")
        A(f"s_mov_b32 s{S_EPS}, 0x3727c5ac"); A(f"s_mov_b32 s{S_R256}, 0x3b800000"); A(f"s_mov_b32 s{S_MASK}, 0xffff0000")
    else:
        srd_from(o, SRD_O, 38, WF_OFF, 262144)
        A("s_lshr_b32 s6, s4, 2"); A("s_lshl_b32 s6, s6, 17")
        A("s_and_b32 s7, s4, 3"); A("s_lshl_b32 s7, s7, 12")
        A("s_add_u32 s6, s6, s7")
        A(f"s_mul_i32 s7, s{S_W}, {NF//2*16384}")
        A(f"s_add_u32 s{SO}, s6, s7")
        A(f"s_add_u32 s{SO+1}, s{SO}, 16384")
    for t in o: A(t)
    pre += stamp()
    rest = [x for c in range(NPRE, min(RC, NCH)) for x in [dma(c)]]
    def more(force=False):
        if rest and (force or not opt.get('late')): pre.extend(rest.pop(0))
    if main:
        U = lambda j: LN0 + 8 * j
        SQ = LN0 + 8 * NL
        for j in range(NL):
            x, u, s = HP + 4 * j, U(j), SQ + 4 * j
            pre.append(W(('x', j)))
            if j == 0: pre += stamp()
            for k in range(4):
                A(f"v_lshlrev_b32 v{u+2*k}, 16, v{x+k}")
                A(f"v_and_b32 v{u+2*k+1}, s{S_MASK}, v{x+k}")
            if opt.get('nopk', 0) >= 3:
                A(f"v_add_f32 v{s}, v{u}, v{u+1}"); A(f"v_mul_f32 v{s+2}, v{u}, v{u}")
                A(f"v_add_f32 v{s+1}, v{u+2}, v{u+3}"); A(f"v_mul_f32 v{s+3}, v{u+1}, v{u+1}")
                for k in range(2, 8):
                    if k >= 4: A(f"v_add_f32 v{s+(k&1)}, v{s+(k&1)}, v{u+k}")
                    A(f"v_fmac_f32 v{s+2+(k&1)}, v{u+k}, v{u+k}")
                A(f"v_add_f32 v{s}, v{s}, v{s+1}"); A(f"v_add_f32 v{s+2}, v{s+2}, v{s+3}")
            else:
                A(f"v_pk_add_f32 {vr(s,2)}, {vr(u,2)}, {vr(u+2,2)}")
                A(f"v_pk_mul_f32 {vr(s+2,2)}, {vr(u,2)}, {vr(u,2)}")
                A(f"v_pk_add_f32 {vr(x,2)}, {vr(u+4,2)}, {vr(u+6,2)}")
                A(f"v_pk_fma_f32 {vr(s+2,2)}, {vr(u+2,2)}, {vr(u+2,2)}, {vr(s+2,2)}")
                A(f"v_pk_add_f32 {vr(s,2)}, {vr(s,2)}, {vr(x,2)}")
                A(f"v_pk_fma_f32 {vr(s+2,2)}, {vr(u+4,2)}, {vr(u+4,2)}, {vr(s+2,2)}")
                A(f"v_add_f32 v{s}, v{s}, v{s+1}")
                A(f"v_pk_fma_f32 {vr(s+2,2)}, {vr(u+6,2)}, {vr(u+6,2)}, {vr(s+2,2)}")
                A(f"v_add_f32 v{s+2}, v{s+2}, v{s+3}")
            more()
        for j in range(NL): A(f"v_permlane16_swap_b32 v{SQ+4*j}, v{SQ+4*j+2}")
        for j in range(NL): A(f"v_add_f32 v{SQ+4*j}, v{SQ+4*j}, v{SQ+4*j+2}")
        def merge(regs, mode, m0, m1, off):
            out = []
            for a in range(0, len(regs), 2):
                (ra, la) = regs[a]
                d = ra + off
                if a + 1 < len(regs):
                    rb_, lb = regs[a + 1]
                    A(f"v_add_f32_dpp v{d}, v{ra}, v{ra} {mode}" + DPP % m0)
                    A(f"v_add_f32_dpp v{d}, v{rb_}, v{rb_} {mode}" + DPP % m1)
                    sh = 8 if m1 == 0xc else 4
                    out.append((d, {**la, **{k: v + sh for k, v in lb.items()}}))
                else:
                    A(f"v_add_f32_dpp v{d}, v{ra}, v{ra} {mode}" + DPP % 0xf)
                    out.append((d, la))
            return out
        regs = [(SQ + 4 * j, {j: 0}) for j in range(NL)]
        regs = merge(regs, "row_ror:8", 0x3, 0xc, 1)
        regs = merge(regs, "row_half_mirror", 0x5, 0xa, 1)
        for qp in ("[1,0,3,2]", "[2,3,0,1]"):
            for r, _ in regs: A(f"v_add_f32_dpp v{r}, v{r}, v{r} quad_perm:{qp}" + DPP % 0xf)
        for r, _ in regs: A(f"v_mov_b32 v{r+1}, v{r}")
        for r, _ in regs: A(f"v_permlane16_swap_b32 v{r+1}, v{r}")
        ops = lambda r: [f"v_mul_f32 v{r+1}, s{S_R256}, v{r+1}", f"v_mul_f32 v{r}, s{S_R256}, v{r}",
                         f"v_fma_f32 v{r}, -v{r+1}, v{r+1}, v{r}", f"v_cvt_pk_bf16_f32 v{r+1}, v{r+1}, v{r+1}", f"v_max_f32 v{r}, 0, v{r}",
                         f"v_cvt_pk_bf16_f32 v{r}, v{r}, v{r}", f"v_and_b32 v{r}, s{S_MASK}, v{r}", f"v_add_f32 v{r}, s{S_EPS}, v{r}",
                         f"v_cvt_pk_bf16_f32 v{r}, v{r}, v{r}", f"v_and_b32 v{r}, s{S_MASK}, v{r}", f"v_sqrt_f32 v{r}, v{r}",
                         f"v_and_b32 v{r+1}, s{S_MASK}, v{r+1}",
                         f"v_cvt_pk_bf16_f32 v{r}, v{r}, v{r}", f"v_and_b32 v{r}, s{S_MASK}, v{r}", f"v_rcp_f32 v{r}, v{r}",
                         f"v_mul_f32 v{r+1}, -v{r+1}, v{r}"]
        for tt in zip(*[ops(r) for r, _ in regs]):
            for t in tt: A(t)
        for r, lm in regs:
            for j, ln in lm.items():
                A(f"v_mov_b64_dpp {vr(SQ+4*j,2)}, {vr(r,2)} row_newbcast:{ln} row_mask:0xf bank_mask:0xf")
        for j in range(NL):
            x, u, s = HP + 4 * j, U(j), SQ + 4 * j
            for k in range(4):
                if opt.get('nopk', 0) >= 1:
                    for z in range(2): A(f"v_fma_f32 v{u+2*k+z}, v{u+2*k+z}, v{s}, v{s+1}")
                else: A(f"v_pk_fma_f32 {vr(u+2*k,2)}, {vr(u+2*k,2)}, {vr(s,2)}, {vr(s,2)} op_sel:[0,0,1] op_sel_hi:[1,0,1]")
            for k in range(4):
                A(f"v_cvt_pk_bf16_f32 v{x+k}, v{u+2*k}, v{u+2*k+1}")
            pre.append(LD(f"ds_write_b128 v{VHW+j}, {vr(x)}", tag='hw'))
            more()
    else:
        for j in range(NL):
            pre.append(LD(f"ds_write_b128 v{VHW+j}, {vr(HP+4*j)}", tag='hw', needs=[('x', j)]))
    pre += stamp()
    while rest and opt.get('late', 0) < 2: more(True)
    st = Stream(); st.pre = pre
    wf, bf = [], []
    wreg = lambda k: WR + (k % RW) * 4
    breg = lambda k: BR + (k % RB) * 4
    def use(lst, k, n):
        lst[k].setdefault('first', n); lst[k]['last'] = n
    def mf(acc, wk, bk, first):
        a, b = (wreg(wk), breg(bk)) if main else (breg(bk), wreg(wk))
        n = st.mfma(f"{MF32} {vr(acc)}, {vr(a)}, {vr(b)}, {0 if first else vr(acc)}", needs=[('w', wk), ('b', bk)])
        use(wf, wk, n); use(bf, bk, n); return n
    acc1 = lambda f, rb: ACC1 + (f * NRB + rb) * 4
    acc2 = lambda f, rb: ACC2 + (rb * NF + f) * 4
    done1, done2 = {}, {}
    for t in range(8):
        sl = (t % RC) * CH
        b0 = len(bf)
        for rb in range(NRB):
            bf.append(dict(reads=[f"ds_read_b128 {vr(breg(b0+rb))}, v{VH + (t & 1)} offset:{rb*8192 + t*1024}"], ph=0))
        for f in range(NF):
            k = len(wf); r = wreg(k)
            wf.append(dict(reads=[f"ds_read_b64_tr_b16 v[{r+2*hh}:{r+2*hh+1}], v{VTR+f} offset:{sl + hh*4*RS}" for hh in range(2)], chunk=t))
            for rb in range(NRB): done1[(f, rb)] = mf(acc1(f, rb), k, b0 + rb, t == 0)
    n1 = st.n()
    if main:
        for tp in range(4):
            b0 = len(bf)
            for e in range(2):
                for rb in range(NRB):
                    bf.append(dict(reads=[f"ds_read_b128 {vr(breg(b0+e*NRB+rb))}, v{VQ} offset:{rb*8192 + (2*tp+e)*1024}"], ph=1))
            for bh in range(2):
                c = 8 + 2 * tp + bh; sl = (c % RC) * CH
                for bl in range(NF // 2):
                    b = bh * (NF // 2) + bl
                    for e in range(2):
                        k = len(wf)
                        wf.append(dict(reads=[f"ds_read_b128 {vr(wreg(k))}, v{VK+e} offset:{sl + bl*2048}"], chunk=c))
                        for rb in range(NRB): done2[(b, rb)] = mf(acc2(b, rb), k, b0 + e * NRB + rb, tp == 0 and e == 0)
    nm = st.n()
    LAG = opt.get('lag', 3); LA = opt.get('la', 2 * NRB)
    def place_w(lo, hi, g):
        for k in range(lo, hi):
            d = wf[k]
            g = max(g, d['first'] - LA - 1, wf[k - RW]['last'] if k >= RW else -1)
            for i, r in enumerate(d['reads']):
                st.put(g, LD(r, tag=('w', k) if i == len(d['reads']) - 1 else None, needs=[('c', d['chunk'])]))
            d['g'] = g
            if k % (2 * NF) == 0:
                for s in stamp(1): st.put(g, s)
        return g
    def place_b(lo, hi, g):
        for k in range(lo, hi):
            d = bf[k]
            g = max(g, d['first'] - LA - 1, bf[k - RB]['last'] if k >= RB else -1)
            st.put(g, LD(d['reads'][0], tag=('b', k)))
        return g
    nw1, nb1 = 8 * NF, 8 * NRB
    npw = min(opt.get('npw', NF), RW)
    place_w(0, npw, -1)
    st.put(-1, W('hw')); st.put(-1, V("s_barrier"))
    for s in stamp(): st.put(-1, s)
    place_b(0, nb1, -1)
    gg = -1
    while rest:
        for x in rest.pop(0): st.put(gg, x)
        gg += opt.get('lpace', 2)
    g = place_w(npw, nw1, -1)
    if main:
        items = sorted(done1.items(), key=lambda kv: kv[1])
        for (f, rb), n in items:
            a = acc1(f, rb)
            q = [V(f"v_cvt_pk_bf16_f32 v{a}, v{a}, v{a+1}"), V(f"v_cvt_pk_bf16_f32 v{a+1}, v{a+2}, v{a+3}"),
                 LD(f"ds_write_b64 v{VQW + (f >> 1)}, v[{a}:{a+1}] offset:{rb*8192 + (f & 1)*512}", tag='qw')]
            for x in q: st.put(min(n + LAG, n1 - 1), x)
        k = nw1
        while k < len(wf) and k < nw1 + opt.get('npw2', NF) and wf[k - RW]['last'] <= n1 - 1: k += 1
        place_w(nw1, k, max(g, n1 - 1))
        for s in stamp(): st.put(n1 - 1, s)
        st.put(n1 - 1, W('qw')); st.put(n1 - 1, V("s_barrier"))
        for s in stamp(): st.put(n1 - 1, s)
        place_b(nb1, len(bf), n1 - 1)
        place_w(k, len(wf), n1 - 1)
    lastw = {}
    for k, d in enumerate(wf): lastw[d['chunk']] = k
    gl = 0
    for c in range(RC, NCH):
        k = lastw[c - RC]
        gl = wf[k]['first']
        firstk = min(kk for kk, d in enumerate(wf) if d['chunk'] == c)
        assert gl < wf[firstk]['g'], (c, gl, wf[firstk]['g'])
        for x in dma(c, [('w', k)]): st.put(gl, x)
    if main:
        hs = [VM(f"buffer_store_dwordx4 {vr(HP+4*j)}, v{VL16}, {sr(SRD_H)}, {xso(j)}{stx}") for j in range(NL)]
        st.fill(hs, gl + 1)
        items = sorted(((max(done2[(2 * u, rb)], done2[(2 * u + 1, rb)]), u, rb) for u in range(NF // 2) for rb in range(NRB)))
        for n, u, rb in items:
            a = acc2(2 * u, rb)
            if n + LAG < nm - 1 or opt.get('nopk', 0) >= 2:
                q = [V(f"v_mul_f32 v{a+r}, s{S_SC}, v{a+r}") for r in range(8)]
            else:
                q = [V(f"v_pk_mul_f32 {vr(a+2*r,2)}, {vr(a+2*r,2)}, {sr(S_SC,2)}") for r in range(4)]
            q += [V(f"v_cvt_pk_bf16_f32 v{a+r}, v{a+2*r}, v{a+2*r+1}") for r in range(4)]
            q.append(VM(f"buffer_store_dwordx4 {vr(a)}, v{VL16}, {sr(SRD_O)}, s{SO+rb} offen offset:{u*1024}{opt.get('stq', stx)}"))
            for x in q: st.put(min(n + LAG, nm - 1), x)
    else:
        items = sorted((max(done1[(f, 2 * tl)], done1[(f, 2 * tl + 1)]), f, tl) for f in range(NF) for tl in range(2))
        for n, f, tl in items:
            a = acc1(f, 2 * tl)
            q = [V(f"v_cvt_pk_bf16_f32 v{a+r}, v{a+2*r}, v{a+2*r+1}") for r in range(4)]
            q.append(VM(f"buffer_store_dwordx4 {vr(a)}, v{VL16}, {sr(SRD_O)}, s{SO + (f >> 1)} offen offset:{tl*2048 + (f & 1)*1024}{opt.get('stw', stx)}"))
            for x in q: st.put(min(n + LAG, nm - 1), x)
    for s in stamp(): st.put(nm - 1, s)
    em = Emitter()
    o = hazard.fix(em.emit(st.seq()))
    if opt.get('verbose'): print(role, st.stats(), "regs", p, "RC", RC, "lines", len(o))
    return o


def edge_prog(opt):
    NW = opt.get('nw', 8); NEW = opt.get('new', 32); ECAP = 163840 // NEW; CAPB = 4096 // NEW
    NTH = 64 * NW
    NQ = E // NEW // 4
    NR = (NQ + NTH - 1) // NTH; LASTN = NQ - (NR - 1) * NTH
    o = []; A = o.append
    L_CNT = 65536
    D0, S0, B0, C0 = 16, 16 + 4 * NR, 16 + 8 * NR, 16 + 12 * NR
    SRD_D, SRD_S, SRD_E, SRD_C = 40, 44, 48, 52
    A(f"s_mul_i32 s6, s4, {NQ * 16}")
    A("v_lshlrev_b32 v5, 4, v0")
    A("v_lshlrev_b32 v6, 2, v2")
    A(f"v_add_u32 v6, 0x{L_CNT:x}, v6")
    A("v_mov_b32 v7, 0")
    A("ds_write_b32 v6, v7")
    for i in range(NR): A(f"s_mov_b32 s{66+i}, {i * NTH * 16}")
    A("s_waitcnt lgkmcnt(0)")
    srd_from(o, SRD_D, 20, 0, NQ * 16, 6)
    srd_from(o, SRD_S, 18, 0, NQ * 16, 6)
    for i in range(NR): A(f"buffer_load_dwordx4 {vr(D0+4*i)}, v5, {sr(SRD_D)}, s{66+i} offen")
    for i in range(NR): A(f"buffer_load_dwordx4 {vr(S0+4*i)}, v5, {sr(SRD_S)}, s{66+i} offen")
    srd_from(o, SRD_E, 38, EDGE_OFF, EDGE_BYTES)
    srd_from(o, SRD_C, 38, ECNT_OFF, NBK * NEW * 4)
    A(f"s_mov_b32 s9, {BMAGIC}")
    A(f"s_mov_b32 s10, {-BN & 0xffffffff}")
    A(f"s_mov_b32 s11, 0x{L_CNT:x}")
    A("v_mov_b32 v7, 1")
    A(f"v_cmp_gt_u32 vcc, 0x{LASTN:x}, v0")
    A("s_mov_b64 s[12:13], vcc")
    A("s_barrier")
    for i in range(NR):
        A(f"s_waitcnt vmcnt({2*NR-1-i})")
        if i == NR - 1: A("s_mov_b64 exec, s[12:13]")
        for k in range(4):
            d, b, c = D0 + 4 * i + k, B0 + 4 * i + k, C0 + 4 * i + k
            A(f"v_mul_u32_u24 v{b}, s9, v{d}")
            A(f"v_lshrrev_b32 v{b}, {BSHIFT}, v{b}")
            A(f"v_lshl_add_u32 v{c}, v{b}, 2, s11")
            A(f"ds_add_rtn_u32 v{c}, v{c}, v7")
            A(f"v_mad_i32_i24 v{d}, v{b}, s10, v{d}")
    A("s_mov_b64 exec, -1")
    for i in range(NR):
        A(f"s_waitcnt vmcnt({NR-1-i}) lgkmcnt({min(15, 4*(NR-1 if i == NR-1 else NR-2))})")
        if i == NR - 1: A("s_mov_b64 exec, s[12:13]")
        for k in range(4):
            d, s, b, c = D0 + 4 * i + k, S0 + 4 * i + k, B0 + 4 * i + k, C0 + 4 * i + k
            A(f"v_and_b32 v8, 0x{CAPB-1:x}, v{c}")
            A(f"v_lshl_or_b32 v{s}, v{d}, 18, v{s}")
            A(f"v_lshlrev_b32 v8, 2, v8")
            A(f"v_lshl_add_u32 v8, v{b}, {(CAPB*4).bit_length()-1}, v8")
            A(f"ds_write_b32 v8, v{s}")
    A("s_mov_b64 exec, -1")
    A("s_waitcnt lgkmcnt(0)")
    A("s_barrier")
    NC = 64 * CAPB * 4 // (NTH * 16)
    BPI = 1024 // (CAPB * 4)
    R0 = C0 + 4 * NR
    if opt.get('fuse'):
        import gen_f
        FS = gen_f.fstr(opt); assert NEW * 64 == gen_f.NFLAG
        srd_from(o, SRD_D, 38, gen_f.FLAG_OFF, gen_f.NFLAG * FS)
        A(f"v_mul_u32_u24 v13, {FS}, v2" if FS <= 64 else f"v_lshlrev_b32 v13, {FS.bit_length()-1}, v2")
        A("v_mov_b32 v12, 0")
        A(f"s_mul_i32 s6, s4, {64 * FS}")
        A(f"s_cmp_eq_u32 s{S_W}, 1")
        A("s_cselect_b32 s6, s6, 0x7fff0000")
        A(f"buffer_store_dword v12, v13, {sr(SRD_D)}, s6 offen sc1")
    A("ds_read_b32 v8, v6")
    A(f"s_mul_i32 s6, s{S_W}, {NC*1024}")
    A("v_lshlrev_b32 v10, 4, v2")
    A("v_add_u32 v9, s6, v10")
    for k in range(NC): A(f"ds_read_b128 {vr(R0+4*k)}, v9 offset:{k*1024}")
    if BPI > 1:
        assert BPI == 2
        A("v_lshrrev_b32 v11, 5, v2")
        A(f"v_mul_u32_u24 v11, 0x{NEW*ECAP*4 - 512:x}, v11")
        A("v_add_u32 v10, v10, v11")
    A(f"s_mul_i32 s6, s{S_W}, {NC*BPI*NEW*ECAP*4}")
    A(f"s_mul_i32 s7, s4, {ECAP*4}")
    A("s_add_u32 s6, s6, s7")
    A(f"v_lshlrev_b32 v9, {(NEW*4).bit_length()-1}, v2")
    A("s_lshl_b32 s8, s4, 2")
    A(f"s_cmp_eq_u32 s{S_W}, 0")
    A("s_cselect_b32 s8, s8, 0x7fff0000")
    A(f"s_waitcnt lgkmcnt({NC})")
    A(f"buffer_store_dword v8, v9, {sr(SRD_C)}, s8 offen{opt.get('ste', '')}")
    A(f"v_cmp_lt_u32 vcc, 0x{CAPB:x}, v8")
    A("s_cbranch_vccnz L1_eslow")
    for k in range(NC):
        A(f"s_waitcnt lgkmcnt({NC-1-k})")
        A(f"buffer_store_dwordx4 {vr(R0+4*k)}, v10, {sr(SRD_E)}, s6 offen{opt.get('ste', '')}")
        A(f"s_add_u32 s6, s6, {BPI*NEW*ECAP*4}")
    A("s_branch L1_fin")
    A("L1_eslow:")
    A(f"s_mov_b32 s9, {NEW*ECAP*4}")
    for i in range(NR):
        for k in range(4):
            b, c = B0 + 4 * i + k, C0 + 4 * i + k
            A(f"v_mul_u32_u24 v{b}, s9, v{b}")
            A(f"v_lshl_add_u32 v{b}, v{c}, 2, v{b}")
    for i in range(NR):
        if i == NR - 1: A("s_mov_b64 exec, s[12:13]")
        for k in range(4):
            A(f"buffer_store_dword v{S0 + 4 * i + k}, v{B0 + 4 * i + k}, {sr(SRD_E)}, s7 offen")
    A("s_mov_b64 exec, -1")
    return hazard.fix(o)


def gen_k1(opt=None):
    opt = opt or {}
    NW = opt.get('nw', 8); NRB = opt.get('nrb', 3); NEW = opt.get('new', 32)
    NMAIN = (NB16 + NRB - 1) // NRB
    o = []
    A = o.append
    A("s_getpc_b64 s[56:57]")
    A("s_load_dwordx16 s[16:31], s[0:1], 0")
    A("s_load_dwordx8 s[32:39], s[0:1], 64")
    if opt.get('timing'):
        A("s_memtime s[100:101]")
    A(f"s_cmp_ge_u32 s2, {opt.get('nact', NMAIN) + NEW + 8}")
    A("s_cbranch_scc1 L1_end")
    A("v_lshrrev_b32 v1, 6, v0")
    A("v_and_b32 v2, 63, v0")
    A("s_lshr_b32 s3, s2, 3")
    A(f"v_readfirstlane_b32 s{S_W}, v1")
    A(f"s_mul_i32 s5, s3, {NW}")
    A(f"s_add_u32 s5, s5, s{S_W}")
    if opt.get('cpf', 1):
        A("s_and_b32 s56, s56, 0xffffff00")
        A(f"s_mov_b32 s58, {opt.get('code_end', 'L1_end')}-k1_kernel")
        A("s_mov_b32 s59, 0x00020000")
        A("s_and_b32 s6, s5, 15")
        A("s_lshl_b32 s6, s6, 13")
        A("v_lshlrev_b32 v10, 7, v2")
        A("buffer_load_dword v255, v10, s[56:59], s6 offen")
    A("v_and_b32 v3, 15, v2")
    A("v_lshrrev_b32 v4, 4, v2")
    A(f"s_and_b32 s{S_ROT}, s3, {opt.get('rotm', 7)}")
    A(f"s_sub_u32 s4, s2, {NEW + 8}")
    A(f"s_cmp_lt_u32 s2, {NEW + 8}")
    A("s_cbranch_scc1 L1_notq")
    A(f"s_mov_b32 s{S_ROLE}, 0")
    o += gemm_prog('q', opt)
    A("s_branch L1_fin")
    A("L1_notq:")
    A(f"s_sub_u32 s4, s2, {NEW}")
    A(f"s_cmp_lt_u32 s2, {NEW}")
    A("s_cbranch_scc1 L1_edge")
    A(f"s_mov_b32 s{S_ROLE}, 1")
    o += gemm_prog('w', opt)
    A("s_branch L1_fin")
    A("L1_edge:")
    A(f"s_mov_b32 s{S_ROLE}, 4")
    A("s_mov_b32 s4, s2")
    o += edge_prog(opt)
    A("L1_fin:")
    if opt.get('timing'):
        A("s_memtime s[4:5]")
        A("s_waitcnt vmcnt(0)")
        A("s_memtime s[6:7]")
        A("s_waitcnt lgkmcnt(0)")
        for k in range(8):
            A(f"v_writelane_b32 v0, s{16+2*k}, {k}")
        A("v_writelane_b32 v0, s4, 8")
        A("v_writelane_b32 v0, s6, 9")
        A(f"v_subrev_u32 v0, s100, v0")
        A(f"v_writelane_b32 v0, s{S_ROLE}, 63")
        srd_from(o, 4, 34, 0, 1 << 20)
        A(f"s_mul_i32 s8, s2, {NW}")
        A(f"s_add_u32 s8, s8, s{S_W}")
        A(f"s_lshl_b32 s8, s8, 8")
        A(f"v_mbcnt_lo_u32_b32 v1, -1, 0")
        A(f"v_mbcnt_hi_u32_b32 v1, -1, v1")
        A(f"v_lshlrev_b32 v1, 2, v1")
        A(f"buffer_store_dword v0, v1, s[4:7], s8 offen")
    A("L1_end:")
    return "\n".join(o)


def kernel_desc(opt=None):
    opt = opt or {}
    NW = opt.get('nw', 8); NRB = opt.get('nrb', 3); NEW = opt.get('new', 32)
    return dict(name="k1_kernel", body=gen_k1(opt), vgpr=256, accum=256, grid=(NB16 + NRB - 1) // NRB + NEW + 8, block=64 * NW, lds=K1_LDS)

if __name__ == "__main__":
    import sys, json
    t = gen_k1(dict(json.loads(sys.argv[1]) if len(sys.argv) > 1 else {}, verbose=1))
    e = hazard.check(t, "k1")
    print("\n".join(e[:30])); print(len(e), "hazards;", len(t.split("\n")), "lines")
    open('k1n.s', 'w').write(t)
```

```python
from layout import *

def Q(qb, ds): return (qb * 8 + ds) * 4
S_BASE = [128, 144]
def S(h, qb): return S_BASE[h] + qb * 4
P_BASE = [160, 176]
def P(p, qb): return P_BASE[p] + qb * 4
def NEGM(qb): return 192 + qb * 4
RING = 4
def F(i): return 208 + (i % RING) * 4
LA = [224 + i for i in range(4)]
LB = [228 + i for i in range(4)]
ET = [232 + i for i in range(8)]
VK = 240
VTR = [249, 250]
VDMA = 241
VT0, VT1 = 242, 243
M = [244 + i for i in range(4)]
VLANE16 = 248
KB = [VK, 251, 252]
VSP = 253
RD = 254
def O(fb, qb): return (fb * 4 + qb) * 4

SRD_Q, SRD_K, SRD_OP, SRD_ML = 8, 12, 20, 24
S_OFF, S_M0, S_CNT, S_THR, S_MASK, S_WAVE, S_SITE = 28, 30, 31, 32, 33, 34, 36


def vr(b, n=4): return f"v[{b}:{b+n-1}]"
def ar(b, n=4): return f"a[{b}:{b+n-1}]"


class Seg:
    def __init__(self):
        self.mf = []
        self.gap = []
        self.pre = []

    def add_mfma(self, t):
        self.mf.append(t)
        self.gap.append([])

    def used(self, g):
        return sum(c for c, _ in self.gap[g])

    def put(self, g, text, cost=1):
        if g < 0:
            self.pre.append((cost, text))
        else:
            self.gap[g].append((cost, text))

    def fill(self, queue, g0, g1, cap=2):
        g = g0
        for cost, text in queue:
            while g < g1 and self.used(g) + cost > cap:
                g += 1
            self.gap[g].append((cost, text))
        return g

    def text(self):
        o = [t for _, t in self.pre]
        for m, gp in zip(self.mf, self.gap):
            o.append(m)
            o += [t for _, t in gp]
        return o


def foff(kb, c): return (c >> 1) * 4096 + kb * 2048 + (c & 1) * 512

def kread(off):
    return [lambda f: f"ds_read_b128 {vr(f)}, v{VK} offset:{off}"]

def vread(off, fb):
    return [lambda f, kb=kb: f"ds_read_b64_tr_b16 v[{f+2*kb}:{f+2*kb+1}], v{VTR[fb & 1]} offset:{off + foff(kb, fb >> 1)}" for kb in range(2)]


def qk_block(h, off, cinit):
    fr = []
    for ds in range(8):
        ms = []
        for qb in range(4):
            c = cinit(qb) if ds == 0 else vr(S(h, qb))
            ms.append(lambda f, qb=qb, ds=ds, c=c: f"v_mfma_f32_16x16x32_bf16 {vr(S(h,qb))}, {vr(f)}, {vr(Q(qb,ds))}, {c}")
        fr.append((kread(off + foff(h, ds)), ms))
    return fr


TR = [0]
def pvm(acc, f, pp):
    a, b = (pp, f) if TR[0] else (f, pp)
    return f"v_mfma_f32_16x16x32_bf16 {ar(acc)}, {vr(a)}, {vr(b)}, {ar(acc)}"


def pv_block(p, off, fb0):
    fr = []
    for fb in range(fb0, fb0 + 8):
        ms = []
        for qb in range(4):
            ms.append(lambda f, qb=qb, fb=fb: pvm(O(fb, qb), f, P(p, qb)))
        fr.append((vread(off, fb), ms))
    return fr


def build_seg(frags, next_reads):
    sg = Seg()
    n = len(frags)
    assert n % RING == 0
    rds = [r for r, _ in frags] + list(next_reads)
    for i, (_, ms) in enumerate(frags):
        for m in ms:
            sg.add_mfma(m(F(i)))
    issued = []
    for i in range(RING): issued += [i] * len(rds[i])
    def wait(g, i):
        last = max(k for k, x in enumerate(issued) if x == i)
        assert issued.count(i) == len(rds[i])
        sg.put(g, f"s_waitcnt lgkmcnt({len(issued) - 1 - last})")
    wait(-1, 0)
    for i in range(n):
        g = 4 * i + 3
        nxt = i + RING
        late = []
        if nxt < len(rds):
            r = rds[nxt]
            now = r[:1] if i + 1 < n else r
            late = r[len(now):]
            for x in now:
                sg.put(g, x(F(nxt))); issued.append(nxt)
        if i + 1 < n: wait(g, i + 1)
        for x in late:
            sg.put(g + 1, x(F(nxt))); issued.append(nxt)
    return sg


def softmax_queue(h, pn, site):
    lin, lout = (LA, LB) if h == 0 else (LB, LA)
    if callable(pn):
        pf = pn; P = lambda _, qb: pf(qb)
    else:
        P = globals()['P']
    q = []
    for qb in range(4):
        e = ET[(qb % 2) * 4:(qb % 2) * 4 + 4]
        s = S(h, qb)
        q.append((2, f"v_exp_f32 v{e[0]}, v{s}"))
        q.append((2, f"v_exp_f32 v{e[1]}, v{s+1}"))
        q.append((2, f"v_exp_f32 v{e[2]}, v{s+2}"))
        q.append((1, f"v_add_f32 v{lout[qb]}, v{lin[qb]}, v{e[0]}"))
        q.append((1, f"v_cvt_pk_bf16_f32 v{P(pn,qb)+2*h}, v{e[0]}, v{e[1]}"))
        q.append((2, f"v_exp_f32 v{e[3]}, v{s+3}"))
        q.append((1, f"v_add_f32 v{lout[qb]}, v{lout[qb]}, v{e[1]}"))
        q.append((1, f"v_add_f32 v{lout[qb]}, v{lout[qb]}, v{e[2]}"))
        q.append((1, f"v_add_f32 v{lout[qb]}, v{lout[qb]}, v{e[3]}"))
        q.append((1, f"v_cvt_pk_bf16_f32 v{P(pn,qb)+2*h+1}, v{e[2]}, v{e[3]}"))
    q.append((1, f"v_max3_f32 v{VT0}, v{lout[0]}, v{lout[1]}, v{lout[2]}"))
    q.append((1, f"v_max_f32 v{VT0}, v{VT0}, v{lout[3]}"))
    q.append((1, f"v_cmp_lt_f32 vcc, s{S_THR}, v{VT0}"))
    q.append((1, f"s_cbranch_vccnz L2_rare_site{site}\nL2_ret{site}:"))
    return q


def body(p, kind, sites, opt):
    B = p * 16384
    Bn = (1 - p) * 16384
    negm = lambda qb: vr(NEGM(qb))
    fr = pv_block(p, B, 0)
    if kind != 'tail1':
        fr += qk_block(1, Bn, negm)
    fr += pv_block(p, B, 8)
    if kind == 'loop':
        fr += qk_block(0, B, negm)
    nxt = [vread(Bn, i) for i in range(RING)] if kind != 'tail1' else []
    sg = build_seg(fr, nxt)
    if kind == 'loop':
        gb = opt.get('gbar', 81)
        gd = opt.get('gdma', [0, 1, 2, 5, 6])
        if not opt.get('nobar'):
            sg.put(gb, "s_waitcnt vmcnt(%d)" % sum(1 for x in gd[1:] if x < gb))
            sg.put(gb, "s_barrier")
        assert all(x != gb for x in gd) and gb < 83
        sg.put(gd[0], f"s_mov_b32 m0, s{S_M0}")
        for k in range(4):
            sg.put(gd[k + 1], f"buffer_load_dwordx4 v{VDMA}, s[{SRD_K}:{SRD_K+3}], s{S_OFF} offen offset:{k*1024}{opt.get('dl','')} lds")
        sg.put(125, f"s_add_u32 s{S_OFF}, s{S_OFF}, 0x4000")
        sg.put(125, f"s_add_u32 s{S_M0}, s{S_M0}, 0x4000")
        sg.put(122, f"s_sub_u32 s{S_CNT}, s{S_CNT}, 1")
        sg.put(126, f"s_and_b32 s{S_M0}, s{S_M0}, 0x1ffff")
        sg.put(126, f"s_cmp_eq_u32 s{S_CNT}, 0")
        if p == 0:
            sg.put(70, f"v_add_u32 v{VK}, 0x8000, v{VK}")
            sg.put(70, f"v_and_b32 v{VK}, 0x1ffff, v{VK}")
    if kind == 'tail2':
        sg.put(2, "s_waitcnt vmcnt(0)")
    if p == 1 and kind != 'tail1':
        g = 84 if kind == 'loop' else 81
        sg.put(g, f"v_add_u32 v{VTR[0]}, 0x8000, v{VTR[0]}")
        sg.put(g, f"v_and_b32 v{VTR[0]}, 0x1ffff, v{VTR[0]}")
        sg.put(g + 1, f"v_xor_b32 v{VTR[1]}, 32, v{VTR[0]}")
    if kind != 'tail1' and opt.get('valu', 1):
        def flt(q):
            if opt.get('nochk'): q = q[:-4] + [(0, q[-1][1].split("\n")[1])]
            if opt.get('noexp'): q = [(1, x.replace('v_exp_f32', 'v_mov_b32')) if 'v_exp' in x else (c, x) for c, x in q]
            return q
        g = sg.fill(flt(softmax_queue(0, 1 - p, sites[0])), opt.get('g0', 8), 71)
        if opt.get('verbose'): print(kind, p, "sm0 end", g)
        last = 124 if kind == 'loop' else len(sg.mf) - 1
        g = sg.fill(flt(softmax_queue(1, 1 - p, sites[1])), 72, last)
        if opt.get('verbose'): print(kind, p, "sm1 end", g, "over", [(i, sg.used(i)) for i in range(len(sg.mf)) if sg.used(i) > 2])
    return sg


def rare_code(p, h, sites, pt=None, live=None, spills=()):
    if pt is None:
        pt = lambda qb: P(1 - p, qb)
        live = [lambda qb: P(p, qb)]
    lin, lout = (LA, LB) if h == 0 else (LB, LA)
    o = []
    for st in sites:
        o.append(f"L2_rare_site{st}:")
        o.append(f"s_mov_b32 s{S_SITE}, {st}")
        o.append(f"s_branch L2_rare_{p}_{h}")
    o.append(f"L2_rare_{p}_{h}:")
    o.append("s_nop 15")
    o.append("s_nop 15")
    o.append("s_waitcnt lgkmcnt(0)")
    DL = ET[0:4]
    FF = ET[4:8]
    for qb in range(4):
        s = S(h, qb)
        d = DL[qb]
        o.append(f"v_log_f32 v{VT1}, v{lin[qb]}")
        o.append(f"v_max3_f32 v{d}, v{s}, v{s+1}, v{s+2}")
        o.append(f"v_max3_f32 v{d}, v{d}, v{s+3}, v{VT1}")
        o.append(f"v_mov_b32 v{VT1}, v{d}")
        o.append("s_nop 1")
        o.append(f"v_permlane32_swap_b32 v{d}, v{VT1}")
        o.append("s_nop 1")
        o.append(f"v_max_f32 v{d}, v{d}, v{VT1}")
        o.append(f"v_mov_b32 v{VT1}, v{d}")
        o.append("s_nop 1")
        o.append(f"v_permlane16_swap_b32 v{d}, v{VT1}")
        o.append("s_nop 1")
        o.append(f"v_max_f32 v{d}, v{d}, v{VT1}")
        o.append(f"v_ceil_f32 v{d}, v{d}")
        o.append(f"v_max_f32 v{d}, 0, v{d}")
        o.append(f"v_sub_f32 v{VT1}, 0, v{d}")
        o.append(f"v_exp_f32 v{FF[qb]}, v{VT1}")
        o.append("s_nop 1")
        o.append(f"v_mul_f32 v{lin[qb]}, v{lin[qb]}, v{FF[qb]}")
        o.append(f"v_add_f32 v{M[qb]}, v{M[qb]}, v{d}")
        for r in range(4):
            o.append(f"v_sub_f32 v{NEGM(qb)+r}, v{NEGM(qb)+r}, v{d}")
            o.append(f"v_sub_f32 v{S(0,qb)+r}, v{S(0,qb)+r}, v{d}")
            o.append(f"v_sub_f32 v{S(1,qb)+r}, v{S(1,qb)+r}, v{d}")
        regs = [f(qb) + r for f in live for r in range(4)] + ([] if h == 0 else [pt(qb) + r for r in range(2)])
        def scale(r):
            o.append(f"v_lshlrev_b32 v{VT0}, 16, v{r}")
            o.append(f"v_and_b32 v{VT1}, 0xffff0000, v{r}")
            o.append(f"v_mul_f32 v{VT0}, v{VT0}, v{FF[qb]}")
            o.append(f"v_mul_f32 v{VT1}, v{VT1}, v{FF[qb]}")
            o.append(f"v_cvt_pk_bf16_f32 v{r}, v{VT0}, v{VT1}")
        for r in regs: scale(r)
        for k in spills:
            for hh in range(2):
                off = k * 4096 + qb * 1024 + hh * 8
                o.append(f"ds_read_b64 v[{RD}:{RD+1}], v{VSP} offset:{off}")
                o.append("s_waitcnt lgkmcnt(0)")
                scale(RD); scale(RD + 1)
                o.append(f"ds_write_b64 v{VSP}, v[{RD}:{RD+1}] offset:{off}")
                o.append("s_waitcnt lgkmcnt(0)")
    for qb in range(4):
        s = S(h, qb)
        e = ET[0:4]
        for r in range(4):
            o.append(f"v_exp_f32 v{e[r]}, v{s+r}")
        o.append("s_nop 1")
        o.append(f"v_add_f32 v{lout[qb]}, v{lin[qb]}, v{e[0]}")
        for r in range(1, 4):
            o.append(f"v_add_f32 v{lout[qb]}, v{lout[qb]}, v{e[r]}")
        o.append(f"v_cvt_pk_bf16_f32 v{pt(qb)+2*h}, v{e[0]}, v{e[1]}")
        o.append(f"v_cvt_pk_bf16_f32 v{pt(qb)+2*h+1}, v{e[2]}, v{e[3]}")
    o.append("s_branch L2_rare_common")
    return o


def rare_common(all_sites):
    FF = ET[4:8]
    o = ["L2_rare_common:"]
    FT = [VT0, VT1, RD, RD + 1]
    for qb in range(4):
        if TR[0]:
            o.append(f"v_lshrrev_b32 v{ET[0]}, 4, v{VLANE16}")
            o.append(f"v_and_b32 v{ET[0]}, 0x30, v{ET[0]}")
            for r in range(4): o.append(f"ds_bpermute_b32 v{FT[r]}, v{ET[0]}, v{FF[qb]} offset:{4*r}")
            o.append("s_waitcnt lgkmcnt(0)")
        for fb in range(16):
            for r in range(4):
                a = O(fb, qb) + r
                t = ET[r]
                o.append(f"v_accvgpr_read_b32 v{t}, a{a}")
            for r in range(4):
                o.append(f"v_mul_f32 v{ET[r]}, v{ET[r]}, v{FT[r] if TR[0] else FF[qb]}")
            for r in range(4):
                o.append(f"v_accvgpr_write_b32 a{O(fb,qb)+r}, v{ET[r]}")
    o.append("s_nop 3")
    for st in all_sites[:-1]:
        o.append(f"s_cmp_eq_u32 s{S_SITE}, {st}")
        o.append(f"s_cbranch_scc1 L2_ret{st}")
    o.append(f"s_branch L2_ret{all_sites[-1]}")
    return o


def srd(o, d, off, nbytes, extra_sgpr=None):
    o.append(f"s_add_u32 s{d}, s4, 0x{off & 0xffffffff:x}")
    o.append(f"s_addc_u32 s{d+1}, s5, 0")
    if extra_sgpr is not None:
        o.append(f"s_add_u32 s{d}, s{d}, s{extra_sgpr}")
        o.append(f"s_addc_u32 s{d+1}, s{d+1}, 0")
    o.append(f"s_mov_b32 s{d+2}, 0x{nbytes:x}")
    o.append(f"s_mov_b32 s{d+3}, 0x00020000")


def epilogue(sg_tail, opt):
    conv = []
    for t in range(8):
        q = []
        for qb in range(4):
            st = (t * 4 + qb) * 4
            tmp = [128 + (qb % 2) * 8 + r for r in range(8)]
            for k in range(8):
                q.append((1, f"v_accvgpr_read_b32 v{tmp[k]}, a{O(2*t+k//4,qb)+k%4}"))
            for r in range(4):
                q.append((1, f"v_cvt_pk_bf16_f32 v{st+r}, v{tmp[2*r]}, v{tmp[2*r+1]}"))
            so = 40 + qb if t < 4 else 44 + qb
            q.append((1, f"buffer_store_dwordx4 {vr(st)}, v{VLANE16}, s[{SRD_OP}:{SRD_OP+3}], s{so} offen offset:{(t%4)*1024}{opt.get('st','')}"))
        conv.append(q)
    nm = len(sg_tail.mf)
    assert nm == 64
    for t in range(8):
        g0 = 8 * t + 12
        if g0 <= nm - 1:
            sg_tail.fill(conv[t], g0, min(g0 + 7, nm - 1), cap=7)
        else:
            sg_tail.put(nm - 1, "s_nop 7")
            for c, x in conv[t]:
                sg_tail.put(nm - 1, x, c)
    return sg_tail.text() + ml_store(opt)


def ml_store(opt):
    o = []
    for qb in range(4):
        l = LA[qb]
        o.append(f"v_mov_b32 v{VT1}, v{l}")
        o.append("s_nop 1")
        o.append(f"v_permlane32_swap_b32 v{l}, v{VT1}")
        o.append("s_nop 1")
        o.append(f"v_add_f32 v{l}, v{l}, v{VT1}")
        o.append(f"v_mov_b32 v{VT1}, v{l}")
        o.append("s_nop 1")
        o.append(f"v_permlane16_swap_b32 v{l}, v{VT1}")
        o.append("s_nop 1")
        o.append(f"v_add_f32 v{ET[2*qb+1]}, v{l}, v{VT1}")
        o.append(f"v_mov_b32 v{ET[2*qb]}, v{M[qb]}")
    o.append(f"v_lshlrev_b32 v{VT0}, 2, v{VLANE16}")
    o.append("s_mov_b64 exec, 0xffff")
    for qb in range(4):
        o.append(f"buffer_store_dwordx2 v[{ET[2*qb]}:{ET[2*qb+1]}], v{VT0}, s[{SRD_ML}:{SRD_ML+3}], s48 offen offset:{qb*1024}{opt.get('st','')}")
    return o


def tail_run(p, T, site0, opt):
    negm = lambda qb: vr(NEGM(qb))
    VB = [VTR, [Q(0, 3), Q(0, 3) + 1], [Q(0, 3) + 2, Q(0, 3) + 3]]
    nsp = max(T - 3, 0)
    def ploc(k, final=True):
        if k == T - 1: return lambda qb: Q(qb, 0)
        if k < nsp and final: return lambda qb, k=k: Q(qb, 1 + k)
        return lambda qb, k=k: P((p + k) & 1, qb)
    def kfr(k, h):
        i = (1 - p) + (k - 1)
        fr = []
        for ds in range(8):
            off = (i & 1) * 16384 + foff(h, ds)
            rd = [lambda f, off=off, i=i: f"ds_read_b128 {vr(f)}, v{KB[i >> 1]} offset:{off}"]
            ms = []
            for qb in range(4):
                c = negm(qb) if ds == 0 else vr(S(h, qb))
                ms.append(lambda f, qb=qb, ds=ds, c=c: f"v_mfma_f32_16x16x32_bf16 {vr(S(h,qb))}, {vr(f)}, {vr(Q(qb,ds))}, {c}")
            fr.append((rd, ms))
        return fr
    def vfr(k, fb, final=True):
        i = p + k
        rd = [lambda f, kb=kb: f"ds_read_b64_tr_b16 v[{f+2*kb}:{f+2*kb+1}], v{VB[i >> 1][fb & 1]} offset:{(i & 1) * 16384 + foff(kb, fb >> 1)}" for kb in range(2)]
        pl = ploc(k, final)
        ms = [lambda f, qb=qb: pvm(O(fb, qb), f, pl(qb)) for qb in range(4)]
        return (rd, ms)
    fr = [vfr(0, fb, False) for fb in range(4)]
    blocks = [(1, 1)] + [(k, h) for k in range(2, T) for h in range(2)]
    for k, h in blocks: fr += kfr(k, h)
    G = 4 * len(fr)
    lead = opt.get('lead', 44)
    order = []
    fb = 0
    while 4 * len(order) < lead or fb % 2:
        order += [(k, fb) for k in range(T - 1) if not (k == 0 and fb < 4)]
        fb += 1
    glast = G + 4 * len(order)
    order += [(T - 1, x) for x in range(fb)]
    for x in range(fb, 16):
        order += [(k, x) for k in range(T) if not (k == 0 and x < 4)]
    done = {}
    for i, (k, x) in enumerate(order): done[x] = G + 4 * i + 3
    fr += [vfr(k, x) for k, x in order]
    sg = build_seg(fr, [])
    nm = len(sg.mf)
    if opt.get('fuse'):
        import gen_f
        for x in gen_f.tail_entry(p): sg.put(-1, x)
    if opt.get('timing') and not opt.get('ft'):
        for i, gg in enumerate([30, 47, 111, G - 1, glast, (glast + nm) // 2, nm - 20]):
            sg.put(gg, f"s_memtime s[{74+2*i}:{75+2*i}]", 0)
    g = 0
    for k in range(3, T):
        sg.put(g, f"s_mov_b32 m0, s{S_M0}")
        for j in range(4):
            sg.put(g + 1 + j, f"buffer_load_dwordx4 v{VDMA}, s[{SRD_K}:{SRD_K+3}], s{S_OFF} offen offset:{j*1024} lds")
        if k + 1 < T:
            sg.put(g + 5, f"s_add_u32 s{S_OFF}, s{S_OFF}, 0x4000\ns_add_u32 s{S_M0}, s{S_M0}, 0x4000\ns_and_b32 s{S_M0}, s{S_M0}, 0x1ffff", 2)
        g += 6
    for k in range(2, T):
        gb = 16 + 32 * (2 * k - 3) - 15
        sg.put(gb, f"s_waitcnt vmcnt({4 * (T - 1 - k)})")
        sg.put(gb, "s_barrier")
    sg.put(1, f"v_add_u32 v{VSP}, s50, v{VLANE16}")
    for b in (1, 2):
        if 2 * b <= (1 - p) + (T - 2):
            sg.put(12 + b, f"v_add_u32 v{KB[b]}, 0x{0x8000*b:x}, v{VK}")
            sg.put(12 + b, f"v_and_b32 v{KB[b]}, 0x1ffff, v{KB[b]}")
    GL = G - 32
    for b in (1, 2):
        if 2 * b <= p + T - 1:
            sg.put(GL + 13 + b, f"v_add_u32 v{VB[b][0]}, 0x{0x8000*b:x}, v{VTR[0]}")
            sg.put(GL + 13 + b, f"v_and_b32 v{VB[b][0]}, 0x1ffff, v{VB[b][0]}")
            sg.put(GL + 16, f"v_xor_b32 v{VB[b][1]}, 32, v{VB[b][0]}")
    for k in range(nsp):
        gs = 16 if k == 0 else 16 + 32 * 2 * k
        for qb in range(4):
            sg.put(gs + qb, f"ds_write_b128 v{VSP}, {vr(ploc(k, False)(qb))} offset:{k*4096 + qb*1024}")
            sg.put(GL + 4 * (k + 2) + 1 + (qb & 1) + (qb >> 1) * 4, f"ds_read_b128 {vr(ploc(k)(qb))}, v{VSP} offset:{k*4096 + qb*1024}")
    rare = []
    sites = []
    sms = [(k, h) for k in range(1, T) for h in range(2)]
    cap = opt.get('tcap', 3)
    for i, (k, h) in enumerate(sms):
        st = site0 + i
        sites.append(st)
        g0 = 6 if i == 0 else 16 + 32 * i + (4 if i == len(sms) - 2 else 1)
        g1 = 16 + 32 * i + 31 if i < len(sms) - 1 else glast - 2
        q = softmax_queue(h, ploc(k, False), st)
        c = 2 if (i == 0 or i == len(sms) - 1) else cap
        ge = sg.fill(q[:-1], g0, g1, cap=c)
        sg.put(max(ge, g1 - 2) if i == len(sms) - 2 or i == 0 or (h == 0 and 1 <= k - 1 < nsp) else ge, q[-1][1])
        late = i >= len(sms) - 2
        live = [ploc(j, late) for j in range(k) if late or j >= nsp or (j > 0 and i < 2 * j)]
        spl = [j for j in range(nsp) if j < k and not late and not (j > 0 and i < 2 * j)]
        rare += rare_code(f"t{p}_{i}", h, [st], ploc(k, False), live, spl)
        if opt.get('verbose'): print("tail", p, "sm", k, h, "end", ge, "of", g1, "live", [f(0) for f in live], "spill", spl)
    g = glast
    ccap = opt.get('ccap', 3)
    if opt.get('mle'):
        q = [(1, f"v_lshlrev_b32 v{VT0}, 2, v{VLANE16}")]
        for f in ("v_mov_b32 v{e}, v{l}", "v_permlane32_swap_b32 v{l}, v{e}", "v_add_f32 v{l}, v{l}, v{e}", "v_mov_b32 v{e}, v{l}",
                  "v_permlane16_swap_b32 v{l}, v{e}", "v_add_f32 v{e1}, v{l}, v{e}", "v_mov_b32 v{e}, v{m}"):
            q += [(1, f.format(e=ET[2*qb], e1=ET[2*qb+1], l=LA[qb], m=M[qb])) for qb in range(4)]
        q.append((3, "\n".join(ml_store(opt)[-5:] + ["s_mov_b64 exec, -1"])))
        g = sg.fill(q, g, nm - 1, cap=opt['mle'])
    if opt.get('fuse'):
        g = sg.fill(gen_f.early(p, opt), g, nm - 1, cap=opt.get('ecap', 3))
    for t in range(8):
        q = []
        for qb in range(4):
            stg = Q(qb, 4 + t % 4)
            tmp = [128 + (qb % 4) * 8 + r for r in range(8)]
            for k in range(8):
                q.append((1, f"v_accvgpr_read_b32 v{tmp[k]}, a{O(2*t+k//4,qb)+k%4}"))
            for r in range(4):
                q.append((1, f"v_cvt_pk_bf16_f32 v{stg+r}, v{tmp[2*r]}, v{tmp[2*r+1]}"))
            so = 40 + qb if t < 4 else 44 + qb
            q.append((1, f"buffer_store_dwordx4 {vr(stg)}, v{VLANE16}, s[{SRD_OP}:{SRD_OP+3}], s{so} offen offset:{(t%4)*1024}{opt.get('st','')} ; ST{t}"))
        if opt.get('nost'): q = [x for x in q if 'store' not in x[1]]
        if opt.get('nocv'): q = [x for x in q if 'store' in x[1]]
        cc = ccap[t] if isinstance(ccap, list) else ccap
        px = opt.get('plainx', 4 * opt.get('plain', 8))
        q = [(c, x.replace(opt.get('st', ''), '') if (4 * t + i // 13 >= px if px >= 0 else 4 * t + i // 13 < -px) else x) for i, (c, x) in enumerate(q)]
        if opt.get('half'):
            qa = [x for i, x in enumerate(q) if i % 13 in (0, 1, 2, 3, 8, 9)]
            q = [x for i, x in enumerate(q) if i % 13 not in (0, 1, 2, 3, 8, 9)]
            g = sg.fill(qa, max(g, done[2*t] + 3), nm - 1, cap=cc)
        g0 = max(g, max(done[2*t], done[2*t+1]) + 3)
        if g0 > nm - 1:
            if not opt.get('half'): sg.put(nm - 1, "s_nop 7")
            g0 = nm - 1
        g = sg.fill(q, g0, nm - 1, cap=cc)
        if opt.get('verbose'): print("  conv", t, g0, g, "of", nm)
        if opt.get('fuse') and t == opt.get('hlt', 1):
            g = sg.fill(gen_f.early_hl(p, opt), g, nm - 1, cap=opt.get('ecap', 3))
        if opt.get('fuse'):
            wl = [(1, gen_f.wload(k // 32, k % 32)) for k in range(8 * t, min(8 * t + 8, opt.get('fna', 0)))]
            if opt.get('fwsp'): wl = [y for x in wl for y in (x, (opt.get('fwsp'), None))]
            gw = g
            for c, x in wl:
                if x is None: gw = min(gw + c, nm - 1)
                else: gw = sg.fill([(c, x)], gw, nm - 1, cap=opt.get('wcap', 3))
            if not opt.get('fwsp'): g = gw
        for i, c in enumerate(opt.get('tch') or []):
            if c == t: g = sg.fill([(1, f"WAIT ST{2*i+1}"), (1, gen_f.touch(2 * i, opt))], g, nm - 1, cap=3)
    if opt.get('fuse'):
        return gen_f.fix_waithl(sg.text()), rare + gen_f.hl_spin(p), sites
    return sg.text() + ([] if opt.get('mle') else ml_store(opt)), rare, sites


def light(o, opt, TT):
    A = o.append
    LB0 = 0x16000
    KF = 32; VF = 96; OV = lambda fb: 160 + fb * 4 if fb < 8 else 0
    QL = lambda ds: ds * 4
    KFr = lambda h, ds: 32 + (h * 8 + ds) * 4
    VFr = lambda fb: 96 + fb * 4
    SL = [160, 164]; PL = 168; MM, LL, FF, T0, T1 = 172, 173, 174, 175, 176
    AK, AV0, AV1 = 177, 178, 179
    TM = 180
    MK = NEGM(0)
    S_N, S_SL, S_DS, S_T = 51, 52, 53, 54
    A("LT_start:")
    A("s_waitcnt lgkmcnt(0)")
    srd(o, SRD_K, H_OFF, 0)
    A(f"s_mov_b32 s{SRD_K+2}, s49")
    srd(o, SRD_Q, QF_OFF, QF_BYTES)
    A(f"s_mov_b32 s40, {39 * 16 * 8192}")
    A(f"s_mov_b32 s44, {39 * 16 * 8192 + 4096}")
    for ds in range(8):
        A(f"buffer_load_dwordx4 {vr(QL(ds))}, v{VLANE16}, s[{SRD_Q}:{SRD_Q+3}], s{40 if ds < 4 else 44} offen offset:{(ds%4)*1024}")
    def dma(so):
        for w in range(4):
            A(f"s_add_u32 m0, s{S_DS}, {LB0 + w*4096}")
            A(f"s_add_u32 s{S_T}, s{so}, {w*128}")
            for k in range(4):
                A(f"buffer_load_dwordx4 v{VDMA}, s[{SRD_K}:{SRD_K+3}], s{S_T} offen offset:{k*1024} lds")
        A(f"s_add_u32 s{S_DS}, s{S_DS}, 0x4000")
        A(f"s_and_b32 s{S_DS}, s{S_DS}, 0xffff")
    A(f"s_mov_b32 s{S_DS}, 0")
    dma(39)
    for i in range(2):
        dma(S_OFF)
        A(f"s_add_u32 s{S_OFF}, s{S_OFF}, 0x4000")
    A(f"s_mul_i32 s35, s37, 0x{OP_STRIDE:x}")
    srd(o, SRD_OP, OP_OFF, QF_BYTES, 35)
    srd(o, SRD_ML, ML_OFF, NB16 * 1024)
    A(f"s_lshl_b32 s48, s37, 3")
    A(f"s_add_u32 s48, s48, {39 * 16 * 1024}")
    lds_addrs(A)
    A(f"s_add_u32 s{S_N}, s{S_CNT}, {TT or 2}")
    A(f"s_mov_b32 s{S_SL}, {LB0}")
    A(f"v_mov_b32 v{MM}, 0xff800000")
    A(f"v_mov_b32 v{LL}, 0")
    for r in range(64): A(f"v_accvgpr_write_b32 a{r}, 0")
    A("LT_loop:")
    dma(S_OFF)
    A(f"s_add_u32 s{S_OFF}, s{S_OFF}, 0x4000")
    A(f"v_add_u32 v{AK}, s{S_SL}, v{VK}")
    A(f"v_add_u32 v{AV0}, s{S_SL}, v{VTR[0]}")
    A(f"v_add_u32 v{AV1}, s{S_SL}, v{VTR[1]}")
    A(f"s_add_u32 s{S_SL}, s{S_SL}, 0x4000")
    A(f"s_cmp_eq_u32 s{S_SL}, {LB0 + 0x10000}")
    A(f"s_cselect_b32 s{S_SL}, {LB0}, s{S_SL}")
    A("s_waitcnt vmcnt(48)")
    for ds in range(8):
        for h in range(2):
            A(f"ds_read_b128 {vr(KFr(h, ds))}, v{AK} offset:{foff(h, ds)}")
    for ds in range(8):
        A(f"s_waitcnt lgkmcnt({14 - 2*ds})")
        for h in range(2):
            A(f"v_mfma_f32_16x16x32_bf16 {vr(SL[h])}, {vr(KFr(h, ds))}, {vr(QL(ds))}, {vr(SL[h]) if ds else vr(MK)}")
    for fb in range(16):
        for kb in range(2):
            A(f"ds_read_b64_tr_b16 v[{VFr(fb)+2*kb}:{VFr(fb)+2*kb+1}], v{AV1 if fb & 1 else AV0} offset:{foff(kb, fb >> 1)}")
    for r in range(4): A(f"v_mov_b32 v{MK+r}, 0")
    A("s_nop 7")
    A(f"v_max3_f32 v{T0}, v{SL[0]}, v{SL[0]+1}, v{SL[0]+2}")
    A(f"v_max3_f32 v{T0}, v{T0}, v{SL[0]+3}, v{SL[1]}")
    A(f"v_max3_f32 v{T0}, v{T0}, v{SL[1]+1}, v{SL[1]+2}")
    A(f"v_max3_f32 v{T0}, v{T0}, v{SL[1]+3}, v{MM}")
    for sw in ("v_permlane32_swap_b32", "v_permlane16_swap_b32"):
        A(f"v_mov_b32 v{T1}, v{T0}")
        A("s_nop 1")
        A(f"{sw} v{T0}, v{T1}")
        A("s_nop 1")
        A(f"v_max_f32 v{T0}, v{T0}, v{T1}")
    if TR[0]: A(f"v_ceil_f32 v{T0}, v{T0}")
    A(f"v_sub_f32 v{FF}, v{MM}, v{T0}")
    A(f"v_exp_f32 v{FF}, v{FF}")
    A(f"v_mov_b32 v{MM}, v{T0}")
    for r in range(8): A(f"v_sub_f32 v{SL[0]+r}, v{SL[0]+r}, v{MM}")
    for r in range(8): A(f"v_exp_f32 v{SL[0]+r}, v{SL[0]+r}")
    A(f"v_mul_f32 v{LL}, v{LL}, v{FF}")
    for r in range(4): A(f"v_cvt_pk_bf16_f32 v{PL+r}, v{SL[0]+2*r}, v{SL[0]+2*r+1}")
    A(f"v_cmp_neq_f32 vcc, 1.0, v{FF}")
    for r in range(8): A(f"v_add_f32 v{LL}, v{LL}, v{SL[0]+r}")
    A("s_cbranch_vccz LT_nors")
    if TR[0]:
        A(f"v_lshrrev_b32 v{T1}, 4, v{VLANE16}")
        A(f"v_and_b32 v{T1}, 0x30, v{T1}")
        for r in range(4): A(f"ds_bpermute_b32 v{188+r}, v{T1}, v{FF} offset:{4*r}")
        A("s_waitcnt lgkmcnt(0)")
    for c in range(8):
        for r in range(8): A(f"v_accvgpr_read_b32 v{TM+r}, a{8*c+r}")
        for r in range(8): A(f"v_mul_f32 v{TM+r}, v{TM+r}, v{188 + r % 4 if TR[0] else FF}")
        for r in range(8): A(f"v_accvgpr_write_b32 a{8*c+r}, v{TM+r}")
    A("LT_nors:")
    A("s_waitcnt lgkmcnt(0)")
    A("s_nop 1")
    for fb in range(16):
        A(pvm(fb * 4, VFr(fb), PL))
    A(f"s_sub_u32 s{S_N}, s{S_N}, 1")
    A(f"s_cmp_lg_u32 s{S_N}, 0")
    A("s_cbranch_scc1 LT_loop")
    A("s_nop 15")
    for t in range(8):
        for r in range(8): A(f"v_accvgpr_read_b32 v{TM+r}, a{8*t+r}")
        for r in range(4): A(f"v_cvt_pk_bf16_f32 v{32+4*t+r}, v{TM+2*r}, v{TM+2*r+1}")
        A(f"buffer_store_dwordx4 {vr(32+4*t)}, v{VLANE16}, s[{SRD_OP}:{SRD_OP+3}], s{40 if t < 4 else 44} offen offset:{(t%4)*1024}{opt.get('st','')}")
    for sw in ("v_permlane32_swap_b32", "v_permlane16_swap_b32"):
        A(f"v_mov_b32 v{T1}, v{LL}")
        A("s_nop 1")
        A(f"{sw} v{LL}, v{T1}")
        A("s_nop 1")
        A(f"v_add_f32 v{LL}, v{LL}, v{T1}")
    A(f"v_lshlrev_b32 v{T0}, 2, v{VLANE16}")
    A("s_mov_b64 exec, 0xffff")
    A(f"buffer_store_dwordx2 v[{MM}:{LL}], v{T0}, s[{SRD_ML}:{SRD_ML+3}], s48 offen{opt.get('st','')}")
    if opt.get('fuse'):
        import gen_f
        srd(o, 16, gen_f.FLAG_OFF, gen_f.NFLAG * gen_f.fstr(opt))
        A(f"s_add_u32 s48, s37, {156 * 8}")
        A(f"s_mul_i32 s48, s48, {gen_f.fstr(opt)}")
    A("s_waitcnt vmcnt(0)")
    if opt.get('fuse'): gen_f.publish(A, 16, 48, T0, opt)
    A("s_branch L2_fin")


def lds_addrs(A):
    L = VLANE16
    A(f"v_bfe_u32 v{VK}, v{L}, 4, 3")
    A(f"v_lshlrev_b32 v{VK}, 6, v{VK}")
    A(f"v_bfe_u32 v{VT0}, v{L}, 7, 1")
    A(f"v_lshl_or_b32 v{VK}, v{VT0}, 10, v{VK}")
    A(f"v_bfe_u32 v{VT0}, v{L}, 8, 2")
    A(f"v_lshl_or_b32 v{VK}, v{VT0}, 4, v{VK}")
    A(f"v_bfe_u32 v{VT0}, v{L}, 6, 1")
    A(f"v_lshlrev_b32 v{VT0}, 5, v{VT0}")
    A(f"v_xor_b32 v{VK}, v{VK}, v{VT0}")
    A(f"v_and_b32 v{VTR[0]}, 0x1c0, v{L}")
    A(f"v_bfe_u32 v{VT0}, v{L}, 9, 1")
    A(f"v_lshl_or_b32 v{VTR[0]}, v{VT0}, 10, v{VTR[0]}")
    A(f"v_bfe_u32 v{VT0}, v{L}, 8, 1")
    A(f"v_lshl_or_b32 v{VTR[0]}, v{VT0}, 5, v{VTR[0]}")
    A(f"v_bfe_u32 v{VT0}, v{L}, 4, 2")
    A(f"v_lshl_or_b32 v{VTR[0]}, v{VT0}, 3, v{VTR[0]}")
    A(f"v_xor_b32 v{VTR[1]}, 32, v{VTR[0]}")
    A(f"v_bfe_i32 v{VT0}, v{L}, 8, 1")
    for r in range(4):
        A(f"v_and_b32 v{NEGM(0)+r}, s{S_MASK}, v{VT0}")


def prologue2(o, opt, T):
    A = o.append
    Z = ET[0]
    for r in range(4):
        A(f"v_mov_b32 v{Z+r}, 0")
    nvm = [6]
    qidx = {}
    zi = 0
    for ds in range(8):
        for qb in range(4):
            so = 40 + qb if ds < 4 else 44 + qb
            A(f"buffer_load_dwordx4 {vr(Q(qb,ds))}, v{VLANE16}, s[{SRD_Q}:{SRD_Q+3}], s{so} offen offset:{(ds%4)*1024}")
            nvm[0] += 1
            qidx[(ds, qb)] = nvm[0]
            if qb % 2 == 1:
                A(f"v_mfma_f32_32x32x16_bf16 a[{16*zi}:{16*zi+15}], {vr(Z)}, {vr(Z)}, 0")
                zi += 1
    T(1)
    if opt.get('fuse'):
        import gen_f; gen_f.prologue(A, o, opt)
    lds_addrs(A)
    items = []
    dm = lambda k: (1, f"buffer_load_dwordx4 v{VDMA}, s[{SRD_K}:{SRD_K+3}], s{S_OFF} offen offset:{k*1024} lds")
    items += [dm(2), dm(3)]
    items.append((0, f"s_add_u32 s{S_OFF}, s{S_OFF}, 0x4000\ns_add_u32 m0, s{S_M0}, 0x8000\ns_nop 0"))
    items += [dm(k) for k in range(4)]
    items.append((0, f"s_add_u32 s{S_OFF}, s{S_OFF}, 0x4000\ns_add_u32 s{S_M0}, s{S_M0}, 0xc000"))
    spre = opt.get('spre', 0)
    while spre > 0:
        v, t = items.pop(0)
        A(t); nvm[0] += v; spre -= v
    T(2)
    A(f"s_waitcnt vmcnt({nvm[0]-6})")
    A("s_barrier")
    T(3)
    TB = P_BASE[1]
    dst = [S_BASE[0], S_BASE[1], TB]
    fr = []
    for ds in range(8):
        for b in range(3):
            ms = []
            for qb in range(4):
                d = vr(dst[b] + 4 * qb)
                c0 = vr(NEGM(0)) if b < 2 else '0'
                ms.append(lambda f, qb=qb, ds=ds, d=d, c0=c0: f"v_mfma_f32_16x16x32_bf16 {d}, {vr(f)}, {vr(Q(qb,ds))}, {d if ds else c0}")
            fr.append((kread((b >> 1) * 16384 + foff(b & 1, ds)), ms))
    for i in range(RING):
        A(fr[i][0][0](F(i)))
    sg = build_seg(fr, [])
    per = opt.get('sper', 3)
    for ds in range(8):
        g = 12 * ds - 1
        sg.put(g, f"s_waitcnt vmcnt({nvm[0]-qidx[(ds,3)]})")
        k = 0
        gg = g + 2
        while items and (k < per or ds == 7):
            v, t = items.pop(0)
            sg.put(min(gg, 95), t); nvm[0] += v; k += v; gg += 2
    o += sg.text()
    T(6)
    R4 = range(4)
    s0 = lambda qb: S(0, qb)
    s1 = lambda qb: S(1, qb)
    for qb in R4: A(f"v_max3_f32 v{M[qb]}, v{s0(qb)}, v{s0(qb)+1}, v{s0(qb)+2}")
    for qb in R4: A(f"v_max3_f32 v{M[qb]}, v{M[qb]}, v{s0(qb)+3}, v{s1(qb)}")
    for qb in R4: A(f"v_max3_f32 v{M[qb]}, v{M[qb]}, v{s1(qb)+1}, v{s1(qb)+2}")
    for qb in R4: A(f"v_max_f32 v{M[qb]}, v{M[qb]}, v{s1(qb)+3}")
    for sw in ("v_permlane32_swap_b32", "v_permlane16_swap_b32"):
        for qb in R4: A(f"v_mov_b32 v{ET[qb]}, v{M[qb]}")
        for qb in R4: A(f"{sw} v{M[qb]}, v{ET[qb]}")
        for qb in R4: A(f"v_max_f32 v{M[qb]}, v{M[qb]}, v{ET[qb]}")
    if TR[0]:
        for qb in R4: A(f"v_ceil_f32 v{M[qb]}, v{M[qb]}")
    for h in range(2):
        for qb in R4:
            for r in R4: A(f"v_sub_f32 v{S(h,qb)+r}, v{S(h,qb)+r}, v{M[qb]}")
            for r in R4: A(f"v_exp_f32 v{S(h,qb)+r}, v{S(h,qb)+r}")
            if h == 0:
                for r in R4: A(f"v_sub_f32 v{NEGM(qb)+r}, 0, v{M[qb]}")
        if h == 0:
            A("s_waitcnt vmcnt(4)")
            A("s_barrier")
            for i in range(RING):
                for x in vread(0, i): A(x(F(i)))
    T(7)
    for h in range(2):
        for qb in R4:
            s = S(h, qb)
            A(f"v_cvt_pk_bf16_f32 v{P(0,qb)+2*h}, v{s}, v{s+1}")
            A(f"v_cvt_pk_bf16_f32 v{P(0,qb)+2*h+1}, v{s+2}, v{s+3}")
    for qb in R4: A(f"v_add_f32 v{LA[qb]}, v{s0(qb)}, v{s0(qb)+1}")
    for qb in R4: A(f"v_add_f32 v{LB[qb]}, v{s0(qb)+2}, v{s0(qb)+3}")
    for r in R4:
        for qb in R4:
            t = LA if r % 2 == 0 else LB
            A(f"v_add_f32 v{t[qb]}, v{t[qb]}, v{s1(qb)+r}")
    for qb in R4: A(f"v_add_f32 v{LA[qb]}, v{LA[qb]}, v{LB[qb]}")
    for qb in R4:
        for r in R4: A(f"v_sub_f32 v{s0(qb)+r}, v{TB+4*qb+r}, v{M[qb]}")


def gen_k2(opt=None):
    opt = opt or {}
    TR[0] = opt.get('tr', opt.get('fuse', 0))
    o = []
    A = o.append
    def T(i):
        if opt.get('timing'): A(f"s_memtime s[{74+2*i}:{75+2*i}]")
    A("s_load_dwordx2 s[4:5], s[0:1], %d" % KA_WS)
    if opt.get('fuse'):
        import gen_f
        A("s_load_dwordx2 s[52:53], s[0:1], %d" % KA_X)
        A("s_load_dwordx2 s[54:55], s[0:1], %d" % KA_DEG)
        A("s_load_dwordx2 s[56:57], s[0:1], %d" % KA_OUT)
    if opt.get('timing'):
        A("s_memtime s[62:63]")
        A("s_memrealtime s[64:65]")
    A("s_and_b32 s35, s2, 7")
    A("s_lshr_b32 s37, s2, 3")
    A("s_cmp_ge_u32 s37, 30")
    A("s_cbranch_scc1 LE_start")
    if opt.get('map', 1) == 1:
        A("s_mul_i32 s38, s37, 52")
        A("s_lshr_b32 s38, s38, 8")
        A("s_mul_i32 s39, s38, 5")
        A("s_sub_u32 s39, s37, s39")
        A("s_mov_b32 s37, s38")
        A("s_mul_i32 s38, s35, 5")
        A("s_add_u32 s38, s38, s39")
    else:
        A("s_mul_i32 s38, s37, 26")
        A("s_lshr_b32 s38, s38, 8")
        A("s_mul_i32 s39, s38, 10")
        A("s_sub_u32 s39, s37, s39")
        A("s_and_b32 s37, s35, 1")
        A("s_mul_i32 s37, s37, 3")
        A("s_add_u32 s37, s37, s38")
        A("s_lshr_b32 s38, s35, 1")
        A("s_mul_i32 s38, s38, 10")
        A("s_add_u32 s38, s38, s39")
    A("v_lshrrev_b32 v1, 6, v0")
    A(f"v_and_b32 v{VLANE16}, 63, v0")
    A(f"v_lshlrev_b32 v{VLANE16}, 4, v{VLANE16}")
    A(f"v_readfirstlane_b32 s{S_WAVE}, v1")
    cnts = opt.get('cnts', [52, 52, 52, 52, 52, 53])
    assert sum(cnts) == NT and len(cnts) == NSPLIT
    st = [sum(cnts[:i]) for i in range(NSPLIT)] + [NT - 1]
    pk = sum(x << (9 * i) for i, x in enumerate(st))
    A(f"s_mov_b32 s50, 0x{pk & 0xffffffff:x}")
    A(f"s_mov_b32 s51, 0x{pk >> 32:x}")
    A(f"s_mul_i32 s39, s37, 9")
    A(f"s_lshr_b64 s[50:51], s[50:51], s39")
    A(f"s_and_b32 s39, s50, 0x1ff")
    A(f"s_bfe_u32 s49, s50, 0x90009")
    A(f"s_sub_u32 s{S_CNT}, s49, s39")
    TT = opt.get('trun', 0)
    A(f"s_sub_u32 s{S_CNT}, s{S_CNT}, {TT or 2}")
    A(f"s_lshl_b32 s39, s39, 14")
    A(f"s_lshl_b32 s49, s49, 14")
    A(f"s_add_u32 s{S_OFF}, s39, 0x4000")
    A(f"s_cmp_eq_u32 s37, {NSPLIT-1}")
    A(f"s_addc_u32 s{S_CNT}, s{S_CNT}, 0")
    A(f"s_cmp_eq_u32 s37, {NSPLIT-1}")
    A(f"s_cselect_b32 s{S_OFF}, s39, s{S_OFF}")
    A(f"s_cselect_b32 s39, {(NT-1)*16384}, s39")
    A(f"s_cselect_b32 s49, {NT*16384}, s49")
    A(f"s_cselect_b32 s{S_MASK}, 0xff800000, 0")
    A(f"s_mov_b32 s{S_THR}, 0x5d800000")
    A("v_and_b32 v2, 63, v0")
    A("v_bfe_u32 v3, v2, 3, 2")
    A("v_bfe_u32 v4, v2, 2, 1")
    A(f"v_lshlrev_b32 v{VDMA}, 12, v3")
    A(f"v_lshl_or_b32 v{VDMA}, v4, 9, v{VDMA}")
    A(f"v_lshl_or_b32 v{VDMA}, v1, 7, v{VDMA}")
    A("v_lshrrev_b32 v4, 5, v2")
    A(f"v_lshl_or_b32 v{VDMA}, v4, 6, v{VDMA}")
    A("v_and_b32 v3, 2, v3")
    A("v_and_b32 v4, 3, v2")
    A("v_xor_b32 v3, v3, v4")
    A(f"v_lshl_or_b32 v{VDMA}, v3, 4, v{VDMA}")
    if opt.get('light'):
        A("s_cmp_eq_u32 s38, 39")
        A("s_cbranch_scc1 LT_disp")
    A(f"s_lshl_b32 s{S_M0}, s{S_WAVE}, 12")
    A(f"s_lshl_b32 s50, s{S_WAVE}, 13")
    A(f"s_add_u32 s50, s50, 0x20000")
    A(f"s_mov_b32 m0, s{S_M0}")
    A("s_waitcnt lgkmcnt(0)")
    T(0)
    srd(o, SRD_K, H_OFF, 0)
    A(f"s_mov_b32 s{SRD_K+2}, s49")
    for k in range(4):
        A(f"buffer_load_dwordx4 v{VDMA}, s[{SRD_K}:{SRD_K+3}], s39 offen offset:{k*1024} lds")
    A(f"s_add_u32 m0, s{S_M0}, 0x4000")
    srd(o, SRD_Q, QF_OFF, QF_BYTES)
    for k in range(2):
        A(f"buffer_load_dwordx4 v{VDMA}, s[{SRD_K}:{SRD_K+3}], s{S_OFF} offen offset:{k*1024} lds")
    A(f"s_mul_i32 s35, s37, 0x{OP_STRIDE:x}")
    srd(o, SRD_OP, OP_OFF, QF_BYTES, 35)
    srd(o, SRD_ML, ML_OFF, NB16 * 1024)
    A(f"s_lshl_b32 s35, s38, 4")
    A(f"s_lshl_b32 s41, s{S_WAVE}, 2")
    A(f"s_add_u32 s35, s35, s41")
    A(f"s_lshl_b32 s40, s35, 13")
    for qb in range(1, 4):
        A(f"s_add_u32 s{40+qb}, s40, {qb*8192}")
    for qb in range(4):
        A(f"s_add_u32 s{44+qb}, s{40+qb}, 4096")
    A(f"s_lshl_b32 s48, s35, 10")
    A(f"s_lshl_b32 s35, s37, 3")
    A(f"s_add_u32 s48, s48, s35")
    prologue2(o, opt, T)
    A("s_nop 1")
    if opt.get('timing'):
        A("s_memtime s[66:67]")
        A("s_waitcnt lgkmcnt(0)")
    sites = {}
    n = 0
    for kind in ('loop', 'tail2'):
        for p in (0, 1):
            sites[(kind, p)] = (n, n + 1)
            n += 2
    rares = []; alls = list(range(4 if TT else n))
    A(".p2align 6")
    A("L2_loop:")
    o += body(0, 'loop', sites[('loop', 0)], opt).text()
    A("s_cbranch_scc1 L2_tail_1")
    o += body(1, 'loop', sites[('loop', 1)], opt).text()
    A("s_cbranch_scc0 L2_loop")
    for p in (0, 1):
        A(f"L2_tail_{p}:")
        if opt.get('timing'):
            A("s_memtime s[68:69]")
            A("s_waitcnt lgkmcnt(0)")
        if TT:
            tl, rr, ss = tail_run(p, TT, len(alls), opt)
            o += tl; rares += rr; alls += ss
        else:
            o += body(p, 'tail2', sites[('tail2', p)], opt).text()
            A("s_nop 1")
            T(8)
            o += epilogue(body(1 - p, 'tail1', None, opt), opt)
        T(9)
        A("s_branch L2_F" if opt.get('fuse') else "s_branch L2_fin")
    if opt.get('fuse'):
        A("L2_F:")
        nfs = [0]
        def fstamp(A_):
            if opt.get('timing') and opt.get('ft') and nfs[0] < 7:
                A_(f"s_memtime s[{74+2*nfs[0]}:{75+2*nfs[0]}]"); nfs[0] += 1
        o += gen_f.final(opt, fstamp)
        if opt.get('ftwice'):
            A("s_barrier\ns_xor_b32 s31, s31, 1\ns_cbranch_scc1 L2_F")
        A("s_branch L2_fin")
        A("L2_Fend:")
    if opt.get('valu', 1):
        for p in (0, 1):
            for h in (0, 1):
                o += rare_code(p, h, [sites[('loop', p)][h]] + ([] if TT else [sites[('tail2', p)][h]]))
        o += rares
        o += rare_common(alls)
    import gen_eg
    if opt.get('light'):
        A("LT_disp:")
        A(f"s_cmp_eq_u32 s{S_WAVE}, 0")
        A("s_cbranch_scc1 LT_start")
        A(f"s_mov_b32 s{gen_eg.S_W}, s{S_WAVE}")
        A(f"s_mul_i32 s{gen_eg.S_B}, s{S_WAVE}, 6")
        A(f"s_add_u32 s{gen_eg.S_B}, s{gen_eg.S_B}, s37")
        A(f"s_add_u32 s{gen_eg.S_B}, s{gen_eg.S_B}, 42")
        A(f"s_cmp_lt_u32 s{gen_eg.S_B}, {NBK}")
        A("s_cbranch_scc1 LE_common")
        A("s_branch L2_end")
        light(o, opt, TT)
    gen_eg.gen_edge(o, opt)
    A("L2_fin:")
    if opt.get('timing'):
        A("s_mov_b64 exec, -1")
        A("s_waitcnt vmcnt(0)")
        A("s_memtime s[70:71]")
        A("s_memrealtime s[72:73]")
        A("s_waitcnt lgkmcnt(0)")
        A("s_sub_u32 s66, s66, s62")
        A("s_sub_u32 s68, s68, s62")
        A("s_sub_u32 s70, s70, s62")
        for i in range(10):
            A(f"s_sub_u32 s{74+2*i}, s{74+2*i}, s62\nv_mov_b32 v{4+i}, s{74+2*i}")
        A("v_mov_b32 v14, s64\nv_mov_b32 v15, s72")
        A("s_sub_u32 s72, s72, s64")
        A("v_mov_b32 v0, s66\nv_mov_b32 v1, s68\nv_mov_b32 v2, s70\nv_mov_b32 v3, s72")
        A("s_add_u32 s60, s4, 0x%x\ns_addc_u32 s61, s5, 0" % TIM_OFF)
        A("v_mbcnt_lo_u32_b32 v248, -1, 0\nv_mbcnt_hi_u32_b32 v248, -1, v248\nv_lshlrev_b32 v248, 4, v248")
        A("s_mov_b32 s62, 0x100000\ns_mov_b32 s63, 0x00020000")
        A(f"s_lshl_b32 s35, s2, 2")
        A(f"s_add_u32 s35, s35, s{S_WAVE}")
        A(f"s_lshl_b32 s35, s35, 10")
        A(f"buffer_store_dwordx4 v[0:3], v{VLANE16}, s[60:63], s35 offen")
        A("s_add_u32 s35, s35, 0x200000\ns_mov_b32 s62, 0x800000")
        for k in range(3):
            A(f"buffer_store_dwordx4 v[{4+4*k}:{7+4*k}], v{VLANE16}, s[60:63], s35 offen")
            A("s_add_u32 s35, s35, 0x100000")
    A("L2_end:")
    return "\n".join(o)


def kernel_desc(opt=None):
    return dict(name="k2_kernel", body=gen_k2(opt), vgpr=512, accum=256, grid=256, block=256, lds=163840 if (opt or {}).get('trun', 0) > 3 or (opt or {}).get('light') else 131072)
```

```python
import sys, os
here = os.path.dirname(os.path.abspath(__file__))
sys.path.insert(0, here)
import gen, hazard
DEFAULTS = {"k1": {"st": " sc1", "code_end": "L3_end", "late": 1, "npre": 2, "rc": 3, "nopk": 2}, "k2": {"map": 1, "sper": 2, "st": " sc1", "gdma": [52, 53, 57, 61, 65], "new": 32, "light": 1, "trun": 5, "half": 1, "mle": 3, "ccap": [3, 3, 3, 2, 2, 2, 2, 2], "cnts": [51, 51, 52, 53, 53, 53]}, "k3": {"map": 1, "d": 6, "order": "m3", "nopk": 1}}
def kernels(opt=None):
    opt0 = opt or {}
    opt = {k: dict(v, **(opt0.get(k) or {})) for k, v in DEFAULTS.items()}
    if opt0.get('old') or opt0.get('emu1'): opt['k2']['new'] = 16
    if opt0.get('old'):
        del opt['k2']['gdma']
        import gen_k1, gen_k2, gen_k3
        return [gen_k1.kernel_desc(opt['k1']), gen_k2.kernel_desc(opt['k2']), gen_k3.kernel_desc(opt['k3'])]
    import gen_k2n
    ks = []
    if opt['k2'].get('fuse'):
        opt0 = dict(opt0, nok3=1); opt['k1']['fuse'] = 1; opt['k2'].setdefault('ste', ' sc1')
        if 'fstr' in opt['k2']: opt['k1']['fstr'] = opt['k2']['fstr']
    if opt0.get('nok3'): opt['k1']['code_end'] = 'L2_end'
    if opt0.get('emu1'):
        import gen_k1; ks.append(gen_k1.kernel_desc(opt['k1']))
    else:
        import gen_k1n; ks.append(gen_k1n.kernel_desc(opt['k1']))
    ks.append(gen_k2n.kernel_desc(opt['k2']))
    if not opt0.get('nok3'):
        import importlib; ks.append(importlib.import_module(opt0.get('k3mod', 'gen_k3n')).kernel_desc(opt['k3']))
    for k, o in zip(ks, (opt['k1'], opt['k2'], opt['k3'])):
        if o.get('align'):
            import align; k['body'] = align.run(k['body'], *o['align'])
    return ks
if __name__ == "__main__":
    import json
    opt = json.loads(sys.argv[2]) if len(sys.argv) > 2 else {}
    ks = kernels(opt)
    for k in ks:
        e = hazard.check(k['body'], k['name'])
        assert not e, "\n".join(e)
    out = sys.argv[1] if len(sys.argv) > 1 else os.path.join(here, "..", "standalone__hybrid_graph_tf_graphgps__graph.s")
    open(out, "w").write(gen.build_file(ks))
    print("wrote", out, os.path.getsize(out))
```

```python
from layout import *
from sched import *
import hazard

MF32 = "v_mfma_f32_16x16x32_bf16"
FLAG_OFF = 124 << 20
NFLAG = 2048
HLF0 = 1280
FS = 128
OOB = 0x70000000
MLS = 128
OWN = [[0, 4, 8], [1, 5, 12], [2, 9, 13], [6, 10, 14], [3, 7], [11, 15]]
SX, SWS, SM, SD, SO = 8, 16, 24, 52, 56
P_X = 60
S_NEED = 96
XO = [6, 7, 29]; S_FO = 51
S_WAVE, S_SPLIT, S_SPB, S_ML0 = 34, 37, 50, 48
S_XL, S_XB, S_H2 = 31, 28, 30
VLANE16, VE = 248, 241
DIAG, ACC, BF, ZA, WT, T = 0, 160, 208, 128, 144, 232
POOL = [r for r in range(24, 128, 8) if r not in (40, 72, 104)]
XR = [104, 108, 152]
VIL, VH0, VH1, VPOLL, VPO, VPF = 40, 44, 45, 46, 47, 43
VBH, VOW, VDGR = 72, 76, 79
VMK = 156
VW0, VW1, VML, VT0, VT1, VTR, VWW, VWR, VZ, VZR, DG = 240, 241, 242, 245, 246, 247, 249, 250, 251, 252, 253
WO = [32, 33, 35, 36, 38, 39, 40, 41]
STR = [42, 43, 44, 45, 46, 47]
S_TMP = [49, 3]
S_SPIN, S_MASK = 100, 101


def fstr(opt): return FS


def pre_wait(A, s_oq, s_own):
    tab = 0
    for i, b in enumerate(x for l in OWN for x in l): tab |= b << (4 * i)
    A(f"s_mov_b32 s6, 0x{tab & 0xffffffff:x}")
    A(f"s_mov_b32 s7, 0x{tab >> 32:x}")
    A("s_mul_i32 s3, s37, 12")
    A("s_min_u32 s3, s3, 56")
    A("s_lshr_b64 s[6:7], s[6:7], s3")
    A("s_bfe_u32 s29, s6, 0x40008")
    A("s_bfe_u32 s7, s6, 0x40004")
    A("s_and_b32 s6, s6, 15")
    A("s_cmp_lt_u32 s37, 4")
    A("s_cselect_b32 s29, s29, 16")
    A(f"s_mov_b32 s{s_oq}, 0")
    A(f"s_mov_b32 s{s_own}, 0")
    for r in XO:
        A(f"s_lshr_b32 s3, s{r}, 2")
        A(f"s_cmp_eq_u32 s3, s{S_WAVE}")
        A(f"s_cselect_b32 s{s_oq}, s{r}, s{s_oq}")
        A(f"s_cselect_b32 s{s_own}, 1, s{s_own}")
    A(f"s_and_b32 s{s_oq}, s{s_oq}, 3")
    A("s_lshl_b32 s3, s38, 17")
    A(f"s_lshl_b32 s{S_FO}, s{S_WAVE}, 7")
    A(f"s_add_u32 s3, s3, s{S_FO}")
    for r in XO:
        A(f"s_lshl_b32 s{r}, s{r}, 13")
        A(f"s_add_u32 s{r}, s{r}, s3")
    A(f"s_mov_b64 s[{S_NEED}:{S_NEED+1}], 0")
    for r in XO:
        for e in (0, 15):
            A(f"s_lshr_b32 s3, s{r}, 9")
            if e: A(f"s_add_u32 s3, s3, {e}")
            A(f"s_mul_i32 s3, s3, {BMAGIC}")
            A(f"s_lshr_b32 s3, s3, {BSHIFT}")
            A(f"s_bitset1_b64 s[{S_NEED}:{S_NEED+1}], s3")
    A("s_mul_i32 s3, s38, 6")
    A("s_add_u32 s3, s3, s37")
    A(f"s_cmp_eq_u32 s3, {38 * 6 + 5}")
    A("s_cselect_b32 s3, 0, s37")
    A("s_cmp_lt_u32 s3, 4")
    A(f"s_cselect_b32 s29, s29, 0x{OOB:x}")
    A(f"s_lshl_b32 s{S_FO}, s38, 5")
    A(f"s_lshl_b32 s3, s{S_WAVE}, 3")
    A(f"s_add_u32 s{S_FO}, s{S_FO}, s3")
    A(f"s_add_u32 s{S_FO}, s{S_FO}, s37")
    A(f"s_mul_i32 s{S_FO}, s{S_FO}, {FS}")
    A(f"s_add_u32 s{S_FO}, s{S_FO}, 0x{FLAG_OFF:x}")


def prologue(A, o, s_own):
    srd_from(o, SWS, 4, 0, 256 << 20)
    srd_from(o, SX, P_X, 0, N * 512)
    A(f"s_mov_b32 s{SD+2}, 0x{N*2:x}"); A(f"s_mov_b32 s{SD+3}, 0x00020000")
    A(f"s_mov_b32 s{SO+2}, 0x{N*512:x}"); A(f"s_mov_b32 s{SO+3}, 0x00020000")
    A(f"s_lshr_b32 s{S_ML0}, s40, 2")
    A(f"s_cmp_eq_u32 s{s_own}, 1")
    A(f"s_cselect_b32 s40, 0x{OOB:x}, s40")
    A(f"s_cselect_b32 s44, 0x{OOB:x}, s44")


def ml_addr(v, L):
    return [f"v_bfe_u32 v{v}, v{L}, 8, 1", f"v_mul_u32_u24 v{v}, 48, v{v}", f"v_lshl_add_u32 v{v}, s{S_SPLIT}, 3, v{v}",
            f"v_and_b32 v{v+1}, 0xf0, v{L}", f"v_lshl_add_u32 v{v}, v{v+1}, 3, v{v}"]


def publish(A, srd, soff, vt, opt):
    A(f"v_mov_b32 v{vt}, 1")
    A("s_mov_b64 exec, 1")
    A(f"buffer_store_dword v{vt}, off, {sr(srd)}, s{soff} sc1")
    A("s_mov_b64 exec, -1")


def vh0(v, t):
    L = VLANE16
    return [f"v_lshrrev_b32 v{v}, 4, v{L}", f"v_and_b32 v{v}, 0x30, v{v}", f"v_xor_b32 v{v}, v{v}, v{L}",
            f"v_and_b32 v{t}, 0x380, v{L}\nv_mad_u32_u24 v{v}, v{t}, 3, v{v}"]


def early1(p, opt):
    q = []
    A = lambda t, c=1: q.append((c, t))
    A(f"s_and_b32 s30, s30, 0x1c000")
    A(f"s_add_u32 s{S_XB}, s30, 0x{(1 + 2 * p) * 0x4000:x}")
    A(f"s_and_b32 s{S_XB}, s{S_XB}, 0x1ffff")
    A(f"s_add_u32 s30, s30, 0x{(2 - p) * 0x4000:x}")
    A(f"s_and_b32 s30, s30, 0x1ffff")
    A(f"s_mul_i32 s{S_XL}, s{S_WAVE}, 6144")
    A(f"s_add_u32 s{S_XL}, s{S_XL}, s30")
    A(f"s_lshl_b32 s3, s{S_WAVE}, 10")
    A(f"s_add_u32 s{S_XB}, s{S_XB}, s3")
    A(f"s_add_u32 s3, s3, 24576")
    A(f"s_add_u32 s{S_H2}, s30, s3")
    for t in vh0(VE, 243): A(t, 1 + t.count("\n"))
    return q


def dma6(A, c):
    seq = [(rb, u) for u in range(2) for rb in range(3)]
    m0 = lambda rb, u: f"s_add_u32 m0, s{S_XL}, {rb*2048 + u*1024}" if c == 'x' else f"s_add_u32 m0, s{S_XB if rb < 2 else S_H2}, {(rb % 2)*8192 + u*4096}"
    A(m0(*seq[0]), 2)
    for k, (rb, u) in enumerate(seq):
        t = f"buffer_load_dwordx4 v{VE}, {sr(SX)}, s{XO[rb]} offen lds" if c == 'x' else f"buffer_load_dwordx4 v{VE}, {sr(SWS)}, s{XO[rb]} offen sc1 lds ; HLD"
        if k < 5: t += "\n" + m0(*seq[k + 1])
        A(t, 2)
        if k == 2: A(f"v_xor_b32 v{VE}, 0x1040, v{VE}")


def early_x(p, opt):
    q = []
    dma6(lambda t, c=1: q.append((c, t)), 'x')
    return q


def early_hf(p, opt):
    return [(1, f"v_lshlrev_b32 v{VE}, 3, v{VLANE16}"), (1, f"s_mov_b32 s3, 0x{FLAG_OFF + HLF0 * FS:x}"),
            (1, f"buffer_load_dword v{VE}, v{VE}, {sr(SWS)}, s3 offen sc1 ; HLFLAG")]


def early_h(p, opt):
    q = []
    A = lambda t, c=1: q.append((c, t))
    A("WAIT HLFLAG")
    A(f"v_cmp_eq_u32_e64 s[38:39], 0, v{VE}")
    A(f"s_and_b64 s[38:39], s[38:39], s[{S_NEED}:{S_NEED+1}]\ns_cbranch_scc1 LF_hl_{p}\nLF_hlret_{p}:", 2)
    for t in vh0(VE, 243): A(t, 1 + t.count("\n"))
    A(f"v_add_u32 v{VE}, 0x{HL_OFF:x}, v{VE}")
    dma6(A, 'h')
    return q


def fix_waits(lines):
    lines = [x for l in lines for x in l.split("\n")]
    for b, l in enumerate(lines):
        if l.startswith("WAIT "):
            a = max(i for i, x in enumerate(lines) if x.endswith("; " + l[5:]))
            n = sum(1 for x in lines[a + 1:b] if x.startswith("buffer_"))
            assert a < b and n < 64, (l, a, b, n)
            lines[b] = f"s_waitcnt vmcnt({n})"
    return lines


def hl_spin(p):
    return [f"LF_hl_{p}:", f"s_mov_b32 s{S_SPIN}, 0x10000", f"s_mov_b32 s3, 0x{FLAG_OFF + HLF0 * FS:x}", f"LF_hl2_{p}:", f"v_lshlrev_b32 v{VE}, 3, v{VLANE16}",
            f"buffer_load_dword v{VE}, v{VE}, {sr(SWS)}, s3 offen sc1",
            f"s_sub_u32 s{S_SPIN}, s{S_SPIN}, 1", "s_waitcnt vmcnt(0)", f"s_cbranch_scc1 LF_hlret_{p}",
            f"v_cmp_eq_u32_e64 s[38:39], 0, v{VE}", f"s_and_b64 s[38:39], s[38:39], s[{S_NEED}:{S_NEED+1}]",
            f"s_cbranch_scc1 LF_hl2_{p}", f"s_branch LF_hlret_{p}"]


R = lambda s, n: s * n
ORDERS = {
    'h1': "d" + R("a", 12) + "F" + R("a", 20) + "p" + R("b", 10) + "P" + "mmm" + R("0b", 6) + "|" + R("1bb", 6) + "|" + "2bb2bb2|222|",
    'h2': "d" + R("a", 12) + "F" + R("a", 20) + R("b", 12) + "p" + R("b", 10) + "P" + "mmm" + R("0b", 6) + "|" + R("1b", 4) + "11|" + "222|222|",
    'h3': "d" + R("a", 12) + "F" + R("a", 20) + R("b", 22) + "p" + R("b", 10) + "P" + "mmm" + R("0", 6) + "|" + R("1", 6) + "|" + "222|222|",
    'h4': "d" + R("a", 12) + "F" + R("a", 12) + "p" + R("a", 8) + "P" + "mmm" + R("0bb", 6) + "|" + R("1bb", 6) + "|" + "2bbbb2bbbb2|222|",
}


def final(opt, stamp=None):
    stamp = stamp or (lambda A: None)
    q = []
    A = lambda t, **k: q.append(V(t, **k))
    L = VLANE16
    A(f"s_lshl_b32 s3, s{S_WAVE}, 15")
    A(f"s_add_u32 s3, s3, 0x{WF_OFF:x}")
    A(f"v_add_u32 v{VW0}, s3, v{L}")
    A(f"v_add_u32 v{VW1}, 0x4000, v{VW0}")
    for k in range(8): A(f"s_mov_b32 s{WO[k]}, 0x{(k >> 2) * 131072 + (k & 3) * 4096:x}")
    for rb in range(3): A(f"s_lshr_b32 s{STR[rb]}, s{XO[rb]}, 13")
    A(f"v_mov_b32 v{VML}, s{STR[0]}")
    A(f"v_mov_b32 v{T}, s{STR[1]}")
    A(f"v_cmp_lt_u32 vcc, 0xff, v{L}")
    A(f"v_mov_b32 v{T+1}, s{STR[2]}")
    A(f"v_cndmask_b32 v{VML}, v{VML}, v{T}, vcc")
    A(f"v_cmp_lt_u32 vcc, 0x1ff, v{L}")
    A(f"v_and_b32 v{T+3}, 0xf0, v{L}")
    A(f"v_cndmask_b32 v{VML}, v{VML}, v{T+1}, vcc")
    A(f"v_lshlrev_b32 v{VML}, 11, v{VML}")
    A(f"v_lshl_add_u32 v{VML}, v{T+3}, 3, v{VML}")
    A(f"v_lshrrev_b32 v{VDGR}, 6, v{VML}")
    late = []
    B = lambda t: late.append(V(t))
    B(f"s_lshl_b32 s3, s{S_SPLIT}, 3")
    B(f"v_add3_u32 v{VML}, v{VML}, s3, 8")
    B(f"s_cmp_ge_u32 s{XO[2]}, 0x{OOB:x}")
    B(f"s_cselect_b32 s{STR[2]}, s{STR[1]}, s{STR[2]}")
    B(f"v_mov_b32 v{VPOLL}, s{STR[0]}")
    B(f"v_mov_b32 v{T}, s{STR[1]}")
    B(f"v_cmp_lt_u32 vcc, 0x7f, v{L}")
    B(f"v_mov_b32 v{T+1}, s{STR[2]}")
    B(f"v_cndmask_b32 v{VPOLL}, v{VPOLL}, v{T}, vcc")
    B(f"v_cmp_lt_u32 vcc, 0xff, v{L}")
    B(f"v_bfe_u32 v{T}, v{L}, 4, 3")
    B(f"v_cndmask_b32 v{VPOLL}, v{VPOLL}, v{T+1}, vcc")
    B(f"v_min_u32 v{T}, 5, v{T}")
    B(f"v_lshrrev_b32 v{VPOLL}, 2, v{VPOLL}")
    B(f"v_lshl_add_u32 v{VPOLL}, v{VPOLL}, 3, v{T}")
    B(f"v_lshlrev_b32 v{VPOLL}, {FS.bit_length() - 1}, v{VPOLL}")
    B(f"v_add_u32 v{VPOLL}, 0x{FLAG_OFF:x}, v{VPOLL}")
    B(f"s_lshl_b32 s49, s{S_WAVE}, 11")
    B(f"s_add_u32 s49, s49, 0x20000")
    for rb in range(3):
        B(f"s_bfe_u32 s3, s{XO[rb]}, 0x2000f")
        B(f"s_lshl_b32 s3, s3, 13")
        B(f"s_add_u32 s3, s3, s49")
        B(f"v_add_u32 v{VOW+rb}, s3, v{L}")
    for k in range(6):
        B(f"s_add_u32 s3, s{S_SPLIT}, {k + 1}")
        B(f"s_sub_u32 s49, s3, 6")
        B(f"s_cselect_b32 s3, s3, s49")
        B(f"s_mul_i32 s3, s3, 0x{OP_STRIDE:x}")
        B(f"s_add_u32 s{STR[k]}, s3, 0x{OP_OFF if not opt.get('foob') else OOB:x}")
    B(f"s_mul_i32 s3, s{S_WAVE}, {2048 - 128}")
    B(f"v_add_u32 v{VPO}, s3, v{L}")
    for t in vh0(VH0, T): late += [V(x) for x in t.split("\n")]
    B(f"v_xor_b32 v{VH1}, 0x1040, v{VH0}")
    B(f"v_bfe_u32 v{T}, v{L}, 5, 3")
    B(f"v_lshrrev_b32 v{T+2}, 8, v{L}")
    B(f"v_xor_b32 v{T}, v{T}, v{T+2}")
    B(f"v_bfe_u32 v{T+1}, v{L}, 4, 3")
    B(f"v_lshlrev_b32 v{T+1}, 7, v{T+1}")
    B(f"v_lshl_or_b32 v{T}, v{T}, 4, v{T+1}")
    B(f"v_bfe_u32 v{T+1}, v{L}, 7, 1")
    B(f"s_lshl_b32 s49, s{S_WAVE}, 10")
    B(f"s_sub_u32 s3, s{S_XB}, s49")
    B(f"v_lshl_add_u32 v{VBH+2}, v{T+1}, 12, v{T}")
    B(f"v_add_u32 v{VBH}, s3, v{VBH+2}")
    B(f"s_sub_u32 s3, s{S_H2}, s49")
    B(f"v_add_u32 v{VBH+2}, s3, v{VBH+2}")
    B(f"v_xor_b32 v{VBH+1}, 64, v{VBH}")
    B(f"v_xor_b32 v{VBH+3}, 64, v{VBH+2}")
    B(f"v_lshl_add_u32 v{VT0}, v{T+1}, 10, v{T}")
    B(f"v_add_u32 v{VT0}, s{S_XL}, v{VT0}")
    B(f"v_xor_b32 v{VT1}, 64, v{VT0}")
    B(f"v_add_u32 v{VTR}, s{S_XL}, v{L}")
    B(f"s_add_u32 s3, s3, 0x{0x10000 - 24576:x}")
    B(f"s_and_b32 s3, s3, 0x1ffff")
    B(f"v_add_u32 v{VZR}, s3, v{L}")
    B(f"s_lshl_b32 s49, s{S_WAVE}, 11")
    B(f"v_add_u32 v{VZ}, s49, v{VZR}")
    B(f"s_add_u32 s3, s3, s49")
    B(f"s_add_u32 s3, s3, 24576")
    B(f"v_lshl_add_u32 v{VWW}, v{L}, 1, s3")
    B(f"v_lshl_add_u32 v{VWR}, v{T+3}, 1, s3")
    B(f"v_lshrrev_b32 v{T}, 4, v{T+3}")
    B(f"v_lshlrev_b32 v{T+2}, 2, v{T+2}")
    B(f"v_sub_u32 v{T}, v{T}, v{T+2}")
    B(f"v_and_b32 v{T+1}, 1, v{T}")
    B(f"v_lshlrev_b32 v{T+1}, 4, v{T+1}")
    B(f"v_mov_b32 v{T+2}, 0xffff")
    B(f"v_lshlrev_b32 v{T+1}, v{T+1}, v{T+2}")
    B(f"v_lshrrev_b32 v{T}, 1, v{T}")
    for k in range(2):
        B(f"v_cmp_eq_u32 vcc, {k}, v{T}")
        B(f"v_cndmask_b32 v{VMK+k}, 0, v{T+1}, vcc")
    B(f"s_mov_b32 s{S_SPIN}, 0x10000")
    B(f"s_mov_b32 s{S_MASK}, 0xffff0000")
    order = opt.get('forder', 'h1'); order = ORDERS.get(order, order)
    D = opt.get('fd', 12)
    Lq = []; cnt = {}; bar = set()
    for ch in order:
        if ch == '|': bar.add(len(Lq) - 1); continue
        Lq.append((ch, cnt.get(ch, 0))); cnt[ch] = cnt.get(ch, 0) + 1
    assert cnt == dict(F=1, P=1, p=1, d=1, m=3, a=32, b=32, **{'0': 6, '1': 6, '2': 6}), cnt
    wgt = lambda e: 0 if e[0] in 'FP' else (1 if e[1] % 3 == 2 and e[0] != '2' else 2) if e[0] in '012' else 1
    free = list(POOL); reg = {}; low = [99]; glue = set()
    MLR = ZA
    ld = opt.get('fld', ' sc1')
    def issue(z, e):
        Z = lambda t: z.append(V(t))
        ch, k = e
        if ch == 'F':
            z.append(W('ost')); stamp(Z)
            Z(f"v_mov_b32 v{VPF}, 1"); Z("s_mov_b64 exec, 1")
            z.append(VM(f"buffer_store_dword v{VPF}, off, {sr(SWS)}, s{S_FO} sc1", tag=e)); Z("s_mov_b64 exec, -1")
        elif ch == 'p':
            z.append(VM(f"buffer_load_dword v{VPF}, v{VPOLL}, {sr(SWS)}, 0 offen sc1", tag=e))
        elif ch == 'P':
            stamp(Z)
            z.append(V(f"v_cmp_eq_u32 vcc, 0, v{VPF}", needs=[('p', 0)])); Z("s_nop 1\ns_cbranch_vccnz LF_spin\nLF_go:")
            stamp(Z)
        elif ch == 'd':
            z.append(VM(f"buffer_load_ushort v{VDGR}, v{VDGR}, {sr(SD)}, 0 offen", tag=e))
        elif ch == 'm':
            z.append(VM(f"buffer_load_dwordx4 {vr(MLR + 4*k)}, v{VML}, {sr(SM)}, 0 offen offset:{16*k} sc1", tag=e))
        elif ch in '012':
            r = reg[e] = free.pop(0); low[0] = min(low[0], len(free))
            rb = int(ch); j, sp = k // 3, k % 3
            gl = lambda u, rr: f"buffer_load_dwordx4 {vr(rr)}, v{VPO}, {sr(SWS)}, s{S_TMP[u]} offen offset:{j*1024}{ld}"
            dl = lambda rr: f"ds_read_b128 {vr(rr)}, v{VOW+rb} offset:{j*1024}"
            for u in range(2):
                if sp == 2 and u == 1 and rb < 2:
                    z.append(LD(dl(r + 4), tag=('own', e))); continue
                Z(f"s_add_u32 s{S_TMP[u]}, s{XO[rb]}, s{STR[2*sp+u]}")
                if sp == 2 and u == 1:
                    assert len(fdone) == 3
                    Z(f"s_cmp_lt_u32 s{S_SPLIT}, 4\ns_cbranch_scc1 LF_o{j}")
                    z.append(V(gl(u, r + 4) + f"\n{dl(WT + 8)}\ns_branch LF_j{j}\nLF_o{j}:\ns_mov_b32 s{S_TMP[u]}, 0x{OOB:x}"))
                    z.append(VM(gl(u, WT + 8), tag=e)); z.append(LD(dl(r + 4) + f"\nLF_j{j}:", tag=('own', e)))
                    glue.update(id(x) for x in z[-3:])
                else: z.append(VM(gl(u, r + 4 * u), tag=e))
        else:
            z.append(VM(wload('ab'.index(ch), k), tag=e))
    tn = [0]
    def tmp():
        tn[0] += 1; return T + (tn[0] % 4) * 2
    diag = lambda rb, sp: DIAG + (rb % 2) * 12 + sp * 4
    def wt(z, rb):
        z.append(LD(f"ds_read_b128 {vr(WT)}, v{VWR} offset:{rb*512}"))
        z.append(LD(f"ds_read_b128 {vr(WT+4)}, v{VWR} offset:{rb*512+16}", tag=('wt', rb)))
    def dbuild(z, rb):
        for s in range(NSPLIT):
            for k in range(2): z.append(V(f"v_and_b32 v{diag(rb, s // 2) + 2*(s % 2) + k}, v{WT+s}, v{VMK+k}", needs=[('wt', rb)]))
        z.append(V(f"v_mov_b32 v{VIL+rb}, v{WT+6}"))
    def dg_setup(z):
        z.append(V(f"v_lshlrev_b32 v{VDGR}, 16, v{VDGR}"))
        z.append(LD(f"ds_write_b32 v{VWW}, v{VDGR} offset:28"))
        for rb in range(3): z.append(LD(f"ds_read_b32 v{DG+rb}, v{VWR} offset:{rb*512+28}", tag='dg'))
    def weights(z):
        Z = lambda t: z.append(V(t))
        m = lambda s: MLR + 2 * s
        l = lambda s: m(s) + 1
        Z(f"v_max3_f32 v{T}, v{m(0)}, v{m(1)}, v{m(2)}")
        Z(f"v_max3_f32 v{T+1}, v{m(3)}, v{m(4)}, v{m(5)}")
        Z(f"v_max_f32 v{T}, v{T}, v{T+1}")
        Z(f"v_subrev_f32 v{T}, 0x42fe0000, v{T}")
        for s in range(NSPLIT): Z(f"v_sub_f32 v{m(s)}, v{m(s)}, v{T}")
        for s in range(NSPLIT): Z(f"v_cvt_u32_f32 v{m(s)}, v{m(s)}")
        for s in range(NSPLIT): Z(f"v_lshlrev_b32 v{T+2+s}, 23, v{m(s)}")
        Z(f"v_mul_f32 v{T}, v{T+2}, v{l(0)}")
        for s in range(1, NSPLIT): Z(f"v_fmac_f32 v{T}, v{T+2+s}, v{l(s)}")
        Z(f"v_rcp_f32 v{WT+6}, v{T}")
        for s in range(NSPLIT): Z(f"v_mul_u32_u24 v{WT+s}, 0x800080, v{m(s)}")
        z.append(LD(f"ds_write_b128 v{VWW}, {vr(WT)}"))
        z.append(LD(f"ds_write_b96 v{VWW}, {vr(WT+4, 3)} offset:16"))
        wt(z, 0); dbuild(z, 0); wt(z, 1)
    zw = set(); zok = set()
    acc = lambda rb, j, b: ACC + ((rb * 2 + j) * 2 + b) * 4
    post = []
    def cstep(vq, ms, rb, k):
        j, sp = k // 3, k % 3
        e = (str(rb), k)
        r = reg[e]; zd = ZA + 8 * j
        pre = [V(f"v_swap_b32 v{r+2}, v{r+4}", needs=[('own', e)] if sp == 2 else []), V(f"v_swap_b32 v{r+3}, v{r+5}")]
        for h in range(2):
            ms.append(Ins(f"{MF32} {vr(zd+4*h)}, {vr(r+4*h)}, {vr(diag(rb, sp))}, {vr(zd+4*h) if sp else 0}", 0))
        free.append(r)
        if sp == 2:
            z = [V(f"v_mul_f32 v{zd+c}, v{zd+c}, v{VIL+rb}") for c in range(8)]
            z += [V(f"v_cvt_pk_bf16_f32 v{zd+c}, v{zd+2*c}, v{zd+2*c+1}") for c in range(4)]
            z.append(LD(f"ds_write_b128 v{VZ}, {vr(zd)} offset:{rb*8192 + j*1024}", tag='z'))
            post.append(((rb, j), z))
        if k == 0 and rb < 2:
            dbuild(vq, rb + 1)
            if rb == 0: wt(vq, 2)
        return pre
    nxt = {(m, rb): list(range(8)) for m in range(2) for rb in range(3)}
    groups = []; arrived = set(); barpos = [0]
    xn = [0]
    def x_read(z):
        n = xn[0]
        if n < 6: z.append(LD(f"ds_read_b128 {vr(XR[n % 3])}, v{VT0 + n % 2} offset:{(n // 2)*2048}", tag=('xr', n))); xn[0] += 1
    fdone = []
    def fma_x(z, rb):
        assert rb == len(fdone); fdone.append(rb)
        for j in range(2):
            n = 2 * rb + j; x = XR[n % 3]
            for c in range(4):
                t = tmp(); a = acc(rb, j, 0) + 2 * c
                z.append(V(f"v_lshlrev_b32 v{t}, 16, v{x+c}", needs=[('xr', n), 'dg']))
                z.append(V(f"v_and_b32 v{t+1}, s{S_MASK}, v{x+c}"))
                z.append(V(f"v_fma_f32 v{a}, v{a}, v{DG+rb}, v{t}"))
                z.append(V(f"v_fma_f32 v{a+1}, v{a+1}, v{DG+rb}, v{t+1}"))
            x_read(z)
    def ep(z, rb):
        for j in range(2):
            a = acc(rb, j, 0)
            for c in range(4): z.append(V(f"v_cvt_pk_bf16_f32 v{a+c}, v{a+2*c}, v{a+2*c+1}"))
            z.append(LD(f"ds_write_b128 v{VT0+j}, {vr(a)} offset:{rb*2048}"))
        for u in range(2): z.append(LD(f"ds_read_b128 {vr(acc(rb, u, 1))}, v{VTR} offset:{rb*2048 + u*1024}", tag=('y', rb, u)))
        stq.extend(VM(f"buffer_store_dwordx4 {vr(acc(rb, u, 1))}, v{VH0+u}, {sr(SO)}, s{XO[rb]} offen{opt.get('fst', '')}", needs=[('y', rb, u)]) for u in range(2))
    pend = []; blk = set(); stq = []
    def pick(cap):
        ms = []; n = 0
        while n < cap:
            cand = []
            for (m, rb), ts in nxt.items():
                if m == 1 and (nxt[(0, rb)] or ('fma', rb) in pend or rb in blk): continue
                for t in ts:
                    if m == 1 and (rb, t % 2) not in zok: continue
                    if ('ab'[m], 4 * t + 3) not in arrived: continue
                    cand.append((-m, rb if m else 0, t, rb)); break
            if not cand: break
            m, _, t, rb = min(cand); m = -m
            g = len(groups); groups.append((m, t, rb, barpos[0] if m == 1 or not groups else groups[-1][3], m == 0 and len(nxt[(m, rb)]) == 8))
            ms += [('G', g, b) for b in range(4)]
            nxt[(m, rb)].remove(t); n += 1
            if not nxt[(m, rb)]: pend.append(('fma' if m == 0 else 'ep', rb))
        return ms
    def merge(ms, vq):
        per = opt.get('fper', 2)
        while ms or vq:
            if ms: q.append(ms.pop(0))
            k = 0
            while vq and (k < per or not ms or id(vq[0]) in glue):
                x = vq.pop(0); q.append(x); k += 2 if (x.t or '').startswith(('v_swap', 'buffer')) else 1
    def take_pend(vq, n=9):
        blk.clear(); vq += stq; stq.clear()
        for p in list(pend)[:n]:
            pend.remove(p); (fma_x if p[0] == 'fma' else ep)(vq, p[1]); blk.add(p[1])
    def take_post(vq):
        for u, z in post: vq += z; zw.add(u)
        post.clear()
    def barrier():
        A("s_barrier"); q.append(('BAR', len(q))); barpos[0] = len(q) - 1
        stamp(A)
    ni = [0]
    def issue_n(z, k, d):
        while ni[0] < len(Lq) and sum(wgt(e) for e in Lq[k + 1:ni[0] + 1]) <= d:
            e = Lq[ni[0]]
            if e[0] in '012' and not free: break
            if e[0] == 'P' and ('p', 0) not in arrived: break
            issue(z, e); ni[0] += 1
    fidx = [k for k, e in enumerate(Lq) if e[0] == 'F'][0]
    while ni[0] < fidx: issue(q, Lq[ni[0]]); ni[0] += 1
    q.extend(late)
    A("s_waitcnt lgkmcnt(0)")
    barrier()
    for _ in range(3): x_read(q)
    issue(q, Lq[fidx]); ni[0] += 1
    for k, e in enumerate(Lq):
        if e[0] not in 'FP': q.append(W(e))
        arrived.add(e)
        vq = []; ms = []; pre = []
        issue_n(vq, k, D)
        take_post(vq)
        take_pend(vq, 1)
        if e == ('d', 0): dg_setup(vq)
        if e == ('m', 2): weights(vq)
        if e[0] in '012': pre = cstep(vq, ms, int(e[0]), e[1])
        fill = pick(max(opt.get('fcap', 2) if e[0] in '012' else 1, (len(vq) + 7) // 8))
        if len(fill) >= 2: merge(fill[:2] + ms + fill[2:], pre + vq)
        else: q.extend(pre); merge(ms + fill, vq)
        if k in bar:
            vq = []; take_post(vq); merge(pick(opt.get('fcapb', 1)), vq)
            if zw - zok: q.append(W('z'))
            barrier()
            zok |= zw
    while any(nxt.values()) or pend or stq:
        vq = []; take_pend(vq); merge(pick(99), vq)
    NR = 6
    Fr = lambda n: BF + (n % NR) * 4
    def rd(n):
        m, t, rb = groups[n][:3]
        if m == 0: s = f"ds_read_b128 {vr(Fr(n))}, v{VBH + (rb // 2)*2 + (t & 1)} offset:{(rb % 2)*8192 + (t >> 1)*1024}"
        else: s = f"ds_read_b128 {vr(Fr(n))}, v{VZR} offset:{rb*8192 + t*1024}"
        return LD(s, tag=('f', n))
    out = []; nr = 0; done = -1
    for pos, it in enumerate(q):
        if isinstance(it, tuple) and it[0] == 'G':
            n, b = it[1], it[2]; m, t, rb, _, first = groups[n]
            assert nr > n
            a = acc(rb, b >> 1, b & 1)
            out.append(Ins(f"{MF32} {vr(a)}, {ar(m*128 + (4*t + b)*4)}, {vr(Fr(n))}, {0 if first else vr(a)}", 0, needs=[('f', n)]))
            if b == 0:
                done = n - 1
                if nr < len(groups) and nr <= done + NR and groups[nr][3] <= pos: out.append(rd(nr)); nr += 1
            if b == 3: done = n
        elif isinstance(it, tuple) and it[0] == 'BAR':
            while nr < len(groups) and nr <= done + NR - 1 and groups[nr][3] <= pos: out.append(rd(nr)); nr += 1
        else: out.append(it)
    if opt.get('fmem'):
        n0 = out.index(late[-1])
        def ok(it):
            if it.t is None: return all(isinstance(t, tuple) and t[0] in 'abmdp012' or t == 'ost' for t in it.needs)
            if it.t.startswith('buffer_store_dwordx4'): return False
            return it.t.startswith(('s_', 'buffer_', f'v_mov_b32 v{VPF}', 'v_cmp', 'ds_read_b128 v[' + str(WT + 8))) and not it.t.startswith('s_barrier') or 'LF_j' in it.t
        out = out[:n0 + 1] + [it for it in out[n0 + 1:] if ok(it)]
    em = Emitter(); em.pos['ost'] = ('vm', 0); em.cnt['vm'] = 1; em.kind.append(False)
    o = hazard.fix(em.emit(out))
    if opt.get('verbose'): print("final: min free", low[0], "lines", len(o), "nops", sum(1 for x in o if x.startswith('s_nop')))
    spin = ["LF_spin:", f"buffer_load_dword v{VPF}, v{VPOLL}, {sr(SWS)}, 0 offen sc1", f"s_sub_u32 s{S_SPIN}, s{S_SPIN}, 1", "s_waitcnt vmcnt(0)",
            "s_cbranch_scc1 LF_go", f"v_cmp_eq_u32 vcc, 0, v{VPF}", "s_nop 1", "s_cbranch_vccnz LF_spin", "s_branch LF_go"]
    return o, spin


def wload(m, k):
    t, j, b = k >> 2, (k >> 1) & 1, k & 1
    return f"buffer_load_dwordx4 {ar(m*128 + 4*k)}, v{VW0 + j}, {sr(SWS)}, s{WO[m*4 + (t >> 1)]} offen offset:{(t & 1)*2048 + b*1024}"
```

```python
from layout import *

def Q(qb, ds): return (qb * 8 + ds) * 4
S_BASE = [128, 144]
def S(h, qb): return S_BASE[h] + qb * 4
P_BASE = [160, 176]
def P(p, qb): return P_BASE[p] + qb * 4
def NEGM(qb): return 192 + qb * 4
RING = 4
def F(i): return 208 + (i % RING) * 4
LA = [224 + i for i in range(4)]
LB = [228 + i for i in range(4)]
ET = [232 + i for i in range(8)]
VK = 240
VTR = [249, 250]
VDMA = 241
VT0, VT1 = 242, 243
M = [244 + i for i in range(4)]
VLANE16 = 248
KB = [VK, 251, 252]
VSP = 253
RD = 254
def O(fb, qb): return (fb * 4 + qb) * 4

SRD_Q, SRD_K, SRD_OP, SRD_ML = 8, 12, 20, 24
S_OFF, S_M0, S_CNT, S_THR, S_MASK, S_WAVE, S_SITE = 28, 30, 31, 32, 33, 34, 36


def vr(b, n=4): return f"v[{b}:{b+n-1}]"
def ar(b, n=4): return f"a[{b}:{b+n-1}]"


class Seg:
    def __init__(self):
        self.mf = []
        self.gap = []
        self.pre = []

    def add_mfma(self, t):
        self.mf.append(t)
        self.gap.append([])

    def used(self, g):
        return sum(c for c, _ in self.gap[g])

    def put(self, g, text, cost=1):
        if g < 0:
            self.pre.append((cost, text))
        else:
            self.gap[g].append((cost, text))

    def fill(self, queue, g0, g1, cap=2):
        g = g0
        for cost, text in queue:
            while g < g1 and self.used(g) + cost > cap:
                g += 1
            self.gap[g].append((cost, text))
        return g

    def text(self):
        o = [t for _, t in self.pre]
        for m, gp in zip(self.mf, self.gap):
            o.append(m)
            o += [t for _, t in gp]
        return o


def foff(kb, c): return (c >> 1) * 4096 + kb * 2048 + (c & 1) * 512

def kread(off):
    return [lambda f: f"ds_read_b128 {vr(f)}, v{VK} offset:{off}"]

def vread(off, fb):
    return [lambda f, kb=kb: f"ds_read_b64_tr_b16 v[{f+2*kb}:{f+2*kb+1}], v{VTR[fb & 1]} offset:{off + foff(kb, fb >> 1)}" for kb in range(2)]


def qk_block(h, off, cinit):
    fr = []
    for ds in range(8):
        ms = []
        for qb in range(4):
            c = cinit(qb) if ds == 0 else vr(S(h, qb))
            ms.append(lambda f, qb=qb, ds=ds, c=c: f"v_mfma_f32_16x16x32_bf16 {vr(S(h,qb))}, {vr(f)}, {vr(Q(qb,ds))}, {c}")
        fr.append((kread(off + foff(h, ds)), ms))
    return fr


TR = [0]
def pvm(acc, f, pp):
    a, b = (pp, f) if TR[0] else (f, pp)
    return f"v_mfma_f32_16x16x32_bf16 {ar(acc)}, {vr(a)}, {vr(b)}, {ar(acc)}"


def pv_block(p, off, fb0):
    fr = []
    for fb in range(fb0, fb0 + 8):
        ms = []
        for qb in range(4):
            ms.append(lambda f, qb=qb, fb=fb: pvm(O(fb, qb), f, P(p, qb)))
        fr.append((vread(off, fb), ms))
    return fr


def build_seg(frags, next_reads):
    sg = Seg()
    n = len(frags)
    assert n % RING == 0
    rds = [r for r, _ in frags] + list(next_reads)
    for i, (_, ms) in enumerate(frags):
        for m in ms:
            sg.add_mfma(m(F(i)))
    issued = []
    for i in range(RING): issued += [i] * len(rds[i])
    def wait(g, i):
        last = max(k for k, x in enumerate(issued) if x == i)
        assert issued.count(i) == len(rds[i])
        sg.put(g, f"s_waitcnt lgkmcnt({len(issued) - 1 - last})")
    wait(-1, 0)
    for i in range(n):
        g = 4 * i + 3
        nxt = i + RING
        late = []
        if nxt < len(rds):
            r = rds[nxt]
            now = r[:1] if i + 1 < n else r
            late = r[len(now):]
            for x in now:
                sg.put(g, x(F(nxt))); issued.append(nxt)
        if i + 1 < n: wait(g, i + 1)
        for x in late:
            sg.put(g + 1, x(F(nxt))); issued.append(nxt)
    return sg


def softmax_queue(h, pn, site):
    lin, lout = (LA, LB) if h == 0 else (LB, LA)
    if callable(pn):
        pf = pn; P = lambda _, qb: pf(qb)
    else:
        P = globals()['P']
    q = []
    for qb in range(4):
        e = ET[(qb % 2) * 4:(qb % 2) * 4 + 4]
        s = S(h, qb)
        q.append((2, f"v_exp_f32 v{e[0]}, v{s}"))
        q.append((2, f"v_exp_f32 v{e[1]}, v{s+1}"))
        q.append((2, f"v_exp_f32 v{e[2]}, v{s+2}"))
        q.append((1, f"v_add_f32 v{lout[qb]}, v{lin[qb]}, v{e[0]}"))
        q.append((1, f"v_cvt_pk_bf16_f32 v{P(pn,qb)+2*h}, v{e[0]}, v{e[1]}"))
        q.append((2, f"v_exp_f32 v{e[3]}, v{s+3}"))
        q.append((1, f"v_add_f32 v{lout[qb]}, v{lout[qb]}, v{e[1]}"))
        q.append((1, f"v_add_f32 v{lout[qb]}, v{lout[qb]}, v{e[2]}"))
        q.append((1, f"v_add_f32 v{lout[qb]}, v{lout[qb]}, v{e[3]}"))
        q.append((1, f"v_cvt_pk_bf16_f32 v{P(pn,qb)+2*h+1}, v{e[2]}, v{e[3]}"))
    q.append((1, f"v_max3_f32 v{VT0}, v{lout[0]}, v{lout[1]}, v{lout[2]}"))
    q.append((1, f"v_max_f32 v{VT0}, v{VT0}, v{lout[3]}"))
    q.append((1, f"v_cmp_lt_f32 vcc, s{S_THR}, v{VT0}"))
    q.append((1, f"s_cbranch_vccnz L2_rare_site{site}\nL2_ret{site}:"))
    return q


def body(p, kind, sites, opt):
    B = p * 16384
    Bn = (1 - p) * 16384
    negm = lambda qb: vr(NEGM(qb))
    fr = pv_block(p, B, 0)
    if kind != 'tail1':
        fr += qk_block(1, Bn, negm)
    fr += pv_block(p, B, 8)
    if kind == 'loop':
        fr += qk_block(0, B, negm)
    nxt = [vread(Bn, i) for i in range(RING)] if kind != 'tail1' else []
    sg = build_seg(fr, nxt)
    if kind == 'loop':
        gb = opt.get('gbar', 81)
        gd = opt.get('gdma', [0, 1, 2, 5, 6])
        if not opt.get('nobar'):
            sg.put(gb, "s_waitcnt vmcnt(%d)" % sum(1 for x in gd[1:] if x < gb))
            sg.put(gb, "s_barrier")
        assert all(x != gb for x in gd) and gb < 83
        sg.put(gd[0], f"s_mov_b32 m0, s{S_M0}")
        for k in range(4):
            sg.put(gd[k + 1], f"buffer_load_dwordx4 v{VDMA}, s[{SRD_K}:{SRD_K+3}], s{S_OFF} offen offset:{k*1024}{opt.get('dl','')} lds")
        sg.put(125, f"s_add_u32 s{S_OFF}, s{S_OFF}, 0x4000")
        sg.put(125, f"s_add_u32 s{S_M0}, s{S_M0}, 0x4000")
        sg.put(122, f"s_sub_u32 s{S_CNT}, s{S_CNT}, 1")
        sg.put(126, f"s_and_b32 s{S_M0}, s{S_M0}, 0x1ffff")
        sg.put(126, f"s_cmp_eq_u32 s{S_CNT}, 0")
        if p == 0:
            sg.put(70, f"v_add_u32 v{VK}, 0x8000, v{VK}")
            sg.put(70, f"v_and_b32 v{VK}, 0x1ffff, v{VK}")
    if kind == 'tail2':
        sg.put(2, "s_waitcnt vmcnt(0)")
    if p == 1 and kind != 'tail1':
        g = 84 if kind == 'loop' else 81
        sg.put(g, f"v_add_u32 v{VTR[0]}, 0x8000, v{VTR[0]}")
        sg.put(g, f"v_and_b32 v{VTR[0]}, 0x1ffff, v{VTR[0]}")
        sg.put(g + 1, f"v_xor_b32 v{VTR[1]}, 32, v{VTR[0]}")
    if kind != 'tail1' and opt.get('valu', 1):
        def flt(q):
            if opt.get('nochk'): q = q[:-4] + [(0, q[-1][1].split("\n")[1])]
            if opt.get('noexp'): q = [(1, x.replace('v_exp_f32', 'v_mov_b32')) if 'v_exp' in x else (c, x) for c, x in q]
            return q
        g = sg.fill(flt(softmax_queue(0, 1 - p, sites[0])), opt.get('g0', 8), 71)
        if opt.get('verbose'): print(kind, p, "sm0 end", g)
        last = 124 if kind == 'loop' else len(sg.mf) - 1
        g = sg.fill(flt(softmax_queue(1, 1 - p, sites[1])), 72, last)
        if opt.get('verbose'): print(kind, p, "sm1 end", g, "over", [(i, sg.used(i)) for i in range(len(sg.mf)) if sg.used(i) > 2])
    return sg


def rare_code(p, h, sites, pt=None, live=None, spills=()):
    if pt is None:
        pt = lambda qb: P(1 - p, qb)
        live = [lambda qb: P(p, qb)]
    lin, lout = (LA, LB) if h == 0 else (LB, LA)
    o = []
    for st in sites:
        o.append(f"L2_rare_site{st}:")
        o.append(f"s_mov_b32 s{S_SITE}, {st}")
        o.append(f"s_branch L2_rare_{p}_{h}")
    o.append(f"L2_rare_{p}_{h}:")
    o.append("s_nop 15")
    o.append("s_nop 15")
    o.append("s_waitcnt lgkmcnt(0)")
    DL = ET[0:4]
    FF = ET[4:8]
    for qb in range(4):
        s = S(h, qb)
        d = DL[qb]
        o.append(f"v_log_f32 v{VT1}, v{lin[qb]}")
        o.append(f"v_max3_f32 v{d}, v{s}, v{s+1}, v{s+2}")
        o.append(f"v_max3_f32 v{d}, v{d}, v{s+3}, v{VT1}")
        o.append(f"v_mov_b32 v{VT1}, v{d}")
        o.append("s_nop 1")
        o.append(f"v_permlane32_swap_b32 v{d}, v{VT1}")
        o.append("s_nop 1")
        o.append(f"v_max_f32 v{d}, v{d}, v{VT1}")
        o.append(f"v_mov_b32 v{VT1}, v{d}")
        o.append("s_nop 1")
        o.append(f"v_permlane16_swap_b32 v{d}, v{VT1}")
        o.append("s_nop 1")
        o.append(f"v_max_f32 v{d}, v{d}, v{VT1}")
        o.append(f"v_ceil_f32 v{d}, v{d}")
        o.append(f"v_max_f32 v{d}, 0, v{d}")
        o.append(f"v_sub_f32 v{VT1}, 0, v{d}")
        o.append(f"v_exp_f32 v{FF[qb]}, v{VT1}")
        o.append("s_nop 1")
        o.append(f"v_mul_f32 v{lin[qb]}, v{lin[qb]}, v{FF[qb]}")
        o.append(f"v_add_f32 v{M[qb]}, v{M[qb]}, v{d}")
        for r in range(4):
            o.append(f"v_sub_f32 v{NEGM(qb)+r}, v{NEGM(qb)+r}, v{d}")
            o.append(f"v_sub_f32 v{S(0,qb)+r}, v{S(0,qb)+r}, v{d}")
            o.append(f"v_sub_f32 v{S(1,qb)+r}, v{S(1,qb)+r}, v{d}")
        regs = [f(qb) + r for f in live for r in range(4)] + ([] if h == 0 else [pt(qb) + r for r in range(2)])
        def scale(r):
            o.append(f"v_lshlrev_b32 v{VT0}, 16, v{r}")
            o.append(f"v_and_b32 v{VT1}, 0xffff0000, v{r}")
            o.append(f"v_mul_f32 v{VT0}, v{VT0}, v{FF[qb]}")
            o.append(f"v_mul_f32 v{VT1}, v{VT1}, v{FF[qb]}")
            o.append(f"v_cvt_pk_bf16_f32 v{r}, v{VT0}, v{VT1}")
        for r in regs: scale(r)
        for k in spills:
            for hh in range(2):
                off = k * 4096 + qb * 1024 + hh * 8
                o.append(f"ds_read_b64 v[{RD}:{RD+1}], v{VSP} offset:{off}")
                o.append("s_waitcnt lgkmcnt(0)")
                scale(RD); scale(RD + 1)
                o.append(f"ds_write_b64 v{VSP}, v[{RD}:{RD+1}] offset:{off}")
                o.append("s_waitcnt lgkmcnt(0)")
    for qb in range(4):
        s = S(h, qb)
        e = ET[0:4]
        for r in range(4):
            o.append(f"v_exp_f32 v{e[r]}, v{s+r}")
        o.append("s_nop 1")
        o.append(f"v_add_f32 v{lout[qb]}, v{lin[qb]}, v{e[0]}")
        for r in range(1, 4):
            o.append(f"v_add_f32 v{lout[qb]}, v{lout[qb]}, v{e[r]}")
        o.append(f"v_cvt_pk_bf16_f32 v{pt(qb)+2*h}, v{e[0]}, v{e[1]}")
        o.append(f"v_cvt_pk_bf16_f32 v{pt(qb)+2*h+1}, v{e[2]}, v{e[3]}")
    o.append("s_branch L2_rare_common")
    return o


def rare_common(all_sites):
    FF = ET[4:8]
    o = ["L2_rare_common:"]
    FT = [VT0, VT1, RD, RD + 1]
    for qb in range(4):
        if TR[0]:
            o.append(f"v_lshrrev_b32 v{ET[0]}, 4, v{VLANE16}")
            o.append(f"v_and_b32 v{ET[0]}, 0x30, v{ET[0]}")
            for r in range(4): o.append(f"ds_bpermute_b32 v{FT[r]}, v{ET[0]}, v{FF[qb]} offset:{4*r}")
            o.append("s_waitcnt lgkmcnt(0)")
        for fb in range(16):
            for r in range(4):
                a = O(fb, qb) + r
                t = ET[r]
                o.append(f"v_accvgpr_read_b32 v{t}, a{a}")
            for r in range(4):
                o.append(f"v_mul_f32 v{ET[r]}, v{ET[r]}, v{FT[r] if TR[0] else FF[qb]}")
            for r in range(4):
                o.append(f"v_accvgpr_write_b32 a{O(fb,qb)+r}, v{ET[r]}")
    o.append("s_nop 3")
    for st in all_sites[:-1]:
        o.append(f"s_cmp_eq_u32 s{S_SITE}, {st}")
        o.append(f"s_cbranch_scc1 L2_ret{st}")
    o.append(f"s_branch L2_ret{all_sites[-1]}")
    return o


def srd(o, d, off, nbytes, extra_sgpr=None):
    o.append(f"s_add_u32 s{d}, s4, 0x{off & 0xffffffff:x}")
    o.append(f"s_addc_u32 s{d+1}, s5, 0")
    if extra_sgpr is not None:
        o.append(f"s_add_u32 s{d}, s{d}, s{extra_sgpr}")
        o.append(f"s_addc_u32 s{d+1}, s{d+1}, 0")
    o.append(f"s_mov_b32 s{d+2}, 0x{nbytes:x}")
    o.append(f"s_mov_b32 s{d+3}, 0x00020000")


def epilogue(sg_tail, opt):
    conv = []
    for t in range(8):
        q = []
        for qb in range(4):
            st = (t * 4 + qb) * 4
            tmp = [128 + (qb % 2) * 8 + r for r in range(8)]
            for k in range(8):
                q.append((1, f"v_accvgpr_read_b32 v{tmp[k]}, a{O(2*t+k//4,qb)+k%4}"))
            for r in range(4):
                q.append((1, f"v_cvt_pk_bf16_f32 v{st+r}, v{tmp[2*r]}, v{tmp[2*r+1]}"))
            so = 40 + qb if t < 4 else 44 + qb
            q.append((1, f"buffer_store_dwordx4 {vr(st)}, v{VLANE16}, s[{SRD_OP}:{SRD_OP+3}], s{so} offen offset:{(t%4)*1024}{opt.get('st','')}"))
        conv.append(q)
    nm = len(sg_tail.mf)
    assert nm == 64
    for t in range(8):
        g0 = 8 * t + 12
        if g0 <= nm - 1:
            sg_tail.fill(conv[t], g0, min(g0 + 7, nm - 1), cap=7)
        else:
            sg_tail.put(nm - 1, "s_nop 7")
            for c, x in conv[t]:
                sg_tail.put(nm - 1, x, c)
    return sg_tail.text() + ml_store(opt)


def ml_store(opt):
    o = []
    for qb in range(4):
        l = LA[qb]
        o.append(f"v_mov_b32 v{VT1}, v{l}")
        o.append("s_nop 1")
        o.append(f"v_permlane32_swap_b32 v{l}, v{VT1}")
        o.append("s_nop 1")
        o.append(f"v_add_f32 v{l}, v{l}, v{VT1}")
        o.append(f"v_mov_b32 v{VT1}, v{l}")
        o.append("s_nop 1")
        o.append(f"v_permlane16_swap_b32 v{l}, v{VT1}")
        o.append("s_nop 1")
        o.append(f"v_add_f32 v{ET[2*qb+1]}, v{l}, v{VT1}")
        o.append(f"v_mov_b32 v{ET[2*qb]}, v{M[qb]}")
    o.append(f"v_lshlrev_b32 v{VT0}, 2, v{VLANE16}")
    o.append("s_mov_b64 exec, 0xffff")
    for qb in range(4):
        o.append(f"buffer_store_dwordx2 v[{ET[2*qb]}:{ET[2*qb+1]}], v{VT0}, s[{SRD_ML}:{SRD_ML+3}], s48 offen offset:{qb*1024}{opt.get('st','')}")
    return o


def tail_run(p, T, site0, opt):
    negm = lambda qb: vr(NEGM(qb))
    VB = [VTR, [Q(0, 3), Q(0, 3) + 1], [Q(0, 3) + 2, Q(0, 3) + 3]]
    nsp = max(T - 3, 0)
    def ploc(k, final=True):
        if k == T - 1: return lambda qb: Q(qb, 0)
        if k < nsp and final: return lambda qb, k=k: Q(qb, 1 + k)
        return lambda qb, k=k: P((p + k) & 1, qb)
    def kfr(k, h):
        i = (1 - p) + (k - 1)
        fr = []
        for ds in range(8):
            off = (i & 1) * 16384 + foff(h, ds)
            rd = [lambda f, off=off, i=i: f"ds_read_b128 {vr(f)}, v{KB[i >> 1]} offset:{off}"]
            ms = []
            for qb in range(4):
                c = negm(qb) if ds == 0 else vr(S(h, qb))
                ms.append(lambda f, qb=qb, ds=ds, c=c: f"v_mfma_f32_16x16x32_bf16 {vr(S(h,qb))}, {vr(f)}, {vr(Q(qb,ds))}, {c}")
            fr.append((rd, ms))
        return fr
    def vfr(k, fb, final=True):
        i = p + k
        rd = [lambda f, kb=kb: f"ds_read_b64_tr_b16 v[{f+2*kb}:{f+2*kb+1}], v{VB[i >> 1][fb & 1]} offset:{(i & 1) * 16384 + foff(kb, fb >> 1)}" for kb in range(2)]
        pl = ploc(k, final)
        ms = [lambda f, qb=qb: pvm(O(fb, qb), f, pl(qb)) for qb in range(4)]
        return (rd, ms)
    fr = [vfr(0, fb, False) for fb in range(4)]
    blocks = [(1, 1)] + [(k, h) for k in range(2, T) for h in range(2)]
    for k, h in blocks: fr += kfr(k, h)
    G = 4 * len(fr)
    lead = opt.get('lead', 44)
    order = []
    fb = 0
    while 4 * len(order) < lead or fb % 2:
        order += [(k, fb) for k in range(T - 1) if not (k == 0 and fb < 4)]
        fb += 1
    glast = G + 4 * len(order)
    order += [(T - 1, x) for x in range(fb)]
    for x in range(fb, 16):
        order += [(k, x) for k in range(T) if not (k == 0 and x < 4)]
    done = {}
    for i, (k, x) in enumerate(order): done[x] = G + 4 * i + 3
    fr += [vfr(k, x) for k, x in order]
    sg = build_seg(fr, [])
    nm = len(sg.mf)
    if opt.get('fuse'): import gen_f
    if opt.get('timing') and not opt.get('ft'):
        for i, gg in enumerate([30, 47, 111, G - 1, glast, (glast + nm) // 2, nm - 20]):
            sg.put(gg, f"s_memtime s[{74+2*i}:{75+2*i}]", 0)
    g = 0
    for k in range(3, T):
        sg.put(g, f"s_mov_b32 m0, s{S_M0}")
        for j in range(4):
            sg.put(g + 1 + j, f"buffer_load_dwordx4 v{VDMA}, s[{SRD_K}:{SRD_K+3}], s{S_OFF} offen offset:{j*1024} lds ; TK{k}")
        if k + 1 < T:
            sg.put(g + 5, f"s_add_u32 s{S_OFF}, s{S_OFF}, 0x4000\ns_add_u32 s{S_M0}, s{S_M0}, 0x4000\ns_and_b32 s{S_M0}, s{S_M0}, 0x1ffff", 2)
        g += 6
    for k in range(2, T):
        gb = 16 + 32 * (2 * k - 3) - 15
        sg.put(gb, f"WAIT TK{k}" if opt.get('fuse') and k > 2 else f"s_waitcnt vmcnt({4 * (T - 1 - k)})")
        sg.put(gb, "s_barrier")
    sg.put(1, f"v_add_u32 v{VSP}, s50, v{VLANE16}")
    for b in (1, 2):
        if 2 * b <= (1 - p) + (T - 2):
            sg.put(12 + b, f"v_add_u32 v{KB[b]}, 0x{0x8000*b:x}, v{VK}")
            sg.put(12 + b, f"v_and_b32 v{KB[b]}, 0x1ffff, v{KB[b]}")
    GL = G - 32
    for b in (1, 2):
        if 2 * b <= p + T - 1:
            sg.put(GL + 13 + b, f"v_add_u32 v{VB[b][0]}, 0x{0x8000*b:x}, v{VTR[0]}")
            sg.put(GL + 13 + b, f"v_and_b32 v{VB[b][0]}, 0x1ffff, v{VB[b][0]}")
            sg.put(GL + 16, f"v_xor_b32 v{VB[b][1]}, 32, v{VB[b][0]}")
    for k in range(nsp):
        gs = 16 if k == 0 else 16 + 32 * 2 * k
        for qb in range(4):
            sg.put(gs + qb, f"ds_write_b128 v{VSP}, {vr(ploc(k, False)(qb))} offset:{k*4096 + qb*1024}")
            sg.put(GL + 4 * (k + 2) + 1 + (qb & 1) + (qb >> 1) * 4, f"ds_read_b128 {vr(ploc(k)(qb))}, v{VSP} offset:{k*4096 + qb*1024}")
    rare = []
    sites = []
    sms = [(k, h) for k in range(1, T) for h in range(2)]
    cap = opt.get('tcap', 3)
    for i, (k, h) in enumerate(sms):
        st = site0 + i
        sites.append(st)
        g0 = 6 if i == 0 else 16 + 32 * i + (4 if i == len(sms) - 2 else 1)
        g1 = 16 + 32 * i + 31 if i < len(sms) - 1 else glast - 2
        q = softmax_queue(h, ploc(k, False), st)
        c = 2 if (i == 0 or i == len(sms) - 1) else cap
        ge = sg.fill(q[:-1], g0, g1, cap=c)
        sg.put(max(ge, g1 - 2) if i == len(sms) - 2 or i == 0 or (h == 0 and 1 <= k - 1 < nsp) else ge, q[-1][1])
        late = i >= len(sms) - 2
        live = [ploc(j, late) for j in range(k) if late or j >= nsp or (j > 0 and i < 2 * j)]
        spl = [j for j in range(nsp) if j < k and not late and not (j > 0 and i < 2 * j)]
        rare += rare_code(f"t{p}_{i}", h, [st], ploc(k, False), live, spl)
        if opt.get('verbose'): print("tail", p, "sm", k, h, "end", ge, "of", g1, "live", [f(0) for f in live], "spill", spl)
    if opt.get('fuse'):
        ge = sg.fill(gen_f.early1(p, opt), 12, 32, cap=3)
        eg = opt.get('eg', [34, 180, 236])
        for f, g0 in zip((gen_f.early_x, gen_f.early_hf, gen_f.early_h), eg):
            ge = sg.fill(f(p, opt), max(g0, ge), nm - 1, cap=opt.get('ecap', 3))
            if opt.get('verbose'): print("early end", ge)
    g = glast
    ccap = opt.get('ccap', 3)
    if opt.get('mle'):
        q = [(1, f"v_lshlrev_b32 v{VT0}, 2, v{VLANE16}")] if not opt.get('fuse') else [(1, x) for x in gen_f.ml_addr(VT0, VLANE16)]
        for f in ("v_mov_b32 v{e}, v{l}", "v_permlane32_swap_b32 v{l}, v{e}", "v_add_f32 v{l}, v{l}, v{e}", "v_mov_b32 v{e}, v{l}",
                  "v_permlane16_swap_b32 v{l}, v{e}", "v_add_f32 v{e1}, v{l}, v{e}", "v_mov_b32 v{e}, v{m}"):
            q += [(1, f.format(e=ET[2*qb], e1=ET[2*qb+1], l=LA[qb], m=M[qb])) for qb in range(4)]
        if opt.get('fuse'):
            z = ["s_mov_b32 exec_hi, 0"]
            for qb in range(4):
                if qb: z.append(f"s_lshr_b32 s3, s{40+qb}, 2")
                z.append(f"buffer_store_dwordx2 v[{ET[2*qb]}:{ET[2*qb+1]}], v{VT0}, s[{SRD_ML}:{SRD_ML+3}], s{3 if qb else 48} offen{opt.get('st','')}")
            q.append((3, "\n".join(z + ["s_mov_b32 exec_hi, -1"])))
        else: q.append((3, "\n".join(ml_store(opt)[-5:] + ["s_mov_b64 exec, -1"])))
        g = sg.fill(q, g, nm - 1, cap=opt['mle'])
    for t in range(8):
        q = []
        for qb in range(4):
            stg = Q(qb, 4 + t % 4)
            tmp = [128 + (qb % 4) * 8 + r for r in range(8)]
            for k in range(8):
                q.append((1, f"v_accvgpr_read_b32 v{tmp[k]}, a{O(2*t+k//4,qb)+k%4}"))
            for r in range(4):
                q.append((1, f"v_cvt_pk_bf16_f32 v{stg+r}, v{tmp[2*r]}, v{tmp[2*r+1]}"))
            so = 40 + qb if t < 4 else 44 + qb
            q.append((1, f"buffer_store_dwordx4 {vr(stg)}, v{VLANE16}, s[{SRD_OP}:{SRD_OP+3}], s{so} offen offset:{(t%4)*1024}{opt.get('st','')} ; ST{t}"))
        if opt.get('nost'): q = [x for x in q if 'store' not in x[1]]
        if opt.get('nocv'): q = [x for x in q if 'store' in x[1]]
        cc = ccap[t] if isinstance(ccap, list) else ccap
        px = opt.get('plainx', 4 * opt.get('plain', 8))
        q = [(c, x.replace(opt.get('st', ''), '') if (4 * t + i // 13 >= px if px >= 0 else 4 * t + i // 13 < -px) else x) for i, (c, x) in enumerate(q)]
        if opt.get('half'):
            qa = [x for i, x in enumerate(q) if i % 13 in (0, 1, 2, 3, 8, 9)]
            q = [x for i, x in enumerate(q) if i % 13 not in (0, 1, 2, 3, 8, 9)]
            g = sg.fill(qa, max(g, done[2*t] + 3), nm - 1, cap=cc)
        g0 = max(g, max(done[2*t], done[2*t+1]) + 3)
        if g0 > nm - 1:
            if not opt.get('half'): sg.put(nm - 1, "s_nop 7")
            g0 = nm - 1
        if opt.get('fuse'):
            i0 = [i for i, x in enumerate(q) if 'buffer_store' in x[1]][0]
            q.insert(i0 + 1, (1, f"ds_write_b128 v{VSP}, {vr(Q(0, 4 + t % 4))} offset:{t*1024}"))
        g = sg.fill(q, g0, nm - 1, cap=cc)
        if opt.get('verbose'): print("  conv", t, g0, g, "of", nm)
    if opt.get('fuse'):
        return gen_f.fix_waits(sg.text() + ["WAIT HLD"]), rare + gen_f.hl_spin(p), sites
    return sg.text() + ([] if opt.get('mle') else ml_store(opt)), rare, sites


def light(o, opt, TT):
    A = o.append
    LB0 = 0x16000
    KF = 32; VF = 96; OV = lambda fb: 160 + fb * 4 if fb < 8 else 0
    QL = lambda ds: ds * 4
    KFr = lambda h, ds: 32 + (h * 8 + ds) * 4
    VFr = lambda fb: 96 + fb * 4
    SL = [160, 164]; PL = 168; MM, LL, FF, T0, T1 = 172, 173, 174, 175, 176
    AK, AV0, AV1 = 177, 178, 179
    TM = 180
    MK = NEGM(0)
    S_N, S_SL, S_DS, S_T = 51, 52, 53, 54
    A("LT_start:")
    A("s_waitcnt lgkmcnt(0)")
    srd(o, SRD_K, H_OFF, 0)
    A(f"s_mov_b32 s{SRD_K+2}, s49")
    srd(o, SRD_Q, QF_OFF, QF_BYTES)
    A(f"s_mov_b32 s40, {39 * 16 * 8192}")
    A(f"s_mov_b32 s44, {39 * 16 * 8192 + 4096}")
    for ds in range(8):
        A(f"buffer_load_dwordx4 {vr(QL(ds))}, v{VLANE16}, s[{SRD_Q}:{SRD_Q+3}], s{40 if ds < 4 else 44} offen offset:{(ds%4)*1024}")
    def dma(so):
        for w in range(4):
            A(f"s_add_u32 m0, s{S_DS}, {LB0 + w*4096}")
            A(f"s_add_u32 s{S_T}, s{so}, {w*128}")
            for k in range(4):
                A(f"buffer_load_dwordx4 v{VDMA}, s[{SRD_K}:{SRD_K+3}], s{S_T} offen offset:{k*1024} lds")
        A(f"s_add_u32 s{S_DS}, s{S_DS}, 0x4000")
        A(f"s_and_b32 s{S_DS}, s{S_DS}, 0xffff")
    A(f"s_mov_b32 s{S_DS}, 0")
    dma(39)
    for i in range(2):
        dma(S_OFF)
        A(f"s_add_u32 s{S_OFF}, s{S_OFF}, 0x4000")
    A(f"s_mul_i32 s35, s37, 0x{OP_STRIDE:x}")
    srd(o, SRD_OP, OP_OFF, QF_BYTES, 35)
    srd(o, SRD_ML, ML_OFF, NB16 * (2048 if opt.get('fuse') else 1024))
    A(f"s_lshl_b32 s48, s37, 3")
    A(f"s_add_u32 s48, s48, {39 * 16 * 1024}")
    if opt.get('fuse'): A(f"s_mov_b32 s48, {39 * 16 * 2048}")
    lds_addrs(A)
    A(f"s_add_u32 s{S_N}, s{S_CNT}, {TT or 2}")
    A(f"s_mov_b32 s{S_SL}, {LB0}")
    A(f"v_mov_b32 v{MM}, 0xff800000")
    A(f"v_mov_b32 v{LL}, 0")
    for r in range(64): A(f"v_accvgpr_write_b32 a{r}, 0")
    A("LT_loop:")
    dma(S_OFF)
    A(f"s_add_u32 s{S_OFF}, s{S_OFF}, 0x4000")
    A(f"v_add_u32 v{AK}, s{S_SL}, v{VK}")
    A(f"v_add_u32 v{AV0}, s{S_SL}, v{VTR[0]}")
    A(f"v_add_u32 v{AV1}, s{S_SL}, v{VTR[1]}")
    A(f"s_add_u32 s{S_SL}, s{S_SL}, 0x4000")
    A(f"s_cmp_eq_u32 s{S_SL}, {LB0 + 0x10000}")
    A(f"s_cselect_b32 s{S_SL}, {LB0}, s{S_SL}")
    A("s_waitcnt vmcnt(48)")
    for ds in range(8):
        for h in range(2):
            A(f"ds_read_b128 {vr(KFr(h, ds))}, v{AK} offset:{foff(h, ds)}")
    for ds in range(8):
        A(f"s_waitcnt lgkmcnt({14 - 2*ds})")
        for h in range(2):
            A(f"v_mfma_f32_16x16x32_bf16 {vr(SL[h])}, {vr(KFr(h, ds))}, {vr(QL(ds))}, {vr(SL[h]) if ds else vr(MK)}")
    for fb in range(16):
        for kb in range(2):
            A(f"ds_read_b64_tr_b16 v[{VFr(fb)+2*kb}:{VFr(fb)+2*kb+1}], v{AV1 if fb & 1 else AV0} offset:{foff(kb, fb >> 1)}")
    for r in range(4): A(f"v_mov_b32 v{MK+r}, 0")
    A("s_nop 7")
    A(f"v_max3_f32 v{T0}, v{SL[0]}, v{SL[0]+1}, v{SL[0]+2}")
    A(f"v_max3_f32 v{T0}, v{T0}, v{SL[0]+3}, v{SL[1]}")
    A(f"v_max3_f32 v{T0}, v{T0}, v{SL[1]+1}, v{SL[1]+2}")
    A(f"v_max3_f32 v{T0}, v{T0}, v{SL[1]+3}, v{MM}")
    for sw in ("v_permlane32_swap_b32", "v_permlane16_swap_b32"):
        A(f"v_mov_b32 v{T1}, v{T0}")
        A("s_nop 1")
        A(f"{sw} v{T0}, v{T1}")
        A("s_nop 1")
        A(f"v_max_f32 v{T0}, v{T0}, v{T1}")
    if TR[0]: A(f"v_ceil_f32 v{T0}, v{T0}")
    A(f"v_sub_f32 v{FF}, v{MM}, v{T0}")
    A(f"v_exp_f32 v{FF}, v{FF}")
    A(f"v_mov_b32 v{MM}, v{T0}")
    for r in range(8): A(f"v_sub_f32 v{SL[0]+r}, v{SL[0]+r}, v{MM}")
    for r in range(8): A(f"v_exp_f32 v{SL[0]+r}, v{SL[0]+r}")
    A(f"v_mul_f32 v{LL}, v{LL}, v{FF}")
    for r in range(4): A(f"v_cvt_pk_bf16_f32 v{PL+r}, v{SL[0]+2*r}, v{SL[0]+2*r+1}")
    A(f"v_cmp_neq_f32 vcc, 1.0, v{FF}")
    for r in range(8): A(f"v_add_f32 v{LL}, v{LL}, v{SL[0]+r}")
    A("s_cbranch_vccz LT_nors")
    if TR[0]:
        A(f"v_lshrrev_b32 v{T1}, 4, v{VLANE16}")
        A(f"v_and_b32 v{T1}, 0x30, v{T1}")
        for r in range(4): A(f"ds_bpermute_b32 v{188+r}, v{T1}, v{FF} offset:{4*r}")
        A("s_waitcnt lgkmcnt(0)")
    for c in range(8):
        for r in range(8): A(f"v_accvgpr_read_b32 v{TM+r}, a{8*c+r}")
        for r in range(8): A(f"v_mul_f32 v{TM+r}, v{TM+r}, v{188 + r % 4 if TR[0] else FF}")
        for r in range(8): A(f"v_accvgpr_write_b32 a{8*c+r}, v{TM+r}")
    A("LT_nors:")
    A("s_waitcnt lgkmcnt(0)")
    A("s_nop 1")
    for fb in range(16):
        A(pvm(fb * 4, VFr(fb), PL))
    A(f"s_sub_u32 s{S_N}, s{S_N}, 1")
    A(f"s_cmp_lg_u32 s{S_N}, 0")
    A("s_cbranch_scc1 LT_loop")
    A("s_nop 15")
    for t in range(8):
        for r in range(8): A(f"v_accvgpr_read_b32 v{TM+r}, a{8*t+r}")
        for r in range(4): A(f"v_cvt_pk_bf16_f32 v{32+4*t+r}, v{TM+2*r}, v{TM+2*r+1}")
        A(f"buffer_store_dwordx4 {vr(32+4*t)}, v{VLANE16}, s[{SRD_OP}:{SRD_OP+3}], s{40 if t < 4 else 44} offen offset:{(t%4)*1024}{opt.get('st','')}")
    for sw in ("v_permlane32_swap_b32", "v_permlane16_swap_b32"):
        A(f"v_mov_b32 v{T1}, v{LL}")
        A("s_nop 1")
        A(f"{sw} v{LL}, v{T1}")
        A("s_nop 1")
        A(f"v_add_f32 v{LL}, v{LL}, v{T1}")
    A(f"v_lshlrev_b32 v{T0}, 2, v{VLANE16}")
    A("s_mov_b64 exec, 0xffff")
    if opt.get('fuse'):
        import gen_f
        A("s_mov_b64 exec, -1")
        for x in gen_f.ml_addr(T0, VLANE16): A(x)
        A("s_mov_b32 exec_hi, 0")
    A(f"buffer_store_dwordx2 v[{MM}:{LL}], v{T0}, s[{SRD_ML}:{SRD_ML+3}], s48 offen{opt.get('st','')}")
    if opt.get('fuse'):
        import gen_f
        srd(o, 16, gen_f.FLAG_OFF, gen_f.NFLAG * gen_f.fstr(opt))
        A(f"s_add_u32 s48, s37, {156 * 8}")
        A(f"s_mul_i32 s48, s48, {gen_f.fstr(opt)}")
    A("s_waitcnt vmcnt(0)")
    if opt.get('fuse'): gen_f.publish(A, 16, 48, T0, opt)
    A("s_branch L2_fin")


def lds_addrs(A):
    L = VLANE16
    A(f"v_bfe_u32 v{VK}, v{L}, 4, 3")
    A(f"v_lshlrev_b32 v{VK}, 6, v{VK}")
    A(f"v_bfe_u32 v{VT0}, v{L}, 7, 1")
    A(f"v_lshl_or_b32 v{VK}, v{VT0}, 10, v{VK}")
    A(f"v_bfe_u32 v{VT0}, v{L}, 8, 2")
    A(f"v_lshl_or_b32 v{VK}, v{VT0}, 4, v{VK}")
    A(f"v_bfe_u32 v{VT0}, v{L}, 6, 1")
    A(f"v_lshlrev_b32 v{VT0}, 5, v{VT0}")
    A(f"v_xor_b32 v{VK}, v{VK}, v{VT0}")
    A(f"v_and_b32 v{VTR[0]}, 0x1c0, v{L}")
    A(f"v_bfe_u32 v{VT0}, v{L}, 9, 1")
    A(f"v_lshl_or_b32 v{VTR[0]}, v{VT0}, 10, v{VTR[0]}")
    A(f"v_bfe_u32 v{VT0}, v{L}, 8, 1")
    A(f"v_lshl_or_b32 v{VTR[0]}, v{VT0}, 5, v{VTR[0]}")
    A(f"v_bfe_u32 v{VT0}, v{L}, 4, 2")
    A(f"v_lshl_or_b32 v{VTR[0]}, v{VT0}, 3, v{VTR[0]}")
    A(f"v_xor_b32 v{VTR[1]}, 32, v{VTR[0]}")
    A(f"v_bfe_i32 v{VT0}, v{L}, 8, 1")
    for r in range(4):
        A(f"v_and_b32 v{NEGM(0)+r}, s{S_MASK}, v{VT0}")


def prologue2(o, opt, T):
    A = o.append
    Z = ET[0]
    for r in range(4):
        A(f"v_mov_b32 v{Z+r}, 0")
    nvm = [6]
    qidx = {}
    zi = 0
    for ds in range(8):
        for qb in range(4):
            so = 40 + qb if ds < 4 else 44 + qb
            A(f"buffer_load_dwordx4 {vr(Q(qb,ds))}, v{VLANE16}, s[{SRD_Q}:{SRD_Q+3}], s{so} offen offset:{(ds%4)*1024}")
            nvm[0] += 1
            qidx[(ds, qb)] = nvm[0]
            if qb % 2 == 1:
                A(f"v_mfma_f32_32x32x16_bf16 a[{16*zi}:{16*zi+15}], {vr(Z)}, {vr(Z)}, 0")
                zi += 1
    T(1)
    if opt.get('fuse'):
        import gen_f; gen_f.prologue(A, o, 95)
    lds_addrs(A)
    items = []
    dm = lambda k: (1, f"buffer_load_dwordx4 v{VDMA}, s[{SRD_K}:{SRD_K+3}], s{S_OFF} offen offset:{k*1024} lds")
    items += [dm(2), dm(3)]
    items.append((0, f"s_add_u32 s{S_OFF}, s{S_OFF}, 0x4000\ns_add_u32 m0, s{S_M0}, 0x8000\ns_nop 0"))
    items += [dm(k) for k in range(4)]
    items.append((0, f"s_add_u32 s{S_OFF}, s{S_OFF}, 0x4000\ns_add_u32 s{S_M0}, s{S_M0}, 0xc000"))
    spre = opt.get('spre', 0)
    while spre > 0:
        v, t = items.pop(0)
        A(t); nvm[0] += v; spre -= v
    T(2)
    A(f"s_waitcnt vmcnt({nvm[0]-6})")
    A("s_barrier")
    T(3)
    TB = P_BASE[1]
    dst = [S_BASE[0], S_BASE[1], TB]
    fr = []
    for ds in range(8):
        for b in range(3):
            ms = []
            for qb in range(4):
                d = vr(dst[b] + 4 * qb)
                c0 = vr(NEGM(0)) if b < 2 else '0'
                ms.append(lambda f, qb=qb, ds=ds, d=d, c0=c0: f"v_mfma_f32_16x16x32_bf16 {d}, {vr(f)}, {vr(Q(qb,ds))}, {d if ds else c0}")
            fr.append((kread((b >> 1) * 16384 + foff(b & 1, ds)), ms))
    for i in range(RING):
        A(fr[i][0][0](F(i)))
    sg = build_seg(fr, [])
    per = opt.get('sper', 3)
    for ds in range(8):
        g = 12 * ds - 1
        sg.put(g, f"s_waitcnt vmcnt({nvm[0]-qidx[(ds,3)]})")
        k = 0
        gg = g + 2
        while items and (k < per or ds == 7):
            v, t = items.pop(0)
            sg.put(min(gg, 95), t); nvm[0] += v; k += v; gg += 2
    o += sg.text()
    T(6)
    R4 = range(4)
    s0 = lambda qb: S(0, qb)
    s1 = lambda qb: S(1, qb)
    for qb in R4: A(f"v_max3_f32 v{M[qb]}, v{s0(qb)}, v{s0(qb)+1}, v{s0(qb)+2}")
    for qb in R4: A(f"v_max3_f32 v{M[qb]}, v{M[qb]}, v{s0(qb)+3}, v{s1(qb)}")
    for qb in R4: A(f"v_max3_f32 v{M[qb]}, v{M[qb]}, v{s1(qb)+1}, v{s1(qb)+2}")
    for qb in R4: A(f"v_max_f32 v{M[qb]}, v{M[qb]}, v{s1(qb)+3}")
    for sw in ("v_permlane32_swap_b32", "v_permlane16_swap_b32"):
        for qb in R4: A(f"v_mov_b32 v{ET[qb]}, v{M[qb]}")
        for qb in R4: A(f"{sw} v{M[qb]}, v{ET[qb]}")
        for qb in R4: A(f"v_max_f32 v{M[qb]}, v{M[qb]}, v{ET[qb]}")
    if TR[0]:
        for qb in R4: A(f"v_ceil_f32 v{M[qb]}, v{M[qb]}")
    for h in range(2):
        for qb in R4:
            for r in R4: A(f"v_sub_f32 v{S(h,qb)+r}, v{S(h,qb)+r}, v{M[qb]}")
            for r in R4: A(f"v_exp_f32 v{S(h,qb)+r}, v{S(h,qb)+r}")
            if h == 0:
                for r in R4: A(f"v_sub_f32 v{NEGM(qb)+r}, 0, v{M[qb]}")
        if h == 0:
            A("s_waitcnt vmcnt(4)")
            A("s_barrier")
            for i in range(RING):
                for x in vread(0, i): A(x(F(i)))
    T(7)
    for h in range(2):
        for qb in R4:
            s = S(h, qb)
            A(f"v_cvt_pk_bf16_f32 v{P(0,qb)+2*h}, v{s}, v{s+1}")
            A(f"v_cvt_pk_bf16_f32 v{P(0,qb)+2*h+1}, v{s+2}, v{s+3}")
    for qb in R4: A(f"v_add_f32 v{LA[qb]}, v{s0(qb)}, v{s0(qb)+1}")
    for qb in R4: A(f"v_add_f32 v{LB[qb]}, v{s0(qb)+2}, v{s0(qb)+3}")
    for r in R4:
        for qb in R4:
            t = LA if r % 2 == 0 else LB
            A(f"v_add_f32 v{t[qb]}, v{t[qb]}, v{s1(qb)+r}")
    for qb in R4: A(f"v_add_f32 v{LA[qb]}, v{LA[qb]}, v{LB[qb]}")
    for qb in R4:
        for r in R4: A(f"v_sub_f32 v{s0(qb)+r}, v{TB+4*qb+r}, v{M[qb]}")


def gen_k2(opt=None):
    opt = opt or {}
    TR[0] = opt.get('tr', opt.get('fuse', 0))
    o = []
    A = o.append
    def T(i):
        if opt.get('timing'): A(f"s_memtime s[{74+2*i}:{75+2*i}]")
    A("s_load_dwordx2 s[4:5], s[0:1], %d" % KA_WS)
    if opt.get('fuse'):
        import gen_f
        A("s_load_dwordx2 s[60:61], s[0:1], %d" % KA_X)
        A("s_load_dwordx2 s[52:53], s[0:1], %d" % KA_DEG)
        A("s_load_dwordx2 s[56:57], s[0:1], %d" % KA_OUT)
    if opt.get('timing'):
        A("s_memtime s[62:63]")
        A("s_memrealtime s[64:65]")
    A("s_and_b32 s35, s2, 7")
    A("s_lshr_b32 s37, s2, 3")
    A("s_cmp_ge_u32 s37, 30")
    A("s_cbranch_scc1 LE_start")
    if opt.get('map', 1) == 1:
        A("s_mul_i32 s38, s37, 52")
        A("s_lshr_b32 s38, s38, 8")
        A("s_mul_i32 s39, s38, 5")
        A("s_sub_u32 s39, s37, s39")
        A("s_mov_b32 s37, s38")
        A("s_mul_i32 s38, s35, 5")
        A("s_add_u32 s38, s38, s39")
    else:
        A("s_mul_i32 s38, s37, 26")
        A("s_lshr_b32 s38, s38, 8")
        A("s_mul_i32 s39, s38, 10")
        A("s_sub_u32 s39, s37, s39")
        A("s_and_b32 s37, s35, 1")
        A("s_mul_i32 s37, s37, 3")
        A("s_add_u32 s37, s37, s38")
        A("s_lshr_b32 s38, s35, 1")
        A("s_mul_i32 s38, s38, 10")
        A("s_add_u32 s38, s38, s39")
    A("v_lshrrev_b32 v1, 6, v0")
    A(f"v_and_b32 v{VLANE16}, 63, v0")
    A(f"v_lshlrev_b32 v{VLANE16}, 4, v{VLANE16}")
    A(f"v_readfirstlane_b32 s{S_WAVE}, v1")
    cnts = opt.get('cnts', [52, 52, 52, 52, 52, 53])
    assert sum(cnts) == NT and len(cnts) == NSPLIT
    st = [sum(cnts[:i]) for i in range(NSPLIT)] + [NT - 1]
    pk = sum(x << (9 * i) for i, x in enumerate(st))
    A(f"s_mov_b32 s50, 0x{pk & 0xffffffff:x}")
    A(f"s_mov_b32 s51, 0x{pk >> 32:x}")
    A(f"s_mul_i32 s39, s37, 9")
    A(f"s_lshr_b64 s[50:51], s[50:51], s39")
    A(f"s_and_b32 s39, s50, 0x1ff")
    A(f"s_bfe_u32 s49, s50, 0x90009")
    A(f"s_sub_u32 s{S_CNT}, s49, s39")
    TT = opt.get('trun', 0)
    A(f"s_sub_u32 s{S_CNT}, s{S_CNT}, {TT or 2}")
    A(f"s_lshl_b32 s39, s39, 14")
    A(f"s_lshl_b32 s49, s49, 14")
    A(f"s_add_u32 s{S_OFF}, s39, 0x4000")
    A(f"s_cmp_eq_u32 s37, {NSPLIT-1}")
    A(f"s_addc_u32 s{S_CNT}, s{S_CNT}, 0")
    A(f"s_cmp_eq_u32 s37, {NSPLIT-1}")
    A(f"s_cselect_b32 s{S_OFF}, s39, s{S_OFF}")
    A(f"s_cselect_b32 s39, {(NT-1)*16384}, s39")
    A(f"s_cselect_b32 s49, {NT*16384}, s49")
    A(f"s_cselect_b32 s{S_MASK}, 0xff800000, 0")
    A(f"s_mov_b32 s{S_THR}, 0x5d800000")
    A("v_and_b32 v2, 63, v0")
    A("v_bfe_u32 v3, v2, 3, 2")
    A("v_bfe_u32 v4, v2, 2, 1")
    A(f"v_lshlrev_b32 v{VDMA}, 12, v3")
    A(f"v_lshl_or_b32 v{VDMA}, v4, 9, v{VDMA}")
    A(f"v_lshl_or_b32 v{VDMA}, v1, 7, v{VDMA}")
    A("v_lshrrev_b32 v4, 5, v2")
    A(f"v_lshl_or_b32 v{VDMA}, v4, 6, v{VDMA}")
    A("v_and_b32 v3, 2, v3")
    A("v_and_b32 v4, 3, v2")
    A("v_xor_b32 v3, v3, v4")
    A(f"v_lshl_or_b32 v{VDMA}, v3, 4, v{VDMA}")
    if opt.get('light'):
        A("s_cmp_eq_u32 s38, 39")
        A("s_cbranch_scc1 LT_disp")
    A(f"s_lshl_b32 s{S_M0}, s{S_WAVE}, 12")
    A(f"s_lshl_b32 s50, s{S_WAVE}, 13")
    A(f"s_add_u32 s50, s50, 0x20000")
    A(f"s_mov_b32 m0, s{S_M0}")
    if opt.get('fuse'): gen_f.pre_wait(A, 94, 95)
    A("s_waitcnt lgkmcnt(0)")
    T(0)
    srd(o, SRD_K, H_OFF, 0)
    A(f"s_mov_b32 s{SRD_K+2}, s49")
    for k in range(4):
        A(f"buffer_load_dwordx4 v{VDMA}, s[{SRD_K}:{SRD_K+3}], s39 offen offset:{k*1024} lds")
    A(f"s_add_u32 m0, s{S_M0}, 0x4000")
    srd(o, SRD_Q, QF_OFF, QF_BYTES)
    for k in range(2):
        A(f"buffer_load_dwordx4 v{VDMA}, s[{SRD_K}:{SRD_K+3}], s{S_OFF} offen offset:{k*1024} lds")
    A(f"s_mul_i32 s35, s37, 0x{OP_STRIDE:x}")
    srd(o, SRD_OP, OP_OFF, QF_BYTES, 35)
    srd(o, SRD_ML, ML_OFF, NB16 * (2048 if opt.get('fuse') else 1024))
    A(f"s_lshl_b32 s35, s38, 4")
    A(f"s_lshl_b32 s41, s{S_WAVE}, 2")
    A(f"s_add_u32 s35, s35, s41")
    A(f"s_lshl_b32 s40, s35, 13")
    if opt.get('fuse'):
        A("s_lshl_b32 s94, s94, 13")
        A("s_add_u32 s40, s40, s94")
    for qb in range(1, 4):
        A(f"s_{'xor_b32' if opt.get('fuse') else 'add_u32'} s{40+qb}, s40, {qb*8192}")
    for qb in range(4):
        A(f"s_add_u32 s{44+qb}, s{40+qb}, 4096")
    A(f"s_lshl_b32 s48, s35, 10")
    A(f"s_lshl_b32 s35, s37, 3")
    A(f"s_add_u32 s48, s48, s35")
    prologue2(o, opt, T)
    A("s_nop 1")
    if opt.get('timing'):
        A("s_memtime s[66:67]")
        A("s_waitcnt lgkmcnt(0)")
    sites = {}
    n = 0
    for kind in ('loop', 'tail2'):
        for p in (0, 1):
            sites[(kind, p)] = (n, n + 1)
            n += 2
    rares = []; alls = list(range(4 if TT else n))
    A(".p2align 6")
    A("L2_loop:")
    o += body(0, 'loop', sites[('loop', 0)], opt).text()
    A("s_cbranch_scc1 L2_tail_1")
    o += body(1, 'loop', sites[('loop', 1)], opt).text()
    A("s_cbranch_scc0 L2_loop")
    for p in (0, 1):
        A(f"L2_tail_{p}:")
        if opt.get('timing'):
            A("s_memtime s[68:69]")
            A("s_waitcnt lgkmcnt(0)")
        if TT:
            tl, rr, ss = tail_run(p, TT, len(alls), opt)
            o += tl; rares += rr; alls += ss
        else:
            o += body(p, 'tail2', sites[('tail2', p)], opt).text()
            A("s_nop 1")
            T(8)
            o += epilogue(body(1 - p, 'tail1', None, opt), opt)
        T(9)
        A("s_branch L2_F" if opt.get('fuse') else "s_branch L2_fin")
    if opt.get('fuse'):
        A("L2_F:")
        nfs = [0]
        def fstamp(A_):
            if opt.get('timing') and opt.get('ft') and nfs[0] < 7:
                A_(f"s_memtime s[{74+2*nfs[0]}:{75+2*nfs[0]}]"); nfs[0] += 1
        fo, fspin = gen_f.final(opt, fstamp)
        o += fo
        if opt.get('ftwice'):
            A("s_barrier\ns_xor_b32 s31, s31, 1\ns_cbranch_scc1 L2_F")
        A("s_branch L2_fin")
        o += fspin
        A("L2_Fend:")
    if opt.get('valu', 1):
        for p in (0, 1):
            for h in (0, 1):
                o += rare_code(p, h, [sites[('loop', p)][h]] + ([] if TT else [sites[('tail2', p)][h]]))
        o += rares
        o += rare_common(alls)
    import gen_eg
    if opt.get('light'):
        A("LT_disp:")
        A(f"s_cmp_eq_u32 s{S_WAVE}, 0")
        A("s_cbranch_scc1 LT_start")
        A(f"s_mov_b32 s{gen_eg.S_W}, s{S_WAVE}")
        A(f"s_mul_i32 s{gen_eg.S_B}, s{S_WAVE}, 6")
        A(f"s_add_u32 s{gen_eg.S_B}, s{gen_eg.S_B}, s37")
        A(f"s_add_u32 s{gen_eg.S_B}, s{gen_eg.S_B}, 42")
        A(f"s_cmp_lt_u32 s{gen_eg.S_B}, {NBK}")
        A("s_cbranch_scc1 LE_common")
        A("s_branch L2_end")
        light(o, opt, TT)
    gen_eg.gen_edge(o, opt)
    A("L2_fin:")
    if opt.get('timing'):
        A("s_mov_b64 exec, -1")
        A("s_waitcnt vmcnt(0)")
        A("s_memtime s[70:71]")
        A("s_memrealtime s[72:73]")
        A("s_waitcnt lgkmcnt(0)")
        A("s_sub_u32 s66, s66, s62")
        A("s_sub_u32 s68, s68, s62")
        A("s_sub_u32 s70, s70, s62")
        for i in range(10):
            A(f"s_sub_u32 s{74+2*i}, s{74+2*i}, s62\nv_mov_b32 v{4+i}, s{74+2*i}")
        A("v_mov_b32 v14, s64\nv_mov_b32 v15, s72")
        A("s_sub_u32 s72, s72, s64")
        A("v_mov_b32 v0, s66\nv_mov_b32 v1, s68\nv_mov_b32 v2, s70\nv_mov_b32 v3, s72")
        A("s_add_u32 s60, s4, 0x%x\ns_addc_u32 s61, s5, 0" % TIM_OFF)
        A("v_mbcnt_lo_u32_b32 v248, -1, 0\nv_mbcnt_hi_u32_b32 v248, -1, v248\nv_lshlrev_b32 v248, 4, v248")
        A("s_mov_b32 s62, 0x100000\ns_mov_b32 s63, 0x00020000")
        A(f"s_lshl_b32 s35, s2, 2")
        A(f"s_add_u32 s35, s35, s{S_WAVE}")
        A(f"s_lshl_b32 s35, s35, 10")
        A(f"buffer_store_dwordx4 v[0:3], v{VLANE16}, s[60:63], s35 offen")
        A("s_add_u32 s35, s35, 0x200000\ns_mov_b32 s62, 0x800000")
        for k in range(3):
            A(f"buffer_store_dwordx4 v[{4+4*k}:{7+4*k}], v{VLANE16}, s[60:63], s35 offen")
            A("s_add_u32 s35, s35, 0x100000")
    A("L2_end:")
    return "\n".join(o)


def kernel_desc(opt=None):
    return dict(name="k2_kernel", body=gen_k2(opt), vgpr=512, accum=256, grid=256, block=256, lds=163840 if (opt or {}).get('trun', 0) > 3 or (opt or {}).get('light') else 131072)
```

```python
from layout import *

L_W0 = 4096
LIST_B = 20480
L_WS = LIST_B + 1024
PADV = 0xffff
assert ((4096 + 3 * BN) // 4 + BN // 4 + 31) // 32 * 32 + 40 <= LIST_B // 16

VL = 1; VN16 = 2; VG = 3
CNT = 4; CP = 5
VOFF = 6
VCB = 7
VONE = 16; VFOUR = 17
MINV = [18, 19, 20, 21]
CB = 24
GS = 28
VS = 32; VT = 33; VT2 = 34; VCA = 35
VLB = 36
VFL = 37
VRD = 38
VST = 39
SELA = 40; SELB = 44
ACC = 48
IDXA = [52, 56]
AD = 60
PK = 64
PV = 66
VFILL = 68
VPAD = 72
IDX = 128
E = 192

S_B, S_W, S_PASS, S_LIM, S_NIT, S_IT, S_F, S_SO, S_T, S_512, S_EO = 40, 41, 42, 43, 44, 45, 46, 47, 48, 49, 50
SRD_C, SRD_E, SRD_G, SRD_H = 8, 12, 16, 20


def wave_reduce(A, v, t, op):
    for m in ("row_shr:1", "row_shr:2", "row_shr:4", "row_shr:8", "row_bcast:15 row_mask:0xa", "row_bcast:31 row_mask:0xc"):
        A("s_nop 1")
        A(f"{op}_dpp v{v}, v{v}, v{v} {m}" + (" row_mask:0xf" if "mask" not in m else "") + " bank_mask:0xf")


def gen_edge(o, opt):
    A = o.append
    timing = opt.get('timing')
    NEW = opt.get('new', 16); ECAP = 163840 // NEW; LPS = 64 // NEW; LS = LPS.bit_length() - 1; PER = 4096 // NEW
    nst = [0]
    def stamp():
        if timing:
            A("s_memtime s[88:89]")
            A("s_waitcnt lgkmcnt(0)")
            A(f"v_writelane_b32 v126, s88, {nst[0]}")
            nst[0] += 1
    A("LE_start:")
    A("s_cmp_ge_u32 s37, 32")
    A("s_cbranch_scc1 L2_end")
    A("v_lshrrev_b32 v1, 6, v0")
    A("s_sub_u32 s37, s37, 30")
    A("s_lshl_b32 s35, s35, 1")
    A(f"v_readfirstlane_b32 s{S_W}, v1")
    A("s_add_u32 s35, s35, s37")
    A("s_mul_i32 s35, s35, %d" % (3 if opt.get('light') else 4))
    A(f"s_add_u32 s{S_B}, s35, s{S_W}")
    if opt.get('light'):
        A(f"s_cmp_ge_u32 s{S_W}, 3")
        A("s_cbranch_scc1 L2_end")
    A("LE_common:")
    A(f"v_and_b32 v{VL}, 63, v0")
    if opt.get('wexit'):
        A(f"s_cmp_ge_u32 s{S_W}, {opt['wexit']}")
        A("s_cbranch_scc1 L2_end")
    A(f"s_mov_b32 s{S_PASS}, 0")
    A(f"s_mov_b32 s{S_512}, 512")
    A(f"v_lshrrev_b32 v{VT}, {LS}, v{VL}")
    A(f"v_and_b32 v{VT2}, {LPS-1}, v{VL}")
    A(f"v_mul_u32_u24 v{VOFF}, 0x{ECAP*4:x}, v{VT}")
    A(f"v_lshl_add_u32 v{VOFF}, v{VT2}, 4, v{VOFF}")
    A(f"v_lshlrev_b32 v{VT}, 2, v{VT}")
    A(f"s_mul_i32 s{S_EO}, s{S_B}, {NEW*ECAP*4}")
    A(f"s_mul_i32 s{S_T}, s{S_B}, {NEW*4}")
    A("s_waitcnt lgkmcnt(0)")
    if timing:
        A("s_mov_b32 s100, s62")
        A("v_mov_b32 v126, v254")
    hl = ' sc1' if opt.get('mg') else ''
    if opt.get('mg'):
        import gen_f
        gen_f.poll_all(A, o, "LE_poll", SRD_C, 192)
        A(f"s_cmp_lg_u32 s{S_B}, 0")
        A("s_cbranch_scc1 LE_nobump")
        A(f"s_mov_b32 s90, {(gen_f.EPOCH - gen_f.P1F0) * gen_f.FS}")
        A(f"s_mov_b32 s{SRD_C+2}, {(gen_f.EPOCH + 1 - gen_f.P1F0) * gen_f.FS}")
        gen_f.publish(A, SRD_C, 90, 192, opt)
        A("LE_nobump:")
    srd_from(o, SRD_C, 4, ECNT_OFF, NBK * NEW * 4)
    srd_from(o, SRD_E, 4, EDGE_OFF, EDGE_BYTES)
    A(f"buffer_load_dword v{CNT}, v{VT}, {sr(SRD_C)}, s{S_T} offen{hl}")
    def eloads():
        for k in range(16):
            A(f"buffer_load_dwordx4 {vr(E + k*4)}, v{VOFF}, {sr(SRD_E)}, s{S_EO} offen offset:{k*16*LPS}{hl}")
    eloads()
    srd_from(o, SRD_G, 4, ME_OFF, ME_BYTES)
    srd_from(o, SRD_H, 4, HL_OFF, HL_BYTES)
    A(f"v_lshlrev_b32 v{CP}, 2, v{VT2}")
    A(f"v_and_b32 v{VN16}, 15, v{VL}")
    A(f"v_lshrrev_b32 v{VG}, 4, v{VL}")
    A(f"v_mov_b32 v{VONE}, 1")
    A(f"v_mov_b32 v{VFOUR}, 4")
    A(f"v_and_b32 v{VT}, 1, v{VN16}")
    A(f"v_lshlrev_b32 v{VT}, 4, v{VT}")
    A(f"v_lshlrev_b32 v{VT}, v{VT}, v{VONE}")
    A(f"v_mul_u32_u24 v{VT}, 0x3f80, v{VT}")
    A(f"v_lshrrev_b32 v{VT2}, 1, v{VN16}")
    for k in range(8):
        A(f"v_cmp_eq_u32 vcc, {k}, v{VT2}")
        A("s_nop 1")
        A(f"v_cndmask_b32 v{SELA + k}, 0, v{VT}, vcc")
    A(f"v_lshlrev_b32 v{VST}, 5, v{VN16}")
    A(f"v_lshl_add_u32 v{VST}, v{VG}, 3, v{VST}")
    A(f"v_lshlrev_b32 v{VN16}, 4, v{VN16}")
    A(f"s_mul_i32 s{S_T}, s{S_W}, {L_WS}")
    A(f"s_add_u32 s{S_T}, s{S_T}, {L_W0}")
    A(f"v_mov_b32 v{VLB}, s{S_T}")
    A(f"v_lshl_add_u32 v{VRD}, v{VG}, 2, v{VLB}")
    A(f"s_lshl_b32 s36, s{S_W}, 10")
    A(f"v_mov_b32 v{VCB}, s36")
    A(f"v_lshlrev_b32 v{VCA}, 4, v{VL}")
    A(f"v_add_u32 v{VFILL}, s{S_T}, v{VCA}")
    A(f"v_add_u32 v{VCA}, s36, v{VCA}")
    A(f"v_lshlrev_b32 v{VT}, 2, v{VL}")
    for k in range(4):
        A(f"v_mov_b32 v{VPAD+k}, 0x{PADV:x}")
    for k in range(4):
        A(f"v_cmp_gt_u32 vcc, {BN - k}, v{VT}")
        A(f"v_mov_b32 v{ACC+k}, 0")
        A("s_nop 0")
        A(f"v_cndmask_b32 v{MINV[k]}, 0, v{VONE}, vcc")
    A("LE_pass:")
    A(f"ds_write_b128 v{VCA}, {vr(ACC)}")
    for k in range(LIST_B // 1024):
        A(f"ds_write_b128 v{VFILL}, {vr(VPAD)} offset:{k*1024}")
    A(f"v_lshl_add_u32 v{VS}, v{VL}, 2, v{VLB}")
    A(f"ds_write_b32 v{VS}, v{ACC} offset:{LIST_B}")
    stamp()
    A("s_waitcnt vmcnt(16)")
    stamp()
    A(f"v_sub_u32 v{VS}, v{CNT}, v{CP}")
    def slots(lab, fn, wait=False):
        for k in range(16):
            if wait: A(f"s_waitcnt vmcnt({15-k})")
            for j in range(4):
                A(f"v_cmpx_lt_i32 vcc, {4*LPS*k+j}, v{VS}")
                if j == 0: A(f"s_cbranch_execz {lab}")
                fn(4 * k + j)
        A(f"{lab}:")
        A("s_mov_b64 exec, -1")
    def f_count(s):
        A(f"v_mad_u32_u16 v{IDX+s}, v{E+s}, 1, v{VCB} op_sel:[1,0,0,0]")
        A(f"ds_add_u32 v{IDX+s}, v{VONE}")
    slots("LE_c", f_count, True)
    stamp()
    A(f"ds_read_b128 {vr(CB)}, v{VCA}")
    A("s_waitcnt lgkmcnt(0)")
    for k in range(4):
        A(f"v_add_u32 v{CB+k}, 3, v{CB+k}")
        A(f"v_lshrrev_b32 v{CB+k}, 2, v{CB+k}")
        A(f"v_max_u32 v{CB+k}, v{CB+k}, v{MINV[k]}")
    A(f"v_add_u32 v{VT}, v{CB}, v{CB+1}")
    A(f"v_add3_u32 v{VT}, v{VT}, v{CB+2}, v{CB+3}")
    A(f"v_mov_b32 v{PK}, v{VT}")
    wave_reduce(A, PK, None, "v_add_u32")
    A("s_nop 1")
    A(f"v_readlane_b32 s{S_NIT}, v{PK}, 63")
    A(f"v_sub_u32 v{GS}, v{PK}, v{VT}")
    for k in range(1, 4):
        A(f"v_add_u32 v{GS+k}, v{GS+k-1}, v{CB+k-1}")
    for k in range(4):
        A(f"v_add3_u32 v{VT}, v{GS+k}, v{CB+k}, -1")
        A(f"v_lshlrev_b32 v{VT2}, v{VT}, v{MINV[k]}")
        A(f"v_lshrrev_b32 v{VT}, 5, v{VT}")
        A(f"v_lshl_add_u32 v{VT}, v{VT}, 2, v{VLB}")
        A(f"ds_or_b32 v{VT}, v{VT2} offset:{LIST_B}")
        A(f"v_lshl_add_u32 v{GS+k}, v{GS+k}, 4, v{VLB}")
    A(f"ds_write_b128 v{VCA}, {vr(GS)}")
    A(f"s_add_u32 s{S_NIT}, s{S_NIT}, 31")
    A(f"s_lshr_b32 s{S_NIT}, s{S_NIT}, 5")
    stamp()
    slots("LE_p", lambda s: A(f"ds_add_rtn_u32 v{IDX+s}, v{IDX+s}, v{VFOUR}"))
    A(f"v_lshl_add_u32 v{VT}, v{VL}, 2, v{VLB}")
    A(f"ds_read_b32 v{VFL}, v{VT} offset:{LIST_B}")
    A("s_waitcnt lgkmcnt(0)")
    slots("LE_w", lambda s: A(f"ds_write_b32 v{IDX+s}, v{E+s}"))
    stamp()
    A(f"v_mov_b32 v{VT2}, v{VRD}")
    NBT = 8
    def idx_read(b, par):
        i = IDXA[par]
        A(f"ds_read2_b32 v[{i}:{i+1}], v{VT2} offset0:{b*16} offset1:{b*16+4}")
        A(f"ds_read2_b32 v[{i+2}:{i+3}], v{VT2} offset0:{b*16+8} offset1:{b*16+12}")
    gl = opt.get('gl', hl)
    def issue(b):
        par = b % 2
        A("s_waitcnt lgkmcnt(0)")
        idx_read(b + 1, 1 - par)
        for i in range(4):
            A(f"v_mad_u32_u16 v{AD+i}, v{IDXA[par]+i}, s{S_512}, v{VN16}")
        for i in range(4):
            r = (b * 4 + i) * 8
            A(f"buffer_load_dwordx4 {ar(r)}, v{AD+i}, {sr(SRD_G)}, 0 offen{gl}")
            A(f"buffer_load_dwordx4 {ar(r+4)}, v{AD+i}, {sr(SRD_G)}, 0 offen offset:256{gl}")
    idx_read(0, 0)
    for b in range(NBT):
        issue(b)
    A(f"v_add_u32 v{VT2}, {NBT*64}, v{VT2}")
    A(f"s_mov_b32 s{S_IT}, 0")
    A(f"s_mul_i32 s{S_SO}, s{S_B}, {BN*512}")
    A("LE_loop:")
    A(f"v_readlane_b32 s{S_F}, v{VFL}, s{S_IT}")
    A(f"s_add_u32 s{S_IT}, s{S_IT}, 1")
    for b in range(NBT):
        A(f"s_waitcnt vmcnt({(NBT-1)*8})")
        for i in range(4):
            g = b * 4 + i
            r = g * 8
            A(f"v_mfma_f32_16x16x32_bf16 {vr(ACC)}, {ar(r)}, {vr(SELA)}, {vr(ACC)}")
            A(f"v_mfma_f32_16x16x32_bf16 {vr(ACC)}, {ar(r+4)}, {vr(SELB)}, {vr(ACC)}")
            A(f"s_bitcmp1_b32 s{S_F}, {g}")
            A(f"s_cbranch_scc0 LE_nf{g}")
            A(f"s_cmp_eq_u32 s{S_PASS}, 0")
            A(f"s_cbranch_scc1 LE_fl{g}")
            A(f"buffer_load_dwordx2 v[{PV}:{PV+1}], v{VST}, {sr(SRD_H)}, s{S_SO} offen sc1")
            A("s_waitcnt vmcnt(0)")
            for k in range(2):
                A(f"v_lshlrev_b32 v{PK}, 16, v{PV+k}")
                A(f"v_and_b32 v{PK+1}, 0xffff0000, v{PV+k}")
                A(f"v_add_f32 v{ACC+2*k}, v{ACC+2*k}, v{PK}")
                A(f"v_add_f32 v{ACC+2*k+1}, v{ACC+2*k+1}, v{PK+1}")
            A(f"LE_fl{g}:")
            A("s_nop 3")
            A(f"v_cvt_pk_bf16_f32 v{PK}, v{ACC}, v{ACC+1}")
            A(f"v_cvt_pk_bf16_f32 v{PK+1}, v{ACC+2}, v{ACC+3}")
            for k in range(4):
                A(f"v_mov_b32 v{ACC+k}, 0")
            A(f"buffer_store_dwordx2 v[{PK}:{PK+1}], v{VST}, {sr(SRD_H)}, s{S_SO} offen{opt.get('ste', '')}")
            A(f"s_add_u32 s{S_SO}, s{S_SO}, 512")
            A(f"LE_nf{g}:")
        issue(b)
    A(f"v_add_u32 v{VT2}, {NBT*64}, v{VT2}")
    A(f"s_cmp_lt_u32 s{S_IT}, s{S_NIT}")
    A("s_cbranch_scc1 LE_loop")
    stamp()
    A(f"s_add_u32 s{S_PASS}, s{S_PASS}, 1")
    A(f"s_mul_i32 s{S_LIM}, s{S_PASS}, {PER}")
    A(f"v_cmp_lt_u32 vcc, s{S_LIM}, v{CNT}")
    A("s_cbranch_vccz LE_done")
    A(f"s_cmp_ge_u32 s{S_PASS}, {ECAP // PER}")
    A("s_cbranch_scc1 LE_done")
    A("s_waitcnt vmcnt(0) lgkmcnt(0)")
    A(f"s_add_u32 s{S_EO}, s{S_EO}, {PER*4}")
    A(f"v_add_u32 v{CP}, 0x{PER:x}, v{CP}")
    eloads()
    A("s_branch LE_pass")
    A("LE_done:")
    if opt.get('fuse'):
        import gen_f
        srd_from(o, 24, 4, gen_f.FLAG_OFF, gen_f.NFLAG * gen_f.fstr(opt))
        A(f"s_add_u32 s{S_T}, s{S_B}, {gen_f.HLF0}")
        A(f"s_mul_i32 s{S_T}, s{S_T}, {gen_f.fstr(opt)}")
        A("s_waitcnt vmcnt(0)")
        gen_f.publish(A, 24, S_T, VS, opt)
    if opt.get('tpf'):
        A("s_getpc_b64 s[64:65]")
        A("LE_pc:")
        A("s_sub_u32 s64, s64, LE_pc-L2_tail_0")
        A("s_subb_u32 s65, s65, 0")
        A("s_mov_b32 s66, L2_rare_site0-L2_tail_0")
        A("s_mov_b32 s67, 0x00020000")
        A("s_mov_b64 exec, -1")
        A(f"v_lshlrev_b32 v1, 7, v{VL}")
        for k in range(3):
            A(f"s_movk_i32 s68, 0x{k*8192:x}")
            A(f"buffer_load_dword v{2+k}, v1, s[64:67], s68 offen")
    if timing:
        A("s_waitcnt vmcnt(0)")
        stamp()
        A(f"v_subrev_u32 v0, s100, v126")
        A("s_memrealtime s[88:89]")
        A("s_waitcnt lgkmcnt(0)")
        A("v_writelane_b32 v0, s88, 7")
        A("s_add_u32 s60, s4, 0x%x\ns_addc_u32 s61, s5, 0" % TIM_OFF)
        A("s_mov_b32 s62, 0x200000\ns_mov_b32 s63, 0x00020000")
        A(f"s_lshl_b32 s35, s{S_B}, 8")
        A(f"s_add_u32 s35, s35, 0x100000")
        A(f"v_lshlrev_b32 v1, 2, v{VL}")
        A(f"buffer_store_dword v0, v1, s[60:63], s35 offen")
    A("s_branch L2_end")
```

```python
from layout import *
from sched import *
import hazard

MF32 = "v_mfma_f32_16x16x32_bf16"
FLAG_OFF = 124 << 20
NFLAG = 2048
HLF0 = 1280
FS = 128
P1F0, WFF0, HF0, AF0, EPOCH = 1344, 1600, 1664, 1920, 2047
S_TAG = 98
MG = [0]
OOB = 0x70000000
MLS = 128
OWN = [[0, 4, 8], [1, 5, 12], [2, 9, 13], [6, 10, 14], [3, 7], [11, 15]]
SX, SWS, SM, SD, SO = 8, 16, 24, 52, 56
P_X = 60
S_NEED = 96
XO = [6, 7, 29]; S_FO = 51
S_WAVE, S_SPLIT, S_SPB, S_ML0 = 34, 37, 50, 48
S_XL, S_XB, S_H2 = 31, 28, 30
VLANE16, VE = 248, 241
DIAG, ACC, BF, ZA, WT, T = 0, 160, 208, 128, 144, 232
POOL = [r for r in range(24, 128, 8) if r not in (40, 72, 104)]
XR = [104, 108, 152]
VIL, VH0, VH1, VPOLL, VPO, VPF = 40, 44, 45, 46, 47, 158
VWF = 108
VBH, VOW, VDGR = 72, 76, 79
VMK = 156
VW0, VW1, VML, VT0, VT1, VTR, VWW, VWR, VZ, VZR, DG = 240, 241, 242, 245, 246, 247, 249, 250, 251, 252, 253
WO = [32, 33, 35, 36, 38, 39, 40, 41]
STR = [42, 43, 44, 45, 46, 47]
S_TMP = [49, 3]
S_SPIN, S_MASK = 94, 95


def fstr(opt): return FS


def pre_wait(A, s_oq, s_own):
    tab = 0
    for i, b in enumerate(x for l in OWN for x in l): tab |= b << (4 * i)
    A(f"s_mov_b32 s6, 0x{tab & 0xffffffff:x}")
    A(f"s_mov_b32 s7, 0x{tab >> 32:x}")
    A("s_mul_i32 s3, s37, 12")
    A("s_min_u32 s3, s3, 56")
    A("s_lshr_b64 s[6:7], s[6:7], s3")
    A("s_bfe_u32 s29, s6, 0x40008")
    A("s_bfe_u32 s7, s6, 0x40004")
    A("s_and_b32 s6, s6, 15")
    A("s_cmp_lt_u32 s37, 4")
    A("s_cselect_b32 s29, s29, 16")
    A(f"s_mov_b32 s{s_oq}, 0")
    A(f"s_mov_b32 s{s_own}, 0")
    for r in XO:
        A(f"s_lshr_b32 s3, s{r}, 2")
        A(f"s_cmp_eq_u32 s3, s{S_WAVE}")
        A(f"s_cselect_b32 s{s_oq}, s{r}, s{s_oq}")
        A(f"s_cselect_b32 s{s_own}, 1, s{s_own}")
    A(f"s_and_b32 s{s_oq}, s{s_oq}, 3")
    A("s_lshl_b32 s3, s38, 17")
    A(f"s_lshl_b32 s{S_FO}, s{S_WAVE}, 7")
    A(f"s_add_u32 s3, s3, s{S_FO}")
    for r in XO:
        A(f"s_lshl_b32 s{r}, s{r}, 13")
        A(f"s_add_u32 s{r}, s{r}, s3")
    A(f"s_mov_b64 s[{S_NEED}:{S_NEED+1}], 0")
    for r in XO:
        for e in (0, 15):
            A(f"s_lshr_b32 s3, s{r}, 9")
            if e: A(f"s_add_u32 s3, s3, {e}")
            A(f"s_mul_i32 s3, s3, {BMAGIC}")
            A(f"s_lshr_b32 s3, s3, {BSHIFT}")
            A(f"s_bitset1_b64 s[{S_NEED}:{S_NEED+1}], s3")
    A("s_mul_i32 s3, s38, 6")
    A("s_add_u32 s3, s3, s37")
    A(f"s_cmp_eq_u32 s3, {38 * 6 + 5}")
    A("s_cselect_b32 s3, 0, s37")
    A("s_cmp_lt_u32 s3, 4")
    A(f"s_cselect_b32 s29, s29, 0x{OOB:x}")
    A(f"s_lshl_b32 s{S_FO}, s38, 5")
    A(f"s_lshl_b32 s3, s{S_WAVE}, 3")
    A(f"s_add_u32 s{S_FO}, s{S_FO}, s3")
    A(f"s_add_u32 s{S_FO}, s{S_FO}, s37")
    A(f"s_mul_i32 s{S_FO}, s{S_FO}, {FS}")
    A(f"s_add_u32 s{S_FO}, s{S_FO}, 0x{FLAG_OFF:x}")


def prologue(A, o, s_own):
    srd_from(o, SWS, 4, 0, 256 << 20)
    srd_from(o, SX, P_X, 0, N * 512)
    A(f"s_mov_b32 s{SD+2}, 0x{N*2:x}"); A(f"s_mov_b32 s{SD+3}, 0x00020000")
    A(f"s_mov_b32 s{SO+2}, 0x{N*512:x}"); A(f"s_mov_b32 s{SO+3}, 0x00020000")
    A(f"s_lshr_b32 s{S_ML0}, s40, 2")
    A(f"s_cmp_eq_u32 s{s_own}, 1")
    A(f"s_cselect_b32 s40, 0x{OOB:x}, s40")
    A(f"s_cselect_b32 s44, 0x{OOB:x}, s44")


def ml_addr(v, L):
    return [f"v_bfe_u32 v{v}, v{L}, 8, 1", f"v_mul_u32_u24 v{v}, 48, v{v}", f"v_lshl_add_u32 v{v}, s{S_SPLIT}, 3, v{v}",
            f"v_and_b32 v{v+1}, 0xf0, v{L}", f"v_lshl_add_u32 v{v}, v{v+1}, 3, v{v}"]


def publish(A, srd, soff, vt, opt):
    assert vt % 2 == 0
    A(f"v_mov_b32 v{vt}, s{S_TAG}")
    A(f"v_mov_b32 v{vt+1}, s{S_TAG+1}")
    A("s_mov_b64 exec, 1")
    A(f"buffer_store_dwordx2 {vr(vt, 2)}, off, {sr(srd)}, s{soff} sc1")
    A("s_mov_b64 exec, -1")


def spin(A, lab, loads, regs, cnt=94, need=None, pair='vcc'):
    A(f"s_mov_b32 s{cnt}, 0x10000")
    A(f"{lab}:")
    for t in loads: A(t)
    A(f"s_sub_u32 s{cnt}, s{cnt}, 1")
    A("s_waitcnt vmcnt(0)")
    A(f"s_cbranch_scc1 {lab}_go")
    for r in regs:
        A(f"v_cmp_ne_u64 vcc, {sr(S_TAG, 2)}, {vr(r, 2)}")
        A("s_nop 1")
        A(f"s_cbranch_vccnz {lab}")
    A(f"{lab}_go:")


def poll_all(A, o, lab, srd, v):
    srd_from(o, srd, 4, FLAG_OFF + P1F0 * FS, 256 * FS)
    A(f"v_and_b32 v{v+8}, 63, v0")
    A(f"v_lshlrev_b32 v{v+8}, 7, v{v+8}")
    so = ['0', 's91', 's90', 's95']
    for k in range(1, 4): A(f"s_mov_b32 {so[k]}, {k * 8192}")
    spin(A, lab, [f"buffer_load_dwordx2 {vr(v+2*k, 2)}, v{v+8}, {sr(srd)}, {so[k]} offen sc1" for k in range(4)], [v + 2 * k for k in range(4)])


def vh0(v, t):
    L = VLANE16
    return [f"v_lshrrev_b32 v{v}, 4, v{L}", f"v_and_b32 v{v}, 0x30, v{v}", f"v_xor_b32 v{v}, v{v}, v{L}",
            f"v_and_b32 v{t}, 0x380, v{L}\nv_mad_u32_u24 v{v}, v{t}, 3, v{v}"]


def early1(p, opt):
    q = []
    A = lambda t, c=1: q.append((c, t))
    A(f"s_and_b32 s30, s30, 0x1c000")
    A(f"s_add_u32 s{S_XB}, s30, 0x{(1 + 2 * p) * 0x4000:x}")
    A(f"s_and_b32 s{S_XB}, s{S_XB}, 0x1ffff")
    A(f"s_add_u32 s30, s30, 0x{(2 - p) * 0x4000:x}")
    A(f"s_and_b32 s30, s30, 0x1ffff")
    A(f"s_mul_i32 s{S_XL}, s{S_WAVE}, 6144")
    A(f"s_add_u32 s{S_XL}, s{S_XL}, s30")
    A(f"s_lshl_b32 s3, s{S_WAVE}, 10")
    A(f"s_add_u32 s{S_XB}, s{S_XB}, s3")
    A(f"s_add_u32 s3, s3, 24576")
    A(f"s_add_u32 s{S_H2}, s30, s3")
    for t in vh0(VE, 243): A(t, 1 + t.count("\n"))
    return q


def dma6(A, c):
    seq = [(rb, u) for u in range(2) for rb in range(3)]
    m0 = lambda rb, u: f"s_add_u32 m0, s{S_XL}, {rb*2048 + u*1024}" if c == 'x' else f"s_add_u32 m0, s{S_XB if rb < 2 else S_H2}, {(rb % 2)*8192 + u*4096}"
    A(m0(*seq[0]), 2)
    for k, (rb, u) in enumerate(seq):
        t = f"buffer_load_dwordx4 v{VE}, {sr(SX)}, s{XO[rb]} offen lds" if c == 'x' else f"buffer_load_dwordx4 v{VE}, {sr(SWS)}, s{XO[rb]} offen sc1 lds ; HLD"
        if k < 5: t += "\n" + m0(*seq[k + 1])
        A(t, 2)
        if k == 2: A(f"v_xor_b32 v{VE}, 0x1040, v{VE}")


def early_x(p, opt):
    q = []
    dma6(lambda t, c=1: q.append((c, t)), 'x')
    return q


def early_hf(p, opt):
    return [(1, f"v_lshlrev_b32 v{VE}, 3, v{VLANE16}"), (1, f"s_mov_b32 s3, 0x{FLAG_OFF + HLF0 * FS:x}"),
            (1, f"buffer_load_dwordx2 {vr(VE-1, 2)}, v{VE}, {sr(SWS)}, s3 offen sc1 ; HLFLAG")]


def early_h(p, opt):
    q = []
    A = lambda t, c=1: q.append((c, t))
    A("WAIT HLFLAG")
    A(f"v_cmp_ne_u64_e64 s[38:39], {sr(S_TAG, 2)}, {vr(VE-1, 2)}")
    A(f"s_and_b64 s[38:39], s[38:39], s[{S_NEED}:{S_NEED+1}]\ns_cbranch_scc1 LF_hl_{p}\nLF_hlret_{p}:", 2)
    for t in vh0(VE, 243): A(t, 1 + t.count("\n"))
    A(f"v_add_u32 v{VE}, 0x{HL_OFF:x}, v{VE}")
    if MG[0]:
        A(f"v_and_b32 v{VWF+2}, 0x70, v{VLANE16}")
        A(f"v_lshlrev_b32 v{VWF+2}, 3, v{VWF+2}")
        A(f"v_add_u32 v{VWF+2}, 0x{FLAG_OFF + WFF0 * FS:x}, v{VWF+2}")
        A(f"buffer_load_dwordx2 {vr(VWF, 2)}, v{VWF+2}, {sr(SWS)}, 0 offen sc1")
    dma6(A, 'h')
    return q


def fix_waits(lines):
    lines = [x for l in lines for x in l.split("\n")]
    for b, l in enumerate(lines):
        if l.startswith("WAIT "):
            a = max(i for i, x in enumerate(lines) if x.endswith("; " + l[5:]))
            n = sum(1 for x in lines[a + 1:b] if x.startswith("buffer_"))
            assert a < b and n < 64, (l, a, b, n)
            lines[b] = f"s_waitcnt vmcnt({n})"
    return lines


def hl_spin(p):
    return [f"LF_hl_{p}:", f"s_mov_b32 s{S_SPIN}, 0x10000", f"s_mov_b32 s3, 0x{FLAG_OFF + HLF0 * FS:x}", f"LF_hl2_{p}:", f"v_lshlrev_b32 v{VE}, 3, v{VLANE16}",
            f"buffer_load_dwordx2 {vr(VE-1, 2)}, v{VE}, {sr(SWS)}, s3 offen sc1",
            f"s_sub_u32 s{S_SPIN}, s{S_SPIN}, 1", "s_waitcnt vmcnt(0)", f"s_cbranch_scc1 LF_hlret_{p}",
            f"v_cmp_ne_u64_e64 s[38:39], {sr(S_TAG, 2)}, {vr(VE-1, 2)}", f"s_and_b64 s[38:39], s[38:39], s[{S_NEED}:{S_NEED+1}]",
            f"s_cbranch_scc1 LF_hl2_{p}", f"s_branch LF_hlret_{p}"]


R = lambda s, n: s * n
ORDERS = {
    'h1': "d" + R("a", 12) + "F" + R("a", 20) + "p" + R("b", 10) + "P" + "mmm" + R("0b", 6) + "|" + R("1bb", 6) + "|" + "2bb2bb2|222|",
    'h2': "d" + R("a", 12) + "F" + R("a", 20) + R("b", 12) + "p" + R("b", 10) + "P" + "mmm" + R("0b", 6) + "|" + R("1b", 4) + "11|" + "222|222|",
    'h3': "d" + R("a", 12) + "F" + R("a", 20) + R("b", 22) + "p" + R("b", 10) + "P" + "mmm" + R("0", 6) + "|" + R("1", 6) + "|" + "222|222|",
    'h4': "d" + R("a", 12) + "F" + R("a", 12) + "p" + R("a", 8) + "P" + "mmm" + R("0bb", 6) + "|" + R("1bb", 6) + "|" + "2bbbb2bbbb2|222|",
}


def final(opt, stamp=None):
    stamp = stamp or (lambda A: None)
    q = []
    A = lambda t, **k: q.append(V(t, **k))
    L = VLANE16
    if MG[0]: A(f"v_cmp_ne_u64 vcc, {sr(S_TAG, 2)}, {vr(VWF, 2)}")
    A(f"s_lshl_b32 s3, s{S_WAVE}, 15")
    A(f"s_add_u32 s3, s3, 0x{WF_OFF:x}")
    if MG[0]: A("s_cbranch_vccnz LF_wf\nLF_wf_go:")
    A(f"v_add_u32 v{VW0}, s3, v{L}")
    A(f"v_add_u32 v{VW1}, 0x4000, v{VW0}")
    for k in range(8): A(f"s_mov_b32 s{WO[k]}, 0x{(k >> 2) * 131072 + (k & 3) * 4096:x}")
    for rb in range(3): A(f"s_lshr_b32 s{STR[rb]}, s{XO[rb]}, 13")
    A(f"v_mov_b32 v{VML}, s{STR[0]}")
    A(f"v_mov_b32 v{T}, s{STR[1]}")
    A(f"v_cmp_lt_u32 vcc, 0xff, v{L}")
    A(f"v_mov_b32 v{T+1}, s{STR[2]}")
    A(f"v_cndmask_b32 v{VML}, v{VML}, v{T}, vcc")
    A(f"v_cmp_lt_u32 vcc, 0x1ff, v{L}")
    A(f"v_and_b32 v{T+3}, 0xf0, v{L}")
    A(f"v_cndmask_b32 v{VML}, v{VML}, v{T+1}, vcc")
    A(f"v_lshlrev_b32 v{VML}, 11, v{VML}")
    A(f"v_lshl_add_u32 v{VML}, v{T+3}, 3, v{VML}")
    A(f"v_lshrrev_b32 v{VDGR}, 6, v{VML}")
    late = []
    B = lambda t: late.append(V(t))
    B(f"s_lshl_b32 s3, s{S_SPLIT}, 3")
    B(f"v_add3_u32 v{VML}, v{VML}, s3, 8")
    B(f"s_cmp_ge_u32 s{XO[2]}, 0x{OOB:x}")
    B(f"s_cselect_b32 s{STR[2]}, s{STR[1]}, s{STR[2]}")
    B(f"v_mov_b32 v{VPOLL}, s{STR[0]}")
    B(f"v_mov_b32 v{T}, s{STR[1]}")
    B(f"v_cmp_lt_u32 vcc, 0x7f, v{L}")
    B(f"v_mov_b32 v{T+1}, s{STR[2]}")
    B(f"v_cndmask_b32 v{VPOLL}, v{VPOLL}, v{T}, vcc")
    B(f"v_cmp_lt_u32 vcc, 0xff, v{L}")
    B(f"v_bfe_u32 v{T}, v{L}, 4, 3")
    B(f"v_cndmask_b32 v{VPOLL}, v{VPOLL}, v{T+1}, vcc")
    B(f"v_min_u32 v{T}, 5, v{T}")
    B(f"v_lshrrev_b32 v{VPOLL}, 2, v{VPOLL}")
    B(f"v_lshl_add_u32 v{VPOLL}, v{VPOLL}, 3, v{T}")
    B(f"v_lshlrev_b32 v{VPOLL}, {FS.bit_length() - 1}, v{VPOLL}")
    B(f"v_add_u32 v{VPOLL}, 0x{FLAG_OFF:x}, v{VPOLL}")
    B(f"s_lshl_b32 s49, s{S_WAVE}, 11")
    B(f"s_add_u32 s49, s49, 0x20000")
    for rb in range(3):
        B(f"s_bfe_u32 s3, s{XO[rb]}, 0x2000f")
        B(f"s_lshl_b32 s3, s3, 13")
        B(f"s_add_u32 s3, s3, s49")
        B(f"v_add_u32 v{VOW+rb}, s3, v{L}")
    for k in range(6):
        B(f"s_add_u32 s3, s{S_SPLIT}, {k + 1}")
        B(f"s_sub_u32 s49, s3, 6")
        B(f"s_cselect_b32 s3, s3, s49")
        B(f"s_mul_i32 s3, s3, 0x{OP_STRIDE:x}")
        B(f"s_add_u32 s{STR[k]}, s3, 0x{OP_OFF if not opt.get('foob') else OOB:x}")
    B(f"s_mul_i32 s3, s{S_WAVE}, {2048 - 128}")
    B(f"v_add_u32 v{VPO}, s3, v{L}")
    for t in vh0(VH0, T): late += [V(x) for x in t.split("\n")]
    B(f"v_xor_b32 v{VH1}, 0x1040, v{VH0}")
    B(f"v_bfe_u32 v{T}, v{L}, 5, 3")
    B(f"v_lshrrev_b32 v{T+2}, 8, v{L}")
    B(f"v_xor_b32 v{T}, v{T}, v{T+2}")
    B(f"v_bfe_u32 v{T+1}, v{L}, 4, 3")
    B(f"v_lshlrev_b32 v{T+1}, 7, v{T+1}")
    B(f"v_lshl_or_b32 v{T}, v{T}, 4, v{T+1}")
    B(f"v_bfe_u32 v{T+1}, v{L}, 7, 1")
    B(f"s_lshl_b32 s49, s{S_WAVE}, 10")
    B(f"s_sub_u32 s3, s{S_XB}, s49")
    B(f"v_lshl_add_u32 v{VBH+2}, v{T+1}, 12, v{T}")
    B(f"v_add_u32 v{VBH}, s3, v{VBH+2}")
    B(f"s_sub_u32 s3, s{S_H2}, s49")
    B(f"v_add_u32 v{VBH+2}, s3, v{VBH+2}")
    B(f"v_xor_b32 v{VBH+1}, 64, v{VBH}")
    B(f"v_xor_b32 v{VBH+3}, 64, v{VBH+2}")
    B(f"v_lshl_add_u32 v{VT0}, v{T+1}, 10, v{T}")
    B(f"v_add_u32 v{VT0}, s{S_XL}, v{VT0}")
    B(f"v_xor_b32 v{VT1}, 64, v{VT0}")
    B(f"v_add_u32 v{VTR}, s{S_XL}, v{L}")
    B(f"s_add_u32 s3, s3, 0x{0x10000 - 24576:x}")
    B(f"s_and_b32 s3, s3, 0x1ffff")
    B(f"v_add_u32 v{VZR}, s3, v{L}")
    B(f"s_lshl_b32 s49, s{S_WAVE}, 11")
    B(f"v_add_u32 v{VZ}, s49, v{VZR}")
    B(f"s_add_u32 s3, s3, s49")
    B(f"s_add_u32 s3, s3, 24576")
    B(f"v_lshl_add_u32 v{VWW}, v{L}, 1, s3")
    B(f"v_lshl_add_u32 v{VWR}, v{T+3}, 1, s3")
    B(f"v_lshrrev_b32 v{T}, 4, v{T+3}")
    B(f"v_lshlrev_b32 v{T+2}, 2, v{T+2}")
    B(f"v_sub_u32 v{T}, v{T}, v{T+2}")
    B(f"v_and_b32 v{T+1}, 1, v{T}")
    B(f"v_lshlrev_b32 v{T+1}, 4, v{T+1}")
    B(f"v_mov_b32 v{T+2}, 0xffff")
    B(f"v_lshlrev_b32 v{T+1}, v{T+1}, v{T+2}")
    B(f"v_lshrrev_b32 v{T}, 1, v{T}")
    for k in range(2):
        B(f"v_cmp_eq_u32 vcc, {k}, v{T}")
        B(f"v_cndmask_b32 v{VMK+k}, 0, v{T+1}, vcc")
    B(f"s_mov_b32 s{S_MASK}, 0xffff0000")
    order = opt.get('forder', 'h1'); order = ORDERS.get(order, order)
    D = opt.get('fd', 12)
    Lq = []; cnt = {}; bar = set()
    for ch in order:
        if ch == '|': bar.add(len(Lq) - 1); continue
        Lq.append((ch, cnt.get(ch, 0))); cnt[ch] = cnt.get(ch, 0) + 1
    assert cnt == dict(F=1, P=1, p=1, d=1, m=3, a=32, b=32, **{'0': 6, '1': 6, '2': 6}), cnt
    wgt = lambda e: 0 if e[0] in 'FP' else (1 if e[1] % 3 == 2 and e[0] != '2' else 2) if e[0] in '012' else 1
    free = list(POOL); reg = {}; low = [99]; glue = set()
    MLR = ZA
    ld = opt.get('fld', ' sc1')
    def issue(z, e):
        Z = lambda t: z.append(V(t))
        ch, k = e
        if ch == 'F':
            z.append(W('ost')); stamp(Z)
            Z(f"v_mov_b32 v{VPF}, s{S_TAG}"); Z(f"v_mov_b32 v{VPF+1}, s{S_TAG+1}"); Z("s_mov_b64 exec, 1")
            z.append(VM(f"buffer_store_dwordx2 {vr(VPF, 2)}, off, {sr(SWS)}, s{S_FO} sc1", tag=e)); Z("s_mov_b64 exec, -1")
        elif ch == 'p':
            z.append(VM(f"buffer_load_dwordx2 {vr(VPF, 2)}, v{VPOLL}, {sr(SWS)}, 0 offen sc1", tag=e))
        elif ch == 'P':
            stamp(Z)
            z.append(V(f"v_cmp_ne_u64 vcc, {sr(S_TAG, 2)}, {vr(VPF, 2)}", needs=[('p', 0)])); Z("s_nop 1\ns_cbranch_vccnz LF_spin\nLF_go:")
            stamp(Z)
        elif ch == 'd':
            z.append(VM(f"buffer_load_ushort v{VDGR}, v{VDGR}, {sr(SD)}, 0 offen", tag=e))
        elif ch == 'm':
            z.append(VM(f"buffer_load_dwordx4 {vr(MLR + 4*k)}, v{VML}, {sr(SM)}, 0 offen offset:{16*k} sc1", tag=e))
        elif ch in '012':
            r = reg[e] = free.pop(0); low[0] = min(low[0], len(free))
            rb = int(ch); j, sp = k // 3, k % 3
            gl = lambda u, rr: f"buffer_load_dwordx4 {vr(rr)}, v{VPO}, {sr(SWS)}, s{S_TMP[u]} offen offset:{j*1024}{ld}"
            dl = lambda rr: f"ds_read_b128 {vr(rr)}, v{VOW+rb} offset:{j*1024}"
            for u in range(2):
                if sp == 2 and u == 1 and rb < 2:
                    z.append(LD(dl(r + 4), tag=('own', e))); continue
                Z(f"s_add_u32 s{S_TMP[u]}, s{XO[rb]}, s{STR[2*sp+u]}")
                if sp == 2 and u == 1:
                    assert len(fdone) == 3
                    Z(f"s_cmp_lt_u32 s{S_SPLIT}, 4\ns_cbranch_scc1 LF_o{j}")
                    z.append(V(gl(u, r + 4) + f"\n{dl(WT + 8)}\ns_branch LF_j{j}\nLF_o{j}:\ns_mov_b32 s{S_TMP[u]}, 0x{OOB:x}"))
                    z.append(VM(gl(u, WT + 8), tag=e)); z.append(LD(dl(r + 4) + f"\nLF_j{j}:", tag=('own', e)))
                    glue.update(id(x) for x in z[-3:])
                else: z.append(VM(gl(u, r + 4 * u), tag=e))
        else:
            z.append(VM(wload('ab'.index(ch), k), tag=e))
    tn = [0]
    def tmp():
        tn[0] += 1; return T + (tn[0] % 4) * 2
    diag = lambda rb, sp: DIAG + (rb % 2) * 12 + sp * 4
    def wt(z, rb):
        z.append(LD(f"ds_read_b128 {vr(WT)}, v{VWR} offset:{rb*512}"))
        z.append(LD(f"ds_read_b128 {vr(WT+4)}, v{VWR} offset:{rb*512+16}", tag=('wt', rb)))
    def dbuild(z, rb):
        for s in range(NSPLIT):
            for k in range(2): z.append(V(f"v_and_b32 v{diag(rb, s // 2) + 2*(s % 2) + k}, v{WT+s}, v{VMK+k}", needs=[('wt', rb)]))
        z.append(V(f"v_mov_b32 v{VIL+rb}, v{WT+6}"))
    def dg_setup(z):
        z.append(V(f"v_lshlrev_b32 v{VDGR}, 16, v{VDGR}"))
        z.append(LD(f"ds_write_b32 v{VWW}, v{VDGR} offset:28"))
        for rb in range(3): z.append(LD(f"ds_read_b32 v{DG+rb}, v{VWR} offset:{rb*512+28}", tag='dg'))
    def weights(z):
        Z = lambda t: z.append(V(t))
        m = lambda s: MLR + 2 * s
        l = lambda s: m(s) + 1
        Z(f"v_max3_f32 v{T}, v{m(0)}, v{m(1)}, v{m(2)}")
        Z(f"v_max3_f32 v{T+1}, v{m(3)}, v{m(4)}, v{m(5)}")
        Z(f"v_max_f32 v{T}, v{T}, v{T+1}")
        Z(f"v_subrev_f32 v{T}, 0x42fe0000, v{T}")
        for s in range(NSPLIT): Z(f"v_sub_f32 v{m(s)}, v{m(s)}, v{T}")
        for s in range(NSPLIT): Z(f"v_cvt_u32_f32 v{m(s)}, v{m(s)}")
        for s in range(NSPLIT): Z(f"v_lshlrev_b32 v{T+2+s}, 23, v{m(s)}")
        Z(f"v_mul_f32 v{T}, v{T+2}, v{l(0)}")
        for s in range(1, NSPLIT): Z(f"v_fmac_f32 v{T}, v{T+2+s}, v{l(s)}")
        Z(f"v_rcp_f32 v{WT+6}, v{T}")
        for s in range(NSPLIT): Z(f"v_mul_u32_u24 v{WT+s}, 0x800080, v{m(s)}")
        z.append(LD(f"ds_write_b128 v{VWW}, {vr(WT)}"))
        z.append(LD(f"ds_write_b96 v{VWW}, {vr(WT+4, 3)} offset:16"))
        wt(z, 0); dbuild(z, 0); wt(z, 1)
    zw = set(); zok = set()
    acc = lambda rb, j, b: ACC + ((rb * 2 + j) * 2 + b) * 4
    post = []
    def cstep(vq, ms, rb, k):
        j, sp = k // 3, k % 3
        e = (str(rb), k)
        r = reg[e]; zd = ZA + 8 * j
        pre = [V(f"v_swap_b32 v{r+2}, v{r+4}", needs=[('own', e)] if sp == 2 else []), V(f"v_swap_b32 v{r+3}, v{r+5}")]
        for h in range(2):
            ms.append(Ins(f"{MF32} {vr(zd+4*h)}, {vr(r+4*h)}, {vr(diag(rb, sp))}, {vr(zd+4*h) if sp else 0}", 0))
        free.append(r)
        if sp == 2:
            z = [V(f"v_mul_f32 v{zd+c}, v{zd+c}, v{VIL+rb}") for c in range(8)]
            z += [V(f"v_cvt_pk_bf16_f32 v{zd+c}, v{zd+2*c}, v{zd+2*c+1}") for c in range(4)]
            z.append(LD(f"ds_write_b128 v{VZ}, {vr(zd)} offset:{rb*8192 + j*1024}", tag='z'))
            post.append(((rb, j), z))
        if k == 0 and rb < 2:
            dbuild(vq, rb + 1)
            if rb == 0: wt(vq, 2)
        return pre
    nxt = {(m, rb): list(range(8)) for m in range(2) for rb in range(3)}
    groups = []; arrived = set(); barpos = [0]
    xn = [0]
    def x_read(z):
        n = xn[0]
        if n < 6: z.append(LD(f"ds_read_b128 {vr(XR[n % 3])}, v{VT0 + n % 2} offset:{(n // 2)*2048}", tag=('xr', n))); xn[0] += 1
    fdone = []
    def fma_x(z, rb):
        assert rb == len(fdone); fdone.append(rb)
        for j in range(2):
            n = 2 * rb + j; x = XR[n % 3]
            for c in range(4):
                t = tmp(); a = acc(rb, j, 0) + 2 * c
                z.append(V(f"v_lshlrev_b32 v{t}, 16, v{x+c}", needs=[('xr', n), 'dg']))
                z.append(V(f"v_and_b32 v{t+1}, s{S_MASK}, v{x+c}"))
                z.append(V(f"v_fma_f32 v{a}, v{a}, v{DG+rb}, v{t}"))
                z.append(V(f"v_fma_f32 v{a+1}, v{a+1}, v{DG+rb}, v{t+1}"))
            x_read(z)
    def ep(z, rb):
        for j in range(2):
            a = acc(rb, j, 0)
            for c in range(4): z.append(V(f"v_cvt_pk_bf16_f32 v{a+c}, v{a+2*c}, v{a+2*c+1}"))
            z.append(LD(f"ds_write_b128 v{VT0+j}, {vr(a)} offset:{rb*2048}"))
        for u in range(2): z.append(LD(f"ds_read_b128 {vr(acc(rb, u, 1))}, v{VTR} offset:{rb*2048 + u*1024}", tag=('y', rb, u)))
        stq.extend(VM(f"buffer_store_dwordx4 {vr(acc(rb, u, 1))}, v{VH0+u}, {sr(SO)}, s{XO[rb]} offen{opt.get('fst', '')}", needs=[('y', rb, u)]) for u in range(2))
    pend = []; blk = set(); stq = []
    def pick(cap):
        ms = []; n = 0
        while n < cap:
            cand = []
            for (m, rb), ts in nxt.items():
                if m == 1 and (nxt[(0, rb)] or ('fma', rb) in pend or rb in blk): continue
                for t in ts:
                    if m == 1 and (rb, t % 2) not in zok: continue
                    if ('ab'[m], 4 * t + 3) not in arrived: continue
                    cand.append((-m, rb if m else 0, t, rb)); break
            if not cand: break
            m, _, t, rb = min(cand); m = -m
            g = len(groups); groups.append((m, t, rb, barpos[0] if m == 1 or not groups else groups[-1][3], m == 0 and len(nxt[(m, rb)]) == 8))
            ms += [('G', g, b) for b in range(4)]
            nxt[(m, rb)].remove(t); n += 1
            if not nxt[(m, rb)]: pend.append(('fma' if m == 0 else 'ep', rb))
        return ms
    def merge(ms, vq):
        per = opt.get('fper', 2)
        while ms or vq:
            if ms: q.append(ms.pop(0))
            k = 0
            while vq and (k < per or not ms or id(vq[0]) in glue):
                x = vq.pop(0); q.append(x); k += 2 if (x.t or '').startswith(('v_swap', 'buffer')) else 1
    def take_pend(vq, n=9):
        blk.clear(); vq += stq; stq.clear()
        for p in list(pend)[:n]:
            pend.remove(p); (fma_x if p[0] == 'fma' else ep)(vq, p[1]); blk.add(p[1])
    def take_post(vq):
        for u, z in post: vq += z; zw.add(u)
        post.clear()
    def barrier():
        A("s_barrier"); q.append(('BAR', len(q))); barpos[0] = len(q) - 1
        stamp(A)
    ni = [0]
    def issue_n(z, k, d):
        while ni[0] < len(Lq) and sum(wgt(e) for e in Lq[k + 1:ni[0] + 1]) <= d:
            e = Lq[ni[0]]
            if e[0] in '012' and not free: break
            if e[0] == 'P' and ('p', 0) not in arrived: break
            issue(z, e); ni[0] += 1
    fidx = [k for k, e in enumerate(Lq) if e[0] == 'F'][0]
    while ni[0] < fidx: issue(q, Lq[ni[0]]); ni[0] += 1
    q.extend(late)
    A("s_waitcnt lgkmcnt(0)")
    barrier()
    for _ in range(3): x_read(q)
    issue(q, Lq[fidx]); ni[0] += 1
    for k, e in enumerate(Lq):
        if e[0] not in 'FP': q.append(W(e))
        arrived.add(e)
        vq = []; ms = []; pre = []
        issue_n(vq, k, D)
        take_post(vq)
        take_pend(vq, 1)
        if e == ('d', 0): dg_setup(vq)
        if e == ('m', 2): weights(vq)
        if e[0] in '012': pre = cstep(vq, ms, int(e[0]), e[1])
        fill = pick(max(opt.get('fcap', 2) if e[0] in '012' else 1, (len(vq) + 7) // 8))
        if len(fill) >= 2: merge(fill[:2] + ms + fill[2:], pre + vq)
        else: q.extend(pre); merge(ms + fill, vq)
        if k in bar:
            vq = []; take_post(vq); merge(pick(opt.get('fcapb', 1)), vq)
            if zw - zok: q.append(W('z'))
            barrier()
            zok |= zw
    while any(nxt.values()) or pend or stq:
        vq = []; take_pend(vq); merge(pick(99), vq)
    NR = 6
    Fr = lambda n: BF + (n % NR) * 4
    def rd(n):
        m, t, rb = groups[n][:3]
        if m == 0: s = f"ds_read_b128 {vr(Fr(n))}, v{VBH + (rb // 2)*2 + (t & 1)} offset:{(rb % 2)*8192 + (t >> 1)*1024}"
        else: s = f"ds_read_b128 {vr(Fr(n))}, v{VZR} offset:{rb*8192 + t*1024}"
        return LD(s, tag=('f', n))
    out = []; nr = 0; done = -1
    for pos, it in enumerate(q):
        if isinstance(it, tuple) and it[0] == 'G':
            n, b = it[1], it[2]; m, t, rb, _, first = groups[n]
            assert nr > n
            a = acc(rb, b >> 1, b & 1)
            out.append(Ins(f"{MF32} {vr(a)}, {ar(m*128 + (4*t + b)*4)}, {vr(Fr(n))}, {0 if first else vr(a)}", 0, needs=[('f', n)]))
            if b == 0:
                done = n - 1
                if nr < len(groups) and nr <= done + NR and groups[nr][3] <= pos: out.append(rd(nr)); nr += 1
            if b == 3: done = n
        elif isinstance(it, tuple) and it[0] == 'BAR':
            while nr < len(groups) and nr <= done + NR - 1 and groups[nr][3] <= pos: out.append(rd(nr)); nr += 1
        else: out.append(it)
    if opt.get('fmem'):
        n0 = out.index(late[-1])
        def ok(it):
            if it.t is None: return all(isinstance(t, tuple) and t[0] in 'abmdp012' or t == 'ost' for t in it.needs)
            if it.t.startswith('buffer_store_dwordx4'): return False
            return it.t.startswith(('s_', 'buffer_', f'v_mov_b32 v{VPF}', 'v_cmp', 'ds_read_b128 v[' + str(WT + 8))) and not it.t.startswith('s_barrier') or 'LF_j' in it.t
        out = out[:n0 + 1] + [it for it in out[n0 + 1:] if ok(it)]
    em = Emitter(); em.pos['ost'] = ('vm', 0); em.cnt['vm'] = 1; em.kind.append(False)
    o = hazard.fix(em.emit(out))
    if opt.get('verbose'): print("final: min free", low[0], "lines", len(o), "nops", sum(1 for x in o if x.startswith('s_nop')))
    sp = []
    spin(sp.append, "LF_spin2", [f"buffer_load_dwordx2 {vr(VPF, 2)}, v{VPOLL}, {sr(SWS)}, 0 offen sc1"], [VPF], S_SPIN)
    sp = ["LF_spin:"] + sp + ["s_branch LF_go"]
    if MG[0]:
        sp.append("LF_wf:")
        spin(sp.append, "LF_wf2", [f"buffer_load_dwordx2 {vr(VWF, 2)}, v{VWF+2}, {sr(SWS)}, 0 offen sc1"], [VWF], S_SPIN)
        sp.append("s_branch LF_wf_go")
    return o, sp


def wload(m, k):
    t, j, b = k >> 2, (k >> 1) & 1, k & 1
    return f"buffer_load_dwordx4 {ar(m*128 + 4*k)}, v{VW0 + j}, {sr(SWS)}, s{WO[m*4 + (t >> 1)]} offen offset:{(t & 1)*2048 + b*1024}{' sc1' if MG[0] else ''}"
```

```python
from layout import *
from sched import *
import hazard
import struct, math

K1_LDS = 163840
SRD_X, SRD_W1, SRD_W2, SRD_O, SRD_H = 40, 44, 48, 52, 56
S_W, S_ROLE, S_ROT, S_M0, S_XO = 60, 61, 62, 63, 64
SK1, SK2, SO, S_SC, S_EPS, S_R256, S_MASK = 66, 74, 82, 86, 88, 89, 90
VL16, VWQ, VWK, VTR, VK, VH, VQW, VQ, VHW = 16, 17, 21, 25, 29, 31, 33, 35, 36
MF32 = "v_mfma_f32_16x16x32_bf16"
DPP = " row_mask:0xf bank_mask:0x%x"


def gemm_prog(role, opt):
    NW = opt.get('nw', 8); NF = 16 // NW; CW = 16 * NF; NPC = NF; CH = NPC * 1024; RS = 32 * NF
    main = role == 'q'
    MGD = opt.get('mg')
    NRB = opt.get('nrb', 3) if main else 4
    RPW = 16 * NRB // NW; NL = RPW // 2
    IMG = NRB * 8192
    RC = (K1_LDS - (2 if main else 1) * IMG) // NW // CH
    RC = min(RC, opt.get('rc', 8))
    WSZ = RC * CH
    HIMG = NW * WSZ; QIMG = HIMG + IMG
    assert QIMG + (IMG if main else 0) <= K1_LDS
    stx = opt.get('st', '')
    p = VHW + NL; p = (p + 3) // 4 * 4
    HP = p; p += NL * 4
    ACC1 = p; p += NF * NRB * 4
    LN0 = p
    ACC2 = p; p += NF * NRB * 4 if main else 0
    RW, RB = opt.get('rw', 6 if NW == 8 else 10), opt.get('rb', 4 if NW == 8 else 3) * NRB
    WR = p; p += RW * 4
    BR = p; p += RB * 4
    assert p <= 255, p
    nst = [0]
    def stamp(kind=0):
        if not opt.get('timing') or kind != opt.get('skind', 0) or (kind and not main): return []
        nst[0] += 1
        assert nst[0] <= 8
        return [V(f"s_memtime s[{14+2*nst[0]}:{15+2*nst[0]}]", cost=0)]
    pre = []
    A = lambda t: pre.append(V(t))
    A(f"v_lshlrev_b32 v{VL16}, 4, v2")
    A(f"s_mul_i32 s{S_M0}, s{S_W}, {WSZ}")
    if main:
        A(f"s_mul_i32 s6, s4, {NRB*8192}" if not MGD else "s_mov_b32 s6, s14")
        A(f"s_mul_i32 s7, s{S_W}, {RPW*512}")
        A(f"s_add_u32 s{S_XO}, s6, s7")
        A(f"s_add_u32 s{S_XO+1}, s{S_XO}, 4096")
    else:
        A("s_and_b32 s6, s4, 3")
        A(f"s_lshl_b32 s6, s6, 6")
        A(f"s_mul_i32 s7, s{S_W}, {RPW}")
        A("s_add_u32 s6, s6, s7")
        A("v_lshrrev_b32 v5, 5, v2")
        A("v_and_b32 v6, 31, v2")
        A("v_lshlrev_b32 v6, 4, v6")
        A("s_cmp_ge_u32 s4, 4")
        A("s_cselect_b64 vcc, -1, 0")
        for j in range(NL):
            A(f"v_add3_u32 v7, v5, s6, {2*j}")
            A("v_and_b32 v8, 0x80, v7")
            A("v_bfe_u32 v9, v7, 2, 1"); A("v_lshl_or_b32 v8, v9, 6, v8")
            A("v_bfe_u32 v9, v7, 4, 1"); A("v_lshl_or_b32 v8, v9, 5, v8")
            A("v_and_b32 v9, 3, v7"); A("v_lshl_or_b32 v8, v9, 3, v8")
            A("v_bfe_u32 v9, v7, 5, 2"); A("v_lshl_or_b32 v8, v9, 1, v8")
            A("v_bfe_u32 v9, v7, 3, 1"); A("v_or_b32 v8, v9, v8")
            A("v_cndmask_b32 v8, v8, v7, vcc")
            A(f"v_lshl_add_u32 v{HP+4*j}, v8, 9, v6")
    A(f"s_lshl_b32 s7, s{S_W}, {(CW*2).bit_length()-1}")
    if NW == 4:
        A("v_lshrrev_b32 v5, 3, v2")
        A("v_and_b32 v6, 7, v2")
        A("v_and_b32 v7, 2, v5")
        A("v_xor_b32 v6, v6, v7")
        A("v_lshl_add_u32 v5, v5, 9, s7")
        A(f"v_lshl_add_u32 v{VWQ}, v6, 4, v5")
        A("v_xor_b32 v6, 4, v6")
        A(f"v_lshl_add_u32 v{VWQ+1}, v6, 4, v5")
        A(f"v_add_u32 v{VWQ+1}, 0xc00, v{VWQ+1}")
        A(f"v_add_u32 v{VWQ+2}, 0x1800, v{VWQ}")
        A(f"v_add_u32 v{VWQ+3}, 0x1800, v{VWQ+1}")
    else:
        A("v_lshrrev_b32 v5, 2, v2")
        A("v_and_b32 v6, 3, v2")
        A("v_lshrrev_b32 v7, 5, v2")
        A("v_lshlrev_b32 v7, 1, v7")
        A("v_xor_b32 v6, v6, v7")
        A("v_lshl_add_u32 v5, v5, 9, s7")
        A(f"v_lshl_add_u32 v{VWQ}, v6, 4, v5")
        A(f"v_add_u32 v{VWQ+1}, 0x1c00, v{VWQ}")
    for t in range(8):
        A(f"s_xor_b32 s6, s{S_ROT}, {t}")
        A(f"s_lshl_b32 s{SK1+t}, s6, 14")
    A("s_waitcnt lgkmcnt(0)")
    o = []
    if main:
        srd_from(o, SRD_X, 16, 0, N * 512 if not MGD else "s15"); srd_from(o, SRD_W1, 26, 0, 131072)
    else:
        o += ["s_cmp_ge_u32 s4, 4", "s_cselect_b32 s6, s30, s24", "s_cselect_b32 s7, s31, s25"]
        srd_from(o, SRD_X, 6, 0, 131072); srd_from(o, SRD_W1, 32, 0, 131072)
    for t in o: A(t)
    xso = lambda j: f"s{S_XO + j // 4} offen offset:{(j % 4) * 1024}"
    for j in range(NL):
        if main: pre.append(VM(f"buffer_load_dwordx4 {vr(HP+4*j)}, v{VL16}, {sr(SRD_X)}, {xso(j)}", tag=('x', j)))
        else: pre.append(VM(f"buffer_load_dwordx4 {vr(HP+4*j)}, v{HP+4*j}, {sr(SRD_X)}, 0 offen", tag=('x', j)))
    NCH = 16 if main else 8
    def dma(c, needs=()):
        srd, vw, so = (SRD_W1, VWQ, SK1 + c) if c < 8 else (SRD_W2, VWK, SK2 + c - 8)
        q = [V(f"s_add_u32 m0, s{S_M0}, 0x{(c % RC) * CH:x}", needs=needs), V("s_nop 0", cost=0)]
        for k in range(NPC):
            q.append(VM(f"buffer_load_dwordx4 v{vw+k}, {sr(srd)}, s{so} offen offset:{k*1024} lds", tag=('c', c) if k == NPC - 1 else None))
        return q
    NPRE = min(opt.get('npre', RC), RC)
    TCH = opt.get('touch', 0)
    if TCH and main:
        o = []; srd_from(o, SRD_W2, 28, 0, 131072)
        for t in o: A(t)
        A(f"s_sub_u32 s6, s5, {(opt.get('new', 32) + 8) // 8 * NW + 16}")
        A("s_lshl_b32 s7, s6, 13")
        A("s_cmp_lt_u32 s6, 16")
        A("s_cselect_b32 s7, s7, 0x7fff0000")
        pre.append(VM(f"buffer_load_dword v255, v10, {sr(SRD_W2)}, s7 offen"))
        if TCH > 1:
            A(f"s_sub_u32 s6, s6, 16")
            A("s_lshl_b32 s7, s6, 13")
            A("s_cmp_lt_u32 s6, 16")
            A("s_cselect_b32 s7, s7, 0x7fff0000")
            pre.append(VM(f"buffer_load_dword v255, v10, {sr(SRD_W1)}, s7 offen"))
    for c in range(NPRE): pre += dma(c)
    if MGD and main:
        for t in MGD: A(t)
    A("v_bfe_u32 v5, v2, 2, 3")
    A(f"v_xor_b32 v5, s{S_ROT}, v5")
    A("v_and_b32 v6, 3, v2")
    A("v_lshlrev_b32 v7, 10, v5")
    A("v_lshl_add_u32 v7, v6, 8, v7")
    A(f"v_add_u32 v7, 0x{HIMG:x}, v7")
    A("v_and_b32 v5, 1, v5")
    A("v_lshl_or_b32 v6, v5, 2, v6")
    A("v_lshrrev_b32 v5, 5, v2")
    A(f"s_mul_i32 s6, s{S_W}, {RPW}")
    for j in range(NL):
        A(f"v_add3_u32 v8, v5, s6, {2*j}")
        A("v_lshrrev_b32 v9, 4, v8")
        A("v_lshl_add_u32 v9, v9, 13, v7")
        A("v_and_b32 v8, 15, v8")
        A("v_xor_b32 v8, v8, v6")
        A(f"v_lshl_add_u32 v{VHW+j}, v8, 4, v9")
    A("v_xor_b32 v5, v3, v4")
    A("v_lshlrev_b32 v5, 4, v5")
    A("v_lshl_add_u32 v5, v4, 8, v5")
    A(f"v_add_u32 v{VH}, 0x{HIMG:x}, v5")
    A(f"v_xor_b32 v{VH+1}, 64, v{VH}")
    A("v_lshrrev_b32 v5, 2, v3")
    A("v_and_b32 v6, 3, v3")
    A("v_and_b32 v7, 1, v4")
    if NW == 4:
        A("v_lshlrev_b32 v7, 2, v7"); A("v_and_b32 v8, 2, v5"); A("v_or_b32 v7, v7, v8")
    else:
        A("v_lshlrev_b32 v7, 1, v7")
    A("v_lshl_add_u32 v8, v4, 3, v5")
    A(f"v_lshlrev_b32 v8, {RS.bit_length()-1}, v8")
    A(f"v_add_u32 v8, s{S_M0}, v8")
    if main:
        A("v_and_b32 v9, 1, v6"); A("v_lshl_add_u32 v8, v9, 3, v8")
        A("v_lshrrev_b32 v6, 1, v6")
    A("v_xor_b32 v6, v6, v7")
    for f in range(NF):
        if main:
            A(f"v_xor_b32 v9, {2*f}, v6"); A(f"v_lshl_add_u32 v{VTR+f}, v9, 4, v8")
        elif f % 2 == 0:
            A(f"v_xor_b32 v9, {2*f}, v6"); A(f"v_lshl_add_u32 v{VTR+f}, v9, 4, v8")
        else:
            A(f"v_add_u32 v{VTR+f}, 8, v{VTR+f-1}")
    o = []
    if main:
        A("v_lshrrev_b32 v5, 3, v2")
        A("v_and_b32 v6, 7, v2")
        A("v_lshrrev_b32 v7, 1, v5")
        A("v_xor_b32 v6, v6, v7")
        A("v_and_b32 v7, 4, v5")
        A("v_add_u32 v5, v5, v7")
        A(f"s_mul_i32 s6, s{S_W}, {CW*512}")
        A("v_lshl_add_u32 v5, v5, 9, s6")
        A(f"v_lshl_add_u32 v{VWK}, v6, 4, v5")
        A("v_xor_b32 v6, 4, v6")
        A(f"v_lshl_add_u32 v{VWK+1}, v6, 4, v5")
        A(f"v_add_u32 v{VWK+1}, 0x{16*512-1024:x}, v{VWK+1}")
        if NW == 4:
            A(f"v_mov_b32 v{VWK+2}, v{VWK}")
            A(f"v_mov_b32 v{VWK+3}, v{VWK+1}")
        A(f"s_lshr_b32 s7, s{S_ROT}, 1")
        for tp in range(4):
            A(f"s_xor_b32 s6, s7, {tp}")
            A(f"s_lshl_b32 s{SK2+2*tp}, s6, 7")
            A(f"s_add_u32 s{SK2+2*tp+1}, s{SK2+2*tp}, {(4 if NW == 8 else 32)*512}")
        A(f"s_and_b32 s6, s{S_ROT}, 1"); A("s_lshl_b32 s6, s6, 2")
        A("v_lshrrev_b32 v5, 1, v3")
        A("v_xor_b32 v5, v5, v4")
        A("v_xor_b32 v5, s6, v5")
        A(f"v_lshl_add_u32 v6, v3, 7, s{S_M0}")
        A(f"v_lshl_add_u32 v{VK}, v5, 4, v6")
        A(f"v_xor_b32 v{VK+1}, 64, v{VK}")
        A(f"s_mul_i32 s6, s{S_W}, {NF//2}")
        A(f"s_xor_b32 s6, s6, s{S_ROT}")
        A("s_lshl_b32 s6, s6, 10")
        A(f"s_add_u32 s6, s6, 0x{QIMG:x}")
        A("v_lshrrev_b32 v5, 1, v4"); A("v_and_b32 v6, 1, v4")
        A("v_lshl_add_u32 v5, v5, 8, s6")
        A("v_lshl_add_u32 v5, v6, 3, v5")
        A(f"v_lshl_add_u32 v{VQW}, v3, 4, v5")
        A(f"v_xor_b32 v{VQW+1}, 0x400, v{VQW}")
        A(f"v_add_u32 v{VQ}, 0x{QIMG:x}, v{VL16}")
        srd_from(o, SRD_W2, 26 if opt.get('w2same') else 28, 0, 131072)
        srd_from(o, SRD_O, 38, QF_OFF, QF_BYTES if not MGD else "s15")
        srd_from(o, SRD_H, 38, H_OFF, NB16 * 8192 if not MGD else "s15")
        A(f"s_mul_i32 s6, s4, {NRB*8192}" if not MGD else "s_mov_b32 s6, s14")
        A(f"s_mul_i32 s7, s{S_W}, {NF//2*1024}")
        A(f"s_add_u32 s{SO}, s6, s7")
        for b in range(1, NRB): A(f"s_add_u32 s{SO+b}, s{SO}, {b*8192}")
        qs = struct.unpack('<I', struct.pack('<f', math.log2(math.e) / 16))[0]
        A(f"s_mov_b32 s{S_SC}, 0x{qs:x}"); A(f"s_mov_b32 s{S_SC+1}, 0x{qs:x}")
        A(f"s_mov_b32 s{S_EPS}, 0x3727c5ac"); A(f"s_mov_b32 s{S_R256}, 0x3b800000"); A(f"s_mov_b32 s{S_MASK}, 0xffff0000")
    else:
        srd_from(o, SRD_O, 38, WF_OFF, 262144)
        A("s_lshr_b32 s6, s4, 2"); A("s_lshl_b32 s6, s6, 17")
        A("s_and_b32 s7, s4, 3"); A("s_lshl_b32 s7, s7, 12")
        A("s_add_u32 s6, s6, s7")
        A(f"s_mul_i32 s7, s{S_W}, {NF//2*16384}")
        A(f"s_add_u32 s{SO}, s6, s7")
        A(f"s_add_u32 s{SO+1}, s{SO}, 16384")
    for t in o: A(t)
    pre += stamp()
    rest = [x for c in range(NPRE, min(RC, NCH)) for x in [dma(c)]]
    def more(force=False):
        if rest and (force or not opt.get('late')): pre.extend(rest.pop(0))
    if main:
        U = lambda j: LN0 + 8 * j
        SQ = LN0 + 8 * NL
        for j in range(NL):
            x, u, s = HP + 4 * j, U(j), SQ + 4 * j
            pre.append(W(('x', j)))
            if j == 0: pre += stamp()
            for k in range(4):
                A(f"v_lshlrev_b32 v{u+2*k}, 16, v{x+k}")
                A(f"v_and_b32 v{u+2*k+1}, s{S_MASK}, v{x+k}")
            if opt.get('nopk', 0) >= 3:
                A(f"v_add_f32 v{s}, v{u}, v{u+1}"); A(f"v_mul_f32 v{s+2}, v{u}, v{u}")
                A(f"v_add_f32 v{s+1}, v{u+2}, v{u+3}"); A(f"v_mul_f32 v{s+3}, v{u+1}, v{u+1}")
                for k in range(2, 8):
                    if k >= 4: A(f"v_add_f32 v{s+(k&1)}, v{s+(k&1)}, v{u+k}")
                    A(f"v_fmac_f32 v{s+2+(k&1)}, v{u+k}, v{u+k}")
                A(f"v_add_f32 v{s}, v{s}, v{s+1}"); A(f"v_add_f32 v{s+2}, v{s+2}, v{s+3}")
            else:
                A(f"v_pk_add_f32 {vr(s,2)}, {vr(u,2)}, {vr(u+2,2)}")
                A(f"v_pk_mul_f32 {vr(s+2,2)}, {vr(u,2)}, {vr(u,2)}")
                A(f"v_pk_add_f32 {vr(x,2)}, {vr(u+4,2)}, {vr(u+6,2)}")
                A(f"v_pk_fma_f32 {vr(s+2,2)}, {vr(u+2,2)}, {vr(u+2,2)}, {vr(s+2,2)}")
                A(f"v_pk_add_f32 {vr(s,2)}, {vr(s,2)}, {vr(x,2)}")
                A(f"v_pk_fma_f32 {vr(s+2,2)}, {vr(u+4,2)}, {vr(u+4,2)}, {vr(s+2,2)}")
                A(f"v_add_f32 v{s}, v{s}, v{s+1}")
                A(f"v_pk_fma_f32 {vr(s+2,2)}, {vr(u+6,2)}, {vr(u+6,2)}, {vr(s+2,2)}")
                A(f"v_add_f32 v{s+2}, v{s+2}, v{s+3}")
            more()
        for j in range(NL): A(f"v_permlane16_swap_b32 v{SQ+4*j}, v{SQ+4*j+2}")
        for j in range(NL): A(f"v_add_f32 v{SQ+4*j}, v{SQ+4*j}, v{SQ+4*j+2}")
        def merge(regs, mode, m0, m1, off):
            out = []
            for a in range(0, len(regs), 2):
                (ra, la) = regs[a]
                d = ra + off
                if a + 1 < len(regs):
                    rb_, lb = regs[a + 1]
                    A(f"v_add_f32_dpp v{d}, v{ra}, v{ra} {mode}" + DPP % m0)
                    A(f"v_add_f32_dpp v{d}, v{rb_}, v{rb_} {mode}" + DPP % m1)
                    sh = 8 if m1 == 0xc else 4
                    out.append((d, {**la, **{k: v + sh for k, v in lb.items()}}))
                else:
                    A(f"v_add_f32_dpp v{d}, v{ra}, v{ra} {mode}" + DPP % 0xf)
                    out.append((d, la))
            return out
        regs = [(SQ + 4 * j, {j: 0}) for j in range(NL)]
        regs = merge(regs, "row_ror:8", 0x3, 0xc, 1)
        regs = merge(regs, "row_half_mirror", 0x5, 0xa, 1)
        for qp in ("[1,0,3,2]", "[2,3,0,1]"):
            for r, _ in regs: A(f"v_add_f32_dpp v{r}, v{r}, v{r} quad_perm:{qp}" + DPP % 0xf)
        for r, _ in regs: A(f"v_mov_b32 v{r+1}, v{r}")
        for r, _ in regs: A(f"v_permlane16_swap_b32 v{r+1}, v{r}")
        ops = lambda r: [f"v_mul_f32 v{r+1}, s{S_R256}, v{r+1}", f"v_mul_f32 v{r}, s{S_R256}, v{r}",
                         f"v_fma_f32 v{r}, -v{r+1}, v{r+1}, v{r}", f"v_cvt_pk_bf16_f32 v{r+1}, v{r+1}, v{r+1}", f"v_max_f32 v{r}, 0, v{r}",
                         f"v_cvt_pk_bf16_f32 v{r}, v{r}, v{r}", f"v_and_b32 v{r}, s{S_MASK}, v{r}", f"v_add_f32 v{r}, s{S_EPS}, v{r}",
                         f"v_cvt_pk_bf16_f32 v{r}, v{r}, v{r}", f"v_and_b32 v{r}, s{S_MASK}, v{r}", f"v_sqrt_f32 v{r}, v{r}",
                         f"v_and_b32 v{r+1}, s{S_MASK}, v{r+1}",
                         f"v_cvt_pk_bf16_f32 v{r}, v{r}, v{r}", f"v_and_b32 v{r}, s{S_MASK}, v{r}", f"v_rcp_f32 v{r}, v{r}",
                         f"v_mul_f32 v{r+1}, -v{r+1}, v{r}"]
        for tt in zip(*[ops(r) for r, _ in regs]):
            for t in tt: A(t)
        for r, lm in regs:
            for j, ln in lm.items():
                A(f"v_mov_b64_dpp {vr(SQ+4*j,2)}, {vr(r,2)} row_newbcast:{ln} row_mask:0xf bank_mask:0xf")
        for j in range(NL):
            x, u, s = HP + 4 * j, U(j), SQ + 4 * j
            for k in range(4):
                if opt.get('nopk', 0) >= 1:
                    for z in range(2): A(f"v_fma_f32 v{u+2*k+z}, v{u+2*k+z}, v{s}, v{s+1}")
                else: A(f"v_pk_fma_f32 {vr(u+2*k,2)}, {vr(u+2*k,2)}, {vr(s,2)}, {vr(s,2)} op_sel:[0,0,1] op_sel_hi:[1,0,1]")
            for k in range(4):
                A(f"v_cvt_pk_bf16_f32 v{x+k}, v{u+2*k}, v{u+2*k+1}")
            pre.append(LD(f"ds_write_b128 v{VHW+j}, {vr(x)}", tag='hw'))
            more()
    else:
        for j in range(NL):
            pre.append(LD(f"ds_write_b128 v{VHW+j}, {vr(HP+4*j)}", tag='hw', needs=[('x', j)]))
    pre += stamp()
    while rest and opt.get('late', 0) < 2: more(True)
    st = Stream(); st.pre = pre
    wf, bf = [], []
    wreg = lambda k: WR + (k % RW) * 4
    breg = lambda k: BR + (k % RB) * 4
    def use(lst, k, n):
        lst[k].setdefault('first', n); lst[k]['last'] = n
    def mf(acc, wk, bk, first):
        a, b = (wreg(wk), breg(bk)) if main else (breg(bk), wreg(wk))
        n = st.mfma(f"{MF32} {vr(acc)}, {vr(a)}, {vr(b)}, {0 if first else vr(acc)}", needs=[('w', wk), ('b', bk)])
        use(wf, wk, n); use(bf, bk, n); return n
    acc1 = lambda f, rb: ACC1 + (f * NRB + rb) * 4
    acc2 = lambda f, rb: ACC2 + (rb * NF + f) * 4
    done1, done2 = {}, {}
    for t in range(8):
        sl = (t % RC) * CH
        b0 = len(bf)
        for rb in range(NRB):
            bf.append(dict(reads=[f"ds_read_b128 {vr(breg(b0+rb))}, v{VH + (t & 1)} offset:{rb*8192 + t*1024}"], ph=0))
        for f in range(NF):
            k = len(wf); r = wreg(k)
            wf.append(dict(reads=[f"ds_read_b64_tr_b16 v[{r+2*hh}:{r+2*hh+1}], v{VTR+f} offset:{sl + hh*4*RS}" for hh in range(2)], chunk=t))
            for rb in range(NRB): done1[(f, rb)] = mf(acc1(f, rb), k, b0 + rb, t == 0)
    n1 = st.n()
    if main:
        for tp in range(4):
            b0 = len(bf)
            for e in range(2):
                for rb in range(NRB):
                    bf.append(dict(reads=[f"ds_read_b128 {vr(breg(b0+e*NRB+rb))}, v{VQ} offset:{rb*8192 + (2*tp+e)*1024}"], ph=1))
            for bh in range(2):
                c = 8 + 2 * tp + bh; sl = (c % RC) * CH
                for bl in range(NF // 2):
                    b = bh * (NF // 2) + bl
                    for e in range(2):
                        k = len(wf)
                        wf.append(dict(reads=[f"ds_read_b128 {vr(wreg(k))}, v{VK+e} offset:{sl + bl*2048}"], chunk=c))
                        for rb in range(NRB): done2[(b, rb)] = mf(acc2(b, rb), k, b0 + e * NRB + rb, tp == 0 and e == 0)
    nm = st.n()
    LAG = opt.get('lag', 3); LA = opt.get('la', 2 * NRB)
    def place_w(lo, hi, g):
        for k in range(lo, hi):
            d = wf[k]
            g = max(g, d['first'] - LA - 1, wf[k - RW]['last'] if k >= RW else -1)
            for i, r in enumerate(d['reads']):
                st.put(g, LD(r, tag=('w', k) if i == len(d['reads']) - 1 else None, needs=[('c', d['chunk'])]))
            d['g'] = g
            if k % (2 * NF) == 0:
                for s in stamp(1): st.put(g, s)
        return g
    def place_b(lo, hi, g):
        for k in range(lo, hi):
            d = bf[k]
            g = max(g, d['first'] - LA - 1, bf[k - RB]['last'] if k >= RB else -1)
            st.put(g, LD(d['reads'][0], tag=('b', k)))
        return g
    nw1, nb1 = 8 * NF, 8 * NRB
    npw = min(opt.get('npw', NF), RW)
    place_w(0, npw, -1)
    st.put(-1, W('hw')); st.put(-1, V("s_barrier"))
    for s in stamp(): st.put(-1, s)
    place_b(0, nb1, -1)
    gg = -1
    while rest:
        for x in rest.pop(0): st.put(gg, x)
        gg += opt.get('lpace', 2)
    g = place_w(npw, nw1, -1)
    if main:
        items = sorted(done1.items(), key=lambda kv: kv[1])
        for (f, rb), n in items:
            a = acc1(f, rb)
            q = [V(f"v_cvt_pk_bf16_f32 v{a}, v{a}, v{a+1}"), V(f"v_cvt_pk_bf16_f32 v{a+1}, v{a+2}, v{a+3}"),
                 LD(f"ds_write_b64 v{VQW + (f >> 1)}, v[{a}:{a+1}] offset:{rb*8192 + (f & 1)*512}", tag='qw')]
            for x in q: st.put(min(n + LAG, n1 - 1), x)
        k = nw1
        while k < len(wf) and k < nw1 + opt.get('npw2', NF) and wf[k - RW]['last'] <= n1 - 1: k += 1
        place_w(nw1, k, max(g, n1 - 1))
        for s in stamp(): st.put(n1 - 1, s)
        st.put(n1 - 1, W('qw')); st.put(n1 - 1, V("s_barrier"))
        for s in stamp(): st.put(n1 - 1, s)
        place_b(nb1, len(bf), n1 - 1)
        place_w(k, len(wf), n1 - 1)
    lastw = {}
    for k, d in enumerate(wf): lastw[d['chunk']] = k
    gl = 0
    for c in range(RC, NCH):
        k = lastw[c - RC]
        gl = wf[k]['first']
        firstk = min(kk for kk, d in enumerate(wf) if d['chunk'] == c)
        assert gl < wf[firstk]['g'], (c, gl, wf[firstk]['g'])
        for x in dma(c, [('w', k)]): st.put(gl, x)
    if main:
        hs = [VM(f"buffer_store_dwordx4 {vr(HP+4*j)}, v{VL16}, {sr(SRD_H)}, {xso(j)}{stx}") for j in range(NL)]
        st.fill(hs, gl + 1)
        items = sorted(((max(done2[(2 * u, rb)], done2[(2 * u + 1, rb)]), u, rb) for u in range(NF // 2) for rb in range(NRB)))
        for n, u, rb in items:
            a = acc2(2 * u, rb)
            if n + LAG < nm - 1 or opt.get('nopk', 0) >= 2:
                q = [V(f"v_mul_f32 v{a+r}, s{S_SC}, v{a+r}") for r in range(8)]
            else:
                q = [V(f"v_pk_mul_f32 {vr(a+2*r,2)}, {vr(a+2*r,2)}, {sr(S_SC,2)}") for r in range(4)]
            q += [V(f"v_cvt_pk_bf16_f32 v{a+r}, v{a+2*r}, v{a+2*r+1}") for r in range(4)]
            q.append(VM(f"buffer_store_dwordx4 {vr(a)}, v{VL16}, {sr(SRD_O)}, s{SO+rb} offen offset:{u*1024}{opt.get('stq', stx)}"))
            for x in q: st.put(min(n + LAG, nm - 1), x)
    else:
        items = sorted((max(done1[(f, 2 * tl)], done1[(f, 2 * tl + 1)]), f, tl) for f in range(NF) for tl in range(2))
        for n, f, tl in items:
            a = acc1(f, 2 * tl)
            q = [V(f"v_cvt_pk_bf16_f32 v{a+r}, v{a+2*r}, v{a+2*r+1}") for r in range(4)]
            q.append(VM(f"buffer_store_dwordx4 {vr(a)}, v{VL16}, {sr(SRD_O)}, s{SO + (f >> 1)} offen offset:{tl*2048 + (f & 1)*1024}{opt.get('stw', stx)}"))
            for x in q: st.put(min(n + LAG, nm - 1), x)
    for s in stamp(): st.put(nm - 1, s)
    em = Emitter()
    o = hazard.fix(em.emit(st.seq()))
    if opt.get('verbose'): print(role, st.stats(), "regs", p, "RC", RC, "lines", len(o))
    return o


def edge_prog(opt):
    NW = opt.get('nw', 8); NEW = opt.get('new', 32); ECAP = 163840 // NEW; CAPB = 4096 // NEW
    NTH = 64 * NW
    NQ = E // NEW // 4
    NR = (NQ + NTH - 1) // NTH; LASTN = NQ - (NR - 1) * NTH
    o = []; A = o.append
    L_CNT = 65536
    D0, S0, B0, C0 = 16, 16 + 4 * NR, 16 + 8 * NR, 16 + 12 * NR
    SRD_D, SRD_S, SRD_E, SRD_C = 40, 44, 48, 52
    A(f"s_mul_i32 s6, s4, {NQ * 16}")
    A("v_lshlrev_b32 v5, 4, v0")
    A("v_lshlrev_b32 v6, 2, v2")
    A(f"v_add_u32 v6, 0x{L_CNT:x}, v6")
    A("v_mov_b32 v7, 0")
    A("ds_write_b32 v6, v7")
    for i in range(NR): A(f"s_mov_b32 s{66+i}, {i * NTH * 16}")
    A("s_waitcnt lgkmcnt(0)")
    srd_from(o, SRD_D, 20, 0, NQ * 16, 6)
    srd_from(o, SRD_S, 18, 0, NQ * 16, 6)
    for i in range(NR): A(f"buffer_load_dwordx4 {vr(D0+4*i)}, v5, {sr(SRD_D)}, s{66+i} offen")
    for i in range(NR): A(f"buffer_load_dwordx4 {vr(S0+4*i)}, v5, {sr(SRD_S)}, s{66+i} offen")
    for t in opt.get('mg') or []: A(t)
    srd_from(o, SRD_E, 38, EDGE_OFF, EDGE_BYTES)
    srd_from(o, SRD_C, 38, ECNT_OFF, NBK * NEW * 4)
    A(f"s_mov_b32 s9, {BMAGIC}")
    A(f"s_mov_b32 s10, {-BN & 0xffffffff}")
    A(f"s_mov_b32 s11, 0x{L_CNT:x}")
    A("v_mov_b32 v7, 1")
    A(f"v_cmp_gt_u32 vcc, 0x{LASTN:x}, v0")
    A("s_mov_b64 s[12:13], vcc")
    A("s_barrier")
    for i in range(NR):
        A(f"s_waitcnt vmcnt({2*NR-1-i})")
        if i == NR - 1: A("s_mov_b64 exec, s[12:13]")
        for k in range(4):
            d, b, c = D0 + 4 * i + k, B0 + 4 * i + k, C0 + 4 * i + k
            A(f"v_mul_u32_u24 v{b}, s9, v{d}")
            A(f"v_lshrrev_b32 v{b}, {BSHIFT}, v{b}")
            A(f"v_lshl_add_u32 v{c}, v{b}, 2, s11")
            A(f"ds_add_rtn_u32 v{c}, v{c}, v7")
            A(f"v_mad_i32_i24 v{d}, v{b}, s10, v{d}")
    A("s_mov_b64 exec, -1")
    for i in range(NR):
        A(f"s_waitcnt vmcnt({NR-1-i}) lgkmcnt({min(15, 4*(NR-1 if i == NR-1 else NR-2))})")
        if i == NR - 1: A("s_mov_b64 exec, s[12:13]")
        for k in range(4):
            d, s, b, c = D0 + 4 * i + k, S0 + 4 * i + k, B0 + 4 * i + k, C0 + 4 * i + k
            A(f"v_and_b32 v8, 0x{CAPB-1:x}, v{c}")
            A(f"v_lshl_or_b32 v{s}, v{d}, 18, v{s}")
            A(f"v_lshlrev_b32 v8, 2, v8")
            A(f"v_lshl_add_u32 v8, v{b}, {(CAPB*4).bit_length()-1}, v8")
            A(f"ds_write_b32 v8, v{s}")
    A("s_mov_b64 exec, -1")
    A("s_waitcnt lgkmcnt(0)")
    A("s_barrier")
    NC = 64 * CAPB * 4 // (NTH * 16)
    BPI = 1024 // (CAPB * 4)
    R0 = C0 + 4 * NR
    if opt.get('fuse') and not opt.get('mg'):
        import gen_f
        FS = gen_f.fstr(opt); assert NEW * 64 == gen_f.NFLAG
        srd_from(o, SRD_D, 38, gen_f.FLAG_OFF, gen_f.NFLAG * FS)
        A(f"v_mul_u32_u24 v13, {FS}, v2" if FS <= 64 else f"v_lshlrev_b32 v13, {FS.bit_length()-1}, v2")
        A("v_mov_b32 v14, 0"); A("v_mov_b32 v15, 0")
        A(f"s_mul_i32 s6, s4, {64 * FS}")
        A(f"s_cmp_eq_u32 s{S_W}, 1")
        A("s_cselect_b32 s6, s6, 0x7fff0000")
        A(f"buffer_store_dwordx2 v[14:15], v13, {sr(SRD_D)}, s6 offen sc1")
    A("ds_read_b32 v8, v6")
    A(f"s_mul_i32 s6, s{S_W}, {NC*1024}")
    A("v_lshlrev_b32 v10, 4, v2")
    A("v_add_u32 v9, s6, v10")
    for k in range(NC): A(f"ds_read_b128 {vr(R0+4*k)}, v9 offset:{k*1024}")
    if BPI > 1:
        assert BPI == 2
        A("v_lshrrev_b32 v11, 5, v2")
        A(f"v_mul_u32_u24 v11, 0x{NEW*ECAP*4 - 512:x}, v11")
        A("v_add_u32 v10, v10, v11")
    A(f"s_mul_i32 s6, s{S_W}, {NC*BPI*NEW*ECAP*4}")
    A(f"s_mul_i32 s7, s4, {ECAP*4}")
    A("s_add_u32 s6, s6, s7")
    A(f"v_lshlrev_b32 v9, {(NEW*4).bit_length()-1}, v2")
    A("s_lshl_b32 s8, s4, 2")
    A(f"s_cmp_eq_u32 s{S_W}, 0")
    A("s_cselect_b32 s8, s8, 0x7fff0000")
    A(f"s_waitcnt lgkmcnt({min(15, NC)})")
    A(f"buffer_store_dword v8, v9, {sr(SRD_C)}, s8 offen{opt.get('ste', '')}")
    A(f"v_cmp_lt_u32 vcc, 0x{CAPB:x}, v8")
    A("s_cbranch_vccnz L1_eslow")
    for k in range(NC):
        A(f"s_waitcnt lgkmcnt({min(15, NC-1-k)})")
        A(f"buffer_store_dwordx4 {vr(R0+4*k)}, v10, {sr(SRD_E)}, s6 offen{opt.get('ste', '')}")
        A(f"s_add_u32 s6, s6, {BPI*NEW*ECAP*4}")
    A("s_branch L1_fin")
    A("L1_eslow:")
    A(f"s_mov_b32 s9, {NEW*ECAP*4}")
    for i in range(NR):
        for k in range(4):
            b, c = B0 + 4 * i + k, C0 + 4 * i + k
            A(f"v_mul_u32_u24 v{b}, s9, v{b}")
            A(f"v_lshl_add_u32 v{b}, v{c}, 2, v{b}")
    for i in range(NR):
        if i == NR - 1: A("s_mov_b64 exec, s[12:13]")
        for k in range(4):
            A(f"buffer_store_dword v{S0 + 4 * i + k}, v{B0 + 4 * i + k}, {sr(SRD_E)}, s7 offen{opt.get('ste', '')}")
    A("s_mov_b64 exec, -1")
    return hazard.fix(o)


def gen_k1(opt=None):
    opt = opt or {}
    NW = opt.get('nw', 8); NRB = opt.get('nrb', 3); NEW = opt.get('new', 32)
    NMAIN = (NB16 + NRB - 1) // NRB
    o = []
    A = o.append
    A("s_getpc_b64 s[56:57]")
    A("s_load_dwordx16 s[16:31], s[0:1], 0")
    A("s_load_dwordx8 s[32:39], s[0:1], 64")
    if opt.get('timing'):
        A("s_memtime s[100:101]")
    A(f"s_cmp_ge_u32 s2, {opt.get('nact', NMAIN) + NEW + 8}")
    A("s_cbranch_scc1 L1_end")
    A("v_lshrrev_b32 v1, 6, v0")
    A("v_and_b32 v2, 63, v0")
    A("s_lshr_b32 s3, s2, 3")
    A(f"v_readfirstlane_b32 s{S_W}, v1")
    A(f"s_mul_i32 s5, s3, {NW}")
    A(f"s_add_u32 s5, s5, s{S_W}")
    if opt.get('cpf', 1):
        A("s_and_b32 s56, s56, 0xffffff00")
        A(f"s_mov_b32 s58, {opt.get('code_end', 'L1_end')}-k1_kernel")
        A("s_mov_b32 s59, 0x00020000")
        A("s_and_b32 s6, s5, 15")
        A("s_lshl_b32 s6, s6, 13")
        A("v_lshlrev_b32 v10, 7, v2")
        A("buffer_load_dword v255, v10, s[56:59], s6 offen")
    A("v_and_b32 v3, 15, v2")
    A("v_lshrrev_b32 v4, 4, v2")
    A(f"s_and_b32 s{S_ROT}, s3, {opt.get('rotm', 7)}")
    A(f"s_sub_u32 s4, s2, {NEW + 8}")
    A(f"s_cmp_lt_u32 s2, {NEW + 8}")
    A("s_cbranch_scc1 L1_notq")
    A(f"s_mov_b32 s{S_ROLE}, 0")
    o += gemm_prog('q', opt)
    A("s_branch L1_fin")
    A("L1_notq:")
    A(f"s_sub_u32 s4, s2, {NEW}")
    A(f"s_cmp_lt_u32 s2, {NEW}")
    A("s_cbranch_scc1 L1_edge")
    A(f"s_mov_b32 s{S_ROLE}, 1")
    o += gemm_prog('w', opt)
    A("s_branch L1_fin")
    A("L1_edge:")
    A(f"s_mov_b32 s{S_ROLE}, 4")
    A("s_mov_b32 s4, s2")
    o += edge_prog(opt)
    A("L1_fin:")
    if opt.get('timing'):
        A("s_memtime s[4:5]")
        A("s_waitcnt vmcnt(0)")
        A("s_memtime s[6:7]")
        A("s_waitcnt lgkmcnt(0)")
        for k in range(8):
            A(f"v_writelane_b32 v0, s{16+2*k}, {k}")
        A("v_writelane_b32 v0, s4, 8")
        A("v_writelane_b32 v0, s6, 9")
        A(f"v_subrev_u32 v0, s100, v0")
        A(f"v_writelane_b32 v0, s{S_ROLE}, 63")
        srd_from(o, 4, 34, 0, 1 << 20)
        A(f"s_mul_i32 s8, s2, {NW}")
        A(f"s_add_u32 s8, s8, s{S_W}")
        A(f"s_lshl_b32 s8, s8, 8")
        A(f"v_mbcnt_lo_u32_b32 v1, -1, 0")
        A(f"v_mbcnt_hi_u32_b32 v1, -1, v1")
        A(f"v_lshlrev_b32 v1, 2, v1")
        A(f"buffer_store_dword v0, v1, s[4:7], s8 offen")
    A("L1_end:")
    return "\n".join(o)


def kernel_desc(opt=None):
    opt = opt or {}
    NW = opt.get('nw', 8); NRB = opt.get('nrb', 3); NEW = opt.get('new', 32)
    return dict(name="k1_kernel", body=gen_k1(opt), vgpr=256, accum=256, grid=(NB16 + NRB - 1) // NRB + NEW + 8, block=64 * NW, lds=K1_LDS)

if __name__ == "__main__":
    import sys, json
    t = gen_k1(dict(json.loads(sys.argv[1]) if len(sys.argv) > 1 else {}, verbose=1))
    e = hazard.check(t, "k1")
    print("\n".join(e[:30])); print(len(e), "hazards;", len(t.split("\n")), "lines")
    open('k1n.s', 'w').write(t)
```

```python
from layout import *

def Q(qb, ds): return (qb * 8 + ds) * 4
S_BASE = [128, 144]
def S(h, qb): return S_BASE[h] + qb * 4
P_BASE = [160, 176]
def P(p, qb): return P_BASE[p] + qb * 4
def NEGM(qb): return 192 + qb * 4
RING = 4
def F(i): return 208 + (i % RING) * 4
LA = [224 + i for i in range(4)]
LB = [228 + i for i in range(4)]
ET = [232 + i for i in range(8)]
VK = 240
VTR = [249, 250]
VDMA = 241
VT0, VT1 = 242, 243
M = [244 + i for i in range(4)]
VLANE16 = 248
KB = [VK, 251, 252]
VSP = 253
RD = 254
def O(fb, qb): return (fb * 4 + qb) * 4

SRD_Q, SRD_K, SRD_OP, SRD_ML = 8, 12, 20, 24
S_OFF, S_M0, S_CNT, S_THR, S_MASK, S_WAVE, S_SITE = 28, 30, 31, 32, 33, 34, 36


def vr(b, n=4): return f"v[{b}:{b+n-1}]"
def ar(b, n=4): return f"a[{b}:{b+n-1}]"


class Seg:
    def __init__(self):
        self.mf = []
        self.gap = []
        self.pre = []

    def add_mfma(self, t):
        self.mf.append(t)
        self.gap.append([])

    def used(self, g):
        return sum(c for c, _ in self.gap[g])

    def put(self, g, text, cost=1):
        if g < 0:
            self.pre.append((cost, text))
        else:
            self.gap[g].append((cost, text))

    def fill(self, queue, g0, g1, cap=2):
        g = g0
        for cost, text in queue:
            while g < g1 and self.used(g) + cost > cap:
                g += 1
            self.gap[g].append((cost, text))
        return g

    def text(self):
        o = [t for _, t in self.pre]
        for m, gp in zip(self.mf, self.gap):
            o.append(m)
            o += [t for _, t in gp]
        return o


def foff(kb, c): return (c >> 1) * 4096 + kb * 2048 + (c & 1) * 512

def kread(off):
    return [lambda f: f"ds_read_b128 {vr(f)}, v{VK} offset:{off}"]

def vread(off, fb):
    return [lambda f, kb=kb: f"ds_read_b64_tr_b16 v[{f+2*kb}:{f+2*kb+1}], v{VTR[fb & 1]} offset:{off + foff(kb, fb >> 1)}" for kb in range(2)]


def qk_block(h, off, cinit):
    fr = []
    for ds in range(8):
        ms = []
        for qb in range(4):
            c = cinit(qb) if ds == 0 else vr(S(h, qb))
            ms.append(lambda f, qb=qb, ds=ds, c=c: f"v_mfma_f32_16x16x32_bf16 {vr(S(h,qb))}, {vr(f)}, {vr(Q(qb,ds))}, {c}")
        fr.append((kread(off + foff(h, ds)), ms))
    return fr


TR = [0]
def pvm(acc, f, pp):
    a, b = (pp, f) if TR[0] else (f, pp)
    return f"v_mfma_f32_16x16x32_bf16 {ar(acc)}, {vr(a)}, {vr(b)}, {ar(acc)}"


def pv_block(p, off, fb0):
    fr = []
    for fb in range(fb0, fb0 + 8):
        ms = []
        for qb in range(4):
            ms.append(lambda f, qb=qb, fb=fb: pvm(O(fb, qb), f, P(p, qb)))
        fr.append((vread(off, fb), ms))
    return fr


def build_seg(frags, next_reads):
    sg = Seg()
    n = len(frags)
    assert n % RING == 0
    rds = [r for r, _ in frags] + list(next_reads)
    for i, (_, ms) in enumerate(frags):
        for m in ms:
            sg.add_mfma(m(F(i)))
    issued = []
    for i in range(RING): issued += [i] * len(rds[i])
    def wait(g, i):
        last = max(k for k, x in enumerate(issued) if x == i)
        assert issued.count(i) == len(rds[i])
        sg.put(g, f"s_waitcnt lgkmcnt({len(issued) - 1 - last})")
    wait(-1, 0)
    for i in range(n):
        g = 4 * i + 3
        nxt = i + RING
        late = []
        if nxt < len(rds):
            r = rds[nxt]
            now = r[:1] if i + 1 < n else r
            late = r[len(now):]
            for x in now:
                sg.put(g, x(F(nxt))); issued.append(nxt)
        if i + 1 < n: wait(g, i + 1)
        for x in late:
            sg.put(g + 1, x(F(nxt))); issued.append(nxt)
    return sg


def softmax_queue(h, pn, site):
    lin, lout = (LA, LB) if h == 0 else (LB, LA)
    if callable(pn):
        pf = pn; P = lambda _, qb: pf(qb)
    else:
        P = globals()['P']
    q = []
    for qb in range(4):
        e = ET[(qb % 2) * 4:(qb % 2) * 4 + 4]
        s = S(h, qb)
        q.append((2, f"v_exp_f32 v{e[0]}, v{s}"))
        q.append((2, f"v_exp_f32 v{e[1]}, v{s+1}"))
        q.append((2, f"v_exp_f32 v{e[2]}, v{s+2}"))
        q.append((1, f"v_add_f32 v{lout[qb]}, v{lin[qb]}, v{e[0]}"))
        q.append((1, f"v_cvt_pk_bf16_f32 v{P(pn,qb)+2*h}, v{e[0]}, v{e[1]}"))
        q.append((2, f"v_exp_f32 v{e[3]}, v{s+3}"))
        q.append((1, f"v_add_f32 v{lout[qb]}, v{lout[qb]}, v{e[1]}"))
        q.append((1, f"v_add_f32 v{lout[qb]}, v{lout[qb]}, v{e[2]}"))
        q.append((1, f"v_add_f32 v{lout[qb]}, v{lout[qb]}, v{e[3]}"))
        q.append((1, f"v_cvt_pk_bf16_f32 v{P(pn,qb)+2*h+1}, v{e[2]}, v{e[3]}"))
    q.append((1, f"v_max3_f32 v{VT0}, v{lout[0]}, v{lout[1]}, v{lout[2]}"))
    q.append((1, f"v_max_f32 v{VT0}, v{VT0}, v{lout[3]}"))
    q.append((1, f"v_cmp_lt_f32 vcc, s{S_THR}, v{VT0}"))
    q.append((1, f"s_cbranch_vccnz L2_rare_site{site}\nL2_ret{site}:"))
    return q


def body(p, kind, sites, opt):
    B = p * 16384
    Bn = (1 - p) * 16384
    negm = lambda qb: vr(NEGM(qb))
    fr = pv_block(p, B, 0)
    if kind != 'tail1':
        fr += qk_block(1, Bn, negm)
    fr += pv_block(p, B, 8)
    if kind == 'loop':
        fr += qk_block(0, B, negm)
    nxt = [vread(Bn, i) for i in range(RING)] if kind != 'tail1' else []
    sg = build_seg(fr, nxt)
    if kind == 'loop':
        gb = opt.get('gbar', 81)
        gd = opt.get('gdma', [0, 1, 2, 5, 6])
        if not opt.get('nobar'):
            sg.put(gb, "s_waitcnt vmcnt(%d)" % sum(1 for x in gd[1:] if x < gb))
            sg.put(gb, "s_barrier")
        assert all(x != gb for x in gd) and gb < 83
        sg.put(gd[0], f"s_mov_b32 m0, s{S_M0}")
        for k in range(4):
            sg.put(gd[k + 1], f"buffer_load_dwordx4 v{VDMA}, s[{SRD_K}:{SRD_K+3}], s{S_OFF} offen offset:{k*1024}{opt.get('dl','')} lds")
        sg.put(125, f"s_add_u32 s{S_OFF}, s{S_OFF}, 0x4000")
        sg.put(125, f"s_add_u32 s{S_M0}, s{S_M0}, 0x4000")
        sg.put(122, f"s_sub_u32 s{S_CNT}, s{S_CNT}, 1")
        sg.put(126, f"s_and_b32 s{S_M0}, s{S_M0}, 0x1ffff")
        sg.put(126, f"s_cmp_eq_u32 s{S_CNT}, 0")
        if p == 0:
            sg.put(70, f"v_add_u32 v{VK}, 0x8000, v{VK}")
            sg.put(70, f"v_and_b32 v{VK}, 0x1ffff, v{VK}")
    if kind == 'tail2':
        sg.put(2, "s_waitcnt vmcnt(0)")
    if p == 1 and kind != 'tail1':
        g = 84 if kind == 'loop' else 81
        sg.put(g, f"v_add_u32 v{VTR[0]}, 0x8000, v{VTR[0]}")
        sg.put(g, f"v_and_b32 v{VTR[0]}, 0x1ffff, v{VTR[0]}")
        sg.put(g + 1, f"v_xor_b32 v{VTR[1]}, 32, v{VTR[0]}")
    if kind != 'tail1' and opt.get('valu', 1):
        def flt(q):
            if opt.get('nochk'): q = q[:-4] + [(0, q[-1][1].split("\n")[1])]
            if opt.get('noexp'): q = [(1, x.replace('v_exp_f32', 'v_mov_b32')) if 'v_exp' in x else (c, x) for c, x in q]
            return q
        g = sg.fill(flt(softmax_queue(0, 1 - p, sites[0])), opt.get('g0', 8), 71)
        if opt.get('verbose'): print(kind, p, "sm0 end", g)
        last = 124 if kind == 'loop' else len(sg.mf) - 1
        g = sg.fill(flt(softmax_queue(1, 1 - p, sites[1])), 72, last)
        if opt.get('verbose'): print(kind, p, "sm1 end", g, "over", [(i, sg.used(i)) for i in range(len(sg.mf)) if sg.used(i) > 2])
    return sg


def rare_code(p, h, sites, pt=None, live=None, spills=()):
    if pt is None:
        pt = lambda qb: P(1 - p, qb)
        live = [lambda qb: P(p, qb)]
    lin, lout = (LA, LB) if h == 0 else (LB, LA)
    o = []
    for st in sites:
        o.append(f"L2_rare_site{st}:")
        o.append(f"s_mov_b32 s{S_SITE}, {st}")
        o.append(f"s_branch L2_rare_{p}_{h}")
    o.append(f"L2_rare_{p}_{h}:")
    o.append("s_nop 15")
    o.append("s_nop 15")
    o.append("s_waitcnt lgkmcnt(0)")
    DL = ET[0:4]
    FF = ET[4:8]
    for qb in range(4):
        s = S(h, qb)
        d = DL[qb]
        o.append(f"v_log_f32 v{VT1}, v{lin[qb]}")
        o.append(f"v_max3_f32 v{d}, v{s}, v{s+1}, v{s+2}")
        o.append(f"v_max3_f32 v{d}, v{d}, v{s+3}, v{VT1}")
        o.append(f"v_mov_b32 v{VT1}, v{d}")
        o.append("s_nop 1")
        o.append(f"v_permlane32_swap_b32 v{d}, v{VT1}")
        o.append("s_nop 1")
        o.append(f"v_max_f32 v{d}, v{d}, v{VT1}")
        o.append(f"v_mov_b32 v{VT1}, v{d}")
        o.append("s_nop 1")
        o.append(f"v_permlane16_swap_b32 v{d}, v{VT1}")
        o.append("s_nop 1")
        o.append(f"v_max_f32 v{d}, v{d}, v{VT1}")
        o.append(f"v_ceil_f32 v{d}, v{d}")
        o.append(f"v_max_f32 v{d}, 0, v{d}")
        o.append(f"v_sub_f32 v{VT1}, 0, v{d}")
        o.append(f"v_exp_f32 v{FF[qb]}, v{VT1}")
        o.append("s_nop 1")
        o.append(f"v_mul_f32 v{lin[qb]}, v{lin[qb]}, v{FF[qb]}")
        o.append(f"v_add_f32 v{M[qb]}, v{M[qb]}, v{d}")
        for r in range(4):
            o.append(f"v_sub_f32 v{NEGM(qb)+r}, v{NEGM(qb)+r}, v{d}")
            o.append(f"v_sub_f32 v{S(0,qb)+r}, v{S(0,qb)+r}, v{d}")
            o.append(f"v_sub_f32 v{S(1,qb)+r}, v{S(1,qb)+r}, v{d}")
        regs = [f(qb) + r for f in live for r in range(4)] + ([] if h == 0 else [pt(qb) + r for r in range(2)])
        def scale(r):
            o.append(f"v_lshlrev_b32 v{VT0}, 16, v{r}")
            o.append(f"v_and_b32 v{VT1}, 0xffff0000, v{r}")
            o.append(f"v_mul_f32 v{VT0}, v{VT0}, v{FF[qb]}")
            o.append(f"v_mul_f32 v{VT1}, v{VT1}, v{FF[qb]}")
            o.append(f"v_cvt_pk_bf16_f32 v{r}, v{VT0}, v{VT1}")
        for r in regs: scale(r)
        for k in spills:
            for hh in range(2):
                off = k * 4096 + qb * 1024 + hh * 8
                o.append(f"ds_read_b64 v[{RD}:{RD+1}], v{VSP} offset:{off}")
                o.append("s_waitcnt lgkmcnt(0)")
                scale(RD); scale(RD + 1)
                o.append(f"ds_write_b64 v{VSP}, v[{RD}:{RD+1}] offset:{off}")
                o.append("s_waitcnt lgkmcnt(0)")
    for qb in range(4):
        s = S(h, qb)
        e = ET[0:4]
        for r in range(4):
            o.append(f"v_exp_f32 v{e[r]}, v{s+r}")
        o.append("s_nop 1")
        o.append(f"v_add_f32 v{lout[qb]}, v{lin[qb]}, v{e[0]}")
        for r in range(1, 4):
            o.append(f"v_add_f32 v{lout[qb]}, v{lout[qb]}, v{e[r]}")
        o.append(f"v_cvt_pk_bf16_f32 v{pt(qb)+2*h}, v{e[0]}, v{e[1]}")
        o.append(f"v_cvt_pk_bf16_f32 v{pt(qb)+2*h+1}, v{e[2]}, v{e[3]}")
    o.append("s_branch L2_rare_common")
    return o


def rare_common(all_sites):
    FF = ET[4:8]
    o = ["L2_rare_common:"]
    FT = [VT0, VT1, RD, RD + 1]
    for qb in range(4):
        if TR[0]:
            o.append(f"v_lshrrev_b32 v{ET[0]}, 4, v{VLANE16}")
            o.append(f"v_and_b32 v{ET[0]}, 0x30, v{ET[0]}")
            for r in range(4): o.append(f"ds_bpermute_b32 v{FT[r]}, v{ET[0]}, v{FF[qb]} offset:{4*r}")
            o.append("s_waitcnt lgkmcnt(0)")
        for fb in range(16):
            for r in range(4):
                a = O(fb, qb) + r
                t = ET[r]
                o.append(f"v_accvgpr_read_b32 v{t}, a{a}")
            for r in range(4):
                o.append(f"v_mul_f32 v{ET[r]}, v{ET[r]}, v{FT[r] if TR[0] else FF[qb]}")
            for r in range(4):
                o.append(f"v_accvgpr_write_b32 a{O(fb,qb)+r}, v{ET[r]}")
    o.append("s_nop 3")
    for st in all_sites[:-1]:
        o.append(f"s_cmp_eq_u32 s{S_SITE}, {st}")
        o.append(f"s_cbranch_scc1 L2_ret{st}")
    o.append(f"s_branch L2_ret{all_sites[-1]}")
    return o


def srd(o, d, off, nbytes, extra_sgpr=None):
    o.append(f"s_add_u32 s{d}, s4, 0x{off & 0xffffffff:x}")
    o.append(f"s_addc_u32 s{d+1}, s5, 0")
    if extra_sgpr is not None:
        o.append(f"s_add_u32 s{d}, s{d}, s{extra_sgpr}")
        o.append(f"s_addc_u32 s{d+1}, s{d+1}, 0")
    o.append(f"s_mov_b32 s{d+2}, 0x{nbytes:x}")
    o.append(f"s_mov_b32 s{d+3}, 0x00020000")


def epilogue(sg_tail, opt):
    conv = []
    for t in range(8):
        q = []
        for qb in range(4):
            st = (t * 4 + qb) * 4
            tmp = [128 + (qb % 2) * 8 + r for r in range(8)]
            for k in range(8):
                q.append((1, f"v_accvgpr_read_b32 v{tmp[k]}, a{O(2*t+k//4,qb)+k%4}"))
            for r in range(4):
                q.append((1, f"v_cvt_pk_bf16_f32 v{st+r}, v{tmp[2*r]}, v{tmp[2*r+1]}"))
            so = 40 + qb if t < 4 else 44 + qb
            q.append((1, f"buffer_store_dwordx4 {vr(st)}, v{VLANE16}, s[{SRD_OP}:{SRD_OP+3}], s{so} offen offset:{(t%4)*1024}{opt.get('st','')}"))
        conv.append(q)
    nm = len(sg_tail.mf)
    assert nm == 64
    for t in range(8):
        g0 = 8 * t + 12
        if g0 <= nm - 1:
            sg_tail.fill(conv[t], g0, min(g0 + 7, nm - 1), cap=7)
        else:
            sg_tail.put(nm - 1, "s_nop 7")
            for c, x in conv[t]:
                sg_tail.put(nm - 1, x, c)
    return sg_tail.text() + ml_store(opt)


def ml_store(opt):
    o = []
    for qb in range(4):
        l = LA[qb]
        o.append(f"v_mov_b32 v{VT1}, v{l}")
        o.append("s_nop 1")
        o.append(f"v_permlane32_swap_b32 v{l}, v{VT1}")
        o.append("s_nop 1")
        o.append(f"v_add_f32 v{l}, v{l}, v{VT1}")
        o.append(f"v_mov_b32 v{VT1}, v{l}")
        o.append("s_nop 1")
        o.append(f"v_permlane16_swap_b32 v{l}, v{VT1}")
        o.append("s_nop 1")
        o.append(f"v_add_f32 v{ET[2*qb+1]}, v{l}, v{VT1}")
        o.append(f"v_mov_b32 v{ET[2*qb]}, v{M[qb]}")
    o.append(f"v_lshlrev_b32 v{VT0}, 2, v{VLANE16}")
    o.append("s_mov_b64 exec, 0xffff")
    for qb in range(4):
        o.append(f"buffer_store_dwordx2 v[{ET[2*qb]}:{ET[2*qb+1]}], v{VT0}, s[{SRD_ML}:{SRD_ML+3}], s48 offen offset:{qb*1024}{opt.get('st','')}")
    return o


def tail_run(p, T, site0, opt):
    negm = lambda qb: vr(NEGM(qb))
    VB = [VTR, [Q(0, 3), Q(0, 3) + 1], [Q(0, 3) + 2, Q(0, 3) + 3]]
    nsp = max(T - 3, 0)
    def ploc(k, final=True):
        if k == T - 1: return lambda qb: Q(qb, 0)
        if k < nsp and final: return lambda qb, k=k: Q(qb, 1 + k)
        return lambda qb, k=k: P((p + k) & 1, qb)
    def kfr(k, h):
        i = (1 - p) + (k - 1)
        fr = []
        for ds in range(8):
            off = (i & 1) * 16384 + foff(h, ds)
            rd = [lambda f, off=off, i=i: f"ds_read_b128 {vr(f)}, v{KB[i >> 1]} offset:{off}"]
            ms = []
            for qb in range(4):
                c = negm(qb) if ds == 0 else vr(S(h, qb))
                ms.append(lambda f, qb=qb, ds=ds, c=c: f"v_mfma_f32_16x16x32_bf16 {vr(S(h,qb))}, {vr(f)}, {vr(Q(qb,ds))}, {c}")
            fr.append((rd, ms))
        return fr
    def vfr(k, fb, final=True):
        i = p + k
        rd = [lambda f, kb=kb: f"ds_read_b64_tr_b16 v[{f+2*kb}:{f+2*kb+1}], v{VB[i >> 1][fb & 1]} offset:{(i & 1) * 16384 + foff(kb, fb >> 1)}" for kb in range(2)]
        pl = ploc(k, final)
        ms = [lambda f, qb=qb: pvm(O(fb, qb), f, pl(qb)) for qb in range(4)]
        return (rd, ms)
    fr = [vfr(0, fb, False) for fb in range(4)]
    blocks = [(1, 1)] + [(k, h) for k in range(2, T) for h in range(2)]
    for k, h in blocks: fr += kfr(k, h)
    G = 4 * len(fr)
    lead = opt.get('lead', 44)
    order = []
    fb = 0
    while 4 * len(order) < lead or fb % 2:
        order += [(k, fb) for k in range(T - 1) if not (k == 0 and fb < 4)]
        fb += 1
    glast = G + 4 * len(order)
    order += [(T - 1, x) for x in range(fb)]
    for x in range(fb, 16):
        order += [(k, x) for k in range(T) if not (k == 0 and x < 4)]
    done = {}
    for i, (k, x) in enumerate(order): done[x] = G + 4 * i + 3
    fr += [vfr(k, x) for k, x in order]
    sg = build_seg(fr, [])
    nm = len(sg.mf)
    if opt.get('fuse'): import gen_f
    if opt.get('timing') and not opt.get('ft') and not opt.get('pt'):
        for i, gg in enumerate([30, 47, 111, G - 1, glast, (glast + nm) // 2, nm - 20]):
            sg.put(gg, f"s_memtime s[{74+2*i}:{75+2*i}]", 0)
    g = 0
    for k in range(3, T):
        sg.put(g, f"s_mov_b32 m0, s{S_M0}")
        for j in range(4):
            sg.put(g + 1 + j, f"buffer_load_dwordx4 v{VDMA}, s[{SRD_K}:{SRD_K+3}], s{S_OFF} offen offset:{j*1024}{opt.get('dl','')} lds ; TK{k}")
        if k + 1 < T:
            sg.put(g + 5, f"s_add_u32 s{S_OFF}, s{S_OFF}, 0x4000\ns_add_u32 s{S_M0}, s{S_M0}, 0x4000\ns_and_b32 s{S_M0}, s{S_M0}, 0x1ffff", 2)
        g += 6
    for k in range(2, T):
        gb = 16 + 32 * (2 * k - 3) - 15
        sg.put(gb, f"WAIT TK{k}" if opt.get('fuse') and k > 2 else f"s_waitcnt vmcnt({4 * (T - 1 - k)})")
        sg.put(gb, "s_barrier")
    sg.put(1, f"v_add_u32 v{VSP}, s50, v{VLANE16}")
    for b in (1, 2):
        if 2 * b <= (1 - p) + (T - 2):
            sg.put(12 + b, f"v_add_u32 v{KB[b]}, 0x{0x8000*b:x}, v{VK}")
            sg.put(12 + b, f"v_and_b32 v{KB[b]}, 0x1ffff, v{KB[b]}")
    GL = G - 32
    for b in (1, 2):
        if 2 * b <= p + T - 1:
            sg.put(GL + 13 + b, f"v_add_u32 v{VB[b][0]}, 0x{0x8000*b:x}, v{VTR[0]}")
            sg.put(GL + 13 + b, f"v_and_b32 v{VB[b][0]}, 0x1ffff, v{VB[b][0]}")
            sg.put(GL + 16, f"v_xor_b32 v{VB[b][1]}, 32, v{VB[b][0]}")
    for k in range(nsp):
        gs = 16 if k == 0 else 16 + 32 * 2 * k
        for qb in range(4):
            sg.put(gs + qb, f"ds_write_b128 v{VSP}, {vr(ploc(k, False)(qb))} offset:{k*4096 + qb*1024}")
            sg.put(GL + 4 * (k + 2) + 1 + (qb & 1) + (qb >> 1) * 4, f"ds_read_b128 {vr(ploc(k)(qb))}, v{VSP} offset:{k*4096 + qb*1024}")
    rare = []
    sites = []
    sms = [(k, h) for k in range(1, T) for h in range(2)]
    cap = opt.get('tcap', 3)
    for i, (k, h) in enumerate(sms):
        st = site0 + i
        sites.append(st)
        g0 = 6 if i == 0 else 16 + 32 * i + (4 if i == len(sms) - 2 else 1)
        g1 = 16 + 32 * i + 31 if i < len(sms) - 1 else glast - 2
        q = softmax_queue(h, ploc(k, False), st)
        c = 2 if (i == 0 or i == len(sms) - 1) else cap
        ge = sg.fill(q[:-1], g0, g1, cap=c)
        sg.put(max(ge, g1 - 2) if i == len(sms) - 2 or i == 0 or (h == 0 and 1 <= k - 1 < nsp) else ge, q[-1][1])
        late = i >= len(sms) - 2
        live = [ploc(j, late) for j in range(k) if late or j >= nsp or (j > 0 and i < 2 * j)]
        spl = [j for j in range(nsp) if j < k and not late and not (j > 0 and i < 2 * j)]
        rare += rare_code(f"t{p}_{i}", h, [st], ploc(k, False), live, spl)
        if opt.get('verbose'): print("tail", p, "sm", k, h, "end", ge, "of", g1, "live", [f(0) for f in live], "spill", spl)
    if opt.get('fuse'):
        ge = sg.fill(gen_f.early1(p, opt), 12, 32, cap=3)
        eg = opt.get('eg', [34, 180, 236])
        for f, g0 in zip((gen_f.early_x, gen_f.early_hf, gen_f.early_h), eg):
            ge = sg.fill(f(p, opt), max(g0, ge), nm - 1, cap=opt.get('ecap', 3))
            if opt.get('verbose'): print("early end", ge)
    g = glast
    ccap = opt.get('ccap', 3)
    if opt.get('mle'):
        q = [(1, f"v_lshlrev_b32 v{VT0}, 2, v{VLANE16}")] if not opt.get('fuse') else [(1, x) for x in gen_f.ml_addr(VT0, VLANE16)]
        for f in ("v_mov_b32 v{e}, v{l}", "v_permlane32_swap_b32 v{l}, v{e}", "v_add_f32 v{l}, v{l}, v{e}", "v_mov_b32 v{e}, v{l}",
                  "v_permlane16_swap_b32 v{l}, v{e}", "v_add_f32 v{e1}, v{l}, v{e}", "v_mov_b32 v{e}, v{m}"):
            q += [(1, f.format(e=ET[2*qb], e1=ET[2*qb+1], l=LA[qb], m=M[qb])) for qb in range(4)]
        if opt.get('fuse'):
            z = ["s_mov_b32 exec_hi, 0"]
            for qb in range(4):
                if qb: z.append(f"s_lshr_b32 s3, s{40+qb}, 2")
                z.append(f"buffer_store_dwordx2 v[{ET[2*qb]}:{ET[2*qb+1]}], v{VT0}, s[{SRD_ML}:{SRD_ML+3}], s{3 if qb else 48} offen{opt.get('st','')}")
            q.append((3, "\n".join(z + ["s_mov_b32 exec_hi, -1"])))
        else: q.append((3, "\n".join(ml_store(opt)[-5:] + ["s_mov_b64 exec, -1"])))
        g = sg.fill(q, g, nm - 1, cap=opt['mle'])
    for t in range(8):
        q = []
        for qb in range(4):
            stg = Q(qb, 4 + t % 4)
            tmp = [128 + (qb % 4) * 8 + r for r in range(8)]
            for k in range(8):
                q.append((1, f"v_accvgpr_read_b32 v{tmp[k]}, a{O(2*t+k//4,qb)+k%4}"))
            for r in range(4):
                q.append((1, f"v_cvt_pk_bf16_f32 v{stg+r}, v{tmp[2*r]}, v{tmp[2*r+1]}"))
            so = 40 + qb if t < 4 else 44 + qb
            q.append((1, f"buffer_store_dwordx4 {vr(stg)}, v{VLANE16}, s[{SRD_OP}:{SRD_OP+3}], s{so} offen offset:{(t%4)*1024}{opt.get('st','')} ; ST{t}"))
        if opt.get('nost'): q = [x for x in q if 'store' not in x[1]]
        if opt.get('nocv'): q = [x for x in q if 'store' in x[1]]
        cc = ccap[t] if isinstance(ccap, list) else ccap
        px = opt.get('plainx', 4 * opt.get('plain', 8))
        q = [(c, x.replace(opt.get('st', ''), '') if (4 * t + i // 13 >= px if px >= 0 else 4 * t + i // 13 < -px) else x) for i, (c, x) in enumerate(q)]
        if opt.get('half'):
            qa = [x for i, x in enumerate(q) if i % 13 in (0, 1, 2, 3, 8, 9)]
            q = [x for i, x in enumerate(q) if i % 13 not in (0, 1, 2, 3, 8, 9)]
            g = sg.fill(qa, max(g, done[2*t] + 3), nm - 1, cap=cc)
        g0 = max(g, max(done[2*t], done[2*t+1]) + 3)
        if g0 > nm - 1:
            if not opt.get('half'): sg.put(nm - 1, "s_nop 7")
            g0 = nm - 1
        if opt.get('fuse'):
            i0 = [i for i, x in enumerate(q) if 'buffer_store' in x[1]][0]
            q.insert(i0 + 1, (1, f"ds_write_b128 v{VSP}, {vr(Q(0, 4 + t % 4))} offset:{t*1024}"))
        g = sg.fill(q, g0, nm - 1, cap=cc)
        if opt.get('verbose'): print("  conv", t, g0, g, "of", nm)
    if opt.get('fuse'):
        return gen_f.fix_waits(sg.text() + ["WAIT HLD"]), rare + gen_f.hl_spin(p), sites
    return sg.text() + ([] if opt.get('mle') else ml_store(opt)), rare, sites


def light(o, opt, TT):
    A = o.append
    LB0 = 0x16000
    KF = 32; VF = 96; OV = lambda fb: 160 + fb * 4 if fb < 8 else 0
    QL = lambda ds: ds * 4
    KFr = lambda h, ds: 32 + (h * 8 + ds) * 4
    VFr = lambda fb: 96 + fb * 4
    SL = [160, 164]; PL = 168; MM, LL, FF, T0, T1 = 172, 173, 174, 175, 176
    AK, AV0, AV1 = 177, 178, 179
    TM = 180
    MK = NEGM(0)
    S_N, S_SL, S_DS, S_T = 51, 52, 53, 54
    A("LT_start:")
    A("s_waitcnt lgkmcnt(0)")
    if opt.get('mg'):
        import gen_f; gen_f.poll_all(A, o, "LT_poll", SRD_K, 0)
    srd(o, SRD_K, H_OFF, 0)
    A(f"s_mov_b32 s{SRD_K+2}, s49")
    srd(o, SRD_Q, QF_OFF, QF_BYTES)
    A(f"s_mov_b32 s40, {39 * 16 * 8192}")
    A(f"s_mov_b32 s44, {39 * 16 * 8192 + 4096}")
    for ds in range(8):
        A(f"buffer_load_dwordx4 {vr(QL(ds))}, v{VLANE16}, s[{SRD_Q}:{SRD_Q+3}], s{40 if ds < 4 else 44} offen offset:{(ds%4)*1024}{opt.get('dl','')}")
    def dma(so):
        for w in range(4):
            A(f"s_add_u32 m0, s{S_DS}, {LB0 + w*4096}")
            A(f"s_add_u32 s{S_T}, s{so}, {w*128}")
            for k in range(4):
                A(f"buffer_load_dwordx4 v{VDMA}, s[{SRD_K}:{SRD_K+3}], s{S_T} offen offset:{k*1024}{opt.get('dl','')} lds")
        A(f"s_add_u32 s{S_DS}, s{S_DS}, 0x4000")
        A(f"s_and_b32 s{S_DS}, s{S_DS}, 0xffff")
    A(f"s_mov_b32 s{S_DS}, 0")
    dma(39)
    for i in range(2):
        dma(S_OFF)
        A(f"s_add_u32 s{S_OFF}, s{S_OFF}, 0x4000")
    A(f"s_mul_i32 s35, s37, 0x{OP_STRIDE:x}")
    srd(o, SRD_OP, OP_OFF, QF_BYTES, 35)
    srd(o, SRD_ML, ML_OFF, NB16 * (2048 if opt.get('fuse') else 1024))
    A(f"s_lshl_b32 s48, s37, 3")
    A(f"s_add_u32 s48, s48, {39 * 16 * 1024}")
    if opt.get('fuse'): A(f"s_mov_b32 s48, {39 * 16 * 2048}")
    lds_addrs(A)
    A(f"s_add_u32 s{S_N}, s{S_CNT}, {TT or 2}")
    A(f"s_mov_b32 s{S_SL}, {LB0}")
    A(f"v_mov_b32 v{MM}, 0xff800000")
    A(f"v_mov_b32 v{LL}, 0")
    for r in range(64): A(f"v_accvgpr_write_b32 a{r}, 0")
    A("LT_loop:")
    dma(S_OFF)
    A(f"s_add_u32 s{S_OFF}, s{S_OFF}, 0x4000")
    A(f"v_add_u32 v{AK}, s{S_SL}, v{VK}")
    A(f"v_add_u32 v{AV0}, s{S_SL}, v{VTR[0]}")
    A(f"v_add_u32 v{AV1}, s{S_SL}, v{VTR[1]}")
    A(f"s_add_u32 s{S_SL}, s{S_SL}, 0x4000")
    A(f"s_cmp_eq_u32 s{S_SL}, {LB0 + 0x10000}")
    A(f"s_cselect_b32 s{S_SL}, {LB0}, s{S_SL}")
    A("s_waitcnt vmcnt(48)")
    for ds in range(8):
        for h in range(2):
            A(f"ds_read_b128 {vr(KFr(h, ds))}, v{AK} offset:{foff(h, ds)}")
    for ds in range(8):
        A(f"s_waitcnt lgkmcnt({14 - 2*ds})")
        for h in range(2):
            A(f"v_mfma_f32_16x16x32_bf16 {vr(SL[h])}, {vr(KFr(h, ds))}, {vr(QL(ds))}, {vr(SL[h]) if ds else vr(MK)}")
    for fb in range(16):
        for kb in range(2):
            A(f"ds_read_b64_tr_b16 v[{VFr(fb)+2*kb}:{VFr(fb)+2*kb+1}], v{AV1 if fb & 1 else AV0} offset:{foff(kb, fb >> 1)}")
    for r in range(4): A(f"v_mov_b32 v{MK+r}, 0")
    A("s_nop 7")
    A(f"v_max3_f32 v{T0}, v{SL[0]}, v{SL[0]+1}, v{SL[0]+2}")
    A(f"v_max3_f32 v{T0}, v{T0}, v{SL[0]+3}, v{SL[1]}")
    A(f"v_max3_f32 v{T0}, v{T0}, v{SL[1]+1}, v{SL[1]+2}")
    A(f"v_max3_f32 v{T0}, v{T0}, v{SL[1]+3}, v{MM}")
    for sw in ("v_permlane32_swap_b32", "v_permlane16_swap_b32"):
        A(f"v_mov_b32 v{T1}, v{T0}")
        A("s_nop 1")
        A(f"{sw} v{T0}, v{T1}")
        A("s_nop 1")
        A(f"v_max_f32 v{T0}, v{T0}, v{T1}")
    if TR[0]: A(f"v_ceil_f32 v{T0}, v{T0}")
    A(f"v_sub_f32 v{FF}, v{MM}, v{T0}")
    A(f"v_exp_f32 v{FF}, v{FF}")
    A(f"v_mov_b32 v{MM}, v{T0}")
    for r in range(8): A(f"v_sub_f32 v{SL[0]+r}, v{SL[0]+r}, v{MM}")
    for r in range(8): A(f"v_exp_f32 v{SL[0]+r}, v{SL[0]+r}")
    A(f"v_mul_f32 v{LL}, v{LL}, v{FF}")
    for r in range(4): A(f"v_cvt_pk_bf16_f32 v{PL+r}, v{SL[0]+2*r}, v{SL[0]+2*r+1}")
    A(f"v_cmp_neq_f32 vcc, 1.0, v{FF}")
    for r in range(8): A(f"v_add_f32 v{LL}, v{LL}, v{SL[0]+r}")
    A("s_cbranch_vccz LT_nors")
    if TR[0]:
        A(f"v_lshrrev_b32 v{T1}, 4, v{VLANE16}")
        A(f"v_and_b32 v{T1}, 0x30, v{T1}")
        for r in range(4): A(f"ds_bpermute_b32 v{188+r}, v{T1}, v{FF} offset:{4*r}")
        A("s_waitcnt lgkmcnt(0)")
    for c in range(8):
        for r in range(8): A(f"v_accvgpr_read_b32 v{TM+r}, a{8*c+r}")
        for r in range(8): A(f"v_mul_f32 v{TM+r}, v{TM+r}, v{188 + r % 4 if TR[0] else FF}")
        for r in range(8): A(f"v_accvgpr_write_b32 a{8*c+r}, v{TM+r}")
    A("LT_nors:")
    A("s_waitcnt lgkmcnt(0)")
    A("s_nop 1")
    for fb in range(16):
        A(pvm(fb * 4, VFr(fb), PL))
    A(f"s_sub_u32 s{S_N}, s{S_N}, 1")
    A(f"s_cmp_lg_u32 s{S_N}, 0")
    A("s_cbranch_scc1 LT_loop")
    A("s_nop 15")
    for t in range(8):
        for r in range(8): A(f"v_accvgpr_read_b32 v{TM+r}, a{8*t+r}")
        for r in range(4): A(f"v_cvt_pk_bf16_f32 v{32+4*t+r}, v{TM+2*r}, v{TM+2*r+1}")
        A(f"buffer_store_dwordx4 {vr(32+4*t)}, v{VLANE16}, s[{SRD_OP}:{SRD_OP+3}], s{40 if t < 4 else 44} offen offset:{(t%4)*1024}{opt.get('st','')}")
    for sw in ("v_permlane32_swap_b32", "v_permlane16_swap_b32"):
        A(f"v_mov_b32 v{T1}, v{LL}")
        A("s_nop 1")
        A(f"{sw} v{LL}, v{T1}")
        A("s_nop 1")
        A(f"v_add_f32 v{LL}, v{LL}, v{T1}")
    A(f"v_lshlrev_b32 v{T0}, 2, v{VLANE16}")
    A("s_mov_b64 exec, 0xffff")
    if opt.get('fuse'):
        import gen_f
        A("s_mov_b64 exec, -1")
        for x in gen_f.ml_addr(T0, VLANE16): A(x)
        A("s_mov_b32 exec_hi, 0")
    A(f"buffer_store_dwordx2 v[{MM}:{LL}], v{T0}, s[{SRD_ML}:{SRD_ML+3}], s48 offen{opt.get('st','')}")
    if opt.get('fuse'):
        import gen_f
        srd(o, 16, gen_f.FLAG_OFF, gen_f.NFLAG * gen_f.fstr(opt))
        A(f"s_add_u32 s48, s37, {156 * 8}")
        A(f"s_mul_i32 s48, s48, {gen_f.fstr(opt)}")
    A("s_waitcnt vmcnt(0)")
    if opt.get('fuse'): gen_f.publish(A, 16, 48, T1, opt)
    A("s_branch L2_fin")


def lds_addrs(A):
    L = VLANE16
    A(f"v_bfe_u32 v{VK}, v{L}, 4, 3")
    A(f"v_lshlrev_b32 v{VK}, 6, v{VK}")
    A(f"v_bfe_u32 v{VT0}, v{L}, 7, 1")
    A(f"v_lshl_or_b32 v{VK}, v{VT0}, 10, v{VK}")
    A(f"v_bfe_u32 v{VT0}, v{L}, 8, 2")
    A(f"v_lshl_or_b32 v{VK}, v{VT0}, 4, v{VK}")
    A(f"v_bfe_u32 v{VT0}, v{L}, 6, 1")
    A(f"v_lshlrev_b32 v{VT0}, 5, v{VT0}")
    A(f"v_xor_b32 v{VK}, v{VK}, v{VT0}")
    A(f"v_and_b32 v{VTR[0]}, 0x1c0, v{L}")
    A(f"v_bfe_u32 v{VT0}, v{L}, 9, 1")
    A(f"v_lshl_or_b32 v{VTR[0]}, v{VT0}, 10, v{VTR[0]}")
    A(f"v_bfe_u32 v{VT0}, v{L}, 8, 1")
    A(f"v_lshl_or_b32 v{VTR[0]}, v{VT0}, 5, v{VTR[0]}")
    A(f"v_bfe_u32 v{VT0}, v{L}, 4, 2")
    A(f"v_lshl_or_b32 v{VTR[0]}, v{VT0}, 3, v{VTR[0]}")
    A(f"v_xor_b32 v{VTR[1]}, 32, v{VTR[0]}")
    A(f"v_bfe_i32 v{VT0}, v{L}, 8, 1")
    for r in range(4):
        A(f"v_and_b32 v{NEGM(0)+r}, s{S_MASK}, v{VT0}")


def prologue2(o, opt, T):
    A = o.append
    Z = ET[0]
    for r in range(4):
        A(f"v_mov_b32 v{Z+r}, 0")
    nvm = [6]
    qidx = {}
    zi = 0
    for ds in range(8):
        for qb in range(4):
            so = 40 + qb if ds < 4 else 44 + qb
            A(f"buffer_load_dwordx4 {vr(Q(qb,ds))}, v{VLANE16}, s[{SRD_Q}:{SRD_Q+3}], s{so} offen offset:{(ds%4)*1024}{opt.get('dl','')}")
            nvm[0] += 1
            qidx[(ds, qb)] = nvm[0]
            if qb % 2 == 1:
                A(f"v_mfma_f32_32x32x16_bf16 a[{16*zi}:{16*zi+15}], {vr(Z)}, {vr(Z)}, 0")
                zi += 1
    T(1)
    if opt.get('mg'):
        import gen_m; A(gen_m.poll_b_load()); nvm[0] += 1
    if opt.get('fuse'):
        import gen_f; gen_f.prologue(A, o, 95)
    lds_addrs(A)
    items = []
    dm = lambda k: (1, f"buffer_load_dwordx4 v{VDMA}, s[{SRD_K}:{SRD_K+3}], s{S_OFF} offen offset:{k*1024}{opt.get('dl','')} lds")
    items += [dm(2), dm(3)]
    items.append((0, f"s_add_u32 s{S_OFF}, s{S_OFF}, 0x4000\ns_add_u32 m0, s{S_M0}, 0x8000\ns_nop 0"))
    items += [dm(k) for k in range(4)]
    items.append((0, f"s_add_u32 s{S_OFF}, s{S_OFF}, 0x4000\ns_add_u32 s{S_M0}, s{S_M0}, 0xc000"))
    spre = opt.get('spre', 0)
    while spre > 0:
        v, t = items.pop(0)
        A(t); nvm[0] += v; spre -= v
    T(2)
    A(f"s_waitcnt vmcnt({nvm[0]-6})")
    A("s_barrier")
    T(3)
    TB = P_BASE[1]
    dst = [S_BASE[0], S_BASE[1], TB]
    fr = []
    for ds in range(8):
        for b in range(3):
            ms = []
            for qb in range(4):
                d = vr(dst[b] + 4 * qb)
                c0 = vr(NEGM(0)) if b < 2 else '0'
                ms.append(lambda f, qb=qb, ds=ds, d=d, c0=c0: f"v_mfma_f32_16x16x32_bf16 {d}, {vr(f)}, {vr(Q(qb,ds))}, {d if ds else c0}")
            fr.append((kread((b >> 1) * 16384 + foff(b & 1, ds)), ms))
    for i in range(RING):
        A(fr[i][0][0](F(i)))
    sg = build_seg(fr, [])
    per = opt.get('sper', 3)
    for ds in range(8):
        g = 12 * ds - 1
        sg.put(g, f"s_waitcnt vmcnt({nvm[0]-qidx[(ds,3)]})")
        k = 0
        gg = g + 2
        while items and (k < per or ds == 7):
            v, t = items.pop(0)
            sg.put(min(gg, 95), t); nvm[0] += v; k += v; gg += 2
    o += sg.text()
    T(6)
    R4 = range(4)
    s0 = lambda qb: S(0, qb)
    s1 = lambda qb: S(1, qb)
    for qb in R4: A(f"v_max3_f32 v{M[qb]}, v{s0(qb)}, v{s0(qb)+1}, v{s0(qb)+2}")
    for qb in R4: A(f"v_max3_f32 v{M[qb]}, v{M[qb]}, v{s0(qb)+3}, v{s1(qb)}")
    for qb in R4: A(f"v_max3_f32 v{M[qb]}, v{M[qb]}, v{s1(qb)+1}, v{s1(qb)+2}")
    for qb in R4: A(f"v_max_f32 v{M[qb]}, v{M[qb]}, v{s1(qb)+3}")
    for sw in ("v_permlane32_swap_b32", "v_permlane16_swap_b32"):
        for qb in R4: A(f"v_mov_b32 v{ET[qb]}, v{M[qb]}")
        for qb in R4: A(f"{sw} v{M[qb]}, v{ET[qb]}")
        for qb in R4: A(f"v_max_f32 v{M[qb]}, v{M[qb]}, v{ET[qb]}")
    if TR[0]:
        for qb in R4: A(f"v_ceil_f32 v{M[qb]}, v{M[qb]}")
    for h in range(2):
        for qb in R4:
            for r in R4: A(f"v_sub_f32 v{S(h,qb)+r}, v{S(h,qb)+r}, v{M[qb]}")
            for r in R4: A(f"v_exp_f32 v{S(h,qb)+r}, v{S(h,qb)+r}")
            if h == 0:
                for r in R4: A(f"v_sub_f32 v{NEGM(qb)+r}, 0, v{M[qb]}")
        if h == 0:
            A("s_waitcnt vmcnt(4)")
            A("s_barrier")
            for i in range(RING):
                for x in vread(0, i): A(x(F(i)))
    T(7)
    for h in range(2):
        for qb in R4:
            s = S(h, qb)
            A(f"v_cvt_pk_bf16_f32 v{P(0,qb)+2*h}, v{s}, v{s+1}")
            A(f"v_cvt_pk_bf16_f32 v{P(0,qb)+2*h+1}, v{s+2}, v{s+3}")
    for qb in R4: A(f"v_add_f32 v{LA[qb]}, v{s0(qb)}, v{s0(qb)+1}")
    for qb in R4: A(f"v_add_f32 v{LB[qb]}, v{s0(qb)+2}, v{s0(qb)+3}")
    for r in R4:
        for qb in R4:
            t = LA if r % 2 == 0 else LB
            A(f"v_add_f32 v{t[qb]}, v{t[qb]}, v{s1(qb)+r}")
    for qb in R4: A(f"v_add_f32 v{LA[qb]}, v{LA[qb]}, v{LB[qb]}")
    for qb in R4:
        for r in R4: A(f"v_sub_f32 v{s0(qb)+r}, v{TB+4*qb+r}, v{M[qb]}")


def gen_k2(opt=None):
    opt = opt or {}
    TR[0] = opt.get('tr', opt.get('fuse', 0))
    o = []
    A = o.append
    MGK = opt.get('mg')
    if opt.get('fuse'):
        import gen_f
        gen_f.MG[0] = MGK
        if MGK:
            import gen_m
            opt = dict(opt, dl=' sc1'); o += gen_m.front(opt)
        else: A(f"s_mov_b64 s[{gen_f.S_TAG}:{gen_f.S_TAG+1}], 1")
    def T(i):
        if opt.get('timing'): A(f"s_memtime s[{74+2*i}:{75+2*i}]")
    A("s_load_dwordx2 s[4:5], s[0:1], %d" % KA_WS)
    if opt.get('fuse'):
        import gen_f
        A("s_load_dwordx2 s[60:61], s[0:1], %d" % KA_X)
        A("s_load_dwordx2 s[52:53], s[0:1], %d" % KA_DEG)
        A("s_load_dwordx2 s[56:57], s[0:1], %d" % KA_OUT)
    if opt.get('timing'):
        A("s_memtime s[62:63]" if not MGK else "s_mov_b64 s[62:63], s[100:101]")
        A("s_memrealtime s[64:65]")
        T(8)
    A("s_and_b32 s35, s2, 7")
    A("s_lshr_b32 s37, s2, 3")
    A("s_cmp_ge_u32 s37, 30")
    A("s_cbranch_scc1 LE_start")
    if opt.get('map', 1) == 1:
        A("s_mul_i32 s38, s37, 52")
        A("s_lshr_b32 s38, s38, 8")
        A("s_mul_i32 s39, s38, 5")
        A("s_sub_u32 s39, s37, s39")
        A("s_mov_b32 s37, s38")
        A("s_mul_i32 s38, s35, 5")
        A("s_add_u32 s38, s38, s39")
    else:
        A("s_mul_i32 s38, s37, 26")
        A("s_lshr_b32 s38, s38, 8")
        A("s_mul_i32 s39, s38, 10")
        A("s_sub_u32 s39, s37, s39")
        A("s_and_b32 s37, s35, 1")
        A("s_mul_i32 s37, s37, 3")
        A("s_add_u32 s37, s37, s38")
        A("s_lshr_b32 s38, s35, 1")
        A("s_mul_i32 s38, s38, 10")
        A("s_add_u32 s38, s38, s39")
    A("v_lshrrev_b32 v1, 6, v0")
    A(f"v_and_b32 v{VLANE16}, 63, v0")
    A(f"v_lshlrev_b32 v{VLANE16}, 4, v{VLANE16}")
    A(f"v_readfirstlane_b32 s{S_WAVE}, v1")
    cnts = opt.get('cnts', [52, 52, 52, 52, 52, 53])
    assert sum(cnts) == NT and len(cnts) == NSPLIT
    st = [sum(cnts[:i]) for i in range(NSPLIT)] + [NT - 1]
    pk = sum(x << (9 * i) for i, x in enumerate(st))
    A(f"s_mov_b32 s50, 0x{pk & 0xffffffff:x}")
    A(f"s_mov_b32 s51, 0x{pk >> 32:x}")
    A(f"s_mul_i32 s39, s37, 9")
    A(f"s_lshr_b64 s[50:51], s[50:51], s39")
    A(f"s_and_b32 s39, s50, 0x1ff")
    A(f"s_bfe_u32 s49, s50, 0x90009")
    A(f"s_sub_u32 s{S_CNT}, s49, s39")
    TT = opt.get('trun', 0)
    A(f"s_sub_u32 s{S_CNT}, s{S_CNT}, {TT or 2}")
    A(f"s_lshl_b32 s39, s39, 14")
    A(f"s_lshl_b32 s49, s49, 14")
    A(f"s_add_u32 s{S_OFF}, s39, 0x4000")
    A(f"s_cmp_eq_u32 s37, {NSPLIT-1}")
    A(f"s_addc_u32 s{S_CNT}, s{S_CNT}, 0")
    A(f"s_cmp_eq_u32 s37, {NSPLIT-1}")
    A(f"s_cselect_b32 s{S_OFF}, s39, s{S_OFF}")
    A(f"s_cselect_b32 s39, {(NT-1)*16384}, s39")
    A(f"s_cselect_b32 s49, {N*512}, s49")
    A(f"s_cselect_b32 s{S_MASK}, 0xff800000, 0")
    A(f"s_mov_b32 s{S_THR}, 0x5d800000")
    A("v_and_b32 v2, 63, v0")
    A("v_bfe_u32 v3, v2, 3, 2")
    A("v_bfe_u32 v4, v2, 2, 1")
    A(f"v_lshlrev_b32 v{VDMA}, 12, v3")
    A(f"v_lshl_or_b32 v{VDMA}, v4, 9, v{VDMA}")
    A(f"v_lshl_or_b32 v{VDMA}, v1, 7, v{VDMA}")
    A("v_lshrrev_b32 v4, 5, v2")
    A(f"v_lshl_or_b32 v{VDMA}, v4, 6, v{VDMA}")
    A("v_and_b32 v3, 2, v3")
    A("v_and_b32 v4, 3, v2")
    A("v_xor_b32 v3, v3, v4")
    A(f"v_lshl_or_b32 v{VDMA}, v3, 4, v{VDMA}")
    if opt.get('light'):
        A("s_cmp_eq_u32 s38, 39")
        A("s_cbranch_scc1 LT_disp")
    A(f"s_lshl_b32 s{S_M0}, s{S_WAVE}, 12")
    A(f"s_lshl_b32 s50, s{S_WAVE}, 13")
    A(f"s_add_u32 s50, s50, 0x20000")
    A(f"s_mov_b32 m0, s{S_M0}")
    if opt.get('fuse'): gen_f.pre_wait(A, 96 if 0 else 94, 95)
    if MGK: gen_m.poll_addrs(A, S_OFF)
    A("s_waitcnt lgkmcnt(0)")
    if MGK: gen_m.poll_a(A, o)
    T(0)
    srd(o, SRD_K, H_OFF, 0)
    A(f"s_mov_b32 s{SRD_K+2}, s49")
    for k in range(4):
        A(f"buffer_load_dwordx4 v{VDMA}, s[{SRD_K}:{SRD_K+3}], s39 offen offset:{k*1024}{opt.get('dl','')} lds")
    A(f"s_add_u32 m0, s{S_M0}, 0x4000")
    srd(o, SRD_Q, QF_OFF, QF_BYTES)
    for k in range(2):
        A(f"buffer_load_dwordx4 v{VDMA}, s[{SRD_K}:{SRD_K+3}], s{S_OFF} offen offset:{k*1024}{opt.get('dl','')} lds")
    A(f"s_mul_i32 s35, s37, 0x{OP_STRIDE:x}")
    srd(o, SRD_OP, OP_OFF, QF_BYTES, 35)
    srd(o, SRD_ML, ML_OFF, NB16 * (2048 if opt.get('fuse') else 1024))
    A(f"s_lshl_b32 s35, s38, 4")
    A(f"s_lshl_b32 s41, s{S_WAVE}, 2")
    A(f"s_add_u32 s35, s35, s41")
    A(f"s_lshl_b32 s40, s35, 13")
    if opt.get('fuse'):
        A("s_lshl_b32 s94, s94, 13")
        A("s_add_u32 s40, s40, s94")
    for qb in range(1, 4):
        A(f"s_{'xor_b32' if opt.get('fuse') else 'add_u32'} s{40+qb}, s40, {qb*8192}")
    for qb in range(4):
        A(f"s_add_u32 s{44+qb}, s{40+qb}, 4096")
    A(f"s_lshl_b32 s48, s35, 10")
    A(f"s_lshl_b32 s35, s37, 3")
    A(f"s_add_u32 s48, s48, s35")
    prologue2(o, opt, T)
    if MGK: gen_m.poll_b_check(A)
    A("s_nop 1")
    if opt.get('timing'):
        A("s_memtime s[66:67]")
        A("s_waitcnt lgkmcnt(0)")
    sites = {}
    n = 0
    for kind in ('loop', 'tail2'):
        for p in (0, 1):
            sites[(kind, p)] = (n, n + 1)
            n += 2
    rares = []; alls = list(range(4 if TT else n))
    A(".p2align 6")
    A("L2_loop:")
    o += body(0, 'loop', sites[('loop', 0)], opt).text()
    A("s_cbranch_scc1 L2_tail_1")
    o += body(1, 'loop', sites[('loop', 1)], opt).text()
    A("s_cbranch_scc0 L2_loop")
    for p in (0, 1):
        A(f"L2_tail_{p}:")
        if opt.get('timing'):
            A("s_memtime s[68:69]")
            A("s_waitcnt lgkmcnt(0)")
        if TT:
            tl, rr, ss = tail_run(p, TT, len(alls), opt)
            o += tl; rares += rr; alls += ss
        else:
            o += body(p, 'tail2', sites[('tail2', p)], opt).text()
            A("s_nop 1")
            T(8)
            o += epilogue(body(1 - p, 'tail1', None, opt), opt)
        T(9)
        A("s_branch L2_F" if opt.get('fuse') else "s_branch L2_fin")
    if opt.get('fuse'):
        A("L2_F:")
        nfs = [0]
        def fstamp(A_):
            if opt.get('timing') and opt.get('ft') and nfs[0] < 7:
                A_(f"s_memtime s[{74+2*nfs[0]}:{75+2*nfs[0]}]"); nfs[0] += 1
        fo, fspin = gen_f.final(opt, fstamp)
        o += fo
        if opt.get('ftwice'):
            A("s_barrier\ns_xor_b32 s31, s31, 1\ns_cbranch_scc1 L2_F")
        A("s_branch L2_fin")
        o += fspin
        if MGK: o += gen_m.poll_b_spin()
        A("L2_Fend:")
    if opt.get('valu', 1):
        for p in (0, 1):
            for h in (0, 1):
                o += rare_code(p, h, [sites[('loop', p)][h]] + ([] if TT else [sites[('tail2', p)][h]]))
        o += rares
        o += rare_common(alls)
    import gen_eg
    if opt.get('light'):
        A("LT_disp:")
        A(f"s_cmp_eq_u32 s{S_WAVE}, 0")
        A("s_cbranch_scc1 LT_start")
        A(f"s_mov_b32 s{gen_eg.S_W}, s{S_WAVE}")
        A(f"s_mul_i32 s{gen_eg.S_B}, s{S_WAVE}, 6")
        A(f"s_add_u32 s{gen_eg.S_B}, s{gen_eg.S_B}, s37")
        A(f"s_add_u32 s{gen_eg.S_B}, s{gen_eg.S_B}, 42")
        A(f"s_cmp_lt_u32 s{gen_eg.S_B}, {NBK}")
        A("s_cbranch_scc1 LE_common")
        A("s_branch L2_end")
        light(o, opt, TT)
    gen_eg.gen_edge(o, opt)
    A("L2_fin:")
    if opt.get('timing'):
        A("s_mov_b64 exec, -1")
        A("s_waitcnt vmcnt(0)")
        A("s_memtime s[70:71]")
        A("s_memrealtime s[72:73]")
        A("s_waitcnt lgkmcnt(0)")
        A("s_sub_u32 s66, s66, s62")
        A("s_sub_u32 s68, s68, s62")
        A("s_sub_u32 s70, s70, s62")
        for i in range(10):
            A(f"s_sub_u32 s{74+2*i}, s{74+2*i}, s62\nv_mov_b32 v{4+i}, s{74+2*i}")
        A("v_mov_b32 v14, s64\nv_mov_b32 v15, s72")
        A("s_sub_u32 s72, s72, s64")
        A("v_mov_b32 v0, s66\nv_mov_b32 v1, s68\nv_mov_b32 v2, s70\nv_mov_b32 v3, s72")
        A("s_add_u32 s60, s4, 0x%x\ns_addc_u32 s61, s5, 0" % TIM_OFF)
        A("v_mbcnt_lo_u32_b32 v248, -1, 0\nv_mbcnt_hi_u32_b32 v248, -1, v248\nv_lshlrev_b32 v248, 4, v248")
        A("s_mov_b32 s62, 0x100000\ns_mov_b32 s63, 0x00020000")
        A(f"s_lshl_b32 s35, s2, 2")
        A(f"s_add_u32 s35, s35, s{S_WAVE}")
        A(f"s_lshl_b32 s35, s35, 10")
        A(f"buffer_store_dwordx4 v[0:3], v{VLANE16}, s[60:63], s35 offen")
        A("s_add_u32 s35, s35, 0x200000\ns_mov_b32 s62, 0x800000")
        for k in range(3):
            A(f"buffer_store_dwordx4 v[{4+4*k}:{7+4*k}], v{VLANE16}, s[60:63], s35 offen")
            A("s_add_u32 s35, s35, 0x100000")
    A("L2_end:")
    return "\n".join(o)


def kernel_desc(opt=None):
    return dict(name="k2_kernel", body=gen_k2(opt), vgpr=512, accum=256, grid=256, block=256, lds=163840 if (opt or {}).get('trun', 0) > 3 or (opt or {}).get('light') else 131072)
```

```python
from layout import *
import gen_k1n, gen_f
from gen_f import FLAG_OFF, FS, P1F0, WFF0, EPOCH, S_TAG, SWS
S_IDX = 91
VPA, VPB, VPD = 5, 251, 252


def front(opt):
    k1 = opt['k1']
    S_W, S_ROLE, S_ROT = gen_k1n.S_W, gen_k1n.S_ROLE, gen_k1n.S_ROT
    o = []; A = o.append
    tagld = [f"s_mov_b32 s{S_TAG}, 0x{FLAG_OFF + EPOCH * FS:x}", f"s_load_dwordx2 {sr(S_TAG, 2)}, s[38:39], s{S_TAG}"]
    k1 = dict(k1, mg=tagld)
    A("s_getpc_b64 s[56:57]")
    A("s_load_dwordx16 s[16:31], s[0:1], 0")
    A("s_load_dwordx8 s[32:39], s[0:1], 64")
    if opt.get('timing'): A("s_memtime s[100:101]")
    A("s_cmp_ge_u32 s2, 256")
    A("s_cbranch_scc1 L2_end")
    A("v_lshrrev_b32 v1, 6, v0")
    A("v_and_b32 v2, 63, v0")
    A("s_lshr_b32 s3, s2, 3")
    A(f"v_readfirstlane_b32 s{S_W}, v1")
    A("s_lshl_b32 s5, s3, 2")
    A(f"s_add_u32 s5, s5, s{S_W}")
    if k1.get('cpf', 1):
        A("s_and_b32 s56, s56, 0xffffff00")
        A("s_mov_b32 s58, L2_end-k2_kernel")
        A("s_mov_b32 s59, 0x00020000")
        A(f"s_and_b32 s6, s5, {opt.get('cpm', 15)}")
        A("s_lshl_b32 s6, s6, 13")
        A("v_lshlrev_b32 v10, 7, v2")
        A("buffer_load_dword v255, v10, s[56:59], s6 offen")
    A("v_and_b32 v3, 15, v2")
    A("v_lshrrev_b32 v4, 4, v2")
    A(f"s_and_b32 s{S_ROT}, s3, 7")
    A("s_and_b32 s8, s2, 7")
    A("s_cmp_ge_u32 s3, 30")
    A("s_cbranch_scc1 LM_edge")
    if opt.get('map', 1) == 1:
        A("s_mul_i32 s13, s3, 52"); A("s_lshr_b32 s13, s13, 8"); A("s_mul_i32 s9, s13, 5"); A("s_sub_u32 s9, s3, s9")
        A("s_mul_i32 s12, s8, 5"); A("s_add_u32 s12, s12, s9")
    else:
        A("s_mul_i32 s12, s3, 26"); A("s_lshr_b32 s12, s12, 8"); A("s_mul_i32 s9, s12, 10"); A("s_sub_u32 s9, s3, s9")
        A("s_and_b32 s13, s8, 1"); A("s_mul_i32 s13, s13, 3"); A("s_add_u32 s13, s13, s12")
        A("s_lshr_b32 s12, s8, 1"); A("s_mul_i32 s12, s12, 10"); A("s_add_u32 s12, s12, s9")
    A(f"s_mul_i32 s{S_IDX}, s12, 6")
    A(f"s_add_u32 s{S_IDX}, s{S_IDX}, s13")
    A(f"s_mov_b32 s{S_ROLE}, 0")
    A("s_cmp_eq_u32 s12, 39")
    A("s_cbranch_scc1 LM_light")
    A("s_mul_i32 s14, s13, 3")
    A("s_min_u32 s14, s14, 14")
    A("s_lshl_b32 s9, s12, 4")
    A("s_add_u32 s14, s14, s9")
    A("s_lshl_b32 s14, s14, 13")
    A(f"s_cmp_eq_u32 s{S_IDX}, {38 * 6 + 5}")
    A("s_cselect_b32 s9, 0, s13")
    A("s_cmp_lt_u32 s9, 4")
    A("s_cselect_b32 s15, 3, 2")
    A("s_lshl_b32 s15, s15, 13")
    A("s_add_u32 s15, s15, s14")
    o += gen_k1n.gemm_prog('q', k1)
    A("L1_fin:")
    A(f"s_add_u32 s{S_IDX}, s{S_IDX}, {P1F0}")
    A("s_waitcnt lgkmcnt(0)")
    A(f"s_add_u32 s{S_TAG}, s{S_TAG}, 0x7f4a7c15")
    A(f"s_addc_u32 s{S_TAG+1}, s{S_TAG+1}, 0x9e3779b9")
    A("LM_pub:")
    srd_from(o, 40, 38, FLAG_OFF, gen_f.NFLAG * FS)
    A(f"s_lshl_b32 s6, s{S_IDX}, 7")
    A(f"s_cmp_eq_u32 s{S_W}, 0")
    A(f"s_cselect_b32 s6, s6, 0x{gen_f.OOB:x}")
    A("s_waitcnt vmcnt(0) lgkmcnt(0)")
    A("s_barrier")
    gen_f.publish(A, 40, 6, 6, opt)
    A(f"s_cmp_eq_u32 s{S_ROLE}, 0")
    A("s_cbranch_scc1 L2_entry")
    A(f"s_mov_b32 s{S_ROLE}, 0")
    A(f"s_sub_u32 s4, s{S_IDX}, {P1F0 + 240}")
    A(f"s_add_u32 s{S_IDX}, s4, {WFF0}")
    o += gen_k1n.gemm_prog('w', k1)
    A("s_branch LM_pub")
    A("LM_light:")
    A("s_waitcnt lgkmcnt(0)")
    o += tagld
    A("s_branch L1_fin")
    A("LM_edge:")
    A("s_sub_u32 s4, s3, 30")
    A("s_lshl_b32 s8, s8, 1")
    A("s_add_u32 s4, s4, s8")
    A(f"s_add_u32 s{S_IDX}, s4, 240")
    A("s_cmp_lt_u32 s4, 8")
    A(f"s_cselect_b32 s{S_ROLE}, 1, 0")
    o += gen_k1n.edge_prog(k1)
    A("s_branch L1_fin")
    A("L2_entry:")
    return o


def sel_lanes(A, v, t, L, srcs):
    A(f"v_mov_b32 v{v}, s{srcs[0]}")
    for k, r in enumerate(srcs[1:]):
        A(f"v_mov_b32 v{t}, s{r}")
        A(f"v_cmp_lt_u32 vcc, 0x{128 * (k + 1) - 1:x}, v{L}")
        A("s_nop 1")
        A(f"v_cndmask_b32 v{v}, v{v}, v{t}, vcc")


def poll_addrs(A, S_OFF):
    L = gen_f.VLANE16
    A("s_lshr_b32 s40, s39, 17"); A("s_min_u32 s40, s40, 38")
    A(f"s_lshr_b32 s41, s{S_OFF}, 17")
    A(f"s_add_u32 s3, s{S_OFF}, 0x4000"); A("s_lshr_b32 s3, s3, 17")
    sel_lanes(A, VPA, 6, L, [38, 40, 41, 3])
    A(f"v_bfe_u32 v6, v{L}, 4, 3")
    A("v_min_u32 v6, 5, v6")
    A(f"v_mad_u32_u24 v{VPA}, v{VPA}, 6, v6")
    A(f"v_lshlrev_b32 v{VPA}, 7, v{VPA}")
    A(f"v_add_u32 v{VPA}, 0x{FLAG_OFF + P1F0 * FS:x}, v{VPA}")
    A("s_min_u32 s40, s40, s41"); A("s_mul_i32 s40, s40, 6")
    A("s_sub_u32 s3, s49, 1"); A("s_lshr_b32 s3, s3, 17"); A("s_min_u32 s3, s3, 38"); A("s_mul_i32 s3, s3, 6"); A("s_add_u32 s3, s3, 5")
    A(f"v_lshrrev_b32 v{VPB}, 4, v{L}")
    A(f"v_add_u32 v{VPB}, s40, v{VPB}")
    A(f"v_min_u32 v{VPB}, s3, v{VPB}")
    A(f"v_lshlrev_b32 v{VPB}, 7, v{VPB}")
    A(f"v_add_u32 v{VPB}, 0x{FLAG_OFF + P1F0 * FS:x}, v{VPB}")


def poll_a(A, o):
    srd_from(o, SWS, 4, 0, 256 << 20)
    gen_f.spin(A, "LM_pa", [f"buffer_load_dwordx2 v[6:7], v{VPA}, {sr(SWS)}, 0 offen sc1"], [6], 42)


def poll_b_load(): return f"buffer_load_dwordx2 {vr(VPD, 2)}, v{VPB}, {sr(SWS)}, 0 offen sc1"


def poll_b_check(A):
    A(f"v_cmp_ne_u64 vcc, {sr(S_TAG, 2)}, {vr(VPD, 2)}")
    A("s_nop 1")
    A("s_cbranch_vccnz LM_pb")
    A("LM_pb_ret:")


def poll_b_spin():
    o = ["LM_pb:"]
    gen_f.spin(o.append, "LM_pb2", [poll_b_load()], [VPD], 3)
    return o + ["s_branch LM_pb_ret"]
```

```python
import sys, os
here = os.path.dirname(os.path.abspath(__file__))
sys.path.insert(0, here)
import gen, hazard
DEFAULTS = {"k1": {"st": " sc1", "code_end": "L3_end", "late": 1, "npre": 2, "rc": 3, "nopk": 2}, "k2": {"fuse": 1, "forder": "h2", "f1t": -1, "eg": [34, 145, -4], "segs": [[154, 24], [169, 24], [141, 16]], "cs": [0, 1, 1, 3], "fst": " sc1", "wt": 7, "race": [40, 53, 51, 53, 52], "mg": 1, "sp0": 1, "npq": 5, "map": 2, "sper": 2, "st": " sc1", "gdma": [52, 53, 57, 61, 65], "new": 32, "light": 1, "trun": 5, "half": 1, "mle": 3, "ccap": [3, 3, 3, 2, 2, 2, 2, 2], "cnts": [52, 52, 52, 52, 53, 52]}, "k3": {"map": 1, "d": 6, "order": "m3", "nopk": 1}}
def kernels(opt=None):
    opt0 = opt or {}
    opt = {k: dict(v, **(opt0.get(k) or {})) for k, v in DEFAULTS.items()}
    if opt0.get('old') or opt0.get('emu1'): opt['k2']['new'] = 16
    if opt0.get('old'):
        del opt['k2']['gdma']
        import gen_k1, gen_k2, gen_k3
        return [gen_k1.kernel_desc(opt['k1']), gen_k2.kernel_desc(opt['k2']), gen_k3.kernel_desc(opt['k3'])]
    import gen_k2n, layout
    layout.SEGS[0] = opt['k2'].get('segs', [(157, 64)])
    ks = []
    if opt['k2'].get('fuse'):
        opt0 = dict(opt0, nok3=1); opt['k1']['fuse'] = 1; opt['k2'].setdefault('ste', ' sc1')
        if 'fstr' in opt['k2']: opt['k1']['fstr'] = opt['k2']['fstr']
    if opt0.get('nok3'): opt['k1']['code_end'] = 'L2_end'
    if opt['k2'].get('mg'):
        opt['k2']['k1'] = dict(opt['k1'], nw=4, new=16, ste=' sc1', timing=0); opt['k2']['new'] = 16
        return [gen_k2n.kernel_desc(opt['k2'])]
    if opt0.get('emu1'):
        import gen_k1; ks.append(gen_k1.kernel_desc(opt['k1']))
    else:
        import gen_k1n; ks.append(gen_k1n.kernel_desc(opt['k1']))
    ks.append(gen_k2n.kernel_desc(opt['k2']))
    if not opt0.get('nok3'):
        import importlib; ks.append(importlib.import_module(opt0.get('k3mod', 'gen_k3n')).kernel_desc(opt['k3']))
    for k, o in zip(ks, (opt['k1'], opt['k2'], opt['k3'])):
        if o.get('align'):
            import align; k['body'] = align.run(k['body'], *o['align'])
    return ks
if __name__ == "__main__":
    import json
    opt = json.loads(sys.argv[2]) if len(sys.argv) > 2 else {}
    ks = kernels(opt)
    for k in ks:
        e = hazard.check(k['body'], k['name'])
        assert not e, "\n".join(e)
    out = sys.argv[1] if len(sys.argv) > 1 else os.path.join(here, "..", "standalone__hybrid_graph_tf_graphgps__graph.s")
    open(out, "w").write(gen.build_file(ks, rt=opt.get('rt', 0), plain=len(ks) == 1 and opt.get('plain', 1)))
    print("wrote", out, os.path.getsize(out))
```

```python
import sys, os
sys.path.insert(0, os.path.dirname(os.path.abspath(__file__)))
from layout import *

HEADER = open(os.path.join(os.path.dirname(os.path.abspath(__file__)), "..", "standalone__hybrid_graph_tf_graphgps__graph.s.ref")).read().split("; Override launch geometry")[0]

RT_OFF = 240 << 20
def rt_wrap(body, kidx):
    pre = "s_memrealtime s[92:93]\n"
    post = f"""
s_mov_b64 exec, -1
s_waitcnt vmcnt(0) lgkmcnt(0)
s_memrealtime s[94:95]
s_load_dwordx2 s[96:97], s[0:1], 88
s_waitcnt lgkmcnt(0)
s_add_u32 s96, s96, 0x{RT_OFF + kidx * 65536:x}
s_addc_u32 s97, s97, 0
s_mov_b32 s98, 0x10000
s_mov_b32 s99, 0x00020000
s_not_b32 s94, s94
s_lshl_b32 s93, s2, 6
v_mov_b32 v0, s92
v_mov_b32 v1, s94
v_mov_b32 v2, 0
s_getreg_b32 s95, hwreg(HW_REG_XCC_ID)
v_mov_b32 v3, s95
s_mov_b64 exec, 1
buffer_atomic_umin v0, v2, s[96:99], s93 offen
buffer_atomic_umin v1, v2, s[96:99], s93 offen offset:4
buffer_atomic_umin v3, v2, s[96:99], s93 offen offset:8
s_waitcnt vmcnt(0)
"""
    return pre + body + post

def dbg_wrap(body):
    post = """
s_mov_b64 exec, -1
s_waitcnt vmcnt(0) lgkmcnt(0)
s_memrealtime s[94:95]
s_load_dwordx2 s[96:97], s[0:1], 80
s_waitcnt lgkmcnt(0)
s_mov_b32 s98, 256
s_mov_b32 s99, 0x00020000
s_not_b32 s92, s92
s_getreg_b32 s93, hwreg(HW_REG_XCC_ID)
s_and_b32 s93, s93, 7
s_and_b32 s95, s2, 7
s_lshl_b32 s95, s95, 2
v_mov_b32 v3, s93
s_lshl_b32 s93, s93, 2
v_mov_b32 v0, s92
v_mov_b32 v1, s94
v_mov_b32 v2, 0
v_add_u32 v3, 1, v3
s_mov_b64 exec, 1
buffer_atomic_umax v0, v2, s[96:99], 0 offen
buffer_atomic_umax v1, v2, s[96:99], 0 offen offset:4
buffer_atomic_umax v1, v2, s[96:99], s93 offen offset:8
s_cmp_lt_u32 s2, 4
s_cbranch_scc0 LD_skip
buffer_atomic_umax v3, v2, s[96:99], s95 offen offset:40
LD_skip:
s_waitcnt vmcnt(0)
"""
    return "s_memrealtime s[92:93]\n" + body + post

def kernel_text(name, body, vgpr, accum, sgpr=102):
    code = f""".globl {name}
.p2align 8
.type {name},@function
{name}:
{body}
s_endpgm
"""
    desc = f""".p2align 6
.amdhsa_kernel {name}
  .amdhsa_next_free_vgpr {vgpr}
  .amdhsa_next_free_sgpr {sgpr}
  .amdhsa_accum_offset {accum}
  .amdhsa_group_segment_fixed_size 0
  .amdhsa_kernarg_size 96
  .amdhsa_user_sgpr_count 2
  .amdhsa_user_sgpr_kernarg_segment_ptr 1
  .amdhsa_system_sgpr_workgroup_id_x 1
.end_amdhsa_kernel
"""
    return code, desc

def build_file(kernels, rt=False, plain=False):
    s = HEADER
    if plain:
        k = kernels[0]; nm = "standalone__hybrid_graph_tf_graphgps__graph_kernel"
        kernels = [dict(k, name=nm, body=k['body'].replace(k['name'], nm))]
    for k in kernels:
        s += f"; @launch {'' if plain else 'kernel=' + k['name'] + ' '}grid=({k['grid']},1,1) block=({k['block']},1,1) lds={k['lds']}\n"
    s += '.amdgcn_target "amdgcn-amd-amdhsa--gfx950"\n.text\n'
    descs = []
    for ki, k in enumerate(kernels):
        c, d = kernel_text(k['name'], dbg_wrap(k['body']) if rt == 2 else rt_wrap(k['body'], ki) if rt else k['body'], k['vgpr'], k['accum'])
        s += c
        descs.append(d)
    s += '.section .rodata,"a"\n' + "".join(descs)
    return s
```

```python
from layout import *
from sched import *
import hazard
import struct, math

K1_LDS = 163840
SRD_X, SRD_W1, SRD_W2, SRD_O, SRD_H = 40, 44, 48, 52, 56
S_W, S_ROLE, S_ROT, S_M0, S_XO = 60, 61, 62, 63, 64
SK1, SK2, SO, S_SC, S_EPS, S_R256, S_MASK = 66, 74, 82, 86, 88, 89, 90
VL16, VWQ, VWK, VTR, VK, VH, VQW, VQ, VHW = 16, 17, 21, 25, 29, 31, 33, 35, 36
MF32 = "v_mfma_f32_16x16x32_bf16"
DPP = " row_mask:0xf bank_mask:0x%x"


def ln_code(pre, NL, HP, LN0, VHW, opt, more, stamp, after=None):
    A = lambda t: pre.append(V(t))
    U = lambda j: LN0 + 8 * j
    SQ = LN0 + 8 * NL
    for j in range(NL):
        x, u, s = HP + 4 * j, U(j), SQ + 4 * j
        pre.append(W(('x', j)))
        if j == 0: pre += stamp()
        for k in range(4):
            A(f"v_lshlrev_b32 v{u+2*k}, 16, v{x+k}")
            A(f"v_and_b32 v{u+2*k+1}, s{S_MASK}, v{x+k}")
        if opt.get('nopk', 0) >= 3:
            A(f"v_add_f32 v{s}, v{u}, v{u+1}"); A(f"v_mul_f32 v{s+2}, v{u}, v{u}")
            A(f"v_add_f32 v{s+1}, v{u+2}, v{u+3}"); A(f"v_mul_f32 v{s+3}, v{u+1}, v{u+1}")
            for k in range(2, 8):
                if k >= 4: A(f"v_add_f32 v{s+(k&1)}, v{s+(k&1)}, v{u+k}")
                A(f"v_fmac_f32 v{s+2+(k&1)}, v{u+k}, v{u+k}")
            A(f"v_add_f32 v{s}, v{s}, v{s+1}"); A(f"v_add_f32 v{s+2}, v{s+2}, v{s+3}")
        else:
            A(f"v_pk_add_f32 {vr(s,2)}, {vr(u,2)}, {vr(u+2,2)}")
            A(f"v_pk_mul_f32 {vr(s+2,2)}, {vr(u,2)}, {vr(u,2)}")
            A(f"v_pk_add_f32 {vr(x,2)}, {vr(u+4,2)}, {vr(u+6,2)}")
            A(f"v_pk_fma_f32 {vr(s+2,2)}, {vr(u+2,2)}, {vr(u+2,2)}, {vr(s+2,2)}")
            A(f"v_pk_add_f32 {vr(s,2)}, {vr(s,2)}, {vr(x,2)}")
            A(f"v_pk_fma_f32 {vr(s+2,2)}, {vr(u+4,2)}, {vr(u+4,2)}, {vr(s+2,2)}")
            A(f"v_add_f32 v{s}, v{s}, v{s+1}")
            A(f"v_pk_fma_f32 {vr(s+2,2)}, {vr(u+6,2)}, {vr(u+6,2)}, {vr(s+2,2)}")
            A(f"v_add_f32 v{s+2}, v{s+2}, v{s+3}")
        more()
    for j in range(NL): A(f"v_permlane16_swap_b32 v{SQ+4*j}, v{SQ+4*j+2}")
    for j in range(NL): A(f"v_add_f32 v{SQ+4*j}, v{SQ+4*j}, v{SQ+4*j+2}")
    def merge(regs, mode, m0, m1, off):
        out = []
        for a in range(0, len(regs), 2):
            (ra, la) = regs[a]
            d = ra + off
            if a + 1 < len(regs):
                rb_, lb = regs[a + 1]
                A(f"v_add_f32_dpp v{d}, v{ra}, v{ra} {mode}" + DPP % m0)
                A(f"v_add_f32_dpp v{d}, v{rb_}, v{rb_} {mode}" + DPP % m1)
                sh = 8 if m1 == 0xc else 4
                out.append((d, {**la, **{k: v + sh for k, v in lb.items()}}))
            else:
                A(f"v_add_f32_dpp v{d}, v{ra}, v{ra} {mode}" + DPP % 0xf)
                out.append((d, la))
        return out
    regs = [(SQ + 4 * j, {j: 0}) for j in range(NL)]
    regs = merge(regs, "row_ror:8", 0x3, 0xc, 1)
    regs = merge(regs, "row_half_mirror", 0x5, 0xa, 1)
    for qp in ("[1,0,3,2]", "[2,3,0,1]"):
        for r, _ in regs: A(f"v_add_f32_dpp v{r}, v{r}, v{r} quad_perm:{qp}" + DPP % 0xf)
    for r, _ in regs: A(f"v_mov_b32 v{r+1}, v{r}")
    for r, _ in regs: A(f"v_permlane16_swap_b32 v{r+1}, v{r}")
    ops = lambda r: [f"v_mul_f32 v{r+1}, s{S_R256}, v{r+1}", f"v_mul_f32 v{r}, s{S_R256}, v{r}",
                     f"v_fma_f32 v{r}, -v{r+1}, v{r+1}, v{r}", f"v_cvt_pk_bf16_f32 v{r+1}, v{r+1}, v{r+1}", f"v_max_f32 v{r}, 0, v{r}",
                     f"v_cvt_pk_bf16_f32 v{r}, v{r}, v{r}", f"v_and_b32 v{r}, s{S_MASK}, v{r}", f"v_add_f32 v{r}, s{S_EPS}, v{r}",
                     f"v_cvt_pk_bf16_f32 v{r}, v{r}, v{r}", f"v_and_b32 v{r}, s{S_MASK}, v{r}", f"v_sqrt_f32 v{r}, v{r}",
                     f"v_and_b32 v{r+1}, s{S_MASK}, v{r+1}",
                     f"v_cvt_pk_bf16_f32 v{r}, v{r}, v{r}", f"v_and_b32 v{r}, s{S_MASK}, v{r}", f"v_rcp_f32 v{r}, v{r}",
                     f"v_mul_f32 v{r+1}, -v{r+1}, v{r}"]
    for tt in zip(*[ops(r) for r, _ in regs]):
        for t in tt: A(t)
    for r, lm in regs:
        for j, ln in lm.items():
            A(f"v_mov_b64_dpp {vr(SQ+4*j,2)}, {vr(r,2)} row_newbcast:{ln} row_mask:0xf bank_mask:0xf")
    for j in range(NL):
        x, u, s = HP + 4 * j, U(j), SQ + 4 * j
        for k in range(4):
            if opt.get('nopk', 0) >= 1:
                for z in range(2): A(f"v_fma_f32 v{u+2*k+z}, v{u+2*k+z}, v{s}, v{s+1}")
            else: A(f"v_pk_fma_f32 {vr(u+2*k,2)}, {vr(u+2*k,2)}, {vr(s,2)}, {vr(s,2)} op_sel:[0,0,1] op_sel_hi:[1,0,1]")
        for k in range(4):
            A(f"v_cvt_pk_bf16_f32 v{x+k}, v{u+2*k}, v{u+2*k+1}")
        pre.append(LD(f"ds_write_b128 v{VHW+j}, {vr(x)}", tag='hw'))
        if after: after(j)
        more()


def img_addrs(A, NL, RPW, HIMG, VHW, VH):
    A("v_bfe_u32 v5, v2, 2, 3")
    A(f"v_xor_b32 v5, s{S_ROT}, v5")
    A("v_and_b32 v6, 3, v2")
    A("v_lshlrev_b32 v7, 10, v5")
    A("v_lshl_add_u32 v7, v6, 8, v7")
    A(f"v_add_u32 v7, 0x{HIMG:x}, v7")
    A("v_and_b32 v5, 1, v5")
    A("v_lshl_or_b32 v6, v5, 2, v6")
    A("v_lshrrev_b32 v5, 5, v2")
    A(f"s_mul_i32 s6, s{S_W}, {RPW}")
    for j in range(NL):
        A(f"v_add3_u32 v8, v5, s6, {2*j}")
        A("v_lshrrev_b32 v9, 4, v8")
        A("v_lshl_add_u32 v9, v9, 13, v7")
        A("v_and_b32 v8, 15, v8")
        A("v_xor_b32 v8, v8, v6")
        A(f"v_lshl_add_u32 v{VHW+j}, v8, 4, v9")
    A("v_xor_b32 v5, v3, v4")
    A("v_lshlrev_b32 v5, 4, v5")
    A("v_lshl_add_u32 v5, v4, 8, v5")
    A(f"v_add_u32 v{VH}, 0x{HIMG:x}, v5")
    A(f"v_xor_b32 v{VH+1}, 64, v{VH}")

def gemm_prog(role, opt):
    NW = opt.get('nw', 8); NF = 16 // NW; CW = 16 * NF; NPC = NF; CH = NPC * 1024; RS = 32 * NF
    main = role == 'q'
    MGD = opt.get('mg')
    NRB = opt.get('nrb', 3) if main else 4
    RPW = 16 * NRB // NW; NL = RPW // 2
    IMG = NRB * 8192
    RC = (K1_LDS - (2 if main else 1) * IMG) // NW // CH
    RC = min(RC, opt.get('rc', 8))
    WSZ = RC * CH
    HIMG = NW * WSZ; QIMG = HIMG + IMG
    assert QIMG + (IMG if main else 0) <= K1_LDS
    stx = opt.get('st', '')
    p = VHW + NL; p = (p + 3) // 4 * 4
    HP = p; p += NL * 4
    ACC1 = p; p += NF * NRB * 4
    LN0 = p
    ACC2 = p; p += NF * NRB * 4 if main else 0
    RW, RB = opt.get('rw', 6 if NW == 8 else 10), opt.get('rb', 4 if NW == 8 else 3) * NRB
    WR = p; p += RW * 4
    BR = p; p += RB * 4
    assert p <= 255, p
    nst = [0]
    def stamp(kind=0):
        if not opt.get('timing') or kind != opt.get('skind', 0) or (kind and not main): return []
        nst[0] += 1
        assert nst[0] <= 8
        return [V(f"s_memtime s[{14+2*nst[0]}:{15+2*nst[0]}]", cost=0)]
    pre = []
    A = lambda t: pre.append(V(t))
    A(f"v_lshlrev_b32 v{VL16}, 4, v2")
    A(f"s_mul_i32 s{S_M0}, s{S_W}, {WSZ}")
    if main:
        A(f"s_mul_i32 s6, s4, {NRB*8192}" if not MGD else "s_mov_b32 s6, s14")
        A(f"s_mul_i32 s7, s{S_W}, {RPW*512}")
        A(f"s_add_u32 s{S_XO}, s6, s7")
        A(f"s_add_u32 s{S_XO+1}, s{S_XO}, 4096")
    else:
        A("s_and_b32 s6, s4, 3")
        A(f"s_lshl_b32 s6, s6, 6")
        A(f"s_mul_i32 s7, s{S_W}, {RPW}")
        A("s_add_u32 s6, s6, s7")
        A("v_lshrrev_b32 v5, 5, v2")
        A("v_and_b32 v6, 31, v2")
        A("v_lshlrev_b32 v6, 4, v6")
        A("s_cmp_ge_u32 s4, 4")
        A("s_cselect_b64 vcc, -1, 0")
        for j in range(NL):
            A(f"v_add3_u32 v7, v5, s6, {2*j}")
            A("v_and_b32 v8, 0x80, v7")
            A("v_bfe_u32 v9, v7, 2, 1"); A("v_lshl_or_b32 v8, v9, 6, v8")
            A("v_bfe_u32 v9, v7, 4, 1"); A("v_lshl_or_b32 v8, v9, 5, v8")
            A("v_and_b32 v9, 3, v7"); A("v_lshl_or_b32 v8, v9, 3, v8")
            A("v_bfe_u32 v9, v7, 5, 2"); A("v_lshl_or_b32 v8, v9, 1, v8")
            A("v_bfe_u32 v9, v7, 3, 1"); A("v_or_b32 v8, v9, v8")
            A("v_cndmask_b32 v8, v8, v7, vcc")
            A(f"v_lshl_add_u32 v{HP+4*j}, v8, 9, v6")
    A(f"s_lshl_b32 s7, s{S_W}, {(CW*2).bit_length()-1}")
    if NW == 4:
        A("v_lshrrev_b32 v5, 3, v2")
        A("v_and_b32 v6, 7, v2")
        A("v_and_b32 v7, 2, v5")
        A("v_xor_b32 v6, v6, v7")
        A("v_lshl_add_u32 v5, v5, 9, s7")
        A(f"v_lshl_add_u32 v{VWQ}, v6, 4, v5")
        A("v_xor_b32 v6, 4, v6")
        A(f"v_lshl_add_u32 v{VWQ+1}, v6, 4, v5")
        A(f"v_add_u32 v{VWQ+1}, 0xc00, v{VWQ+1}")
        A(f"v_add_u32 v{VWQ+2}, 0x1800, v{VWQ}")
        A(f"v_add_u32 v{VWQ+3}, 0x1800, v{VWQ+1}")
    else:
        A("v_lshrrev_b32 v5, 2, v2")
        A("v_and_b32 v6, 3, v2")
        A("v_lshrrev_b32 v7, 5, v2")
        A("v_lshlrev_b32 v7, 1, v7")
        A("v_xor_b32 v6, v6, v7")
        A("v_lshl_add_u32 v5, v5, 9, s7")
        A(f"v_lshl_add_u32 v{VWQ}, v6, 4, v5")
        A(f"v_add_u32 v{VWQ+1}, 0x1c00, v{VWQ}")
    for t in range(8):
        A(f"s_xor_b32 s6, s{S_ROT}, {t}")
        A(f"s_lshl_b32 s{SK1+t}, s6, 14")
    A("s_waitcnt lgkmcnt(0)")
    o = []
    if main:
        srd_from(o, SRD_X, 16, 0, N * 512 if not MGD else "s15"); srd_from(o, SRD_W1, 26, 0, 131072)
    else:
        o += ["s_cmp_ge_u32 s4, 4", "s_cselect_b32 s6, s30, s24", "s_cselect_b32 s7, s31, s25"]
        srd_from(o, SRD_X, 6, 0, 131072); srd_from(o, SRD_W1, 32, 0, 131072)
    for t in o: A(t)
    xso = lambda j: f"s{S_XO + j // 4} offen offset:{(j % 4) * 1024}"
    for j in range(NL):
        if main: pre.append(VM(f"buffer_load_dwordx4 {vr(HP+4*j)}, v{VL16}, {sr(SRD_X)}, {xso(j)}", tag=('x', j)))
        else: pre.append(VM(f"buffer_load_dwordx4 {vr(HP+4*j)}, v{HP+4*j}, {sr(SRD_X)}, 0 offen", tag=('x', j)))
    NCH = 16 if main else 8
    def dma(c, needs=()):
        srd, vw, so = (SRD_W1, VWQ, SK1 + c) if c < 8 else (SRD_W2, VWK, SK2 + c - 8)
        q = [V(f"s_add_u32 m0, s{S_M0}, 0x{(c % RC) * CH:x}", needs=needs), V("s_nop 0", cost=0)]
        for k in range(NPC):
            q.append(VM(f"buffer_load_dwordx4 v{vw+k}, {sr(srd)}, s{so} offen offset:{k*1024} lds", tag=('c', c) if k == NPC - 1 else None))
        return q
    NPRE = min(opt.get('npre', RC), RC)
    TCH = opt.get('touch', 0)
    if TCH and main:
        o = []; srd_from(o, SRD_W2, 28, 0, 131072)
        for t in o: A(t)
        A(f"s_sub_u32 s6, s5, {(opt.get('new', 32) + 8) // 8 * NW + 16}")
        A("s_lshl_b32 s7, s6, 13")
        A("s_cmp_lt_u32 s6, 16")
        A("s_cselect_b32 s7, s7, 0x7fff0000")
        pre.append(VM(f"buffer_load_dword v255, v10, {sr(SRD_W2)}, s7 offen"))
        if TCH > 1:
            A(f"s_sub_u32 s6, s6, 16")
            A("s_lshl_b32 s7, s6, 13")
            A("s_cmp_lt_u32 s6, 16")
            A("s_cselect_b32 s7, s7, 0x7fff0000")
            pre.append(VM(f"buffer_load_dword v255, v10, {sr(SRD_W1)}, s7 offen"))
    for c in range(NPRE): pre += dma(c)
    if MGD and main:
        for t in MGD: A(t)
    img_addrs(A, NL, RPW, HIMG, VHW, VH)
    A("v_lshrrev_b32 v5, 2, v3")
    A("v_and_b32 v6, 3, v3")
    A("v_and_b32 v7, 1, v4")
    if NW == 4:
        A("v_lshlrev_b32 v7, 2, v7"); A("v_and_b32 v8, 2, v5"); A("v_or_b32 v7, v7, v8")
    else:
        A("v_lshlrev_b32 v7, 1, v7")
    A("v_lshl_add_u32 v8, v4, 3, v5")
    A(f"v_lshlrev_b32 v8, {RS.bit_length()-1}, v8")
    A(f"v_add_u32 v8, s{S_M0}, v8")
    if main:
        A("v_and_b32 v9, 1, v6"); A("v_lshl_add_u32 v8, v9, 3, v8")
        A("v_lshrrev_b32 v6, 1, v6")
    A("v_xor_b32 v6, v6, v7")
    for f in range(NF):
        if main:
            A(f"v_xor_b32 v9, {2*f}, v6"); A(f"v_lshl_add_u32 v{VTR+f}, v9, 4, v8")
        elif f % 2 == 0:
            A(f"v_xor_b32 v9, {2*f}, v6"); A(f"v_lshl_add_u32 v{VTR+f}, v9, 4, v8")
        else:
            A(f"v_add_u32 v{VTR+f}, 8, v{VTR+f-1}")
    o = []
    if main:
        A("v_lshrrev_b32 v5, 3, v2")
        A("v_and_b32 v6, 7, v2")
        A("v_lshrrev_b32 v7, 1, v5")
        A("v_xor_b32 v6, v6, v7")
        A("v_and_b32 v7, 4, v5")
        A("v_add_u32 v5, v5, v7")
        A(f"s_mul_i32 s6, s{S_W}, {CW*512}")
        A("v_lshl_add_u32 v5, v5, 9, s6")
        A(f"v_lshl_add_u32 v{VWK}, v6, 4, v5")
        A("v_xor_b32 v6, 4, v6")
        A(f"v_lshl_add_u32 v{VWK+1}, v6, 4, v5")
        A(f"v_add_u32 v{VWK+1}, 0x{16*512-1024:x}, v{VWK+1}")
        if NW == 4:
            A(f"v_mov_b32 v{VWK+2}, v{VWK}")
            A(f"v_mov_b32 v{VWK+3}, v{VWK+1}")
        A(f"s_lshr_b32 s7, s{S_ROT}, 1")
        for tp in range(4):
            A(f"s_xor_b32 s6, s7, {tp}")
            A(f"s_lshl_b32 s{SK2+2*tp}, s6, 7")
            A(f"s_add_u32 s{SK2+2*tp+1}, s{SK2+2*tp}, {(4 if NW == 8 else 32)*512}")
        A(f"s_and_b32 s6, s{S_ROT}, 1"); A("s_lshl_b32 s6, s6, 2")
        A("v_lshrrev_b32 v5, 1, v3")
        A("v_xor_b32 v5, v5, v4")
        A("v_xor_b32 v5, s6, v5")
        A(f"v_lshl_add_u32 v6, v3, 7, s{S_M0}")
        A(f"v_lshl_add_u32 v{VK}, v5, 4, v6")
        A(f"v_xor_b32 v{VK+1}, 64, v{VK}")
        A(f"s_mul_i32 s6, s{S_W}, {NF//2}")
        A(f"s_xor_b32 s6, s6, s{S_ROT}")
        A("s_lshl_b32 s6, s6, 10")
        A(f"s_add_u32 s6, s6, 0x{QIMG:x}")
        A("v_lshrrev_b32 v5, 1, v4"); A("v_and_b32 v6, 1, v4")
        A("v_lshl_add_u32 v5, v5, 8, s6")
        A("v_lshl_add_u32 v5, v6, 3, v5")
        A(f"v_lshl_add_u32 v{VQW}, v3, 4, v5")
        A(f"v_xor_b32 v{VQW+1}, 0x400, v{VQW}")
        A(f"v_add_u32 v{VQ}, 0x{QIMG:x}, v{VL16}")
        srd_from(o, SRD_W2, 26 if opt.get('w2same') else 28, 0, 131072)
        srd_from(o, SRD_O, 38, QF_OFF, QF_BYTES if not MGD else "s15")
        srd_from(o, SRD_H, 38, H_OFF, NB16 * 8192 if not MGD else "s15")
        A(f"s_mul_i32 s6, s4, {NRB*8192}" if not MGD else "s_mov_b32 s6, s14")
        A(f"s_mul_i32 s7, s{S_W}, {NF//2*1024}")
        A(f"s_add_u32 s{SO}, s6, s7")
        for b in range(1, NRB): A(f"s_add_u32 s{SO+b}, s{SO}, {b*8192}")
        qs = struct.unpack('<I', struct.pack('<f', math.log2(math.e) / 16))[0]
        A(f"s_mov_b32 s{S_SC}, 0x{qs:x}"); A(f"s_mov_b32 s{S_SC+1}, 0x{qs:x}")
        A(f"s_mov_b32 s{S_EPS}, 0x3727c5ac"); A(f"s_mov_b32 s{S_R256}, 0x3b800000"); A(f"s_mov_b32 s{S_MASK}, 0xffff0000")
    else:
        srd_from(o, SRD_O, 38, WF_OFF, 262144)
        A("s_lshr_b32 s6, s4, 2"); A("s_lshl_b32 s6, s6, 17")
        A("s_and_b32 s7, s4, 3"); A("s_lshl_b32 s7, s7, 12")
        A("s_add_u32 s6, s6, s7")
        A(f"s_mul_i32 s7, s{S_W}, {NF//2*16384}")
        A(f"s_add_u32 s{SO}, s6, s7")
        A(f"s_add_u32 s{SO+1}, s{SO}, 16384")
    for t in o: A(t)
    pre += stamp()
    rest = [x for c in range(NPRE, min(RC, NCH)) for x in [dma(c)]]
    def more(force=False):
        if rest and (force or not opt.get('late')): pre.extend(rest.pop(0))
    if main:
        ln_code(pre, NL, HP, LN0, VHW, opt, more, stamp)
    else:
        for j in range(NL):
            pre.append(LD(f"ds_write_b128 v{VHW+j}, {vr(HP+4*j)}", tag='hw', needs=[('x', j)]))
    pre += stamp()
    while rest and opt.get('late', 0) < 2: more(True)
    st = Stream(); st.pre = pre
    wf, bf = [], []
    wreg = lambda k: WR + (k % RW) * 4
    breg = lambda k: BR + (k % RB) * 4
    def use(lst, k, n):
        lst[k].setdefault('first', n); lst[k]['last'] = n
    def mf(acc, wk, bk, first):
        a, b = (wreg(wk), breg(bk)) if main else (breg(bk), wreg(wk))
        n = st.mfma(f"{MF32} {vr(acc)}, {vr(a)}, {vr(b)}, {0 if first else vr(acc)}", needs=[('w', wk), ('b', bk)])
        use(wf, wk, n); use(bf, bk, n); return n
    acc1 = lambda f, rb: ACC1 + (f * NRB + rb) * 4
    acc2 = lambda f, rb: ACC2 + (rb * NF + f) * 4
    done1, done2 = {}, {}
    for t in range(8):
        sl = (t % RC) * CH
        b0 = len(bf)
        for rb in range(NRB):
            bf.append(dict(reads=[f"ds_read_b128 {vr(breg(b0+rb))}, v{VH + (t & 1)} offset:{rb*8192 + t*1024}"], ph=0))
        for f in range(NF):
            k = len(wf); r = wreg(k)
            wf.append(dict(reads=[f"ds_read_b64_tr_b16 v[{r+2*hh}:{r+2*hh+1}], v{VTR+f} offset:{sl + hh*4*RS}" for hh in range(2)], chunk=t))
            for rb in range(NRB): done1[(f, rb)] = mf(acc1(f, rb), k, b0 + rb, t == 0)
    n1 = st.n()
    if main:
        for tp in range(4):
            b0 = len(bf)
            for e in range(2):
                for rb in range(NRB):
                    bf.append(dict(reads=[f"ds_read_b128 {vr(breg(b0+e*NRB+rb))}, v{VQ} offset:{rb*8192 + (2*tp+e)*1024}"], ph=1))
            for bh in range(2):
                c = 8 + 2 * tp + bh; sl = (c % RC) * CH
                for bl in range(NF // 2):
                    b = bh * (NF // 2) + bl
                    for e in range(2):
                        k = len(wf)
                        wf.append(dict(reads=[f"ds_read_b128 {vr(wreg(k))}, v{VK+e} offset:{sl + bl*2048}"], chunk=c))
                        for rb in range(NRB): done2[(b, rb)] = mf(acc2(b, rb), k, b0 + e * NRB + rb, tp == 0 and e == 0)
    nm = st.n()
    LAG = opt.get('lag', 3); LA = opt.get('la', 2 * NRB)
    def place_w(lo, hi, g):
        for k in range(lo, hi):
            d = wf[k]
            g = max(g, d['first'] - LA - 1, wf[k - RW]['last'] if k >= RW else -1)
            for i, r in enumerate(d['reads']):
                st.put(g, LD(r, tag=('w', k) if i == len(d['reads']) - 1 else None, needs=[('c', d['chunk'])]))
            d['g'] = g
            if k % (2 * NF) == 0:
                for s in stamp(1): st.put(g, s)
        return g
    def place_b(lo, hi, g):
        for k in range(lo, hi):
            d = bf[k]
            g = max(g, d['first'] - LA - 1, bf[k - RB]['last'] if k >= RB else -1)
            st.put(g, LD(d['reads'][0], tag=('b', k)))
        return g
    nw1, nb1 = 8 * NF, 8 * NRB
    npw = min(opt.get('npw', NF), RW)
    place_w(0, npw, -1)
    st.put(-1, W('hw')); st.put(-1, V("s_barrier"))
    for s in stamp(): st.put(-1, s)
    place_b(0, nb1, -1)
    gg = -1
    while rest:
        for x in rest.pop(0): st.put(gg, x)
        gg += opt.get('lpace', 2)
    g = place_w(npw, nw1, -1)
    if main:
        items = sorted(done1.items(), key=lambda kv: kv[1])
        for (f, rb), n in items:
            a = acc1(f, rb)
            q = [V(f"v_cvt_pk_bf16_f32 v{a}, v{a}, v{a+1}"), V(f"v_cvt_pk_bf16_f32 v{a+1}, v{a+2}, v{a+3}"),
                 LD(f"ds_write_b64 v{VQW + (f >> 1)}, v[{a}:{a+1}] offset:{rb*8192 + (f & 1)*512}", tag='qw')]
            for x in q: st.put(min(n + LAG, n1 - 1), x)
        k = nw1
        while k < len(wf) and k < nw1 + opt.get('npw2', NF) and wf[k - RW]['last'] <= n1 - 1: k += 1
        place_w(nw1, k, max(g, n1 - 1))
        for s in stamp(): st.put(n1 - 1, s)
        st.put(n1 - 1, W('qw')); st.put(n1 - 1, V("s_barrier"))
        for s in stamp(): st.put(n1 - 1, s)
        place_b(nb1, len(bf), n1 - 1)
        place_w(k, len(wf), n1 - 1)
    lastw = {}
    for k, d in enumerate(wf): lastw[d['chunk']] = k
    gl = 0
    for c in range(RC, NCH):
        k = lastw[c - RC]
        gl = wf[k]['first']
        firstk = min(kk for kk, d in enumerate(wf) if d['chunk'] == c)
        assert gl < wf[firstk]['g'], (c, gl, wf[firstk]['g'])
        for x in dma(c, [('w', k)]): st.put(gl, x)
    if main:
        hs = [VM(f"buffer_store_dwordx4 {vr(HP+4*j)}, v{VL16}, {sr(SRD_H)}, {xso(j)}{stx}") for j in range(NL)]
        st.fill(hs, gl + 1)
        items = sorted(((max(done2[(2 * u, rb)], done2[(2 * u + 1, rb)]), u, rb) for u in range(NF // 2) for rb in range(NRB)))
        for n, u, rb in items:
            a = acc2(2 * u, rb)
            if n + LAG < nm - 1 or opt.get('nopk', 0) >= 2:
                q = [V(f"v_mul_f32 v{a+r}, s{S_SC}, v{a+r}") for r in range(8)]
            else:
                q = [V(f"v_pk_mul_f32 {vr(a+2*r,2)}, {vr(a+2*r,2)}, {sr(S_SC,2)}") for r in range(4)]
            q += [V(f"v_cvt_pk_bf16_f32 v{a+r}, v{a+2*r}, v{a+2*r+1}") for r in range(4)]
            q.append(VM(f"buffer_store_dwordx4 {vr(a)}, v{VL16}, {sr(SRD_O)}, s{SO+rb} offen offset:{u*1024}{opt.get('stq', stx)}"))
            for x in q: st.put(min(n + LAG, nm - 1), x)
    else:
        items = sorted((max(done1[(f, 2 * tl)], done1[(f, 2 * tl + 1)]), f, tl) for f in range(NF) for tl in range(2))
        for n, f, tl in items:
            a = acc1(f, 2 * tl)
            q = [V(f"v_cvt_pk_bf16_f32 v{a+r}, v{a+2*r}, v{a+2*r+1}") for r in range(4)]
            q.append(VM(f"buffer_store_dwordx4 {vr(a)}, v{VL16}, {sr(SRD_O)}, s{SO + (f >> 1)} offen offset:{tl*2048 + (f & 1)*1024}{opt.get('stw', stx)}"))
            for x in q: st.put(min(n + LAG, nm - 1), x)
    for s in stamp(): st.put(nm - 1, s)
    em = Emitter()
    o = hazard.fix(em.emit(st.seq()))
    if opt.get('verbose'): print(role, st.stats(), "regs", p, "RC", RC, "lines", len(o))
    return o


def edge_prog(opt):
    NW = opt.get('nw', 8); NEW = opt.get('new', 32); ECAP = 163840 // NEW; CAPB = 4096 // NEW
    NTH = 64 * NW
    NQ = E // NEW // 4
    NR = (NQ + NTH - 1) // NTH; LASTN = NQ - (NR - 1) * NTH
    o = []; A = o.append
    L_CNT = 65536
    D0, S0, B0, C0 = 16, 16 + 4 * NR, 16 + 8 * NR, 16 + 12 * NR
    SRD_D, SRD_S, SRD_E, SRD_C = 40, 44, 48, 52
    A(f"s_mul_i32 s6, s4, {NQ * 16}")
    A("v_lshlrev_b32 v5, 4, v0")
    A("v_lshlrev_b32 v6, 2, v2")
    A(f"v_add_u32 v6, 0x{L_CNT:x}, v6")
    A("v_mov_b32 v7, 0")
    A("ds_write_b32 v6, v7")
    for i in range(NR): A(f"s_mov_b32 s{66+i}, {i * NTH * 16}")
    A("s_waitcnt lgkmcnt(0)")
    srd_from(o, SRD_D, 20, 0, NQ * 16, 6)
    srd_from(o, SRD_S, 18, 0, NQ * 16, 6)
    for i in range(NR): A(f"buffer_load_dwordx4 {vr(D0+4*i)}, v5, {sr(SRD_D)}, s{66+i} offen")
    for i in range(NR): A(f"buffer_load_dwordx4 {vr(S0+4*i)}, v5, {sr(SRD_S)}, s{66+i} offen")
    for t in opt.get('mg') or []: A(t)
    srd_from(o, SRD_E, 38, EDGE_OFF, EDGE_BYTES)
    srd_from(o, SRD_C, 38, ECNT_OFF, NBK * NEW * 4)
    A(f"s_mov_b32 s9, {BMAGIC}")
    A(f"s_mov_b32 s10, {-BN & 0xffffffff}")
    A(f"s_mov_b32 s11, 0x{L_CNT:x}")
    A("v_mov_b32 v7, 1")
    A(f"v_cmp_gt_u32 vcc, 0x{LASTN:x}, v0")
    A("s_mov_b64 s[12:13], vcc")
    A("s_barrier")
    for i in range(NR):
        A(f"s_waitcnt vmcnt({2*NR-1-i})")
        if i == NR - 1: A("s_mov_b64 exec, s[12:13]")
        for k in range(4):
            d, b, c = D0 + 4 * i + k, B0 + 4 * i + k, C0 + 4 * i + k
            A(f"v_mul_u32_u24 v{b}, s9, v{d}")
            A(f"v_lshrrev_b32 v{b}, {BSHIFT}, v{b}")
            A(f"v_lshl_add_u32 v{c}, v{b}, 2, s11")
            A(f"ds_add_rtn_u32 v{c}, v{c}, v7")
            A(f"v_mad_i32_i24 v{d}, v{b}, s10, v{d}")
    A("s_mov_b64 exec, -1")
    for i in range(NR):
        A(f"s_waitcnt vmcnt({NR-1-i}) lgkmcnt({min(15, 4*(NR-1 if i == NR-1 else NR-2))})")
        if i == NR - 1: A("s_mov_b64 exec, s[12:13]")
        for k in range(4):
            d, s, b, c = D0 + 4 * i + k, S0 + 4 * i + k, B0 + 4 * i + k, C0 + 4 * i + k
            A(f"v_and_b32 v8, 0x{CAPB-1:x}, v{c}")
            A(f"v_lshl_or_b32 v{s}, v{d}, 18, v{s}")
            A(f"v_lshlrev_b32 v8, 2, v8")
            A(f"v_lshl_add_u32 v8, v{b}, {(CAPB*4).bit_length()-1}, v8")
            A(f"ds_write_b32 v8, v{s}")
    A("s_mov_b64 exec, -1")
    A("s_waitcnt lgkmcnt(0)")
    A("s_barrier")
    NC = 64 * CAPB * 4 // (NTH * 16)
    BPI = 1024 // (CAPB * 4)
    R0 = C0 + 4 * NR
    if opt.get('fuse') and not opt.get('mg'):
        import gen_f
        FS = gen_f.fstr(opt); assert NEW * 64 == gen_f.NFLAG
        srd_from(o, SRD_D, 38, gen_f.FLAG_OFF, gen_f.NFLAG * FS)
        A(f"v_mul_u32_u24 v13, {FS}, v2" if FS <= 64 else f"v_lshlrev_b32 v13, {FS.bit_length()-1}, v2")
        A("v_mov_b32 v14, 0"); A("v_mov_b32 v15, 0")
        A(f"s_mul_i32 s6, s4, {64 * FS}")
        A(f"s_cmp_eq_u32 s{S_W}, 1")
        A("s_cselect_b32 s6, s6, 0x7fff0000")
        A(f"buffer_store_dwordx2 v[14:15], v13, {sr(SRD_D)}, s6 offen sc1")
    A("ds_read_b32 v8, v6")
    A(f"s_mul_i32 s6, s{S_W}, {NC*1024}")
    A("v_lshlrev_b32 v10, 4, v2")
    A("v_add_u32 v9, s6, v10")
    for k in range(NC): A(f"ds_read_b128 {vr(R0+4*k)}, v9 offset:{k*1024}")
    if BPI > 1:
        assert BPI == 2
        A("v_lshrrev_b32 v11, 5, v2")
        A(f"v_mul_u32_u24 v11, 0x{NEW*ECAP*4 - 512:x}, v11")
        A("v_add_u32 v10, v10, v11")
    A(f"s_mul_i32 s6, s{S_W}, {NC*BPI*NEW*ECAP*4}")
    A(f"s_mul_i32 s7, s4, {ECAP*4}")
    A("s_add_u32 s6, s6, s7")
    A(f"v_lshlrev_b32 v9, {(NEW*4).bit_length()-1}, v2")
    A("s_lshl_b32 s8, s4, 2")
    A(f"s_cmp_eq_u32 s{S_W}, 0")
    A("s_cselect_b32 s8, s8, 0x7fff0000")
    A(f"s_waitcnt lgkmcnt({min(15, NC)})")
    A(f"buffer_store_dword v8, v9, {sr(SRD_C)}, s8 offen{opt.get('ste', '')}")
    A(f"v_cmp_lt_u32 vcc, 0x{CAPB:x}, v8")
    A("s_cbranch_vccnz L1_eslow")
    for k in range(NC):
        A(f"s_waitcnt lgkmcnt({min(15, NC-1-k)})")
        A(f"buffer_store_dwordx4 {vr(R0+4*k)}, v10, {sr(SRD_E)}, s6 offen{opt.get('ste', '')}")
        A(f"s_add_u32 s6, s6, {BPI*NEW*ECAP*4}")
    A("s_branch L1_fin")
    A("L1_eslow:")
    A(f"s_mov_b32 s9, {NEW*ECAP*4}")
    for i in range(NR):
        for k in range(4):
            b, c = B0 + 4 * i + k, C0 + 4 * i + k
            A(f"v_mul_u32_u24 v{b}, s9, v{b}")
            A(f"v_lshl_add_u32 v{b}, v{c}, 2, v{b}")
    for i in range(NR):
        if i == NR - 1: A("s_mov_b64 exec, s[12:13]")
        for k in range(4):
            A(f"buffer_store_dword v{S0 + 4 * i + k}, v{B0 + 4 * i + k}, {sr(SRD_E)}, s7 offen{opt.get('ste', '')}")
    A("s_mov_b64 exec, -1")
    return hazard.fix(o)


def gen_k1(opt=None):
    opt = opt or {}
    NW = opt.get('nw', 8); NRB = opt.get('nrb', 3); NEW = opt.get('new', 32)
    NMAIN = (NB16 + NRB - 1) // NRB
    o = []
    A = o.append
    A("s_getpc_b64 s[56:57]")
    A("s_load_dwordx16 s[16:31], s[0:1], 0")
    A("s_load_dwordx8 s[32:39], s[0:1], 64")
    if opt.get('timing'):
        A("s_memtime s[100:101]")
    A(f"s_cmp_ge_u32 s2, {opt.get('nact', NMAIN) + NEW + 8}")
    A("s_cbranch_scc1 L1_end")
    A("v_lshrrev_b32 v1, 6, v0")
    A("v_and_b32 v2, 63, v0")
    A("s_lshr_b32 s3, s2, 3")
    A(f"v_readfirstlane_b32 s{S_W}, v1")
    A(f"s_mul_i32 s5, s3, {NW}")
    A(f"s_add_u32 s5, s5, s{S_W}")
    if opt.get('cpf', 1):
        A("s_and_b32 s56, s56, 0xffffff00")
        A(f"s_mov_b32 s58, {opt.get('code_end', 'L1_end')}-k1_kernel")
        A("s_mov_b32 s59, 0x00020000")
        A("s_and_b32 s6, s5, 15")
        A("s_lshl_b32 s6, s6, 13")
        A("v_lshlrev_b32 v10, 7, v2")
        A("buffer_load_dword v255, v10, s[56:59], s6 offen")
    A("v_and_b32 v3, 15, v2")
    A("v_lshrrev_b32 v4, 4, v2")
    A(f"s_and_b32 s{S_ROT}, s3, {opt.get('rotm', 7)}")
    A(f"s_sub_u32 s4, s2, {NEW + 8}")
    A(f"s_cmp_lt_u32 s2, {NEW + 8}")
    A("s_cbranch_scc1 L1_notq")
    A(f"s_mov_b32 s{S_ROLE}, 0")
    o += gemm_prog('q', opt)
    A("s_branch L1_fin")
    A("L1_notq:")
    A(f"s_sub_u32 s4, s2, {NEW}")
    A(f"s_cmp_lt_u32 s2, {NEW}")
    A("s_cbranch_scc1 L1_edge")
    A(f"s_mov_b32 s{S_ROLE}, 1")
    o += gemm_prog('w', opt)
    A("s_branch L1_fin")
    A("L1_edge:")
    A(f"s_mov_b32 s{S_ROLE}, 4")
    A("s_mov_b32 s4, s2")
    o += edge_prog(opt)
    A("L1_fin:")
    if opt.get('timing'):
        A("s_memtime s[4:5]")
        A("s_waitcnt vmcnt(0)")
        A("s_memtime s[6:7]")
        A("s_waitcnt lgkmcnt(0)")
        for k in range(8):
            A(f"v_writelane_b32 v0, s{16+2*k}, {k}")
        A("v_writelane_b32 v0, s4, 8")
        A("v_writelane_b32 v0, s6, 9")
        A(f"v_subrev_u32 v0, s100, v0")
        A(f"v_writelane_b32 v0, s{S_ROLE}, 63")
        srd_from(o, 4, 34, 0, 1 << 20)
        A(f"s_mul_i32 s8, s2, {NW}")
        A(f"s_add_u32 s8, s8, s{S_W}")
        A(f"s_lshl_b32 s8, s8, 8")
        A(f"v_mbcnt_lo_u32_b32 v1, -1, 0")
        A(f"v_mbcnt_hi_u32_b32 v1, -1, v1")
        A(f"v_lshlrev_b32 v1, 2, v1")
        A(f"buffer_store_dword v0, v1, s[4:7], s8 offen")
    A("L1_end:")
    return "\n".join(o)


def kernel_desc(opt=None):
    opt = opt or {}
    NW = opt.get('nw', 8); NRB = opt.get('nrb', 3); NEW = opt.get('new', 32)
    return dict(name="k1_kernel", body=gen_k1(opt), vgpr=256, accum=256, grid=(NB16 + NRB - 1) // NRB + NEW + 8, block=64 * NW, lds=K1_LDS)

if __name__ == "__main__":
    import sys, json
    t = gen_k1(dict(json.loads(sys.argv[1]) if len(sys.argv) > 1 else {}, verbose=1))
    e = hazard.check(t, "k1")
    print("\n".join(e[:30])); print(len(e), "hazards;", len(t.split("\n")), "lines")
    open('k1n.s', 'w').write(t)
```

```python
from layout import *

def Q(qb, ds): return (qb * 8 + ds) * 4
S_BASE = [128, 144]
def S(h, qb): return S_BASE[h] + qb * 4
P_BASE = [160, 176]
def P(p, qb): return P_BASE[p] + qb * 4
def NEGM(qb): return 192 + qb * 4
RING = 4
def F(i): return 208 + (i % RING) * 4
LA = [224 + i for i in range(4)]
LB = [228 + i for i in range(4)]
ET = [232 + i for i in range(8)]
VK = 240
VTR = [249, 250]
VDMA = 241
VT0, VT1 = 242, 243
M = [244 + i for i in range(4)]
VLANE16 = 248
KB = [VK, 251, 252]
VSP = 253
RD = 254
def O(fb, qb): return (fb * 4 + qb) * 4

SRD_Q, SRD_K, SRD_OP, SRD_ML = 8, 12, 20, 24
S_OFF, S_M0, S_CNT, S_THR, S_MASK, S_WAVE, S_SITE = 28, 30, 31, 32, 33, 34, 36
S_PH, S_STEP, S_NW, S_NL, S_RO = 100, 101, 39, 35, 49
STEP = ['0x4000']


def vr(b, n=4): return f"v[{b}:{b+n-1}]"
def ar(b, n=4): return f"a[{b}:{b+n-1}]"


class Seg:
    def __init__(self):
        self.mf = []
        self.gap = []
        self.pre = []

    def add_mfma(self, t):
        self.mf.append(t)
        self.gap.append([])

    def used(self, g):
        return sum(c for c, _ in self.gap[g])

    def put(self, g, text, cost=1):
        if g < 0:
            self.pre.append((cost, text))
        else:
            self.gap[g].append((cost, text))

    def fill(self, queue, g0, g1, cap=2):
        g = g0
        for cost, text in queue:
            while g < g1 and self.used(g) + cost > cap:
                g += 1
            self.gap[g].append((cost, text))
        return g

    def text(self):
        o = [t for _, t in self.pre]
        for m, gp in zip(self.mf, self.gap):
            o.append(m)
            o += [t for _, t in gp]
        return o


def foff(kb, c): return (c >> 1) * 4096 + kb * 2048 + (c & 1) * 512

def kread(off):
    return [lambda f: f"ds_read_b128 {vr(f)}, v{VK} offset:{off}"]

def vread(off, fb):
    return [lambda f, kb=kb: f"ds_read_b64_tr_b16 v[{f+2*kb}:{f+2*kb+1}], v{VTR[fb & 1]} offset:{off + foff(kb, fb >> 1)}" for kb in range(2)]


def qk_block(h, off, cinit):
    fr = []
    for ds in range(8):
        ms = []
        for qb in range(4):
            c = cinit(qb) if ds == 0 else vr(S(h, qb))
            ms.append(lambda f, qb=qb, ds=ds, c=c: f"v_mfma_f32_16x16x32_bf16 {vr(S(h,qb))}, {vr(f)}, {vr(Q(qb,ds))}, {c}")
        fr.append((kread(off + foff(h, ds)), ms))
    return fr


TR = [0]
def pvm(acc, f, pp):
    a, b = (pp, f) if TR[0] else (f, pp)
    return f"v_mfma_f32_16x16x32_bf16 {ar(acc)}, {vr(a)}, {vr(b)}, {ar(acc)}"


def pv_block(p, off, fb0):
    fr = []
    for fb in range(fb0, fb0 + 8):
        ms = []
        for qb in range(4):
            ms.append(lambda f, qb=qb, fb=fb: pvm(O(fb, qb), f, P(p, qb)))
        fr.append((vread(off, fb), ms))
    return fr


def build_seg(frags, next_reads):
    sg = Seg()
    n = len(frags)
    assert n % RING == 0
    rds = [r for r, _ in frags] + list(next_reads)
    for i, (_, ms) in enumerate(frags):
        for m in ms:
            sg.add_mfma(m(F(i)))
    issued = []
    for i in range(RING): issued += [i] * len(rds[i])
    def wait(g, i):
        last = max(k for k, x in enumerate(issued) if x == i)
        assert issued.count(i) == len(rds[i])
        sg.put(g, f"s_waitcnt lgkmcnt({len(issued) - 1 - last})")
    wait(-1, 0)
    for i in range(n):
        g = 4 * i + 3
        nxt = i + RING
        late = []
        if nxt < len(rds):
            r = rds[nxt]
            now = r[:1] if i + 1 < n else r
            late = r[len(now):]
            for x in now:
                sg.put(g, x(F(nxt))); issued.append(nxt)
        if i + 1 < n: wait(g, i + 1)
        for x in late:
            sg.put(g + 1, x(F(nxt))); issued.append(nxt)
    return sg


def softmax_queue(h, pn, site):
    lin, lout = (LA, LB) if h == 0 else (LB, LA)
    if callable(pn):
        pf = pn; P = lambda _, qb: pf(qb)
    else:
        P = globals()['P']
    q = []
    for qb in range(4):
        e = ET[(qb % 2) * 4:(qb % 2) * 4 + 4]
        s = S(h, qb)
        q.append((2, f"v_exp_f32 v{e[0]}, v{s}"))
        q.append((2, f"v_exp_f32 v{e[1]}, v{s+1}"))
        q.append((2, f"v_exp_f32 v{e[2]}, v{s+2}"))
        q.append((1, f"v_add_f32 v{lout[qb]}, v{lin[qb]}, v{e[0]}"))
        q.append((1, f"v_cvt_pk_bf16_f32 v{P(pn,qb)+2*h}, v{e[0]}, v{e[1]}"))
        q.append((2, f"v_exp_f32 v{e[3]}, v{s+3}"))
        q.append((1, f"v_add_f32 v{lout[qb]}, v{lout[qb]}, v{e[1]}"))
        q.append((1, f"v_add_f32 v{lout[qb]}, v{lout[qb]}, v{e[2]}"))
        q.append((1, f"v_add_f32 v{lout[qb]}, v{lout[qb]}, v{e[3]}"))
        q.append((1, f"v_cvt_pk_bf16_f32 v{P(pn,qb)+2*h+1}, v{e[2]}, v{e[3]}"))
    q.append((1, f"v_max3_f32 v{VT0}, v{lout[0]}, v{lout[1]}, v{lout[2]}"))
    q.append((1, f"v_max_f32 v{VT0}, v{VT0}, v{lout[3]}"))
    q.append((1, f"v_cmp_lt_f32 vcc, s{S_THR}, v{VT0}"))
    q.append((1, f"s_cbranch_vccnz L2_rare_site{site}\nL2_ret{site}:"))
    return q


def body(p, kind, sites, opt):
    B = p * 16384
    Bn = (1 - p) * 16384
    negm = lambda qb: vr(NEGM(qb))
    fr = pv_block(p, B, 0)
    if kind != 'tail1':
        fr += qk_block(1, Bn, negm)
    fr += pv_block(p, B, 8)
    if kind == 'loop':
        fr += qk_block(0, B, negm)
    nxt = [vread(Bn, i) for i in range(RING)] if kind != 'tail1' else []
    sg = build_seg(fr, nxt)
    if kind == 'loop':
        gb = opt.get('gbar', 81)
        gd = opt.get('gdma', [0, 1, 2, 5, 6])
        if not opt.get('nobar'):
            sg.put(gb, "s_waitcnt vmcnt(%d)" % sum(1 for x in gd[1:] if x < gb))
            sg.put(gb, "s_barrier")
        assert all(x != gb for x in gd) and gb < 83
        sg.put(gd[0], f"s_mov_b32 m0, s{S_M0}")
        for k in range(4):
            sg.put(gd[k + 1], f"buffer_load_dwordx4 v{VDMA}, s[{SRD_K}:{SRD_K+3}], s{S_OFF} offen offset:{k*1024}{opt.get('dl','')} lds")
        sg.put(125, f"s_add_u32 s{S_OFF}, s{S_OFF}, {STEP[0]}")
        sg.put(125, f"s_add_u32 s{S_M0}, s{S_M0}, 0x4000")
        sg.put(122, f"s_sub_u32 s{S_CNT}, s{S_CNT}, 1")
        sg.put(126, f"s_and_b32 s{S_M0}, s{S_M0}, 0x1ffff")
        sg.put(126, f"s_cmp_eq_u32 s{S_CNT}, 0")
        if p == 0:
            sg.put(70, f"v_add_u32 v{VK}, 0x8000, v{VK}")
            sg.put(70, f"v_and_b32 v{VK}, 0x1ffff, v{VK}")
    if kind == 'tail2':
        sg.put(2, "s_waitcnt vmcnt(0)")
    if p == 1 and kind != 'tail1':
        g = 84 if kind == 'loop' else 81
        sg.put(g, f"v_add_u32 v{VTR[0]}, 0x8000, v{VTR[0]}")
        sg.put(g, f"v_and_b32 v{VTR[0]}, 0x1ffff, v{VTR[0]}")
        sg.put(g + 1, f"v_xor_b32 v{VTR[1]}, 32, v{VTR[0]}")
    if kind != 'tail1' and opt.get('valu', 1):
        def flt(q):
            if opt.get('nochk'): q = q[:-4] + [(0, q[-1][1].split("\n")[1])]
            if opt.get('noexp'): q = [(1, x.replace('v_exp_f32', 'v_mov_b32')) if 'v_exp' in x else (c, x) for c, x in q]
            return q
        g = sg.fill(flt(softmax_queue(0, 1 - p, sites[0])), opt.get('g0', 8), 71)
        if opt.get('verbose'): print(kind, p, "sm0 end", g)
        last = 124 if kind == 'loop' else len(sg.mf) - 1
        g = sg.fill(flt(softmax_queue(1, 1 - p, sites[1])), 72, last)
        if opt.get('verbose'): print(kind, p, "sm1 end", g, "over", [(i, sg.used(i)) for i in range(len(sg.mf)) if sg.used(i) > 2])
    return sg


def rare_code(p, h, sites, pt=None, live=None, spills=()):
    if pt is None:
        pt = lambda qb: P(1 - p, qb)
        live = [lambda qb: P(p, qb)]
    lin, lout = (LA, LB) if h == 0 else (LB, LA)
    o = []
    for st in sites:
        o.append(f"L2_rare_site{st}:")
        o.append(f"s_mov_b32 s{S_SITE}, {st}")
        o.append(f"s_branch L2_rare_{p}_{h}")
    o.append(f"L2_rare_{p}_{h}:")
    o.append("s_nop 15")
    o.append("s_nop 15")
    o.append("s_waitcnt lgkmcnt(0)")
    DL = ET[0:4]
    FF = ET[4:8]
    for qb in range(4):
        s = S(h, qb)
        d = DL[qb]
        o.append(f"v_log_f32 v{VT1}, v{lin[qb]}")
        o.append(f"v_max3_f32 v{d}, v{s}, v{s+1}, v{s+2}")
        o.append(f"v_max3_f32 v{d}, v{d}, v{s+3}, v{VT1}")
        o.append(f"v_mov_b32 v{VT1}, v{d}")
        o.append("s_nop 1")
        o.append(f"v_permlane32_swap_b32 v{d}, v{VT1}")
        o.append("s_nop 1")
        o.append(f"v_max_f32 v{d}, v{d}, v{VT1}")
        o.append(f"v_mov_b32 v{VT1}, v{d}")
        o.append("s_nop 1")
        o.append(f"v_permlane16_swap_b32 v{d}, v{VT1}")
        o.append("s_nop 1")
        o.append(f"v_max_f32 v{d}, v{d}, v{VT1}")
        o.append(f"v_ceil_f32 v{d}, v{d}")
        o.append(f"v_max_f32 v{d}, 0, v{d}")
        o.append(f"v_sub_f32 v{VT1}, 0, v{d}")
        o.append(f"v_exp_f32 v{FF[qb]}, v{VT1}")
        o.append("s_nop 1")
        o.append(f"v_mul_f32 v{lin[qb]}, v{lin[qb]}, v{FF[qb]}")
        o.append(f"v_add_f32 v{M[qb]}, v{M[qb]}, v{d}")
        for r in range(4):
            o.append(f"v_sub_f32 v{NEGM(qb)+r}, v{NEGM(qb)+r}, v{d}")
            o.append(f"v_sub_f32 v{S(0,qb)+r}, v{S(0,qb)+r}, v{d}")
            o.append(f"v_sub_f32 v{S(1,qb)+r}, v{S(1,qb)+r}, v{d}")
        regs = [f(qb) + r for f in live for r in range(4)] + ([] if h == 0 else [pt(qb) + r for r in range(2)])
        def scale(r):
            o.append(f"v_lshlrev_b32 v{VT0}, 16, v{r}")
            o.append(f"v_and_b32 v{VT1}, 0xffff0000, v{r}")
            o.append(f"v_mul_f32 v{VT0}, v{VT0}, v{FF[qb]}")
            o.append(f"v_mul_f32 v{VT1}, v{VT1}, v{FF[qb]}")
            o.append(f"v_cvt_pk_bf16_f32 v{r}, v{VT0}, v{VT1}")
        for r in regs: scale(r)
        for k in spills:
            for hh in range(2):
                off = k * 4096 + qb * 1024 + hh * 8
                o.append(f"ds_read_b64 v[{RD}:{RD+1}], v{VSP} offset:{off}")
                o.append("s_waitcnt lgkmcnt(0)")
                scale(RD); scale(RD + 1)
                o.append(f"ds_write_b64 v{VSP}, v[{RD}:{RD+1}] offset:{off}")
                o.append("s_waitcnt lgkmcnt(0)")
    for qb in range(4):
        s = S(h, qb)
        e = ET[0:4]
        for r in range(4):
            o.append(f"v_exp_f32 v{e[r]}, v{s+r}")
        o.append("s_nop 1")
        o.append(f"v_add_f32 v{lout[qb]}, v{lin[qb]}, v{e[0]}")
        for r in range(1, 4):
            o.append(f"v_add_f32 v{lout[qb]}, v{lout[qb]}, v{e[r]}")
        o.append(f"v_cvt_pk_bf16_f32 v{pt(qb)+2*h}, v{e[0]}, v{e[1]}")
        o.append(f"v_cvt_pk_bf16_f32 v{pt(qb)+2*h+1}, v{e[2]}, v{e[3]}")
    o.append("s_branch L2_rare_common")
    return o


def rare_common(all_sites):
    FF = ET[4:8]
    o = ["L2_rare_common:"]
    FT = [VT0, VT1, RD, RD + 1]
    for qb in range(4):
        if TR[0]:
            o.append(f"v_lshrrev_b32 v{ET[0]}, 4, v{VLANE16}")
            o.append(f"v_and_b32 v{ET[0]}, 0x30, v{ET[0]}")
            for r in range(4): o.append(f"ds_bpermute_b32 v{FT[r]}, v{ET[0]}, v{FF[qb]} offset:{4*r}")
            o.append("s_waitcnt lgkmcnt(0)")
        for fb in range(16):
            for r in range(4):
                a = O(fb, qb) + r
                t = ET[r]
                o.append(f"v_accvgpr_read_b32 v{t}, a{a}")
            for r in range(4):
                o.append(f"v_mul_f32 v{ET[r]}, v{ET[r]}, v{FT[r] if TR[0] else FF[qb]}")
            for r in range(4):
                o.append(f"v_accvgpr_write_b32 a{O(fb,qb)+r}, v{ET[r]}")
    o.append("s_nop 3")
    for st in all_sites[:-1]:
        o.append(f"s_cmp_eq_u32 s{S_SITE}, {st}")
        o.append(f"s_cbranch_scc1 L2_ret{st}")
    o.append(f"s_branch L2_ret{all_sites[-1]}")
    return o


def srd(o, d, off, nbytes, extra_sgpr=None):
    o.append(f"s_add_u32 s{d}, s4, 0x{off & 0xffffffff:x}")
    o.append(f"s_addc_u32 s{d+1}, s5, 0")
    if extra_sgpr is not None:
        o.append(f"s_add_u32 s{d}, s{d}, s{extra_sgpr}")
        o.append(f"s_addc_u32 s{d+1}, s{d+1}, 0")
    o.append(f"s_mov_b32 s{d+2}, 0x{nbytes:x}")
    o.append(f"s_mov_b32 s{d+3}, 0x00020000")


def epilogue(sg_tail, opt):
    conv = []
    for t in range(8):
        q = []
        for qb in range(4):
            st = (t * 4 + qb) * 4
            tmp = [128 + (qb % 2) * 8 + r for r in range(8)]
            for k in range(8):
                q.append((1, f"v_accvgpr_read_b32 v{tmp[k]}, a{O(2*t+k//4,qb)+k%4}"))
            for r in range(4):
                q.append((1, f"v_cvt_pk_bf16_f32 v{st+r}, v{tmp[2*r]}, v{tmp[2*r+1]}"))
            so = 40 + qb if t < 4 else 44 + qb
            q.append((1, f"buffer_store_dwordx4 {vr(st)}, v{VLANE16}, s[{SRD_OP}:{SRD_OP+3}], s{so} offen offset:{(t%4)*1024}{opt.get('st','')}"))
        conv.append(q)
    nm = len(sg_tail.mf)
    assert nm == 64
    for t in range(8):
        g0 = 8 * t + 12
        if g0 <= nm - 1:
            sg_tail.fill(conv[t], g0, min(g0 + 7, nm - 1), cap=7)
        else:
            sg_tail.put(nm - 1, "s_nop 7")
            for c, x in conv[t]:
                sg_tail.put(nm - 1, x, c)
    return sg_tail.text() + ml_store(opt)


def ml_store(opt):
    o = []
    for qb in range(4):
        l = LA[qb]
        o.append(f"v_mov_b32 v{VT1}, v{l}")
        o.append("s_nop 1")
        o.append(f"v_permlane32_swap_b32 v{l}, v{VT1}")
        o.append("s_nop 1")
        o.append(f"v_add_f32 v{l}, v{l}, v{VT1}")
        o.append(f"v_mov_b32 v{VT1}, v{l}")
        o.append("s_nop 1")
        o.append(f"v_permlane16_swap_b32 v{l}, v{VT1}")
        o.append("s_nop 1")
        o.append(f"v_add_f32 v{ET[2*qb+1]}, v{l}, v{VT1}")
        o.append(f"v_mov_b32 v{ET[2*qb]}, v{M[qb]}")
    o.append(f"v_lshlrev_b32 v{VT0}, 2, v{VLANE16}")
    o.append("s_mov_b64 exec, 0xffff")
    for qb in range(4):
        o.append(f"buffer_store_dwordx2 v[{ET[2*qb]}:{ET[2*qb+1]}], v{VT0}, s[{SRD_ML}:{SRD_ML+3}], s48 offen offset:{qb*1024}{opt.get('st','')}")
    return o


def tail_run(p, T, site0, opt):
    negm = lambda qb: vr(NEGM(qb))
    VB = [VTR, [Q(0, 3), Q(0, 3) + 1], [Q(0, 3) + 2, Q(0, 3) + 3]]
    nsp = max(T - 3, 0)
    def ploc(k, final=True):
        if k == T - 1: return lambda qb: Q(qb, 0)
        if k < nsp and final: return lambda qb, k=k: Q(qb, 1 + k)
        return lambda qb, k=k: P((p + k) & 1, qb)
    def kfr(k, h):
        i = (1 - p) + (k - 1)
        fr = []
        for ds in range(8):
            off = (i & 1) * 16384 + foff(h, ds)
            rd = [lambda f, off=off, i=i: f"ds_read_b128 {vr(f)}, v{KB[i >> 1]} offset:{off}"]
            ms = []
            for qb in range(4):
                c = negm(qb) if ds == 0 else vr(S(h, qb))
                ms.append(lambda f, qb=qb, ds=ds, c=c: f"v_mfma_f32_16x16x32_bf16 {vr(S(h,qb))}, {vr(f)}, {vr(Q(qb,ds))}, {c}")
            fr.append((rd, ms))
        return fr
    def vfr(k, fb, final=True):
        i = p + k
        rd = [lambda f, kb=kb: f"ds_read_b64_tr_b16 v[{f+2*kb}:{f+2*kb+1}], v{VB[i >> 1][fb & 1]} offset:{(i & 1) * 16384 + foff(kb, fb >> 1)}" for kb in range(2)]
        pl = ploc(k, final)
        ms = [lambda f, qb=qb: pvm(O(fb, qb), f, pl(qb)) for qb in range(4)]
        return (rd, ms)
    fr = [vfr(0, fb, False) for fb in range(4)]
    blocks = [(1, 1)] + [(k, h) for k in range(2, T) for h in range(2)]
    for k, h in blocks: fr += kfr(k, h)
    G = 4 * len(fr)
    lead = opt.get('lead', 44)
    order = []
    fb = 0
    while 4 * len(order) < lead or fb % 2:
        order += [(k, fb) for k in range(T - 1) if not (k == 0 and fb < 4)]
        fb += 1
    glast = G + 4 * len(order)
    order += [(T - 1, x) for x in range(fb)]
    for x in range(fb, 16):
        order += [(k, x) for k in range(T) if not (k == 0 and x < 4)]
    done = {}
    for i, (k, x) in enumerate(order): done[x] = G + 4 * i + 3
    fr += [vfr(k, x) for k, x in order]
    sg = build_seg(fr, [])
    nm = len(sg.mf)
    if opt.get('fuse'): import gen_f
    if opt.get('timing') and not opt.get('ft') and not opt.get('pt'):
        for i, gg in enumerate([30, 47, 111, G - 1, glast, (glast + nm) // 2, nm - 20]):
            sg.put(gg, f"s_memtime s[{74+2*i}:{75+2*i}]", 0)
    g = 0
    for k in range(3, T):
        sg.put(g, f"s_mov_b32 m0, s{S_M0}")
        for j in range(4):
            sg.put(g + 1 + j, f"buffer_load_dwordx4 v{VDMA}, s[{SRD_K}:{SRD_K+3}], s{S_OFF} offen offset:{j*1024}{opt.get('dl','')} lds ; TK{k}")
        if k + 1 < T:
            sg.put(g + 5, f"s_add_u32 s{S_OFF}, s{S_OFF}, {STEP[0]}\ns_add_u32 s{S_M0}, s{S_M0}, 0x4000\ns_and_b32 s{S_M0}, s{S_M0}, 0x1ffff", 2)
        g += 6
    for k in range(2, T):
        gb = 16 + 32 * (2 * k - 3) - 15
        sg.put(gb, f"WAIT TK{k}" if opt.get('fuse') and k > 2 else f"s_waitcnt vmcnt({4 * (T - 1 - k)})")
        sg.put(gb, "s_barrier")
    sg.put(1, f"v_add_u32 v{VSP}, s50, v{VLANE16}")
    for b in (1, 2):
        if 2 * b <= (1 - p) + (T - 2):
            sg.put(12 + b, f"v_add_u32 v{KB[b]}, 0x{0x8000*b:x}, v{VK}")
            sg.put(12 + b, f"v_and_b32 v{KB[b]}, 0x1ffff, v{KB[b]}")
    GL = G - 32
    for b in (1, 2):
        if 2 * b <= p + T - 1:
            sg.put(GL + 13 + b, f"v_add_u32 v{VB[b][0]}, 0x{0x8000*b:x}, v{VTR[0]}")
            sg.put(GL + 13 + b, f"v_and_b32 v{VB[b][0]}, 0x1ffff, v{VB[b][0]}")
            sg.put(GL + 16, f"v_xor_b32 v{VB[b][1]}, 32, v{VB[b][0]}")
    for k in range(nsp):
        gs = 16 if k == 0 else 16 + 32 * 2 * k
        for qb in range(4):
            sg.put(gs + qb, f"ds_write_b128 v{VSP}, {vr(ploc(k, False)(qb))} offset:{k*4096 + qb*1024}")
            sg.put(GL + 4 * (k + 2) + 1 + (qb & 1) + (qb >> 1) * 4, f"ds_read_b128 {vr(ploc(k)(qb))}, v{VSP} offset:{k*4096 + qb*1024}")
    rare = []
    sites = []
    sms = [(k, h) for k in range(1, T) for h in range(2)]
    cap = opt.get('tcap', 3)
    for i, (k, h) in enumerate(sms):
        st = site0 + i
        sites.append(st)
        g0 = 6 if i == 0 else 16 + 32 * i + (4 if i == len(sms) - 2 else 1)
        g1 = 16 + 32 * i + 31 if i < len(sms) - 1 else glast - 2
        q = softmax_queue(h, ploc(k, False), st)
        c = 2 if (i == 0 or i == len(sms) - 1) else cap
        ge = sg.fill(q[:-1], g0, g1, cap=c)
        sg.put(max(ge, g1 - 2) if i == len(sms) - 2 or i == 0 or (h == 0 and 1 <= k - 1 < nsp) else ge, q[-1][1])
        late = i >= len(sms) - 2
        live = [ploc(j, late) for j in range(k) if late or j >= nsp or (j > 0 and i < 2 * j)]
        spl = [j for j in range(nsp) if j < k and not late and not (j > 0 and i < 2 * j)]
        rare += rare_code(f"t{p}_{i}", h, [st], ploc(k, False), live, spl)
        if opt.get('verbose'): print("tail", p, "sm", k, h, "end", ge, "of", g1, "live", [f(0) for f in live], "spill", spl)
    if opt.get('fuse'):
        ge = sg.fill(gen_f.early1(p, opt), 12, 32, cap=3)
        eg = opt.get('eg', [34, 180, 236])
        for f, g0 in zip((gen_f.early_x, gen_f.early_hf, gen_f.early_h), eg):
            ge = sg.fill(f(p, opt), max(g0, ge), nm - 1, cap=opt.get('ecap', 3))
            if opt.get('verbose'): print("early end", ge)
    g = glast
    ccap = opt.get('ccap', 3)
    if opt.get('mle'):
        q = [(1, f"v_lshlrev_b32 v{VT0}, 2, v{VLANE16}")] if not opt.get('fuse') else [(1, x) for x in gen_f.ml_addr(VT0, VLANE16)]
        for f in ("v_mov_b32 v{e}, v{l}", "v_permlane32_swap_b32 v{l}, v{e}", "v_add_f32 v{l}, v{l}, v{e}", "v_mov_b32 v{e}, v{l}",
                  "v_permlane16_swap_b32 v{l}, v{e}", "v_add_f32 v{e1}, v{l}, v{e}", "v_mov_b32 v{e}, v{m}"):
            q += [(1, f.format(e=ET[2*qb], e1=ET[2*qb+1], l=LA[qb], m=M[qb])) for qb in range(4)]
        if opt.get('fuse'):
            z = ["s_mov_b32 exec_hi, 0"]
            for qb in range(4):
                if qb: z.append(f"s_lshr_b32 s3, s{40+qb}, 2")
                z.append(f"buffer_store_dwordx2 v[{ET[2*qb]}:{ET[2*qb+1]}], v{VT0}, s[{SRD_ML}:{SRD_ML+3}], s{3 if qb else 48} offen{opt.get('st','')}")
            q.append((3, "\n".join(z + ["s_mov_b32 exec_hi, -1"])))
        else: q.append((3, "\n".join(ml_store(opt)[-5:] + ["s_mov_b64 exec, -1"])))
        g = sg.fill(q, g, nm - 1, cap=opt['mle'])
    for t in range(8):
        q = []
        for qb in range(4):
            stg = Q(qb, 4 + t % 4)
            tmp = [128 + (qb % 4) * 8 + r for r in range(8)]
            for k in range(8):
                q.append((1, f"v_accvgpr_read_b32 v{tmp[k]}, a{O(2*t+k//4,qb)+k%4}"))
            for r in range(4):
                q.append((1, f"v_cvt_pk_bf16_f32 v{stg+r}, v{tmp[2*r]}, v{tmp[2*r+1]}"))
            so = 40 + qb if t < 4 else 44 + qb
            q.append((1, f"buffer_store_dwordx4 {vr(stg)}, v{VLANE16}, s[{SRD_OP}:{SRD_OP+3}], s{so} offen offset:{(t%4)*1024}{opt.get('st','')} ; ST{t}"))
        if opt.get('nost'): q = [x for x in q if 'store' not in x[1]]
        if opt.get('nocv'): q = [x for x in q if 'store' in x[1]]
        cc = ccap[t] if isinstance(ccap, list) else ccap
        px = opt.get('plainx', 4 * opt.get('plain', 8))
        q = [(c, x.replace(opt.get('st', ''), '') if (4 * t + i // 13 >= px if px >= 0 else 4 * t + i // 13 < -px) else x) for i, (c, x) in enumerate(q)]
        if opt.get('half'):
            qa = [x for i, x in enumerate(q) if i % 13 in (0, 1, 2, 3, 8, 9)]
            q = [x for i, x in enumerate(q) if i % 13 not in (0, 1, 2, 3, 8, 9)]
            g = sg.fill(qa, max(g, done[2*t] + 3), nm - 1, cap=cc)
        g0 = max(g, max(done[2*t], done[2*t+1]) + 3)
        if g0 > nm - 1:
            if not opt.get('half'): sg.put(nm - 1, "s_nop 7")
            g0 = nm - 1
        if opt.get('fuse'):
            i0 = [i for i, x in enumerate(q) if 'buffer_store' in x[1]][0]
            q.insert(i0 + 1, (1, f"ds_write_b128 v{VSP}, {vr(Q(0, 4 + t % 4))} offset:{t*1024}"))
        g = sg.fill(q, g0, nm - 1, cap=cc)
        if opt.get('verbose'): print("  conv", t, g0, g, "of", nm)
    if opt.get('fuse'):
        return gen_f.fix_waits(sg.text() + ["WAIT HLD"]), rare + gen_f.hl_spin(p), sites
    return sg.text() + ([] if opt.get('mle') else ml_store(opt)), rare, sites


def light(o, opt, TT):
    A = o.append
    LB0 = 0x16000
    KF = 32; VF = 96; OV = lambda fb: 160 + fb * 4 if fb < 8 else 0
    QL = lambda ds: ds * 4
    KFr = lambda h, ds: 32 + (h * 8 + ds) * 4
    VFr = lambda fb: 96 + fb * 4
    SL = [160, 164]; PL = 168; MM, LL, FF, T0, T1 = 172, 173, 174, 175, 176
    AK, AV0, AV1 = 177, 178, 179
    TM = 180
    MK = NEGM(0)
    S_N, S_SL, S_DS, S_T = 51, 52, 53, 54
    A("LT_start:")
    A("s_waitcnt lgkmcnt(0)")
    if opt.get('mg'):
        import gen_f; gen_f.poll_all(A, o, "LT_poll", SRD_K, 0)
    srd(o, SRD_K, H_OFF, 0)
    A(f"s_mov_b32 s{SRD_K+2}, s49")
    srd(o, SRD_Q, QF_OFF, QF_BYTES)
    A(f"s_mov_b32 s40, {39 * 16 * 8192}")
    A(f"s_mov_b32 s44, {39 * 16 * 8192 + 4096}")
    for ds in range(8):
        A(f"buffer_load_dwordx4 {vr(QL(ds))}, v{VLANE16}, s[{SRD_Q}:{SRD_Q+3}], s{40 if ds < 4 else 44} offen offset:{(ds%4)*1024}{opt.get('dl','')}")
    def dma(so):
        for w in range(4):
            A(f"s_add_u32 m0, s{S_DS}, {LB0 + w*4096}")
            A(f"s_add_u32 s{S_T}, s{so}, {w*128}")
            for k in range(4):
                A(f"buffer_load_dwordx4 v{VDMA}, s[{SRD_K}:{SRD_K+3}], s{S_T} offen offset:{k*1024}{opt.get('dl','')} lds")
        A(f"s_add_u32 s{S_DS}, s{S_DS}, 0x4000")
        A(f"s_and_b32 s{S_DS}, s{S_DS}, 0xffff")
    A(f"s_mov_b32 s{S_DS}, 0")
    dma(39)
    for i in range(2):
        dma(S_OFF)
        A(f"s_add_u32 s{S_OFF}, s{S_OFF}, 0x4000")
    A(f"s_mul_i32 s35, s37, 0x{OP_STRIDE:x}")
    srd(o, SRD_OP, OP_OFF, QF_BYTES, 35)
    srd(o, SRD_ML, ML_OFF, NB16 * (2048 if opt.get('fuse') else 1024))
    A(f"s_lshl_b32 s48, s37, 3")
    A(f"s_add_u32 s48, s48, {39 * 16 * 1024}")
    if opt.get('fuse'): A(f"s_mov_b32 s48, {39 * 16 * 2048}")
    lds_addrs(A)
    A(f"s_add_u32 s{S_N}, s{S_CNT}, {TT or 2}")
    A(f"s_mov_b32 s{S_SL}, {LB0}")
    A(f"v_mov_b32 v{MM}, 0xff800000")
    A(f"v_mov_b32 v{LL}, 0")
    for r in range(64): A(f"v_accvgpr_write_b32 a{r}, 0")
    A("LT_loop:")
    dma(S_OFF)
    A(f"s_add_u32 s{S_OFF}, s{S_OFF}, 0x4000")
    A(f"v_add_u32 v{AK}, s{S_SL}, v{VK}")
    A(f"v_add_u32 v{AV0}, s{S_SL}, v{VTR[0]}")
    A(f"v_add_u32 v{AV1}, s{S_SL}, v{VTR[1]}")
    A(f"s_add_u32 s{S_SL}, s{S_SL}, 0x4000")
    A(f"s_cmp_eq_u32 s{S_SL}, {LB0 + 0x10000}")
    A(f"s_cselect_b32 s{S_SL}, {LB0}, s{S_SL}")
    A("s_waitcnt vmcnt(48)")
    for ds in range(8):
        for h in range(2):
            A(f"ds_read_b128 {vr(KFr(h, ds))}, v{AK} offset:{foff(h, ds)}")
    for ds in range(8):
        A(f"s_waitcnt lgkmcnt({14 - 2*ds})")
        for h in range(2):
            A(f"v_mfma_f32_16x16x32_bf16 {vr(SL[h])}, {vr(KFr(h, ds))}, {vr(QL(ds))}, {vr(SL[h]) if ds else vr(MK)}")
    for fb in range(16):
        for kb in range(2):
            A(f"ds_read_b64_tr_b16 v[{VFr(fb)+2*kb}:{VFr(fb)+2*kb+1}], v{AV1 if fb & 1 else AV0} offset:{foff(kb, fb >> 1)}")
    for r in range(4): A(f"v_mov_b32 v{MK+r}, 0")
    A("s_nop 7")
    A(f"v_max3_f32 v{T0}, v{SL[0]}, v{SL[0]+1}, v{SL[0]+2}")
    A(f"v_max3_f32 v{T0}, v{T0}, v{SL[0]+3}, v{SL[1]}")
    A(f"v_max3_f32 v{T0}, v{T0}, v{SL[1]+1}, v{SL[1]+2}")
    A(f"v_max3_f32 v{T0}, v{T0}, v{SL[1]+3}, v{MM}")
    for sw in ("v_permlane32_swap_b32", "v_permlane16_swap_b32"):
        A(f"v_mov_b32 v{T1}, v{T0}")
        A("s_nop 1")
        A(f"{sw} v{T0}, v{T1}")
        A("s_nop 1")
        A(f"v_max_f32 v{T0}, v{T0}, v{T1}")
    if TR[0]: A(f"v_ceil_f32 v{T0}, v{T0}")
    A(f"v_sub_f32 v{FF}, v{MM}, v{T0}")
    A(f"v_exp_f32 v{FF}, v{FF}")
    A(f"v_mov_b32 v{MM}, v{T0}")
    for r in range(8): A(f"v_sub_f32 v{SL[0]+r}, v{SL[0]+r}, v{MM}")
    for r in range(8): A(f"v_exp_f32 v{SL[0]+r}, v{SL[0]+r}")
    A(f"v_mul_f32 v{LL}, v{LL}, v{FF}")
    for r in range(4): A(f"v_cvt_pk_bf16_f32 v{PL+r}, v{SL[0]+2*r}, v{SL[0]+2*r+1}")
    A(f"v_cmp_neq_f32 vcc, 1.0, v{FF}")
    for r in range(8): A(f"v_add_f32 v{LL}, v{LL}, v{SL[0]+r}")
    A("s_cbranch_vccz LT_nors")
    if TR[0]:
        A(f"v_lshrrev_b32 v{T1}, 4, v{VLANE16}")
        A(f"v_and_b32 v{T1}, 0x30, v{T1}")
        for r in range(4): A(f"ds_bpermute_b32 v{188+r}, v{T1}, v{FF} offset:{4*r}")
        A("s_waitcnt lgkmcnt(0)")
    for c in range(8):
        for r in range(8): A(f"v_accvgpr_read_b32 v{TM+r}, a{8*c+r}")
        for r in range(8): A(f"v_mul_f32 v{TM+r}, v{TM+r}, v{188 + r % 4 if TR[0] else FF}")
        for r in range(8): A(f"v_accvgpr_write_b32 a{8*c+r}, v{TM+r}")
    A("LT_nors:")
    A("s_waitcnt lgkmcnt(0)")
    A("s_nop 1")
    for fb in range(16):
        A(pvm(fb * 4, VFr(fb), PL))
    A(f"s_sub_u32 s{S_N}, s{S_N}, 1")
    A(f"s_cmp_lg_u32 s{S_N}, 0")
    A("s_cbranch_scc1 LT_loop")
    A("s_nop 15")
    for t in range(8):
        for r in range(8): A(f"v_accvgpr_read_b32 v{TM+r}, a{8*t+r}")
        for r in range(4): A(f"v_cvt_pk_bf16_f32 v{32+4*t+r}, v{TM+2*r}, v{TM+2*r+1}")
        A(f"buffer_store_dwordx4 {vr(32+4*t)}, v{VLANE16}, s[{SRD_OP}:{SRD_OP+3}], s{40 if t < 4 else 44} offen offset:{(t%4)*1024}{opt.get('st','')}")
    for sw in ("v_permlane32_swap_b32", "v_permlane16_swap_b32"):
        A(f"v_mov_b32 v{T1}, v{LL}")
        A("s_nop 1")
        A(f"{sw} v{LL}, v{T1}")
        A("s_nop 1")
        A(f"v_add_f32 v{LL}, v{LL}, v{T1}")
    A(f"v_lshlrev_b32 v{T0}, 2, v{VLANE16}")
    A("s_mov_b64 exec, 0xffff")
    if opt.get('fuse'):
        import gen_f
        A("s_mov_b64 exec, -1")
        for x in gen_f.ml_addr(T0, VLANE16): A(x)
        A("s_mov_b32 exec_hi, 0")
    A(f"buffer_store_dwordx2 v[{MM}:{LL}], v{T0}, s[{SRD_ML}:{SRD_ML+3}], s48 offen{opt.get('st','')}")
    if opt.get('fuse'):
        import gen_f
        srd(o, 16, gen_f.FLAG_OFF, gen_f.NFLAG * gen_f.fstr(opt))
        A(f"s_add_u32 s48, s37, {156 * 8}")
        A(f"s_mul_i32 s48, s48, {gen_f.fstr(opt)}")
    A("s_waitcnt vmcnt(0)")
    if opt.get('fuse'): gen_f.publish(A, 16, 48, T1, opt)
    A("s_branch L2_fin")


def lds_addrs(A):
    L = VLANE16
    A(f"v_bfe_u32 v{VK}, v{L}, 4, 3")
    A(f"v_lshlrev_b32 v{VK}, 6, v{VK}")
    A(f"v_bfe_u32 v{VT0}, v{L}, 7, 1")
    A(f"v_lshl_or_b32 v{VK}, v{VT0}, 10, v{VK}")
    A(f"v_bfe_u32 v{VT0}, v{L}, 8, 2")
    A(f"v_lshl_or_b32 v{VK}, v{VT0}, 4, v{VK}")
    A(f"v_bfe_u32 v{VT0}, v{L}, 6, 1")
    A(f"v_lshlrev_b32 v{VT0}, 5, v{VT0}")
    A(f"v_xor_b32 v{VK}, v{VK}, v{VT0}")
    A(f"v_and_b32 v{VTR[0]}, 0x1c0, v{L}")
    A(f"v_bfe_u32 v{VT0}, v{L}, 9, 1")
    A(f"v_lshl_or_b32 v{VTR[0]}, v{VT0}, 10, v{VTR[0]}")
    A(f"v_bfe_u32 v{VT0}, v{L}, 8, 1")
    A(f"v_lshl_or_b32 v{VTR[0]}, v{VT0}, 5, v{VTR[0]}")
    A(f"v_bfe_u32 v{VT0}, v{L}, 4, 2")
    A(f"v_lshl_or_b32 v{VTR[0]}, v{VT0}, 3, v{VTR[0]}")
    A(f"v_xor_b32 v{VTR[1]}, 32, v{VTR[0]}")
    A(f"v_bfe_i32 v{VT0}, v{L}, 8, 1")
    for r in range(4):
        A(f"v_and_b32 v{NEGM(0)+r}, s{S_MASK}, v{VT0}")


def prologue2(o, opt, T):
    A = o.append
    Z = ET[0]
    for r in range(4):
        A(f"v_mov_b32 v{Z+r}, 0")
    nvm = [6]
    qidx = {}
    zi = 0
    for ds in range(8):
        for qb in range(4):
            so = 40 + qb if ds < 4 else 44 + qb
            A(f"buffer_load_dwordx4 {vr(Q(qb,ds))}, v{VLANE16}, s[{SRD_Q}:{SRD_Q+3}], s{so} offen offset:{(ds%4)*1024}{opt.get('dl','')}")
            nvm[0] += 1
            qidx[(ds, qb)] = nvm[0]
            if qb % 2 == 1:
                A(f"v_mfma_f32_32x32x16_bf16 a[{16*zi}:{16*zi+15}], {vr(Z)}, {vr(Z)}, 0")
                zi += 1
    T(1)
    if opt.get('mg'):
        import gen_m; A(gen_m.poll_b_load()); nvm[0] += 1
    if opt.get('fuse'):
        import gen_f; gen_f.prologue(A, o, 95)
    if opt.get('race'):
        c, nw0, nl0, nw2, nl2 = opt['race']; rem = lambda n: n - opt['trun'] - c - 2
        assert nw0 + nl0 == 104 and nw2 + nl2 == 105 and min(rem(nl0), rem(nl2)) >= 1
        A("s_cmp_lt_u32 s37, 3"); A("s_cselect_b32 s3, 0, 3"); A("s_sub_u32 s3, s37, s3")
        A("s_cmp_eq_u32 s3, 2")
        A(f"s_cselect_b32 s{S_NW}, {rem(nw2)}, {rem(nw0)}")
        A(f"s_cselect_b32 s{S_NL}, {rem(nl2)}, {rem(nl0)}")
        A(f"s_lshl_b32 s{S_RO}, s38, 2"); A(f"s_add_u32 s{S_RO}, s{S_RO}, s3"); A(f"s_lshl_b32 s{S_RO}, s{S_RO}, 10")
        A(f"s_add_u32 s{S_RO}, s{S_RO}, 0x{gen_f.FLAG_OFF + 6 * gen_f.FS:x}")
    lds_addrs(A)
    items = []
    dm = lambda k: (1, f"buffer_load_dwordx4 v{VDMA}, s[{SRD_K}:{SRD_K+3}], s{S_OFF} offen offset:{k*1024}{opt.get('dl','')} lds")
    items += [dm(2), dm(3)]
    items.append((0, f"s_add_u32 s{S_OFF}, s{S_OFF}, {STEP[0]}\ns_add_u32 m0, s{S_M0}, 0x8000\ns_nop 0"))
    items += [dm(k) for k in range(4)]
    items.append((0, f"s_add_u32 s{S_OFF}, s{S_OFF}, {STEP[0]}\ns_add_u32 s{S_M0}, s{S_M0}, 0xc000"))
    spre = opt.get('spre', 0)
    while spre > 0:
        v, t = items.pop(0)
        A(t); nvm[0] += v; spre -= v
    T(2)
    A(f"s_waitcnt vmcnt({nvm[0]-6})")
    A("s_barrier")
    T(3)
    TB = P_BASE[1]
    dst = [S_BASE[0], S_BASE[1], TB]
    fr = []
    for ds in range(8):
        for b in range(3):
            ms = []
            for qb in range(4):
                d = vr(dst[b] + 4 * qb)
                c0 = vr(NEGM(0)) if b < 2 else '0'
                ms.append(lambda f, qb=qb, ds=ds, d=d, c0=c0: f"v_mfma_f32_16x16x32_bf16 {d}, {vr(f)}, {vr(Q(qb,ds))}, {d if ds else c0}")
            fr.append((kread((b >> 1) * 16384 + foff(b & 1, ds)), ms))
    for i in range(RING):
        A(fr[i][0][0](F(i)))
    sg = build_seg(fr, [])
    per = opt.get('sper', 3)
    for ds in range(8):
        g = 12 * ds - 1
        sg.put(g, f"s_waitcnt vmcnt({nvm[0]-qidx[(ds,3)]})")
        k = 0
        gg = g + 2
        while items and (k < per or ds == 7):
            v, t = items.pop(0)
            sg.put(min(gg, 95), t); nvm[0] += v; k += v; gg += 2
    o += sg.text()
    T(6)
    R4 = range(4)
    s0 = lambda qb: S(0, qb)
    s1 = lambda qb: S(1, qb)
    for qb in R4: A(f"v_max3_f32 v{M[qb]}, v{s0(qb)}, v{s0(qb)+1}, v{s0(qb)+2}")
    for qb in R4: A(f"v_max3_f32 v{M[qb]}, v{M[qb]}, v{s0(qb)+3}, v{s1(qb)}")
    for qb in R4: A(f"v_max3_f32 v{M[qb]}, v{M[qb]}, v{s1(qb)+1}, v{s1(qb)+2}")
    for qb in R4: A(f"v_max_f32 v{M[qb]}, v{M[qb]}, v{s1(qb)+3}")
    for sw in ("v_permlane32_swap_b32", "v_permlane16_swap_b32"):
        for qb in R4: A(f"v_mov_b32 v{ET[qb]}, v{M[qb]}")
        for qb in R4: A(f"{sw} v{M[qb]}, v{ET[qb]}")
        for qb in R4: A(f"v_max_f32 v{M[qb]}, v{M[qb]}, v{ET[qb]}")
    if TR[0]:
        for qb in R4: A(f"v_ceil_f32 v{M[qb]}, v{M[qb]}")
    for h in range(2):
        for qb in R4:
            for r in R4: A(f"v_sub_f32 v{S(h,qb)+r}, v{S(h,qb)+r}, v{M[qb]}")
            for r in R4: A(f"v_exp_f32 v{S(h,qb)+r}, v{S(h,qb)+r}")
            if h == 0:
                for r in R4: A(f"v_sub_f32 v{NEGM(qb)+r}, 0, v{M[qb]}")
        if h == 0:
            A("s_waitcnt vmcnt(4)")
            A("s_barrier")
            for i in range(RING):
                for x in vread(0, i): A(x(F(i)))
    T(7)
    for h in range(2):
        for qb in R4:
            s = S(h, qb)
            A(f"v_cvt_pk_bf16_f32 v{P(0,qb)+2*h}, v{s}, v{s+1}")
            A(f"v_cvt_pk_bf16_f32 v{P(0,qb)+2*h+1}, v{s+2}, v{s+3}")
    for qb in R4: A(f"v_add_f32 v{LA[qb]}, v{s0(qb)}, v{s0(qb)+1}")
    for qb in R4: A(f"v_add_f32 v{LB[qb]}, v{s0(qb)+2}, v{s0(qb)+3}")
    for r in R4:
        for qb in R4:
            t = LA if r % 2 == 0 else LB
            A(f"v_add_f32 v{t[qb]}, v{t[qb]}, v{s1(qb)+r}")
    for qb in R4: A(f"v_add_f32 v{LA[qb]}, v{LA[qb]}, v{LB[qb]}")
    for qb in R4:
        for r in R4: A(f"v_sub_f32 v{s0(qb)+r}, v{TB+4*qb+r}, v{M[qb]}")


def gen_k2(opt=None):
    opt = opt or {}
    TR[0] = opt.get('tr', opt.get('fuse', 0))
    o = []
    A = o.append
    MGK = opt.get('mg')
    if opt.get('fuse'):
        import gen_f
        gen_f.MG[0] = MGK
        if MGK:
            import gen_m
            opt = dict(opt, dl=' sc1'); o += gen_m.front(opt)
        else: A(f"s_mov_b64 s[{gen_f.S_TAG}:{gen_f.S_TAG+1}], 1")
    def T(i):
        if opt.get('timing') and not (opt.get('p1t') and 0 < i + 0 < 5 or opt.get('p1t') and i == 0): A(f"s_memtime s[{74+2*i}:{75+2*i}]")
        if opt.get('timing') and opt.get('p1t') and i == 0: A("s_memtime s[84:85]")
    A("s_load_dwordx2 s[4:5], s[0:1], %d" % KA_WS)
    if opt.get('fuse'):
        import gen_f
        A("s_load_dwordx2 s[60:61], s[0:1], %d" % KA_X)
        A("s_load_dwordx2 s[52:53], s[0:1], %d" % KA_DEG)
        A("s_load_dwordx2 s[56:57], s[0:1], %d" % KA_OUT)
    if opt.get('timing'):
        A("s_memtime s[62:63]" if not MGK else "s_mov_b64 s[62:63], s[100:101]")
        A("s_memrealtime s[64:65]")
        T(8)
    A("s_and_b32 s35, s2, 7")
    A("s_lshr_b32 s37, s2, 3")
    if opt.get('sp0'): A("s_add_u32 s37, s37, 30"); A("s_and_b32 s37, s37, 31")
    A("s_cmp_ge_u32 s37, 30")
    A("s_cbranch_scc1 LE_start")
    if opt.get('map', 1) == 1:
        A("s_mul_i32 s38, s37, 52")
        A("s_lshr_b32 s38, s38, 8")
        A("s_mul_i32 s39, s38, 5")
        A("s_sub_u32 s39, s37, s39")
        A("s_mov_b32 s37, s38")
        A("s_mul_i32 s38, s35, 5")
        A("s_add_u32 s38, s38, s39")
    else:
        A("s_mul_i32 s38, s37, 26")
        A("s_lshr_b32 s38, s38, 8")
        A("s_mul_i32 s39, s38, 10")
        A("s_sub_u32 s39, s37, s39")
        A("s_and_b32 s37, s35, 1")
        A("s_mul_i32 s37, s37, 3")
        A("s_add_u32 s37, s37, s38")
        A("s_lshr_b32 s38, s35, 1")
        A("s_mul_i32 s38, s38, 10")
        A("s_add_u32 s38, s38, s39")
    A("v_lshrrev_b32 v1, 6, v0")
    A(f"v_and_b32 v{VLANE16}, 63, v0")
    A(f"v_lshlrev_b32 v{VLANE16}, 4, v{VLANE16}")
    A(f"v_readfirstlane_b32 s{S_WAVE}, v1")
    cnts = opt.get('cnts', [52, 52, 52, 52, 52, 53])
    assert sum(cnts) == NT and len(cnts) == NSPLIT
    st = [sum(cnts[:i]) for i in range(NSPLIT)] + [NT - 1]
    pk = sum(x << (9 * i) for i, x in enumerate(st))
    A(f"s_mov_b32 s50, 0x{pk & 0xffffffff:x}")
    A(f"s_mov_b32 s51, 0x{pk >> 32:x}")
    A(f"s_mul_i32 s39, s37, 9")
    A(f"s_lshr_b64 s[50:51], s[50:51], s39")
    A(f"s_and_b32 s39, s50, 0x1ff")
    A(f"s_bfe_u32 s49, s50, 0x90009")
    A(f"s_sub_u32 s{S_CNT}, s49, s39")
    TT = opt.get('trun', 0)
    A(f"s_sub_u32 s{S_CNT}, s{S_CNT}, {TT or 2}")
    A(f"s_lshl_b32 s39, s39, 14")
    A(f"s_lshl_b32 s49, s49, 14")
    A(f"s_add_u32 s{S_OFF}, s39, 0x4000")
    A(f"s_cmp_eq_u32 s37, {NSPLIT-1}")
    A(f"s_addc_u32 s{S_CNT}, s{S_CNT}, 0")
    A(f"s_cmp_eq_u32 s37, {NSPLIT-1}")
    A(f"s_cselect_b32 s{S_OFF}, s39, s{S_OFF}")
    A(f"s_cselect_b32 s39, {(NT-1)*16384}, s39")
    A(f"s_cselect_b32 s49, {N*512}, s49")
    A(f"s_cselect_b32 s{S_MASK}, 0xff800000, 0")
    A(f"s_mov_b32 s{S_THR}, 0x5d800000")
    A("v_and_b32 v2, 63, v0")
    A("v_bfe_u32 v3, v2, 3, 2")
    A("v_bfe_u32 v4, v2, 2, 1")
    A(f"v_lshlrev_b32 v{VDMA}, 12, v3")
    A(f"v_lshl_or_b32 v{VDMA}, v4, 9, v{VDMA}")
    A(f"v_lshl_or_b32 v{VDMA}, v1, 7, v{VDMA}")
    A("v_lshrrev_b32 v4, 5, v2")
    A(f"v_lshl_or_b32 v{VDMA}, v4, 6, v{VDMA}")
    A("v_and_b32 v3, 2, v3")
    A("v_and_b32 v4, 3, v2")
    A("v_xor_b32 v3, v3, v4")
    A(f"v_lshl_or_b32 v{VDMA}, v3, 4, v{VDMA}")
    if opt.get('light'):
        A("s_cmp_eq_u32 s38, 39")
        A("s_cbranch_scc1 LT_disp")
    RC = opt.get('race')
    STEP[0] = f"s{S_STEP}" if RC else '0x4000'
    if RC:
        assert opt.get('map') == 2 and TT
        A("s_cmp_lt_u32 s37, 3")
        A(f"s_cselect_b32 s{S_STEP}, 0x4000, 0xffffc000" if 0 else f"s_cselect_b32 s{S_STEP}, 1, -1")
        A("s_cselect_b32 s39, 0, 103")
        A("s_cselect_b32 s3, 0, 3")
        A("s_sub_u32 s3, s37, s3")
        A("s_mul_i32 s3, s3, 104")
        A("s_add_u32 s39, s39, s3")
        A(f"s_cmp_eq_u32 s37, 5")
        A("s_addc_u32 s39, s39, 0")
        A(f"s_lshl_b32 s{S_STEP}, s{S_STEP}, 14")
        A("s_lshl_b32 s39, s39, 14")
        A(f"s_add_u32 s{S_OFF}, s39, s{S_STEP}")
        A(f"s_mov_b32 s49, {N*512}")
        A(f"s_mov_b32 s{S_CNT}, {RC[0]}")
        A(f"s_mov_b32 s{S_PH}, 3")
    A(f"s_lshl_b32 s{S_M0}, s{S_WAVE}, 12")
    A(f"s_lshl_b32 s50, s{S_WAVE}, 13")
    A(f"s_add_u32 s50, s50, 0x20000")
    A(f"s_mov_b32 m0, s{S_M0}")
    if opt.get('fuse'): gen_f.pre_wait(A, 96 if 0 else 94, 95)
    if MGK: gen_m.poll_addrs(A, S_OFF, opt.get('av'), STEP[0] if RC else None)
    A("s_waitcnt lgkmcnt(0)")
    if MGK: gen_m.poll_a(A, o)
    T(0)
    srd(o, SRD_K, H_OFF, 0)
    A(f"s_mov_b32 s{SRD_K+2}, s49")
    for k in range(4):
        A(f"buffer_load_dwordx4 v{VDMA}, s[{SRD_K}:{SRD_K+3}], s39 offen offset:{k*1024}{opt.get('dl','')} lds")
    A(f"s_add_u32 m0, s{S_M0}, 0x4000")
    srd(o, SRD_Q, QF_OFF, QF_BYTES)
    for k in range(2):
        A(f"buffer_load_dwordx4 v{VDMA}, s[{SRD_K}:{SRD_K+3}], s{S_OFF} offen offset:{k*1024}{opt.get('dl','')} lds")
    A(f"s_mul_i32 s35, s37, 0x{OP_STRIDE:x}")
    srd(o, SRD_OP, OP_OFF, QF_BYTES, 35)
    srd(o, SRD_ML, ML_OFF, NB16 * (2048 if opt.get('fuse') else 1024))
    A(f"s_lshl_b32 s35, s38, 4")
    A(f"s_lshl_b32 s41, s{S_WAVE}, 2")
    A(f"s_add_u32 s35, s35, s41")
    A(f"s_lshl_b32 s40, s35, 13")
    if opt.get('fuse'):
        A("s_lshl_b32 s94, s94, 13")
        A("s_add_u32 s40, s40, s94")
    for qb in range(1, 4):
        A(f"s_{'xor_b32' if opt.get('fuse') else 'add_u32'} s{40+qb}, s40, {qb*8192}")
    for qb in range(4):
        A(f"s_add_u32 s{44+qb}, s{40+qb}, 4096")
    A(f"s_lshl_b32 s48, s35, 10")
    A(f"s_lshl_b32 s35, s37, 3")
    A(f"s_add_u32 s48, s48, s35")
    prologue2(o, opt, T)
    if MGK: gen_m.poll_b_check(A)
    A("s_nop 1")
    if opt.get('timing'):
        A("s_memtime s[66:67]")
        A("s_waitcnt lgkmcnt(0)")
    sites = {}
    n = 0
    for kind in ('loop', 'tail2'):
        for p in (0, 1):
            sites[(kind, p)] = (n, n + 1)
            n += 2
    rares = []; alls = list(range(4 if TT else n))
    A(".p2align 6")
    A("L2_loop:")
    o += body(0, 'loop', sites[('loop', 0)], opt).text()
    A("s_cbranch_scc1 L2_x1" if RC else "s_cbranch_scc1 L2_tail_1")
    A("L2_loop1:")
    o += body(1, 'loop', sites[('loop', 1)], opt).text()
    A("s_cbranch_scc0 L2_loop")
    if RC:
        TG = gen_f.S_TAG
        A(f"s_cmp_eq_u32 s{S_PH}, 0"); A("s_cbranch_scc1 L2_tail_0"); A("s_mov_b32 s3, 0"); A("s_branch L2_ev")
        A("L2_x1:")
        A(f"s_cmp_eq_u32 s{S_PH}, 0"); A("s_cbranch_scc1 L2_tail_1"); A("s_mov_b32 s3, 1")
        A("L2_ev:")
        A(f"s_sub_u32 s{S_PH}, s{S_PH}, 1")
        A(f"s_mov_b32 s{S_CNT}, 1")
        A("v_mov_b32 v251, 0x20000")
        A(f"s_cmp_eq_u32 s{S_PH}, 0"); A("s_cbranch_scc1 L2_ev3")
        A(f"s_cmp_lg_u32 s{S_WAVE}, 0"); A("s_cbranch_scc1 L2_evr")
        A(f"s_cmp_eq_u32 s{S_PH}, 1"); A("s_cbranch_scc1 L2_ev2")
        A(f"v_mov_b32 v252, s{TG}"); A(f"v_mov_b32 v253, s{TG+1}")
        A("s_mov_b64 exec, 1")
        A(f"buffer_atomic_swap_x2 v[252:253], off, s[16:19], s{S_RO} sc0 sc1")
        A("s_mov_b64 exec, -1")
        A("s_branch L2_evr")
        A("L2_ev2:")
        A("s_mov_b64 exec, 1")
        A("ds_write_b64 v251, v[252:253]")
        A("s_mov_b64 exec, -1")
        A("s_branch L2_evr")
        A("L2_ev3:")
        A("ds_read_b64 v[252:253], v251")
        A("s_waitcnt lgkmcnt(0)")
        A(f"v_cmp_eq_u64 vcc, s[{TG}:{TG+1}], v[252:253]")
        A("s_nop 1")
        A("s_cmp_eq_u64 vcc, 0")
        A(f"s_cselect_b32 s{S_CNT}, s{S_NW}, s{S_NL}")
        A("L2_evr:")
        A("s_cmp_eq_u32 s3, 0"); A("s_cbranch_scc1 L2_loop"); A("s_branch L2_loop1")
    for p in (0, 1):
        A(f"L2_tail_{p}:")
        if opt.get('timing'):
            A("s_memtime s[68:69]")
            A("s_waitcnt lgkmcnt(0)")
        if TT:
            tl, rr, ss = tail_run(p, TT, len(alls), opt)
            o += tl; rares += rr; alls += ss
        else:
            o += body(p, 'tail2', sites[('tail2', p)], opt).text()
            A("s_nop 1")
            T(8)
            o += epilogue(body(1 - p, 'tail1', None, opt), opt)
        T(9)
        A("s_branch L2_F" if opt.get('fuse') else "s_branch L2_fin")
    if opt.get('fuse'):
        A("L2_F:")
        nfs = [0]
        def fstamp(A_):
            if opt.get('timing') and opt.get('ft') and nfs[0] < 7:
                A_(f"s_memtime s[{74+2*nfs[0]}:{75+2*nfs[0]}]"); nfs[0] += 1
        fo, fspin = gen_f.final(opt, fstamp)
        o += fo
        if opt.get('ftwice'):
            A("s_barrier\ns_xor_b32 s31, s31, 1\ns_cbranch_scc1 L2_F")
        A("s_branch L2_fin")
        o += fspin
        if MGK: o += gen_m.poll_b_spin()
        A("L2_Fend:")
    if opt.get('valu', 1):
        for p in (0, 1):
            for h in (0, 1):
                o += rare_code(p, h, [sites[('loop', p)][h]] + ([] if TT else [sites[('tail2', p)][h]]))
        o += rares
        o += rare_common(alls)
    import gen_eg
    if opt.get('light'):
        A("LT_disp:")
        A(f"s_cmp_eq_u32 s{S_WAVE}, 0")
        A("s_cbranch_scc1 LT_start")
        A(f"s_mov_b32 s{gen_eg.S_W}, s{S_WAVE}")
        A(f"s_mul_i32 s{gen_eg.S_B}, s{S_WAVE}, 6")
        A(f"s_add_u32 s{gen_eg.S_B}, s{gen_eg.S_B}, s37")
        A(f"s_add_u32 s{gen_eg.S_B}, s{gen_eg.S_B}, 42")
        A(f"s_cmp_lt_u32 s{gen_eg.S_B}, {NBK}")
        A("s_cbranch_scc1 LE_common")
        A("s_branch L2_end")
        light(o, opt, TT)
    gen_eg.gen_edge(o, opt)
    A("L2_fin:")
    if opt.get('timing'):
        A("s_mov_b64 exec, -1")
        A("s_waitcnt vmcnt(0)")
        A("s_memtime s[70:71]")
        A("s_memrealtime s[72:73]")
        A("s_waitcnt lgkmcnt(0)")
        A("s_sub_u32 s66, s66, s62")
        A("s_sub_u32 s68, s68, s62")
        A("s_sub_u32 s70, s70, s62")
        for i in range(10):
            A(f"s_sub_u32 s{74+2*i}, s{74+2*i}, s62\nv_mov_b32 v{4+i}, s{74+2*i}")
        A("v_mov_b32 v14, s64\nv_mov_b32 v15, s72")
        A("s_sub_u32 s72, s72, s64")
        A("v_mov_b32 v0, s66\nv_mov_b32 v1, s68\nv_mov_b32 v2, s70\nv_mov_b32 v3, s72")
        A("s_add_u32 s60, s4, 0x%x\ns_addc_u32 s61, s5, 0" % TIM_OFF)
        A("v_mbcnt_lo_u32_b32 v248, -1, 0\nv_mbcnt_hi_u32_b32 v248, -1, v248\nv_lshlrev_b32 v248, 4, v248")
        A("s_mov_b32 s62, 0x100000\ns_mov_b32 s63, 0x00020000")
        A(f"s_lshl_b32 s35, s2, 2")
        A(f"s_add_u32 s35, s35, s{S_WAVE}")
        A(f"s_lshl_b32 s35, s35, 10")
        A(f"buffer_store_dwordx4 v[0:3], v{VLANE16}, s[60:63], s35 offen")
        A("s_add_u32 s35, s35, 0x200000\ns_mov_b32 s62, 0x800000")
        for k in range(3):
            A(f"buffer_store_dwordx4 v[{4+4*k}:{7+4*k}], v{VLANE16}, s[60:63], s35 offen")
            A("s_add_u32 s35, s35, 0x100000")
    A("L2_end:")
    return "\n".join(o)


def kernel_desc(opt=None):
    return dict(name="k2_kernel", body=gen_k2(opt), vgpr=512, accum=256, grid=256, block=256, lds=163840 if (opt or {}).get('trun', 0) > 3 or (opt or {}).get('light') else 131072)
```

```python
from layout import *
import gen_k1n, gen_f
from gen_f import FLAG_OFF, FS, P1F0, WFF0, HF0, AF0, EPOCH, S_TAG, SWS
from sched import *
import hazard, struct, math
MF32 = gen_f.MF32
TAGADD = [f"s_add_u32 s{S_TAG}, s{S_TAG}, 0x7f4a7c15", f"s_addc_u32 s{S_TAG+1}, s{S_TAG+1}, 0x9e3779b9"]
S_IDX = 91
VPA, VPB, VPD = 5, 251, 252


def front(opt):
    k1 = opt['k1']
    S_W, S_ROLE, S_ROT = gen_k1n.S_W, gen_k1n.S_ROLE, gen_k1n.S_ROT
    o = []; A = o.append
    tagld = [f"s_mov_b32 s{S_TAG}, 0x{FLAG_OFF + EPOCH * FS:x}", f"s_load_dwordx2 {sr(S_TAG, 2)}, s[38:39], s{S_TAG}"]
    k1 = dict(k1, mg=tagld)
    A("s_getpc_b64 s[56:57]")
    A("s_load_dwordx16 s[16:31], s[0:1], 0")
    A("s_load_dwordx8 s[32:39], s[0:1], 64")
    if opt.get('timing'): A("s_memtime s[100:101]")
    A("s_cmp_ge_u32 s2, 256")
    A("s_cbranch_scc1 L2_end")
    A("v_lshrrev_b32 v1, 6, v0")
    A("v_and_b32 v2, 63, v0")
    A("s_lshr_b32 s3, s2, 3")
    if opt.get('sp0'): A("s_add_u32 s3, s3, 30"); A("s_and_b32 s3, s3, 31")
    A(f"v_readfirstlane_b32 s{S_W}, v1")
    A("s_lshl_b32 s5, s3, 2")
    A(f"s_add_u32 s5, s5, s{S_W}")
    if k1.get('cpf', 1):
        A("s_and_b32 s56, s56, 0xffffff00")
        A("s_mov_b32 s58, L2_end-k2_kernel")
        A("s_mov_b32 s59, 0x00020000")
        A(f"s_and_b32 s6, s5, {opt.get('cpm', 15)}")
        A("s_lshl_b32 s6, s6, 13")
        A("v_lshlrev_b32 v10, 7, v2")
        A("buffer_load_dword v255, v10, s[56:59], s6 offen")
    A("v_and_b32 v3, 15, v2")
    A("v_lshrrev_b32 v4, 4, v2")
    A(f"s_and_b32 s{S_ROT}, s3, 7")
    A("s_and_b32 s8, s2, 7")
    A("s_cmp_ge_u32 s3, 30")
    A("s_cbranch_scc1 LM_edge")
    if opt.get('map', 1) == 1:
        A("s_mul_i32 s13, s3, 52"); A("s_lshr_b32 s13, s13, 8"); A("s_mul_i32 s9, s13, 5"); A("s_sub_u32 s9, s3, s9")
        A("s_mul_i32 s12, s8, 5"); A("s_add_u32 s12, s12, s9")
    else:
        A("s_mul_i32 s12, s3, 26"); A("s_lshr_b32 s12, s12, 8"); A("s_mul_i32 s9, s12, 10"); A("s_sub_u32 s9, s3, s9")
        A("s_and_b32 s13, s8, 1"); A("s_mul_i32 s13, s13, 3"); A("s_add_u32 s13, s13, s12")
        A("s_lshr_b32 s12, s8, 1"); A("s_mul_i32 s12, s12, 10"); A("s_add_u32 s12, s12, s9")
    A(f"s_mul_i32 s{S_IDX}, s12, 6")
    A(f"s_add_u32 s{S_IDX}, s{S_IDX}, s13")
    A(f"s_mov_b32 s{S_ROLE}, 0")
    A("s_cmp_eq_u32 s12, 39")
    A("s_cbranch_scc1 LM_light")
    A("s_mul_i32 s14, s13, 3")
    A("s_min_u32 s14, s14, 14")
    A("s_lshl_b32 s9, s12, 4")
    A("s_add_u32 s14, s14, s9")
    A("s_lshl_b32 s14, s14, 13")
    A(f"s_cmp_eq_u32 s{S_IDX}, {38 * 6 + 5}")
    A("s_cselect_b32 s9, 0, s13")
    A("s_cmp_lt_u32 s9, 4")
    A("s_cselect_b32 s15, 3, 2")
    A("s_lshl_b32 s15, s15, 13")
    A("s_add_u32 s15, s15, s14")
    AV = opt.get('av')
    o += p1_prog(k1, opt) if AV else gen_k1n.gemm_prog('q', k1)
    A("L1_fin:")
    A(f"s_add_u32 s{S_IDX}, s{S_IDX}, {P1F0}")
    if not AV: A("s_waitcnt lgkmcnt(0)"); o += TAGADD
    A("LM_pub:")
    srd_from(o, 40, 38, FLAG_OFF, gen_f.NFLAG * FS)
    A(f"s_lshl_b32 s6, s{S_IDX}, 7")
    A(f"s_cmp_eq_u32 s{S_W}, 0")
    A(f"s_cselect_b32 s6, s6, 0x{gen_f.OOB:x}")
    A("s_waitcnt vmcnt(0) lgkmcnt(0)")
    A("s_barrier")
    gen_f.publish(A, 40, 6, 6, opt)
    A(f"s_cmp_eq_u32 s{S_ROLE}, 0")
    A("s_cbranch_scc1 L2_entry")
    A(f"s_mov_b32 s{S_ROLE}, 0")
    A(f"s_sub_u32 s4, s{S_IDX}, {P1F0 + 240}")
    A(f"s_add_u32 s{S_IDX}, s4, {WFF0}")
    o += gen_k1n.gemm_prog('w', k1)
    A("s_branch LM_pub")
    A("LM_light:")
    A("s_waitcnt lgkmcnt(0)")
    o += tagld
    if AV: A("s_waitcnt lgkmcnt(0)"); o += TAGADD
    A("s_branch L1_fin")
    A("LM_edge:")
    A("s_sub_u32 s4, s3, 30")
    A("s_lshl_b32 s8, s8, 1")
    A("s_add_u32 s4, s4, s8")
    A(f"s_add_u32 s{S_IDX}, s4, 240")
    A("s_cmp_lt_u32 s4, 8")
    A(f"s_cselect_b32 s{S_ROLE}, 1, 0")
    if AV: o += a_prog(k1, opt)
    o += gen_k1n.edge_prog(dict(k1, mg=["s_nop 0"]) if AV else k1)
    A("s_branch L1_fin")
    A("L2_entry:")
    return o


def a_prog(k1, opt):
    S_W = gen_k1n.S_W
    q = []; A = lambda t: q.append(V(t))
    VD, VR, VL, BF, AF, ACC = 16, 18, 20, 24, 56, 184
    A("v_lshrrev_b32 v5, 3, v2")
    A("v_and_b32 v6, 4, v5"); A("v_add_u32 v5, v5, v6")
    A("v_and_b32 v6, 7, v2"); A("v_xor_b32 v6, v6, v4")
    A("v_lshlrev_b32 v6, 4, v6")
    A(f"v_lshl_add_u32 v{VD}, v5, 9, v6")
    A(f"v_xor_b32 v{VD+1}, 0x2040, v{VD}")
    A(f"s_lshl_b32 s6, s{S_W}, 7")
    A("s_and_b32 s7, s4, 3"); A("s_lshl_b32 s7, s7, 15"); A("s_add_u32 s7, s7, s6")
    A("s_lshr_b32 s8, s4, 2"); A("s_lshl_b32 s8, s8, 15"); A("s_add_u32 s8, s8, s6")
    A(f"s_lshl_b32 s9, s{S_W}, 10")
    A("s_waitcnt lgkmcnt(0)")
    o = []; srd_from(o, 40, 26, 0, 131072); srd_from(o, 44, 28, 0, 131072)
    for t in o: A(t)
    for m in (1, 0):
        for b in range(4):
            A(f"s_add_u32 s10, s{7 + m}, {(b >> 1) * 16384 + (b & 1) * 2048}")
            for u in range(2):
                A(f"s_add_u32 m0, s9, {m * 32768 + b * 8192 + u * 4096}")
                q.append(VM(f"buffer_load_dwordx4 v{VD+u}, {sr(40 + 4*m)}, s10 offen lds", tag='w'))
    for t in k1['mg']: A(t)
    A("v_lshrrev_b32 v5, 1, v3"); A("v_xor_b32 v5, v5, v4"); A("v_lshlrev_b32 v5, 4, v5")
    A("v_and_b32 v6, 7, v3"); A("v_lshl_add_u32 v5, v6, 7, v5")
    A("v_lshrrev_b32 v6, 3, v3"); A(f"v_lshl_add_u32 v{VR}, v6, 12, v5")
    A(f"v_xor_b32 v{VR+1}, 64, v{VR}")
    A(f"s_lshl_b32 s6, s{S_W}, 13"); A(f"v_add_u32 v{VR+4}, s6, v{VR}"); A(f"v_xor_b32 v{VR+5}, 64, v{VR+4}")
    A(f"v_lshlrev_b32 v{VL}, 4, v2")
    o = []; srd_from(o, 48, 38, 0, 256 << 20)
    for t in o: A(t)
    A("s_lshr_b32 s6, s4, 2"); A("s_lshl_b32 s6, s6, 15"); A("s_and_b32 s7, s4, 3"); A("s_lshl_b32 s7, s7, 13")
    A("s_add_u32 s6, s6, s7"); A("s_add_u32 s6, s6, s9"); A(f"s_add_u32 s6, s6, 0x{A_OFF:x}"); A("s_add_u32 s7, s6, 4096")
    A(f"s_lshl_b32 s8, s4, 2"); A(f"s_add_u32 s8, s8, s{S_W}"); A(f"s_lshl_b32 s8, s8, {opt.get('afs', 7)}"); A(f"s_add_u32 s8, s8, 0x{FLAG_OFF + AF0 * FS:x}")
    A("s_mov_b32 s10, 0x%x" % struct.unpack('<I', struct.pack('<f', math.log2(math.e) / 16))[0])
    TS = lambda k: A(f"s_memtime s[{76+2*k}:{77+2*k}]") if opt.get('timing') else None
    TS(0)
    q.append(W('w')); TS(1); A("s_barrier")
    for j in range(8):
        q.append(LD(f"ds_read_b128 {vr(BF + 4*j)}, v{VR + 4 + (j & 1)} offset:{32768 + (j >> 1)*1024}"))
        for b in range(4): q.append(LD(f"ds_read_b128 {vr(AF + (j*4 + b)*4)}, v{VR + (j & 1)} offset:{b*8192 + (j >> 1)*1024}", tag=('f', j, b)))
    for j in range(8):
        for b in range(4):
            q.append(Ins(f"{MF32} {vr(ACC + 4*b)}, {vr(AF + (j*4 + b)*4)}, {vr(BF + 4*j)}, {vr(ACC + 4*b) if j else 0}", 0, needs=[('f', j, b)]))
    for t in TAGADD: A(t)
    TS(2)
    for tl in range(2):
        a = ACC + 8 * tl
        for r in range(8): A(f"v_mul_f32 v{a+r}, s10, v{a+r}")
        for r in range(4): A(f"v_cvt_pk_bf16_f32 v{a+r}, v{a+2*r}, v{a+2*r+1}")
        q.append(VM(f"buffer_store_dwordx4 {vr(a)}, v{VL}, {sr(48)}, s{6 + tl} offen sc1"))
    A("s_waitcnt vmcnt(0)")
    TS(3)
    gen_f.publish(A, 48, 8, 6, opt)
    if opt.get('timing'):
        A("s_waitcnt vmcnt(0)"); TS(4); A("s_waitcnt lgkmcnt(0)")
        for k in range(5): A(f"v_writelane_b32 v254, s{76+2*k}, {8+k}")
    A("s_barrier")
    return hazard.fix(Emitter().emit(q))


def p1_prog(k1, opt):
    K = gen_k1n
    S_W, S_ROT, S_XO, SK, SO = K.S_W, K.S_ROT, K.S_XO, K.SK1, K.SO
    NL, RPW, HIMG = 6, 12, 0x20000
    VL16, VH, VHW, HP, ACC, LN0, BF, AF = 16, 31, 36, 44, 68, 68, 68 + 48, 0
    pre = []; A = lambda t: pre.append(V(t))
    nst = [0]
    def stamp():
        if not opt.get('timing') or not opt.get('p1t'): return []
        nst[0] += 1
        return [V(f"s_memtime s[{14+2*nst[0]}:{15+2*nst[0]}]", cost=0)]
    A(f"v_lshlrev_b32 v{VL16}, 4, v2")
    A(f"s_mul_i32 s7, s{S_W}, {RPW*512}")
    A(f"s_add_u32 s{S_XO}, s14, s7")
    A(f"s_add_u32 s{S_XO+1}, s{S_XO}, 4096")
    A("s_waitcnt lgkmcnt(0)")
    o = []; srd_from(o, K.SRD_X, 16, 0, "s15")
    for t in o: A(t)
    xso = lambda j: f"s{S_XO + j // 4} offen offset:{(j % 4) * 1024}"
    for j in range(NL): pre.append(VM(f"buffer_load_dwordx4 {vr(HP+4*j)}, v{VL16}, {sr(K.SRD_X)}, {xso(j)}", tag=('x', j)))
    for t in k1['mg']: A(t)
    K.img_addrs(A, NL, RPW, HIMG, VHW, VH)
    o = []
    srd_from(o, K.SRD_O, 38, QF_OFF, "s15"); srd_from(o, K.SRD_H, 38, H_OFF, "s15"); srd_from(o, K.SRD_W1, 38, 0, 256 << 20)
    for t in o: A(t)
    A(f"s_lshl_b32 s7, s{S_W}, 15"); A(f"s_add_u32 s7, s7, 0x{A_OFF:x}")
    for t in range(8):
        A(f"s_xor_b32 s6, s{S_ROT}, {t}"); A("s_lshl_b32 s6, s6, 12"); A(f"s_add_u32 s{SK+t}, s6, s7")
    A(f"s_lshl_b32 s7, s{S_W}, 11"); A(f"s_add_u32 s{SO}, s14, s7")
    for b in range(1, 3): A(f"s_add_u32 s{SO+b}, s{SO}, {b*8192}")
    A(f"s_mov_b32 s{K.S_EPS}, 0x3727c5ac"); A(f"s_mov_b32 s{K.S_R256}, 0x3b800000"); A(f"s_mov_b32 s{K.S_MASK}, 0xffff0000")
    A(f"v_lshlrev_b32 v17, {opt.get('afs', 7)}, v2"); A(f"v_add_u32 v17, 0x{FLAG_OFF + AF0 * FS:x}, v17")
    A(f"s_add_u32 s6, s{S_IDX}, {HF0}"); A("s_lshl_b32 s6, s6, 7"); A(f"s_add_u32 s6, s6, 0x{FLAG_OFF:x}")
    A(f"s_cmp_eq_u32 s{S_W}, 0"); A(f"s_cselect_b32 s74, s6, 0x{gen_f.OOB:x}")
    pre += stamp()
    K.ln_code(pre, NL, HP, LN0, VHW, k1, lambda: None, stamp,
              after=lambda j: pre.append(VM(f"buffer_store_dwordx4 {vr(HP+4*j)}, v{VL16}, {sr(K.SRD_H)}, {xso(j)} sc1")))
    A("s_waitcnt lgkmcnt(0)")
    for t in TAGADD: A(t)
    pre += stamp()
    A("s_barrier")
    for t in range(8):
        for rb in range(3): pre.append(LD(f"ds_read_b128 {vr(BF + (t*3 + rb)*4)}, v{VH + (t & 1)} offset:{rb*8192 + t*1024}", tag=('b', t)))
    em = Emitter(); em.emit(pre)
    if opt.get('w0p'): em.o += ["s_waitcnt vmcnt(0)", f"s_cmp_lg_u32 s{S_W}, 0", "s_cbranch_scc1 LM_aw_go"]
    gen_f.spin(em.o.append, "LM_aw", [f"buffer_load_dwordx2 v[18:19], v17, {sr(K.SRD_W1)}, 0 offen sc1"], [18], 75)
    em.done['vm'] = em.cnt['vm']
    st = Stream()
    ld = lambda t: [VM(f"buffer_load_dwordx4 {ar((t*4 + f)*4)}, v{VL16}, {sr(K.SRD_W1)}, s{SK+t} offen offset:{f*1024} sc1", tag=('a', t, f)) for f in range(4)]
    NA = opt.get('p1a', 3)
    if opt.get('w0p'): st.put(-1, V("s_barrier"))
    for x in stamp(): st.put(-1, x)
    for t in range(NA):
        for x in ld(t): st.put(-1, x)
    z = []; gen_f.publish(z.append, K.SRD_W1, 74, 18, opt)
    if not opt.get('w0p'): st.put(-1, V("s_barrier"))
    for x in z: st.put(-1, VM(x) if x.startswith('buffer') else V(x))
    acc = lambda f, rb: ACC + (rb * 4 + f) * 4
    done = {}
    for t in range(8):
        g0 = st.n()
        for f in range(4):
            for rb in range(3):
                done[(f, rb)] = st.mfma(f"{MF32} {vr(acc(f, rb))}, {ar((t*4 + f)*4)}, {vr(BF + (t*3 + rb)*4)}, {vr(acc(f, rb)) if t else 0}", needs=[('a', t, f), ('b', t)])
        if t + NA < 8:
            for k, x in enumerate(ld(t + NA)): st.put(g0 + 3 * k, x)
    nm = st.n()
    for u in range(2):
        for rb in range(3):
            a = acc(2 * u, rb); g = min(done[(2 * u + 1, rb)] + 3, nm - 1)
            for r in range(4): st.put(g, V(f"v_cvt_pk_bf16_f32 v{a+r}, v{a+2*r}, v{a+2*r+1}"))
            st.put(g, VM(f"buffer_store_dwordx4 {vr(a)}, v{VL16}, {sr(K.SRD_O)}, s{SO+rb} offen offset:{u*1024} sc1"))
    for x in stamp(): st.put(nm - 1, x)
    o = hazard.fix(em.emit(st.seq()))
    if nst[0]:
        o.append("s_waitcnt lgkmcnt(0)")
        o += [f"s_mov_b32 s{74 + 2*k}, s{16 + 2*k}" for k in range(nst[0])]
    return o


def sel_lanes(A, v, t, L, srcs):
    A(f"v_mov_b32 v{v}, s{srcs[0]}")
    for k, r in enumerate(srcs[1:]):
        A(f"v_mov_b32 v{t}, s{r}")
        A(f"v_cmp_lt_u32 vcc, 0x{128 * (k + 1) - 1:x}, v{L}")
        A("s_nop 1")
        A(f"v_cndmask_b32 v{v}, v{v}, v{t}, vcc")


def poll_addrs(A, S_OFF, av, step=None):
    L = gen_f.VLANE16
    A("s_lshr_b32 s40, s39, 17"); A("s_min_u32 s40, s40, 38")
    A(f"s_lshr_b32 s41, s{S_OFF}, 17")
    A(f"s_add_u32 s3, s{S_OFF}, {step or '0x4000'}"); A("s_lshr_b32 s3, s3, 17")
    sel_lanes(A, VPA, 6, L, [38, 40, 41, 3])
    A(f"v_bfe_u32 v6, v{L}, 4, 3")
    A("v_min_u32 v6, 5, v6")
    A(f"v_mad_u32_u24 v{VPA}, v{VPA}, 6, v6")
    if av:
        A(f"v_cmp_lt_u32 vcc, 0x7f, v{L}")
        A(f"v_add_u32 v6, {HF0 - P1F0}, v{VPA}")
        A("s_nop 0")
        A(f"v_cndmask_b32 v{VPA}, v{VPA}, v6, vcc")
    A(f"v_lshlrev_b32 v{VPA}, 7, v{VPA}")
    A(f"v_add_u32 v{VPA}, 0x{FLAG_OFF + P1F0 * FS:x}, v{VPA}")
    if step:
        A(f"s_mul_i32 s3, {step}, 54"); A("s_add_u32 s3, s3, s39"); A("s_min_u32 s41, s3, s39"); A("s_max_u32 s3, s3, s39"); A("s_lshr_b32 s41, s41, 17")
    else: A("s_sub_u32 s3, s49, 1")
    A("s_min_u32 s40, s40, s41"); A("s_mul_i32 s40, s40, 6")
    A("s_lshr_b32 s3, s3, 17"); A("s_min_u32 s3, s3, 38"); A("s_mul_i32 s3, s3, 6"); A("s_add_u32 s3, s3, 5")
    A(f"v_lshrrev_b32 v{VPB}, 4, v{L}")
    A(f"v_add_u32 v{VPB}, s40, v{VPB}")
    A(f"v_min_u32 v{VPB}, s3, v{VPB}")
    A(f"v_lshlrev_b32 v{VPB}, 7, v{VPB}")
    A(f"v_add_u32 v{VPB}, 0x{FLAG_OFF + (HF0 if av else P1F0) * FS:x}, v{VPB}")


def poll_a(A, o):
    srd_from(o, SWS, 4, 0, 256 << 20)
    gen_f.spin(A, "LM_pa", [f"buffer_load_dwordx2 v[6:7], v{VPA}, {sr(SWS)}, 0 offen sc1"], [6], 42)


def poll_b_load(): return f"buffer_load_dwordx2 {vr(VPD, 2)}, v{VPB}, {sr(SWS)}, 0 offen sc1"


def poll_b_check(A):
    A(f"v_cmp_ne_u64 vcc, {sr(S_TAG, 2)}, {vr(VPD, 2)}")
    A("s_nop 1")
    A("s_cbranch_vccnz LM_pb")
    A("LM_pb_ret:")


def poll_b_spin():
    o = ["LM_pb:"]
    gen_f.spin(o.append, "LM_pb2", [poll_b_load()], [VPD], 3)
    return o + ["s_branch LM_pb_ret"]
```

```python
import sys, os
sys.path.insert(0, os.path.dirname(os.path.abspath(__file__)))
from layout import *

HEADER = open(os.path.join(os.path.dirname(os.path.abspath(__file__)), "..", "standalone__hybrid_graph_tf_graphgps__graph.s.ref")).read().split("; Override launch geometry")[0]

RT_OFF = 240 << 20
def rt_wrap(body, kidx):
    pre = "s_memrealtime s[92:93]\n"
    post = f"""
s_mov_b64 exec, -1
s_waitcnt vmcnt(0) lgkmcnt(0)
s_memrealtime s[94:95]
s_load_dwordx2 s[96:97], s[0:1], 88
s_waitcnt lgkmcnt(0)
s_add_u32 s96, s96, 0x{RT_OFF + kidx * 65536:x}
s_addc_u32 s97, s97, 0
s_mov_b32 s98, 0x10000
s_mov_b32 s99, 0x00020000
s_not_b32 s94, s94
s_lshl_b32 s93, s2, 6
v_mov_b32 v0, s92
v_mov_b32 v1, s94
v_mov_b32 v2, 0
s_getreg_b32 s95, hwreg(HW_REG_XCC_ID)
v_mov_b32 v3, s95
s_mov_b64 exec, 1
buffer_atomic_umin v0, v2, s[96:99], s93 offen
buffer_atomic_umin v1, v2, s[96:99], s93 offen offset:4
buffer_atomic_umin v3, v2, s[96:99], s93 offen offset:8
s_waitcnt vmcnt(0)
"""
    return pre + (body.replace(';;END', post) if ';;END' in body else body + post)

def dbg_wrap(body):
    post = """
s_mov_b64 exec, -1
s_waitcnt vmcnt(0) lgkmcnt(0)
s_memrealtime s[94:95]
s_memtime s[90:91]
s_load_dwordx2 s[96:97], s[0:1], 80
s_getreg_b32 s3, hwreg(HW_REG_HW_ID, 4, 2)
s_waitcnt lgkmcnt(0)
s_cmp_lg_u32 s3, 0
s_cbranch_scc1 LD_skip
s_mov_b32 s98, 256
s_mov_b32 s99, 0x00020000
v_readlane_b32 s91, v255, 0
s_sub_u32 s95, s94, s92
s_not_b32 s92, s92
s_sub_u32 s90, s90, s93
v_mov_b32 v0, s92
v_writelane_b32 v0, s94, 1
v_writelane_b32 v0, s90, 2
v_writelane_b32 v0, s95, 3
v_mbcnt_lo_u32_b32 v2, -1, 0
v_lshlrev_b32 v2, 2, v2
s_mov_b64 exec, 15
buffer_atomic_umax v0, v2, s[96:99], 0 offen
s_waitcnt vmcnt(0)
LD_skip:
"""
    return "s_memrealtime s[92:93]\ns_memtime s[90:91]\ns_waitcnt lgkmcnt(0)\ns_mov_b32 s93, s90\n" + (body.replace(';;END', post) if ';;END' in body else body + post)

def kernel_text(name, body, vgpr, accum, sgpr=102):
    code = f""".globl {name}
.p2align 8
.type {name},@function
{name}:
{body}
s_endpgm
"""
    desc = f""".p2align 6
.amdhsa_kernel {name}
  .amdhsa_next_free_vgpr {vgpr}
  .amdhsa_next_free_sgpr {sgpr}
  .amdhsa_accum_offset {accum}
  .amdhsa_group_segment_fixed_size 0
  .amdhsa_kernarg_size 96
  .amdhsa_user_sgpr_count 2
  .amdhsa_user_sgpr_kernarg_segment_ptr 1
  .amdhsa_system_sgpr_workgroup_id_x 1
.end_amdhsa_kernel
"""
    return code, desc

def build_file(kernels, rt=False, plain=False):
    s = HEADER
    if plain:
        k = kernels[0]; nm = "standalone__hybrid_graph_tf_graphgps__graph_kernel"
        kernels = [dict(k, name=nm, body=k['body'].replace(k['name'], nm))]
    for k in kernels:
        s += f"; @launch {'' if plain else 'kernel=' + k['name'] + ' '}grid=({k['grid']},1,1) block=({k['block']},1,1) lds={k['lds']}\n"
    s += '.amdgcn_target "amdgcn-amd-amdhsa--gfx950"\n.text\n'
    descs = []
    for ki, k in enumerate(kernels):
        c, d = kernel_text(k['name'], dbg_wrap(k['body']) if rt == 2 else rt_wrap(k['body'], ki) if rt else k['body'], k['vgpr'], k['accum'])
        s += c
        descs.append(d)
    s += '.section .rodata,"a"\n' + "".join(descs)
    return s
```

```python
from layout import *
from sched import *
import hazard

MF32 = "v_mfma_f32_16x16x32_bf16"
FLAG_OFF = 124 << 20
NFLAG = 2048
HLF0 = 1280
FS = 128
P1F0, WFF0, HF0, AF0, EPOCH = 1344, 1600, 1664, 1920, 2047
S_TAG = 98
MG = [0]
OOB = 0x70000000
MLS = 128
OWN = [[0, 4, 8], [1, 5, 12], [2, 9, 13], [6, 10, 14], [3, 7], [11, 15]]
SX, SWS, SM, SD, SO = 8, 16, 24, 52, 56
P_X = 60
S_NEED = 96
XO = [6, 7, 29]; S_FO = 51
S_WAVE, S_SPLIT, S_SPB, S_ML0 = 34, 37, 50, 48
S_XL, S_XB, S_H2 = 31, 28, 30
VLANE16, VE = 248, 241
DIAG, ACC, BF, ZA, WT, T = 0, 160, 208, 128, 144, 232
POOL = [r for r in range(48, 128, 8) if r not in (72, 104)]
VDUM, VPO2, VP1 = 36, 43, 242
XR = [104, 108, 152]
VIL, VH0, VH1, VPOLL, VPO, VPF = 40, 44, 45, 46, 47, 158
VWF = 108
VBH, VOW, VDGR = 72, 76, 79
VMK = 156
VW0, VW1, VML_, VT0, VT1, VTR, VWW, VWR, VZ, VZR, DG = 240, 241, 242, 245, 246, 247, 249, 250, 251, 252, 253
VML = 244
WO = [32, 33, 35, 36, 38, 39, 40, 41]
STR = [42, 43, 44, 45, 46, 47]
S_TMP = [49, 3]
S_SPIN, S_MASK = 94, 95


def fstr(opt): return FS


def pre_wait(A, s_oq, s_own):
    tab = 0
    for i, b in enumerate(x for l in OWN for x in l): tab |= b << (4 * i)
    A(f"s_mov_b32 s6, 0x{tab & 0xffffffff:x}")
    A(f"s_mov_b32 s7, 0x{tab >> 32:x}")
    A("s_mul_i32 s3, s37, 12")
    A("s_min_u32 s3, s3, 56")
    A("s_lshr_b64 s[6:7], s[6:7], s3")
    A("s_bfe_u32 s29, s6, 0x40008")
    A("s_bfe_u32 s7, s6, 0x40004")
    A("s_and_b32 s6, s6, 15")
    A("s_cmp_lt_u32 s37, 4")
    A("s_cselect_b32 s29, s29, 16")
    A(f"s_mov_b32 s{s_oq}, 0")
    A(f"s_mov_b32 s{s_own}, 0")
    for r in XO:
        A(f"s_lshr_b32 s3, s{r}, 2")
        A(f"s_cmp_eq_u32 s3, s{S_WAVE}")
        A(f"s_cselect_b32 s{s_oq}, s{r}, s{s_oq}")
        A(f"s_cselect_b32 s{s_own}, 1, s{s_own}")
    A(f"s_and_b32 s{s_oq}, s{s_oq}, 3")
    A("s_lshl_b32 s3, s38, 17")
    A(f"s_lshl_b32 s{S_FO}, s{S_WAVE}, 7")
    A(f"s_add_u32 s3, s3, s{S_FO}")
    for r in XO:
        A(f"s_lshl_b32 s{r}, s{r}, 13")
        A(f"s_add_u32 s{r}, s{r}, s3")
    A(f"s_mov_b64 s[{S_NEED}:{S_NEED+1}], 0")
    for r in XO:
        for e in (0, 15):
            A(f"s_lshr_b32 s3, s{r}, 9")
            if e: A(f"s_add_u32 s3, s3, {e}")
            A(f"s_mul_i32 s3, s3, {BMAGIC}")
            A(f"s_lshr_b32 s3, s3, {BSHIFT}")
            A(f"s_bitset1_b64 s[{S_NEED}:{S_NEED+1}], s3")
    A("s_mul_i32 s3, s38, 6")
    A("s_add_u32 s3, s3, s37")
    A(f"s_cmp_eq_u32 s3, {38 * 6 + 5}")
    A("s_cselect_b32 s3, 0, s37")
    A("s_cmp_lt_u32 s3, 4")
    A(f"s_cselect_b32 s29, s29, 0x{OOB:x}")
    A(f"s_lshl_b32 s{S_FO}, s38, 5")
    A(f"s_lshl_b32 s3, s{S_WAVE}, 3")
    A(f"s_add_u32 s{S_FO}, s{S_FO}, s3")
    A(f"s_add_u32 s{S_FO}, s{S_FO}, s37")
    A(f"s_mul_i32 s{S_FO}, s{S_FO}, {FS}")
    A(f"s_add_u32 s{S_FO}, s{S_FO}, 0x{FLAG_OFF:x}")


def prologue(A, o, s_own):
    srd_from(o, SWS, 4, 0, 256 << 20)
    srd_from(o, SX, P_X, 0, N * 512)
    A(f"s_mov_b32 s{SD+2}, 0x{N*2:x}"); A(f"s_mov_b32 s{SD+3}, 0x00020000")
    A(f"s_mov_b32 s{SO+2}, 0x{N*512:x}"); A(f"s_mov_b32 s{SO+3}, 0x00020000")
    A(f"s_lshr_b32 s{S_ML0}, s40, 2")
    A(f"s_cmp_eq_u32 s{s_own}, 1")
    A(f"s_cselect_b32 s40, 0x{OOB:x}, s40")
    A(f"s_cselect_b32 s44, 0x{OOB:x}, s44")


def ml_addr(v, L):
    return [f"v_bfe_u32 v{v}, v{L}, 8, 1", f"v_mul_u32_u24 v{v}, 48, v{v}", f"v_lshl_add_u32 v{v}, s{S_SPLIT}, 3, v{v}",
            f"v_and_b32 v{v+1}, 0xf0, v{L}", f"v_lshl_add_u32 v{v}, v{v+1}, 3, v{v}"]


def publish(A, srd, soff, vt, opt, both=False):
    assert vt % 2 == 0
    A(f"v_mov_b32 v{vt}, s{S_TAG}")
    A(f"v_mov_b32 v{vt+1}, s{S_TAG+1}")
    A("s_mov_b64 exec, 1")
    A(f"buffer_store_dwordx2 {vr(vt, 2)}, off, {sr(srd)}, s{soff} sc1")
    if both: A(f"buffer_store_dwordx2 {vr(vt, 2)}, off, {sr(srd)}, s{soff} offset:8 sc1")
    A("s_mov_b64 exec, -1")


def spin(A, lab, loads, regs, cnt=94, need=None, pair='vcc'):
    A(f"s_mov_b32 s{cnt}, 0x10000")
    A(f"{lab}:")
    for t in loads: A(t)
    A(f"s_sub_u32 s{cnt}, s{cnt}, 1")
    A("s_waitcnt vmcnt(0)")
    A(f"s_cbranch_scc1 {lab}_go")
    for r in regs:
        A(f"v_cmp_ne_u64 vcc, {sr(S_TAG, 2)}, {vr(r, 2)}")
        A("s_nop 1")
        A(f"s_cbranch_vccnz {lab}")
    A(f"{lab}_go:")


def poll_all(A, o, lab, srd, v):
    srd_from(o, srd, 4, FLAG_OFF + P1F0 * FS, 256 * FS)
    A(f"v_and_b32 v{v+8}, 63, v0")
    A(f"v_lshlrev_b32 v{v+8}, 7, v{v+8}")
    so = ['0', 's91', 's90', 's95']
    for k in range(1, 4): A(f"s_mov_b32 {so[k]}, {k * 8192}")
    spin(A, lab, [f"buffer_load_dwordx2 {vr(v+2*k, 2)}, v{v+8}, {sr(srd)}, {so[k]} offen sc1" for k in range(4)], [v + 2 * k for k in range(4)])


def vh0(v, t):
    L = VLANE16
    return [f"v_lshrrev_b32 v{v}, 4, v{L}", f"v_and_b32 v{v}, 0x30, v{v}", f"v_xor_b32 v{v}, v{v}, v{L}",
            f"v_and_b32 v{t}, 0x380, v{L}\nv_mad_u32_u24 v{v}, v{t}, 3, v{v}"]


def early1(p, opt):
    q = []
    A = lambda t, c=1: q.append((c, t))
    A(f"s_and_b32 s30, s30, 0x1c000")
    A(f"s_add_u32 s{S_XB}, s30, 0x{(1 + 2 * p) * 0x4000:x}")
    A(f"s_and_b32 s{S_XB}, s{S_XB}, 0x1ffff")
    A(f"s_add_u32 s30, s30, 0x{(2 - p) * 0x4000:x}")
    A(f"s_and_b32 s30, s30, 0x1ffff")
    A(f"s_mul_i32 s{S_XL}, s{S_WAVE}, 6144")
    A(f"s_add_u32 s{S_XL}, s{S_XL}, s30")
    A(f"s_lshl_b32 s3, s{S_WAVE}, 10")
    A(f"s_add_u32 s{S_XB}, s{S_XB}, s3")
    A(f"s_add_u32 s3, s3, 24576")
    A(f"s_add_u32 s{S_H2}, s30, s3")
    for t in vh0(VE, 243): A(t, 1 + t.count("\n"))
    return q


def dma6(A, c):
    seq = [(rb, u) for u in range(2) for rb in range(3)]
    m0 = lambda rb, u: f"s_add_u32 m0, s{S_XL}, {rb*2048 + u*1024}" if c == 'x' else f"s_add_u32 m0, s{S_XB if rb < 2 else S_H2}, {(rb % 2)*8192 + u*4096}"
    A(m0(*seq[0]), 2)
    for k, (rb, u) in enumerate(seq):
        t = f"buffer_load_dwordx4 v{VE}, {sr(SX)}, s{XO[rb]} offen lds" if c == 'x' else f"buffer_load_dwordx4 v{VE}, {sr(SWS)}, s{XO[rb]} offen sc1 lds ; HLD"
        if k < 5: t += "\n" + m0(*seq[k + 1])
        A(t, 2)
        if k == 2: A(f"v_xor_b32 v{VE}, 0x1040, v{VE}")


def early_x(p, opt):
    q = []
    dma6(lambda t, c=1: q.append((c, t)), 'x')
    return q


def early_hf(p, opt):
    return [(1, f"v_lshlrev_b32 v{VE}, 3, v{VLANE16}"), (1, f"s_mov_b32 s3, 0x{FLAG_OFF + HLF0 * FS:x}"),
            (1, f"buffer_load_dwordx2 {vr(VE-1, 2)}, v{VE}, {sr(SWS)}, s3 offen sc1 ; HLFLAG")]


def early_h(p, opt):
    q = []
    A = lambda t, c=1: q.append((c, t))
    A("WAIT HLFLAG")
    A(f"v_cmp_ne_u64_e64 s[38:39], {sr(S_TAG, 2)}, {vr(VE-1, 2)}")
    A(f"s_and_b64 s[38:39], s[38:39], s[{S_NEED}:{S_NEED+1}]\ns_cbranch_scc1 LF_hl_{p}\nLF_hlret_{p}:", 2)
    for t in vh0(VE, 243): A(t, 1 + t.count("\n"))
    A(f"v_add_u32 v{VE}, 0x{HL_OFF:x}, v{VE}")
    if MG[0]:
        A(f"v_and_b32 v{VWF+2}, 0x70, v{VLANE16}")
        A(f"v_lshlrev_b32 v{VWF+2}, 3, v{VWF+2}")
        A(f"v_add_u32 v{VWF+2}, 0x{FLAG_OFF + WFF0 * FS:x}, v{VWF+2}")
        A(f"buffer_load_dwordx2 {vr(VWF, 2)}, v{VWF+2}, {sr(SWS)}, 0 offen sc1")
    dma6(A, 'h')
    return q


def fix_waits(lines):
    lines = [x for l in lines for x in l.split("\n")]
    for b, l in enumerate(lines):
        if l.startswith("WAIT "):
            a = max(i for i, x in enumerate(lines) if x.endswith("; " + l[5:]))
            n = sum(1 for x in lines[a + 1:b] if x.startswith("buffer_"))
            assert a < b and n < 64, (l, a, b, n)
            lines[b] = f"s_waitcnt vmcnt({n})"
    return lines


def hl_spin(p):
    return [f"LF_hl_{p}:", f"s_mov_b32 s{S_SPIN}, 0x10000", f"s_mov_b32 s3, 0x{FLAG_OFF + HLF0 * FS:x}", f"LF_hl2_{p}:", f"v_lshlrev_b32 v{VE}, 3, v{VLANE16}",
            f"buffer_load_dwordx2 {vr(VE-1, 2)}, v{VE}, {sr(SWS)}, s3 offen sc1",
            f"s_sub_u32 s{S_SPIN}, s{S_SPIN}, 1", "s_waitcnt vmcnt(0)", f"s_cbranch_scc1 LF_hlret_{p}",
            f"v_cmp_ne_u64_e64 s[38:39], {sr(S_TAG, 2)}, {vr(VE-1, 2)}", f"s_and_b64 s[38:39], s[38:39], s[{S_NEED}:{S_NEED+1}]",
            f"s_cbranch_scc1 LF_hl2_{p}", f"s_branch LF_hlret_{p}"]


R = lambda s, n: s * n
ORDERS = {
    'h2': "d" + R("a", 12) + "F" + R("a", 20) + R("b", 12) + "q" + R("b", 10) + "Q" + "mmm" + R("0b", 6) + "|" + R("1b", 4) + "11|" + "222|222|",
    'h5': "d" + R("a", 12) + "F" + R("a", 20) + R("b", 8) + "q" + R("b", 10) + "Q" + "mmm" + "0b0b0b1b1b1b2b2b2b|0b0b0b|1b1b1|222|",
    'h6': "d" + R("a", 12) + "F" + R("a", 20) + R("b", 20) + "p" + R("b", 12) + "Pqmmm000Q111222|000|111|222|",
    'h7': "d" + R("a", 12) + "F" + R("a", 16) + "p" + R("a", 4) + R("b", 8) + "Pmmm" + "0bb0bb0bb1bb1bb1bbq2bb2bb2bb|bbbbbbQ000|111|222|",
    'i1': "d" + R("a", 10) + "pF" + R("a", 8) + "Pmmm" + "0a0a0a1a1a1a2a2a2aa" + "q" + R("a", 4) + "b|" + R("b", 7) + "Q" + "0bb0bb0bb|1bb1bb1bb|2bb2bb2bb|" + R("b", 6),
    'i2': "d" + R("a", 10) + "Fp" + R("a", 10) + "Pmmm" + "0a0a0a1a1a1a2aa2aa2aa" + "|q" + R("b", 12) + "Q" + "0bb0bb0bb|1bb1bb1bb|2bb2bb2bbbb|",
    'i3': "d" + R("a", 10) + "Fp" + R("a", 22) + "Pmmm" + "0b0b0b1b1b1b2bb2bb2bb" + "|q" + R("b", 12) + "Q" + "0bb0bb0bb|1bb11|222|",
    'i4': "d" + R("a", 10) + "Fp" + R("a", 6) + "Pmmm" + "000111222" + "|q" + R("a", 16) + "Q" + "000|111|222|" + R("b", 32),
    'i5': "d" + R("a", 10) + "Fp" + R("a", 10) + "Pmmm" + "00aa01aa11aa22aa2aaaa" + "q|" + R("b", 16) + "Q" + "00bbbb0|1bbbb11bbbb|2bbbb22|",
}


def flag1(opt):
    return [(1, "WAIT ST3"), (1, f"v_mov_b32 v46, s{S_TAG}"), (1, f"v_mov_b32 v47, s{S_TAG+1}"),
            (3, f"s_mov_b64 exec, 1\nbuffer_store_dwordx2 v[46:47], off, {sr(SWS)}, s{S_FO} offset:8 sc1\ns_mov_b64 exec, -1")]


def final(opt, stamp=None):
    stamp = stamp or (lambda A: None)
    q = []
    A = lambda t, **k: q.append(V(t, **k))
    L = VLANE16
    if MG[0]: A(f"v_cmp_ne_u64 vcc, {sr(S_TAG, 2)}, {vr(VWF, 2)}")
    A(f"s_lshl_b32 s3, s{S_WAVE}, 15")
    A(f"s_add_u32 s3, s3, 0x{WF_OFF:x}")
    if MG[0]: A("s_cbranch_vccnz LF_wf\nLF_wf_go:")
    A(f"v_add_u32 v{VW0}, s3, v{L}")
    A(f"v_add_u32 v{VW1}, 0x4000, v{VW0}")
    for k in range(8): A(f"s_mov_b32 s{WO[k]}, 0x{(k >> 2) * 131072 + (k & 3) * 4096:x}")
    for rb in range(3): A(f"s_lshr_b32 s{STR[rb]}, s{XO[rb]}, 13")
    A(f"v_mov_b32 v{VML}, s{STR[0]}")
    A(f"v_mov_b32 v{T}, s{STR[1]}")
    A(f"v_cmp_lt_u32 vcc, 0xff, v{L}")
    A(f"v_mov_b32 v{T+1}, s{STR[2]}")
    A(f"v_cndmask_b32 v{VML}, v{VML}, v{T}, vcc")
    A(f"v_cmp_lt_u32 vcc, 0x1ff, v{L}")
    A(f"v_and_b32 v{T+3}, 0xf0, v{L}")
    A(f"v_cndmask_b32 v{VML}, v{VML}, v{T+1}, vcc")
    A(f"v_lshlrev_b32 v{VML}, 11, v{VML}")
    A(f"v_lshl_add_u32 v{VML}, v{T+3}, 3, v{VML}")
    A(f"v_lshrrev_b32 v{VDGR}, 6, v{VML}")
    late = []
    B = lambda t: late.append(V(t))
    B(f"s_lshl_b32 s3, s{S_SPLIT}, 3")
    B(f"v_add3_u32 v{VML}, v{VML}, s3, 8")
    B(f"s_cmp_ge_u32 s{XO[2]}, 0x{OOB:x}")
    B(f"s_cselect_b32 s{STR[2]}, s{STR[1]}, s{STR[2]}")
    B(f"v_mov_b32 v{VPOLL}, s{STR[0]}")
    B(f"v_mov_b32 v{T}, s{STR[1]}")
    B(f"v_cmp_lt_u32 vcc, 0x7f, v{L}")
    B(f"v_mov_b32 v{T+1}, s{STR[2]}")
    B(f"v_cndmask_b32 v{VPOLL}, v{VPOLL}, v{T}, vcc")
    B(f"v_cmp_lt_u32 vcc, 0xff, v{L}")
    B(f"v_bfe_u32 v{T}, v{L}, 4, 3")
    B(f"v_cndmask_b32 v{VPOLL}, v{VPOLL}, v{T+1}, vcc")
    B(f"v_min_u32 v{T}, 5, v{T}")
    B(f"v_lshrrev_b32 v{VPOLL}, 2, v{VPOLL}")
    B(f"v_lshl_add_u32 v{VPOLL}, v{VPOLL}, 3, v{T}")
    B(f"v_lshlrev_b32 v{VPOLL}, {FS.bit_length() - 1}, v{VPOLL}")
    B(f"v_add_u32 v{VPOLL}, 0x{FLAG_OFF:x}, v{VPOLL}")
    B(f"s_lshl_b32 s49, s{S_WAVE}, 10")
    B(f"s_add_u32 s49, s49, 0x20000")
    for rb in range(3):
        B(f"s_bfe_u32 s3, s{XO[rb]}, 0x2000f")
        B(f"s_lshl_b32 s3, s3, 13")
        B(f"s_add_u32 s3, s3, s49")
        B(f"v_add_u32 v{VOW+rb}, s3, v{L}")
    for k in range(6):
        B(f"s_add_u32 s3, s{S_SPLIT}, {k + 1}")
        B(f"s_sub_u32 s49, s3, 6")
        B(f"s_cselect_b32 s3, s3, s49")
        B(f"s_mul_i32 s3, s3, 0x{OP_STRIDE:x}")
        B(f"s_add_u32 s{STR[k]}, s3, 0x{OP_OFF if not opt.get('foob') else OOB:x}")
    B(f"s_mul_i32 s3, s{S_WAVE}, {1024 - 128}")
    B(f"v_add_u32 v{VPO}, s3, v{L}")
    B(f"v_add_u32 v{VPO2}, 0x1000, v{VPO}")
    for t in vh0(VH0, T): late += [V(x) for x in t.split("\n")]
    B(f"v_xor_b32 v{VH1}, 0x1040, v{VH0}")
    B(f"v_bfe_u32 v{T}, v{L}, 5, 3")
    B(f"v_lshrrev_b32 v{T+2}, 8, v{L}")
    B(f"v_xor_b32 v{T}, v{T}, v{T+2}")
    B(f"v_bfe_u32 v{T+1}, v{L}, 4, 3")
    B(f"v_lshlrev_b32 v{T+1}, 7, v{T+1}")
    B(f"v_lshl_or_b32 v{T}, v{T}, 4, v{T+1}")
    B(f"v_bfe_u32 v{T+1}, v{L}, 7, 1")
    B(f"s_lshl_b32 s49, s{S_WAVE}, 10")
    B(f"s_sub_u32 s3, s{S_XB}, s49")
    B(f"v_lshl_add_u32 v{VBH+2}, v{T+1}, 12, v{T}")
    B(f"v_add_u32 v{VBH}, s3, v{VBH+2}")
    B(f"s_sub_u32 s3, s{S_H2}, s49")
    B(f"v_add_u32 v{VBH+2}, s3, v{VBH+2}")
    B(f"v_xor_b32 v{VBH+1}, 64, v{VBH}")
    B(f"v_xor_b32 v{VBH+3}, 64, v{VBH+2}")
    B(f"v_lshl_add_u32 v{VT0}, v{T+1}, 10, v{T}")
    B(f"v_add_u32 v{VT0}, s{S_XL}, v{VT0}")
    B(f"v_xor_b32 v{VT1}, 64, v{VT0}")
    B(f"v_add_u32 v{VTR}, s{S_XL}, v{L}")
    B(f"s_add_u32 s3, s3, 0x{0x10000 - 24576:x}")
    B(f"s_and_b32 s3, s3, 0x1ffff")
    B(f"v_add_u32 v{VZR}, s3, v{L}")
    B(f"v_add_u32 v{VZ}, s49, v{VZR}")
    B(f"s_lshl_b32 s49, s{S_WAVE}, 11")
    B(f"s_add_u32 s3, s3, s49")
    B(f"s_add_u32 s3, s3, 24576")
    B(f"v_lshl_add_u32 v{VWW}, v{L}, 1, s3")
    B(f"v_lshl_add_u32 v{VWR}, v{T+3}, 1, s3")
    B(f"v_lshrrev_b32 v{T}, 4, v{T+3}")
    B(f"v_lshlrev_b32 v{T+2}, 2, v{T+2}")
    B(f"v_sub_u32 v{T}, v{T}, v{T+2}")
    B(f"v_and_b32 v{T+1}, 1, v{T}")
    B(f"v_lshlrev_b32 v{T+1}, 4, v{T+1}")
    B(f"v_mov_b32 v{T+2}, 0xffff")
    B(f"v_lshlrev_b32 v{T+1}, v{T+1}, v{T+2}")
    B(f"v_lshrrev_b32 v{T}, 1, v{T}")
    for k in range(2):
        B(f"v_cmp_eq_u32 vcc, {k}, v{T}")
        B(f"v_cndmask_b32 v{VMK+k}, 0, v{T+1}, vcc")
    B(f"s_mov_b32 s{S_MASK}, 0xffff0000")
    order = opt.get('forder', 'i1'); order = ORDERS.get(order, order)
    D = opt.get('fd', 12)
    Lq = []; cnt = {}; bar = set()
    for ch in order:
        if ch == '|': bar.add(len(Lq) - 1); continue
        Lq.append((ch, cnt.get(ch, 0))); cnt[ch] = cnt.get(ch, 0) + 1
    assert dict(cnt, p=1, P=1) == dict(F=1, P=1, p=1, Q=1, q=1, d=1, m=3, a=32, b=32, **{'0': 6, '1': 6, '2': 6}), cnt
    wgt = lambda e: 0 if e[0] in 'FPQ' else (1 if e[1] % 3 == 2 and e[0] != '2' else 2) if e[0] in '012' else 1
    free = list(POOL); reg = {}; low = [99]; glue = set()
    MLR = ZA
    ld = opt.get('fld', ' sc1')
    pl = lambda ch: f"buffer_load_dwordx2 {vr(VP1, 2)}, v{VPOLL}, {sr(SWS)}, 0 offen offset:{8 if ch == 'p' else 0} sc1"
    def issue(z, e):
        Z = lambda t: z.append(V(t))
        ch, k = e
        if ch == 'F':
            z.append(W('ost')); stamp(Z)
            Z(f"v_mov_b32 v{VPF}, s{S_TAG}"); Z(f"v_mov_b32 v{VPF+1}, s{S_TAG+1}"); Z("s_mov_b64 exec, 1")
            z.append(VM(f"buffer_store_dwordx2 {vr(VPF, 2)}, off, {sr(SWS)}, s{S_FO} sc1", tag=e)); Z("s_mov_b64 exec, -1")
        elif ch in 'pq':
            z.append(VM(pl(ch), tag=e))
        elif ch in 'PQ':
            stamp(Z)
            z.append(V(f"v_cmp_ne_u64 vcc, {sr(S_TAG, 2)}, {vr(VP1, 2)}", needs=[(ch.lower(), 0)])); Z(f"s_nop 1\ns_cbranch_vccnz LF_spin{ch}\nLF_go{ch}:")
            stamp(Z)
        elif ch == 'd':
            z.append(VM(f"buffer_load_ushort v{VDGR}, v{VDGR}, {sr(SD)}, 0 offen", tag=e))
        elif ch == 'm':
            z.append(VM(f"buffer_load_dwordx4 {vr(MLR + 4*k)}, v{VML}, {sr(SM)}, 0 offen offset:{16*k} sc1", tag=e))
        elif ch in '012':
            r = reg[e] = free.pop(0); low[0] = min(low[0], len(free))
            rb = int(ch); j, sp = k // 3, k % 3
            gl = lambda u, rr: f"buffer_load_dwordx4 {vr(rr)}, v{VPO2 if j else VPO}, {sr(SWS)}, s{S_TMP[u]} offen{ld}"
            dl = lambda rr: f"ds_read_b128 {vr(rr)}, v{VOW+rb} offset:{j*4096}"
            for u in range(2):
                if sp == 2 and u == 1 and rb < 2:
                    z.append(LD(dl(r + 4), tag=('own', e))); continue
                Z(f"s_add_u32 s{S_TMP[u]}, s{XO[rb]}, s{STR[2*sp+u]}")
                if sp == 2 and u == 1:
                    Z(f"s_cmp_lt_u32 s{S_SPLIT}, 4\ns_cbranch_scc1 LF_o{j}")
                    z.append(V(gl(u, r + 4) + f"\n{dl(VDUM)}\ns_branch LF_j{j}\nLF_o{j}:\ns_mov_b32 s{S_TMP[u]}, 0x{OOB:x}"))
                    z.append(VM(gl(u, VDUM), tag=e)); z.append(LD(dl(r + 4) + f"\nLF_j{j}:", tag=('own', e)))
                    glue.update(id(x) for x in z[-3:])
                else: z.append(VM(gl(u, r + 4 * u), tag=e))
        else:
            z.append(VM(wload('ab'.index(ch), k), tag=e))
    tn = [0]
    def tmp():
        tn[0] += 1; return T + (tn[0] % 4) * 2
    diag = lambda rb, sp: DIAG + rb * 12 + sp * 4
    WTS = [WT, ZA, ZA + 8]
    def wt(z, rb):
        z.append(LD(f"ds_read_b128 {vr(WTS[rb])}, v{VWR} offset:{rb*512}"))
        z.append(LD(f"ds_read_b128 {vr(WTS[rb]+4)}, v{VWR} offset:{rb*512+16}", tag=('wt', rb)))
    def dbuild(z, rb):
        for s in range(NSPLIT):
            for k in range(2): z.append(V(f"v_and_b32 v{diag(rb, s // 2) + 2*(s % 2) + k}, v{WTS[rb]+s}, v{VMK+k}", needs=[('wt', rb)]))
        z.append(V(f"v_mov_b32 v{VIL+rb}, v{WTS[rb]+6}"))
    def dg_setup(z):
        z.append(V(f"v_lshlrev_b32 v{VDGR}, 16, v{VDGR}"))
        z.append(LD(f"ds_write_b32 v{VWW}, v{VDGR} offset:28"))
        for rb in range(3): z.append(LD(f"ds_read_b32 v{DG+rb}, v{VWR} offset:{rb*512+28}", tag='dg'))
    def weights(z):
        Z = lambda t: z.append(V(t))
        m = lambda s: MLR + 2 * s
        l = lambda s: m(s) + 1
        Z(f"v_max3_f32 v{T}, v{m(0)}, v{m(1)}, v{m(2)}")
        Z(f"v_max3_f32 v{T+1}, v{m(3)}, v{m(4)}, v{m(5)}")
        Z(f"v_max_f32 v{T}, v{T}, v{T+1}")
        Z(f"v_subrev_f32 v{T}, 0x42fe0000, v{T}")
        for s in range(NSPLIT): Z(f"v_sub_f32 v{m(s)}, v{m(s)}, v{T}")
        for s in range(NSPLIT): Z(f"v_cvt_u32_f32 v{m(s)}, v{m(s)}")
        for s in range(NSPLIT): Z(f"v_lshlrev_b32 v{T+2+s}, 23, v{m(s)}")
        Z(f"v_mul_f32 v{T}, v{T+2}, v{l(0)}")
        for s in range(1, NSPLIT): Z(f"v_fmac_f32 v{T}, v{T+2+s}, v{l(s)}")
        Z(f"v_rcp_f32 v{WT+6}, v{T}")
        for s in range(NSPLIT): Z(f"v_mul_u32_u24 v{WT+s}, 0x800080, v{m(s)}")
        z.append(LD(f"ds_write_b128 v{VWW}, {vr(WT)}"))
        z.append(LD(f"ds_write_b96 v{VWW}, {vr(WT+4, 3)} offset:16"))
        for rb in range(3): wt(z, rb)
        for rb in range(3): dbuild(z, rb)
    zw = set(); zok = set()
    acc = lambda rb, j, b: ACC + ((rb * 2 + j) * 2 + b) * 4
    un = [0]
    post = []
    def cstep(vq, ms, rb, k):
        j, sp = k // 3, k % 3
        e = (str(rb), k)
        r = reg[e]
        if sp == 0: un[0] += 1
        zd = ZA + 8 * (un[0] % 2)
        pre = [V(f"v_swap_b32 v{r+2}, v{r+4}", needs=[('own', e)] if sp == 2 else []), V(f"v_swap_b32 v{r+3}, v{r+5}")]
        for h in range(2):
            ms.append(Ins(f"{MF32} {vr(zd+4*h)}, {vr(r+4*h)}, {vr(diag(rb, sp))}, {vr(zd+4*h) if sp else 0}", 0))
        free.append(r)
        if sp == 2:
            z = [V(f"v_mul_f32 v{zd+c}, v{zd+c}, v{VIL+rb}") for c in range(8)]
            z += [V(f"v_cvt_pk_bf16_f32 v{zd+c}, v{zd+2*c}, v{zd+2*c+1}") for c in range(4)]
            z.append(LD(f"ds_write_b128 v{VZ}, {vr(zd)} offset:{rb*8192 + j*4096}", tag='z'))
            post.append(((rb, j), z))
        return pre
    nxt = {(m, rb): list(range(8)) for m in range(2) for rb in range(3)}
    groups = []; arrived = set(); barpos = [0]
    xn = [0]
    def x_read(z):
        n = xn[0]
        if n < 6: z.append(LD(f"ds_read_b128 {vr(XR[n % 3])}, v{VT0 + n % 2} offset:{(n // 2)*2048}", tag=('xr', n))); xn[0] += 1
    fdone = []
    def fma_x(z, rb):
        assert rb == len(fdone); fdone.append(rb)
        for j in range(2):
            n = 2 * rb + j; x = XR[n % 3]
            for c in range(4):
                t = tmp(); a = acc(rb, j, 0) + 2 * c
                z.append(V(f"v_lshlrev_b32 v{t}, 16, v{x+c}", needs=[('xr', n), 'dg']))
                z.append(V(f"v_and_b32 v{t+1}, s{S_MASK}, v{x+c}"))
                z.append(V(f"v_fma_f32 v{a}, v{a}, v{DG+rb}, v{t}"))
                z.append(V(f"v_fma_f32 v{a+1}, v{a+1}, v{DG+rb}, v{t+1}"))
            x_read(z)
    def ep(z, rb):
        for j in range(2):
            a = acc(rb, j, 0)
            for c in range(4): z.append(V(f"v_cvt_pk_bf16_f32 v{a+c}, v{a+2*c}, v{a+2*c+1}"))
            z.append(LD(f"ds_write_b128 v{VT0+j}, {vr(a)} offset:{rb*2048}"))
        for u in range(2): z.append(LD(f"ds_read_b128 {vr(acc(rb, u, 1))}, v{VTR} offset:{rb*2048 + u*1024}", tag=('y', rb, u)))
        stq.extend(VM(f"buffer_store_dwordx4 {vr(acc(rb, u, 1))}, v{VH0+u}, {sr(SO)}, s{XO[rb]} offen{opt.get('fst', '')}", needs=[('y', rb, u)]) for u in range(2))
    pend = []; blk = set(); stq = []
    def pick(cap):
        ms = []; n = 0
        while n < cap:
            cand = []
            for (m, rb), ts in nxt.items():
                if m == 1 and (nxt[(0, rb)] or ('fma', rb) in pend or rb in blk): continue
                for t in ts:
                    if m == 1 and (rb, t // 4) not in zok: continue
                    if ('ab'[m], 4 * t + 3) not in arrived: continue
                    cand.append((-m, rb if m else 0, t, rb)); break
            if not cand: break
            m, _, t, rb = min(cand); m = -m
            g = len(groups); groups.append((m, t, rb, barpos[0] if m == 1 or not groups else groups[-1][3], m == 0 and len(nxt[(m, rb)]) == 8))
            ms += [('G', g, b) for b in range(4)]
            nxt[(m, rb)].remove(t); n += 1
            if not nxt[(m, rb)]: pend.append(('fma' if m == 0 else 'ep', rb))
        return ms
    def merge(ms, vq):
        per = opt.get('fper', 2)
        while ms or vq:
            if ms: q.append(ms.pop(0))
            k = 0
            while vq and (k < per or not ms or id(vq[0]) in glue):
                x = vq.pop(0); q.append(x); k += 2 if (x.t or '').startswith(('v_swap', 'buffer')) else 1
    def take_pend(vq, n=9):
        blk.clear(); vq += stq; stq.clear()
        for p in list(pend)[:n]:
            pend.remove(p); (fma_x if p[0] == 'fma' else ep)(vq, p[1]); blk.add(p[1])
    def take_post(vq):
        for u, z in post: vq += z; zw.add(u)
        post.clear()
    def barrier():
        A("s_barrier"); q.append(('BAR', len(q))); barpos[0] = len(q) - 1
        stamp(A)
    ni = [0]
    def issue_n(z, k, d):
        while ni[0] < len(Lq) and sum(wgt(e) for e in Lq[k + 1:ni[0] + 1]) <= d:
            e = Lq[ni[0]]
            if e[0] in '012' and not free: break
            if e[0] in 'PQ' and (e[0].lower(), 0) not in arrived: break
            issue(z, e); ni[0] += 1
    fidx = [k for k, e in enumerate(Lq) if e[0] == 'F'][0]
    n1 = fidx - (Lq[fidx - 1][0] == 'p')
    while ni[0] < n1: issue(q, Lq[ni[0]]); ni[0] += 1
    q.extend(late)
    while ni[0] < fidx: issue(q, Lq[ni[0]]); ni[0] += 1
    if opt.get('fbf', 1): issue(q, Lq[fidx]); ni[0] += 1
    A("s_waitcnt lgkmcnt(0)")
    barrier()
    for _ in range(3): x_read(q)
    if not opt.get('fbf', 1): issue(q, Lq[fidx]); ni[0] += 1
    for k, e in enumerate(Lq):
        if e[0] not in 'FPQ': q.append(W(e))
        arrived.add(e)
        vq = []; ms = []; pre = []
        issue_n(vq, k, D)
        take_post(vq)
        take_pend(vq, 1)
        if e == ('d', 0): dg_setup(vq)
        if e == ('m', 2): weights(vq)
        if e[0] in '012': pre = cstep(vq, ms, int(e[0]), e[1])
        fill = pick(max(opt.get('fcap', 2) if e[0] in '012' else 1, (len(vq) + 7) // 8))
        if len(fill) >= 2: merge(fill[:2] + ms + fill[2:], pre + vq)
        else: q.extend(pre); merge(ms + fill, vq)
        if k in bar:
            vq = []; take_post(vq); merge(pick(opt.get('fcapb', 1)), vq)
            if zw - zok: q.append(W('z'))
            barrier()
            zok |= zw
    while any(nxt.values()) or pend or stq:
        vq = []; take_pend(vq); merge(pick(99), vq)
    NR = 6
    Fr = lambda n: BF + (n % NR) * 4
    def rd(n):
        m, t, rb = groups[n][:3]
        if m == 0: s = f"ds_read_b128 {vr(Fr(n))}, v{VBH + (rb // 2)*2 + (t & 1)} offset:{(rb % 2)*8192 + (t >> 1)*1024}"
        else: s = f"ds_read_b128 {vr(Fr(n))}, v{VZR} offset:{rb*8192 + t*1024}"
        return LD(s, tag=('f', n))
    out = []; nr = 0; done = -1
    for pos, it in enumerate(q):
        if isinstance(it, tuple) and it[0] == 'G':
            n, b = it[1], it[2]; m, t, rb, _, first = groups[n]
            assert nr > n
            a = acc(rb, b >> 1, b & 1)
            out.append(Ins(f"{MF32} {vr(a)}, {ar(m*128 + (4*t + b)*4)}, {vr(Fr(n))}, {0 if first else vr(a)}", 0, needs=[('f', n)]))
            if b == 0:
                done = n - 1
                if nr < len(groups) and nr <= done + NR and groups[nr][3] <= pos: out.append(rd(nr)); nr += 1
            if b == 3: done = n
        elif isinstance(it, tuple) and it[0] == 'BAR':
            while nr < len(groups) and nr <= done + NR - 1 and groups[nr][3] <= pos: out.append(rd(nr)); nr += 1
        else: out.append(it)
    if opt.get('fmem'):
        n0 = out.index(late[-1])
        def ok(it):
            if it.t is None: return all(isinstance(t, tuple) and t[0] in 'abmdpq012' or t == 'ost' for t in it.needs)
            if it.t.startswith('buffer_store_dwordx4'): return False
            return it.t.startswith(('s_', 'buffer_', f'v_mov_b32 v{VPF}', 'v_cmp', 'ds_read_b128 v[' + str(VDUM))) and not it.t.startswith('s_barrier') or 'LF_j' in it.t
        out = out[:n0 + 1] + [it for it in out[n0 + 1:] if ok(it)]
    em = Emitter(); em.pos['ost'] = ('vm', 0); em.cnt['vm'] = 1; em.kind.append(False)
    o = hazard.fix(em.emit(out))
    if opt.get('verbose'): print("final: min free", low[0], "lines", len(o), "nops", sum(1 for x in o if x.startswith('s_nop')))
    sp = []
    for ch in ('PQ' if 'P' in cnt else 'Q'):
        sp.append(f"LF_spin{ch}:")
        spin(sp.append, f"LF_spin2{ch}", [pl(ch.lower())], [VP1], S_SPIN)
        sp.append(f"s_branch LF_go{ch}")
    if MG[0]:
        sp.append("LF_wf:")
        spin(sp.append, "LF_wf2", [f"buffer_load_dwordx2 {vr(VWF, 2)}, v{VWF+2}, {sr(SWS)}, 0 offen sc1"], [VWF], S_SPIN)
        sp.append("s_branch LF_wf_go")
    return o, sp


def wload(m, k):
    t, j, b = k >> 2, (k >> 1) & 1, k & 1
    return f"buffer_load_dwordx4 {ar(m*128 + 4*k)}, v{VW0 + j}, {sr(SWS)}, s{WO[m*4 + (t >> 1)]} offen offset:{(t & 1)*2048 + b*1024}{' sc1' if MG[0] else ''}"
```

```python
from layout import *
from sched import *
import hazard
import struct, math

K1_LDS = 163840
SRD_X, SRD_W1, SRD_W2, SRD_O, SRD_H = 40, 44, 48, 52, 56
S_W, S_ROLE, S_ROT, S_M0, S_XO = 60, 61, 62, 63, 64
SK1, SK2, SO, S_SC, S_EPS, S_R256, S_MASK = 66, 74, 82, 86, 88, 89, 90
VL16, VWQ, VWK, VTR, VK, VH, VQW, VQ, VHW = 16, 17, 21, 25, 29, 31, 33, 35, 36
MF32 = "v_mfma_f32_16x16x32_bf16"
DPP = " row_mask:0xf bank_mask:0x%x"


def ln_code(pre, NL, HP, LN0, VHW, opt, more, stamp, after=None):
    A = lambda t: pre.append(V(t))
    U = lambda j: LN0 + 8 * j
    SQ = LN0 + 8 * NL
    for j in range(NL):
        x, u, s = HP + 4 * j, U(j), SQ + 4 * j
        pre.append(W(('x', j)))
        if j == 0: pre += stamp()
        for k in range(4):
            A(f"v_lshlrev_b32 v{u+2*k}, 16, v{x+k}")
            A(f"v_and_b32 v{u+2*k+1}, s{S_MASK}, v{x+k}")
        if opt.get('nopk', 0) >= 3:
            A(f"v_add_f32 v{s}, v{u}, v{u+1}"); A(f"v_mul_f32 v{s+2}, v{u}, v{u}")
            A(f"v_add_f32 v{s+1}, v{u+2}, v{u+3}"); A(f"v_mul_f32 v{s+3}, v{u+1}, v{u+1}")
            for k in range(2, 8):
                if k >= 4: A(f"v_add_f32 v{s+(k&1)}, v{s+(k&1)}, v{u+k}")
                A(f"v_fmac_f32 v{s+2+(k&1)}, v{u+k}, v{u+k}")
            A(f"v_add_f32 v{s}, v{s}, v{s+1}"); A(f"v_add_f32 v{s+2}, v{s+2}, v{s+3}")
        else:
            A(f"v_pk_add_f32 {vr(s,2)}, {vr(u,2)}, {vr(u+2,2)}")
            A(f"v_pk_mul_f32 {vr(s+2,2)}, {vr(u,2)}, {vr(u,2)}")
            A(f"v_pk_add_f32 {vr(x,2)}, {vr(u+4,2)}, {vr(u+6,2)}")
            A(f"v_pk_fma_f32 {vr(s+2,2)}, {vr(u+2,2)}, {vr(u+2,2)}, {vr(s+2,2)}")
            A(f"v_pk_add_f32 {vr(s,2)}, {vr(s,2)}, {vr(x,2)}")
            A(f"v_pk_fma_f32 {vr(s+2,2)}, {vr(u+4,2)}, {vr(u+4,2)}, {vr(s+2,2)}")
            A(f"v_add_f32 v{s}, v{s}, v{s+1}")
            A(f"v_pk_fma_f32 {vr(s+2,2)}, {vr(u+6,2)}, {vr(u+6,2)}, {vr(s+2,2)}")
            A(f"v_add_f32 v{s+2}, v{s+2}, v{s+3}")
        more()
    for j in range(NL): A(f"v_permlane16_swap_b32 v{SQ+4*j}, v{SQ+4*j+2}")
    for j in range(NL): A(f"v_add_f32 v{SQ+4*j}, v{SQ+4*j}, v{SQ+4*j+2}")
    def merge(regs, mode, m0, m1, off):
        out = []
        for a in range(0, len(regs), 2):
            (ra, la) = regs[a]
            d = ra + off
            if a + 1 < len(regs):
                rb_, lb = regs[a + 1]
                A(f"v_add_f32_dpp v{d}, v{ra}, v{ra} {mode}" + DPP % m0)
                A(f"v_add_f32_dpp v{d}, v{rb_}, v{rb_} {mode}" + DPP % m1)
                sh = 8 if m1 == 0xc else 4
                out.append((d, {**la, **{k: v + sh for k, v in lb.items()}}))
            else:
                A(f"v_add_f32_dpp v{d}, v{ra}, v{ra} {mode}" + DPP % 0xf)
                out.append((d, la))
        return out
    regs = [(SQ + 4 * j, {j: 0}) for j in range(NL)]
    regs = merge(regs, "row_ror:8", 0x3, 0xc, 1)
    regs = merge(regs, "row_half_mirror", 0x5, 0xa, 1)
    for qp in ("[1,0,3,2]", "[2,3,0,1]"):
        for r, _ in regs: A(f"v_add_f32_dpp v{r}, v{r}, v{r} quad_perm:{qp}" + DPP % 0xf)
    for r, _ in regs: A(f"v_mov_b32 v{r+1}, v{r}")
    for r, _ in regs: A(f"v_permlane16_swap_b32 v{r+1}, v{r}")
    ops = lambda r: [f"v_mul_f32 v{r+1}, s{S_R256}, v{r+1}", f"v_mul_f32 v{r}, s{S_R256}, v{r}",
                     f"v_fma_f32 v{r}, -v{r+1}, v{r+1}, v{r}", f"v_cvt_pk_bf16_f32 v{r+1}, v{r+1}, v{r+1}", f"v_max_f32 v{r}, 0, v{r}",
                     f"v_cvt_pk_bf16_f32 v{r}, v{r}, v{r}", f"v_and_b32 v{r}, s{S_MASK}, v{r}", f"v_add_f32 v{r}, s{S_EPS}, v{r}",
                     f"v_cvt_pk_bf16_f32 v{r}, v{r}, v{r}", f"v_and_b32 v{r}, s{S_MASK}, v{r}", f"v_sqrt_f32 v{r}, v{r}",
                     f"v_and_b32 v{r+1}, s{S_MASK}, v{r+1}",
                     f"v_cvt_pk_bf16_f32 v{r}, v{r}, v{r}", f"v_and_b32 v{r}, s{S_MASK}, v{r}", f"v_rcp_f32 v{r}, v{r}",
                     f"v_mul_f32 v{r+1}, -v{r+1}, v{r}"]
    for tt in zip(*[ops(r) for r, _ in regs]):
        for t in tt: A(t)
    for r, lm in regs:
        for j, ln in lm.items():
            A(f"v_mov_b64_dpp {vr(SQ+4*j,2)}, {vr(r,2)} row_newbcast:{ln} row_mask:0xf bank_mask:0xf")
    for j in range(NL):
        x, u, s = HP + 4 * j, U(j), SQ + 4 * j
        for k in range(4):
            if opt.get('nopk', 0) >= 1:
                for z in range(2): A(f"v_fma_f32 v{u+2*k+z}, v{u+2*k+z}, v{s}, v{s+1}")
            else: A(f"v_pk_fma_f32 {vr(u+2*k,2)}, {vr(u+2*k,2)}, {vr(s,2)}, {vr(s,2)} op_sel:[0,0,1] op_sel_hi:[1,0,1]")
        for k in range(4):
            A(f"v_cvt_pk_bf16_f32 v{x+k}, v{u+2*k}, v{u+2*k+1}")
        pre.append(LD(f"ds_write_b128 v{VHW+j}, {vr(x)}", tag='hw'))
        if after: after(j)
        more()


def img_addrs(A, NL, RPW, HIMG, VHW, VH):
    A("v_bfe_u32 v5, v2, 2, 3")
    A(f"v_xor_b32 v5, s{S_ROT}, v5")
    A("v_and_b32 v6, 3, v2")
    A("v_lshlrev_b32 v7, 10, v5")
    A("v_lshl_add_u32 v7, v6, 8, v7")
    A(f"v_add_u32 v7, 0x{HIMG:x}, v7")
    A("v_and_b32 v5, 1, v5")
    A("v_lshl_or_b32 v6, v5, 2, v6")
    A("v_lshrrev_b32 v5, 5, v2")
    A(f"s_mul_i32 s6, s{S_W}, {RPW}")
    for j in range(NL):
        A(f"v_add3_u32 v8, v5, s6, {2*j}")
        A("v_lshrrev_b32 v9, 4, v8")
        A("v_lshl_add_u32 v9, v9, 13, v7")
        A("v_and_b32 v8, 15, v8")
        A("v_xor_b32 v8, v8, v6")
        A(f"v_lshl_add_u32 v{VHW+j}, v8, 4, v9")
    A("v_xor_b32 v5, v3, v4")
    A("v_lshlrev_b32 v5, 4, v5")
    A("v_lshl_add_u32 v5, v4, 8, v5")
    A(f"v_add_u32 v{VH}, 0x{HIMG:x}, v5")
    A(f"v_xor_b32 v{VH+1}, 64, v{VH}")

def gemm_prog(role, opt):
    NW = opt.get('nw', 8); NF = 16 // NW; CW = 16 * NF; NPC = NF; CH = NPC * 1024; RS = 32 * NF
    main = role == 'q'
    MGD = opt.get('mg')
    NRB = opt.get('nrb', 3) if main else 4
    RPW = 16 * NRB // NW; NL = RPW // 2
    IMG = NRB * 8192
    RC = (K1_LDS - (2 if main else 1) * IMG) // NW // CH
    RC = min(RC, opt.get('rc', 8))
    WSZ = RC * CH
    HIMG = NW * WSZ; QIMG = HIMG + IMG
    assert QIMG + (IMG if main else 0) <= K1_LDS
    stx = opt.get('st', '')
    p = VHW + NL; p = (p + 3) // 4 * 4
    HP = p; p += NL * 4
    ACC1 = p; p += NF * NRB * 4
    LN0 = p
    ACC2 = p; p += NF * NRB * 4 if main else 0
    RW, RB = opt.get('rw', 6 if NW == 8 else 10), opt.get('rb', 4 if NW == 8 else 3) * NRB
    WR = p; p += RW * 4
    BR = p; p += RB * 4
    assert p <= 255, p
    nst = [0]
    def stamp(kind=0):
        if not opt.get('timing') or kind != opt.get('skind', 0) or (kind and not main): return []
        nst[0] += 1
        assert nst[0] <= 8
        return [V(f"s_memtime s[{14+2*nst[0]}:{15+2*nst[0]}]", cost=0)]
    pre = []
    A = lambda t: pre.append(V(t))
    A(f"v_lshlrev_b32 v{VL16}, 4, v2")
    A(f"s_mul_i32 s{S_M0}, s{S_W}, {WSZ}")
    if main:
        A(f"s_mul_i32 s6, s4, {NRB*8192}" if not MGD else "s_mov_b32 s6, s14")
        A(f"s_mul_i32 s7, s{S_W}, {RPW*512}")
        A(f"s_add_u32 s{S_XO}, s6, s7")
        A(f"s_add_u32 s{S_XO+1}, s{S_XO}, 4096")
    else:
        A("s_and_b32 s6, s4, 3")
        A(f"s_lshl_b32 s6, s6, 6")
        A(f"s_mul_i32 s7, s{S_W}, {RPW}")
        A("s_add_u32 s6, s6, s7")
        A("v_lshrrev_b32 v5, 5, v2")
        A("v_and_b32 v6, 31, v2")
        A("v_lshlrev_b32 v6, 4, v6")
        A("s_cmp_ge_u32 s4, 4")
        A("s_cselect_b64 vcc, -1, 0")
        for j in range(NL):
            A(f"v_add3_u32 v7, v5, s6, {2*j}")
            A("v_and_b32 v8, 0x80, v7")
            A("v_bfe_u32 v9, v7, 2, 1"); A("v_lshl_or_b32 v8, v9, 6, v8")
            A("v_bfe_u32 v9, v7, 4, 1"); A("v_lshl_or_b32 v8, v9, 5, v8")
            A("v_and_b32 v9, 3, v7"); A("v_lshl_or_b32 v8, v9, 3, v8")
            A("v_bfe_u32 v9, v7, 5, 2"); A("v_lshl_or_b32 v8, v9, 1, v8")
            A("v_bfe_u32 v9, v7, 3, 1"); A("v_or_b32 v8, v9, v8")
            A("v_cndmask_b32 v8, v8, v7, vcc")
            A(f"v_lshl_add_u32 v{HP+4*j}, v8, 9, v6")
    A(f"s_lshl_b32 s7, s{S_W}, {(CW*2).bit_length()-1}")
    if NW == 4:
        A("v_lshrrev_b32 v5, 3, v2")
        A("v_and_b32 v6, 7, v2")
        A("v_and_b32 v7, 2, v5")
        A("v_xor_b32 v6, v6, v7")
        A("v_lshl_add_u32 v5, v5, 9, s7")
        A(f"v_lshl_add_u32 v{VWQ}, v6, 4, v5")
        A("v_xor_b32 v6, 4, v6")
        A(f"v_lshl_add_u32 v{VWQ+1}, v6, 4, v5")
        A(f"v_add_u32 v{VWQ+1}, 0xc00, v{VWQ+1}")
        A(f"v_add_u32 v{VWQ+2}, 0x1800, v{VWQ}")
        A(f"v_add_u32 v{VWQ+3}, 0x1800, v{VWQ+1}")
    else:
        A("v_lshrrev_b32 v5, 2, v2")
        A("v_and_b32 v6, 3, v2")
        A("v_lshrrev_b32 v7, 5, v2")
        A("v_lshlrev_b32 v7, 1, v7")
        A("v_xor_b32 v6, v6, v7")
        A("v_lshl_add_u32 v5, v5, 9, s7")
        A(f"v_lshl_add_u32 v{VWQ}, v6, 4, v5")
        A(f"v_add_u32 v{VWQ+1}, 0x1c00, v{VWQ}")
    for t in range(8):
        A(f"s_xor_b32 s6, s{S_ROT}, {t}")
        A(f"s_lshl_b32 s{SK1+t}, s6, 14")
    A("s_waitcnt lgkmcnt(0)")
    o = []
    if main:
        srd_from(o, SRD_X, 16, 0, N * 512 if not MGD else "s15"); srd_from(o, SRD_W1, 26, 0, 131072)
    else:
        o += ["s_cmp_ge_u32 s4, 4", "s_cselect_b32 s6, s30, s24", "s_cselect_b32 s7, s31, s25"]
        srd_from(o, SRD_X, 6, 0, 131072); srd_from(o, SRD_W1, 32, 0, 131072)
    for t in o: A(t)
    xso = lambda j: f"s{S_XO + j // 4} offen offset:{(j % 4) * 1024}"
    for j in range(NL):
        if main: pre.append(VM(f"buffer_load_dwordx4 {vr(HP+4*j)}, v{VL16}, {sr(SRD_X)}, {xso(j)}", tag=('x', j)))
        else: pre.append(VM(f"buffer_load_dwordx4 {vr(HP+4*j)}, v{HP+4*j}, {sr(SRD_X)}, 0 offen", tag=('x', j)))
    NCH = 16 if main else 8
    def dma(c, needs=()):
        srd, vw, so = (SRD_W1, VWQ, SK1 + c) if c < 8 else (SRD_W2, VWK, SK2 + c - 8)
        q = [V(f"s_add_u32 m0, s{S_M0}, 0x{(c % RC) * CH:x}", needs=needs), V("s_nop 0", cost=0)]
        for k in range(NPC):
            q.append(VM(f"buffer_load_dwordx4 v{vw+k}, {sr(srd)}, s{so} offen offset:{k*1024} lds", tag=('c', c) if k == NPC - 1 else None))
        return q
    NPRE = min(opt.get('npre', RC), RC)
    TCH = opt.get('touch', 0)
    if TCH and main:
        o = []; srd_from(o, SRD_W2, 28, 0, 131072)
        for t in o: A(t)
        A(f"s_sub_u32 s6, s5, {(opt.get('new', 32) + 8) // 8 * NW + 16}")
        A("s_lshl_b32 s7, s6, 13")
        A("s_cmp_lt_u32 s6, 16")
        A("s_cselect_b32 s7, s7, 0x7fff0000")
        pre.append(VM(f"buffer_load_dword v255, v10, {sr(SRD_W2)}, s7 offen"))
        if TCH > 1:
            A(f"s_sub_u32 s6, s6, 16")
            A("s_lshl_b32 s7, s6, 13")
            A("s_cmp_lt_u32 s6, 16")
            A("s_cselect_b32 s7, s7, 0x7fff0000")
            pre.append(VM(f"buffer_load_dword v255, v10, {sr(SRD_W1)}, s7 offen"))
    for c in range(NPRE): pre += dma(c)
    if MGD and main:
        for t in MGD: A(t)
    img_addrs(A, NL, RPW, HIMG, VHW, VH)
    A("v_lshrrev_b32 v5, 2, v3")
    A("v_and_b32 v6, 3, v3")
    A("v_and_b32 v7, 1, v4")
    if NW == 4:
        A("v_lshlrev_b32 v7, 2, v7"); A("v_and_b32 v8, 2, v5"); A("v_or_b32 v7, v7, v8")
    else:
        A("v_lshlrev_b32 v7, 1, v7")
    A("v_lshl_add_u32 v8, v4, 3, v5")
    A(f"v_lshlrev_b32 v8, {RS.bit_length()-1}, v8")
    A(f"v_add_u32 v8, s{S_M0}, v8")
    if main:
        A("v_and_b32 v9, 1, v6"); A("v_lshl_add_u32 v8, v9, 3, v8")
        A("v_lshrrev_b32 v6, 1, v6")
    A("v_xor_b32 v6, v6, v7")
    for f in range(NF):
        if main:
            A(f"v_xor_b32 v9, {2*f}, v6"); A(f"v_lshl_add_u32 v{VTR+f}, v9, 4, v8")
        elif f % 2 == 0:
            A(f"v_xor_b32 v9, {2*f}, v6"); A(f"v_lshl_add_u32 v{VTR+f}, v9, 4, v8")
        else:
            A(f"v_add_u32 v{VTR+f}, 8, v{VTR+f-1}")
    o = []
    if main:
        A("v_lshrrev_b32 v5, 3, v2")
        A("v_and_b32 v6, 7, v2")
        A("v_lshrrev_b32 v7, 1, v5")
        A("v_xor_b32 v6, v6, v7")
        A("v_and_b32 v7, 4, v5")
        A("v_add_u32 v5, v5, v7")
        A(f"s_mul_i32 s6, s{S_W}, {CW*512}")
        A("v_lshl_add_u32 v5, v5, 9, s6")
        A(f"v_lshl_add_u32 v{VWK}, v6, 4, v5")
        A("v_xor_b32 v6, 4, v6")
        A(f"v_lshl_add_u32 v{VWK+1}, v6, 4, v5")
        A(f"v_add_u32 v{VWK+1}, 0x{16*512-1024:x}, v{VWK+1}")
        if NW == 4:
            A(f"v_mov_b32 v{VWK+2}, v{VWK}")
            A(f"v_mov_b32 v{VWK+3}, v{VWK+1}")
        A(f"s_lshr_b32 s7, s{S_ROT}, 1")
        for tp in range(4):
            A(f"s_xor_b32 s6, s7, {tp}")
            A(f"s_lshl_b32 s{SK2+2*tp}, s6, 7")
            A(f"s_add_u32 s{SK2+2*tp+1}, s{SK2+2*tp}, {(4 if NW == 8 else 32)*512}")
        A(f"s_and_b32 s6, s{S_ROT}, 1"); A("s_lshl_b32 s6, s6, 2")
        A("v_lshrrev_b32 v5, 1, v3")
        A("v_xor_b32 v5, v5, v4")
        A("v_xor_b32 v5, s6, v5")
        A(f"v_lshl_add_u32 v6, v3, 7, s{S_M0}")
        A(f"v_lshl_add_u32 v{VK}, v5, 4, v6")
        A(f"v_xor_b32 v{VK+1}, 64, v{VK}")
        A(f"s_mul_i32 s6, s{S_W}, {NF//2}")
        A(f"s_xor_b32 s6, s6, s{S_ROT}")
        A("s_lshl_b32 s6, s6, 10")
        A(f"s_add_u32 s6, s6, 0x{QIMG:x}")
        A("v_lshrrev_b32 v5, 1, v4"); A("v_and_b32 v6, 1, v4")
        A("v_lshl_add_u32 v5, v5, 8, s6")
        A("v_lshl_add_u32 v5, v6, 3, v5")
        A(f"v_lshl_add_u32 v{VQW}, v3, 4, v5")
        A(f"v_xor_b32 v{VQW+1}, 0x400, v{VQW}")
        A(f"v_add_u32 v{VQ}, 0x{QIMG:x}, v{VL16}")
        srd_from(o, SRD_W2, 26 if opt.get('w2same') else 28, 0, 131072)
        srd_from(o, SRD_O, 38, QF_OFF, QF_BYTES if not MGD else "s15")
        srd_from(o, SRD_H, 38, H_OFF, NB16 * 8192 if not MGD else "s15")
        A(f"s_mul_i32 s6, s4, {NRB*8192}" if not MGD else "s_mov_b32 s6, s14")
        A(f"s_mul_i32 s7, s{S_W}, {NF//2*1024}")
        A(f"s_add_u32 s{SO}, s6, s7")
        for b in range(1, NRB): A(f"s_add_u32 s{SO+b}, s{SO}, {b*8192}")
        qs = struct.unpack('<I', struct.pack('<f', math.log2(math.e) / 16))[0]
        A(f"s_mov_b32 s{S_SC}, 0x{qs:x}"); A(f"s_mov_b32 s{S_SC+1}, 0x{qs:x}")
        A(f"s_mov_b32 s{S_EPS}, 0x3727c5ac"); A(f"s_mov_b32 s{S_R256}, 0x3b800000"); A(f"s_mov_b32 s{S_MASK}, 0xffff0000")
    else:
        srd_from(o, SRD_O, 38, WF_OFF, 262144)
        A("s_lshr_b32 s6, s4, 2"); A("s_lshl_b32 s6, s6, 17")
        A("s_and_b32 s7, s4, 3"); A("s_lshl_b32 s7, s7, 12")
        A("s_add_u32 s6, s6, s7")
        A(f"s_mul_i32 s7, s{S_W}, {NF//2*16384}")
        A(f"s_add_u32 s{SO}, s6, s7")
        A(f"s_add_u32 s{SO+1}, s{SO}, 16384")
    for t in o: A(t)
    pre += stamp()
    rest = [x for c in range(NPRE, min(RC, NCH)) for x in [dma(c)]]
    def more(force=False):
        if rest and (force or not opt.get('late')): pre.extend(rest.pop(0))
    if main:
        n0 = len(pre)
        ln_code(pre, NL, HP, LN0, VHW, opt, more, stamp)
        if opt.get('pace'):
            p0, pc = opt['pace']
            ln = pre[n0:]; del pre[n0:]
            flat = []
            for q in rest: flat += [q[:3]] + [[x] for x in q[3:]]
            rest.clear()
            for k, x in enumerate(ln):
                pre.append(x)
                if k >= p0 and (k - p0) % pc == 0 and flat and x.t and not x.t.startswith(('v_permlane', 'v_add_f32_dpp', 'v_mov_b')): pre.extend(flat.pop(0))
            for q in flat: pre.extend(q)
            if opt.get('verbose'): print("LN len", len(ln), "left", len(flat))
    else:
        for j in range(NL):
            pre.append(LD(f"ds_write_b128 v{VHW+j}, {vr(HP+4*j)}", tag='hw', needs=[('x', j)]))
    pre += stamp()
    while rest and opt.get('late', 0) < 2: more(True)
    st = Stream(); st.pre = pre
    wf, bf = [], []
    wreg = lambda k: WR + (k % RW) * 4
    breg = lambda k: BR + (k % RB) * 4
    def use(lst, k, n):
        lst[k].setdefault('first', n); lst[k]['last'] = n
    def mf(acc, wk, bk, first):
        a, b = (wreg(wk), breg(bk)) if main else (breg(bk), wreg(wk))
        n = st.mfma(f"{MF32} {vr(acc)}, {vr(a)}, {vr(b)}, {0 if first else vr(acc)}", needs=[('w', wk), ('b', bk)])
        use(wf, wk, n); use(bf, bk, n); return n
    acc1 = lambda f, rb: ACC1 + (f * NRB + rb) * 4
    acc2 = lambda f, rb: ACC2 + (rb * NF + f) * 4
    done1, done2 = {}, {}
    for t in range(8):
        sl = (t % RC) * CH
        b0 = len(bf)
        for rb in range(NRB):
            bf.append(dict(reads=[f"ds_read_b128 {vr(breg(b0+rb))}, v{VH + (t & 1)} offset:{rb*8192 + t*1024}"], ph=0))
        for f in range(NF):
            k = len(wf); r = wreg(k)
            wf.append(dict(reads=[f"ds_read_b64_tr_b16 v[{r+2*hh}:{r+2*hh+1}], v{VTR+f} offset:{sl + hh*4*RS}" for hh in range(2)], chunk=t))
            for rb in range(NRB): done1[(f, rb)] = mf(acc1(f, rb), k, b0 + rb, t == 0)
    n1 = st.n()
    if main:
        for tp in range(4):
            b0 = len(bf)
            for e in range(2):
                for rb in range(NRB):
                    bf.append(dict(reads=[f"ds_read_b128 {vr(breg(b0+e*NRB+rb))}, v{VQ} offset:{rb*8192 + (2*tp+e)*1024}"], ph=1))
            for bh in range(2):
                c = 8 + 2 * tp + bh; sl = (c % RC) * CH
                for bl in range(NF // 2):
                    b = bh * (NF // 2) + bl
                    for e in range(2):
                        k = len(wf)
                        wf.append(dict(reads=[f"ds_read_b128 {vr(wreg(k))}, v{VK+e} offset:{sl + bl*2048}"], chunk=c))
                        for rb in range(NRB): done2[(b, rb)] = mf(acc2(b, rb), k, b0 + e * NRB + rb, tp == 0 and e == 0)
    nm = st.n()
    LAG = opt.get('lag', 3); LA = opt.get('la', 2 * NRB)
    def place_w(lo, hi, g):
        for k in range(lo, hi):
            d = wf[k]
            g = max(g, d['first'] - LA - 1, wf[k - RW]['last'] if k >= RW else -1)
            for i, r in enumerate(d['reads']):
                st.put(g, LD(r, tag=('w', k) if i == len(d['reads']) - 1 else None, needs=[('c', d['chunk'])]))
            d['g'] = g
            if k % (2 * NF) == 0:
                for s in stamp(1): st.put(g, s)
        return g
    def place_b(lo, hi, g):
        for k in range(lo, hi):
            d = bf[k]
            g = max(g, d['first'] - LA - 1, bf[k - RB]['last'] if k >= RB else -1)
            st.put(g, LD(d['reads'][0], tag=('b', k)))
        return g
    nw1, nb1 = 8 * NF, 8 * NRB
    npw = min(opt.get('npw', NF), RW)
    place_w(0, npw, -1)
    st.put(-1, W('hw')); st.put(-1, V("s_barrier"))
    for s in stamp(): st.put(-1, s)
    place_b(0, nb1, -1)
    gg = -1
    while rest:
        for x in rest.pop(0): st.put(gg, x)
        gg += opt.get('lpace', 2)
    g = place_w(npw, nw1, -1)
    if main:
        items = sorted(done1.items(), key=lambda kv: kv[1])
        for (f, rb), n in items:
            a = acc1(f, rb)
            q = [V(f"v_cvt_pk_bf16_f32 v{a}, v{a}, v{a+1}"), V(f"v_cvt_pk_bf16_f32 v{a+1}, v{a+2}, v{a+3}"),
                 LD(f"ds_write_b64 v{VQW + (f >> 1)}, v[{a}:{a+1}] offset:{rb*8192 + (f & 1)*512}", tag='qw')]
            for x in q: st.put(min(n + LAG, n1 - 1), x)
        k = nw1
        while k < len(wf) and k < nw1 + opt.get('npw2', NF) and wf[k - RW]['last'] <= n1 - 1: k += 1
        place_w(nw1, k, max(g, n1 - 1))
        for s in stamp(): st.put(n1 - 1, s)
        st.put(n1 - 1, W('qw')); st.put(n1 - 1, V("s_barrier"))
        for s in stamp(): st.put(n1 - 1, s)
        place_b(nb1, len(bf), n1 - 1)
        place_w(k, len(wf), n1 - 1)
    lastw = {}
    for k, d in enumerate(wf): lastw[d['chunk']] = k
    gl = 0
    for c in range(RC, NCH):
        k = lastw[c - RC]
        gl = wf[k]['first']
        firstk = min(kk for kk, d in enumerate(wf) if d['chunk'] == c)
        assert gl < wf[firstk]['g'], (c, gl, wf[firstk]['g'])
        dq = dma(c, [('w', k)])
        for i, x in enumerate(dq): st.put(min(gl + max(0, i - 2) * opt.get('dsp', 0), wf[firstk]['g'] - 1, nm - 1) if opt.get('dsp') else gl, x)
        assert not opt.get('dsp') or (NPC - 1) * opt['dsp'] < wf[min(k + NF, len(wf) - 1)]['first'] - gl or c == NCH - 1
    if main:
        hs = [VM(f"buffer_store_dwordx4 {vr(HP+4*j)}, v{VL16}, {sr(SRD_H)}, {xso(j)}{stx}") for j in range(NL)]
        st.fill(hs, gl + 1)
        items = sorted(((max(done2[(2 * u, rb)], done2[(2 * u + 1, rb)]), u, rb) for u in range(NF // 2) for rb in range(NRB)))
        for n, u, rb in items:
            a = acc2(2 * u, rb)
            if n + LAG < nm - 1 or opt.get('nopk', 0) >= 2:
                q = [V(f"v_mul_f32 v{a+r}, s{S_SC}, v{a+r}") for r in range(8)]
            else:
                q = [V(f"v_pk_mul_f32 {vr(a+2*r,2)}, {vr(a+2*r,2)}, {sr(S_SC,2)}") for r in range(4)]
            q += [V(f"v_cvt_pk_bf16_f32 v{a+r}, v{a+2*r}, v{a+2*r+1}") for r in range(4)]
            q.append(VM(f"buffer_store_dwordx4 {vr(a)}, v{VL16}, {sr(SRD_O)}, s{SO+rb} offen offset:{u*1024}{opt.get('stq', stx)}"))
            for x in q: st.put(min(n + LAG, nm - 1), x)
    else:
        items = sorted((max(done1[(f, 2 * tl)], done1[(f, 2 * tl + 1)]), f, tl) for f in range(NF) for tl in range(2))
        for n, f, tl in items:
            a = acc1(f, 2 * tl)
            q = [V(f"v_cvt_pk_bf16_f32 v{a+r}, v{a+2*r}, v{a+2*r+1}") for r in range(4)]
            q.append(VM(f"buffer_store_dwordx4 {vr(a)}, v{VL16}, {sr(SRD_O)}, s{SO + (f >> 1)} offen offset:{tl*2048 + (f & 1)*1024}{opt.get('stw', stx)}"))
            for x in q: st.put(min(n + LAG, nm - 1), x)
    for s in stamp(): st.put(nm - 1, s)
    em = Emitter()
    o = hazard.fix(em.emit(st.seq()))
    if opt.get('twice') and main:
        i = o.index("s_barrier"); o = o[:i] + ["s_mov_b32 s13, 0", "LG_again:"] + o[i:] + ["s_waitcnt vmcnt(0)", "s_xor_b32 s13, s13, 1", "s_cbranch_scc1 LG_again"]
    if opt.get('nodma2') and main:
        i = o.index("s_barrier"); o = o[:i] + [x for x in o[i:] if not x.endswith(' lds')]
    if opt.get('verbose'): print(role, st.stats(), "regs", p, "RC", RC, "lines", len(o))
    return o


def edge_prog(opt):
    NW = opt.get('nw', 8); NEW = opt.get('new', 32); ECAP = 163840 // NEW; CAPB = 4096 // NEW
    NTH = 64 * NW
    NQ = E // NEW // 4
    NR = (NQ + NTH - 1) // NTH; LASTN = NQ - (NR - 1) * NTH
    o = []; A = o.append
    L_CNT = 65536
    D0, S0, B0, C0 = 16, 16 + 4 * NR, 16 + 8 * NR, 16 + 12 * NR
    SRD_D, SRD_S, SRD_E, SRD_C = 40, 44, 48, 52
    A(f"s_mul_i32 s6, s4, {NQ * 16}")
    A("v_lshlrev_b32 v5, 4, v0")
    A("v_lshlrev_b32 v6, 2, v2")
    A(f"v_add_u32 v6, 0x{L_CNT:x}, v6")
    A("v_mov_b32 v7, 0")
    A("ds_write_b32 v6, v7")
    for i in range(NR): A(f"s_mov_b32 s{66+i}, {i * NTH * 16}")
    A("s_waitcnt lgkmcnt(0)")
    srd_from(o, SRD_D, 20, 0, NQ * 16, 6)
    srd_from(o, SRD_S, 18, 0, NQ * 16, 6)
    for i in range(NR): A(f"buffer_load_dwordx4 {vr(D0+4*i)}, v5, {sr(SRD_D)}, s{66+i} offen")
    for i in range(NR): A(f"buffer_load_dwordx4 {vr(S0+4*i)}, v5, {sr(SRD_S)}, s{66+i} offen")
    for t in opt.get('mg') or []: A(t)
    srd_from(o, SRD_E, 38, EDGE_OFF, EDGE_BYTES)
    srd_from(o, SRD_C, 38, ECNT_OFF, NBK * NEW * 4)
    A(f"s_mov_b32 s9, {BMAGIC}")
    A(f"s_mov_b32 s10, {-BN & 0xffffffff}")
    A(f"s_mov_b32 s11, 0x{L_CNT:x}")
    A("v_mov_b32 v7, 1")
    A(f"v_cmp_gt_u32 vcc, 0x{LASTN:x}, v0")
    A("s_mov_b64 s[12:13], vcc")
    A("s_barrier")
    for i in range(NR):
        A(f"s_waitcnt vmcnt({2*NR-1-i})")
        if i == NR - 1: A("s_mov_b64 exec, s[12:13]")
        for k in range(4):
            d, b, c = D0 + 4 * i + k, B0 + 4 * i + k, C0 + 4 * i + k
            A(f"v_mul_u32_u24 v{b}, s9, v{d}")
            A(f"v_lshrrev_b32 v{b}, {BSHIFT}, v{b}")
            A(f"v_lshl_add_u32 v{c}, v{b}, 2, s11")
            A(f"ds_add_rtn_u32 v{c}, v{c}, v7")
            A(f"v_mad_i32_i24 v{d}, v{b}, s10, v{d}")
    A("s_mov_b64 exec, -1")
    for i in range(NR):
        A(f"s_waitcnt vmcnt({NR-1-i}) lgkmcnt({min(15, 4*(NR-1 if i == NR-1 else NR-2))})")
        if i == NR - 1: A("s_mov_b64 exec, s[12:13]")
        for k in range(4):
            d, s, b, c = D0 + 4 * i + k, S0 + 4 * i + k, B0 + 4 * i + k, C0 + 4 * i + k
            A(f"v_and_b32 v8, 0x{CAPB-1:x}, v{c}")
            A(f"v_lshl_or_b32 v{s}, v{d}, 18, v{s}")
            A(f"v_lshlrev_b32 v8, 2, v8")
            A(f"v_lshl_add_u32 v8, v{b}, {(CAPB*4).bit_length()-1}, v8")
            A(f"ds_write_b32 v8, v{s}")
    A("s_mov_b64 exec, -1")
    A("s_waitcnt lgkmcnt(0)")
    A("s_barrier")
    NC = 64 * CAPB * 4 // (NTH * 16)
    BPI = 1024 // (CAPB * 4)
    R0 = C0 + 4 * NR
    if opt.get('fuse') and not opt.get('mg'):
        import gen_f
        FS = gen_f.fstr(opt); assert NEW * 64 == gen_f.NFLAG
        srd_from(o, SRD_D, 38, gen_f.FLAG_OFF, gen_f.NFLAG * FS)
        A(f"v_mul_u32_u24 v13, {FS}, v2" if FS <= 64 else f"v_lshlrev_b32 v13, {FS.bit_length()-1}, v2")
        A("v_mov_b32 v14, 0"); A("v_mov_b32 v15, 0")
        A(f"s_mul_i32 s6, s4, {64 * FS}")
        A(f"s_cmp_eq_u32 s{S_W}, 1")
        A("s_cselect_b32 s6, s6, 0x7fff0000")
        A(f"buffer_store_dwordx2 v[14:15], v13, {sr(SRD_D)}, s6 offen sc1")
    A("ds_read_b32 v8, v6")
    A(f"s_mul_i32 s6, s{S_W}, {NC*1024}")
    A("v_lshlrev_b32 v10, 4, v2")
    A("v_add_u32 v9, s6, v10")
    for k in range(NC): A(f"ds_read_b128 {vr(R0+4*k)}, v9 offset:{k*1024}")
    if BPI > 1:
        assert BPI == 2
        A("v_lshrrev_b32 v11, 5, v2")
        A(f"v_mul_u32_u24 v11, 0x{NEW*ECAP*4 - 512:x}, v11")
        A("v_add_u32 v10, v10, v11")
    A(f"s_mul_i32 s6, s{S_W}, {NC*BPI*NEW*ECAP*4}")
    A(f"s_mul_i32 s7, s4, {ECAP*4}")
    A("s_add_u32 s6, s6, s7")
    A(f"v_lshlrev_b32 v9, {(NEW*4).bit_length()-1}, v2")
    A("s_lshl_b32 s8, s4, 2")
    A(f"s_cmp_eq_u32 s{S_W}, 0")
    A("s_cselect_b32 s8, s8, 0x7fff0000")
    A(f"s_waitcnt lgkmcnt({min(15, NC)})")
    A(f"buffer_store_dword v8, v9, {sr(SRD_C)}, s8 offen{opt.get('ste', '')}")
    A(f"v_cmp_lt_u32 vcc, 0x{CAPB:x}, v8")
    A("s_cbranch_vccnz L1_eslow")
    for k in range(NC):
        A(f"s_waitcnt lgkmcnt({min(15, NC-1-k)})")
        A(f"buffer_store_dwordx4 {vr(R0+4*k)}, v10, {sr(SRD_E)}, s6 offen{opt.get('ste', '')}")
        A(f"s_add_u32 s6, s6, {BPI*NEW*ECAP*4}")
    A("s_branch L1_fin")
    A("L1_eslow:")
    A(f"s_mov_b32 s9, {NEW*ECAP*4}")
    for i in range(NR):
        for k in range(4):
            b, c = B0 + 4 * i + k, C0 + 4 * i + k
            A(f"v_mul_u32_u24 v{b}, s9, v{b}")
            A(f"v_lshl_add_u32 v{b}, v{c}, 2, v{b}")
    for i in range(NR):
        if i == NR - 1: A("s_mov_b64 exec, s[12:13]")
        for k in range(4):
            A(f"buffer_store_dword v{S0 + 4 * i + k}, v{B0 + 4 * i + k}, {sr(SRD_E)}, s7 offen{opt.get('ste', '')}")
    A("s_mov_b64 exec, -1")
    return hazard.fix(o)


def gen_k1(opt=None):
    opt = opt or {}
    NW = opt.get('nw', 8); NRB = opt.get('nrb', 3); NEW = opt.get('new', 32)
    NMAIN = (NB16 + NRB - 1) // NRB
    o = []
    A = o.append
    A("s_getpc_b64 s[56:57]")
    A("s_load_dwordx16 s[16:31], s[0:1], 0")
    A("s_load_dwordx8 s[32:39], s[0:1], 64")
    if opt.get('timing'):
        A("s_memtime s[100:101]")
    A(f"s_cmp_ge_u32 s2, {opt.get('nact', NMAIN) + NEW + 8}")
    A("s_cbranch_scc1 L1_end")
    A("v_lshrrev_b32 v1, 6, v0")
    A("v_and_b32 v2, 63, v0")
    A("s_lshr_b32 s3, s2, 3")
    A(f"v_readfirstlane_b32 s{S_W}, v1")
    A(f"s_mul_i32 s5, s3, {NW}")
    A(f"s_add_u32 s5, s5, s{S_W}")
    if opt.get('cpf', 1):
        A("s_and_b32 s56, s56, 0xffffff00")
        A(f"s_mov_b32 s58, {opt.get('code_end', 'L1_end')}-k1_kernel")
        A("s_mov_b32 s59, 0x00020000")
        A("s_and_b32 s6, s5, 15")
        A("s_lshl_b32 s6, s6, 13")
        A("v_lshlrev_b32 v10, 7, v2")
        A("buffer_load_dword v255, v10, s[56:59], s6 offen")
    A("v_and_b32 v3, 15, v2")
    A("v_lshrrev_b32 v4, 4, v2")
    A(f"s_and_b32 s{S_ROT}, s3, {opt.get('rotm', 7)}")
    A(f"s_sub_u32 s4, s2, {NEW + 8}")
    A(f"s_cmp_lt_u32 s2, {NEW + 8}")
    A("s_cbranch_scc1 L1_notq")
    A(f"s_mov_b32 s{S_ROLE}, 0")
    o += gemm_prog('q', opt)
    A("s_branch L1_fin")
    A("L1_notq:")
    A(f"s_sub_u32 s4, s2, {NEW}")
    A(f"s_cmp_lt_u32 s2, {NEW}")
    A("s_cbranch_scc1 L1_edge")
    A(f"s_mov_b32 s{S_ROLE}, 1")
    o += gemm_prog('w', opt)
    A("s_branch L1_fin")
    A("L1_edge:")
    A(f"s_mov_b32 s{S_ROLE}, 4")
    A("s_mov_b32 s4, s2")
    o += edge_prog(opt)
    A("L1_fin:")
    if opt.get('timing'):
        A("s_memtime s[4:5]")
        A("s_waitcnt vmcnt(0)")
        A("s_memtime s[6:7]")
        A("s_waitcnt lgkmcnt(0)")
        for k in range(8):
            A(f"v_writelane_b32 v0, s{16+2*k}, {k}")
        A("v_writelane_b32 v0, s4, 8")
        A("v_writelane_b32 v0, s6, 9")
        A(f"v_subrev_u32 v0, s100, v0")
        A(f"v_writelane_b32 v0, s{S_ROLE}, 63")
        srd_from(o, 4, 34, 0, 1 << 20)
        A(f"s_mul_i32 s8, s2, {NW}")
        A(f"s_add_u32 s8, s8, s{S_W}")
        A(f"s_lshl_b32 s8, s8, 8")
        A(f"v_mbcnt_lo_u32_b32 v1, -1, 0")
        A(f"v_mbcnt_hi_u32_b32 v1, -1, v1")
        A(f"v_lshlrev_b32 v1, 2, v1")
        A(f"buffer_store_dword v0, v1, s[4:7], s8 offen")
    A("L1_end:")
    return "\n".join(o)


def kernel_desc(opt=None):
    opt = opt or {}
    NW = opt.get('nw', 8); NRB = opt.get('nrb', 3); NEW = opt.get('new', 32)
    return dict(name="k1_kernel", body=gen_k1(opt), vgpr=256, accum=256, grid=(NB16 + NRB - 1) // NRB + NEW + 8, block=64 * NW, lds=K1_LDS)

if __name__ == "__main__":
    import sys, json
    t = gen_k1(dict(json.loads(sys.argv[1]) if len(sys.argv) > 1 else {}, verbose=1))
    e = hazard.check(t, "k1")
    print("\n".join(e[:30])); print(len(e), "hazards;", len(t.split("\n")), "lines")
    open('k1n.s', 'w').write(t)
```

```python
from layout import *

def Q(qb, ds): return (qb * 8 + ds) * 4
S_BASE = [128, 144]
def S(h, qb): return S_BASE[h] + qb * 4
P_BASE = [160, 176]
def P(p, qb): return P_BASE[p] + qb * 4
def NEGM(qb): return 192 + qb * 4
RING = 4
def F(i): return 208 + (i % RING) * 4
LA = [224 + i for i in range(4)]
LB = [228 + i for i in range(4)]
ET = [232 + i for i in range(8)]
VK = 240
VTR = [249, 250]
VDMA = 241
VT0, VT1 = 242, 243
M = [244 + i for i in range(4)]
VLANE16 = 248
KB = [VK, 251, 252]
VSP = 253
RD = 254
def O(fb, qb): return (fb * 4 + qb) * 4

SRD_Q, SRD_K, SRD_OP, SRD_ML = 8, 12, 20, 24
S_OFF, S_M0, S_CNT, S_THR, S_MASK, S_WAVE, S_SITE = 28, 30, 31, 32, 33, 34, 36
S_PH, S_STEP, S_NW, S_NL, S_RO = 100, 101, 39, 35, 49
STEP = ['0x4000']


def vr(b, n=4): return f"v[{b}:{b+n-1}]"
def ar(b, n=4): return f"a[{b}:{b+n-1}]"


class Seg:
    def __init__(self):
        self.mf = []
        self.gap = []
        self.pre = []

    def add_mfma(self, t):
        self.mf.append(t)
        self.gap.append([])

    def used(self, g):
        return sum(c for c, _ in self.gap[g])

    def put(self, g, text, cost=1):
        if g < 0:
            self.pre.append((cost, text))
        else:
            self.gap[g].append((cost, text))

    def fill(self, queue, g0, g1, cap=2):
        g = g0
        for cost, text in queue:
            while g < g1 and self.used(g) + cost > cap:
                g += 1
            self.gap[g].append((cost, text))
        return g

    def text(self):
        o = [t for _, t in self.pre]
        for m, gp in zip(self.mf, self.gap):
            o.append(m)
            o += [t for _, t in gp]
        return o


def foff(kb, c): return (c >> 1) * 4096 + kb * 2048 + (c & 1) * 512

def kread(off):
    return [lambda f: f"ds_read_b128 {vr(f)}, v{VK} offset:{off}"]

def vread(off, fb):
    return [lambda f, kb=kb: f"ds_read_b64_tr_b16 v[{f+2*kb}:{f+2*kb+1}], v{VTR[fb & 1]} offset:{off + foff(kb, fb >> 1)}" for kb in range(2)]


def qk_block(h, off, cinit):
    fr = []
    for ds in range(8):
        ms = []
        for qb in range(4):
            c = cinit(qb) if ds == 0 else vr(S(h, qb))
            ms.append(lambda f, qb=qb, ds=ds, c=c: f"v_mfma_f32_16x16x32_bf16 {vr(S(h,qb))}, {vr(f)}, {vr(Q(qb,ds))}, {c}")
        fr.append((kread(off + foff(h, ds)), ms))
    return fr


TR = [0]
def pvm(acc, f, pp):
    a, b = (pp, f) if TR[0] else (f, pp)
    return f"v_mfma_f32_16x16x32_bf16 {ar(acc)}, {vr(a)}, {vr(b)}, {ar(acc)}"


def pv_block(p, off, fb0):
    fr = []
    for fb in range(fb0, fb0 + 8):
        ms = []
        for qb in range(4):
            ms.append(lambda f, qb=qb, fb=fb: pvm(O(fb, qb), f, P(p, qb)))
        fr.append((vread(off, fb), ms))
    return fr


def build_seg(frags, next_reads):
    sg = Seg()
    n = len(frags)
    assert n % RING == 0
    rds = [r for r, _ in frags] + list(next_reads)
    for i, (_, ms) in enumerate(frags):
        for m in ms:
            sg.add_mfma(m(F(i)))
    issued = []
    for i in range(RING): issued += [i] * len(rds[i])
    def wait(g, i):
        last = max(k for k, x in enumerate(issued) if x == i)
        assert issued.count(i) == len(rds[i])
        sg.put(g, f"s_waitcnt lgkmcnt({len(issued) - 1 - last})")
    wait(-1, 0)
    for i in range(n):
        g = 4 * i + 3
        nxt = i + RING
        late = []
        if nxt < len(rds):
            r = rds[nxt]
            now = r[:1] if i + 1 < n else r
            late = r[len(now):]
            for x in now:
                sg.put(g, x(F(nxt))); issued.append(nxt)
        if i + 1 < n: wait(g, i + 1)
        for x in late:
            sg.put(g + 1, x(F(nxt))); issued.append(nxt)
    return sg


def softmax_queue(h, pn, site):
    lin, lout = (LA, LB) if h == 0 else (LB, LA)
    if callable(pn):
        pf = pn; P = lambda _, qb: pf(qb)
    else:
        P = globals()['P']
    q = []
    for qb in range(4):
        e = ET[(qb % 2) * 4:(qb % 2) * 4 + 4]
        s = S(h, qb)
        q.append((2, f"v_exp_f32 v{e[0]}, v{s}"))
        q.append((2, f"v_exp_f32 v{e[1]}, v{s+1}"))
        q.append((2, f"v_exp_f32 v{e[2]}, v{s+2}"))
        q.append((1, f"v_add_f32 v{lout[qb]}, v{lin[qb]}, v{e[0]}"))
        q.append((1, f"v_cvt_pk_bf16_f32 v{P(pn,qb)+2*h}, v{e[0]}, v{e[1]}"))
        q.append((2, f"v_exp_f32 v{e[3]}, v{s+3}"))
        q.append((1, f"v_add_f32 v{lout[qb]}, v{lout[qb]}, v{e[1]}"))
        q.append((1, f"v_add_f32 v{lout[qb]}, v{lout[qb]}, v{e[2]}"))
        q.append((1, f"v_add_f32 v{lout[qb]}, v{lout[qb]}, v{e[3]}"))
        q.append((1, f"v_cvt_pk_bf16_f32 v{P(pn,qb)+2*h+1}, v{e[2]}, v{e[3]}"))
    q.append((1, f"v_max3_f32 v{VT0}, v{lout[0]}, v{lout[1]}, v{lout[2]}"))
    q.append((1, f"v_max_f32 v{VT0}, v{VT0}, v{lout[3]}"))
    q.append((1, f"v_cmp_lt_f32 vcc, s{S_THR}, v{VT0}"))
    q.append((1, f"s_cbranch_vccnz L2_rare_site{site}\nL2_ret{site}:"))
    return q


def body(p, kind, sites, opt):
    B = p * 16384
    Bn = (1 - p) * 16384
    negm = lambda qb: vr(NEGM(qb))
    fr = pv_block(p, B, 0)
    if kind != 'tail1':
        fr += qk_block(1, Bn, negm)
    fr += pv_block(p, B, 8)
    if kind == 'loop':
        fr += qk_block(0, B, negm)
    nxt = [vread(Bn, i) for i in range(RING)] if kind != 'tail1' else []
    sg = build_seg(fr, nxt)
    if kind == 'loop':
        gb = opt.get('gbar', 81)
        gd = opt.get('gdma', [0, 1, 2, 5, 6])
        if not opt.get('nobar'):
            sg.put(gb, "s_waitcnt vmcnt(%d)" % sum(1 for x in gd[1:] if x < gb))
            sg.put(gb, "s_barrier")
        assert all(x != gb for x in gd) and gb < 83
        sg.put(gd[0], f"s_mov_b32 m0, s{S_M0}")
        for k in range(4):
            sg.put(gd[k + 1], f"buffer_load_dwordx4 v{VDMA}, s[{SRD_K}:{SRD_K+3}], s{S_OFF} offen offset:{k*1024}{opt.get('dl','')} lds")
        sg.put(125, f"s_add_u32 s{S_OFF}, s{S_OFF}, {STEP[0]}")
        sg.put(125, f"s_add_u32 s{S_M0}, s{S_M0}, 0x4000")
        sg.put(122, f"s_sub_u32 s{S_CNT}, s{S_CNT}, 1")
        sg.put(126, f"s_and_b32 s{S_M0}, s{S_M0}, 0x1ffff")
        sg.put(126, f"s_cmp_eq_u32 s{S_CNT}, 0")
        if p == 0:
            sg.put(70, f"v_add_u32 v{VK}, 0x8000, v{VK}")
            sg.put(70, f"v_and_b32 v{VK}, 0x1ffff, v{VK}")
    if kind == 'tail2':
        sg.put(2, "s_waitcnt vmcnt(0)")
    if p == 1 and kind != 'tail1':
        g = 84 if kind == 'loop' else 81
        sg.put(g, f"v_add_u32 v{VTR[0]}, 0x8000, v{VTR[0]}")
        sg.put(g, f"v_and_b32 v{VTR[0]}, 0x1ffff, v{VTR[0]}")
        sg.put(g + 1, f"v_xor_b32 v{VTR[1]}, 32, v{VTR[0]}")
    if kind != 'tail1' and opt.get('valu', 1):
        def flt(q):
            if opt.get('nochk'): q = q[:-4] + [(0, q[-1][1].split("\n")[1])]
            if opt.get('noexp'): q = [(1, x.replace('v_exp_f32', 'v_mov_b32')) if 'v_exp' in x else (c, x) for c, x in q]
            return q
        g = sg.fill(flt(softmax_queue(0, 1 - p, sites[0])), opt.get('g0', 8), 71)
        if opt.get('verbose'): print(kind, p, "sm0 end", g)
        last = 124 if kind == 'loop' else len(sg.mf) - 1
        g = sg.fill(flt(softmax_queue(1, 1 - p, sites[1])), 72, last)
        if opt.get('verbose'): print(kind, p, "sm1 end", g, "over", [(i, sg.used(i)) for i in range(len(sg.mf)) if sg.used(i) > 2])
    return sg


def rare_code(p, h, sites, pt=None, live=None, spills=()):
    if pt is None:
        pt = lambda qb: P(1 - p, qb)
        live = [lambda qb: P(p, qb)]
    lin, lout = (LA, LB) if h == 0 else (LB, LA)
    o = []
    for st in sites:
        o.append(f"L2_rare_site{st}:")
        o.append(f"s_mov_b32 s{S_SITE}, {st}")
        o.append(f"s_branch L2_rare_{p}_{h}")
    o.append(f"L2_rare_{p}_{h}:")
    o.append("s_nop 15")
    o.append("s_nop 15")
    o.append("s_waitcnt lgkmcnt(0)")
    DL = ET[0:4]
    FF = ET[4:8]
    for qb in range(4):
        s = S(h, qb)
        d = DL[qb]
        o.append(f"v_log_f32 v{VT1}, v{lin[qb]}")
        o.append(f"v_max3_f32 v{d}, v{s}, v{s+1}, v{s+2}")
        o.append(f"v_max3_f32 v{d}, v{d}, v{s+3}, v{VT1}")
        o.append(f"v_mov_b32 v{VT1}, v{d}")
        o.append("s_nop 1")
        o.append(f"v_permlane32_swap_b32 v{d}, v{VT1}")
        o.append("s_nop 1")
        o.append(f"v_max_f32 v{d}, v{d}, v{VT1}")
        o.append(f"v_mov_b32 v{VT1}, v{d}")
        o.append("s_nop 1")
        o.append(f"v_permlane16_swap_b32 v{d}, v{VT1}")
        o.append("s_nop 1")
        o.append(f"v_max_f32 v{d}, v{d}, v{VT1}")
        o.append(f"v_ceil_f32 v{d}, v{d}")
        o.append(f"v_max_f32 v{d}, 0, v{d}")
        o.append(f"v_sub_f32 v{VT1}, 0, v{d}")
        o.append(f"v_exp_f32 v{FF[qb]}, v{VT1}")
        o.append("s_nop 1")
        o.append(f"v_mul_f32 v{lin[qb]}, v{lin[qb]}, v{FF[qb]}")
        o.append(f"v_add_f32 v{M[qb]}, v{M[qb]}, v{d}")
        for r in range(4):
            o.append(f"v_sub_f32 v{NEGM(qb)+r}, v{NEGM(qb)+r}, v{d}")
            o.append(f"v_sub_f32 v{S(0,qb)+r}, v{S(0,qb)+r}, v{d}")
            o.append(f"v_sub_f32 v{S(1,qb)+r}, v{S(1,qb)+r}, v{d}")
        regs = [f(qb) + r for f in live for r in range(4)] + ([] if h == 0 else [pt(qb) + r for r in range(2)])
        def scale(r):
            o.append(f"v_lshlrev_b32 v{VT0}, 16, v{r}")
            o.append(f"v_and_b32 v{VT1}, 0xffff0000, v{r}")
            o.append(f"v_mul_f32 v{VT0}, v{VT0}, v{FF[qb]}")
            o.append(f"v_mul_f32 v{VT1}, v{VT1}, v{FF[qb]}")
            o.append(f"v_cvt_pk_bf16_f32 v{r}, v{VT0}, v{VT1}")
        for r in regs: scale(r)
        for k in spills:
            for hh in range(2):
                off = k * 4096 + qb * 1024 + hh * 8
                o.append(f"ds_read_b64 v[{RD}:{RD+1}], v{VSP} offset:{off}")
                o.append("s_waitcnt lgkmcnt(0)")
                scale(RD); scale(RD + 1)
                o.append(f"ds_write_b64 v{VSP}, v[{RD}:{RD+1}] offset:{off}")
                o.append("s_waitcnt lgkmcnt(0)")
    for qb in range(4):
        s = S(h, qb)
        e = ET[0:4]
        for r in range(4):
            o.append(f"v_exp_f32 v{e[r]}, v{s+r}")
        o.append("s_nop 1")
        o.append(f"v_add_f32 v{lout[qb]}, v{lin[qb]}, v{e[0]}")
        for r in range(1, 4):
            o.append(f"v_add_f32 v{lout[qb]}, v{lout[qb]}, v{e[r]}")
        o.append(f"v_cvt_pk_bf16_f32 v{pt(qb)+2*h}, v{e[0]}, v{e[1]}")
        o.append(f"v_cvt_pk_bf16_f32 v{pt(qb)+2*h+1}, v{e[2]}, v{e[3]}")
    o.append("s_branch L2_rare_common")
    return o


def rare_common(all_sites):
    FF = ET[4:8]
    o = ["L2_rare_common:"]
    FT = [VT0, VT1, RD, RD + 1]
    for qb in range(4):
        if TR[0]:
            o.append(f"v_lshrrev_b32 v{ET[0]}, 4, v{VLANE16}")
            o.append(f"v_and_b32 v{ET[0]}, 0x30, v{ET[0]}")
            for r in range(4): o.append(f"ds_bpermute_b32 v{FT[r]}, v{ET[0]}, v{FF[qb]} offset:{4*r}")
            o.append("s_waitcnt lgkmcnt(0)")
        for fb in range(16):
            for r in range(4):
                a = O(fb, qb) + r
                t = ET[r]
                o.append(f"v_accvgpr_read_b32 v{t}, a{a}")
            for r in range(4):
                o.append(f"v_mul_f32 v{ET[r]}, v{ET[r]}, v{FT[r] if TR[0] else FF[qb]}")
            for r in range(4):
                o.append(f"v_accvgpr_write_b32 a{O(fb,qb)+r}, v{ET[r]}")
    o.append("s_nop 3")
    for st in all_sites[:-1]:
        o.append(f"s_cmp_eq_u32 s{S_SITE}, {st}")
        o.append(f"s_cbranch_scc1 L2_ret{st}")
    o.append(f"s_branch L2_ret{all_sites[-1]}")
    return o


def srd(o, d, off, nbytes, extra_sgpr=None):
    o.append(f"s_add_u32 s{d}, s4, 0x{off & 0xffffffff:x}")
    o.append(f"s_addc_u32 s{d+1}, s5, 0")
    if extra_sgpr is not None:
        o.append(f"s_add_u32 s{d}, s{d}, s{extra_sgpr}")
        o.append(f"s_addc_u32 s{d+1}, s{d+1}, 0")
    o.append(f"s_mov_b32 s{d+2}, 0x{nbytes:x}")
    o.append(f"s_mov_b32 s{d+3}, 0x00020000")


def epilogue(sg_tail, opt):
    conv = []
    for t in range(8):
        q = []
        for qb in range(4):
            st = (t * 4 + qb) * 4
            tmp = [128 + (qb % 2) * 8 + r for r in range(8)]
            for k in range(8):
                q.append((1, f"v_accvgpr_read_b32 v{tmp[k]}, a{O(2*t+k//4,qb)+k%4}"))
            for r in range(4):
                q.append((1, f"v_cvt_pk_bf16_f32 v{st+r}, v{tmp[2*r]}, v{tmp[2*r+1]}"))
            so = 40 + qb if t < 4 else 44 + qb
            q.append((1, f"buffer_store_dwordx4 {vr(st)}, v{VLANE16}, s[{SRD_OP}:{SRD_OP+3}], s{so} offen offset:{(t%4)*1024}{opt.get('st','')}"))
        conv.append(q)
    nm = len(sg_tail.mf)
    assert nm == 64
    for t in range(8):
        g0 = 8 * t + 12
        if g0 <= nm - 1:
            sg_tail.fill(conv[t], g0, min(g0 + 7, nm - 1), cap=7)
        else:
            sg_tail.put(nm - 1, "s_nop 7")
            for c, x in conv[t]:
                sg_tail.put(nm - 1, x, c)
    return sg_tail.text() + ml_store(opt)


def ml_store(opt):
    o = []
    for qb in range(4):
        l = LA[qb]
        o.append(f"v_mov_b32 v{VT1}, v{l}")
        o.append("s_nop 1")
        o.append(f"v_permlane32_swap_b32 v{l}, v{VT1}")
        o.append("s_nop 1")
        o.append(f"v_add_f32 v{l}, v{l}, v{VT1}")
        o.append(f"v_mov_b32 v{VT1}, v{l}")
        o.append("s_nop 1")
        o.append(f"v_permlane16_swap_b32 v{l}, v{VT1}")
        o.append("s_nop 1")
        o.append(f"v_add_f32 v{ET[2*qb+1]}, v{l}, v{VT1}")
        o.append(f"v_mov_b32 v{ET[2*qb]}, v{M[qb]}")
    o.append(f"v_lshlrev_b32 v{VT0}, 2, v{VLANE16}")
    o.append("s_mov_b64 exec, 0xffff")
    for qb in range(4):
        o.append(f"buffer_store_dwordx2 v[{ET[2*qb]}:{ET[2*qb+1]}], v{VT0}, s[{SRD_ML}:{SRD_ML+3}], s48 offen offset:{qb*1024}{opt.get('st','')}")
    return o


def tail_run(p, T, site0, opt):
    negm = lambda qb: vr(NEGM(qb))
    VB = [VTR, [Q(0, 3), Q(0, 3) + 1], [Q(0, 3) + 2, Q(0, 3) + 3]]
    nsp = max(T - 3, 0)
    def ploc(k, final=True):
        if k == T - 1: return lambda qb: Q(qb, 0)
        if k < nsp and final: return lambda qb, k=k: Q(qb, 1 + k)
        return lambda qb, k=k: P((p + k) & 1, qb)
    def kfr(k, h):
        i = (1 - p) + (k - 1)
        fr = []
        for ds in range(8):
            off = (i & 1) * 16384 + foff(h, ds)
            rd = [lambda f, off=off, i=i: f"ds_read_b128 {vr(f)}, v{KB[i >> 1]} offset:{off}"]
            ms = []
            for qb in range(4):
                c = negm(qb) if ds == 0 else vr(S(h, qb))
                ms.append(lambda f, qb=qb, ds=ds, c=c: f"v_mfma_f32_16x16x32_bf16 {vr(S(h,qb))}, {vr(f)}, {vr(Q(qb,ds))}, {c}")
            fr.append((rd, ms))
        return fr
    def vfr(k, fb, final=True):
        i = p + k
        rd = [lambda f, kb=kb: f"ds_read_b64_tr_b16 v[{f+2*kb}:{f+2*kb+1}], v{VB[i >> 1][fb & 1]} offset:{(i & 1) * 16384 + foff(kb, fb >> 1)}" for kb in range(2)]
        pl = ploc(k, final)
        ms = [lambda f, qb=qb: pvm(O(fb, qb), f, pl(qb)) for qb in range(4)]
        return (rd, ms)
    fr = [vfr(0, fb, False) for fb in range(4)]
    blocks = [(1, 1)] + [(k, h) for k in range(2, T) for h in range(2)]
    for k, h in blocks: fr += kfr(k, h)
    G = 4 * len(fr)
    lead = opt.get('lead', 44)
    order = []
    fb = 0
    while 4 * len(order) < lead or fb % 2:
        order += [(k, fb) for k in range(T - 1) if not (k == 0 and fb < 4)]
        fb += 1
    glast = G + 4 * len(order)
    order += [(T - 1, x) for x in range(fb)]
    for x in range(fb, 16):
        order += [(k, x) for k in range(T) if not (k == 0 and x < 4)]
    done = {}
    for i, (k, x) in enumerate(order): done[x] = G + 4 * i + 3
    fr += [vfr(k, x) for k, x in order]
    sg = build_seg(fr, [])
    nm = len(sg.mf)
    if opt.get('fuse'): import gen_f
    if opt.get('timing') and not opt.get('ft') and not opt.get('pt'):
        for i, gg in enumerate([30, 47, 111, G - 1, glast, (glast + nm) // 2, nm - 20]):
            sg.put(gg, f"s_memtime s[{74+2*i}:{75+2*i}]", 0)
    g = 0
    for k in range(3, T):
        sg.put(g, f"s_mov_b32 m0, s{S_M0}")
        for j in range(4):
            sg.put(g + 1 + j, f"buffer_load_dwordx4 v{VDMA}, s[{SRD_K}:{SRD_K+3}], s{S_OFF} offen offset:{j*1024}{opt.get('dl','')} lds ; TK{k}")
        if k + 1 < T:
            sg.put(g + 5, f"s_add_u32 s{S_OFF}, s{S_OFF}, {STEP[0]}\ns_add_u32 s{S_M0}, s{S_M0}, 0x4000\ns_and_b32 s{S_M0}, s{S_M0}, 0x1ffff", 2)
        g += 6
    for k in range(2, T):
        gb = 16 + 32 * (2 * k - 3) - 15
        sg.put(gb, f"WAIT TK{k}" if opt.get('fuse') and k > 2 else f"s_waitcnt vmcnt({4 * (T - 1 - k)})")
        sg.put(gb, "s_barrier")
    sg.put(1, f"v_add_u32 v{VSP}, s50, v{VLANE16}")
    for b in (1, 2):
        if 2 * b <= (1 - p) + (T - 2):
            sg.put(12 + b, f"v_add_u32 v{KB[b]}, 0x{0x8000*b:x}, v{VK}")
            sg.put(12 + b, f"v_and_b32 v{KB[b]}, 0x1ffff, v{KB[b]}")
    GL = G - 32
    for b in (1, 2):
        if 2 * b <= p + T - 1:
            sg.put(GL + 13 + b, f"v_add_u32 v{VB[b][0]}, 0x{0x8000*b:x}, v{VTR[0]}")
            sg.put(GL + 13 + b, f"v_and_b32 v{VB[b][0]}, 0x1ffff, v{VB[b][0]}")
            sg.put(GL + 16, f"v_xor_b32 v{VB[b][1]}, 32, v{VB[b][0]}")
    for k in range(nsp):
        gs = 16 if k == 0 else 16 + 32 * 2 * k
        for qb in range(4):
            sg.put(gs + qb, f"ds_write_b128 v{VSP}, {vr(ploc(k, False)(qb))} offset:{k*4096 + qb*1024}")
            sg.put(GL + 4 * (k + 2) + 1 + (qb & 1) + (qb >> 1) * 4, f"ds_read_b128 {vr(ploc(k)(qb))}, v{VSP} offset:{k*4096 + qb*1024}")
    rare = []
    sites = []
    sms = [(k, h) for k in range(1, T) for h in range(2)]
    cap = opt.get('tcap', 3)
    for i, (k, h) in enumerate(sms):
        st = site0 + i
        sites.append(st)
        g0 = 6 if i == 0 else 16 + 32 * i + (4 if i == len(sms) - 2 else 1)
        g1 = 16 + 32 * i + 31 if i < len(sms) - 1 else glast - 2
        q = softmax_queue(h, ploc(k, False), st)
        c = 2 if (i == 0 or i == len(sms) - 1) else cap
        ge = sg.fill(q[:-1], g0, g1, cap=c)
        sg.put(max(ge, g1 - 2) if i == len(sms) - 2 or i == 0 or (h == 0 and 1 <= k - 1 < nsp) else ge, q[-1][1])
        late = i >= len(sms) - 2
        live = [ploc(j, late) for j in range(k) if late or j >= nsp or (j > 0 and i < 2 * j)]
        spl = [j for j in range(nsp) if j < k and not late and not (j > 0 and i < 2 * j)]
        rare += rare_code(f"t{p}_{i}", h, [st], ploc(k, False), live, spl)
        if opt.get('verbose'): print("tail", p, "sm", k, h, "end", ge, "of", g1, "live", [f(0) for f in live], "spill", spl)
    if opt.get('fuse'):
        ge = sg.fill(gen_f.early1(p, opt), 12, 32, cap=3)
        eg = opt.get('eg', [34, 180, 236])
        for f, g0 in zip((gen_f.early_x, gen_f.early_hf, gen_f.early_h), eg):
            ge = sg.fill(f(p, opt), max(g0, ge), nm - 1, cap=opt.get('ecap', 3))
            if opt.get('verbose'): print("early end", ge)
    g = glast
    ccap = opt.get('ccap', 3)
    if opt.get('mle'):
        q = [(1, f"v_lshlrev_b32 v{VT0}, 2, v{VLANE16}")] if not opt.get('fuse') else [(1, x) for x in gen_f.ml_addr(VT0, VLANE16)]
        for f in ("v_mov_b32 v{e}, v{l}", "v_permlane32_swap_b32 v{l}, v{e}", "v_add_f32 v{l}, v{l}, v{e}", "v_mov_b32 v{e}, v{l}",
                  "v_permlane16_swap_b32 v{l}, v{e}", "v_add_f32 v{e1}, v{l}, v{e}", "v_mov_b32 v{e}, v{m}"):
            q += [(1, f.format(e=ET[2*qb], e1=ET[2*qb+1], l=LA[qb], m=M[qb])) for qb in range(4)]
        if opt.get('fuse'):
            z = ["s_mov_b32 exec_hi, 0"]
            for qb in range(4):
                if qb: z.append(f"s_lshr_b32 s3, s{40+qb}, 2")
                z.append(f"buffer_store_dwordx2 v[{ET[2*qb]}:{ET[2*qb+1]}], v{VT0}, s[{SRD_ML}:{SRD_ML+3}], s{3 if qb else 48} offen{opt.get('st','')}")
            q.append((3, "\n".join(z + ["s_mov_b32 exec_hi, -1"])))
        else: q.append((3, "\n".join(ml_store(opt)[-5:] + ["s_mov_b64 exec, -1"])))
        g = sg.fill(q, g, nm - 1, cap=opt['mle'])
    for t in range(8):
        q = []
        for qb in range(4):
            stg = Q(qb, 4 + t % 4)
            tmp = [128 + (qb % 4) * 8 + r for r in range(8)]
            for k in range(8):
                q.append((1, f"v_accvgpr_read_b32 v{tmp[k]}, a{O(2*t+k//4,qb)+k%4}"))
            for r in range(4):
                q.append((1, f"v_cvt_pk_bf16_f32 v{stg+r}, v{tmp[2*r]}, v{tmp[2*r+1]}"))
            so = 40 + qb if t < 4 else 44 + qb
            q.append((1, f"buffer_store_dwordx4 {vr(stg)}, v{VLANE16}, s[{SRD_OP}:{SRD_OP+3}], s{so} offen offset:{(t%4)*1024}{opt.get('st','')} ; ST{t}"))
        if opt.get('nost'): q = [x for x in q if 'store' not in x[1]]
        if opt.get('nocv'): q = [x for x in q if 'store' in x[1]]
        cc = ccap[t] if isinstance(ccap, list) else ccap
        px = opt.get('plainx', 4 * opt.get('plain', 8))
        q = [(c, x.replace(opt.get('st', ''), '') if (4 * t + i // 13 >= px if px >= 0 else 4 * t + i // 13 < -px) else x) for i, (c, x) in enumerate(q)]
        if opt.get('half'):
            qa = [x for i, x in enumerate(q) if i % 13 in (0, 1, 2, 3, 8, 9)]
            q = [x for i, x in enumerate(q) if i % 13 not in (0, 1, 2, 3, 8, 9)]
            g = sg.fill(qa, max(g, done[2*t] + 3), nm - 1, cap=cc)
        g0 = max(g, max(done[2*t], done[2*t+1]) + 3)
        if g0 > nm - 1:
            if not opt.get('half'): sg.put(nm - 1, "s_nop 7")
            g0 = nm - 1
        if opt.get('fuse'):
            i0 = [i for i, x in enumerate(q) if 'buffer_store' in x[1]][0]
            q.insert(i0 + 1, (1, f"ds_write_b128 v{VSP}, {vr(Q(0, 4 + t % 4))} offset:{t*1024}"))
        g = sg.fill(q, g0, nm - 1, cap=cc)
        if opt.get('verbose'): print("  conv", t, g0, g, "of", nm)
        if opt.get('fuse') and t == opt.get('f1t', 6): g = sg.fill(gen_f.flag1(opt), g, nm - 1, cap=3)
    if opt.get('fuse'):
        return gen_f.fix_waits(sg.text() + ["WAIT HLD"]), rare + gen_f.hl_spin(p), sites
    return sg.text() + ([] if opt.get('mle') else ml_store(opt)), rare, sites


def light(o, opt, TT):
    A = o.append
    LB0 = 0x16000
    KF = 32; VF = 96; OV = lambda fb: 160 + fb * 4 if fb < 8 else 0
    QL = lambda ds: ds * 4
    KFr = lambda h, ds: 32 + (h * 8 + ds) * 4
    VFr = lambda fb: 96 + fb * 4
    SL = [160, 164]; PL = 168; MM, LL, FF, T0, T1 = 172, 173, 174, 175, 176
    AK, AV0, AV1 = 177, 178, 179
    TM = 180
    MK = NEGM(0)
    S_N, S_SL, S_DS, S_T = 51, 52, 53, 54
    A("LT_start:")
    A("s_waitcnt lgkmcnt(0)")
    if opt.get('mg'):
        import gen_f; gen_f.poll_all(A, o, "LT_poll", SRD_K, 0)
    srd(o, SRD_K, H_OFF, 0)
    A(f"s_mov_b32 s{SRD_K+2}, s49")
    srd(o, SRD_Q, QF_OFF, QF_BYTES)
    A(f"s_mov_b32 s40, {39 * 16 * 8192}")
    A(f"s_mov_b32 s44, {39 * 16 * 8192 + 4096}")
    for ds in range(8):
        A(f"buffer_load_dwordx4 {vr(QL(ds))}, v{VLANE16}, s[{SRD_Q}:{SRD_Q+3}], s{40 if ds < 4 else 44} offen offset:{(ds%4)*1024}{opt.get('dl','')}")
    def dma(so):
        for w in range(4):
            A(f"s_add_u32 m0, s{S_DS}, {LB0 + w*4096}")
            A(f"s_add_u32 s{S_T}, s{so}, {w*128}")
            for k in range(4):
                A(f"buffer_load_dwordx4 v{VDMA}, s[{SRD_K}:{SRD_K+3}], s{S_T} offen offset:{k*1024}{opt.get('dl','')} lds")
        A(f"s_add_u32 s{S_DS}, s{S_DS}, 0x4000")
        A(f"s_and_b32 s{S_DS}, s{S_DS}, 0xffff")
    A(f"s_mov_b32 s{S_DS}, 0")
    dma(39)
    for i in range(2):
        dma(S_OFF)
        A(f"s_add_u32 s{S_OFF}, s{S_OFF}, 0x4000")
    A(f"s_mul_i32 s35, s37, 0x{OP_STRIDE:x}")
    srd(o, SRD_OP, OP_OFF, QF_BYTES, 35)
    srd(o, SRD_ML, ML_OFF, NB16 * (2048 if opt.get('fuse') else 1024))
    A(f"s_lshl_b32 s48, s37, 3")
    A(f"s_add_u32 s48, s48, {39 * 16 * 1024}")
    if opt.get('fuse'): A(f"s_mov_b32 s48, {39 * 16 * 2048}")
    lds_addrs(A)
    A(f"s_add_u32 s{S_N}, s{S_CNT}, {TT or 2}")
    A(f"s_mov_b32 s{S_SL}, {LB0}")
    A(f"v_mov_b32 v{MM}, 0xff800000")
    A(f"v_mov_b32 v{LL}, 0")
    for r in range(64): A(f"v_accvgpr_write_b32 a{r}, 0")
    A("LT_loop:")
    dma(S_OFF)
    A(f"s_add_u32 s{S_OFF}, s{S_OFF}, 0x4000")
    A(f"v_add_u32 v{AK}, s{S_SL}, v{VK}")
    A(f"v_add_u32 v{AV0}, s{S_SL}, v{VTR[0]}")
    A(f"v_add_u32 v{AV1}, s{S_SL}, v{VTR[1]}")
    A(f"s_add_u32 s{S_SL}, s{S_SL}, 0x4000")
    A(f"s_cmp_eq_u32 s{S_SL}, {LB0 + 0x10000}")
    A(f"s_cselect_b32 s{S_SL}, {LB0}, s{S_SL}")
    A("s_waitcnt vmcnt(48)")
    for ds in range(8):
        for h in range(2):
            A(f"ds_read_b128 {vr(KFr(h, ds))}, v{AK} offset:{foff(h, ds)}")
    for ds in range(8):
        A(f"s_waitcnt lgkmcnt({14 - 2*ds})")
        for h in range(2):
            A(f"v_mfma_f32_16x16x32_bf16 {vr(SL[h])}, {vr(KFr(h, ds))}, {vr(QL(ds))}, {vr(SL[h]) if ds else vr(MK)}")
    for fb in range(16):
        for kb in range(2):
            A(f"ds_read_b64_tr_b16 v[{VFr(fb)+2*kb}:{VFr(fb)+2*kb+1}], v{AV1 if fb & 1 else AV0} offset:{foff(kb, fb >> 1)}")
    for r in range(4): A(f"v_mov_b32 v{MK+r}, 0")
    A("s_nop 7")
    A(f"v_max3_f32 v{T0}, v{SL[0]}, v{SL[0]+1}, v{SL[0]+2}")
    A(f"v_max3_f32 v{T0}, v{T0}, v{SL[0]+3}, v{SL[1]}")
    A(f"v_max3_f32 v{T0}, v{T0}, v{SL[1]+1}, v{SL[1]+2}")
    A(f"v_max3_f32 v{T0}, v{T0}, v{SL[1]+3}, v{MM}")
    for sw in ("v_permlane32_swap_b32", "v_permlane16_swap_b32"):
        A(f"v_mov_b32 v{T1}, v{T0}")
        A("s_nop 1")
        A(f"{sw} v{T0}, v{T1}")
        A("s_nop 1")
        A(f"v_max_f32 v{T0}, v{T0}, v{T1}")
    if TR[0]: A(f"v_ceil_f32 v{T0}, v{T0}")
    A(f"v_sub_f32 v{FF}, v{MM}, v{T0}")
    A(f"v_exp_f32 v{FF}, v{FF}")
    A(f"v_mov_b32 v{MM}, v{T0}")
    for r in range(8): A(f"v_sub_f32 v{SL[0]+r}, v{SL[0]+r}, v{MM}")
    for r in range(8): A(f"v_exp_f32 v{SL[0]+r}, v{SL[0]+r}")
    A(f"v_mul_f32 v{LL}, v{LL}, v{FF}")
    for r in range(4): A(f"v_cvt_pk_bf16_f32 v{PL+r}, v{SL[0]+2*r}, v{SL[0]+2*r+1}")
    A(f"v_cmp_neq_f32 vcc, 1.0, v{FF}")
    for r in range(8): A(f"v_add_f32 v{LL}, v{LL}, v{SL[0]+r}")
    A("s_cbranch_vccz LT_nors")
    if TR[0]:
        A(f"v_lshrrev_b32 v{T1}, 4, v{VLANE16}")
        A(f"v_and_b32 v{T1}, 0x30, v{T1}")
        for r in range(4): A(f"ds_bpermute_b32 v{188+r}, v{T1}, v{FF} offset:{4*r}")
        A("s_waitcnt lgkmcnt(0)")
    for c in range(8):
        for r in range(8): A(f"v_accvgpr_read_b32 v{TM+r}, a{8*c+r}")
        for r in range(8): A(f"v_mul_f32 v{TM+r}, v{TM+r}, v{188 + r % 4 if TR[0] else FF}")
        for r in range(8): A(f"v_accvgpr_write_b32 a{8*c+r}, v{TM+r}")
    A("LT_nors:")
    A("s_waitcnt lgkmcnt(0)")
    A("s_nop 1")
    for fb in range(16):
        A(pvm(fb * 4, VFr(fb), PL))
    A(f"s_sub_u32 s{S_N}, s{S_N}, 1")
    A(f"s_cmp_lg_u32 s{S_N}, 0")
    A("s_cbranch_scc1 LT_loop")
    A("s_nop 15")
    for t in range(8):
        for r in range(8): A(f"v_accvgpr_read_b32 v{TM+r}, a{8*t+r}")
        for r in range(4): A(f"v_cvt_pk_bf16_f32 v{32+4*t+r}, v{TM+2*r}, v{TM+2*r+1}")
        A(f"buffer_store_dwordx4 {vr(32+4*t)}, v{VLANE16}, s[{SRD_OP}:{SRD_OP+3}], s{40 if t < 4 else 44} offen offset:{(t%4)*1024}{opt.get('st','')}")
    for sw in ("v_permlane32_swap_b32", "v_permlane16_swap_b32"):
        A(f"v_mov_b32 v{T1}, v{LL}")
        A("s_nop 1")
        A(f"{sw} v{LL}, v{T1}")
        A("s_nop 1")
        A(f"v_add_f32 v{LL}, v{LL}, v{T1}")
    A(f"v_lshlrev_b32 v{T0}, 2, v{VLANE16}")
    A("s_mov_b64 exec, 0xffff")
    if opt.get('fuse'):
        import gen_f
        A("s_mov_b64 exec, -1")
        for x in gen_f.ml_addr(T0, VLANE16): A(x)
        A("s_mov_b32 exec_hi, 0")
    A(f"buffer_store_dwordx2 v[{MM}:{LL}], v{T0}, s[{SRD_ML}:{SRD_ML+3}], s48 offen{opt.get('st','')}")
    if opt.get('fuse'):
        import gen_f
        srd(o, 16, gen_f.FLAG_OFF, gen_f.NFLAG * gen_f.fstr(opt))
        A(f"s_add_u32 s48, s37, {156 * 8}")
        A(f"s_mul_i32 s48, s48, {gen_f.fstr(opt)}")
    A("s_waitcnt vmcnt(0)")
    if opt.get('fuse'): gen_f.publish(A, 16, 48, T1, opt, True)
    A("s_branch L2_fin")


def lds_addrs(A):
    L = VLANE16
    A(f"v_bfe_u32 v{VK}, v{L}, 4, 3")
    A(f"v_lshlrev_b32 v{VK}, 6, v{VK}")
    A(f"v_bfe_u32 v{VT0}, v{L}, 7, 1")
    A(f"v_lshl_or_b32 v{VK}, v{VT0}, 10, v{VK}")
    A(f"v_bfe_u32 v{VT0}, v{L}, 8, 2")
    A(f"v_lshl_or_b32 v{VK}, v{VT0}, 4, v{VK}")
    A(f"v_bfe_u32 v{VT0}, v{L}, 6, 1")
    A(f"v_lshlrev_b32 v{VT0}, 5, v{VT0}")
    A(f"v_xor_b32 v{VK}, v{VK}, v{VT0}")
    A(f"v_and_b32 v{VTR[0]}, 0x1c0, v{L}")
    A(f"v_bfe_u32 v{VT0}, v{L}, 9, 1")
    A(f"v_lshl_or_b32 v{VTR[0]}, v{VT0}, 10, v{VTR[0]}")
    A(f"v_bfe_u32 v{VT0}, v{L}, 8, 1")
    A(f"v_lshl_or_b32 v{VTR[0]}, v{VT0}, 5, v{VTR[0]}")
    A(f"v_bfe_u32 v{VT0}, v{L}, 4, 2")
    A(f"v_lshl_or_b32 v{VTR[0]}, v{VT0}, 3, v{VTR[0]}")
    A(f"v_xor_b32 v{VTR[1]}, 32, v{VTR[0]}")
    A(f"v_bfe_i32 v{VT0}, v{L}, 8, 1")
    for r in range(4):
        A(f"v_and_b32 v{NEGM(0)+r}, s{S_MASK}, v{VT0}")


def lds_addrs_list():
    z = []; lds_addrs(z.append); return z


def prologue2(o, opt, T):
    import gen_f
    A = o.append
    Z = ET[0]
    pre = opt.get('mg')
    for r in range(4):
        if not pre: A(f"v_mov_b32 v{Z+r}, 0")
    if not pre: A("s_nop 0")
    ql = lambda ds, qb: f"buffer_load_dwordx4 {vr(Q(qb,ds))}, v{VLANE16}, s[{SRD_Q}:{SRD_Q+3}], s{40 + qb if ds < 4 else 44 + qb} offen offset:{(ds%4)*1024}{opt.get('dl','')} ; Q{ds}"
    NPQ = opt.get('npq', 8)
    zi = 16 if pre else 0
    zero = lambda k: f"v_mfma_f32_32x32x16_bf16 a[{16*k}:{16*k+15}], {vr(Z)}, {vr(Z)}, 0"
    for ds in range(NPQ):
        for qb in range(4):
            A(ql(ds, qb))
            if (qb % 2 == 1 or NPQ <= 4) and zi < 16:
                A(zero(zi)); zi += 1
    T(1)
    if opt.get('mg'):
        import gen_m; A(gen_m.poll_b_load())
    late = []
    if opt.get('fuse'):
        gen_f.prologue(late.append, late, 95)
    if opt.get('race'):
        c, nw0, nl0, nw2, nl2 = opt['race']; rem = lambda n: n - opt['trun'] - c - 2
        assert nw0 + nl0 == 104 and nw2 + nl2 == 105 and min(rem(nl0), rem(nl2)) >= 1
        late.append("s_cmp_lt_u32 s37, 3"); late.append("s_cselect_b32 s3, 0, 3"); late.append("s_sub_u32 s3, s37, s3")
        late.append("s_cmp_eq_u32 s3, 2")
        late.append(f"s_cselect_b32 s{S_NW}, {rem(nw2)}, {rem(nw0)}")
        late.append(f"s_cselect_b32 s{S_NL}, {rem(nl2)}, {rem(nl0)}")
        late.append(f"s_lshl_b32 s{S_RO}, s38, 2"); late.append(f"s_add_u32 s{S_RO}, s{S_RO}, s3"); late.append(f"s_lshl_b32 s{S_RO}, s{S_RO}, 10")
        late.append(f"s_add_u32 s{S_RO}, s{S_RO}, 0x{gen_f.FLAG_OFF + 6 * gen_f.FS:x}")
    for k, t in enumerate(lds_addrs_list() if not pre else []):
        A(t)
        if k % 2 == 1 and zi < 16: A(zero(zi)); zi += 1
    assert zi == 16
    items = []
    dm = lambda k, mk: (1, f"buffer_load_dwordx4 v{VDMA}, s[{SRD_K}:{SRD_K+3}], s{S_OFF} offen offset:{k*1024}{opt.get('dl','')} lds{mk}")
    items += [dm(2, ''), dm(3, ' ; K1')]
    items.append((0, f"s_add_u32 s{S_OFF}, s{S_OFF}, {STEP[0]}\ns_add_u32 m0, s{S_M0}, 0x8000\ns_nop 0"))
    items += [dm(k, '') for k in range(4)]
    items.append((0, f"s_add_u32 s{S_OFF}, s{S_OFF}, {STEP[0]}\ns_add_u32 s{S_M0}, s{S_M0}, 0xc000"))
    if NPQ == 8: o += late; late = []
    T(2)
    A("WAIT K0")
    A("s_barrier")
    T(3)
    TB = P_BASE[1]
    dst = [S_BASE[0], S_BASE[1], TB]
    fr = []
    for ds in range(8):
        for b in range(3):
            ms = []
            for qb in range(4):
                d = vr(dst[b] + 4 * qb)
                c0 = vr(NEGM(0)) if b < 2 else '0'
                ms.append(lambda f, qb=qb, ds=ds, d=d, c0=c0: f"v_mfma_f32_16x16x32_bf16 {d}, {vr(f)}, {vr(Q(qb,ds))}, {d if ds else c0}")
            fr.append((kread((b >> 1) * 16384 + foff(b & 1, ds)), ms))
    for i in range(RING):
        A(fr[i][0][0](F(i)))
    sg = build_seg(fr, [])
    per = opt.get('sper', 3)
    for ds in range(8):
        g = 12 * ds - 1
        sg.put(g, f"WAIT Q{ds}")
        gg = g + 1
        if ds + NPQ < 8:
            for qb in range(4): sg.put(gg, ql(ds + NPQ, qb)); gg += 3
            continue
        k = 0
        gg = g + 2
        while items and (k < per or ds == 7):
            v, t = items.pop(0)
            sg.put(min(gg, 95), t); k += v; gg += 2
    if late: sg.fill([(1, t) for t in late], 12 * (8 - NPQ), 95, cap=3)
    o += sg.text()
    T(6)
    R4 = range(4)
    s0 = lambda qb: S(0, qb)
    s1 = lambda qb: S(1, qb)
    for qb in R4: A(f"v_max3_f32 v{M[qb]}, v{s0(qb)}, v{s0(qb)+1}, v{s0(qb)+2}")
    for qb in R4: A(f"v_max3_f32 v{M[qb]}, v{M[qb]}, v{s0(qb)+3}, v{s1(qb)}")
    for qb in R4: A(f"v_max3_f32 v{M[qb]}, v{M[qb]}, v{s1(qb)+1}, v{s1(qb)+2}")
    for qb in R4: A(f"v_max_f32 v{M[qb]}, v{M[qb]}, v{s1(qb)+3}")
    for sw in ("v_permlane32_swap_b32", "v_permlane16_swap_b32"):
        for qb in R4: A(f"v_mov_b32 v{ET[qb]}, v{M[qb]}")
        for qb in R4: A(f"{sw} v{M[qb]}, v{ET[qb]}")
        for qb in R4: A(f"v_max_f32 v{M[qb]}, v{M[qb]}, v{ET[qb]}")
    if TR[0]:
        for qb in R4: A(f"v_ceil_f32 v{M[qb]}, v{M[qb]}")
    for h in range(2):
        for qb in R4:
            for r in R4: A(f"v_sub_f32 v{S(h,qb)+r}, v{S(h,qb)+r}, v{M[qb]}")
            for r in R4: A(f"v_exp_f32 v{S(h,qb)+r}, v{S(h,qb)+r}")
            if h == 0:
                for r in R4: A(f"v_sub_f32 v{NEGM(qb)+r}, 0, v{M[qb]}")
        if h == 0:
            A("WAIT K1")
            A("s_barrier")
            for i in range(RING):
                for x in vread(0, i): A(x(F(i)))
    T(7)
    for h in range(2):
        for qb in R4:
            s = S(h, qb)
            A(f"v_cvt_pk_bf16_f32 v{P(0,qb)+2*h}, v{s}, v{s+1}")
            A(f"v_cvt_pk_bf16_f32 v{P(0,qb)+2*h+1}, v{s+2}, v{s+3}")
    for qb in R4: A(f"v_add_f32 v{LA[qb]}, v{s0(qb)}, v{s0(qb)+1}")
    for qb in R4: A(f"v_add_f32 v{LB[qb]}, v{s0(qb)+2}, v{s0(qb)+3}")
    for r in R4:
        for qb in R4:
            t = LA if r % 2 == 0 else LB
            A(f"v_add_f32 v{t[qb]}, v{t[qb]}, v{s1(qb)+r}")
    for qb in R4: A(f"v_add_f32 v{LA[qb]}, v{LA[qb]}, v{LB[qb]}")
    for qb in R4:
        for r in R4: A(f"v_sub_f32 v{s0(qb)+r}, v{TB+4*qb+r}, v{M[qb]}")


def gen_k2(opt=None):
    opt = opt or {}
    TR[0] = opt.get('tr', opt.get('fuse', 0))
    o = []
    A = o.append
    MGK = opt.get('mg')
    if opt.get('fuse'):
        import gen_f
        gen_f.MG[0] = MGK
        if MGK:
            import gen_m
            opt = dict(opt, dl=' sc1'); o += gen_m.front(opt)
        else: A(f"s_mov_b64 s[{gen_f.S_TAG}:{gen_f.S_TAG+1}], 1")
    def T(i):
        if opt.get('timing') and not (opt.get('p1t') and 0 < i + 0 < 5 or opt.get('p1t') and i == 0): A(f"s_memtime s[{74+2*i}:{75+2*i}]")
        if opt.get('timing') and opt.get('p1t') and i == 0: A("s_memtime s[84:85]")
    A("s_load_dwordx2 s[4:5], s[0:1], %d" % KA_WS)
    if opt.get('fuse'):
        import gen_f
        A("s_load_dwordx2 s[60:61], s[0:1], %d" % KA_X)
        A("s_load_dwordx2 s[52:53], s[0:1], %d" % KA_DEG)
        A("s_load_dwordx2 s[56:57], s[0:1], %d" % KA_OUT)
    if opt.get('timing'):
        A("s_memtime s[62:63]" if not MGK else "s_mov_b64 s[62:63], s[100:101]")
        A("s_memrealtime s[64:65]")
        T(8)
    A("s_and_b32 s35, s2, 7")
    A("s_lshr_b32 s37, s2, 3")
    if opt.get('sp0'): A("s_add_u32 s37, s37, 30"); A("s_and_b32 s37, s37, 31")
    A("s_cmp_ge_u32 s37, 30")
    A("s_cbranch_scc1 LE_start")
    if opt.get('map', 1) == 1:
        A("s_mul_i32 s38, s37, 52")
        A("s_lshr_b32 s38, s38, 8")
        A("s_mul_i32 s39, s38, 5")
        A("s_sub_u32 s39, s37, s39")
        A("s_mov_b32 s37, s38")
        A("s_mul_i32 s38, s35, 5")
        A("s_add_u32 s38, s38, s39")
    else:
        A("s_mul_i32 s38, s37, 26")
        A("s_lshr_b32 s38, s38, 8")
        A("s_mul_i32 s39, s38, 10")
        A("s_sub_u32 s39, s37, s39")
        A("s_and_b32 s37, s35, 1")
        A("s_mul_i32 s37, s37, 3")
        A("s_add_u32 s37, s37, s38")
        A("s_lshr_b32 s38, s35, 1")
        A("s_mul_i32 s38, s38, 10")
        A("s_add_u32 s38, s38, s39")
    A("v_lshrrev_b32 v1, 6, v0")
    A(f"v_and_b32 v{VLANE16}, 63, v0")
    A(f"v_lshlrev_b32 v{VLANE16}, 4, v{VLANE16}")
    A(f"v_readfirstlane_b32 s{S_WAVE}, v1")
    cnts = opt.get('cnts', [52, 52, 52, 52, 52, 53])
    assert sum(cnts) == NT and len(cnts) == NSPLIT
    st = [sum(cnts[:i]) for i in range(NSPLIT)] + [NT - 1]
    pk = sum(x << (9 * i) for i, x in enumerate(st))
    A(f"s_mov_b32 s50, 0x{pk & 0xffffffff:x}")
    A(f"s_mov_b32 s51, 0x{pk >> 32:x}")
    A(f"s_mul_i32 s39, s37, 9")
    A(f"s_lshr_b64 s[50:51], s[50:51], s39")
    A(f"s_and_b32 s39, s50, 0x1ff")
    A(f"s_bfe_u32 s49, s50, 0x90009")
    A(f"s_sub_u32 s{S_CNT}, s49, s39")
    TT = opt.get('trun', 0)
    A(f"s_sub_u32 s{S_CNT}, s{S_CNT}, {TT or 2}")
    A(f"s_lshl_b32 s39, s39, 14")
    A(f"s_lshl_b32 s49, s49, 14")
    A(f"s_add_u32 s{S_OFF}, s39, 0x4000")
    A(f"s_cmp_eq_u32 s37, {NSPLIT-1}")
    A(f"s_addc_u32 s{S_CNT}, s{S_CNT}, 0")
    A(f"s_cmp_eq_u32 s37, {NSPLIT-1}")
    A(f"s_cselect_b32 s{S_OFF}, s39, s{S_OFF}")
    A(f"s_cselect_b32 s39, {(NT-1)*16384}, s39")
    A(f"s_cselect_b32 s49, {N*512}, s49")
    A(f"s_cselect_b32 s{S_MASK}, 0xff800000, 0")
    A(f"s_mov_b32 s{S_THR}, 0x5d800000")
    A("v_and_b32 v2, 63, v0")
    A("v_bfe_u32 v3, v2, 3, 2")
    A("v_bfe_u32 v4, v2, 2, 1")
    A(f"v_lshlrev_b32 v{VDMA}, 12, v3")
    A(f"v_lshl_or_b32 v{VDMA}, v4, 9, v{VDMA}")
    A(f"v_lshl_or_b32 v{VDMA}, v1, 7, v{VDMA}")
    A("v_lshrrev_b32 v4, 5, v2")
    A(f"v_lshl_or_b32 v{VDMA}, v4, 6, v{VDMA}")
    A("v_and_b32 v3, 2, v3")
    A("v_and_b32 v4, 3, v2")
    A("v_xor_b32 v3, v3, v4")
    A(f"v_lshl_or_b32 v{VDMA}, v3, 4, v{VDMA}")
    if opt.get('light'):
        A("s_cmp_eq_u32 s38, 39")
        A("s_cbranch_scc1 LT_disp")
    RC = opt.get('race')
    STEP[0] = f"s{S_STEP}" if RC else '0x4000'
    if RC:
        assert opt.get('map') == 2 and TT
        A("s_cmp_lt_u32 s37, 3")
        A(f"s_cselect_b32 s{S_STEP}, 0x4000, 0xffffc000" if 0 else f"s_cselect_b32 s{S_STEP}, 1, -1")
        A("s_cselect_b32 s39, 0, 103")
        A("s_cselect_b32 s3, 0, 3")
        A("s_sub_u32 s3, s37, s3")
        A("s_mul_i32 s3, s3, 104")
        A("s_add_u32 s39, s39, s3")
        A(f"s_cmp_eq_u32 s37, 5")
        A("s_addc_u32 s39, s39, 0")
        A(f"s_lshl_b32 s{S_STEP}, s{S_STEP}, 14")
        A("s_lshl_b32 s39, s39, 14")
        A(f"s_add_u32 s{S_OFF}, s39, s{S_STEP}")
        A(f"s_mov_b32 s49, {N*512}")
        A(f"s_mov_b32 s{S_CNT}, {RC[0]}")
        A(f"s_mov_b32 s{S_PH}, 3")
    A(f"s_lshl_b32 s{S_M0}, s{S_WAVE}, 12")
    A(f"s_lshl_b32 s50, s{S_WAVE}, 13")
    A(f"s_add_u32 s50, s50, 0x20000")
    A(f"s_mov_b32 m0, s{S_M0}")
    if opt.get('fuse'): gen_f.pre_wait(A, 96 if 0 else 94, 95)
    if MGK: gen_m.poll_addrs(A, S_OFF, opt.get('av'), STEP[0] if RC else None)
    A("s_waitcnt lgkmcnt(0)")
    k0 = [f"buffer_load_dwordx4 v{VDMA}, s[{SRD_K}:{SRD_K+3}], s39 offen offset:{k*1024}{opt.get('dl','')} lds" for k in range(4)]
    k1 = [f"buffer_load_dwordx4 v{VDMA}, s[{SRD_K}:{SRD_K+3}], s{S_OFF} offen offset:{k*1024}{opt.get('dl','')} lds ; K0" for k in range(2)]
    if not MGK: T(0)
    srd(o, SRD_K, H_OFF, 0)
    A(f"s_mov_b32 s{SRD_K+2}, s49")
    if not MGK: o += k0; A(f"s_add_u32 m0, s{S_M0}, 0x4000")
    srd(o, SRD_Q, QF_OFF, QF_BYTES)
    if not MGK: o += k1
    A(f"s_mul_i32 s35, s37, 0x{OP_STRIDE:x}")
    srd(o, SRD_OP, OP_OFF, QF_BYTES, 35)
    srd(o, SRD_ML, ML_OFF, NB16 * (2048 if opt.get('fuse') else 1024))
    A(f"s_lshl_b32 s35, s38, 4")
    A(f"s_lshl_b32 s41, s{S_WAVE}, 2")
    A(f"s_add_u32 s35, s35, s41")
    A(f"s_lshl_b32 s40, s35, 13")
    if opt.get('fuse'):
        A("s_lshl_b32 s94, s94, 13")
        A("s_add_u32 s40, s40, s94")
    for qb in range(1, 4):
        A(f"s_{'xor_b32' if opt.get('fuse') else 'add_u32'} s{40+qb}, s40, {qb*8192}")
    for qb in range(4):
        A(f"s_add_u32 s{44+qb}, s{40+qb}, 4096")
    A(f"s_lshl_b32 s48, s35, 10")
    A(f"s_lshl_b32 s35, s37, 3")
    A(f"s_add_u32 s48, s48, s35")
    if MGK:
        for r in range(4): A(f"v_mov_b32 v{ET[0]+r}, 0")
        lds_addrs(A)
        for k in range(16): A(f"v_mfma_f32_32x32x16_bf16 a[{16*k}:{16*k+15}], {vr(ET[0])}, {vr(ET[0])}, 0")
        gen_m.poll_a(A, o, opt)
        T(0)
        o += k0; A(f"s_add_u32 m0, s{S_M0}, 0x4000"); A("s_nop 0"); o += k1
    prologue2(o, opt, T)
    import gen_f
    o[:] = gen_f.fix_waits(o)
    if MGK: gen_m.poll_b_check(A)
    A("s_nop 1")
    if opt.get('timing'):
        A("s_memtime s[66:67]")
        A("s_waitcnt lgkmcnt(0)")
    sites = {}
    n = 0
    for kind in ('loop', 'tail2'):
        for p in (0, 1):
            sites[(kind, p)] = (n, n + 1)
            n += 2
    rares = []; alls = list(range(4 if TT else n))
    A(".p2align 6")
    A("L2_loop:")
    o += body(0, 'loop', sites[('loop', 0)], opt).text()
    A("s_cbranch_scc1 L2_x1" if RC else "s_cbranch_scc1 L2_tail_1")
    A("L2_loop1:")
    o += body(1, 'loop', sites[('loop', 1)], opt).text()
    A("s_cbranch_scc0 L2_loop")
    if RC:
        TG = gen_f.S_TAG
        A(f"s_cmp_eq_u32 s{S_PH}, 0"); A("s_cbranch_scc1 L2_tail_0"); A("s_mov_b32 s3, 0"); A("s_branch L2_ev")
        A("L2_x1:")
        A(f"s_cmp_eq_u32 s{S_PH}, 0"); A("s_cbranch_scc1 L2_tail_1"); A("s_mov_b32 s3, 1")
        A("L2_ev:")
        A(f"s_sub_u32 s{S_PH}, s{S_PH}, 1")
        A(f"s_mov_b32 s{S_CNT}, 1")
        A("v_mov_b32 v251, 0x20000")
        A(f"s_cmp_eq_u32 s{S_PH}, 0"); A("s_cbranch_scc1 L2_ev3")
        A(f"s_cmp_lg_u32 s{S_WAVE}, 0"); A("s_cbranch_scc1 L2_evr")
        A(f"s_cmp_eq_u32 s{S_PH}, 1"); A("s_cbranch_scc1 L2_ev2")
        A(f"v_mov_b32 v252, s{TG}"); A(f"v_mov_b32 v253, s{TG+1}")
        A("s_mov_b64 exec, 1")
        A(f"buffer_atomic_swap_x2 v[252:253], off, s[16:19], s{S_RO} sc0 sc1")
        A("s_mov_b64 exec, -1")
        A("s_branch L2_evr")
        A("L2_ev2:")
        A("s_mov_b64 exec, 1")
        A("ds_write_b64 v251, v[252:253]")
        A("s_mov_b64 exec, -1")
        A("s_branch L2_evr")
        A("L2_ev3:")
        A("ds_read_b64 v[252:253], v251")
        A("s_waitcnt lgkmcnt(0)")
        A(f"v_cmp_eq_u64 vcc, s[{TG}:{TG+1}], v[252:253]")
        A("s_nop 1")
        A("s_cmp_eq_u64 vcc, 0")
        A(f"s_cselect_b32 s{S_CNT}, s{S_NW}, s{S_NL}")
        A("L2_evr:")
        A("s_cmp_eq_u32 s3, 0"); A("s_cbranch_scc1 L2_loop"); A("s_branch L2_loop1")
    for p in (0, 1):
        A(f"L2_tail_{p}:")
        if opt.get('timing'):
            A("s_memtime s[68:69]")
            A("s_waitcnt lgkmcnt(0)")
        if TT:
            tl, rr, ss = tail_run(p, TT, len(alls), opt)
            o += tl; rares += rr; alls += ss
        else:
            o += body(p, 'tail2', sites[('tail2', p)], opt).text()
            A("s_nop 1")
            T(8)
            o += epilogue(body(1 - p, 'tail1', None, opt), opt)
        T(9)
        A("s_branch L2_F" if opt.get('fuse') else "s_branch L2_fin")
    if opt.get('fuse'):
        A("L2_F:")
        nfs = [0]
        def fstamp(A_):
            if opt.get('timing') and opt.get('ft') and nfs[0] < 7:
                A_(f"s_memtime s[{74+2*nfs[0]}:{75+2*nfs[0]}]"); nfs[0] += 1
        fo, fspin = gen_f.final(opt, fstamp)
        o += fo
        if opt.get('ftwice'):
            A("s_barrier\ns_xor_b32 s31, s31, 1\ns_cbranch_scc1 L2_F")
        A("s_branch L2_fin")
        o += fspin
        if MGK: o += gen_m.poll_b_spin()
        A("L2_Fend:")
    if opt.get('valu', 1):
        for p in (0, 1):
            for h in (0, 1):
                o += rare_code(p, h, [sites[('loop', p)][h]] + ([] if TT else [sites[('tail2', p)][h]]))
        o += rares
        o += rare_common(alls)
    import gen_eg
    if opt.get('light'):
        A("LT_disp:")
        A(f"s_cmp_eq_u32 s{S_WAVE}, 0")
        A("s_cbranch_scc1 LT_start")
        A(f"s_mov_b32 s{gen_eg.S_W}, s{S_WAVE}")
        A(f"s_mul_i32 s{gen_eg.S_B}, s{S_WAVE}, 6")
        A(f"s_add_u32 s{gen_eg.S_B}, s{gen_eg.S_B}, s37")
        A(f"s_add_u32 s{gen_eg.S_B}, s{gen_eg.S_B}, 42")
        A(f"s_cmp_lt_u32 s{gen_eg.S_B}, {NBK}")
        A("s_cbranch_scc1 LE_common")
        A("s_branch L2_end")
        light(o, opt, TT)
    gen_eg.gen_edge(o, opt)
    A("L2_fin:")
    if opt.get('timing'):
        A("s_mov_b64 exec, -1")
        A("s_waitcnt vmcnt(0)")
        A("s_memtime s[70:71]")
        A("s_memrealtime s[72:73]")
        A("s_waitcnt lgkmcnt(0)")
        A("s_sub_u32 s66, s66, s62")
        A("s_sub_u32 s68, s68, s62")
        A("s_sub_u32 s70, s70, s62")
        for i in range(10):
            A(f"s_sub_u32 s{74+2*i}, s{74+2*i}, s62\nv_mov_b32 v{4+i}, s{74+2*i}")
        A("v_mov_b32 v14, s64\nv_mov_b32 v15, s72")
        A("s_sub_u32 s72, s72, s64")
        A("v_mov_b32 v0, s66\nv_mov_b32 v1, s68\nv_mov_b32 v2, s70\nv_mov_b32 v3, s72")
        A("s_add_u32 s60, s4, 0x%x\ns_addc_u32 s61, s5, 0" % TIM_OFF)
        A("v_mbcnt_lo_u32_b32 v248, -1, 0\nv_mbcnt_hi_u32_b32 v248, -1, v248\nv_lshlrev_b32 v248, 4, v248")
        A("s_mov_b32 s62, 0x100000\ns_mov_b32 s63, 0x00020000")
        A(f"s_lshl_b32 s35, s2, 2")
        A(f"s_add_u32 s35, s35, s{S_WAVE}")
        A(f"s_lshl_b32 s35, s35, 10")
        A(f"buffer_store_dwordx4 v[0:3], v{VLANE16}, s[60:63], s35 offen")
        A("s_add_u32 s35, s35, 0x200000\ns_mov_b32 s62, 0x800000")
        for k in range(3):
            A(f"buffer_store_dwordx4 v[{4+4*k}:{7+4*k}], v{VLANE16}, s[60:63], s35 offen")
            A("s_add_u32 s35, s35, 0x100000")
    A("L2_end:")
    return "\n".join(o)


def kernel_desc(opt=None):
    return dict(name="k2_kernel", body=gen_k2(opt), vgpr=512, accum=256, grid=256, block=256, lds=163840 if (opt or {}).get('trun', 0) > 3 or (opt or {}).get('light') else 131072)
```

```python
from layout import *
import gen_k1n, gen_f
from gen_f import FLAG_OFF, FS, P1F0, WFF0, HF0, AF0, EPOCH, S_TAG, SWS
from sched import *
import hazard, struct, math
MF32 = gen_f.MF32
TAGADD = [f"s_add_u32 s{S_TAG}, s{S_TAG}, 0x7f4a7c15", f"s_addc_u32 s{S_TAG+1}, s{S_TAG+1}, 0x9e3779b9"]
S_IDX = 91
VPA, VPB, VPD = 5, 251, 252


def front(opt):
    k1 = opt['k1']
    S_W, S_ROLE, S_ROT = gen_k1n.S_W, gen_k1n.S_ROLE, gen_k1n.S_ROT
    o = []; A = o.append
    tagld = [f"s_mov_b32 s{S_TAG}, 0x{FLAG_OFF + EPOCH * FS:x}", f"s_load_dwordx2 {sr(S_TAG, 2)}, s[38:39], s{S_TAG}"]
    k1 = dict(k1, mg=tagld)
    A("s_getpc_b64 s[56:57]")
    A("s_load_dwordx16 s[16:31], s[0:1], 0")
    A("s_load_dwordx8 s[32:39], s[0:1], 64")
    if opt.get('timing'): A("s_memtime s[100:101]")
    A("s_cmp_ge_u32 s2, 256")
    A("s_cbranch_scc1 L2_end")
    A("v_lshrrev_b32 v1, 6, v0")
    A("v_and_b32 v2, 63, v0")
    A("s_lshr_b32 s3, s2, 3")
    if opt.get('sp0'): A("s_add_u32 s3, s3, 30"); A("s_and_b32 s3, s3, 31")
    A(f"v_readfirstlane_b32 s{S_W}, v1")
    A("s_lshl_b32 s5, s3, 2")
    A(f"s_add_u32 s5, s5, s{S_W}")
    if k1.get('cpf', 1):
        A("s_and_b32 s56, s56, 0xffffff00")
        A("s_mov_b32 s58, L2_end-k2_kernel")
        A("s_mov_b32 s59, 0x00020000")
        A(f"s_and_b32 s6, s5, {opt.get('cpm', 15)}")
        A("s_lshl_b32 s6, s6, 13")
        A("v_lshlrev_b32 v10, 7, v2")
        A("buffer_load_dword v255, v10, s[56:59], s6 offen")
    A("v_and_b32 v3, 15, v2")
    A("v_lshrrev_b32 v4, 4, v2")
    A(f"s_and_b32 s{S_ROT}, s3, 7")
    A("s_mov_b64 s[14:15], 0")
    A("s_and_b32 s8, s2, 7")
    A("s_cmp_ge_u32 s3, 30")
    A("s_cbranch_scc1 LM_edge")
    if opt.get('map', 1) == 1:
        A("s_mul_i32 s13, s3, 52"); A("s_lshr_b32 s13, s13, 8"); A("s_mul_i32 s9, s13, 5"); A("s_sub_u32 s9, s3, s9")
        A("s_mul_i32 s12, s8, 5"); A("s_add_u32 s12, s12, s9")
    else:
        A("s_mul_i32 s12, s3, 26"); A("s_lshr_b32 s12, s12, 8"); A("s_mul_i32 s9, s12, 10"); A("s_sub_u32 s9, s3, s9")
        A("s_and_b32 s13, s8, 1"); A("s_mul_i32 s13, s13, 3"); A("s_add_u32 s13, s13, s12")
        A("s_lshr_b32 s12, s8, 1"); A("s_mul_i32 s12, s12, 10"); A("s_add_u32 s12, s12, s9")
    A(f"s_mul_i32 s{S_IDX}, s12, 6")
    A(f"s_add_u32 s{S_IDX}, s{S_IDX}, s13")
    A(f"s_mov_b32 s{S_ROLE}, 0")
    A("s_cmp_eq_u32 s12, 39")
    A("s_cbranch_scc1 LM_light")
    A("s_mul_i32 s14, s13, 3")
    A("s_min_u32 s14, s14, 14")
    A("s_lshl_b32 s9, s12, 4")
    A("s_add_u32 s14, s14, s9")
    A("s_lshl_b32 s14, s14, 13")
    A(f"s_cmp_eq_u32 s{S_IDX}, {38 * 6 + 5}")
    A("s_cselect_b32 s9, 0, s13")
    A("s_cmp_lt_u32 s9, 4")
    A("s_cselect_b32 s15, 3, 2")
    A("s_lshl_b32 s15, s15, 13")
    A("s_add_u32 s15, s15, s14")
    AV = opt.get('av')
    if opt.get('timing') and opt.get('p1t') and not AV:
        o += gen_k1n.gemm_prog('q', dict(k1, timing=1)) + ["s_waitcnt lgkmcnt(0)"] + [f"s_mov_b32 s{74 + 2*k}, s{16 + 2*x}" for k, x in enumerate(k1.get('ssel', [1, 2, 3, 4, 6]))]
    else: o += p1_prog(k1, opt) if AV else gen_k1n.gemm_prog('q', k1)
    A("L1_fin:")
    A(f"s_add_u32 s{S_IDX}, s{S_IDX}, {P1F0}")
    if not AV: A("s_waitcnt lgkmcnt(0)"); o += TAGADD
    A("LM_pub:")
    srd_from(o, 40, 38, FLAG_OFF, gen_f.NFLAG * FS)
    A(f"s_lshl_b32 s6, s{S_IDX}, 7")
    A(f"s_cmp_eq_u32 s{S_W}, 0")
    A(f"s_cselect_b32 s6, s6, 0x{gen_f.OOB:x}")
    A("s_waitcnt vmcnt(0) lgkmcnt(0)")
    A("s_barrier")
    gen_f.publish(A, 40, 6, 6, opt)
    if opt.get('qt'):
        srd_from(o, 40, 38, QF_OFF, "s15")
        A(f"s_lshl_b32 s6, s{S_W}, 13")
        A("s_add_u32 s6, s6, s14")
        A("v_lshlrev_b32 v8, 7, v2")
        A(f"buffer_load_dword v9, v8, s[40:43], s6 offen")
    A(f"s_cmp_eq_u32 s{S_ROLE}, 0")
    A("s_cbranch_scc1 L2_entry")
    A(f"s_mov_b32 s{S_ROLE}, 0")
    A(f"s_sub_u32 s4, s{S_IDX}, {P1F0 + 240}")
    A(f"s_add_u32 s{S_IDX}, s4, {WFF0}")
    o += gen_k1n.gemm_prog('w', k1)
    A("s_branch LM_pub")
    A("LM_light:")
    A("s_waitcnt lgkmcnt(0)")
    o += tagld
    if AV: A("s_waitcnt lgkmcnt(0)"); o += TAGADD
    A("s_branch L1_fin")
    A("LM_edge:")
    A("s_sub_u32 s4, s3, 30")
    A("s_lshl_b32 s8, s8, 1")
    A("s_add_u32 s4, s4, s8")
    A(f"s_add_u32 s{S_IDX}, s4, 240")
    A("s_cmp_lt_u32 s4, 8")
    A(f"s_cselect_b32 s{S_ROLE}, 1, 0")
    if opt.get('wt'):
        st = opt['wt']
        A(f"s_and_b32 s6, s5, 7"); A(f"s_lshl_b32 s6, s6, 14")
        A(f"v_lshlrev_b32 v10, {st}, v2")
        A("s_waitcnt lgkmcnt(0)")
        srd_from(o, 40, 26, 0, 131072); srd_from(o, 44, 28, 0, 131072)
        for m in range(2):
            for k in range(16384 // (64 << st)):
                A(f"s_add_u32 s7, s6, {k * (64 << st)}")
                A(f"buffer_load_dword v{250 + (k & 1) + 2 * m}, v10, {sr(40 + 4 * m)}, s7 offen")
    if AV: o += a_prog(k1, opt)
    o += gen_k1n.edge_prog(dict(k1, mg=["s_nop 0"]) if AV else k1)
    A("s_branch L1_fin")
    A("L2_entry:")
    return o


def a_prog(k1, opt):
    S_W = gen_k1n.S_W
    q = []; A = lambda t: q.append(V(t))
    VD, VR, VL, BF, AF, ACC = 16, 18, 20, 24, 56, 184
    A("v_lshrrev_b32 v5, 3, v2")
    A("v_and_b32 v6, 4, v5"); A("v_add_u32 v5, v5, v6")
    A("v_and_b32 v6, 7, v2"); A("v_xor_b32 v6, v6, v4")
    A("v_lshlrev_b32 v6, 4, v6")
    A(f"v_lshl_add_u32 v{VD}, v5, 9, v6")
    A(f"v_xor_b32 v{VD+1}, 0x2040, v{VD}")
    A(f"s_lshl_b32 s6, s{S_W}, 7")
    A("s_and_b32 s7, s4, 3"); A("s_lshl_b32 s7, s7, 15"); A("s_add_u32 s7, s7, s6")
    A("s_lshr_b32 s8, s4, 2"); A("s_lshl_b32 s8, s8, 15"); A("s_add_u32 s8, s8, s6")
    A(f"s_lshl_b32 s9, s{S_W}, 10")
    A("s_waitcnt lgkmcnt(0)")
    o = []; srd_from(o, 40, 26, 0, 131072); srd_from(o, 44, 28, 0, 131072)
    for t in o: A(t)
    for m in (1, 0):
        for b in range(4):
            A(f"s_add_u32 s10, s{7 + m}, {(b >> 1) * 16384 + (b & 1) * 2048}")
            for u in range(2):
                A(f"s_add_u32 m0, s9, {m * 32768 + b * 8192 + u * 4096}")
                q.append(VM(f"buffer_load_dwordx4 v{VD+u}, {sr(40 + 4*m)}, s10 offen lds", tag='w'))
    for t in k1['mg']: A(t)
    A("v_lshrrev_b32 v5, 1, v3"); A("v_xor_b32 v5, v5, v4"); A("v_lshlrev_b32 v5, 4, v5")
    A("v_and_b32 v6, 7, v3"); A("v_lshl_add_u32 v5, v6, 7, v5")
    A("v_lshrrev_b32 v6, 3, v3"); A(f"v_lshl_add_u32 v{VR}, v6, 12, v5")
    A(f"v_xor_b32 v{VR+1}, 64, v{VR}")
    A(f"s_lshl_b32 s6, s{S_W}, 13"); A(f"v_add_u32 v{VR+4}, s6, v{VR}"); A(f"v_xor_b32 v{VR+5}, 64, v{VR+4}")
    A(f"v_lshlrev_b32 v{VL}, 4, v2")
    o = []; srd_from(o, 48, 38, 0, 256 << 20)
    for t in o: A(t)
    A("s_lshr_b32 s6, s4, 2"); A("s_lshl_b32 s6, s6, 15"); A("s_and_b32 s7, s4, 3"); A("s_lshl_b32 s7, s7, 13")
    A("s_add_u32 s6, s6, s7"); A("s_add_u32 s6, s6, s9"); A(f"s_add_u32 s6, s6, 0x{A_OFF:x}"); A("s_add_u32 s7, s6, 4096")
    A(f"s_lshl_b32 s8, s4, 2"); A(f"s_add_u32 s8, s8, s{S_W}"); A(f"s_lshl_b32 s8, s8, {opt.get('afs', 7)}"); A(f"s_add_u32 s8, s8, 0x{FLAG_OFF + AF0 * FS:x}")
    A("s_mov_b32 s10, 0x%x" % struct.unpack('<I', struct.pack('<f', math.log2(math.e) / 16))[0])
    TS = lambda k: A(f"s_memtime s[{76+2*k}:{77+2*k}]") if opt.get('timing') else None
    TS(0)
    q.append(W('w')); TS(1); A("s_barrier")
    for j in range(8):
        q.append(LD(f"ds_read_b128 {vr(BF + 4*j)}, v{VR + 4 + (j & 1)} offset:{32768 + (j >> 1)*1024}"))
        for b in range(4): q.append(LD(f"ds_read_b128 {vr(AF + (j*4 + b)*4)}, v{VR + (j & 1)} offset:{b*8192 + (j >> 1)*1024}", tag=('f', j, b)))
    for j in range(8):
        for b in range(4):
            q.append(Ins(f"{MF32} {vr(ACC + 4*b)}, {vr(AF + (j*4 + b)*4)}, {vr(BF + 4*j)}, {vr(ACC + 4*b) if j else 0}", 0, needs=[('f', j, b)]))
    for t in TAGADD: A(t)
    TS(2)
    for tl in range(2):
        a = ACC + 8 * tl
        for r in range(8): A(f"v_mul_f32 v{a+r}, s10, v{a+r}")
        for r in range(4): A(f"v_cvt_pk_bf16_f32 v{a+r}, v{a+2*r}, v{a+2*r+1}")
        q.append(VM(f"buffer_store_dwordx4 {vr(a)}, v{VL}, {sr(48)}, s{6 + tl} offen sc1"))
    A("s_waitcnt vmcnt(0)")
    TS(3)
    gen_f.publish(A, 48, 8, 6, opt)
    if opt.get('timing'):
        A("s_waitcnt vmcnt(0)"); TS(4); A("s_waitcnt lgkmcnt(0)")
        for k in range(5): A(f"v_writelane_b32 v254, s{76+2*k}, {8+k}")
    A("s_barrier")
    return hazard.fix(Emitter().emit(q))


def p1_prog(k1, opt):
    K = gen_k1n
    S_W, S_ROT, S_XO, SK, SO = K.S_W, K.S_ROT, K.S_XO, K.SK1, K.SO
    NL, RPW, HIMG = 6, 12, 0x20000
    VL16, VH, VHW, HP, ACC, LN0, BF, AF = 16, 31, 36, 44, 68, 68, 68 + 48, 0
    pre = []; A = lambda t: pre.append(V(t))
    nst = [0]
    def stamp():
        if not opt.get('timing') or not opt.get('p1t'): return []
        nst[0] += 1
        return [V(f"s_memtime s[{14+2*nst[0]}:{15+2*nst[0]}]", cost=0)]
    A(f"v_lshlrev_b32 v{VL16}, 4, v2")
    A(f"s_mul_i32 s7, s{S_W}, {RPW*512}")
    A(f"s_add_u32 s{S_XO}, s14, s7")
    A(f"s_add_u32 s{S_XO+1}, s{S_XO}, 4096")
    A("s_waitcnt lgkmcnt(0)")
    o = []; srd_from(o, K.SRD_X, 16, 0, "s15")
    for t in o: A(t)
    xso = lambda j: f"s{S_XO + j // 4} offen offset:{(j % 4) * 1024}"
    for j in range(NL): pre.append(VM(f"buffer_load_dwordx4 {vr(HP+4*j)}, v{VL16}, {sr(K.SRD_X)}, {xso(j)}", tag=('x', j)))
    for t in k1['mg']: A(t)
    K.img_addrs(A, NL, RPW, HIMG, VHW, VH)
    o = []
    srd_from(o, K.SRD_O, 38, QF_OFF, "s15"); srd_from(o, K.SRD_H, 38, H_OFF, "s15"); srd_from(o, K.SRD_W1, 38, 0, 256 << 20)
    for t in o: A(t)
    A(f"s_lshl_b32 s7, s{S_W}, 15"); A(f"s_add_u32 s7, s7, 0x{A_OFF:x}")
    for t in range(8):
        A(f"s_xor_b32 s6, s{S_ROT}, {t}"); A("s_lshl_b32 s6, s6, 12"); A(f"s_add_u32 s{SK+t}, s6, s7")
    A(f"s_lshl_b32 s7, s{S_W}, 11"); A(f"s_add_u32 s{SO}, s14, s7")
    for b in range(1, 3): A(f"s_add_u32 s{SO+b}, s{SO}, {b*8192}")
    A(f"s_mov_b32 s{K.S_EPS}, 0x3727c5ac"); A(f"s_mov_b32 s{K.S_R256}, 0x3b800000"); A(f"s_mov_b32 s{K.S_MASK}, 0xffff0000")
    A(f"v_lshlrev_b32 v17, {opt.get('afs', 7)}, v2"); A(f"v_add_u32 v17, 0x{FLAG_OFF + AF0 * FS:x}, v17")
    A(f"s_add_u32 s6, s{S_IDX}, {HF0}"); A("s_lshl_b32 s6, s6, 7"); A(f"s_add_u32 s6, s6, 0x{FLAG_OFF:x}")
    A(f"s_cmp_eq_u32 s{S_W}, 0"); A(f"s_cselect_b32 s74, s6, 0x{gen_f.OOB:x}")
    pre += stamp()
    K.ln_code(pre, NL, HP, LN0, VHW, k1, lambda: None, stamp,
              after=lambda j: pre.append(VM(f"buffer_store_dwordx4 {vr(HP+4*j)}, v{VL16}, {sr(K.SRD_H)}, {xso(j)} sc1")))
    A("s_waitcnt lgkmcnt(0)")
    for t in TAGADD: A(t)
    pre += stamp()
    A("s_barrier")
    for t in range(8):
        for rb in range(3): pre.append(LD(f"ds_read_b128 {vr(BF + (t*3 + rb)*4)}, v{VH + (t & 1)} offset:{rb*8192 + t*1024}", tag=('b', t)))
    em = Emitter(); em.emit(pre)
    if opt.get('w0p'): em.o += ["s_waitcnt vmcnt(0)", f"s_cmp_lg_u32 s{S_W}, 0", "s_cbranch_scc1 LM_aw_go"]
    gen_f.spin(em.o.append, "LM_aw", [f"buffer_load_dwordx2 v[18:19], v17, {sr(K.SRD_W1)}, 0 offen sc1"], [18], 75)
    em.done['vm'] = em.cnt['vm']
    st = Stream()
    ld = lambda t: [VM(f"buffer_load_dwordx4 {ar((t*4 + f)*4)}, v{VL16}, {sr(K.SRD_W1)}, s{SK+t} offen offset:{f*1024} sc1", tag=('a', t, f)) for f in range(4)]
    NA = opt.get('p1a', 3)
    if opt.get('w0p'): st.put(-1, V("s_barrier"))
    for x in stamp(): st.put(-1, x)
    for t in range(NA):
        for x in ld(t): st.put(-1, x)
    z = []; gen_f.publish(z.append, K.SRD_W1, 74, 18, opt)
    if not opt.get('w0p'): st.put(-1, V("s_barrier"))
    for x in z: st.put(-1, VM(x) if x.startswith('buffer') else V(x))
    acc = lambda f, rb: ACC + (rb * 4 + f) * 4
    done = {}
    for t in range(8):
        g0 = st.n()
        for f in range(4):
            for rb in range(3):
                done[(f, rb)] = st.mfma(f"{MF32} {vr(acc(f, rb))}, {ar((t*4 + f)*4)}, {vr(BF + (t*3 + rb)*4)}, {vr(acc(f, rb)) if t else 0}", needs=[('a', t, f), ('b', t)])
        if t + NA < 8:
            for k, x in enumerate(ld(t + NA)): st.put(g0 + 3 * k, x)
    nm = st.n()
    for u in range(2):
        for rb in range(3):
            a = acc(2 * u, rb); g = min(done[(2 * u + 1, rb)] + 3, nm - 1)
            for r in range(4): st.put(g, V(f"v_cvt_pk_bf16_f32 v{a+r}, v{a+2*r}, v{a+2*r+1}"))
            st.put(g, VM(f"buffer_store_dwordx4 {vr(a)}, v{VL16}, {sr(K.SRD_O)}, s{SO+rb} offen offset:{u*1024} sc1"))
    for x in stamp(): st.put(nm - 1, x)
    o = hazard.fix(em.emit(st.seq()))
    if nst[0]:
        o.append("s_waitcnt lgkmcnt(0)")
        o += [f"s_mov_b32 s{74 + 2*k}, s{16 + 2*k}" for k in range(nst[0])]
    return o


def sel_lanes(A, v, t, L, srcs):
    A(f"v_mov_b32 v{v}, s{srcs[0]}")
    for k, r in enumerate(srcs[1:]):
        A(f"v_mov_b32 v{t}, s{r}")
        A(f"v_cmp_lt_u32 vcc, 0x{128 * (k + 1) - 1:x}, v{L}")
        A("s_nop 1")
        A(f"v_cndmask_b32 v{v}, v{v}, v{t}, vcc")


def poll_addrs(A, S_OFF, av, step=None):
    L = gen_f.VLANE16
    A("s_lshr_b32 s40, s39, 17"); A("s_min_u32 s40, s40, 38")
    A(f"s_lshr_b32 s41, s{S_OFF}, 17")
    A(f"s_add_u32 s3, s{S_OFF}, {step or '0x4000'}"); A("s_lshr_b32 s3, s3, 17")
    sel_lanes(A, VPA, 6, L, [38, 40, 41, 3])
    A(f"v_bfe_u32 v6, v{L}, 4, 3")
    A("v_min_u32 v6, 5, v6")
    A(f"v_mad_u32_u24 v{VPA}, v{VPA}, 6, v6")
    if av:
        A(f"v_cmp_lt_u32 vcc, 0x7f, v{L}")
        A(f"v_add_u32 v6, {HF0 - P1F0}, v{VPA}")
        A("s_nop 0")
        A(f"v_cndmask_b32 v{VPA}, v{VPA}, v6, vcc")
    A(f"v_lshlrev_b32 v{VPA}, 7, v{VPA}")
    A(f"v_add_u32 v{VPA}, 0x{FLAG_OFF + P1F0 * FS:x}, v{VPA}")
    if step:
        A(f"s_mul_i32 s3, {step}, 54"); A("s_add_u32 s3, s3, s39"); A("s_min_u32 s41, s3, s39"); A("s_max_u32 s3, s3, s39"); A("s_lshr_b32 s41, s41, 17")
    else: A("s_sub_u32 s3, s49, 1")
    A("s_min_u32 s40, s40, s41"); A("s_mul_i32 s40, s40, 6")
    A("s_lshr_b32 s3, s3, 17"); A("s_min_u32 s3, s3, 38"); A("s_mul_i32 s3, s3, 6"); A("s_add_u32 s3, s3, 5")
    A(f"v_lshrrev_b32 v{VPB}, 4, v{L}")
    A(f"v_add_u32 v{VPB}, s40, v{VPB}")
    A(f"v_min_u32 v{VPB}, s3, v{VPB}")
    A(f"v_lshlrev_b32 v{VPB}, 7, v{VPB}")
    A(f"v_add_u32 v{VPB}, 0x{FLAG_OFF + (HF0 if av else P1F0) * FS:x}, v{VPB}")


def poll_a(A, o, opt):
    srd_from(o, SWS, 4, 0, 256 << 20)
    if opt.get('w0p'): A("s_cmp_lg_u32 s34, 0"); A("s_cbranch_scc1 LM_pa_go")
    gen_f.spin(A, "LM_pa", [f"buffer_load_dwordx2 v[6:7], v{VPA}, {sr(SWS)}, 0 offen sc1"], [6], 3)
    if opt.get('w0p'): A("s_barrier")


def poll_b_load(): return f"buffer_load_dwordx2 {vr(VPD, 2)}, v{VPB}, {sr(SWS)}, 0 offen sc1"


def poll_b_check(A):
    A(f"v_cmp_ne_u64 vcc, {sr(S_TAG, 2)}, {vr(VPD, 2)}")
    A("s_nop 1")
    A("s_cbranch_vccnz LM_pb")
    A("LM_pb_ret:")


def poll_b_spin():
    o = ["LM_pb:"]
    gen_f.spin(o.append, "LM_pb2", [poll_b_load()], [VPD], 3)
    return o + ["s_branch LM_pb_ret"]
```

```python
from layout import *

L_W0 = 4096
LIST_B = 20480
L_WS = LIST_B + 1024
PADV = 0xffff
BNMAX = 176
assert ((4096 + 3 * BNMAX) // 4 + BNMAX // 4 + 31) // 32 * 32 + 40 <= LIST_B // 16
S_BN, S_NB = 54, 55

VL = 1; VN16 = 2; VG = 3
CNT = 4; CP = 5
VOFF = 6
VCB = 7
VONE = 16; VFOUR = 17
MINV = [18, 19, 20, 21]
CB = 24
GS = 28
VS = 32; VT = 33; VT2 = 34; VCA = 35
VLB = 36
VFL = 37
VRD = 38
VST = 39
SELA = 40; SELB = 44
ACC = 48
IDXA = [52, 56]
AD = 60
PK = 64
PV = 66
VFILL = 68
VPAD = 72
IDX = 128
E = 192

S_B, S_W, S_PASS, S_LIM, S_NIT, S_IT, S_F, S_SO, S_T, S_512, S_EO = 40, 41, 42, 43, 44, 45, 46, 47, 48, 49, 50
SRD_C, SRD_E, SRD_G, SRD_H = 8, 12, 16, 20


def wave_reduce(A, v, t, op):
    for m in ("row_shr:1", "row_shr:2", "row_shr:4", "row_shr:8", "row_bcast:15 row_mask:0xa", "row_bcast:31 row_mask:0xc"):
        A("s_nop 1")
        A(f"{op}_dpp v{v}, v{v}, v{v} {m}" + (" row_mask:0xf" if "mask" not in m else "") + " bank_mask:0xf")


def gen_edge(o, opt):
    A = o.append
    timing = opt.get('timing')
    NEW = opt.get('new', 16); ECAP = 163840 // NEW; LPS = 64 // NEW; LS = LPS.bit_length() - 1; PER = 4096 // NEW
    nst = [0]
    def stamp():
        if timing:
            A("s_memtime s[88:89]")
            A("s_waitcnt lgkmcnt(0)")
            A(f"v_writelane_b32 v126, s88, {nst[0]}")
            nst[0] += 1
    A("LE_start:")
    A("s_cmp_ge_u32 s37, 32")
    A("s_cbranch_scc1 L2_end")
    A("v_lshrrev_b32 v1, 6, v0")
    A("s_sub_u32 s37, s37, 30")
    A("s_lshl_b32 s35, s35, 1")
    A(f"v_readfirstlane_b32 s{S_W}, v1")
    A("s_add_u32 s35, s35, s37")
    A("s_mul_i32 s35, s35, %d" % (3 if opt.get('light') else 4))
    A(f"s_add_u32 s{S_B}, s35, s{S_W}")
    if opt.get('light'):
        A(f"s_cmp_ge_u32 s{S_W}, 3")
        A("s_cbranch_scc1 L2_end")
    A("LE_common:")
    A(f"v_and_b32 v{VL}, 63, v0")
    if opt.get('wexit'):
        A(f"s_cmp_ge_u32 s{S_W}, {opt['wexit']}")
        A("s_cbranch_scc1 L2_end")
    for i, (n0, sz, b0, mg, c) in enumerate(segs()):
        assert sz <= BNMAX
        A(f"s_sub_u32 s36, s{S_B}, {b0}")
        A(f"s_cselect_b32 s{S_BN}, s{S_BN}, {sz}" if i else f"s_mov_b32 s{S_BN}, {sz}")
        A(f"s_mul_i32 s36, s36, {sz}")
        if i:
            A(f"s_add_u32 s36, s36, {n0}"); A(f"s_cmp_lt_u32 s{S_B}, {b0}")
        A(f"s_cselect_b32 s{S_NB}, s{S_NB}, s36" if i else f"s_mov_b32 s{S_NB}, s36")
    A(f"s_mov_b32 s{S_PASS}, 0")
    A(f"s_mov_b32 s{S_512}, 512")
    A(f"v_lshrrev_b32 v{VT}, {LS}, v{VL}")
    A(f"v_and_b32 v{VT2}, {LPS-1}, v{VL}")
    A(f"v_mul_u32_u24 v{VOFF}, 0x{ECAP*4:x}, v{VT}")
    A(f"v_lshl_add_u32 v{VOFF}, v{VT2}, 4, v{VOFF}")
    A(f"v_lshlrev_b32 v{VT}, 2, v{VT}")
    A(f"s_mul_i32 s{S_EO}, s{S_B}, {NEW*ECAP*4}")
    A(f"s_mul_i32 s{S_T}, s{S_B}, {NEW*4}")
    A("s_waitcnt lgkmcnt(0)")
    if timing:
        A("s_mov_b32 s100, s62")
        A("v_mov_b32 v126, v254")
    hl = ' sc1' if opt.get('mg') else ''
    if opt.get('mg'):
        import gen_f
        gen_f.poll_all(A, o, "LE_poll", SRD_C, 192)
        A(f"s_cmp_lg_u32 s{S_B}, 0")
        A("s_cbranch_scc1 LE_nobump")
        A(f"s_mov_b32 s90, {(gen_f.EPOCH - gen_f.P1F0) * gen_f.FS}")
        A(f"s_mov_b32 s{SRD_C+2}, {(gen_f.EPOCH + 1 - gen_f.P1F0) * gen_f.FS}")
        gen_f.publish(A, SRD_C, 90, 192, opt)
        A("LE_nobump:")
    srd_from(o, SRD_C, 4, ECNT_OFF, NBK * NEW * 4)
    srd_from(o, SRD_E, 4, EDGE_OFF, EDGE_BYTES)
    A(f"buffer_load_dword v{CNT}, v{VT}, {sr(SRD_C)}, s{S_T} offen{hl}")
    def eloads():
        for k in range(16):
            A(f"buffer_load_dwordx4 {vr(E + k*4)}, v{VOFF}, {sr(SRD_E)}, s{S_EO} offen offset:{k*16*LPS}{hl}")
    eloads()
    srd_from(o, SRD_G, 4, ME_OFF, ME_BYTES)
    srd_from(o, SRD_H, 4, HL_OFF, HL_BYTES)
    A(f"v_lshlrev_b32 v{CP}, 2, v{VT2}")
    A(f"v_and_b32 v{VN16}, 15, v{VL}")
    A(f"v_lshrrev_b32 v{VG}, 4, v{VL}")
    A(f"v_mov_b32 v{VONE}, 1")
    A(f"v_mov_b32 v{VFOUR}, 4")
    A(f"v_and_b32 v{VT}, 1, v{VN16}")
    A(f"v_lshlrev_b32 v{VT}, 4, v{VT}")
    A(f"v_lshlrev_b32 v{VT}, v{VT}, v{VONE}")
    A(f"v_mul_u32_u24 v{VT}, 0x3f80, v{VT}")
    A(f"v_lshrrev_b32 v{VT2}, 1, v{VN16}")
    for k in range(8):
        A(f"v_cmp_eq_u32 vcc, {k}, v{VT2}")
        A("s_nop 1")
        A(f"v_cndmask_b32 v{SELA + k}, 0, v{VT}, vcc")
    A(f"v_lshlrev_b32 v{VST}, 5, v{VN16}")
    A(f"v_lshl_add_u32 v{VST}, v{VG}, 3, v{VST}")
    A(f"v_lshlrev_b32 v{VN16}, 4, v{VN16}")
    A(f"s_mul_i32 s{S_T}, s{S_W}, {L_WS}")
    A(f"s_add_u32 s{S_T}, s{S_T}, {L_W0}")
    A(f"v_mov_b32 v{VLB}, s{S_T}")
    A(f"v_lshl_add_u32 v{VRD}, v{VG}, 2, v{VLB}")
    A(f"s_lshl_b32 s36, s{S_W}, 10")
    A(f"s_lshl_b32 s35, s{S_NB}, 2")
    A(f"s_sub_u32 s35, s36, s35")
    A(f"v_mov_b32 v{VCB}, s35")
    A(f"v_lshlrev_b32 v{VCA}, 4, v{VL}")
    A(f"v_add_u32 v{VFILL}, s{S_T}, v{VCA}")
    A(f"v_add_u32 v{VCA}, s36, v{VCA}")
    A(f"v_lshlrev_b32 v{VT}, 2, v{VL}")
    for k in range(4):
        A(f"v_mov_b32 v{VPAD+k}, 0x{PADV:x}")
    for k in range(4):
        if k: A(f"v_add_u32 v{VT}, 1, v{VT}")
        A(f"v_cmp_gt_u32 vcc, s{S_BN}, v{VT}")
        A(f"v_mov_b32 v{ACC+k}, 0")
        A("s_nop 0")
        A(f"v_cndmask_b32 v{MINV[k]}, 0, v{VONE}, vcc")
    A("LE_pass:")
    A(f"ds_write_b128 v{VCA}, {vr(ACC)}")
    for k in range(LIST_B // 1024):
        A(f"ds_write_b128 v{VFILL}, {vr(VPAD)} offset:{k*1024}")
    A(f"v_lshl_add_u32 v{VS}, v{VL}, 2, v{VLB}")
    A(f"ds_write_b32 v{VS}, v{ACC} offset:{LIST_B}")
    stamp()
    A("s_waitcnt vmcnt(16)")
    stamp()
    A(f"v_sub_u32 v{VS}, v{CNT}, v{CP}")
    def slots(lab, fn, wait=False):
        for k in range(16):
            if wait: A(f"s_waitcnt vmcnt({15-k})")
            for j in range(4):
                A(f"v_cmpx_lt_i32 vcc, {4*LPS*k+j}, v{VS}")
                if j == 0: A(f"s_cbranch_execz {lab}")
                fn(4 * k + j)
        A(f"{lab}:")
        A("s_mov_b64 exec, -1")
    def f_count(s):
        A(f"v_mad_u32_u16 v{IDX+s}, v{E+s}, 1, v{VCB} op_sel:[1,0,0,0]")
        A(f"ds_add_u32 v{IDX+s}, v{VONE}")
    slots("LE_c", f_count, True)
    stamp()
    A(f"ds_read_b128 {vr(CB)}, v{VCA}")
    A("s_waitcnt lgkmcnt(0)")
    for k in range(4):
        A(f"v_add_u32 v{CB+k}, 3, v{CB+k}")
        A(f"v_lshrrev_b32 v{CB+k}, 2, v{CB+k}")
        A(f"v_max_u32 v{CB+k}, v{CB+k}, v{MINV[k]}")
    A(f"v_add_u32 v{VT}, v{CB}, v{CB+1}")
    A(f"v_add3_u32 v{VT}, v{VT}, v{CB+2}, v{CB+3}")
    A(f"v_mov_b32 v{PK}, v{VT}")
    wave_reduce(A, PK, None, "v_add_u32")
    A("s_nop 1")
    A(f"v_readlane_b32 s{S_NIT}, v{PK}, 63")
    A(f"v_sub_u32 v{GS}, v{PK}, v{VT}")
    for k in range(1, 4):
        A(f"v_add_u32 v{GS+k}, v{GS+k-1}, v{CB+k-1}")
    for k in range(4):
        A(f"v_add3_u32 v{VT}, v{GS+k}, v{CB+k}, -1")
        A(f"v_lshlrev_b32 v{VT2}, v{VT}, v{MINV[k]}")
        A(f"v_lshrrev_b32 v{VT}, 5, v{VT}")
        A(f"v_lshl_add_u32 v{VT}, v{VT}, 2, v{VLB}")
        A(f"ds_or_b32 v{VT}, v{VT2} offset:{LIST_B}")
        A(f"v_lshl_add_u32 v{GS+k}, v{GS+k}, 4, v{VLB}")
    A(f"ds_write_b128 v{VCA}, {vr(GS)}")
    A(f"s_add_u32 s{S_NIT}, s{S_NIT}, 31")
    A(f"s_lshr_b32 s{S_NIT}, s{S_NIT}, 5")
    stamp()
    slots("LE_p", lambda s: A(f"ds_add_rtn_u32 v{IDX+s}, v{IDX+s}, v{VFOUR}"))
    A(f"v_lshl_add_u32 v{VT}, v{VL}, 2, v{VLB}")
    A(f"ds_read_b32 v{VFL}, v{VT} offset:{LIST_B}")
    A("s_waitcnt lgkmcnt(0)")
    slots("LE_w", lambda s: A(f"ds_write_b32 v{IDX+s}, v{E+s}"))
    stamp()
    A(f"v_mov_b32 v{VT2}, v{VRD}")
    NBT = 8
    def idx_read(b, par):
        i = IDXA[par]
        A(f"ds_read2_b32 v[{i}:{i+1}], v{VT2} offset0:{b*16} offset1:{b*16+4}")
        A(f"ds_read2_b32 v[{i+2}:{i+3}], v{VT2} offset0:{b*16+8} offset1:{b*16+12}")
    gl = opt.get('gl', hl)
    def issue(b):
        par = b % 2
        A("s_waitcnt lgkmcnt(0)")
        idx_read(b + 1, 1 - par)
        for i in range(4):
            A(f"v_mad_u32_u16 v{AD+i}, v{IDXA[par]+i}, s{S_512}, v{VN16}")
        for i in range(4):
            r = (b * 4 + i) * 8
            A(f"buffer_load_dwordx4 {ar(r)}, v{AD+i}, {sr(SRD_G)}, 0 offen{gl}")
            A(f"buffer_load_dwordx4 {ar(r+4)}, v{AD+i}, {sr(SRD_G)}, 0 offen offset:256{gl}")
    idx_read(0, 0)
    for b in range(NBT):
        issue(b)
    A(f"v_add_u32 v{VT2}, {NBT*64}, v{VT2}")
    A(f"s_mov_b32 s{S_IT}, 0")
    A(f"s_lshl_b32 s{S_SO}, s{S_NB}, 9")
    A("LE_loop:")
    A(f"v_readlane_b32 s{S_F}, v{VFL}, s{S_IT}")
    A(f"s_add_u32 s{S_IT}, s{S_IT}, 1")
    for b in range(NBT):
        A(f"s_waitcnt vmcnt({(NBT-1)*8})")
        for i in range(4):
            g = b * 4 + i
            r = g * 8
            A(f"v_mfma_f32_16x16x32_bf16 {vr(ACC)}, {ar(r)}, {vr(SELA)}, {vr(ACC)}")
            A(f"v_mfma_f32_16x16x32_bf16 {vr(ACC)}, {ar(r+4)}, {vr(SELB)}, {vr(ACC)}")
            A(f"s_bitcmp1_b32 s{S_F}, {g}")
            A(f"s_cbranch_scc0 LE_nf{g}")
            A(f"s_cmp_eq_u32 s{S_PASS}, 0")
            A(f"s_cbranch_scc1 LE_fl{g}")
            A(f"buffer_load_dwordx2 v[{PV}:{PV+1}], v{VST}, {sr(SRD_H)}, s{S_SO} offen sc1")
            A("s_waitcnt vmcnt(0)")
            for k in range(2):
                A(f"v_lshlrev_b32 v{PK}, 16, v{PV+k}")
                A(f"v_and_b32 v{PK+1}, 0xffff0000, v{PV+k}")
                A(f"v_add_f32 v{ACC+2*k}, v{ACC+2*k}, v{PK}")
                A(f"v_add_f32 v{ACC+2*k+1}, v{ACC+2*k+1}, v{PK+1}")
            A(f"LE_fl{g}:")
            A("s_nop 3")
            A(f"v_cvt_pk_bf16_f32 v{PK}, v{ACC}, v{ACC+1}")
            A(f"v_cvt_pk_bf16_f32 v{PK+1}, v{ACC+2}, v{ACC+3}")
            for k in range(4):
                A(f"v_mov_b32 v{ACC+k}, 0")
            A(f"buffer_store_dwordx2 v[{PK}:{PK+1}], v{VST}, {sr(SRD_H)}, s{S_SO} offen{opt.get('ste', '')}")
            A(f"s_add_u32 s{S_SO}, s{S_SO}, 512")
            A(f"LE_nf{g}:")
        issue(b)
    A(f"v_add_u32 v{VT2}, {NBT*64}, v{VT2}")
    A(f"s_cmp_lt_u32 s{S_IT}, s{S_NIT}")
    A("s_cbranch_scc1 LE_loop")
    stamp()
    A(f"s_add_u32 s{S_PASS}, s{S_PASS}, 1")
    A(f"s_mul_i32 s{S_LIM}, s{S_PASS}, {PER}")
    A(f"v_cmp_lt_u32 vcc, s{S_LIM}, v{CNT}")
    A("s_cbranch_vccz LE_done")
    A(f"s_cmp_ge_u32 s{S_PASS}, {ECAP // PER}")
    A("s_cbranch_scc1 LE_done")
    A("s_waitcnt vmcnt(0) lgkmcnt(0)")
    A(f"s_add_u32 s{S_EO}, s{S_EO}, {PER*4}")
    A(f"v_add_u32 v{CP}, 0x{PER:x}, v{CP}")
    eloads()
    A("s_branch LE_pass")
    A("LE_done:")
    if opt.get('fuse'):
        import gen_f
        srd_from(o, 24, 4, gen_f.FLAG_OFF, gen_f.NFLAG * gen_f.fstr(opt))
        A(f"s_add_u32 s{S_T}, s{S_B}, {gen_f.HLF0}")
        A(f"s_mul_i32 s{S_T}, s{S_T}, {gen_f.fstr(opt)}")
        A("s_waitcnt vmcnt(0)")
        gen_f.publish(A, 24, S_T, VS, opt)
    if opt.get('tpf'):
        A("s_getpc_b64 s[64:65]")
        A("LE_pc:")
        A("s_sub_u32 s64, s64, LE_pc-L2_tail_0")
        A("s_subb_u32 s65, s65, 0")
        A("s_mov_b32 s66, L2_rare_site0-L2_tail_0")
        A("s_mov_b32 s67, 0x00020000")
        A("s_mov_b64 exec, -1")
        A(f"v_lshlrev_b32 v1, 7, v{VL}")
        for k in range(3):
            A(f"s_movk_i32 s68, 0x{k*8192:x}")
            A(f"buffer_load_dword v{2+k}, v1, s[64:67], s68 offen")
    if timing:
        A("s_waitcnt vmcnt(0)")
        stamp()
        A(f"v_subrev_u32 v0, s100, v126")
        A("s_memrealtime s[88:89]")
        A("s_waitcnt lgkmcnt(0)")
        A("v_writelane_b32 v0, s88, 7")
        A("s_add_u32 s60, s4, 0x%x\ns_addc_u32 s61, s5, 0" % TIM_OFF)
        A("s_mov_b32 s62, 0x200000\ns_mov_b32 s63, 0x00020000")
        A(f"s_lshl_b32 s35, s{S_B}, 8")
        A(f"s_add_u32 s35, s35, 0x100000")
        A(f"v_lshlrev_b32 v1, 2, v{VL}")
        A(f"buffer_store_dword v0, v1, s[60:63], s35 offen")
    A("s_branch L2_end")
```

```python
from layout import *
from sched import *
import hazard

MF32 = "v_mfma_f32_16x16x32_bf16"
FLAG_OFF = 124 << 20
NFLAG = 2048
HLF0 = 1280
FS = 128
P1F0, WFF0, HF0, AF0, EPOCH = 1344, 1600, 1664, 1920, 2047
S_TAG = 98
MG = [0]
OOB = 0x70000000
MLS = 128
OWN = [[0, 4, 8], [1, 5, 12], [2, 9, 13], [6, 10, 14], [3, 7], [11, 15]]
SX, SWS, SM, SD, SO = 8, 16, 24, 52, 56
P_X = 60
S_NEED = 96
XO = [6, 7, 29]; S_FO = 51
S_WAVE, S_SPLIT, S_SPB, S_ML0 = 34, 37, 50, 48
S_XL, S_XB, S_H2 = 31, 28, 30
VLANE16, VE = 248, 241
DIAG, ACC, BF, ZA, WT, T = 0, 160, 208, 128, 144, 232
POOL = [r for r in range(48, 128, 8) if r not in (72, 104)]
VDUM, VPO2, VP1 = 36, 43, 242
XR = [104, 108, 152]
VIL, VH0, VH1, VPOLL, VPO, VPF = 40, 44, 45, 46, 47, 158
VWF = 108
VBH, VOW, VDGR = 72, 76, 79
VMK = 156
VW0, VW1, VML_, VT0, VT1, VTR, VWW, VWR, VZ, VZR, DG = 240, 241, 242, 245, 246, 247, 249, 250, 251, 252, 253
VML = 244
WO = [32, 33, 35, 36, 38, 39, 40, 41]
STR = [42, 43, 44, 45, 46, 47]
S_TMP = [49, 3]
S_SPIN, S_MASK = 94, 95


def fstr(opt): return FS


def pre_wait(A, s_oq, s_own):
    tab = 0
    for i, b in enumerate(x for l in OWN for x in l): tab |= b << (4 * i)
    A(f"s_mov_b32 s6, 0x{tab & 0xffffffff:x}")
    A(f"s_mov_b32 s7, 0x{tab >> 32:x}")
    A("s_mul_i32 s3, s37, 12")
    A("s_min_u32 s3, s3, 56")
    A("s_lshr_b64 s[6:7], s[6:7], s3")
    A("s_bfe_u32 s29, s6, 0x40008")
    A("s_bfe_u32 s7, s6, 0x40004")
    A("s_and_b32 s6, s6, 15")
    A("s_cmp_lt_u32 s37, 4")
    A("s_cselect_b32 s29, s29, 16")
    A(f"s_mov_b32 s{s_oq}, 0")
    A(f"s_mov_b32 s{s_own}, 0")
    for r in XO:
        A(f"s_lshr_b32 s3, s{r}, 2")
        A(f"s_cmp_eq_u32 s3, s{S_WAVE}")
        A(f"s_cselect_b32 s{s_oq}, s{r}, s{s_oq}")
        A(f"s_cselect_b32 s{s_own}, 1, s{s_own}")
    A(f"s_and_b32 s{s_oq}, s{s_oq}, 3")
    A("s_lshl_b32 s3, s38, 17")
    A(f"s_lshl_b32 s{S_FO}, s{S_WAVE}, 7")
    A(f"s_add_u32 s3, s3, s{S_FO}")
    for r in XO:
        A(f"s_lshl_b32 s{r}, s{r}, 13")
        A(f"s_add_u32 s{r}, s{r}, s3")
    A(f"s_mov_b64 s[{S_NEED}:{S_NEED+1}], 0")
    for r in XO:
        for e in (0, 15):
            A(f"s_lshr_b32 s3, s{r}, 9")
            if e: A(f"s_add_u32 s3, s3, {e}")
            for i, (n0, sz, b0, mg, c) in enumerate(segs()):
                A(f"s_mul_i32 s40, s3, {mg}")
                if i:
                    A(f"s_add_u32 s40, s40, 0x{c:x}"); A(f"s_cmp_lt_u32 s3, {n0}")
                A(f"s_cselect_b32 s41, s41, s40" if i else "s_mov_b32 s41, s40")
            A(f"s_lshr_b32 s3, s41, {BSHIFT}")
            A(f"s_bitset1_b64 s[{S_NEED}:{S_NEED+1}], s3")
    A("s_mul_i32 s3, s38, 6")
    A("s_add_u32 s3, s3, s37")
    A(f"s_cmp_eq_u32 s3, {38 * 6 + 5}")
    A("s_cselect_b32 s3, 0, s37")
    A("s_cmp_lt_u32 s3, 4")
    A(f"s_cselect_b32 s29, s29, 0x{OOB:x}")
    A(f"s_lshl_b32 s{S_FO}, s38, 5")
    A(f"s_lshl_b32 s3, s{S_WAVE}, 3")
    A(f"s_add_u32 s{S_FO}, s{S_FO}, s3")
    A(f"s_add_u32 s{S_FO}, s{S_FO}, s37")
    A(f"s_mul_i32 s{S_FO}, s{S_FO}, {FS}")
    A(f"s_add_u32 s{S_FO}, s{S_FO}, 0x{FLAG_OFF:x}")


def prologue(A, o, s_own):
    srd_from(o, SWS, 4, 0, 256 << 20)
    srd_from(o, SX, P_X, 0, N * 512)
    A(f"s_mov_b32 s{SD+2}, 0x{N*2:x}"); A(f"s_mov_b32 s{SD+3}, 0x00020000")
    A(f"s_mov_b32 s{SO+2}, 0x{N*512:x}"); A(f"s_mov_b32 s{SO+3}, 0x00020000")
    A(f"s_lshr_b32 s{S_ML0}, s40, 2")
    A(f"s_cmp_eq_u32 s{s_own}, 1")
    A(f"s_cselect_b32 s40, 0x{OOB:x}, s40")
    A(f"s_cselect_b32 s44, 0x{OOB:x}, s44")


def ml_addr(v, L):
    return [f"v_bfe_u32 v{v}, v{L}, 8, 1", f"v_mul_u32_u24 v{v}, 48, v{v}", f"v_lshl_add_u32 v{v}, s{S_SPLIT}, 3, v{v}",
            f"v_and_b32 v{v+1}, 0xf0, v{L}", f"v_lshl_add_u32 v{v}, v{v+1}, 3, v{v}"]


def publish(A, srd, soff, vt, opt, both=False):
    assert vt % 2 == 0
    A(f"v_mov_b32 v{vt}, s{S_TAG}")
    A(f"v_mov_b32 v{vt+1}, s{S_TAG+1}")
    A("s_mov_b64 exec, 1")
    A(f"buffer_store_dwordx2 {vr(vt, 2)}, off, {sr(srd)}, s{soff} sc1")
    if both: A(f"buffer_store_dwordx2 {vr(vt, 2)}, off, {sr(srd)}, s{soff} offset:8 sc1")
    A("s_mov_b64 exec, -1")


def spin(A, lab, loads, regs, cnt=94, need=None, pair='vcc'):
    A(f"s_mov_b32 s{cnt}, 0x10000")
    A(f"{lab}:")
    for t in loads: A(t)
    A(f"s_sub_u32 s{cnt}, s{cnt}, 1")
    A("s_waitcnt vmcnt(0)")
    A(f"s_cbranch_scc1 {lab}_go")
    for r in regs:
        A(f"v_cmp_ne_u64 vcc, {sr(S_TAG, 2)}, {vr(r, 2)}")
        A("s_nop 1")
        A(f"s_cbranch_vccnz {lab}")
    A(f"{lab}_go:")


def poll_all(A, o, lab, srd, v):
    srd_from(o, srd, 4, FLAG_OFF + P1F0 * FS, 256 * FS)
    A(f"v_and_b32 v{v+8}, 63, v0")
    A(f"v_lshlrev_b32 v{v+8}, 7, v{v+8}")
    so = ['0', 's91', 's90', 's95']
    for k in range(1, 4): A(f"s_mov_b32 {so[k]}, {k * 8192}")
    spin(A, lab, [f"buffer_load_dwordx2 {vr(v+2*k, 2)}, v{v+8}, {sr(srd)}, {so[k]} offen sc1" for k in range(4)], [v + 2 * k for k in range(4)])


def vh0(v, t):
    L = VLANE16
    return [f"v_lshrrev_b32 v{v}, 4, v{L}", f"v_and_b32 v{v}, 0x30, v{v}", f"v_xor_b32 v{v}, v{v}, v{L}",
            f"v_and_b32 v{t}, 0x380, v{L}\nv_mad_u32_u24 v{v}, v{t}, 3, v{v}"]


def early1(p, opt):
    q = []
    A = lambda t, c=1: q.append((c, t))
    A(f"s_and_b32 s30, s30, 0x1c000")
    cur = p + opt['trun'] - 1; assert opt['trun'] in (4, 5)
    A(f"s_add_u32 s{S_XB}, s30, 0x{((5 if cur < 5 else 8) - cur) * 0x4000:x}")
    A(f"s_and_b32 s{S_XB}, s{S_XB}, 0x1ffff")
    A(f"s_add_u32 s30, s30, 0x{(6 - cur) * 0x4000:x}")
    A(f"s_and_b32 s30, s30, 0x1ffff")
    A(f"s_mul_i32 s{S_XL}, s{S_WAVE}, 6144")
    A(f"s_add_u32 s{S_XL}, s{S_XL}, s30")
    A(f"s_lshl_b32 s3, s{S_WAVE}, 10")
    A(f"s_add_u32 s{S_XB}, s{S_XB}, s3")
    A(f"s_add_u32 s3, s3, 24576")
    A(f"s_add_u32 s{S_H2}, s30, s3")
    for t in vh0(VE, 243): A(t, 1 + t.count("\n"))
    return q


def dma6(A, c):
    seq = [(rb, u) for u in range(2) for rb in range(3)]
    m0 = lambda rb, u: f"s_add_u32 m0, s{S_XL}, {rb*2048 + u*1024}" if c == 'x' else f"s_add_u32 m0, s{S_XB if rb < 2 else S_H2}, {(rb % 2)*8192 + u*4096}"
    A(m0(*seq[0]), 2)
    for k, (rb, u) in enumerate(seq):
        t = f"buffer_load_dwordx4 v{VE}, {sr(SX)}, s{XO[rb]} offen lds" if c == 'x' else f"buffer_load_dwordx4 v{VE}, {sr(SWS)}, s{XO[rb]} offen sc1 lds ; HLD"
        if k < 5: t += "\n" + m0(*seq[k + 1])
        A(t, 2)
        if k == 2: A(f"v_xor_b32 v{VE}, 0x1040, v{VE}")


def early_x(p, opt):
    q = []
    dma6(lambda t, c=1: q.append((c, t)), 'x')
    return q


def early_hf(p, opt):
    return [(1, f"v_lshlrev_b32 v{VE}, 3, v{VLANE16}"), (1, f"s_mov_b32 s3, 0x{FLAG_OFF + HLF0 * FS:x}"),
            (1, f"buffer_load_dwordx2 {vr(VE-1, 2)}, v{VE}, {sr(SWS)}, s3 offen sc1 ; HLFLAG")]


def early_h(p, opt):
    q = []
    A = lambda t, c=1: q.append((c, t))
    A("WAIT HLFLAG")
    A(f"v_cmp_ne_u64_e64 s[38:39], {sr(S_TAG, 2)}, {vr(VE-1, 2)}")
    A(f"s_and_b64 s[38:39], s[38:39], s[{S_NEED}:{S_NEED+1}]\ns_cbranch_scc1 LF_hl_{p}\nLF_hlret_{p}:", 2)
    for t in vh0(VE, 243): A(t, 1 + t.count("\n"))
    A(f"v_add_u32 v{VE}, 0x{HL_OFF:x}, v{VE}")
    if MG[0]:
        A(f"v_and_b32 v{VWF+2}, 0x70, v{VLANE16}")
        A(f"v_lshlrev_b32 v{VWF+2}, 3, v{VWF+2}")
        A(f"v_add_u32 v{VWF+2}, 0x{FLAG_OFF + WFF0 * FS:x}, v{VWF+2}")
        A(f"buffer_load_dwordx2 {vr(VWF, 2)}, v{VWF+2}, {sr(SWS)}, 0 offen sc1")
    dma6(A, 'h')
    return q


def fix_waits(lines):
    lines = [x for l in lines for x in l.split("\n")]
    for b, l in enumerate(lines):
        if l.startswith("WAIT "):
            a = max(i for i, x in enumerate(lines) if x.endswith("; " + l[5:]))
            n = sum(1 for x in lines[a + 1:b] if x.startswith("buffer_"))
            assert a < b and n < 64, (l, a, b, n)
            lines[b] = f"s_waitcnt vmcnt({n})"
    return lines


def hl_spin(p):
    return [f"LF_hl_{p}:", f"s_mov_b32 s{S_SPIN}, 0x10000", f"s_mov_b32 s3, 0x{FLAG_OFF + HLF0 * FS:x}", f"LF_hl2_{p}:", f"v_lshlrev_b32 v{VE}, 3, v{VLANE16}",
            f"buffer_load_dwordx2 {vr(VE-1, 2)}, v{VE}, {sr(SWS)}, s3 offen sc1",
            f"s_sub_u32 s{S_SPIN}, s{S_SPIN}, 1", "s_waitcnt vmcnt(0)", f"s_cbranch_scc1 LF_hlret_{p}",
            f"v_cmp_ne_u64_e64 s[38:39], {sr(S_TAG, 2)}, {vr(VE-1, 2)}", f"s_and_b64 s[38:39], s[38:39], s[{S_NEED}:{S_NEED+1}]",
            f"s_cbranch_scc1 LF_hl2_{p}", f"s_branch LF_hlret_{p}"]


R = lambda s, n: s * n
ORDERS = {
    'h2': "d" + R("a", 12) + "F" + R("a", 20) + R("b", 12) + "q" + R("b", 10) + "Q" + "mmm" + R("0b", 6) + "|" + R("1b", 4) + "11|" + "222|222|",
    'h5': "d" + R("a", 12) + "F" + R("a", 20) + R("b", 8) + "q" + R("b", 10) + "Q" + "mmm" + "0b0b0b1b1b1b2b2b2b|0b0b0b|1b1b1|222|",
    'h6': "d" + R("a", 12) + "F" + R("a", 20) + R("b", 20) + "p" + R("b", 12) + "Pqmmm000Q111222|000|111|222|",
    'h7': "d" + R("a", 12) + "F" + R("a", 16) + "p" + R("a", 4) + R("b", 8) + "Pmmm" + "0bb0bb0bb1bb1bb1bbq2bb2bb2bb|bbbbbbQ000|111|222|",
    'i1': "d" + R("a", 10) + "pF" + R("a", 8) + "Pmmm" + "0a0a0a1a1a1a2a2a2aa" + "q" + R("a", 4) + "b|" + R("b", 7) + "Q" + "0bb0bb0bb|1bb1bb1bb|2bb2bb2bb|" + R("b", 6),
    'i2': "d" + R("a", 10) + "Fp" + R("a", 10) + "Pmmm" + "0a0a0a1a1a1a2aa2aa2aa" + "|q" + R("b", 12) + "Q" + "0bb0bb0bb|1bb1bb1bb|2bb2bb2bbbb|",
    'i3': "d" + R("a", 10) + "Fp" + R("a", 22) + "Pmmm" + "0b0b0b1b1b1b2bb2bb2bb" + "|q" + R("b", 12) + "Q" + "0bb0bb0bb|1bb11|222|",
    'i4': "d" + R("a", 10) + "Fp" + R("a", 6) + "Pmmm" + "000111222" + "|q" + R("a", 16) + "Q" + "000|111|222|" + R("b", 32),
    'i5': "d" + R("a", 10) + "Fp" + R("a", 10) + "Pmmm" + "00aa01aa11aa22aa2aaaa" + "q|" + R("b", 16) + "Q" + "00bbbb0|1bbbb11bbbb|2bbbb22|",
}


def flag1(opt):
    return [(1, "WAIT ST3"), (1, f"v_mov_b32 v46, s{S_TAG}"), (1, f"v_mov_b32 v47, s{S_TAG+1}"),
            (3, f"s_mov_b64 exec, 1\nbuffer_store_dwordx2 v[46:47], off, {sr(SWS)}, s{S_FO} offset:8 sc1\ns_mov_b64 exec, -1")]


def final(opt, stamp=None):
    stamp = stamp or (lambda A: None)
    q = []
    A = lambda t, **k: q.append(V(t, **k))
    L = VLANE16
    if MG[0]: A(f"v_cmp_ne_u64 vcc, {sr(S_TAG, 2)}, {vr(VWF, 2)}")
    A(f"s_lshl_b32 s3, s{S_WAVE}, 15")
    A(f"s_add_u32 s3, s3, 0x{WF_OFF:x}")
    if MG[0]: A("s_cbranch_vccnz LF_wf\nLF_wf_go:")
    A(f"v_add_u32 v{VW0}, s3, v{L}")
    A(f"v_add_u32 v{VW1}, 0x4000, v{VW0}")
    for k in range(8): A(f"s_mov_b32 s{WO[k]}, 0x{(k >> 2) * 131072 + (k & 3) * 4096:x}")
    for rb in range(3): A(f"s_lshr_b32 s{STR[rb]}, s{XO[rb]}, 13")
    A(f"v_mov_b32 v{VML}, s{STR[0]}")
    A(f"v_mov_b32 v{T}, s{STR[1]}")
    A(f"v_cmp_lt_u32 vcc, 0xff, v{L}")
    A(f"v_mov_b32 v{T+1}, s{STR[2]}")
    A(f"v_cndmask_b32 v{VML}, v{VML}, v{T}, vcc")
    A(f"v_cmp_lt_u32 vcc, 0x1ff, v{L}")
    A(f"v_and_b32 v{T+3}, 0xf0, v{L}")
    A(f"v_cndmask_b32 v{VML}, v{VML}, v{T+1}, vcc")
    A(f"v_lshlrev_b32 v{VML}, 11, v{VML}")
    A(f"v_lshl_add_u32 v{VML}, v{T+3}, 3, v{VML}")
    A(f"v_lshrrev_b32 v{VDGR}, 6, v{VML}")
    late = []
    B = lambda t: late.append(V(t))
    B(f"s_lshl_b32 s3, s{S_SPLIT}, 3")
    B(f"v_add3_u32 v{VML}, v{VML}, s3, 8")
    B(f"s_cmp_ge_u32 s{XO[2]}, 0x{OOB:x}")
    B(f"s_cselect_b32 s{STR[2]}, s{STR[1]}, s{STR[2]}")
    B(f"v_mov_b32 v{VPOLL}, s{STR[0]}")
    B(f"v_mov_b32 v{T}, s{STR[1]}")
    B(f"v_cmp_lt_u32 vcc, 0x7f, v{L}")
    B(f"v_mov_b32 v{T+1}, s{STR[2]}")
    B(f"v_cndmask_b32 v{VPOLL}, v{VPOLL}, v{T}, vcc")
    B(f"v_cmp_lt_u32 vcc, 0xff, v{L}")
    B(f"v_bfe_u32 v{T}, v{L}, 4, 3")
    B(f"v_cndmask_b32 v{VPOLL}, v{VPOLL}, v{T+1}, vcc")
    B(f"v_min_u32 v{T}, 5, v{T}")
    B(f"v_lshrrev_b32 v{VPOLL}, 2, v{VPOLL}")
    B(f"v_lshl_add_u32 v{VPOLL}, v{VPOLL}, 3, v{T}")
    B(f"v_lshlrev_b32 v{VPOLL}, {FS.bit_length() - 1}, v{VPOLL}")
    B(f"v_add_u32 v{VPOLL}, 0x{FLAG_OFF:x}, v{VPOLL}")
    B(f"s_lshl_b32 s49, s{S_WAVE}, 10")
    B(f"s_add_u32 s49, s49, 0x20000")
    for rb in range(3):
        B(f"s_bfe_u32 s3, s{XO[rb]}, 0x2000f")
        B(f"s_lshl_b32 s3, s3, 13")
        B(f"s_add_u32 s3, s3, s49")
        B(f"v_add_u32 v{VOW+rb}, s3, v{L}")
    for k in range(6):
        B(f"s_add_u32 s3, s{S_SPLIT}, {k + 1}")
        B(f"s_sub_u32 s49, s3, 6")
        B(f"s_cselect_b32 s3, s3, s49")
        B(f"s_mul_i32 s3, s3, 0x{OP_STRIDE:x}")
        B(f"s_add_u32 s{STR[k]}, s3, 0x{OP_OFF if not opt.get('foob') else OOB:x}")
    B(f"s_mul_i32 s3, s{S_WAVE}, {1024 - 128}")
    B(f"v_add_u32 v{VPO}, s3, v{L}")
    B(f"v_add_u32 v{VPO2}, 0x1000, v{VPO}")
    for t in vh0(VH0, T): late += [V(x) for x in t.split("\n")]
    B(f"v_xor_b32 v{VH1}, 0x1040, v{VH0}")
    B(f"v_bfe_u32 v{T}, v{L}, 5, 3")
    B(f"v_lshrrev_b32 v{T+2}, 8, v{L}")
    B(f"v_xor_b32 v{T}, v{T}, v{T+2}")
    B(f"v_bfe_u32 v{T+1}, v{L}, 4, 3")
    B(f"v_lshlrev_b32 v{T+1}, 7, v{T+1}")
    B(f"v_lshl_or_b32 v{T}, v{T}, 4, v{T+1}")
    B(f"v_bfe_u32 v{T+1}, v{L}, 7, 1")
    B(f"s_lshl_b32 s49, s{S_WAVE}, 10")
    B(f"s_sub_u32 s3, s{S_XB}, s49")
    B(f"v_lshl_add_u32 v{VBH+2}, v{T+1}, 12, v{T}")
    B(f"v_add_u32 v{VBH}, s3, v{VBH+2}")
    B(f"s_sub_u32 s3, s{S_H2}, s49")
    B(f"v_add_u32 v{VBH+2}, s3, v{VBH+2}")
    B(f"v_xor_b32 v{VBH+1}, 64, v{VBH}")
    B(f"v_xor_b32 v{VBH+3}, 64, v{VBH+2}")
    B(f"v_lshl_add_u32 v{VT0}, v{T+1}, 10, v{T}")
    B(f"v_add_u32 v{VT0}, s{S_XL}, v{VT0}")
    B(f"v_xor_b32 v{VT1}, 64, v{VT0}")
    B(f"v_add_u32 v{VTR}, s{S_XL}, v{L}")
    B(f"s_add_u32 s3, s3, 0x{0x10000 - 24576:x}")
    B(f"s_and_b32 s3, s3, 0x1ffff")
    B(f"v_add_u32 v{VZR}, s3, v{L}")
    B(f"v_add_u32 v{VZ}, s49, v{VZR}")
    B(f"s_lshl_b32 s49, s{S_WAVE}, 11")
    B(f"s_add_u32 s3, s3, s49")
    B(f"s_add_u32 s3, s3, 24576")
    B(f"v_lshl_add_u32 v{VWW}, v{L}, 1, s3")
    B(f"v_lshl_add_u32 v{VWR}, v{T+3}, 1, s3")
    B(f"v_lshrrev_b32 v{T}, 4, v{T+3}")
    B(f"v_lshlrev_b32 v{T+2}, 2, v{T+2}")
    B(f"v_sub_u32 v{T}, v{T}, v{T+2}")
    B(f"v_and_b32 v{T+1}, 1, v{T}")
    B(f"v_lshlrev_b32 v{T+1}, 4, v{T+1}")
    B(f"v_mov_b32 v{T+2}, 0xffff")
    B(f"v_lshlrev_b32 v{T+1}, v{T+1}, v{T+2}")
    B(f"v_lshrrev_b32 v{T}, 1, v{T}")
    for k in range(2):
        B(f"v_cmp_eq_u32 vcc, {k}, v{T}")
        B(f"v_cndmask_b32 v{VMK+k}, 0, v{T+1}, vcc")
    B(f"s_mov_b32 s{S_MASK}, 0xffff0000")
    order = opt.get('forder', 'i1'); order = ORDERS.get(order, order)
    D = opt.get('fd', 12)
    Lq = []; cnt = {}; bar = set()
    for ch in order:
        if ch == '|': bar.add(len(Lq) - 1); continue
        Lq.append((ch, cnt.get(ch, 0))); cnt[ch] = cnt.get(ch, 0) + 1
    assert dict(cnt, p=1, P=1) == dict(F=1, P=1, p=1, Q=1, q=1, d=1, m=3, a=32, b=32, **{'0': 6, '1': 6, '2': 6}), cnt
    wgt = lambda e: 0 if e[0] in 'FPQ' else (1 if e[1] % 3 == 2 and e[0] != '2' else 2) if e[0] in '012' else 1
    free = list(POOL); reg = {}; low = [99]; glue = set()
    MLR = ZA
    ld = opt.get('fld', ' sc1')
    pl = lambda ch: f"buffer_load_dwordx2 {vr(VP1, 2)}, v{VPOLL}, {sr(SWS)}, 0 offen offset:{8 if ch == 'p' else 0} sc1"
    def issue(z, e):
        Z = lambda t: z.append(V(t))
        ch, k = e
        if ch == 'F':
            z.append(W('ost')); stamp(Z)
            Z(f"v_mov_b32 v{VPF}, s{S_TAG}"); Z(f"v_mov_b32 v{VPF+1}, s{S_TAG+1}"); Z("s_mov_b64 exec, 1")
            z.append(VM(f"buffer_store_dwordx2 {vr(VPF, 2)}, off, {sr(SWS)}, s{S_FO} sc1", tag=e)); Z("s_mov_b64 exec, -1")
        elif ch in 'pq':
            z.append(VM(pl(ch), tag=e))
        elif ch in 'PQ':
            stamp(Z)
            z.append(V(f"v_cmp_ne_u64 vcc, {sr(S_TAG, 2)}, {vr(VP1, 2)}", needs=[(ch.lower(), 0)])); Z(f"s_nop 1\ns_cbranch_vccnz LF_spin{ch}\nLF_go{ch}:")
            stamp(Z)
        elif ch == 'd':
            z.append(VM(f"buffer_load_ushort v{VDGR}, v{VDGR}, {sr(SD)}, 0 offen", tag=e))
        elif ch == 'm':
            z.append(VM(f"buffer_load_dwordx4 {vr(MLR + 4*k)}, v{VML}, {sr(SM)}, 0 offen offset:{16*k} sc1", tag=e))
        elif ch in '012':
            r = reg[e] = free.pop(0); low[0] = min(low[0], len(free))
            rb = int(ch); j, sp = k // 3, k % 3
            gl = lambda u, rr: f"buffer_load_dwordx4 {vr(rr)}, v{VPO2 if j else VPO}, {sr(SWS)}, s{S_TMP[u]} offen{ld}"
            dl = lambda rr: f"ds_read_b128 {vr(rr)}, v{VOW+rb} offset:{j*4096}"
            for u in range(2):
                if sp == 2 and u == 1 and rb < 2:
                    z.append(LD(dl(r + 4), tag=('own', e))); continue
                Z(f"s_add_u32 s{S_TMP[u]}, s{XO[rb]}, s{STR[2*sp+u]}")
                if sp == 2 and u == 1:
                    Z(f"s_cmp_lt_u32 s{S_SPLIT}, 4\ns_cbranch_scc1 LF_o{j}")
                    z.append(V(gl(u, r + 4) + f"\n{dl(VDUM)}\ns_branch LF_j{j}\nLF_o{j}:\ns_mov_b32 s{S_TMP[u]}, 0x{OOB:x}"))
                    z.append(VM(gl(u, VDUM), tag=e)); z.append(LD(dl(r + 4) + f"\nLF_j{j}:", tag=('own', e)))
                    glue.update(id(x) for x in z[-3:])
                else: z.append(VM(gl(u, r + 4 * u), tag=e))
        else:
            z.append(VM(wload('ab'.index(ch), k), tag=e))
    tn = [0]
    def tmp():
        tn[0] += 1; return T + (tn[0] % 4) * 2
    diag = lambda rb, sp: DIAG + rb * 12 + sp * 4
    WTS = [WT, ZA, ZA + 8]
    def wt(z, rb):
        z.append(LD(f"ds_read_b128 {vr(WTS[rb])}, v{VWR} offset:{rb*512}"))
        z.append(LD(f"ds_read_b128 {vr(WTS[rb]+4)}, v{VWR} offset:{rb*512+16}", tag=('wt', rb)))
    def dbuild(z, rb):
        for s in range(NSPLIT):
            for k in range(2): z.append(V(f"v_and_b32 v{diag(rb, s // 2) + 2*(s % 2) + k}, v{WTS[rb]+s}, v{VMK+k}", needs=[('wt', rb)]))
        z.append(V(f"v_mov_b32 v{VIL+rb}, v{WTS[rb]+6}"))
    def dg_setup(z):
        z.append(V(f"v_lshlrev_b32 v{VDGR}, 16, v{VDGR}"))
        z.append(LD(f"ds_write_b32 v{VWW}, v{VDGR} offset:28"))
        for rb in range(3): z.append(LD(f"ds_read_b32 v{DG+rb}, v{VWR} offset:{rb*512+28}", tag='dg'))
    def weights(z):
        Z = lambda t: z.append(V(t))
        m = lambda s: MLR + 2 * s
        l = lambda s: m(s) + 1
        Z(f"v_max3_f32 v{T}, v{m(0)}, v{m(1)}, v{m(2)}")
        Z(f"v_max3_f32 v{T+1}, v{m(3)}, v{m(4)}, v{m(5)}")
        Z(f"v_max_f32 v{T}, v{T}, v{T+1}")
        Z(f"v_subrev_f32 v{T}, 0x42fe0000, v{T}")
        for s in range(NSPLIT): Z(f"v_sub_f32 v{m(s)}, v{m(s)}, v{T}")
        for s in range(NSPLIT): Z(f"v_cvt_u32_f32 v{m(s)}, v{m(s)}")
        for s in range(NSPLIT): Z(f"v_lshlrev_b32 v{T+2+s}, 23, v{m(s)}")
        Z(f"v_mul_f32 v{T}, v{T+2}, v{l(0)}")
        for s in range(1, NSPLIT): Z(f"v_fmac_f32 v{T}, v{T+2+s}, v{l(s)}")
        Z(f"v_rcp_f32 v{WT+6}, v{T}")
        for s in range(NSPLIT): Z(f"v_mul_u32_u24 v{WT+s}, 0x800080, v{m(s)}")
        z.append(LD(f"ds_write_b128 v{VWW}, {vr(WT)}"))
        z.append(LD(f"ds_write_b96 v{VWW}, {vr(WT+4, 3)} offset:16"))
        for rb in range(3): wt(z, rb)
        for rb in range(3): dbuild(z, rb)
    zw = set(); zok = set()
    acc = lambda rb, j, b: ACC + ((rb * 2 + j) * 2 + b) * 4
    un = [0]
    post = []
    def cstep(vq, ms, rb, k):
        j, sp = k // 3, k % 3
        e = (str(rb), k)
        r = reg[e]
        if sp == 0: un[0] += 1
        zd = ZA + 8 * (un[0] % 2)
        pre = [V(f"v_swap_b32 v{r+2}, v{r+4}", needs=[('own', e)] if sp == 2 else []), V(f"v_swap_b32 v{r+3}, v{r+5}")]
        for h in range(2):
            ms.append(Ins(f"{MF32} {vr(zd+4*h)}, {vr(r+4*h)}, {vr(diag(rb, sp))}, {vr(zd+4*h) if sp else 0}", 0))
        free.append(r)
        if sp == 2:
            z = [V(f"v_mul_f32 v{zd+c}, v{zd+c}, v{VIL+rb}") for c in range(8)]
            z += [V(f"v_cvt_pk_bf16_f32 v{zd+c}, v{zd+2*c}, v{zd+2*c+1}") for c in range(4)]
            z.append(LD(f"ds_write_b128 v{VZ}, {vr(zd)} offset:{rb*8192 + j*4096}", tag='z'))
            post.append(((rb, j), z))
        return pre
    nxt = {(m, rb): list(range(8)) for m in range(2) for rb in range(3)}
    groups = []; arrived = set(); barpos = [0]
    xn = [0]
    def x_read(z):
        n = xn[0]
        if n < 6: z.append(LD(f"ds_read_b128 {vr(XR[n % 3])}, v{VT0 + n % 2} offset:{(n // 2)*2048}", tag=('xr', n))); xn[0] += 1
    fdone = []
    def fma_x(z, rb):
        assert rb == len(fdone); fdone.append(rb)
        for j in range(2):
            n = 2 * rb + j; x = XR[n % 3]
            for c in range(4):
                t = tmp(); a = acc(rb, j, 0) + 2 * c
                z.append(V(f"v_lshlrev_b32 v{t}, 16, v{x+c}", needs=[('xr', n), 'dg']))
                z.append(V(f"v_and_b32 v{t+1}, s{S_MASK}, v{x+c}"))
                z.append(V(f"v_fma_f32 v{a}, v{a}, v{DG+rb}, v{t}"))
                z.append(V(f"v_fma_f32 v{a+1}, v{a+1}, v{DG+rb}, v{t+1}"))
            x_read(z)
    def ep(z, rb):
        for j in range(2):
            a = acc(rb, j, 0)
            for c in range(4): z.append(V(f"v_cvt_pk_bf16_f32 v{a+c}, v{a+2*c}, v{a+2*c+1}"))
            z.append(LD(f"ds_write_b128 v{VT0+j}, {vr(a)} offset:{rb*2048}"))
        for u in range(2): z.append(LD(f"ds_read_b128 {vr(acc(rb, u, 1))}, v{VTR} offset:{rb*2048 + u*1024}", tag=('y', rb, u)))
        stq.extend(VM(f"buffer_store_dwordx4 {vr(acc(rb, u, 1))}, v{VH0+u}, {sr(SO)}, s{XO[rb]} offen{opt.get('fst', '')}", needs=[('y', rb, u)]) for u in range(2))
    pend = []; blk = set(); stq = []
    def pick(cap):
        ms = []; n = 0
        while n < cap:
            cand = []
            for (m, rb), ts in nxt.items():
                if m == 1 and (nxt[(0, rb)] or ('fma', rb) in pend or rb in blk): continue
                for t in ts:
                    if m == 1 and (rb, t // 4) not in zok: continue
                    if ('ab'[m], 4 * t + 3) not in arrived: continue
                    cand.append((-m, rb if m else 0, t, rb)); break
            if not cand: break
            m, _, t, rb = min(cand); m = -m
            g = len(groups); groups.append((m, t, rb, barpos[0] if m == 1 or not groups else groups[-1][3], m == 0 and len(nxt[(m, rb)]) == 8))
            ms += [('G', g, b) for b in range(4)]
            nxt[(m, rb)].remove(t); n += 1
            if not nxt[(m, rb)]: pend.append(('fma' if m == 0 else 'ep', rb))
        return ms
    def merge(ms, vq):
        per = opt.get('fper', 2)
        while ms or vq:
            if ms: q.append(ms.pop(0))
            k = 0
            while vq and (k < per or not ms or id(vq[0]) in glue):
                x = vq.pop(0); q.append(x); k += 2 if (x.t or '').startswith(('v_swap', 'buffer')) else 1
    def take_pend(vq, n=9):
        blk.clear(); vq += stq; stq.clear()
        for p in list(pend)[:n]:
            pend.remove(p); (fma_x if p[0] == 'fma' else ep)(vq, p[1]); blk.add(p[1])
    def take_post(vq):
        for u, z in post: vq += z; zw.add(u)
        post.clear()
    def barrier():
        A("s_barrier"); q.append(('BAR', len(q))); barpos[0] = len(q) - 1
        stamp(A)
    ni = [0]
    def issue_n(z, k, d):
        while ni[0] < len(Lq) and sum(wgt(e) for e in Lq[k + 1:ni[0] + 1]) <= d:
            e = Lq[ni[0]]
            if e[0] in '012' and not free: break
            if e[0] in 'PQ' and (e[0].lower(), 0) not in arrived: break
            issue(z, e); ni[0] += 1
    fidx = [k for k, e in enumerate(Lq) if e[0] == 'F'][0]
    n1 = fidx - (Lq[fidx - 1][0] == 'p')
    while ni[0] < n1: issue(q, Lq[ni[0]]); ni[0] += 1
    q.extend(late)
    while ni[0] < fidx: issue(q, Lq[ni[0]]); ni[0] += 1
    if opt.get('fbf', 1): issue(q, Lq[fidx]); ni[0] += 1
    A("s_waitcnt lgkmcnt(0)")
    barrier()
    for _ in range(3): x_read(q)
    if not opt.get('fbf', 1): issue(q, Lq[fidx]); ni[0] += 1
    for k, e in enumerate(Lq):
        if e[0] not in 'FPQ': q.append(W(e))
        arrived.add(e)
        vq = []; ms = []; pre = []
        issue_n(vq, k, D)
        take_post(vq)
        take_pend(vq, 1)
        if e == ('d', 0): dg_setup(vq)
        if e == ('m', 2): weights(vq)
        if e[0] in '012': pre = cstep(vq, ms, int(e[0]), e[1])
        fill = pick(max(opt.get('fcap', 2) if e[0] in '012' else 1, (len(vq) + 7) // 8))
        if len(fill) >= 2: merge(fill[:2] + ms + fill[2:], pre + vq)
        else: q.extend(pre); merge(ms + fill, vq)
        if k in bar:
            vq = []; take_post(vq); merge(pick(opt.get('fcapb', 1)), vq)
            if zw - zok: q.append(W('z'))
            barrier()
            zok |= zw
    while any(nxt.values()) or pend or stq:
        vq = []; take_pend(vq); merge(pick(99), vq)
    NR = 6
    Fr = lambda n: BF + (n % NR) * 4
    def rd(n):
        m, t, rb = groups[n][:3]
        if m == 0: s = f"ds_read_b128 {vr(Fr(n))}, v{VBH + (rb // 2)*2 + (t & 1)} offset:{(rb % 2)*8192 + (t >> 1)*1024}"
        else: s = f"ds_read_b128 {vr(Fr(n))}, v{VZR} offset:{rb*8192 + t*1024}"
        return LD(s, tag=('f', n))
    out = []; nr = 0; done = -1
    for pos, it in enumerate(q):
        if isinstance(it, tuple) and it[0] == 'G':
            n, b = it[1], it[2]; m, t, rb, _, first = groups[n]
            assert nr > n
            a = acc(rb, b >> 1, b & 1)
            out.append(Ins(f"{MF32} {vr(a)}, {ar(m*128 + (4*t + b)*4)}, {vr(Fr(n))}, {0 if first else vr(a)}", 0, needs=[('f', n)]))
            if b == 0:
                done = n - 1
                if nr < len(groups) and nr <= done + NR and groups[nr][3] <= pos: out.append(rd(nr)); nr += 1
            if b == 3: done = n
        elif isinstance(it, tuple) and it[0] == 'BAR':
            while nr < len(groups) and nr <= done + NR - 1 and groups[nr][3] <= pos: out.append(rd(nr)); nr += 1
        else: out.append(it)
    if opt.get('fmem'):
        n0 = out.index(late[-1])
        def ok(it):
            if it.t is None: return all(isinstance(t, tuple) and t[0] in 'abmdpq012' or t == 'ost' for t in it.needs)
            if it.t.startswith('buffer_store_dwordx4'): return False
            return it.t.startswith(('s_', 'buffer_', f'v_mov_b32 v{VPF}', 'v_cmp', 'ds_read_b128 v[' + str(VDUM))) and not it.t.startswith('s_barrier') or 'LF_j' in it.t
        out = out[:n0 + 1] + [it for it in out[n0 + 1:] if ok(it)]
    em = Emitter(); em.pos['ost'] = ('vm', 0); em.cnt['vm'] = 1; em.kind.append(False)
    o = hazard.fix(em.emit(out))
    if opt.get('verbose'): print("final: min free", low[0], "lines", len(o), "nops", sum(1 for x in o if x.startswith('s_nop')))
    sp = []
    for ch in ('PQ' if 'P' in cnt else 'Q'):
        sp.append(f"LF_spin{ch}:")
        spin(sp.append, f"LF_spin2{ch}", [pl(ch.lower())], [VP1], S_SPIN)
        sp.append(f"s_branch LF_go{ch}")
    if MG[0]:
        sp.append("LF_wf:")
        spin(sp.append, "LF_wf2", [f"buffer_load_dwordx2 {vr(VWF, 2)}, v{VWF+2}, {sr(SWS)}, 0 offen sc1"], [VWF], S_SPIN)
        sp.append("s_branch LF_wf_go")
    return o, sp


def wload(m, k):
    t, j, b = k >> 2, (k >> 1) & 1, k & 1
    return f"buffer_load_dwordx4 {ar(m*128 + 4*k)}, v{VW0 + j}, {sr(SWS)}, s{WO[m*4 + (t >> 1)]} offen offset:{(t & 1)*2048 + b*1024}{' sc1' if MG[0] else ''}"
```

```python
from layout import *
from sched import *
import hazard
import struct, math

K1_LDS = 163840
SRD_X, SRD_W1, SRD_W2, SRD_O, SRD_H = 40, 44, 48, 52, 56
S_W, S_ROLE, S_ROT, S_M0, S_XO = 60, 61, 62, 63, 64
SK1, SK2, SO, S_SC, S_EPS, S_R256, S_MASK = 66, 74, 82, 86, 88, 89, 90
VL16, VWQ, VWK, VTR, VK, VH, VQW, VQ, VHW = 16, 17, 21, 25, 29, 31, 33, 35, 36
MF32 = "v_mfma_f32_16x16x32_bf16"
DPP = " row_mask:0xf bank_mask:0x%x"


def ln_code(pre, NL, HP, LN0, VHW, opt, more, stamp, after=None):
    A = lambda t: pre.append(V(t))
    U = lambda j: LN0 + 8 * j
    SQ = LN0 + 8 * NL
    for j in range(NL):
        x, u, s = HP + 4 * j, U(j), SQ + 4 * j
        pre.append(W(('x', j)))
        if j == 0: pre += stamp()
        for k in range(4):
            A(f"v_lshlrev_b32 v{u+2*k}, 16, v{x+k}")
            A(f"v_and_b32 v{u+2*k+1}, s{S_MASK}, v{x+k}")
        if opt.get('nopk', 0) >= 3:
            A(f"v_add_f32 v{s}, v{u}, v{u+1}"); A(f"v_mul_f32 v{s+2}, v{u}, v{u}")
            A(f"v_add_f32 v{s+1}, v{u+2}, v{u+3}"); A(f"v_mul_f32 v{s+3}, v{u+1}, v{u+1}")
            for k in range(2, 8):
                if k >= 4: A(f"v_add_f32 v{s+(k&1)}, v{s+(k&1)}, v{u+k}")
                A(f"v_fmac_f32 v{s+2+(k&1)}, v{u+k}, v{u+k}")
            A(f"v_add_f32 v{s}, v{s}, v{s+1}"); A(f"v_add_f32 v{s+2}, v{s+2}, v{s+3}")
        else:
            A(f"v_pk_add_f32 {vr(s,2)}, {vr(u,2)}, {vr(u+2,2)}")
            A(f"v_pk_mul_f32 {vr(s+2,2)}, {vr(u,2)}, {vr(u,2)}")
            A(f"v_pk_add_f32 {vr(x,2)}, {vr(u+4,2)}, {vr(u+6,2)}")
            A(f"v_pk_fma_f32 {vr(s+2,2)}, {vr(u+2,2)}, {vr(u+2,2)}, {vr(s+2,2)}")
            A(f"v_pk_add_f32 {vr(s,2)}, {vr(s,2)}, {vr(x,2)}")
            A(f"v_pk_fma_f32 {vr(s+2,2)}, {vr(u+4,2)}, {vr(u+4,2)}, {vr(s+2,2)}")
            A(f"v_add_f32 v{s}, v{s}, v{s+1}")
            A(f"v_pk_fma_f32 {vr(s+2,2)}, {vr(u+6,2)}, {vr(u+6,2)}, {vr(s+2,2)}")
            A(f"v_add_f32 v{s+2}, v{s+2}, v{s+3}")
        more()
    for j in range(NL): A(f"v_permlane16_swap_b32 v{SQ+4*j}, v{SQ+4*j+2}")
    for j in range(NL): A(f"v_add_f32 v{SQ+4*j}, v{SQ+4*j}, v{SQ+4*j+2}")
    def merge(regs, mode, m0, m1, off):
        out = []
        for a in range(0, len(regs), 2):
            (ra, la) = regs[a]
            d = ra + off
            if a + 1 < len(regs):
                rb_, lb = regs[a + 1]
                A(f"v_add_f32_dpp v{d}, v{ra}, v{ra} {mode}" + DPP % m0)
                A(f"v_add_f32_dpp v{d}, v{rb_}, v{rb_} {mode}" + DPP % m1)
                sh = 8 if m1 == 0xc else 4
                out.append((d, {**la, **{k: v + sh for k, v in lb.items()}}))
            else:
                A(f"v_add_f32_dpp v{d}, v{ra}, v{ra} {mode}" + DPP % 0xf)
                out.append((d, la))
        return out
    regs = [(SQ + 4 * j, {j: 0}) for j in range(NL)]
    regs = merge(regs, "row_ror:8", 0x3, 0xc, 1)
    regs = merge(regs, "row_half_mirror", 0x5, 0xa, 1)
    for qp in ("[1,0,3,2]", "[2,3,0,1]"):
        for r, _ in regs: A(f"v_add_f32_dpp v{r}, v{r}, v{r} quad_perm:{qp}" + DPP % 0xf)
    for r, _ in regs: A(f"v_mov_b32 v{r+1}, v{r}")
    for r, _ in regs: A(f"v_permlane16_swap_b32 v{r+1}, v{r}")
    ops = lambda r: [f"v_mul_f32 v{r+1}, s{S_R256}, v{r+1}", f"v_mul_f32 v{r}, s{S_R256}, v{r}",
                     f"v_fma_f32 v{r}, -v{r+1}, v{r+1}, v{r}", f"v_cvt_pk_bf16_f32 v{r+1}, v{r+1}, v{r+1}", f"v_max_f32 v{r}, 0, v{r}",
                     f"v_cvt_pk_bf16_f32 v{r}, v{r}, v{r}", f"v_and_b32 v{r}, s{S_MASK}, v{r}", f"v_add_f32 v{r}, s{S_EPS}, v{r}",
                     f"v_cvt_pk_bf16_f32 v{r}, v{r}, v{r}", f"v_and_b32 v{r}, s{S_MASK}, v{r}", f"v_sqrt_f32 v{r}, v{r}",
                     f"v_and_b32 v{r+1}, s{S_MASK}, v{r+1}",
                     f"v_cvt_pk_bf16_f32 v{r}, v{r}, v{r}", f"v_and_b32 v{r}, s{S_MASK}, v{r}", f"v_rcp_f32 v{r}, v{r}",
                     f"v_mul_f32 v{r+1}, -v{r+1}, v{r}"]
    for tt in zip(*[ops(r) for r, _ in regs]):
        for t in tt: A(t)
    for r, lm in regs:
        for j, ln in lm.items():
            A(f"v_mov_b64_dpp {vr(SQ+4*j,2)}, {vr(r,2)} row_newbcast:{ln} row_mask:0xf bank_mask:0xf")
    for j in range(NL):
        x, u, s = HP + 4 * j, U(j), SQ + 4 * j
        for k in range(4):
            if opt.get('nopk', 0) >= 1:
                for z in range(2): A(f"v_fma_f32 v{u+2*k+z}, v{u+2*k+z}, v{s}, v{s+1}")
            else: A(f"v_pk_fma_f32 {vr(u+2*k,2)}, {vr(u+2*k,2)}, {vr(s,2)}, {vr(s,2)} op_sel:[0,0,1] op_sel_hi:[1,0,1]")
        for k in range(4):
            A(f"v_cvt_pk_bf16_f32 v{x+k}, v{u+2*k}, v{u+2*k+1}")
        pre.append(LD(f"ds_write_b128 v{VHW+j}, {vr(x)}", tag='hw'))
        if after: after(j)
        more()


def img_addrs(A, NL, RPW, HIMG, VHW, VH):
    A("v_bfe_u32 v5, v2, 2, 3")
    A(f"v_xor_b32 v5, s{S_ROT}, v5")
    A("v_and_b32 v6, 3, v2")
    A("v_lshlrev_b32 v7, 10, v5")
    A("v_lshl_add_u32 v7, v6, 8, v7")
    A(f"v_add_u32 v7, 0x{HIMG:x}, v7")
    A("v_and_b32 v5, 1, v5")
    A("v_lshl_or_b32 v6, v5, 2, v6")
    A("v_lshrrev_b32 v5, 5, v2")
    A(f"s_mul_i32 s6, s{S_W}, {RPW}")
    for j in range(NL):
        A(f"v_add3_u32 v8, v5, s6, {2*j}")
        A("v_lshrrev_b32 v9, 4, v8")
        A("v_lshl_add_u32 v9, v9, 13, v7")
        A("v_and_b32 v8, 15, v8")
        A("v_xor_b32 v8, v8, v6")
        A(f"v_lshl_add_u32 v{VHW+j}, v8, 4, v9")
    A("v_xor_b32 v5, v3, v4")
    A("v_lshlrev_b32 v5, 4, v5")
    A("v_lshl_add_u32 v5, v4, 8, v5")
    A(f"v_add_u32 v{VH}, 0x{HIMG:x}, v5")
    A(f"v_xor_b32 v{VH+1}, 64, v{VH}")

def gemm_prog(role, opt):
    NW = opt.get('nw', 8); NF = 16 // NW; CW = 16 * NF; NPC = NF; CH = NPC * 1024; RS = 32 * NF
    main = role == 'q'
    MGD = opt.get('mg')
    NRB = opt.get('nrb', 3) if main else 4
    RPW = 16 * NRB // NW; NL = RPW // 2
    IMG = NRB * 8192
    RC = (K1_LDS - (2 if main else 1) * IMG) // NW // CH
    RC = min(RC, opt.get('rc', 8))
    WSZ = RC * CH
    HIMG = NW * WSZ; QIMG = HIMG + IMG
    assert QIMG + (IMG if main else 0) <= K1_LDS
    stx = opt.get('st', '')
    p = VHW + NL; p = (p + 3) // 4 * 4
    HP = p; p += NL * 4
    ACC1 = p; p += NF * NRB * 4
    LN0 = p
    ACC2 = p; p += NF * NRB * 4 if main else 0
    RW, RB = opt.get('rw', 6 if NW == 8 else 10), opt.get('rb', 4 if NW == 8 else 3) * NRB
    WR = p; p += RW * 4
    BR = p; p += RB * 4
    assert p <= 255, p
    nst = [0]
    def stamp(kind=0):
        if not opt.get('timing') or kind != opt.get('skind', 0) or (kind and not main): return []
        nst[0] += 1
        assert nst[0] <= 8
        return [V(f"s_memtime s[{14+2*nst[0]}:{15+2*nst[0]}]", cost=0)]
    pre = []
    A = lambda t: pre.append(V(t))
    A(f"v_lshlrev_b32 v{VL16}, 4, v2")
    A(f"s_mul_i32 s{S_M0}, s{S_W}, {WSZ}")
    if main:
        A(f"s_mul_i32 s6, s4, {NRB*8192}" if not MGD else "s_mov_b32 s6, s14")
        A(f"s_mul_i32 s7, s{S_W}, {RPW*512}")
        A(f"s_add_u32 s{S_XO}, s6, s7")
        A(f"s_add_u32 s{S_XO+1}, s{S_XO}, 4096")
    else:
        A("s_and_b32 s6, s4, 3")
        A(f"s_lshl_b32 s6, s6, 6")
        A(f"s_mul_i32 s7, s{S_W}, {RPW}")
        A("s_add_u32 s6, s6, s7")
        A("v_lshrrev_b32 v5, 5, v2")
        A("v_and_b32 v6, 31, v2")
        A("v_lshlrev_b32 v6, 4, v6")
        A("s_cmp_ge_u32 s4, 4")
        A("s_cselect_b64 vcc, -1, 0")
        for j in range(NL):
            A(f"v_add3_u32 v7, v5, s6, {2*j}")
            A("v_and_b32 v8, 0x80, v7")
            A("v_bfe_u32 v9, v7, 2, 1"); A("v_lshl_or_b32 v8, v9, 6, v8")
            A("v_bfe_u32 v9, v7, 4, 1"); A("v_lshl_or_b32 v8, v9, 5, v8")
            A("v_and_b32 v9, 3, v7"); A("v_lshl_or_b32 v8, v9, 3, v8")
            A("v_bfe_u32 v9, v7, 5, 2"); A("v_lshl_or_b32 v8, v9, 1, v8")
            A("v_bfe_u32 v9, v7, 3, 1"); A("v_or_b32 v8, v9, v8")
            A("v_cndmask_b32 v8, v8, v7, vcc")
            A(f"v_lshl_add_u32 v{HP+4*j}, v8, 9, v6")
    A(f"s_lshl_b32 s7, s{S_W}, {(CW*2).bit_length()-1}")
    if NW == 4:
        A("v_lshrrev_b32 v5, 3, v2")
        A("v_and_b32 v6, 7, v2")
        A("v_and_b32 v7, 2, v5")
        A("v_xor_b32 v6, v6, v7")
        A("v_lshl_add_u32 v5, v5, 9, s7")
        A(f"v_lshl_add_u32 v{VWQ}, v6, 4, v5")
        A("v_xor_b32 v6, 4, v6")
        A(f"v_lshl_add_u32 v{VWQ+1}, v6, 4, v5")
        A(f"v_add_u32 v{VWQ+1}, 0xc00, v{VWQ+1}")
        A(f"v_add_u32 v{VWQ+2}, 0x1800, v{VWQ}")
        A(f"v_add_u32 v{VWQ+3}, 0x1800, v{VWQ+1}")
    else:
        A("v_lshrrev_b32 v5, 2, v2")
        A("v_and_b32 v6, 3, v2")
        A("v_lshrrev_b32 v7, 5, v2")
        A("v_lshlrev_b32 v7, 1, v7")
        A("v_xor_b32 v6, v6, v7")
        A("v_lshl_add_u32 v5, v5, 9, s7")
        A(f"v_lshl_add_u32 v{VWQ}, v6, 4, v5")
        A(f"v_add_u32 v{VWQ+1}, 0x1c00, v{VWQ}")
    for t in range(8):
        A(f"s_xor_b32 s6, s{S_ROT}, {t}")
        A(f"s_lshl_b32 s{SK1+t}, s6, 14")
    A("s_waitcnt lgkmcnt(0)")
    o = []
    if main:
        srd_from(o, SRD_X, 16, 0, N * 512 if not MGD else "s15"); srd_from(o, SRD_W1, 26, 0, 131072)
    else:
        o += ["s_cmp_ge_u32 s4, 4", "s_cselect_b32 s6, s30, s24", "s_cselect_b32 s7, s31, s25"]
        srd_from(o, SRD_X, 6, 0, 131072); srd_from(o, SRD_W1, 32, 0, 131072)
    for t in o: A(t)
    xso = lambda j: f"s{S_XO + j // 4} offen offset:{(j % 4) * 1024}"
    for j in range(NL):
        if main: pre.append(VM(f"buffer_load_dwordx4 {vr(HP+4*j)}, v{VL16}, {sr(SRD_X)}, {xso(j)}", tag=('x', j)))
        else: pre.append(VM(f"buffer_load_dwordx4 {vr(HP+4*j)}, v{HP+4*j}, {sr(SRD_X)}, 0 offen", tag=('x', j)))
    NCH = 16 if main else 8
    def dma(c, needs=()):
        srd, vw, so = (SRD_W1, VWQ, SK1 + c) if c < 8 else (SRD_W2, VWK, SK2 + c - 8)
        q = [V(f"s_add_u32 m0, s{S_M0}, 0x{(c % RC) * CH:x}", needs=needs), V("s_nop 0", cost=0)]
        for k in range(NPC):
            q.append(VM(f"buffer_load_dwordx4 v{vw+k}, {sr(srd)}, s{so} offen offset:{k*1024} lds", tag=('c', c) if k == NPC - 1 else None))
        return q
    NPRE = min(opt.get('npre', RC), RC)
    TCH = opt.get('touch', 0)
    if TCH and main:
        o = []; srd_from(o, SRD_W2, 28, 0, 131072)
        for t in o: A(t)
        A(f"s_sub_u32 s6, s5, {(opt.get('new', 32) + 8) // 8 * NW + 16}")
        A("s_lshl_b32 s7, s6, 13")
        A("s_cmp_lt_u32 s6, 16")
        A("s_cselect_b32 s7, s7, 0x7fff0000")
        pre.append(VM(f"buffer_load_dword v255, v10, {sr(SRD_W2)}, s7 offen"))
        if TCH > 1:
            A(f"s_sub_u32 s6, s6, 16")
            A("s_lshl_b32 s7, s6, 13")
            A("s_cmp_lt_u32 s6, 16")
            A("s_cselect_b32 s7, s7, 0x7fff0000")
            pre.append(VM(f"buffer_load_dword v255, v10, {sr(SRD_W1)}, s7 offen"))
    for c in range(NPRE): pre += dma(c)
    if MGD and main:
        for t in MGD: A(t)
    img_addrs(A, NL, RPW, HIMG, VHW, VH)
    A("v_lshrrev_b32 v5, 2, v3")
    A("v_and_b32 v6, 3, v3")
    A("v_and_b32 v7, 1, v4")
    if NW == 4:
        A("v_lshlrev_b32 v7, 2, v7"); A("v_and_b32 v8, 2, v5"); A("v_or_b32 v7, v7, v8")
    else:
        A("v_lshlrev_b32 v7, 1, v7")
    A("v_lshl_add_u32 v8, v4, 3, v5")
    A(f"v_lshlrev_b32 v8, {RS.bit_length()-1}, v8")
    A(f"v_add_u32 v8, s{S_M0}, v8")
    if main:
        A("v_and_b32 v9, 1, v6"); A("v_lshl_add_u32 v8, v9, 3, v8")
        A("v_lshrrev_b32 v6, 1, v6")
    A("v_xor_b32 v6, v6, v7")
    for f in range(NF):
        if main:
            A(f"v_xor_b32 v9, {2*f}, v6"); A(f"v_lshl_add_u32 v{VTR+f}, v9, 4, v8")
        elif f % 2 == 0:
            A(f"v_xor_b32 v9, {2*f}, v6"); A(f"v_lshl_add_u32 v{VTR+f}, v9, 4, v8")
        else:
            A(f"v_add_u32 v{VTR+f}, 8, v{VTR+f-1}")
    o = []
    if main:
        A("v_lshrrev_b32 v5, 3, v2")
        A("v_and_b32 v6, 7, v2")
        A("v_lshrrev_b32 v7, 1, v5")
        A("v_xor_b32 v6, v6, v7")
        A("v_and_b32 v7, 4, v5")
        A("v_add_u32 v5, v5, v7")
        A(f"s_mul_i32 s6, s{S_W}, {CW*512}")
        A("v_lshl_add_u32 v5, v5, 9, s6")
        A(f"v_lshl_add_u32 v{VWK}, v6, 4, v5")
        A("v_xor_b32 v6, 4, v6")
        A(f"v_lshl_add_u32 v{VWK+1}, v6, 4, v5")
        A(f"v_add_u32 v{VWK+1}, 0x{16*512-1024:x}, v{VWK+1}")
        if NW == 4:
            A(f"v_mov_b32 v{VWK+2}, v{VWK}")
            A(f"v_mov_b32 v{VWK+3}, v{VWK+1}")
        A(f"s_lshr_b32 s7, s{S_ROT}, 1")
        for tp in range(4):
            A(f"s_xor_b32 s6, s7, {tp}")
            A(f"s_lshl_b32 s{SK2+2*tp}, s6, 7")
            A(f"s_add_u32 s{SK2+2*tp+1}, s{SK2+2*tp}, {(4 if NW == 8 else 32)*512}")
        A(f"s_and_b32 s6, s{S_ROT}, 1"); A("s_lshl_b32 s6, s6, 2")
        A("v_lshrrev_b32 v5, 1, v3")
        A("v_xor_b32 v5, v5, v4")
        A("v_xor_b32 v5, s6, v5")
        A(f"v_lshl_add_u32 v6, v3, 7, s{S_M0}")
        A(f"v_lshl_add_u32 v{VK}, v5, 4, v6")
        A(f"v_xor_b32 v{VK+1}, 64, v{VK}")
        A(f"s_mul_i32 s6, s{S_W}, {NF//2}")
        A(f"s_xor_b32 s6, s6, s{S_ROT}")
        A("s_lshl_b32 s6, s6, 10")
        A(f"s_add_u32 s6, s6, 0x{QIMG:x}")
        A("v_lshrrev_b32 v5, 1, v4"); A("v_and_b32 v6, 1, v4")
        A("v_lshl_add_u32 v5, v5, 8, s6")
        A("v_lshl_add_u32 v5, v6, 3, v5")
        A(f"v_lshl_add_u32 v{VQW}, v3, 4, v5")
        A(f"v_xor_b32 v{VQW+1}, 0x400, v{VQW}")
        A(f"v_add_u32 v{VQ}, 0x{QIMG:x}, v{VL16}")
        srd_from(o, SRD_W2, 26 if opt.get('w2same') else 28, 0, 131072)
        srd_from(o, SRD_O, 38, QF_OFF, QF_BYTES if not MGD else "s15")
        srd_from(o, SRD_H, 38, H_OFF, NB16 * 8192 if not MGD else "s15")
        A(f"s_mul_i32 s6, s4, {NRB*8192}" if not MGD else "s_mov_b32 s6, s14")
        A(f"s_mul_i32 s7, s{S_W}, {NF//2*1024}")
        A(f"s_add_u32 s{SO}, s6, s7")
        for b in range(1, NRB): A(f"s_add_u32 s{SO+b}, s{SO}, {b*8192}")
        qs = struct.unpack('<I', struct.pack('<f', math.log2(math.e) / 16))[0]
        A(f"s_mov_b32 s{S_SC}, 0x{qs:x}"); A(f"s_mov_b32 s{S_SC+1}, 0x{qs:x}")
        A(f"s_mov_b32 s{S_EPS}, 0x3727c5ac"); A(f"s_mov_b32 s{S_R256}, 0x3b800000"); A(f"s_mov_b32 s{S_MASK}, 0xffff0000")
    else:
        srd_from(o, SRD_O, 38, WF_OFF, 262144)
        A("s_lshr_b32 s6, s4, 2"); A("s_lshl_b32 s6, s6, 17")
        A("s_and_b32 s7, s4, 3"); A("s_lshl_b32 s7, s7, 12")
        A("s_add_u32 s6, s6, s7")
        A(f"s_mul_i32 s7, s{S_W}, {NF//2*16384}")
        A(f"s_add_u32 s{SO}, s6, s7")
        A(f"s_add_u32 s{SO+1}, s{SO}, 16384")
    for t in o: A(t)
    pre += stamp()
    rest = [x for c in range(NPRE, min(RC, NCH)) for x in [dma(c)]]
    def more(force=False):
        if rest and (force or not opt.get('late')): pre.extend(rest.pop(0))
    if main:
        n0 = len(pre)
        ln_code(pre, NL, HP, LN0, VHW, opt, more, stamp)
        if opt.get('pace'):
            p0, pc = opt['pace']
            ln = pre[n0:]; del pre[n0:]
            flat = []
            for q in rest: flat += [q[:3]] + [[x] for x in q[3:]]
            rest.clear()
            for k, x in enumerate(ln):
                pre.append(x)
                if k >= p0 and (k - p0) % pc == 0 and flat and x.t and not x.t.startswith(('v_permlane', 'v_add_f32_dpp', 'v_mov_b')): pre.extend(flat.pop(0))
            for q in flat: pre.extend(q)
            if opt.get('verbose'): print("LN len", len(ln), "left", len(flat))
    else:
        for j in range(NL):
            pre.append(LD(f"ds_write_b128 v{VHW+j}, {vr(HP+4*j)}", tag='hw', needs=[('x', j)]))
    pre += stamp()
    while rest and opt.get('late', 0) < 2: more(True)
    st = Stream(); st.pre = pre
    wf, bf = [], []
    wreg = lambda k: WR + (k % RW) * 4
    breg = lambda k: BR + (k % RB) * 4
    def use(lst, k, n):
        lst[k].setdefault('first', n); lst[k]['last'] = n
    def mf(acc, wk, bk, first):
        a, b = (wreg(wk), breg(bk)) if main else (breg(bk), wreg(wk))
        n = st.mfma(f"{MF32} {vr(acc)}, {vr(a)}, {vr(b)}, {0 if first else vr(acc)}", needs=[('w', wk), ('b', bk)])
        use(wf, wk, n); use(bf, bk, n); return n
    acc1 = lambda f, rb: ACC1 + (f * NRB + rb) * 4
    acc2 = lambda f, rb: ACC2 + (rb * NF + f) * 4
    done1, done2 = {}, {}
    for t in range(8):
        sl = (t % RC) * CH
        b0 = len(bf)
        for rb in range(NRB):
            bf.append(dict(reads=[f"ds_read_b128 {vr(breg(b0+rb))}, v{VH + (t & 1)} offset:{rb*8192 + t*1024}"], ph=0))
        for f in range(NF):
            k = len(wf); r = wreg(k)
            wf.append(dict(reads=[f"ds_read_b64_tr_b16 v[{r+2*hh}:{r+2*hh+1}], v{VTR+f} offset:{sl + hh*4*RS}" for hh in range(2)], chunk=t))
            for rb in range(NRB): done1[(f, rb)] = mf(acc1(f, rb), k, b0 + rb, t == 0)
    n1 = st.n()
    if main:
        for tp in range(4):
            b0 = len(bf)
            for e in range(2):
                for rb in range(NRB):
                    bf.append(dict(reads=[f"ds_read_b128 {vr(breg(b0+e*NRB+rb))}, v{VQ} offset:{rb*8192 + (2*tp+e)*1024}"], ph=1))
            for bh in range(2):
                c = 8 + 2 * tp + bh; sl = (c % RC) * CH
                for bl in range(NF // 2):
                    b = bh * (NF // 2) + bl
                    for e in range(2):
                        k = len(wf)
                        wf.append(dict(reads=[f"ds_read_b128 {vr(wreg(k))}, v{VK+e} offset:{sl + bl*2048}"], chunk=c))
                        for rb in range(NRB): done2[(b, rb)] = mf(acc2(b, rb), k, b0 + e * NRB + rb, tp == 0 and e == 0)
    nm = st.n()
    LAG = opt.get('lag', 3); LA = opt.get('la', 2 * NRB)
    def place_w(lo, hi, g):
        for k in range(lo, hi):
            d = wf[k]
            g = max(g, d['first'] - LA - 1, wf[k - RW]['last'] if k >= RW else -1)
            for i, r in enumerate(d['reads']):
                st.put(g, LD(r, tag=('w', k) if i == len(d['reads']) - 1 else None, needs=[('c', d['chunk'])]))
            d['g'] = g
            if k % (2 * NF) == 0:
                for s in stamp(1): st.put(g, s)
        return g
    def place_b(lo, hi, g):
        for k in range(lo, hi):
            d = bf[k]
            g = max(g, d['first'] - LA - 1, bf[k - RB]['last'] if k >= RB else -1)
            st.put(g, LD(d['reads'][0], tag=('b', k)))
        return g
    nw1, nb1 = 8 * NF, 8 * NRB
    npw = min(opt.get('npw', NF), RW)
    place_w(0, npw, -1)
    st.put(-1, W('hw')); st.put(-1, V("s_barrier"))
    for s in stamp(): st.put(-1, s)
    place_b(0, nb1, -1)
    gg = -1
    while rest:
        for x in rest.pop(0): st.put(gg, x)
        gg += opt.get('lpace', 2)
    g = place_w(npw, nw1, -1)
    if main:
        items = sorted(done1.items(), key=lambda kv: kv[1])
        for (f, rb), n in items:
            a = acc1(f, rb)
            q = [V(f"v_cvt_pk_bf16_f32 v{a}, v{a}, v{a+1}"), V(f"v_cvt_pk_bf16_f32 v{a+1}, v{a+2}, v{a+3}"),
                 LD(f"ds_write_b64 v{VQW + (f >> 1)}, v[{a}:{a+1}] offset:{rb*8192 + (f & 1)*512}", tag='qw')]
            for x in q: st.put(min(n + LAG, n1 - 1), x)
        k = nw1
        while k < len(wf) and k < nw1 + opt.get('npw2', NF) and wf[k - RW]['last'] <= n1 - 1: k += 1
        place_w(nw1, k, max(g, n1 - 1))
        for s in stamp(): st.put(n1 - 1, s)
        st.put(n1 - 1, W('qw')); st.put(n1 - 1, V("s_barrier"))
        for s in stamp(): st.put(n1 - 1, s)
        place_b(nb1, len(bf), n1 - 1)
        place_w(k, len(wf), n1 - 1)
    lastw = {}
    for k, d in enumerate(wf): lastw[d['chunk']] = k
    gl = 0
    for c in range(RC, NCH):
        k = lastw[c - RC]
        gl = wf[k]['first']
        firstk = min(kk for kk, d in enumerate(wf) if d['chunk'] == c)
        assert gl < wf[firstk]['g'], (c, gl, wf[firstk]['g'])
        dq = dma(c, [('w', k)])
        for i, x in enumerate(dq): st.put(min(gl + max(0, i - 2) * opt.get('dsp', 0), wf[firstk]['g'] - 1, nm - 1) if opt.get('dsp') else gl, x)
        assert not opt.get('dsp') or (NPC - 1) * opt['dsp'] < wf[min(k + NF, len(wf) - 1)]['first'] - gl or c == NCH - 1
    if main:
        hs = [VM(f"buffer_store_dwordx4 {vr(HP+4*j)}, v{VL16}, {sr(SRD_H)}, {xso(j)}{stx}") for j in range(NL)]
        st.fill(hs, gl + 1)
        items = sorted(((max(done2[(2 * u, rb)], done2[(2 * u + 1, rb)]), u, rb) for u in range(NF // 2) for rb in range(NRB)))
        for n, u, rb in items:
            a = acc2(2 * u, rb)
            if n + LAG < nm - 1 or opt.get('nopk', 0) >= 2:
                q = [V(f"v_mul_f32 v{a+r}, s{S_SC}, v{a+r}") for r in range(8)]
            else:
                q = [V(f"v_pk_mul_f32 {vr(a+2*r,2)}, {vr(a+2*r,2)}, {sr(S_SC,2)}") for r in range(4)]
            q += [V(f"v_cvt_pk_bf16_f32 v{a+r}, v{a+2*r}, v{a+2*r+1}") for r in range(4)]
            q.append(VM(f"buffer_store_dwordx4 {vr(a)}, v{VL16}, {sr(SRD_O)}, s{SO+rb} offen offset:{u*1024}{opt.get('stq', stx)}"))
            for x in q: st.put(min(n + LAG, nm - 1), x)
    else:
        items = sorted((max(done1[(f, 2 * tl)], done1[(f, 2 * tl + 1)]), f, tl) for f in range(NF) for tl in range(2))
        for n, f, tl in items:
            a = acc1(f, 2 * tl)
            q = [V(f"v_cvt_pk_bf16_f32 v{a+r}, v{a+2*r}, v{a+2*r+1}") for r in range(4)]
            q.append(VM(f"buffer_store_dwordx4 {vr(a)}, v{VL16}, {sr(SRD_O)}, s{SO + (f >> 1)} offen offset:{tl*2048 + (f & 1)*1024}{opt.get('stw', stx)}"))
            for x in q: st.put(min(n + LAG, nm - 1), x)
    for s in stamp(): st.put(nm - 1, s)
    em = Emitter()
    o = hazard.fix(em.emit(st.seq()))
    if opt.get('twice') and main:
        i = o.index("s_barrier"); o = o[:i] + ["s_mov_b32 s13, 0", "LG_again:"] + o[i:] + ["s_waitcnt vmcnt(0)", "s_xor_b32 s13, s13, 1", "s_cbranch_scc1 LG_again"]
    if opt.get('nodma2') and main:
        i = o.index("s_barrier"); o = o[:i] + [x for x in o[i:] if not x.endswith(' lds')]
    if opt.get('verbose'): print(role, st.stats(), "regs", p, "RC", RC, "lines", len(o))
    return o


def edge_prog(opt):
    NW = opt.get('nw', 8); NEW = opt.get('new', 32); ECAP = 163840 // NEW; CAPB = 4096 // NEW
    NTH = 64 * NW
    NQ = E // NEW // 4
    NR = (NQ + NTH - 1) // NTH; LASTN = NQ - (NR - 1) * NTH
    o = []; A = o.append
    L_CNT = 65536
    D0, S0, B0, C0 = 16, 16 + 4 * NR, 16 + 8 * NR, 16 + 12 * NR
    SRD_D, SRD_S, SRD_E, SRD_C = 40, 44, 48, 52
    A(f"s_mul_i32 s6, s4, {NQ * 16}")
    A("v_lshlrev_b32 v5, 4, v0")
    A("v_lshlrev_b32 v6, 2, v2")
    A(f"v_add_u32 v6, 0x{L_CNT:x}, v6")
    A("v_mov_b32 v7, 0")
    A("ds_write_b32 v6, v7")
    for i in range(NR): A(f"s_mov_b32 s{66+i}, {i * NTH * 16}")
    A("s_waitcnt lgkmcnt(0)")
    srd_from(o, SRD_D, 20, 0, NQ * 16, 6)
    srd_from(o, SRD_S, 18, 0, NQ * 16, 6)
    for i in range(NR): A(f"buffer_load_dwordx4 {vr(D0+4*i)}, v5, {sr(SRD_D)}, s{66+i} offen")
    for i in range(NR): A(f"buffer_load_dwordx4 {vr(S0+4*i)}, v5, {sr(SRD_S)}, s{66+i} offen")
    for t in opt.get('mg') or []: A(t)
    srd_from(o, SRD_E, 38, EDGE_OFF, EDGE_BYTES)
    srd_from(o, SRD_C, 38, ECNT_OFF, NBK * NEW * 4)
    SG = segs(); KC = 240
    for i, (n0, sz, b0, mg, c) in enumerate(SG):
        A(f"v_mov_b32 v{KC+2*i}, {mg}"); A(f"v_mov_b32 v{KC+2*i+1}, 0x{c:x}")
    A(f"s_mov_b32 s11, 0x{L_CNT:x}")
    A("v_mov_b32 v7, 1")
    A(f"v_cmp_gt_u32 vcc, 0x{LASTN:x}, v0")
    A("s_mov_b64 s[12:13], vcc")
    A("s_barrier")
    for i in range(NR):
        A(f"s_waitcnt vmcnt({2*NR-1-i})")
        if i == NR - 1: A("s_mov_b64 exec, s[12:13]")
        for k in range(4):
            d, b, c = D0 + 4 * i + k, B0 + 4 * i + k, C0 + 4 * i + k
            mr, cr = KC, KC + 1
            for j in range(1, len(SG)):
                A(f"v_cmp_le_u32 vcc, {SG[j][0]}, v{d}")
                A(f"v_cndmask_b32 v{b}, v{mr}, v{KC+2*j}, vcc"); A(f"v_cndmask_b32 v{c}, v{cr}, v{KC+2*j+1}, vcc")
                mr, cr = b, c
            A(f"v_mad_u32_u24 v{b}, v{mr}, v{d}, v{cr}")
            A(f"v_lshrrev_b32 v{b}, {BSHIFT}, v{b}")
            A(f"v_lshl_add_u32 v{c}, v{b}, 2, s11")
            A(f"ds_add_rtn_u32 v{c}, v{c}, v7")
    A("s_mov_b64 exec, -1")
    for i in range(NR):
        A(f"s_waitcnt vmcnt({NR-1-i}) lgkmcnt({min(15, 4*(NR-1 if i == NR-1 else NR-2))})")
        if i == NR - 1: A("s_mov_b64 exec, s[12:13]")
        for k in range(4):
            d, s, b, c = D0 + 4 * i + k, S0 + 4 * i + k, B0 + 4 * i + k, C0 + 4 * i + k
            A(f"v_and_b32 v8, 0x{CAPB-1:x}, v{c}")
            A(f"v_lshl_or_b32 v{s}, v{d}, 18, v{s}")
            A(f"v_lshlrev_b32 v8, 2, v8")
            A(f"v_lshl_add_u32 v8, v{b}, {(CAPB*4).bit_length()-1}, v8")
            A(f"ds_write_b32 v8, v{s}")
    A("s_mov_b64 exec, -1")
    A("s_waitcnt lgkmcnt(0)")
    A("s_barrier")
    NC = 64 * CAPB * 4 // (NTH * 16)
    BPI = 1024 // (CAPB * 4)
    R0 = C0 + 4 * NR
    assert R0 <= KC and R0 + 4 * NC <= 250
    if opt.get('fuse') and not opt.get('mg'):
        import gen_f
        FS = gen_f.fstr(opt); assert NEW * 64 == gen_f.NFLAG
        srd_from(o, SRD_D, 38, gen_f.FLAG_OFF, gen_f.NFLAG * FS)
        A(f"v_mul_u32_u24 v13, {FS}, v2" if FS <= 64 else f"v_lshlrev_b32 v13, {FS.bit_length()-1}, v2")
        A("v_mov_b32 v14, 0"); A("v_mov_b32 v15, 0")
        A(f"s_mul_i32 s6, s4, {64 * FS}")
        A(f"s_cmp_eq_u32 s{S_W}, 1")
        A("s_cselect_b32 s6, s6, 0x7fff0000")
        A(f"buffer_store_dwordx2 v[14:15], v13, {sr(SRD_D)}, s6 offen sc1")
    A("ds_read_b32 v8, v6")
    A(f"s_mul_i32 s6, s{S_W}, {NC*1024}")
    A("v_lshlrev_b32 v10, 4, v2")
    A("v_add_u32 v9, s6, v10")
    for k in range(NC): A(f"ds_read_b128 {vr(R0+4*k)}, v9 offset:{k*1024}")
    if BPI > 1:
        assert BPI == 2
        A("v_lshrrev_b32 v11, 5, v2")
        A(f"v_mul_u32_u24 v11, 0x{NEW*ECAP*4 - 512:x}, v11")
        A("v_add_u32 v10, v10, v11")
    A(f"s_mul_i32 s6, s{S_W}, {NC*BPI*NEW*ECAP*4}")
    A(f"s_mul_i32 s7, s4, {ECAP*4}")
    A("s_add_u32 s6, s6, s7")
    A(f"v_lshlrev_b32 v9, {(NEW*4).bit_length()-1}, v2")
    A("s_lshl_b32 s8, s4, 2")
    A(f"s_cmp_eq_u32 s{S_W}, 0")
    A("s_cselect_b32 s8, s8, 0x7fff0000")
    A(f"s_waitcnt lgkmcnt({min(15, NC)})")
    A(f"buffer_store_dword v8, v9, {sr(SRD_C)}, s8 offen{opt.get('ste', '')}")
    A(f"v_cmp_lt_u32 vcc, 0x{CAPB:x}, v8")
    A("s_cbranch_vccnz L1_eslow")
    for k in range(NC):
        A(f"s_waitcnt lgkmcnt({min(15, NC-1-k)})")
        A(f"buffer_store_dwordx4 {vr(R0+4*k)}, v10, {sr(SRD_E)}, s6 offen{opt.get('ste', '')}")
        A(f"s_add_u32 s6, s6, {BPI*NEW*ECAP*4}")
    A("s_branch L1_fin")
    A("L1_eslow:")
    A(f"s_mov_b32 s9, {NEW*ECAP*4}")
    for i in range(NR):
        for k in range(4):
            b, c = B0 + 4 * i + k, C0 + 4 * i + k
            A(f"v_mul_u32_u24 v{b}, s9, v{b}")
            A(f"v_lshl_add_u32 v{b}, v{c}, 2, v{b}")
    for i in range(NR):
        if i == NR - 1: A("s_mov_b64 exec, s[12:13]")
        for k in range(4):
            A(f"buffer_store_dword v{S0 + 4 * i + k}, v{B0 + 4 * i + k}, {sr(SRD_E)}, s7 offen{opt.get('ste', '')}")
    A("s_mov_b64 exec, -1")
    return hazard.fix(o)


def gen_k1(opt=None):
    opt = opt or {}
    NW = opt.get('nw', 8); NRB = opt.get('nrb', 3); NEW = opt.get('new', 32)
    NMAIN = (NB16 + NRB - 1) // NRB
    o = []
    A = o.append
    A("s_getpc_b64 s[56:57]")
    A("s_load_dwordx16 s[16:31], s[0:1], 0")
    A("s_load_dwordx8 s[32:39], s[0:1], 64")
    if opt.get('timing'):
        A("s_memtime s[100:101]")
    A(f"s_cmp_ge_u32 s2, {opt.get('nact', NMAIN) + NEW + 8}")
    A("s_cbranch_scc1 L1_end")
    A("v_lshrrev_b32 v1, 6, v0")
    A("v_and_b32 v2, 63, v0")
    A("s_lshr_b32 s3, s2, 3")
    A(f"v_readfirstlane_b32 s{S_W}, v1")
    A(f"s_mul_i32 s5, s3, {NW}")
    A(f"s_add_u32 s5, s5, s{S_W}")
    if opt.get('cpf', 1):
        A("s_and_b32 s56, s56, 0xffffff00")
        A(f"s_mov_b32 s58, {opt.get('code_end', 'L1_end')}-k1_kernel")
        A("s_mov_b32 s59, 0x00020000")
        A("s_and_b32 s6, s5, 15")
        A("s_lshl_b32 s6, s6, 13")
        A("v_lshlrev_b32 v10, 7, v2")
        A("buffer_load_dword v255, v10, s[56:59], s6 offen")
    A("v_and_b32 v3, 15, v2")
    A("v_lshrrev_b32 v4, 4, v2")
    A(f"s_and_b32 s{S_ROT}, s3, {opt.get('rotm', 7)}")
    A(f"s_sub_u32 s4, s2, {NEW + 8}")
    A(f"s_cmp_lt_u32 s2, {NEW + 8}")
    A("s_cbranch_scc1 L1_notq")
    A(f"s_mov_b32 s{S_ROLE}, 0")
    o += gemm_prog('q', opt)
    A("s_branch L1_fin")
    A("L1_notq:")
    A(f"s_sub_u32 s4, s2, {NEW}")
    A(f"s_cmp_lt_u32 s2, {NEW}")
    A("s_cbranch_scc1 L1_edge")
    A(f"s_mov_b32 s{S_ROLE}, 1")
    o += gemm_prog('w', opt)
    A("s_branch L1_fin")
    A("L1_edge:")
    A(f"s_mov_b32 s{S_ROLE}, 4")
    A("s_mov_b32 s4, s2")
    o += edge_prog(opt)
    A("L1_fin:")
    if opt.get('timing'):
        A("s_memtime s[4:5]")
        A("s_waitcnt vmcnt(0)")
        A("s_memtime s[6:7]")
        A("s_waitcnt lgkmcnt(0)")
        for k in range(8):
            A(f"v_writelane_b32 v0, s{16+2*k}, {k}")
        A("v_writelane_b32 v0, s4, 8")
        A("v_writelane_b32 v0, s6, 9")
        A(f"v_subrev_u32 v0, s100, v0")
        A(f"v_writelane_b32 v0, s{S_ROLE}, 63")
        srd_from(o, 4, 34, 0, 1 << 20)
        A(f"s_mul_i32 s8, s2, {NW}")
        A(f"s_add_u32 s8, s8, s{S_W}")
        A(f"s_lshl_b32 s8, s8, 8")
        A(f"v_mbcnt_lo_u32_b32 v1, -1, 0")
        A(f"v_mbcnt_hi_u32_b32 v1, -1, v1")
        A(f"v_lshlrev_b32 v1, 2, v1")
        A(f"buffer_store_dword v0, v1, s[4:7], s8 offen")
    A("L1_end:")
    return "\n".join(o)


def kernel_desc(opt=None):
    opt = opt or {}
    NW = opt.get('nw', 8); NRB = opt.get('nrb', 3); NEW = opt.get('new', 32)
    return dict(name="k1_kernel", body=gen_k1(opt), vgpr=256, accum=256, grid=(NB16 + NRB - 1) // NRB + NEW + 8, block=64 * NW, lds=K1_LDS)

if __name__ == "__main__":
    import sys, json
    t = gen_k1(dict(json.loads(sys.argv[1]) if len(sys.argv) > 1 else {}, verbose=1))
    e = hazard.check(t, "k1")
    print("\n".join(e[:30])); print(len(e), "hazards;", len(t.split("\n")), "lines")
    open('k1n.s', 'w').write(t)
```

```python
from layout import *

def Q(qb, ds): return (qb * 8 + ds) * 4
S_BASE = [128, 144]
def S(h, qb): return S_BASE[h] + qb * 4
P_BASE = [160, 176]
def P(p, qb): return P_BASE[p] + qb * 4
def NEGM(qb): return 192 + qb * 4
RING = 4
def F(i): return 208 + (i % RING) * 4
LA = [224 + i for i in range(4)]
LB = [228 + i for i in range(4)]
ET = [232 + i for i in range(8)]
VK = 240
VTR = [249, 250]
VDMA = 241
VT0, VT1 = 242, 243
M = [244 + i for i in range(4)]
VLANE16 = 248
KB = [VK, 251, 252]
VSP = 253
RD = 254
def O(fb, qb): return (fb * 4 + qb) * 4

SRD_Q, SRD_K, SRD_OP, SRD_ML = 8, 12, 20, 24
S_OFF, S_M0, S_CNT, S_THR, S_MASK, S_WAVE, S_SITE = 28, 30, 31, 32, 33, 34, 36
S_PH, S_STEP, S_NW, S_NL, S_RO = 100, 101, 39, 35, 49
STEP = ['0x4000']


def vr(b, n=4): return f"v[{b}:{b+n-1}]"
def ar(b, n=4): return f"a[{b}:{b+n-1}]"


class Seg:
    def __init__(self):
        self.mf = []
        self.gap = []
        self.pre = []

    def add_mfma(self, t):
        self.mf.append(t)
        self.gap.append([])

    def used(self, g):
        return sum(c for c, _ in self.gap[g])

    def put(self, g, text, cost=1):
        if g < 0:
            self.pre.append((cost, text))
        else:
            self.gap[g].append((cost, text))

    def fill(self, queue, g0, g1, cap=2):
        g = g0
        for cost, text in queue:
            while g < g1 and self.used(g) + cost > cap:
                g += 1
            self.gap[g].append((cost, text))
        return g

    def text(self):
        o = [t for _, t in self.pre]
        for m, gp in zip(self.mf, self.gap):
            o.append(m)
            o += [t for _, t in gp]
        return o


def foff(kb, c): return (c >> 1) * 4096 + kb * 2048 + (c & 1) * 512

def kread(off):
    return [lambda f: f"ds_read_b128 {vr(f)}, v{VK} offset:{off}"]

def vread(off, fb):
    return [lambda f, kb=kb: f"ds_read_b64_tr_b16 v[{f+2*kb}:{f+2*kb+1}], v{VTR[fb & 1]} offset:{off + foff(kb, fb >> 1)}" for kb in range(2)]


def qk_block(h, off, cinit):
    fr = []
    for ds in range(8):
        ms = []
        for qb in range(4):
            c = cinit(qb) if ds == 0 else vr(S(h, qb))
            ms.append(lambda f, qb=qb, ds=ds, c=c: f"v_mfma_f32_16x16x32_bf16 {vr(S(h,qb))}, {vr(f)}, {vr(Q(qb,ds))}, {c}")
        fr.append((kread(off + foff(h, ds)), ms))
    return fr


TR = [0]
def pvm(acc, f, pp):
    a, b = (pp, f) if TR[0] else (f, pp)
    return f"v_mfma_f32_16x16x32_bf16 {ar(acc)}, {vr(a)}, {vr(b)}, {ar(acc)}"


def pv_block(p, off, fb0):
    fr = []
    for fb in range(fb0, fb0 + 8):
        ms = []
        for qb in range(4):
            ms.append(lambda f, qb=qb, fb=fb: pvm(O(fb, qb), f, P(p, qb)))
        fr.append((vread(off, fb), ms))
    return fr


def build_seg(frags, next_reads):
    sg = Seg()
    n = len(frags)
    assert n % RING == 0
    rds = [r for r, _ in frags] + list(next_reads)
    for i, (_, ms) in enumerate(frags):
        for m in ms:
            sg.add_mfma(m(F(i)))
    issued = []
    for i in range(RING): issued += [i] * len(rds[i])
    def wait(g, i):
        last = max(k for k, x in enumerate(issued) if x == i)
        assert issued.count(i) == len(rds[i])
        sg.put(g, f"s_waitcnt lgkmcnt({len(issued) - 1 - last})")
    wait(-1, 0)
    for i in range(n):
        g = 4 * i + 3
        nxt = i + RING
        late = []
        if nxt < len(rds):
            r = rds[nxt]
            now = r[:1] if i + 1 < n else r
            late = r[len(now):]
            for x in now:
                sg.put(g, x(F(nxt))); issued.append(nxt)
        if i + 1 < n: wait(g, i + 1)
        for x in late:
            sg.put(g + 1, x(F(nxt))); issued.append(nxt)
    return sg


SMPAT = ['E0 E1 E2 A0 C0 E3 A1 A2 A3 C1']
def softmax_queue(h, pn, site, pat=None):
    lin, lout = (LA, LB) if h == 0 else (LB, LA)
    if callable(pn):
        pf = pn; P = lambda _, qb: pf(qb)
    else:
        P = globals()['P']
    q = []
    def tok(t, qb):
        e = ET[(qb % 2) * 4:(qb % 2) * 4 + 4]; s = S(h, qb); k = int(t[1])
        if t[0] == 'E': return (2, f"v_exp_f32 v{e[k]}, v{s+k}")
        if t[0] == 'A': return (1, f"v_add_f32 v{lout[qb]}, v{lin[qb] if k == 0 else lout[qb]}, v{e[k]}")
        return (1, f"v_cvt_pk_bf16_f32 v{P(pn,qb)+2*h+k}, v{e[2*k]}, v{e[2*k+1]}")
    pat = (pat or SMPAT[0]).split()
    for qb in range(5):
        for t in pat:
            r = qb - 1 if t.endswith('p') else qb
            if 0 <= r < 4: q.append(tok(t, r))
    q.append((1, f"v_max3_f32 v{VT0}, v{lout[0]}, v{lout[1]}, v{lout[2]}"))
    q.append((1, f"v_max_f32 v{VT0}, v{VT0}, v{lout[3]}"))
    q.append((1, f"v_cmp_lt_f32 vcc, s{S_THR}, v{VT0}"))
    q.append((1, f"s_cbranch_vccnz L2_rare_site{site}\nL2_ret{site}:"))
    return q


def body(p, kind, sites, opt):
    B = p * 16384
    Bn = (1 - p) * 16384
    negm = lambda qb: vr(NEGM(qb))
    fr = pv_block(p, B, 0)
    if kind != 'tail1':
        fr += qk_block(1, Bn, negm)
    fr += pv_block(p, B, 8)
    if kind == 'loop':
        fr += qk_block(0, B, negm)
    nxt = [vread(Bn, i) for i in range(RING)] if kind != 'tail1' else []
    sg = build_seg(fr, nxt)
    if kind == 'loop':
        gb = opt.get('gbar', 81)
        gd = opt.get('gdma', [0, 1, 2, 5, 6])
        if not opt.get('nobar'):
            sg.put(gb, "s_waitcnt vmcnt(%d)" % sum(1 for x in gd[1:] if x < gb))
            sg.put(gb, "s_barrier")
        assert all(x != gb for x in gd) and gb < 83
        sg.put(gd[0], f"s_mov_b32 m0, s{S_M0}")
        for k in range(4):
            if opt.get('nodma'): continue
            sg.put(gd[k + 1], f"buffer_load_dwordx4 v{VDMA}, s[{SRD_K}:{SRD_K+3}], s{S_OFF} offen offset:{k*1024}{opt.get('dl','')} lds")
        gs = opt.get('gs', [125, 125, 122, 126, 126])
        sg.put(gs[0], f"s_add_u32 s{S_OFF}, s{S_OFF}, {STEP[0]}")
        sg.put(gs[1], f"s_add_u32 s{S_M0}, s{S_M0}, 0x4000")
        sg.put(gs[2], f"s_sub_u32 s{S_CNT}, s{S_CNT}, 1")
        sg.put(gs[3], f"s_and_b32 s{S_M0}, s{S_M0}, 0x1ffff")
        sg.put(gs[4], f"s_cmp_eq_u32 s{S_CNT}, 0")
        assert gs[4] >= max(gs[:4])
        if p == 0:
            sg.put(70, f"v_add_u32 v{VK}, 0x8000, v{VK}")
            sg.put(70, f"v_and_b32 v{VK}, 0x1ffff, v{VK}")
    if kind == 'tail2':
        sg.put(2, "s_waitcnt vmcnt(0)")
    if p == 1 and kind != 'tail1':
        g = 84 if kind == 'loop' else 81
        sg.put(g, f"v_add_u32 v{VTR[0]}, 0x8000, v{VTR[0]}")
        sg.put(g, f"v_and_b32 v{VTR[0]}, 0x1ffff, v{VTR[0]}")
        sg.put(g + 1, f"v_xor_b32 v{VTR[1]}, 32, v{VTR[0]}")
    if kind != 'tail1' and opt.get('valu', 1):
        def flt(q):
            if opt.get('nochk'): q = q[:-4] + [(0, q[-1][1].split("\n")[1])]
            if opt.get('noexp'): q = [(1, x.replace('v_exp_f32', 'v_mov_b32')) if 'v_exp' in x else (c, x) for c, x in q]
            return q
        last = 124 if kind == 'loop' else len(sg.mf) - 1
        for h, (ga, gz) in enumerate(((opt.get('g0', 8), 71), (opt.get('g1', 72), last))):
            q = flt(softmax_queue(h, 1 - p, sites[h], opt.get('smp')))
            cs = opt.get('cs')
            if cs:
                g = sg.fill(q[:-4], ga, gz)
                for x, d in zip(q[-4:], cs): g = sg.fill([x], min(g + d, 127), 127)
            else: g = sg.fill(q, ga, gz)
            if opt.get('verbose'): print(kind, p, "sm", h, "end", g, "over", [(i, sg.used(i)) for i in range(len(sg.mf)) if sg.used(i) > 2])
    return sg


def rare_code(p, h, sites, pt=None, live=None, spills=()):
    if pt is None:
        pt = lambda qb: P(1 - p, qb)
        live = [lambda qb: P(p, qb)]
    lin, lout = (LA, LB) if h == 0 else (LB, LA)
    o = []
    for st in sites:
        o.append(f"L2_rare_site{st}:")
        o.append(f"s_mov_b32 s{S_SITE}, {st}")
        o.append(f"s_branch L2_rare_{p}_{h}")
    o.append(f"L2_rare_{p}_{h}:")
    o.append("s_nop 15")
    o.append("s_nop 15")
    o.append("s_waitcnt lgkmcnt(0)")
    DL = ET[0:4]
    FF = ET[4:8]
    for qb in range(4):
        s = S(h, qb)
        d = DL[qb]
        o.append(f"v_log_f32 v{VT1}, v{lin[qb]}")
        o.append(f"v_max3_f32 v{d}, v{s}, v{s+1}, v{s+2}")
        o.append(f"v_max3_f32 v{d}, v{d}, v{s+3}, v{VT1}")
        o.append(f"v_mov_b32 v{VT1}, v{d}")
        o.append("s_nop 1")
        o.append(f"v_permlane32_swap_b32 v{d}, v{VT1}")
        o.append("s_nop 1")
        o.append(f"v_max_f32 v{d}, v{d}, v{VT1}")
        o.append(f"v_mov_b32 v{VT1}, v{d}")
        o.append("s_nop 1")
        o.append(f"v_permlane16_swap_b32 v{d}, v{VT1}")
        o.append("s_nop 1")
        o.append(f"v_max_f32 v{d}, v{d}, v{VT1}")
        o.append(f"v_ceil_f32 v{d}, v{d}")
        o.append(f"v_max_f32 v{d}, 0, v{d}")
        o.append(f"v_sub_f32 v{VT1}, 0, v{d}")
        o.append(f"v_exp_f32 v{FF[qb]}, v{VT1}")
        o.append("s_nop 1")
        o.append(f"v_mul_f32 v{lin[qb]}, v{lin[qb]}, v{FF[qb]}")
        o.append(f"v_add_f32 v{M[qb]}, v{M[qb]}, v{d}")
        for r in range(4):
            o.append(f"v_sub_f32 v{NEGM(qb)+r}, v{NEGM(qb)+r}, v{d}")
            o.append(f"v_sub_f32 v{S(0,qb)+r}, v{S(0,qb)+r}, v{d}")
            o.append(f"v_sub_f32 v{S(1,qb)+r}, v{S(1,qb)+r}, v{d}")
        regs = [f(qb) + r for f in live for r in range(4)] + ([] if h == 0 else [pt(qb) + r for r in range(2)])
        def scale(r):
            o.append(f"v_lshlrev_b32 v{VT0}, 16, v{r}")
            o.append(f"v_and_b32 v{VT1}, 0xffff0000, v{r}")
            o.append(f"v_mul_f32 v{VT0}, v{VT0}, v{FF[qb]}")
            o.append(f"v_mul_f32 v{VT1}, v{VT1}, v{FF[qb]}")
            o.append(f"v_cvt_pk_bf16_f32 v{r}, v{VT0}, v{VT1}")
        for r in regs: scale(r)
        for k in spills:
            for hh in range(2):
                off = k * 4096 + qb * 1024 + hh * 8
                o.append(f"ds_read_b64 v[{RD}:{RD+1}], v{VSP} offset:{off}")
                o.append("s_waitcnt lgkmcnt(0)")
                scale(RD); scale(RD + 1)
                o.append(f"ds_write_b64 v{VSP}, v[{RD}:{RD+1}] offset:{off}")
                o.append("s_waitcnt lgkmcnt(0)")
    for qb in range(4):
        s = S(h, qb)
        e = ET[0:4]
        for r in range(4):
            o.append(f"v_exp_f32 v{e[r]}, v{s+r}")
        o.append("s_nop 1")
        o.append(f"v_add_f32 v{lout[qb]}, v{lin[qb]}, v{e[0]}")
        for r in range(1, 4):
            o.append(f"v_add_f32 v{lout[qb]}, v{lout[qb]}, v{e[r]}")
        o.append(f"v_cvt_pk_bf16_f32 v{pt(qb)+2*h}, v{e[0]}, v{e[1]}")
        o.append(f"v_cvt_pk_bf16_f32 v{pt(qb)+2*h+1}, v{e[2]}, v{e[3]}")
    o.append("s_branch L2_rare_common")
    return o


def rare_common(all_sites):
    FF = ET[4:8]
    o = ["L2_rare_common:"]
    FT = [VT0, VT1, RD, RD + 1]
    for qb in range(4):
        if TR[0]:
            o.append(f"v_lshrrev_b32 v{ET[0]}, 4, v{VLANE16}")
            o.append(f"v_and_b32 v{ET[0]}, 0x30, v{ET[0]}")
            for r in range(4): o.append(f"ds_bpermute_b32 v{FT[r]}, v{ET[0]}, v{FF[qb]} offset:{4*r}")
            o.append("s_waitcnt lgkmcnt(0)")
        for fb in range(16):
            for r in range(4):
                a = O(fb, qb) + r
                t = ET[r]
                o.append(f"v_accvgpr_read_b32 v{t}, a{a}")
            for r in range(4):
                o.append(f"v_mul_f32 v{ET[r]}, v{ET[r]}, v{FT[r] if TR[0] else FF[qb]}")
            for r in range(4):
                o.append(f"v_accvgpr_write_b32 a{O(fb,qb)+r}, v{ET[r]}")
    o.append("s_nop 3")
    for st in all_sites[:-1]:
        o.append(f"s_cmp_eq_u32 s{S_SITE}, {st}")
        o.append(f"s_cbranch_scc1 L2_ret{st}")
    o.append(f"s_branch L2_ret{all_sites[-1]}")
    return o


def srd(o, d, off, nbytes, extra_sgpr=None):
    o.append(f"s_add_u32 s{d}, s4, 0x{off & 0xffffffff:x}")
    o.append(f"s_addc_u32 s{d+1}, s5, 0")
    if extra_sgpr is not None:
        o.append(f"s_add_u32 s{d}, s{d}, s{extra_sgpr}")
        o.append(f"s_addc_u32 s{d+1}, s{d+1}, 0")
    o.append(f"s_mov_b32 s{d+2}, 0x{nbytes:x}")
    o.append(f"s_mov_b32 s{d+3}, 0x00020000")


def epilogue(sg_tail, opt):
    conv = []
    for t in range(8):
        q = []
        for qb in range(4):
            st = (t * 4 + qb) * 4
            tmp = [128 + (qb % 2) * 8 + r for r in range(8)]
            for k in range(8):
                q.append((1, f"v_accvgpr_read_b32 v{tmp[k]}, a{O(2*t+k//4,qb)+k%4}"))
            for r in range(4):
                q.append((1, f"v_cvt_pk_bf16_f32 v{st+r}, v{tmp[2*r]}, v{tmp[2*r+1]}"))
            so = 40 + qb if t < 4 else 44 + qb
            q.append((1, f"buffer_store_dwordx4 {vr(st)}, v{VLANE16}, s[{SRD_OP}:{SRD_OP+3}], s{so} offen offset:{(t%4)*1024}{opt.get('st','')}"))
        conv.append(q)
    nm = len(sg_tail.mf)
    assert nm == 64
    for t in range(8):
        g0 = 8 * t + 12
        if g0 <= nm - 1:
            sg_tail.fill(conv[t], g0, min(g0 + 7, nm - 1), cap=7)
        else:
            sg_tail.put(nm - 1, "s_nop 7")
            for c, x in conv[t]:
                sg_tail.put(nm - 1, x, c)
    return sg_tail.text() + ml_store(opt)


def ml_store(opt):
    o = []
    for qb in range(4):
        l = LA[qb]
        o.append(f"v_mov_b32 v{VT1}, v{l}")
        o.append("s_nop 1")
        o.append(f"v_permlane32_swap_b32 v{l}, v{VT1}")
        o.append("s_nop 1")
        o.append(f"v_add_f32 v{l}, v{l}, v{VT1}")
        o.append(f"v_mov_b32 v{VT1}, v{l}")
        o.append("s_nop 1")
        o.append(f"v_permlane16_swap_b32 v{l}, v{VT1}")
        o.append("s_nop 1")
        o.append(f"v_add_f32 v{ET[2*qb+1]}, v{l}, v{VT1}")
        o.append(f"v_mov_b32 v{ET[2*qb]}, v{M[qb]}")
    o.append(f"v_lshlrev_b32 v{VT0}, 2, v{VLANE16}")
    o.append("s_mov_b64 exec, 0xffff")
    for qb in range(4):
        o.append(f"buffer_store_dwordx2 v[{ET[2*qb]}:{ET[2*qb+1]}], v{VT0}, s[{SRD_ML}:{SRD_ML+3}], s48 offen offset:{qb*1024}{opt.get('st','')}")
    return o


def tail_run(p, T, site0, opt):
    negm = lambda qb: vr(NEGM(qb))
    VB = [VTR, [Q(0, 3), Q(0, 3) + 1], [Q(0, 3) + 2, Q(0, 3) + 3]]
    nsp = max(T - 3, 0)
    def ploc(k, final=True):
        if k == T - 1: return lambda qb: Q(qb, 0)
        if k < nsp and final: return lambda qb, k=k: Q(qb, 1 + k)
        return lambda qb, k=k: P((p + k) & 1, qb)
    def kfr(k, h):
        i = (1 - p) + (k - 1)
        fr = []
        for ds in range(8):
            off = (i & 1) * 16384 + foff(h, ds)
            rd = [lambda f, off=off, i=i: f"ds_read_b128 {vr(f)}, v{KB[i >> 1]} offset:{off}"]
            ms = []
            for qb in range(4):
                c = negm(qb) if ds == 0 else vr(S(h, qb))
                ms.append(lambda f, qb=qb, ds=ds, c=c: f"v_mfma_f32_16x16x32_bf16 {vr(S(h,qb))}, {vr(f)}, {vr(Q(qb,ds))}, {c}")
            fr.append((rd, ms))
        return fr
    def vfr(k, fb, final=True):
        i = p + k
        rd = [lambda f, kb=kb: f"ds_read_b64_tr_b16 v[{f+2*kb}:{f+2*kb+1}], v{VB[i >> 1][fb & 1]} offset:{(i & 1) * 16384 + foff(kb, fb >> 1)}" for kb in range(2)]
        pl = ploc(k, final)
        ms = [lambda f, qb=qb: pvm(O(fb, qb), f, pl(qb)) for qb in range(4)]
        return (rd, ms)
    fr = [vfr(0, fb, False) for fb in range(4)]
    blocks = [(1, 1)] + [(k, h) for k in range(2, T) for h in range(2)]
    for k, h in blocks: fr += kfr(k, h)
    G = 4 * len(fr)
    lead = opt.get('lead', 44)
    order = []
    fb = 0
    while 4 * len(order) < lead or fb % 2:
        order += [(k, fb) for k in range(T - 1) if not (k == 0 and fb < 4)]
        fb += 1
    glast = G + 4 * len(order)
    order += [(T - 1, x) for x in range(fb)]
    for x in range(fb, 16):
        order += [(k, x) for k in range(T) if not (k == 0 and x < 4)]
    done = {}
    for i, (k, x) in enumerate(order): done[x] = G + 4 * i + 3
    fr += [vfr(k, x) for k, x in order]
    sg = build_seg(fr, [])
    nm = len(sg.mf)
    if opt.get('fuse'): import gen_f
    if opt.get('timing') and not opt.get('ft') and not opt.get('pt'):
        for i, gg in enumerate([30, 47, 111, G - 1, glast, (glast + nm) // 2, nm - 20]):
            sg.put(gg, f"s_memtime s[{74+2*i}:{75+2*i}]", 0)
    g = 0
    for k in range(3, T):
        sg.put(g, f"s_mov_b32 m0, s{S_M0}")
        for j in range(4):
            sg.put(g + 1 + j, f"buffer_load_dwordx4 v{VDMA}, s[{SRD_K}:{SRD_K+3}], s{S_OFF} offen offset:{j*1024}{opt.get('dl','')} lds ; TK{k}")
        if k + 1 < T:
            sg.put(g + 5, f"s_add_u32 s{S_OFF}, s{S_OFF}, {STEP[0]}\ns_add_u32 s{S_M0}, s{S_M0}, 0x4000\ns_and_b32 s{S_M0}, s{S_M0}, 0x1ffff", 2)
        g += 6
    for k in range(2, T):
        gb = 16 + 32 * (2 * k - 3) - 15
        sg.put(gb, f"WAIT TK{k}" if opt.get('fuse') and k > 2 else f"s_waitcnt vmcnt({4 * (T - 1 - k)})")
        sg.put(gb, "s_barrier")
    sg.put(1, f"v_add_u32 v{VSP}, s50, v{VLANE16}")
    for b in (1, 2):
        if 2 * b <= (1 - p) + (T - 2):
            sg.put(12 + b, f"v_add_u32 v{KB[b]}, 0x{0x8000*b:x}, v{VK}")
            sg.put(12 + b, f"v_and_b32 v{KB[b]}, 0x1ffff, v{KB[b]}")
    GL = G - 32
    for b in (1, 2):
        if 2 * b <= p + T - 1:
            sg.put(GL + 13 + b, f"v_add_u32 v{VB[b][0]}, 0x{0x8000*b:x}, v{VTR[0]}")
            sg.put(GL + 13 + b, f"v_and_b32 v{VB[b][0]}, 0x1ffff, v{VB[b][0]}")
            sg.put(GL + 16, f"v_xor_b32 v{VB[b][1]}, 32, v{VB[b][0]}")
    for k in range(nsp):
        gs = 16 if k == 0 else 16 + 32 * 2 * k
        for qb in range(4):
            sg.put(gs + qb, f"ds_write_b128 v{VSP}, {vr(ploc(k, False)(qb))} offset:{k*4096 + qb*1024}")
            sg.put(GL + 4 * (k + 2) + 1 + (qb & 1) + (qb >> 1) * 4, f"ds_read_b128 {vr(ploc(k)(qb))}, v{VSP} offset:{k*4096 + qb*1024}")
    rare = []
    sites = []
    sms = [(k, h) for k in range(1, T) for h in range(2)]
    cap = opt.get('tcap', 3)
    for i, (k, h) in enumerate(sms):
        st = site0 + i
        sites.append(st)
        g0 = 6 if i == 0 else 16 + 32 * i + (4 if i == len(sms) - 2 else 1)
        g1 = 16 + 32 * i + 31 if i < len(sms) - 1 else glast - 2
        q = softmax_queue(h, ploc(k, False), st)
        c = 2 if (i == 0 or i == len(sms) - 1) else cap
        ge = sg.fill(q[:-1], g0, g1, cap=c)
        sg.put(max(ge, g1 - 2) if i == len(sms) - 2 or i == 0 or (h == 0 and 1 <= k - 1 < nsp) else min(ge + opt.get('tcs', 0), g1), q[-1][1])
        late = i >= len(sms) - 2
        live = [ploc(j, late) for j in range(k) if late or j >= nsp or (j > 0 and i < 2 * j)]
        spl = [j for j in range(nsp) if j < k and not late and not (j > 0 and i < 2 * j)]
        rare += rare_code(f"t{p}_{i}", h, [st], ploc(k, False), live, spl)
        if opt.get('verbose'): print("tail", p, "sm", k, h, "end", ge, "of", g1, "live", [f(0) for f in live], "spill", spl)
    if opt.get('fuse'):
        ge = sg.fill(gen_f.early1(p, opt), 12, 32, cap=3)
        eg = opt.get('eg', [34, G - 60, G - 4]); eg = [x if x > 0 else G + x for x in eg]; assert eg[1] >= 112 + 32 * 0 and eg[2] >= G - 16
        for f, g0 in zip((gen_f.early_x, gen_f.early_hf, gen_f.early_h), eg):
            ge = sg.fill(f(p, opt), max(g0, ge), nm - 1, cap=opt.get('ecap', 3))
            if opt.get('verbose'): print("early end", ge)
    g = glast
    ccap = opt.get('ccap', 3)
    if opt.get('mle'):
        q = [(1, f"v_lshlrev_b32 v{VT0}, 2, v{VLANE16}")] if not opt.get('fuse') else [(1, x) for x in gen_f.ml_addr(VT0, VLANE16)]
        for f in ("v_mov_b32 v{e}, v{l}", "v_permlane32_swap_b32 v{l}, v{e}", "v_add_f32 v{l}, v{l}, v{e}", "v_mov_b32 v{e}, v{l}",
                  "v_permlane16_swap_b32 v{l}, v{e}", "v_add_f32 v{e1}, v{l}, v{e}", "v_mov_b32 v{e}, v{m}"):
            q += [(1, f.format(e=ET[2*qb], e1=ET[2*qb+1], l=LA[qb], m=M[qb])) for qb in range(4)]
        if opt.get('fuse'):
            z = ["s_mov_b32 exec_hi, 0"]
            for qb in range(4):
                if qb: z.append(f"s_lshr_b32 s3, s{40+qb}, 2")
                z.append(f"buffer_store_dwordx2 v[{ET[2*qb]}:{ET[2*qb+1]}], v{VT0}, s[{SRD_ML}:{SRD_ML+3}], s{3 if qb else 48} offen{opt.get('st','')}")
            q.append((3, "\n".join(z + ["s_mov_b32 exec_hi, -1"])))
        else: q.append((3, "\n".join(ml_store(opt)[-5:] + ["s_mov_b64 exec, -1"])))
        g = sg.fill(q, g, nm - 1, cap=opt['mle'])
    for t in range(8):
        q = []
        for qb in range(4):
            stg = Q(qb, 4 + t % 4)
            tmp = [128 + (qb % 4) * 8 + r for r in range(8)]
            for k in range(8):
                q.append((1, f"v_accvgpr_read_b32 v{tmp[k]}, a{O(2*t+k//4,qb)+k%4}"))
            for r in range(4):
                q.append((1, f"v_cvt_pk_bf16_f32 v{stg+r}, v{tmp[2*r]}, v{tmp[2*r+1]}"))
            so = 40 + qb if t < 4 else 44 + qb
            q.append((1, f"buffer_store_dwordx4 {vr(stg)}, v{VLANE16}, s[{SRD_OP}:{SRD_OP+3}], s{so} offen offset:{(t%4)*1024}{opt.get('st','')} ; ST{t}"))
        if opt.get('nost'): q = [x for x in q if 'store' not in x[1]]
        if opt.get('nocv'): q = [x for x in q if 'store' in x[1]]
        cc = ccap[t] if isinstance(ccap, list) else ccap
        px = opt.get('plainx', 4 * opt.get('plain', 8))
        q = [(c, x.replace(opt.get('st', ''), '') if (4 * t + i // 13 >= px if px >= 0 else 4 * t + i // 13 < -px) else x) for i, (c, x) in enumerate(q)]
        if opt.get('half'):
            qa = [x for i, x in enumerate(q) if i % 13 in (0, 1, 2, 3, 8, 9)]
            q = [x for i, x in enumerate(q) if i % 13 not in (0, 1, 2, 3, 8, 9)]
            g = sg.fill(qa, max(g, done[2*t] + 3), nm - 1, cap=cc)
        g0 = max(g, max(done[2*t], done[2*t+1]) + 3)
        if g0 > nm - 1:
            if not opt.get('half'): sg.put(nm - 1, "s_nop 7")
            g0 = nm - 1
        if opt.get('fuse'):
            i0 = [i for i, x in enumerate(q) if 'buffer_store' in x[1]][0]
            q.insert(i0 + 1, (1, f"ds_write_b128 v{VSP}, {vr(Q(0, 4 + t % 4))} offset:{t*1024}"))
        g = sg.fill(q, g0, nm - 1, cap=cc)
        if opt.get('verbose'): print("  conv", t, g0, g, "of", nm)
        if opt.get('fuse') and t == opt.get('f1t', 6): g = sg.fill(gen_f.flag1(opt), g, nm - 1, cap=3)
    if opt.get('fuse'):
        return gen_f.fix_waits(sg.text() + ["WAIT HLD"]), rare + gen_f.hl_spin(p), sites
    return sg.text() + ([] if opt.get('mle') else ml_store(opt)), rare, sites


def light(o, opt, TT):
    A = o.append
    LB0 = 0x16000
    KF = 32; VF = 96; OV = lambda fb: 160 + fb * 4 if fb < 8 else 0
    QL = lambda ds: ds * 4
    KFr = lambda h, ds: 32 + (h * 8 + ds) * 4
    VFr = lambda fb: 96 + fb * 4
    SL = [160, 164]; PL = 168; MM, LL, FF, T0, T1 = 172, 173, 174, 175, 176
    AK, AV0, AV1 = 177, 178, 179
    TM = 180
    MK = NEGM(0)
    S_N, S_SL, S_DS, S_T = 51, 52, 53, 54
    A("LT_start:")
    A("s_waitcnt lgkmcnt(0)")
    if opt.get('mg'):
        import gen_f; gen_f.poll_all(A, o, "LT_poll", SRD_K, 0)
    srd(o, SRD_K, H_OFF, 0)
    A(f"s_mov_b32 s{SRD_K+2}, s49")
    srd(o, SRD_Q, QF_OFF, QF_BYTES)
    A(f"s_mov_b32 s40, {39 * 16 * 8192}")
    A(f"s_mov_b32 s44, {39 * 16 * 8192 + 4096}")
    for ds in range(8):
        A(f"buffer_load_dwordx4 {vr(QL(ds))}, v{VLANE16}, s[{SRD_Q}:{SRD_Q+3}], s{40 if ds < 4 else 44} offen offset:{(ds%4)*1024}{opt.get('dl','')}")
    def dma(so):
        for w in range(4):
            A(f"s_add_u32 m0, s{S_DS}, {LB0 + w*4096}")
            A(f"s_add_u32 s{S_T}, s{so}, {w*128}")
            for k in range(4):
                A(f"buffer_load_dwordx4 v{VDMA}, s[{SRD_K}:{SRD_K+3}], s{S_T} offen offset:{k*1024}{opt.get('dl','')} lds")
        A(f"s_add_u32 s{S_DS}, s{S_DS}, 0x4000")
        A(f"s_and_b32 s{S_DS}, s{S_DS}, 0xffff")
    A(f"s_mov_b32 s{S_DS}, 0")
    dma(39)
    for i in range(2):
        dma(S_OFF)
        A(f"s_add_u32 s{S_OFF}, s{S_OFF}, 0x4000")
    A(f"s_mul_i32 s35, s37, 0x{OP_STRIDE:x}")
    srd(o, SRD_OP, OP_OFF, QF_BYTES, 35)
    srd(o, SRD_ML, ML_OFF, NB16 * (2048 if opt.get('fuse') else 1024))
    A(f"s_lshl_b32 s48, s37, 3")
    A(f"s_add_u32 s48, s48, {39 * 16 * 1024}")
    if opt.get('fuse'): A(f"s_mov_b32 s48, {39 * 16 * 2048}")
    lds_addrs(A)
    A(f"s_add_u32 s{S_N}, s{S_CNT}, {TT or 2}")
    A(f"s_mov_b32 s{S_SL}, {LB0}")
    A(f"v_mov_b32 v{MM}, 0xff800000")
    A(f"v_mov_b32 v{LL}, 0")
    for r in range(64): A(f"v_accvgpr_write_b32 a{r}, 0")
    A("LT_loop:")
    dma(S_OFF)
    A(f"s_add_u32 s{S_OFF}, s{S_OFF}, 0x4000")
    A(f"v_add_u32 v{AK}, s{S_SL}, v{VK}")
    A(f"v_add_u32 v{AV0}, s{S_SL}, v{VTR[0]}")
    A(f"v_add_u32 v{AV1}, s{S_SL}, v{VTR[1]}")
    A(f"s_add_u32 s{S_SL}, s{S_SL}, 0x4000")
    A(f"s_cmp_eq_u32 s{S_SL}, {LB0 + 0x10000}")
    A(f"s_cselect_b32 s{S_SL}, {LB0}, s{S_SL}")
    A("s_waitcnt vmcnt(48)")
    for ds in range(8):
        for h in range(2):
            A(f"ds_read_b128 {vr(KFr(h, ds))}, v{AK} offset:{foff(h, ds)}")
    for ds in range(8):
        A(f"s_waitcnt lgkmcnt({14 - 2*ds})")
        for h in range(2):
            A(f"v_mfma_f32_16x16x32_bf16 {vr(SL[h])}, {vr(KFr(h, ds))}, {vr(QL(ds))}, {vr(SL[h]) if ds else vr(MK)}")
    for fb in range(16):
        for kb in range(2):
            A(f"ds_read_b64_tr_b16 v[{VFr(fb)+2*kb}:{VFr(fb)+2*kb+1}], v{AV1 if fb & 1 else AV0} offset:{foff(kb, fb >> 1)}")
    for r in range(4): A(f"v_mov_b32 v{MK+r}, 0")
    A("s_nop 7")
    A(f"v_max3_f32 v{T0}, v{SL[0]}, v{SL[0]+1}, v{SL[0]+2}")
    A(f"v_max3_f32 v{T0}, v{T0}, v{SL[0]+3}, v{SL[1]}")
    A(f"v_max3_f32 v{T0}, v{T0}, v{SL[1]+1}, v{SL[1]+2}")
    A(f"v_max3_f32 v{T0}, v{T0}, v{SL[1]+3}, v{MM}")
    for sw in ("v_permlane32_swap_b32", "v_permlane16_swap_b32"):
        A(f"v_mov_b32 v{T1}, v{T0}")
        A("s_nop 1")
        A(f"{sw} v{T0}, v{T1}")
        A("s_nop 1")
        A(f"v_max_f32 v{T0}, v{T0}, v{T1}")
    if TR[0]: A(f"v_ceil_f32 v{T0}, v{T0}")
    A(f"v_sub_f32 v{FF}, v{MM}, v{T0}")
    A(f"v_exp_f32 v{FF}, v{FF}")
    A(f"v_mov_b32 v{MM}, v{T0}")
    for r in range(8): A(f"v_sub_f32 v{SL[0]+r}, v{SL[0]+r}, v{MM}")
    for r in range(8): A(f"v_exp_f32 v{SL[0]+r}, v{SL[0]+r}")
    A(f"v_mul_f32 v{LL}, v{LL}, v{FF}")
    for r in range(4): A(f"v_cvt_pk_bf16_f32 v{PL+r}, v{SL[0]+2*r}, v{SL[0]+2*r+1}")
    A(f"v_cmp_neq_f32 vcc, 1.0, v{FF}")
    for r in range(8): A(f"v_add_f32 v{LL}, v{LL}, v{SL[0]+r}")
    A("s_cbranch_vccz LT_nors")
    if TR[0]:
        A(f"v_lshrrev_b32 v{T1}, 4, v{VLANE16}")
        A(f"v_and_b32 v{T1}, 0x30, v{T1}")
        for r in range(4): A(f"ds_bpermute_b32 v{188+r}, v{T1}, v{FF} offset:{4*r}")
        A("s_waitcnt lgkmcnt(0)")
    for c in range(8):
        for r in range(8): A(f"v_accvgpr_read_b32 v{TM+r}, a{8*c+r}")
        for r in range(8): A(f"v_mul_f32 v{TM+r}, v{TM+r}, v{188 + r % 4 if TR[0] else FF}")
        for r in range(8): A(f"v_accvgpr_write_b32 a{8*c+r}, v{TM+r}")
    A("LT_nors:")
    A("s_waitcnt lgkmcnt(0)")
    A("s_nop 1")
    for fb in range(16):
        A(pvm(fb * 4, VFr(fb), PL))
    A(f"s_sub_u32 s{S_N}, s{S_N}, 1")
    A(f"s_cmp_lg_u32 s{S_N}, 0")
    A("s_cbranch_scc1 LT_loop")
    A("s_nop 15")
    for t in range(8):
        for r in range(8): A(f"v_accvgpr_read_b32 v{TM+r}, a{8*t+r}")
        for r in range(4): A(f"v_cvt_pk_bf16_f32 v{32+4*t+r}, v{TM+2*r}, v{TM+2*r+1}")
        A(f"buffer_store_dwordx4 {vr(32+4*t)}, v{VLANE16}, s[{SRD_OP}:{SRD_OP+3}], s{40 if t < 4 else 44} offen offset:{(t%4)*1024}{opt.get('st','')}")
    for sw in ("v_permlane32_swap_b32", "v_permlane16_swap_b32"):
        A(f"v_mov_b32 v{T1}, v{LL}")
        A("s_nop 1")
        A(f"{sw} v{LL}, v{T1}")
        A("s_nop 1")
        A(f"v_add_f32 v{LL}, v{LL}, v{T1}")
    A(f"v_lshlrev_b32 v{T0}, 2, v{VLANE16}")
    A("s_mov_b64 exec, 0xffff")
    if opt.get('fuse'):
        import gen_f
        A("s_mov_b64 exec, -1")
        for x in gen_f.ml_addr(T0, VLANE16): A(x)
        A("s_mov_b32 exec_hi, 0")
    A(f"buffer_store_dwordx2 v[{MM}:{LL}], v{T0}, s[{SRD_ML}:{SRD_ML+3}], s48 offen{opt.get('st','')}")
    if opt.get('fuse'):
        import gen_f
        srd(o, 16, gen_f.FLAG_OFF, gen_f.NFLAG * gen_f.fstr(opt))
        A(f"s_add_u32 s48, s37, {156 * 8}")
        A(f"s_mul_i32 s48, s48, {gen_f.fstr(opt)}")
    A("s_waitcnt vmcnt(0)")
    if opt.get('fuse'): gen_f.publish(A, 16, 48, T1, opt, True)
    A("s_branch L2_fin")


def lds_addrs(A):
    L = VLANE16
    A(f"v_bfe_u32 v{VK}, v{L}, 4, 3")
    A(f"v_lshlrev_b32 v{VK}, 6, v{VK}")
    A(f"v_bfe_u32 v{VT0}, v{L}, 7, 1")
    A(f"v_lshl_or_b32 v{VK}, v{VT0}, 10, v{VK}")
    A(f"v_bfe_u32 v{VT0}, v{L}, 8, 2")
    A(f"v_lshl_or_b32 v{VK}, v{VT0}, 4, v{VK}")
    A(f"v_bfe_u32 v{VT0}, v{L}, 6, 1")
    A(f"v_lshlrev_b32 v{VT0}, 5, v{VT0}")
    A(f"v_xor_b32 v{VK}, v{VK}, v{VT0}")
    A(f"v_and_b32 v{VTR[0]}, 0x1c0, v{L}")
    A(f"v_bfe_u32 v{VT0}, v{L}, 9, 1")
    A(f"v_lshl_or_b32 v{VTR[0]}, v{VT0}, 10, v{VTR[0]}")
    A(f"v_bfe_u32 v{VT0}, v{L}, 8, 1")
    A(f"v_lshl_or_b32 v{VTR[0]}, v{VT0}, 5, v{VTR[0]}")
    A(f"v_bfe_u32 v{VT0}, v{L}, 4, 2")
    A(f"v_lshl_or_b32 v{VTR[0]}, v{VT0}, 3, v{VTR[0]}")
    A(f"v_xor_b32 v{VTR[1]}, 32, v{VTR[0]}")
    A(f"v_bfe_i32 v{VT0}, v{L}, 8, 1")
    for r in range(4):
        A(f"v_and_b32 v{NEGM(0)+r}, s{S_MASK}, v{VT0}")


def lds_addrs_list():
    z = []; lds_addrs(z.append); return z


def prologue2(o, opt, T):
    import gen_f
    A = o.append
    Z = ET[0]
    pre = opt.get('mg')
    for r in range(4):
        if not pre: A(f"v_mov_b32 v{Z+r}, 0")
    if not pre: A("s_nop 0")
    ql = lambda ds, qb: f"buffer_load_dwordx4 {vr(Q(qb,ds))}, v{VLANE16}, s[{SRD_Q}:{SRD_Q+3}], s{40 + qb if ds < 4 else 44 + qb} offen offset:{(ds%4)*1024}{opt.get('dl','')} ; Q{ds}"
    NPQ = opt.get('npq', 8)
    zi = 16 if pre else 0
    zero = lambda k: f"v_mfma_f32_32x32x16_bf16 a[{16*k}:{16*k+15}], {vr(Z)}, {vr(Z)}, 0"
    for ds in range(NPQ):
        for qb in range(4):
            A(ql(ds, qb))
            if (qb % 2 == 1 or NPQ <= 4) and zi < 16:
                A(zero(zi)); zi += 1
    T(1)
    if opt.get('mg'):
        import gen_m; A(gen_m.poll_b_load())
    late = []
    if opt.get('fuse'):
        gen_f.prologue(late.append, late, 95)
    if opt.get('race'):
        c, nw0, nl0, nw2, nl2 = opt['race']; rem = lambda n: n - opt['trun'] - c - 2
        assert nw0 + nl0 == 104 and nw2 + nl2 == 105 and min(rem(nl0), rem(nl2)) >= 1
        late.append("s_cmp_lt_u32 s37, 3"); late.append("s_cselect_b32 s3, 0, 3"); late.append("s_sub_u32 s3, s37, s3")
        late.append("s_cmp_eq_u32 s3, 2")
        late.append(f"s_cselect_b32 s{S_NW}, {rem(nw2)}, {rem(nw0)}")
        late.append(f"s_cselect_b32 s{S_NL}, {rem(nl2)}, {rem(nl0)}")
        late.append(f"s_lshl_b32 s{S_RO}, s38, 2"); late.append(f"s_add_u32 s{S_RO}, s{S_RO}, s3"); late.append(f"s_lshl_b32 s{S_RO}, s{S_RO}, 10")
        late.append(f"s_add_u32 s{S_RO}, s{S_RO}, 0x{gen_f.FLAG_OFF + 6 * gen_f.FS:x}")
    for k, t in enumerate(lds_addrs_list() if not pre else []):
        A(t)
        if k % 2 == 1 and zi < 16: A(zero(zi)); zi += 1
    assert zi == 16
    items = []
    dm = lambda k, mk: (1, f"buffer_load_dwordx4 v{VDMA}, s[{SRD_K}:{SRD_K+3}], s{S_OFF} offen offset:{k*1024}{opt.get('dl','')} lds{mk}")
    items += [dm(2, ''), dm(3, ' ; K1')]
    items.append((0, f"s_add_u32 s{S_OFF}, s{S_OFF}, {STEP[0]}\ns_add_u32 m0, s{S_M0}, 0x8000\ns_nop 0"))
    items += [dm(k, '') for k in range(4)]
    items.append((0, f"s_add_u32 s{S_OFF}, s{S_OFF}, {STEP[0]}\ns_add_u32 s{S_M0}, s{S_M0}, 0xc000"))
    if NPQ == 8: o += late; late = []
    T(2)
    A("WAIT K0")
    A("s_barrier")
    T(3)
    TB = P_BASE[1]
    dst = [S_BASE[0], S_BASE[1], TB]
    fr = []
    for ds in range(8):
        for b in range(3):
            ms = []
            for qb in range(4):
                d = vr(dst[b] + 4 * qb)
                c0 = vr(NEGM(0)) if b < 2 else '0'
                ms.append(lambda f, qb=qb, ds=ds, d=d, c0=c0: f"v_mfma_f32_16x16x32_bf16 {d}, {vr(f)}, {vr(Q(qb,ds))}, {d if ds else c0}")
            fr.append((kread((b >> 1) * 16384 + foff(b & 1, ds)), ms))
    for i in range(RING):
        A(fr[i][0][0](F(i)))
    sg = build_seg(fr, [])
    per = opt.get('sper', 3)
    for ds in range(8):
        g = 12 * ds - 1
        sg.put(g, f"WAIT Q{ds}")
        gg = g + 1
        if ds + NPQ < 8:
            for qb in range(4): sg.put(gg, ql(ds + NPQ, qb)); gg += 3
            continue
        k = 0
        gg = g + 2
        while items and (k < per or ds == 7):
            v, t = items.pop(0)
            sg.put(min(gg, 95), t); k += v; gg += 2
    if late: sg.fill([(1, t) for t in late], 12 * (8 - NPQ), 95, cap=3)
    o += sg.text()
    T(6)
    R4 = range(4)
    s0 = lambda qb: S(0, qb)
    s1 = lambda qb: S(1, qb)
    for qb in R4: A(f"v_max3_f32 v{M[qb]}, v{s0(qb)}, v{s0(qb)+1}, v{s0(qb)+2}")
    for qb in R4: A(f"v_max3_f32 v{M[qb]}, v{M[qb]}, v{s0(qb)+3}, v{s1(qb)}")
    for qb in R4: A(f"v_max3_f32 v{M[qb]}, v{M[qb]}, v{s1(qb)+1}, v{s1(qb)+2}")
    for qb in R4: A(f"v_max_f32 v{M[qb]}, v{M[qb]}, v{s1(qb)+3}")
    for sw in ("v_permlane32_swap_b32", "v_permlane16_swap_b32"):
        for qb in R4: A(f"v_mov_b32 v{ET[qb]}, v{M[qb]}")
        for qb in R4: A(f"{sw} v{M[qb]}, v{ET[qb]}")
        for qb in R4: A(f"v_max_f32 v{M[qb]}, v{M[qb]}, v{ET[qb]}")
    if TR[0]:
        for qb in R4: A(f"v_ceil_f32 v{M[qb]}, v{M[qb]}")
    for h in range(2):
        for qb in R4:
            for r in R4: A(f"v_sub_f32 v{S(h,qb)+r}, v{S(h,qb)+r}, v{M[qb]}")
            for r in R4: A(f"v_exp_f32 v{S(h,qb)+r}, v{S(h,qb)+r}")
            if h == 0:
                for r in R4: A(f"v_sub_f32 v{NEGM(qb)+r}, 0, v{M[qb]}")
        if h == 0:
            A("WAIT K1")
            A("s_barrier")
            for i in range(RING):
                for x in vread(0, i): A(x(F(i)))
    T(7)
    for h in range(2):
        for qb in R4:
            s = S(h, qb)
            A(f"v_cvt_pk_bf16_f32 v{P(0,qb)+2*h}, v{s}, v{s+1}")
            A(f"v_cvt_pk_bf16_f32 v{P(0,qb)+2*h+1}, v{s+2}, v{s+3}")
    for qb in R4: A(f"v_add_f32 v{LA[qb]}, v{s0(qb)}, v{s0(qb)+1}")
    for qb in R4: A(f"v_add_f32 v{LB[qb]}, v{s0(qb)+2}, v{s0(qb)+3}")
    for r in R4:
        for qb in R4:
            t = LA if r % 2 == 0 else LB
            A(f"v_add_f32 v{t[qb]}, v{t[qb]}, v{s1(qb)+r}")
    for qb in R4: A(f"v_add_f32 v{LA[qb]}, v{LA[qb]}, v{LB[qb]}")
    for qb in R4:
        for r in R4: A(f"v_sub_f32 v{s0(qb)+r}, v{TB+4*qb+r}, v{M[qb]}")


def gen_k2(opt=None):
    opt = opt or {}
    TR[0] = opt.get('tr', opt.get('fuse', 0))
    o = []
    A = o.append
    MGK = opt.get('mg')
    if opt.get('fuse'):
        import gen_f
        gen_f.MG[0] = MGK
        if MGK:
            import gen_m
            opt = dict(opt, dl=' sc1'); o += gen_m.front(opt)
        else: A(f"s_mov_b64 s[{gen_f.S_TAG}:{gen_f.S_TAG+1}], 1")
    def T(i):
        if opt.get('timing') and not (opt.get('p1t') and 0 < i + 0 < 5 or opt.get('p1t') and i == 0): A(f"s_memtime s[{74+2*i}:{75+2*i}]")
        if opt.get('timing') and opt.get('p1t') and i == 0: A("s_memtime s[84:85]")
    A("s_load_dwordx2 s[4:5], s[0:1], %d" % KA_WS)
    if opt.get('fuse'):
        import gen_f
        A("s_load_dwordx2 s[60:61], s[0:1], %d" % KA_X)
        A("s_load_dwordx2 s[52:53], s[0:1], %d" % KA_DEG)
        A("s_load_dwordx2 s[56:57], s[0:1], %d" % KA_OUT)
    if opt.get('timing'):
        A("s_memtime s[62:63]" if not MGK else "s_mov_b64 s[62:63], s[100:101]")
        A("s_memrealtime s[64:65]")
        T(8)
    A("s_and_b32 s35, s2, 7")
    A("s_lshr_b32 s37, s2, 3")
    if opt.get('sp0'): A("s_add_u32 s37, s37, 30"); A("s_and_b32 s37, s37, 31")
    A("s_cmp_ge_u32 s37, 30")
    A("s_cbranch_scc1 LE_start")
    if opt.get('map', 1) == 1:
        A("s_mul_i32 s38, s37, 52")
        A("s_lshr_b32 s38, s38, 8")
        A("s_mul_i32 s39, s38, 5")
        A("s_sub_u32 s39, s37, s39")
        A("s_mov_b32 s37, s38")
        A("s_mul_i32 s38, s35, 5")
        A("s_add_u32 s38, s38, s39")
    else:
        A("s_mul_i32 s38, s37, 26")
        A("s_lshr_b32 s38, s38, 8")
        A("s_mul_i32 s39, s38, 10")
        A("s_sub_u32 s39, s37, s39")
        A("s_and_b32 s37, s35, 1")
        A("s_mul_i32 s37, s37, 3")
        A("s_add_u32 s37, s37, s38")
        A("s_lshr_b32 s38, s35, 1")
        A("s_mul_i32 s38, s38, 10")
        A("s_add_u32 s38, s38, s39")
    A("v_lshrrev_b32 v1, 6, v0")
    A(f"v_and_b32 v{VLANE16}, 63, v0")
    A(f"v_lshlrev_b32 v{VLANE16}, 4, v{VLANE16}")
    A(f"v_readfirstlane_b32 s{S_WAVE}, v1")
    cnts = opt.get('cnts', [52, 52, 52, 52, 52, 53])
    assert sum(cnts) == NT and len(cnts) == NSPLIT
    st = [sum(cnts[:i]) for i in range(NSPLIT)] + [NT - 1]
    pk = sum(x << (9 * i) for i, x in enumerate(st))
    A(f"s_mov_b32 s50, 0x{pk & 0xffffffff:x}")
    A(f"s_mov_b32 s51, 0x{pk >> 32:x}")
    A(f"s_mul_i32 s39, s37, 9")
    A(f"s_lshr_b64 s[50:51], s[50:51], s39")
    A(f"s_and_b32 s39, s50, 0x1ff")
    A(f"s_bfe_u32 s49, s50, 0x90009")
    A(f"s_sub_u32 s{S_CNT}, s49, s39")
    TT = opt.get('trun', 0)
    A(f"s_sub_u32 s{S_CNT}, s{S_CNT}, {TT or 2}")
    A(f"s_lshl_b32 s39, s39, 14")
    A(f"s_lshl_b32 s49, s49, 14")
    A(f"s_add_u32 s{S_OFF}, s39, 0x4000")
    A(f"s_cmp_eq_u32 s37, {NSPLIT-1}")
    A(f"s_addc_u32 s{S_CNT}, s{S_CNT}, 0")
    A(f"s_cmp_eq_u32 s37, {NSPLIT-1}")
    A(f"s_cselect_b32 s{S_OFF}, s39, s{S_OFF}")
    A(f"s_cselect_b32 s39, {(NT-1)*16384}, s39")
    A(f"s_cselect_b32 s49, {N*512}, s49")
    A(f"s_cselect_b32 s{S_MASK}, 0xff800000, 0")
    A(f"s_mov_b32 s{S_THR}, 0x5d800000")
    A("v_and_b32 v2, 63, v0")
    A("v_bfe_u32 v3, v2, 3, 2")
    A("v_bfe_u32 v4, v2, 2, 1")
    A(f"v_lshlrev_b32 v{VDMA}, 12, v3")
    A(f"v_lshl_or_b32 v{VDMA}, v4, 9, v{VDMA}")
    A(f"v_lshl_or_b32 v{VDMA}, v1, 7, v{VDMA}")
    A("v_lshrrev_b32 v4, 5, v2")
    A(f"v_lshl_or_b32 v{VDMA}, v4, 6, v{VDMA}")
    A("v_and_b32 v3, 2, v3")
    A("v_and_b32 v4, 3, v2")
    A("v_xor_b32 v3, v3, v4")
    A(f"v_lshl_or_b32 v{VDMA}, v3, 4, v{VDMA}")
    if opt.get('light'):
        A("s_cmp_eq_u32 s38, 39")
        A("s_cbranch_scc1 LT_disp")
    RC = opt.get('race')
    STEP[0] = f"s{S_STEP}" if RC else '0x4000'
    if RC:
        assert opt.get('map') == 2 and TT
        A("s_cmp_lt_u32 s37, 3")
        A(f"s_cselect_b32 s{S_STEP}, 0x4000, 0xffffc000" if 0 else f"s_cselect_b32 s{S_STEP}, 1, -1")
        A("s_cselect_b32 s39, 0, 103")
        A("s_cselect_b32 s3, 0, 3")
        A("s_sub_u32 s3, s37, s3")
        A("s_mul_i32 s3, s3, 104")
        A("s_add_u32 s39, s39, s3")
        A(f"s_cmp_eq_u32 s37, 5")
        A("s_addc_u32 s39, s39, 0")
        A(f"s_lshl_b32 s{S_STEP}, s{S_STEP}, 14")
        A("s_lshl_b32 s39, s39, 14")
        A(f"s_add_u32 s{S_OFF}, s39, s{S_STEP}")
        A(f"s_mov_b32 s49, {N*512}")
        A(f"s_mov_b32 s{S_CNT}, {RC[0]}")
        A(f"s_mov_b32 s{S_PH}, 3")
    A(f"s_lshl_b32 s{S_M0}, s{S_WAVE}, 12")
    A(f"s_lshl_b32 s50, s{S_WAVE}, 13")
    A(f"s_add_u32 s50, s50, 0x20000")
    A(f"s_mov_b32 m0, s{S_M0}")
    if opt.get('fuse'): gen_f.pre_wait(A, 96 if 0 else 94, 95)
    if MGK: gen_m.poll_addrs(A, S_OFF, opt.get('av'), STEP[0] if RC else None)
    A("s_waitcnt lgkmcnt(0)")
    k0 = [f"buffer_load_dwordx4 v{VDMA}, s[{SRD_K}:{SRD_K+3}], s39 offen offset:{k*1024}{opt.get('dl','')} lds" for k in range(4)]
    k1 = [f"buffer_load_dwordx4 v{VDMA}, s[{SRD_K}:{SRD_K+3}], s{S_OFF} offen offset:{k*1024}{opt.get('dl','')} lds ; K0" for k in range(2)]
    if not MGK: T(0)
    srd(o, SRD_K, H_OFF, 0)
    A(f"s_mov_b32 s{SRD_K+2}, s49")
    if not MGK: o += k0; A(f"s_add_u32 m0, s{S_M0}, 0x4000")
    srd(o, SRD_Q, QF_OFF, QF_BYTES)
    if not MGK: o += k1
    A(f"s_mul_i32 s35, s37, 0x{OP_STRIDE:x}")
    srd(o, SRD_OP, OP_OFF, QF_BYTES, 35)
    srd(o, SRD_ML, ML_OFF, NB16 * (2048 if opt.get('fuse') else 1024))
    A(f"s_lshl_b32 s35, s38, 4")
    A(f"s_lshl_b32 s41, s{S_WAVE}, 2")
    A(f"s_add_u32 s35, s35, s41")
    A(f"s_lshl_b32 s40, s35, 13")
    if opt.get('fuse'):
        A("s_lshl_b32 s94, s94, 13")
        A("s_add_u32 s40, s40, s94")
    for qb in range(1, 4):
        A(f"s_{'xor_b32' if opt.get('fuse') else 'add_u32'} s{40+qb}, s40, {qb*8192}")
    for qb in range(4):
        A(f"s_add_u32 s{44+qb}, s{40+qb}, 4096")
    A(f"s_lshl_b32 s48, s35, 10")
    A(f"s_lshl_b32 s35, s37, 3")
    A(f"s_add_u32 s48, s48, s35")
    if MGK:
        for r in range(4): A(f"v_mov_b32 v{ET[0]+r}, 0")
        lds_addrs(A)
        for k in range(16): A(f"v_mfma_f32_32x32x16_bf16 a[{16*k}:{16*k+15}], {vr(ET[0])}, {vr(ET[0])}, 0")
        gen_m.poll_a(A, o, opt)
        T(0)
        o += k0; A(f"s_add_u32 m0, s{S_M0}, 0x4000"); A("s_nop 0"); o += k1
    prologue2(o, opt, T)
    import gen_f
    o[:] = gen_f.fix_waits(o)
    if MGK: gen_m.poll_b_check(A)
    A("s_nop 1")
    if opt.get('timing'):
        A("s_memtime s[66:67]")
        A("s_waitcnt lgkmcnt(0)")
    sites = {}
    n = 0
    for kind in ('loop', 'tail2'):
        for p in (0, 1):
            sites[(kind, p)] = (n, n + 1)
            n += 2
    rares = []; alls = list(range(4 if TT else n))
    A(".p2align 6")
    A("L2_loop:")
    o += body(0, 'loop', sites[('loop', 0)], opt).text()
    A("s_cbranch_scc1 L2_x1" if RC else "s_cbranch_scc1 L2_tail_1")
    A("L2_loop1:")
    o += body(1, 'loop', sites[('loop', 1)], opt).text()
    A("s_cbranch_scc0 L2_loop")
    if RC:
        TG = gen_f.S_TAG
        A(f"s_cmp_eq_u32 s{S_PH}, 0"); A("s_cbranch_scc1 L2_tail_0"); A("s_mov_b32 s3, 0"); A("s_branch L2_ev")
        A("L2_x1:")
        A(f"s_cmp_eq_u32 s{S_PH}, 0"); A("s_cbranch_scc1 L2_tail_1"); A("s_mov_b32 s3, 1")
        A("L2_ev:")
        A(f"s_sub_u32 s{S_PH}, s{S_PH}, 1")
        A(f"s_mov_b32 s{S_CNT}, 1")
        A("v_mov_b32 v251, 0x20000")
        A(f"s_cmp_eq_u32 s{S_PH}, 0"); A("s_cbranch_scc1 L2_ev3")
        A(f"s_cmp_lg_u32 s{S_WAVE}, 0"); A("s_cbranch_scc1 L2_evr")
        A(f"s_cmp_eq_u32 s{S_PH}, 1"); A("s_cbranch_scc1 L2_ev2")
        A(f"v_mov_b32 v252, s{TG}"); A(f"v_mov_b32 v253, s{TG+1}")
        A("s_mov_b64 exec, 1")
        A(f"buffer_atomic_swap_x2 v[252:253], off, s[16:19], s{S_RO} sc0 sc1")
        A("s_mov_b64 exec, -1")
        A("s_branch L2_evr")
        A("L2_ev2:")
        A("s_mov_b64 exec, 1")
        A("ds_write_b64 v251, v[252:253]")
        A("s_mov_b64 exec, -1")
        A("s_branch L2_evr")
        A("L2_ev3:")
        A("ds_read_b64 v[252:253], v251")
        A("s_waitcnt lgkmcnt(0)")
        A(f"v_cmp_eq_u64 vcc, s[{TG}:{TG+1}], v[252:253]")
        A("s_nop 1")
        A("s_cmp_eq_u64 vcc, 0")
        A(f"s_cselect_b32 s{S_CNT}, s{S_NW}, s{S_NL}")
        A("L2_evr:")
        A("s_cmp_eq_u32 s3, 0"); A("s_cbranch_scc1 L2_loop"); A("s_branch L2_loop1")
    for p in (0, 1):
        A(f"L2_tail_{p}:")
        if opt.get('timing'):
            A("s_memtime s[68:69]")
            A("s_waitcnt lgkmcnt(0)")
        if TT:
            tl, rr, ss = tail_run(p, TT, len(alls), opt)
            o += tl; rares += rr; alls += ss
        else:
            o += body(p, 'tail2', sites[('tail2', p)], opt).text()
            A("s_nop 1")
            T(8)
            o += epilogue(body(1 - p, 'tail1', None, opt), opt)
        T(9)
        A("s_branch L2_F" if opt.get('fuse') else "s_branch L2_fin")
    if opt.get('fuse'):
        A("L2_F:")
        nfs = [0]
        def fstamp(A_):
            if opt.get('timing') and opt.get('ft') and nfs[0] < 7:
                A_(f"s_memtime s[{74+2*nfs[0]}:{75+2*nfs[0]}]"); nfs[0] += 1
        fo, fspin = gen_f.final(opt, fstamp)
        o += fo
        if opt.get('ftwice'):
            A("s_barrier\ns_xor_b32 s31, s31, 1\ns_cbranch_scc1 L2_F")
        A("s_branch L2_fin")
        o += fspin
        if MGK: o += gen_m.poll_b_spin()
        A("L2_Fend:")
    if opt.get('valu', 1):
        for p in (0, 1):
            for h in (0, 1):
                o += rare_code(p, h, [sites[('loop', p)][h]] + ([] if TT else [sites[('tail2', p)][h]]))
        o += rares
        o += rare_common(alls)
    import gen_eg
    if opt.get('light'):
        A("LT_disp:")
        A(f"s_cmp_eq_u32 s{S_WAVE}, 0")
        A("s_cbranch_scc1 LT_start")
        A(f"s_mov_b32 s{gen_eg.S_W}, s{S_WAVE}")
        A(f"s_mul_i32 s{gen_eg.S_B}, s{S_WAVE}, 6")
        A(f"s_add_u32 s{gen_eg.S_B}, s{gen_eg.S_B}, s37")
        A(f"s_add_u32 s{gen_eg.S_B}, s{gen_eg.S_B}, 42")
        A(f"s_cmp_lt_u32 s{gen_eg.S_B}, {NBK}")
        A("s_cbranch_scc1 LE_common")
        A("s_branch L2_end")
        light(o, opt, TT)
    gen_eg.gen_edge(o, opt)
    A("L2_fin:")
    if opt.get('timing'):
        A("s_mov_b64 exec, -1")
        A("s_waitcnt vmcnt(0)")
        A("s_memtime s[70:71]")
        A("s_memrealtime s[72:73]")
        A("s_waitcnt lgkmcnt(0)")
        A("s_sub_u32 s66, s66, s62")
        A("s_sub_u32 s68, s68, s62")
        A("s_sub_u32 s70, s70, s62")
        for i in range(10):
            A(f"s_sub_u32 s{74+2*i}, s{74+2*i}, s62\nv_mov_b32 v{4+i}, s{74+2*i}")
        A("v_mov_b32 v14, s64\nv_mov_b32 v15, s72")
        A("s_sub_u32 s72, s72, s64")
        A("v_mov_b32 v0, s66\nv_mov_b32 v1, s68\nv_mov_b32 v2, s70\nv_mov_b32 v3, s72")
        A("s_add_u32 s60, s4, 0x%x\ns_addc_u32 s61, s5, 0" % TIM_OFF)
        A("v_mbcnt_lo_u32_b32 v248, -1, 0\nv_mbcnt_hi_u32_b32 v248, -1, v248\nv_lshlrev_b32 v248, 4, v248")
        A("s_mov_b32 s62, 0x100000\ns_mov_b32 s63, 0x00020000")
        A(f"s_lshl_b32 s35, s2, 2")
        A(f"s_add_u32 s35, s35, s{S_WAVE}")
        A(f"s_lshl_b32 s35, s35, 10")
        A(f"buffer_store_dwordx4 v[0:3], v{VLANE16}, s[60:63], s35 offen")
        A("s_add_u32 s35, s35, 0x200000\ns_mov_b32 s62, 0x800000")
        for k in range(3):
            A(f"buffer_store_dwordx4 v[{4+4*k}:{7+4*k}], v{VLANE16}, s[60:63], s35 offen")
            A("s_add_u32 s35, s35, 0x100000")
    A("L2_end:")
    return "\n".join(o)


def kernel_desc(opt=None):
    return dict(name="k2_kernel", body=gen_k2(opt), vgpr=512, accum=256, grid=256, block=256, lds=163840 if (opt or {}).get('trun', 0) > 3 or (opt or {}).get('light') else 131072)
```

```python
N = 10000
D = 256
E = 160000
NB16 = 626
NT = 313
FRAGBLK = 8192
QF_OFF = 0
KF_OFF = 8 << 20
VF_OFF = 16 << 20
ME_OFF = 104 << 20
H_OFF = ME_OFF
WF_OFF = 16 << 20
A_OFF = 17 << 20
OP_OFF = 32 << 20
OP_STRIDE = 6 << 20
ML_OFF = 96 << 20
ML_STRIDE = 1 << 20
HL_OFF = 112 << 20
ECNT_OFF = 120 << 20
EDGE_OFF = 128 << 20
TIM_OFF = 208 << 20
QF_BYTES = NB16 * FRAGBLK
KF_BYTES = NB16 * FRAGBLK
VF_BYTES = NT * 16384
ME_BYTES = N * 512
HL_BYTES = N * 512
NSPLIT = 6
NQT = 40
K1_WGS = 256
EPW = E // K1_WGS
NBK = 64
BN = 157
BMAGIC, BSHIFT = 6679, 20
SEGS = [[(157, 64)]]
def segs():
    out = []; n0 = b0 = 0
    for sz, nb in SEGS[0]:
        mg = next(m for m in range((1 << BSHIFT) // sz, (1 << BSHIFT) // sz + 9) if all((x * m) >> BSHIFT == x // sz for x in range(sz * nb)))
        out.append((n0, sz, b0, mg, ((b0 << BSHIFT) - n0 * mg) & 0xffffffff)); n0 += sz * nb; b0 += nb
    assert n0 >= N and b0 == NBK
    return out
NEW = 16
ECAP = 10240
ECNT_BYTES = NBK * NEW * 4
EDGE_BYTES = NBK * NEW * ECAP * 4
assert all((d * BMAGIC) >> BSHIFT == d // BN for d in range(N)) and NBK * BN >= N
KA_X, KA_SRC, KA_DST, KA_DEG, KA_WMSG, KA_WQ, KA_WK, KA_WV, KA_WOUT, KA_OUT, KA_DBG, KA_WS = [8 * i for i in range(12)]


def vr(b, n=4): return f"v[{b}:{b+n-1}]"
def ar(b, n=4): return f"a[{b}:{b+n-1}]"
def sr(b, n=4): return f"s[{b}:{b+n-1}]"


class Seg:
    def __init__(self):
        self.mf = []
        self.gap = []
        self.pre = []

    def add_mfma(self, t):
        self.mf.append(t)
        self.gap.append([])

    def used(self, g):
        return sum(c for c, _ in self.gap[g])

    def put(self, g, text, cost=1):
        if g < 0:
            self.pre.append((cost, text))
        else:
            self.gap[g].append((cost, text))

    def fill(self, queue, g0, g1, cap=2):
        g = g0
        for cost, text in queue:
            while g < g1 and self.used(g) + cost > cap:
                g += 1
            self.gap[g].append((cost, text))
        return g

    def text(self):
        o = [t for _, t in self.pre]
        for m, gp in zip(self.mf, self.gap):
            o.append(m)
            o += [t for _, t in gp]
        return o


def srd_from(o, d, plo, off, nbytes, extra_sgpr=None):
    o.append(f"s_add_u32 s{d}, s{plo}, 0x{off & 0xffffffff:x}")
    o.append(f"s_addc_u32 s{d+1}, s{plo+1}, 0")
    if extra_sgpr is not None:
        o.append(f"s_add_u32 s{d}, s{d}, s{extra_sgpr}")
        o.append(f"s_addc_u32 s{d+1}, s{d+1}, 0")
    if isinstance(nbytes, str):
        o.append(f"s_mov_b32 s{d+2}, {nbytes}")
    else:
        o.append(f"s_mov_b32 s{d+2}, 0x{nbytes:x}")
    o.append(f"s_mov_b32 s{d+3}, 0x00020000")
```

```python
from layout import *

L_W0 = 4096
LIST_B = 20480
L_WS = LIST_B + 1024
PADV = 0xffff
BNMAX = 176
assert ((4096 + 3 * BNMAX) // 4 + BNMAX // 4 + 31) // 32 * 32 + 40 <= LIST_B // 16
S_BN, S_NB = 54, 55

VL = 1; VN16 = 2; VG = 3
CNT = 4; CP = 5
VOFF = 6
VCB = 7
VONE = 16; VFOUR = 17
MINV = [18, 19, 20, 21]
CB = 24
GS = 28
VS = 32; VT = 33; VT2 = 34; VCA = 35
VLB = 36
VFL = 37
VRD = 38
VST = 39
SELA = 40; SELB = 44
ACC = 48
IDXA = [52, 56]
AD = 60
PK = 64
PV = 66
VFILL = 68
VPAD = 72
IDX = 128
E = 192

S_B, S_W, S_PASS, S_LIM, S_NIT, S_IT, S_F, S_SO, S_T, S_512, S_EO = 40, 41, 42, 43, 44, 45, 46, 47, 48, 49, 50
SRD_C, SRD_E, SRD_G, SRD_H = 8, 12, 16, 20


def wave_reduce(A, v, t, op):
    for m in ("row_shr:1", "row_shr:2", "row_shr:4", "row_shr:8", "row_bcast:15 row_mask:0xa", "row_bcast:31 row_mask:0xc"):
        A("s_nop 1")
        A(f"{op}_dpp v{v}, v{v}, v{v} {m}" + (" row_mask:0xf" if "mask" not in m else "") + " bank_mask:0xf")


def gen_edge(o, opt):
    A = o.append
    timing = opt.get('timing')
    NEW = opt.get('new', 16); NPASS = 40; ECAP = 4096 // NEW; LPS = 64 // NEW; LS = LPS.bit_length() - 1; PER = 4096 // NEW
    nst = [0]
    def stamp():
        if timing:
            A("s_memtime s[88:89]")
            A("s_waitcnt lgkmcnt(0)")
            A(f"v_writelane_b32 v126, s88, {nst[0]}")
            nst[0] += 1
    A("LE_start:")
    A("s_cmp_ge_u32 s37, 32")
    A("s_cbranch_scc1 L2_end")
    A("v_lshrrev_b32 v1, 6, v0")
    A("s_sub_u32 s37, s37, 30")
    A("s_lshl_b32 s35, s35, 1")
    A(f"v_readfirstlane_b32 s{S_W}, v1")
    A("s_add_u32 s35, s35, s37")
    A("s_mul_i32 s35, s35, %d" % (3 if opt.get('light') else 4))
    A(f"s_add_u32 s{S_B}, s35, s{S_W}")
    if opt.get('light'):
        A(f"s_cmp_ge_u32 s{S_W}, 3")
        A("s_cbranch_scc1 L2_end")
    A("LE_common:")
    A(f"v_and_b32 v{VL}, 63, v0")
    if opt.get('wexit'):
        A(f"s_cmp_ge_u32 s{S_W}, {opt['wexit']}")
        A("s_cbranch_scc1 L2_end")
    for i, (n0, sz, b0, mg, c) in enumerate(segs()):
        assert sz <= BNMAX
        A(f"s_sub_u32 s36, s{S_B}, {b0}")
        A(f"s_cselect_b32 s{S_BN}, s{S_BN}, {sz}" if i else f"s_mov_b32 s{S_BN}, {sz}")
        A(f"s_mul_i32 s36, s36, {sz}")
        if i:
            A(f"s_add_u32 s36, s36, {n0}"); A(f"s_cmp_lt_u32 s{S_B}, {b0}")
        A(f"s_cselect_b32 s{S_NB}, s{S_NB}, s36" if i else f"s_mov_b32 s{S_NB}, s36")
    A(f"s_mov_b32 s{S_PASS}, 0")
    A(f"s_mov_b32 s{S_512}, 512")
    A(f"v_lshrrev_b32 v{VT}, {LS}, v{VL}")
    A(f"v_and_b32 v{VT2}, {LPS-1}, v{VL}")
    A(f"v_mul_u32_u24 v{VOFF}, 0x{ECAP*4:x}, v{VT}")
    A(f"v_lshl_add_u32 v{VOFF}, v{VT2}, 4, v{VOFF}")
    A(f"v_lshlrev_b32 v{VT}, 8, v{VT}")
    A(f"s_mul_i32 s{S_EO}, s{S_B}, {NEW*ECAP*4}")
    A(f"s_lshl_b32 s{S_T}, s{S_B}, 2")
    A("s_waitcnt lgkmcnt(0)")
    if timing:
        A("s_mov_b32 s100, s62")
        A("v_mov_b32 v126, v254")
    hl = ' sc1' if opt.get('mg') else ''
    if opt.get('mg'):
        import gen_f
        srd_from(o, SRD_C, 4, gen_f.FLAG_OFF + (gen_f.P1F0 + 240) * gen_f.FS, 16 * gen_f.FS)
        A(f"v_and_b32 v194, 15, v0"); A("v_lshlrev_b32 v194, 7, v194")
        gen_f.spin(A, "LE_poll0", [f"buffer_load_dwordx2 v[192:193], v194, {sr(SRD_C)}, 0 offen sc1"], [192])
    srd_from(o, SRD_C, 4, ECNT_OFF, NBK * NEW * 4)
    srd_from(o, SRD_E, 4, EDGE_OFF, EDGE_BYTES)
    A(f"buffer_load_dword v{CNT}, v{VT}, {sr(SRD_C)}, s{S_T} offen{hl}")
    def eloads():
        for k in range(16):
            A(f"buffer_load_dwordx4 {vr(E + k*4)}, v{VOFF}, {sr(SRD_E)}, s{S_EO} offen offset:{k*16*LPS}{hl}")
    eloads()
    srd_from(o, SRD_G, 4, ME_OFF, ME_BYTES)
    srd_from(o, SRD_H, 4, HL_OFF, HL_BYTES)
    A(f"v_lshlrev_b32 v{CP}, 2, v{VT2}")
    A(f"v_and_b32 v{VN16}, 15, v{VL}")
    A(f"v_lshrrev_b32 v{VG}, 4, v{VL}")
    A(f"v_mov_b32 v{VONE}, 1")
    A(f"v_mov_b32 v{VFOUR}, 4")
    A(f"v_and_b32 v{VT}, 1, v{VN16}")
    A(f"v_lshlrev_b32 v{VT}, 4, v{VT}")
    A(f"v_lshlrev_b32 v{VT}, v{VT}, v{VONE}")
    A(f"v_mul_u32_u24 v{VT}, 0x3f80, v{VT}")
    A(f"v_lshrrev_b32 v{VT2}, 1, v{VN16}")
    for k in range(8):
        A(f"v_cmp_eq_u32 vcc, {k}, v{VT2}")
        A("s_nop 1")
        A(f"v_cndmask_b32 v{SELA + k}, 0, v{VT}, vcc")
    A(f"v_lshlrev_b32 v{VST}, 5, v{VN16}")
    A(f"v_lshl_add_u32 v{VST}, v{VG}, 3, v{VST}")
    A(f"v_lshlrev_b32 v{VN16}, 4, v{VN16}")
    A(f"s_mul_i32 s{S_T}, s{S_W}, {L_WS}")
    A(f"s_add_u32 s{S_T}, s{S_T}, {L_W0}")
    A(f"v_mov_b32 v{VLB}, s{S_T}")
    A(f"v_lshl_add_u32 v{VRD}, v{VG}, 2, v{VLB}")
    A(f"s_lshl_b32 s36, s{S_W}, 10")
    A(f"s_lshl_b32 s35, s{S_NB}, 2")
    A(f"s_sub_u32 s35, s36, s35")
    A(f"v_mov_b32 v{VCB}, s35")
    A(f"v_lshlrev_b32 v{VCA}, 4, v{VL}")
    A(f"v_add_u32 v{VFILL}, s{S_T}, v{VCA}")
    A(f"v_add_u32 v{VCA}, s36, v{VCA}")
    A(f"v_lshlrev_b32 v{VT}, 2, v{VL}")
    for k in range(4):
        A(f"v_mov_b32 v{VPAD+k}, 0x{PADV:x}")
    for k in range(4):
        if k: A(f"v_add_u32 v{VT}, 1, v{VT}")
        A(f"v_cmp_gt_u32 vcc, s{S_BN}, v{VT}")
        A(f"v_mov_b32 v{ACC+k}, 0")
        A("s_nop 0")
        A(f"v_cndmask_b32 v{MINV[k]}, 0, v{VONE}, vcc")
    A("LE_pass:")
    A(f"ds_write_b128 v{VCA}, {vr(ACC)}")
    for k in range(LIST_B // 1024):
        A(f"ds_write_b128 v{VFILL}, {vr(VPAD)} offset:{k*1024}")
    A(f"v_lshl_add_u32 v{VS}, v{VL}, 2, v{VLB}")
    A(f"ds_write_b32 v{VS}, v{ACC} offset:{LIST_B}")
    stamp()
    A("s_waitcnt vmcnt(16)")
    stamp()
    A(f"v_sub_u32 v{VS}, v{CNT}, v{CP}")
    def slots(lab, fn, wait=False):
        for k in range(16):
            if wait: A(f"s_waitcnt vmcnt({15-k})")
            for j in range(4):
                A(f"v_cmpx_lt_i32 vcc, {4*LPS*k+j}, v{VS}")
                if j == 0: A(f"s_cbranch_execz {lab}")
                fn(4 * k + j)
        A(f"{lab}:")
        A("s_mov_b64 exec, -1")
    def f_count(s):
        A(f"v_mad_u32_u16 v{IDX+s}, v{E+s}, 1, v{VCB} op_sel:[1,0,0,0]")
        A(f"ds_add_u32 v{IDX+s}, v{VONE}")
    slots("LE_c", f_count, True)
    stamp()
    A(f"ds_read_b128 {vr(CB)}, v{VCA}")
    A("s_waitcnt lgkmcnt(0)")
    for k in range(4):
        A(f"v_add_u32 v{CB+k}, 3, v{CB+k}")
        A(f"v_lshrrev_b32 v{CB+k}, 2, v{CB+k}")
        A(f"v_max_u32 v{CB+k}, v{CB+k}, v{MINV[k]}")
    A(f"v_add_u32 v{VT}, v{CB}, v{CB+1}")
    A(f"v_add3_u32 v{VT}, v{VT}, v{CB+2}, v{CB+3}")
    A(f"v_mov_b32 v{PK}, v{VT}")
    wave_reduce(A, PK, None, "v_add_u32")
    A("s_nop 1")
    A(f"v_readlane_b32 s{S_NIT}, v{PK}, 63")
    A(f"v_sub_u32 v{GS}, v{PK}, v{VT}")
    for k in range(1, 4):
        A(f"v_add_u32 v{GS+k}, v{GS+k-1}, v{CB+k-1}")
    for k in range(4):
        A(f"v_add3_u32 v{VT}, v{GS+k}, v{CB+k}, -1")
        A(f"v_lshlrev_b32 v{VT2}, v{VT}, v{MINV[k]}")
        A(f"v_lshrrev_b32 v{VT}, 5, v{VT}")
        A(f"v_lshl_add_u32 v{VT}, v{VT}, 2, v{VLB}")
        A(f"ds_or_b32 v{VT}, v{VT2} offset:{LIST_B}")
        A(f"v_lshl_add_u32 v{GS+k}, v{GS+k}, 4, v{VLB}")
    A(f"ds_write_b128 v{VCA}, {vr(GS)}")
    A(f"s_add_u32 s{S_NIT}, s{S_NIT}, 31")
    A(f"s_lshr_b32 s{S_NIT}, s{S_NIT}, 5")
    stamp()
    slots("LE_p", lambda s: A(f"ds_add_rtn_u32 v{IDX+s}, v{IDX+s}, v{VFOUR}"))
    A(f"v_lshl_add_u32 v{VT}, v{VL}, 2, v{VLB}")
    A(f"ds_read_b32 v{VFL}, v{VT} offset:{LIST_B}")
    A("s_waitcnt lgkmcnt(0)")
    slots("LE_w", lambda s: A(f"ds_write_b32 v{IDX+s}, v{E+s}"))
    stamp()
    if opt.get('mg'):
        gen_f.poll_all(A, o, "LE_poll", SRD_C, 192)
        A(f"s_cmp_lg_u32 s{S_B}, 0")
        A("s_cbranch_scc1 LE_nobump")
        A(f"s_mov_b32 s90, {(gen_f.EPOCH - gen_f.P1F0) * gen_f.FS}")
        A(f"s_mov_b32 s{SRD_C+2}, {(gen_f.EPOCH + 1 - gen_f.P1F0) * gen_f.FS}")
        A(f"v_lshlrev_b32 v196, 4, v{VL}")
        gen_f.publish(A, SRD_C, 90, 192, opt, 196)
        A("LE_nobump:")
    A(f"v_mov_b32 v{VT2}, v{VRD}")
    NBT = 8
    def idx_read(b, par):
        i = IDXA[par]
        A(f"ds_read2_b32 v[{i}:{i+1}], v{VT2} offset0:{b*16} offset1:{b*16+4}")
        A(f"ds_read2_b32 v[{i+2}:{i+3}], v{VT2} offset0:{b*16+8} offset1:{b*16+12}")
    gl = opt.get('gl', hl)
    def issue(b):
        par = b % 2
        A("s_waitcnt lgkmcnt(0)")
        idx_read(b + 1, 1 - par)
        for i in range(4):
            A(f"v_mad_u32_u16 v{AD+i}, v{IDXA[par]+i}, s{S_512}, v{VN16}")
        for i in range(4):
            r = (b * 4 + i) * 8
            A(f"buffer_load_dwordx4 {ar(r)}, v{AD+i}, {sr(SRD_G)}, 0 offen{gl}")
            A(f"buffer_load_dwordx4 {ar(r+4)}, v{AD+i}, {sr(SRD_G)}, 0 offen offset:256{gl}")
    idx_read(0, 0)
    for b in range(NBT):
        issue(b)
    A(f"v_add_u32 v{VT2}, {NBT*64}, v{VT2}")
    A(f"s_mov_b32 s{S_IT}, 0")
    A(f"s_lshl_b32 s{S_SO}, s{S_NB}, 9")
    A("LE_loop:")
    A(f"v_readlane_b32 s{S_F}, v{VFL}, s{S_IT}")
    A(f"s_add_u32 s{S_IT}, s{S_IT}, 1")
    for b in range(NBT):
        A(f"s_waitcnt vmcnt({(NBT-1)*8})")
        for i in range(4):
            g = b * 4 + i
            r = g * 8
            A(f"v_mfma_f32_16x16x32_bf16 {vr(ACC)}, {ar(r)}, {vr(SELA)}, {vr(ACC)}")
            A(f"v_mfma_f32_16x16x32_bf16 {vr(ACC)}, {ar(r+4)}, {vr(SELB)}, {vr(ACC)}")
            A(f"s_bitcmp1_b32 s{S_F}, {g}")
            A(f"s_cbranch_scc0 LE_nf{g}")
            A(f"s_cmp_eq_u32 s{S_PASS}, 0")
            A(f"s_cbranch_scc1 LE_fl{g}")
            A(f"buffer_load_dwordx2 v[{PV}:{PV+1}], v{VST}, {sr(SRD_H)}, s{S_SO} offen sc1")
            A("s_waitcnt vmcnt(0)")
            for k in range(2):
                A(f"v_lshlrev_b32 v{PK}, 16, v{PV+k}")
                A(f"v_and_b32 v{PK+1}, 0xffff0000, v{PV+k}")
                A(f"v_add_f32 v{ACC+2*k}, v{ACC+2*k}, v{PK}")
                A(f"v_add_f32 v{ACC+2*k+1}, v{ACC+2*k+1}, v{PK+1}")
            A(f"LE_fl{g}:")
            A("s_nop 3")
            A(f"v_cvt_pk_bf16_f32 v{PK}, v{ACC}, v{ACC+1}")
            A(f"v_cvt_pk_bf16_f32 v{PK+1}, v{ACC+2}, v{ACC+3}")
            for k in range(4):
                A(f"v_mov_b32 v{ACC+k}, 0")
            A(f"buffer_store_dwordx2 v[{PK}:{PK+1}], v{VST}, {sr(SRD_H)}, s{S_SO} offen{opt.get('ste', '')}")
            A(f"s_add_u32 s{S_SO}, s{S_SO}, 512")
            A(f"LE_nf{g}:")
        issue(b)
    A(f"v_add_u32 v{VT2}, {NBT*64}, v{VT2}")
    A(f"s_cmp_lt_u32 s{S_IT}, s{S_NIT}")
    A("s_cbranch_scc1 LE_loop")
    stamp()
    A(f"s_add_u32 s{S_PASS}, s{S_PASS}, 1")
    A(f"s_mul_i32 s{S_LIM}, s{S_PASS}, {PER}")
    A(f"v_cmp_lt_u32 vcc, s{S_LIM}, v{CNT}")
    A("s_cbranch_vccz LE_done")
    A(f"s_cmp_ge_u32 s{S_PASS}, {NPASS}")
    A("s_cbranch_scc1 LE_done")
    A("s_waitcnt vmcnt(0) lgkmcnt(0)")
    A(f"s_add_u32 s{S_EO}, s{S_EO}, {NBK*4096*4}")
    A(f"v_add_u32 v{CP}, 0x{PER:x}, v{CP}")
    eloads()
    A("s_branch LE_pass")
    A("LE_done:")
    if opt.get('fuse'):
        import gen_f
        srd_from(o, 24, 4, gen_f.FLAG_OFF, gen_f.NFLAG * gen_f.fstr(opt))
        A(f"s_add_u32 s{S_T}, s{S_B}, {gen_f.HLF0}")
        A(f"s_mul_i32 s{S_T}, s{S_T}, {gen_f.fstr(opt)}")
        A("s_waitcnt vmcnt(0)")
        A(f"v_lshlrev_b32 v196, 4, v{VL}")
        gen_f.publish(A, 24, S_T, 192, opt, 196)
    if opt.get('tpf'):
        A("s_getpc_b64 s[64:65]")
        A("LE_pc:")
        A("s_sub_u32 s64, s64, LE_pc-L2_tail_0")
        A("s_subb_u32 s65, s65, 0")
        A("s_mov_b32 s66, L2_rare_site0-L2_tail_0")
        A("s_mov_b32 s67, 0x00020000")
        A("s_mov_b64 exec, -1")
        A(f"v_lshlrev_b32 v1, 7, v{VL}")
        for k in range(3):
            A(f"s_movk_i32 s68, 0x{k*8192:x}")
            A(f"buffer_load_dword v{2+k}, v1, s[64:67], s68 offen")
    if timing:
        A("s_waitcnt vmcnt(0)")
        stamp()
        A(f"v_subrev_u32 v0, s100, v126")
        A("s_memrealtime s[88:89]")
        A("s_waitcnt lgkmcnt(0)")
        A("v_writelane_b32 v0, s88, 7")
        A("s_add_u32 s60, s4, 0x%x\ns_addc_u32 s61, s5, 0" % TIM_OFF)
        A("s_mov_b32 s62, 0x200000\ns_mov_b32 s63, 0x00020000")
        A(f"s_lshl_b32 s35, s{S_B}, 8")
        A(f"s_add_u32 s35, s35, 0x100000")
        A(f"v_lshlrev_b32 v1, 2, v{VL}")
        A(f"buffer_store_dword v0, v1, s[60:63], s35 offen")
    A("s_branch L2_end")
```

```python
from layout import *
from sched import *
import hazard

MF32 = "v_mfma_f32_16x16x32_bf16"
NFLAG = 2048
HLF0 = 1280
FS = 128
P1F0, WFF0, HF0, AF0, EPOCH = 1344, 1600, 1664, 1920, 2047
S_TAG = 98
MG = [0]
OOB = 0x70000000
MLS = 128
OWN = [[0, 4, 8], [1, 5, 12], [2, 9, 13], [6, 10, 14], [3, 7], [11, 15]]
QS = [0]
def mask(s, w):
    own = [b & 3 for b in OWN[s] if b >> 2 == w]
    if not QS[0]: return own[0] if own else 0
    return own[0] ^ 3 if own else 2 * [x for x in range(6) if not any(b >> 2 == w for b in OWN[x])].index(s)
TO = [33, 38, 60, 61]
SX, SWS, SM, SD, SO = 8, 16, 24, 52, 56
P_X = 60
S_NEED = 96
XO = [6, 7, 29]; S_FO = 51
S_WAVE, S_SPLIT, S_SPB, S_ML0 = 34, 37, 50, 48
S_XL, S_XB, S_H2 = 31, 28, 30
VLANE16, VE = 243, 241
DIAG, ACC, BF, ZA, WT, T = 0, 160, 208, 128, 144, 232
POOL = [r for r in range(48, 128, 8) if r not in (72, 104)]
VDUM, VPO2, VP1 = 36, 43, 248
XR = [104, 108, 152]
VIL, VH0, VH1, VPOLL, VPO, VPF = 40, 44, 45, 46, 47, 158
EV = dict(tmp=228, hf=240, cp=38, wf=108)
VWF_ = 108
VBH, VOW, VDGR = 72, 76, 79
VMK = 156
VW0, VW1, VML_, VT0, VT1, VTR, VWW, VWR, VZ, VZR, DG = 240, 241, 0, 245, 246, 247, 242, 250, 251, 252, 253
VML = 244
WO = [32, 33, 35, 36, 38, 39, 40, 41]
STR = [42, 43, 44, 45, 46, 47]
S_TMP = [49, 3]
S_SPIN, S_MASK = 94, 95


def fstr(opt): return FS


def pre_wait(A, s_oq, s_own):
    tab = sum((mask(sp, w) | (4 if any(b >> 2 == w for b in OWN[sp]) else 0)) << (3 * (sp * 4 + w)) for sp in range(6) for w in range(4))
    A("s_cmp_lt_u32 s37, 3")
    A(f"s_cselect_b32 s40, 0x{tab & 0xffffffff:x}, 0x{(tab >> 36) & 0xffffffff:x}" if 0 else f"s_mov_b32 s40, 0x{tab & 0xffffffff:x}")
    A(f"s_cselect_b32 s40, s40, 0x{(tab >> 36) & 0xffffffff:x}")
    A(f"s_cselect_b32 s41, {(tab >> 32) & 15}, {tab >> 68}")
    A("s_cselect_b32 s3, 0, 36")
    A(f"s_lshl_b32 s{s_oq}, s37, 2"); A(f"s_add_u32 s{s_oq}, s{s_oq}, s{S_WAVE}"); A(f"s_mul_i32 s{s_oq}, s{s_oq}, 3"); A(f"s_sub_u32 s3, s{s_oq}, s3")
    A("s_lshr_b64 s[40:41], s[40:41], s3")
    A(f"s_and_b32 s{s_oq}, s40, 3")
    A(f"s_bfe_u32 s{s_own}, s40, 0x10002")


def pre_rest(A):
    tab = 0
    for i, b in enumerate(x for l in OWN for x in l): tab |= b << (4 * i)
    A(f"s_mov_b32 s6, 0x{tab & 0xffffffff:x}")
    A(f"s_mov_b32 s7, 0x{tab >> 32:x}")
    A("s_mul_i32 s3, s37, 12")
    A("s_min_u32 s3, s3, 56")
    A("s_lshr_b64 s[6:7], s[6:7], s3")
    A("s_bfe_u32 s29, s6, 0x40008")
    A("s_bfe_u32 s7, s6, 0x40004")
    A("s_and_b32 s6, s6, 15")
    A("s_cmp_lt_u32 s37, 4")
    A("s_cselect_b32 s29, s29, 16")
    A("s_lshl_b32 s3, s38, 17")
    A(f"s_lshl_b32 s{S_FO}, s{S_WAVE}, 7")
    A(f"s_add_u32 s3, s3, s{S_FO}")
    for r in XO:
        A(f"s_lshl_b32 s{r}, s{r}, 13")
        A(f"s_add_u32 s{r}, s{r}, s3")
    A(f"s_mov_b64 s[{S_NEED}:{S_NEED+1}], 0")
    for r in XO:
        for e in (0, 15):
            A(f"s_lshr_b32 s3, s{r}, 9")
            if e: A(f"s_add_u32 s3, s3, {e}")
            for i, (n0, sz, b0, mg, c) in enumerate(segs()):
                A(f"s_mul_i32 s90, s3, {mg}")
                if i:
                    A(f"s_add_u32 s90, s90, 0x{c:x}"); A(f"s_cmp_lt_u32 s3, {n0}")
                A(f"s_cselect_b32 s91, s91, s90" if i else "s_mov_b32 s91, s90")
            A(f"s_lshr_b32 s3, s91, {BSHIFT}")
            A(f"s_bitset1_b64 s[{S_NEED}:{S_NEED+1}], s3")
    A("s_mul_i32 s3, s38, 6")
    A("s_add_u32 s3, s3, s37")
    A(f"s_cmp_eq_u32 s3, {38 * 6 + 5}")
    A("s_cselect_b32 s3, 0, s37")
    A("s_cmp_lt_u32 s3, 4")
    A(f"s_cselect_b32 s29, s29, 0x{OOB:x}")
    A(f"s_lshl_b32 s{S_FO}, s38, 5")
    A(f"s_lshl_b32 s3, s{S_WAVE}, 3")
    A(f"s_add_u32 s{S_FO}, s{S_FO}, s3")
    A(f"s_add_u32 s{S_FO}, s{S_FO}, s37")
    A(f"s_mul_i32 s{S_FO}, s{S_FO}, {FS}")
    A(f"s_add_u32 s{S_FO}, s{S_FO}, 0x{FLAG_OFF:x}")


def prologue(A, o, s_own):
    srd_from(o, SWS, 4, 0, 256 << 20)
    srd_from(o, SX, P_X, 0, N * 512)
    A(f"s_mov_b32 s{SD+2}, 0x{N*2:x}"); A(f"s_mov_b32 s{SD+3}, 0x00020000")
    A(f"s_mov_b32 s{SO+2}, 0x{N*512:x}"); A(f"s_mov_b32 s{SO+3}, 0x00020000")
    w = 3 if QS[0] else 0
    A(f"s_lshr_b32 s{S_ML0}, s{40+w}, 2")
    A(f"s_cmp_eq_u32 s{s_own}, 1")
    A(f"s_cselect_b32 s{40+w}, 0x{OOB:x}, s{40+w}")
    A(f"s_cselect_b32 s{44+w}, 0x{OOB:x}, s{44+w}")


def touch_setup(A):
    early = lambda sp, rb, k: rb < len(OWN[sp]) and ((OWN[sp][rb] & 3) ^ mask((sp + 1 + k) % 6, OWN[sp][rb] >> 2)) < 2
    tab = sum(int(early(sp, *e)) << ((sp * 4 + w) * 4 + i) for sp in range(6) for w in range(4) for i, e in enumerate([(0, w), (1, w), (2, w), (w, 4)]))
    A("s_cmp_lt_u32 s37, 4")
    A(f"s_mov_b32 s90, 0x{tab & 0xffffffff:x}"); A(f"s_cselect_b32 s90, s90, 0x{tab >> 64:x}"); A(f"s_cselect_b32 s91, 0x{(tab >> 32) & 0xffffffff:x}, 0")
    A(f"s_lshl_b32 s3, s37, 2"); A(f"s_add_u32 s3, s3, s{S_WAVE}"); A("s_lshl_b32 s3, s3, 2"); A("s_lshr_b64 s[90:91], s[90:91], s3")
    for kk, idx in ((f"s{S_WAVE}", (0, 1, 2)), ("4", (3,))):
        A(f"s_add_u32 s3, s37, {kk}"); A("s_add_u32 s3, s3, 1"); A("s_sub_u32 s91, s3, 6"); A("s_cselect_b32 s3, s3, s91")
        A(f"s_mul_i32 s3, s3, 0x{OP_STRIDE:x}"); A(f"s_add_u32 s3, s3, 0x{OP_OFF:x}")
        for i in idx:
            if i < 3: A(f"s_andn2_b32 s{TO[i]}, s{XO[i]}, 0x1fff")
            else:
                A(f"s_cmp_eq_u32 s{S_WAVE}, 1"); A(f"s_cselect_b32 s91, s{XO[1]}, s{XO[0]}"); A(f"s_cmp_eq_u32 s{S_WAVE}, 2"); A(f"s_cselect_b32 s91, s{XO[2]}, s91")
                A(f"s_andn2_b32 s{TO[i]}, s91, 0x1fff")
            A(f"s_add_u32 s{TO[i]}, s{TO[i]}, s3"); A(f"s_bitcmp1_b32 s90, {i}"); A(f"s_cselect_b32 s{TO[i]}, s{TO[i]}, 0x{OOB:x}")


def poll_addr(B, v, t, sa, cc='vcc'):
    L = VLANE16
    B(f"s_cmp_ge_u32 s{XO[2]}, 0x{OOB:x}")
    B(f"s_cselect_b32 s{sa[2]}, s{sa[1]}, s{sa[2]}")
    B(f"v_mov_b32 v{v}, s{sa[0]}")
    B(f"v_mov_b32 v{t}, s{sa[1]}")
    B(f"v_lshrrev_b32 v{t+1}, 7, v{L}")
    B(f"v_cmp_lt_u32_e64 {cc}, 0, v{t+1}")
    B(f"s_nop 1\nv_cndmask_b32_e64 v{v}, v{v}, v{t}, {cc}")
    B(f"v_cmp_lt_u32_e64 {cc}, 1, v{t+1}")
    B(f"v_mov_b32 v{t+1}, s{sa[2]}")
    B(f"v_bfe_u32 v{t}, v{L}, 4, 3")
    B(f"v_cndmask_b32_e64 v{v}, v{v}, v{t+1}, {cc}")
    B(f"v_min_u32 v{t}, 5, v{t}")
    B(f"v_lshrrev_b32 v{v}, 2, v{v}")
    B(f"v_lshl_add_u32 v{v}, v{v}, 3, v{t}")
    B(f"v_lshlrev_b32 v{v}, {FS.bit_length() - 1}, v{v}")
    B(f"v_add_u32 v{v}, 0x{FLAG_OFF:x}, v{v}")


def ml_addr(v, L, t):
    return [f"v_bfe_u32 v{v}, v{L}, 8, 1", f"v_mul_u32_u24 v{v}, 768, v{v}", f"v_lshl_add_u32 v{v}, s{S_SPLIT}, 7, v{v}",
            f"v_bfe_u32 v{t}, v{L}, 4, 4", f"v_lshl_add_u32 v{v}, v{t}, 3, v{v}"]


def publish(A, srd, soff, vt, opt, lane16):
    assert vt % 4 == 0
    for r in range(4): A(f"v_mov_b32 v{vt+r}, s{S_TAG + r % 2}")
    A("s_mov_b64 exec, 0xff")
    A(f"buffer_store_dwordx4 {vr(vt)}, v{lane16}, {sr(srd)}, s{soff} offen sc1")
    A("s_mov_b64 exec, -1")


def spin(A, lab, loads, regs, cnt=94, need=None, pair='vcc'):
    A(f"s_mov_b32 s{cnt}, 0x10000")
    A(f"{lab}:")
    for t in loads: A(t)
    A(f"s_sub_u32 s{cnt}, s{cnt}, 1")
    A("s_waitcnt vmcnt(0)")
    A(f"s_cbranch_scc1 {lab}_go")
    for r in regs:
        A(f"v_cmp_ne_u64 vcc, {sr(S_TAG, 2)}, {vr(r, 2)}")
        A("s_nop 1")
        A(f"s_cbranch_vccnz {lab}")
    A(f"{lab}_go:")


LF0 = 1610
def poll_all(A, o, lab, srd, v, n=256):
    srd_from(o, srd, 4, FLAG_OFF + P1F0 * FS, 256 * FS)
    A(f"v_and_b32 v{v+8}, 63, v0")
    A(f"v_lshlrev_b32 v{v+8}, 7, v{v+8}")
    so = ['0', 's91', 's90', 's95']
    for k in range(1, 4): A(f"s_mov_b32 {so[k]}, {k * 8192}")
    if n < 256: A(f"v_min_u32 v{v+9}, {(n - 193) * FS}, v{v+8}")
    spin(A, lab, [f"buffer_load_dwordx2 {vr(v+2*k, 2)}, v{v+8 + (k == 3 and n < 256)}, {sr(srd)}, {so[k]} offen sc1" for k in range(4)], [v + 2 * k for k in range(4)])


def vh0(v, t):
    L = VLANE16
    return [f"v_lshrrev_b32 v{v}, 4, v{L}", f"v_and_b32 v{v}, 0x30, v{v}", f"v_xor_b32 v{v}, v{v}, v{L}",
            f"v_and_b32 v{t}, 0x380, v{L}\nv_mad_u32_u24 v{v}, v{t}, 3, v{v}"]


def early1(p, opt):
    q = []
    A = lambda t, c=1: q.append((c, t))
    A(f"s_and_b32 s30, s30, 0x1c000")
    cur = p + opt['trun'] - 1; assert opt['trun'] in (4, 5)
    A(f"s_add_u32 s{S_XB}, s30, 0x{((5 if cur < 5 else 8) - cur) * 0x4000:x}")
    A(f"s_and_b32 s{S_XB}, s{S_XB}, 0x1ffff")
    A(f"s_add_u32 s30, s30, 0x{(6 - cur) * 0x4000:x}")
    A(f"s_and_b32 s30, s30, 0x1ffff")
    A(f"s_mul_i32 s{S_XL}, s{S_WAVE}, 6144")
    A(f"s_add_u32 s{S_XL}, s{S_XL}, s30")
    A(f"s_lshl_b32 s3, s{S_WAVE}, 10")
    A(f"s_add_u32 s{S_XB}, s{S_XB}, s3")
    A(f"s_add_u32 s3, s3, 24576")
    A(f"s_add_u32 s{S_H2}, s30, s3")
    for t in vh0(VE, EV['tmp']): A(t, 1 + t.count("\n"))
    return q


def dma6(A, c):
    seq = [(rb, u) for u in range(2) for rb in range(3)]
    m0 = lambda rb, u: f"s_add_u32 m0, s{S_XL}, {rb*2048 + u*1024}" if c == 'x' else f"s_add_u32 m0, s{S_XB if rb < 2 else S_H2}, {(rb % 2)*8192 + u*4096}"
    A(m0(*seq[0]), 2)
    for k, (rb, u) in enumerate(seq):
        t = f"buffer_load_dwordx4 v{VE}, {sr(SX)}, s{XO[rb]} offen lds" if c == 'x' else f"buffer_load_dwordx4 v{VE}, {sr(SWS)}, s{XO[rb]} offen sc1 lds ; HLD"
        if k < 5: t += "\n" + m0(*seq[k + 1])
        A(t, 2)
        if k == 2: A(f"v_xor_b32 v{VE}, 0x1040, v{VE}")


def early_x(p, opt):
    q = []
    dma6(lambda t, c=1: q.append((c, t)), 'x')
    return q


def early_hf(p, opt):
    return [(1, f"v_lshlrev_b32 v{VE}, 3, v{VLANE16}"), (1, f"s_mov_b32 s3, 0x{FLAG_OFF + HLF0 * FS:x}"),
            (1, f"buffer_load_dwordx2 {vr(EV['hf'], 2)}, v{VE}, {sr(SWS)}, s3 offen sc1 ; HLFLAG")]


def early_h(p, opt):
    q = []
    A = lambda t, c=1: q.append((c, t))
    A("WAIT HLFLAG")
    A(f"v_cmp_ne_u64_e64 {sr(EV['cp'], 2)}, {sr(S_TAG, 2)}, {vr(EV['hf'], 2)}")
    A(f"s_and_b64 {sr(EV['cp'], 2)}, {sr(EV['cp'], 2)}, s[{S_NEED}:{S_NEED+1}]\ns_cbranch_scc1 LF_hl_{p}\nLF_hlret_{p}:", 2)
    for t in vh0(VE, EV['tmp']): A(t, 1 + t.count("\n"))
    A(f"v_add_u32 v{VE}, 0x{HL_OFF:x}, v{VE}")
    if MG[0]:
        A(f"v_and_b32 v{EV['wf']+2}, 0x70, v{VLANE16}")
        A(f"v_lshlrev_b32 v{EV['wf']+2}, 3, v{EV['wf']+2}")
        A(f"v_add_u32 v{EV['wf']+2}, 0x{FLAG_OFF + WFF0 * FS:x}, v{EV['wf']+2}")
        A(f"buffer_load_dwordx2 {vr(EV['wf'], 2)}, v{EV['wf']+2}, {sr(SWS)}, 0 offen sc1")
    dma6(A, 'h')
    return q


def fix_waits(lines):
    lines = [x for l in lines for x in l.split("\n")]
    for b, l in enumerate(lines):
        if l.startswith("WAIT "):
            a = max(i for i, x in enumerate(lines) if x.endswith("; " + l[5:]))
            n = sum(1 for x in lines[a + 1:b] if x.startswith("buffer_") and not x.endswith(";cond"))
            assert a < b and n < 64, (l, a, b, n)
            lines[b] = f"s_waitcnt vmcnt({n})"
    return lines


def hl_spin(p):
    return [f"LF_hl_{p}:", f"s_mov_b32 s{S_SPIN}, 0x10000", f"s_mov_b32 s3, 0x{FLAG_OFF + HLF0 * FS:x}", f"LF_hl2_{p}:", f"v_lshlrev_b32 v{VE}, 3, v{VLANE16}",
            f"buffer_load_dwordx2 {vr(EV['hf'], 2)}, v{VE}, {sr(SWS)}, s3 offen sc1",
            f"s_sub_u32 s{S_SPIN}, s{S_SPIN}, 1", "s_waitcnt vmcnt(0)", f"s_cbranch_scc1 LF_hlret_{p}",
            f"v_cmp_ne_u64_e64 {sr(EV['cp'], 2)}, {sr(S_TAG, 2)}, {vr(EV['hf'], 2)}", f"s_and_b64 {sr(EV['cp'], 2)}, {sr(EV['cp'], 2)}, s[{S_NEED}:{S_NEED+1}]",
            f"s_cbranch_scc1 LF_hl2_{p}", f"s_branch LF_hlret_{p}"]


R = lambda s, n: s * n
ORDERS = {
    'h2': "d" + R("a", 12) + "F" + R("a", 20) + R("b", 12) + "q" + R("b", 10) + "Q" + "mmm" + R("0b", 6) + "|" + R("1b", 4) + "11|" + "222|222|",
    'h1': "d" + R("a", 12) + "F" + R("a", 20) + "q" + R("b", 10) + "Q" + "mmm" + R("0b", 6) + "|" + R("1bb", 6) + "|" + "2bb2bb2|222|",
    'h4': "d" + R("a", 12) + "F" + R("a", 12) + "q" + R("a", 8) + "Q" + "mmm" + R("0bb", 6) + "|" + R("1bb", 6) + "|" + "2bbbb2bbbb2|222|",
    'h8': "d" + R("a", 12) + "F" + R("a", 10) + "q" + R("a", 10) + "Q" + "mmm" + "000111222|" + R("b", 16) + "000|" + R("b", 16) + "111|222|",
    'h9': "d" + R("a", 12) + "F" + R("a", 4) + "q" + R("a", 8) + "Q" + "mmm" + "000111222|000|111|222|" + R("a", 8) + R("b", 32),
    'ha': "d" + R("b", 12) + "F" + R("b", 20) + "q" + R("a", 10) + "Q" + "mmm" + "0a0a0a0a0a0a|1aa1aa1aa1aa1aa1aa|2aa2aa2|222|",
    'j1': "d" + R("a", 10) + "pF" + R("a", 4) + "Pmmm" + R("a", 10) + "q" + R("a", 8) + "Q" + R("0bb", 6) + "|" + R("1bb", 6) + "|" + "2bbbb2bbbb2|222|",
    'j2': "d" + R("a", 10) + "pF" + R("a", 4) + "Pmmm" + R("a", 18) + "q" + R("b", 10) + "Q" + R("0b", 6) + "|" + R("1bb", 6) + "|" + "2bb2bb2|222|",
    'j3': "d" + R("a", 10) + "pF" + R("a", 4) + "Pmmm" + R("a", 18) + R("b", 12) + "q" + R("b", 10) + "Q" + R("0b", 6) + "|" + R("1b", 4) + "11|" + "222|222|",
    'j4': "d" + R("a", 10) + "pF" + R("a", 4) + "Pmmm" + R("a", 10) + "q" + R("a", 8) + "Q" + "000111222|" + R("b", 16) + "000|" + R("b", 16) + "111|222|",
    'h5': "d" + R("a", 12) + "F" + R("a", 20) + R("b", 8) + "q" + R("b", 10) + "Q" + "mmm" + "0b0b0b1b1b1b2b2b2b|0b0b0b|1b1b1|222|",
    'h6': "d" + R("a", 12) + "F" + R("a", 20) + R("b", 20) + "p" + R("b", 12) + "Pqmmm000Q111222|000|111|222|",
    'h7': "d" + R("a", 12) + "F" + R("a", 16) + "p" + R("a", 4) + R("b", 8) + "Pmmm" + "0bb0bb0bb1bb1bb1bbq2bb2bb2bb|bbbbbbQ000|111|222|",
    'i1': "d" + R("a", 10) + "pF" + R("a", 8) + "Pmmm" + "0a0a0a1a1a1a2a2a2aa" + "q" + R("a", 4) + "b|" + R("b", 7) + "Q" + "0bb0bb0bb|1bb1bb1bb|2bb2bb2bb|" + R("b", 6),
    'i2': "d" + R("a", 10) + "Fp" + R("a", 10) + "Pmmm" + "0a0a0a1a1a1a2aa2aa2aa" + "|q" + R("b", 12) + "Q" + "0bb0bb0bb|1bb1bb1bb|2bb2bb2bbbb|",
    'i3': "d" + R("a", 10) + "Fp" + R("a", 22) + "Pmmm" + "0b0b0b1b1b1b2bb2bb2bb" + "|q" + R("b", 12) + "Q" + "0bb0bb0bb|1bb11|222|",
    'i4': "d" + R("a", 10) + "Fp" + R("a", 6) + "Pmmm" + "000111222" + "|q" + R("a", 16) + "Q" + "000|111|222|" + R("b", 32),
    'i5': "d" + R("a", 10) + "Fp" + R("a", 10) + "Pmmm" + "00aa01aa11aa22aa2aaaa" + "q|" + R("b", 16) + "Q" + "00bbbb0|1bbbb11bbbb|2bbbb22|",
}


def flag1(opt, mk='ST3', v=46):
    return [(1, "WAIT " + mk), (1, f"v_mov_b32 v{v}, s{S_TAG}"), (1, f"v_mov_b32 v{v+1}, s{S_TAG+1}"),
            (3, f"s_mov_b64 exec, 1\nbuffer_store_dwordx2 {vr(v, 2)}, off, {sr(SWS)}, s{S_FO} offset:8 sc1\ns_mov_b64 exec, -1")]


def final(opt, stamp=None):
    stamp = stamp or (lambda A: None)
    q = []
    A = lambda t, **k: q.append(V(t, **k))
    L = VLANE16
    if MG[0]: A(f"v_cmp_ne_u64 vcc, {sr(S_TAG, 2)}, {vr(EV['wf'], 2)}")
    A(f"s_lshl_b32 s3, s{S_WAVE}, 15")
    A(f"s_add_u32 s3, s3, 0x{WF_OFF:x}")
    if MG[0]: A("s_cbranch_vccnz LF_wf\nLF_wf_go:")
    A(f"v_add_u32 v{VW0}, s3, v{L}")
    A(f"v_add_u32 v{VW1}, 0x4000, v{VW0}")
    for k in range(8): A(f"s_mov_b32 s{WO[k]}, 0x{(k >> 2) * 131072 + (k & 3) * 4096:x}")
    for rb in range(3): A(f"s_lshr_b32 s{STR[rb]}, s{XO[rb]}, 13")
    A(f"v_mov_b32 v{VML}, s{STR[0]}")
    A(f"v_mov_b32 v{T}, s{STR[1]}")
    A(f"v_cmp_lt_u32 vcc, 0xff, v{L}")
    A(f"v_mov_b32 v{T+1}, s{STR[2]}")
    A(f"v_cndmask_b32 v{VML}, v{VML}, v{T}, vcc")
    A(f"v_cmp_lt_u32 vcc, 0x1ff, v{L}")
    A(f"v_and_b32 v{T+3}, 0xf0, v{L}")
    A(f"v_cndmask_b32 v{VML}, v{VML}, v{T+1}, vcc")
    A(f"v_lshrrev_b32 v{T}, 3, v{T+3}")
    A(f"v_lshl_add_u32 v{VDGR}, v{VML}, 5, v{T}")
    late = []
    B = lambda t: late.append(V(t))
    B(f"s_lshl_b32 s3, s{S_SPLIT}, 7")
    B(f"v_lshl_add_u32 v{VML}, v{VML}, 11, s3")
    B(f"v_lshl_add_u32 v{VML}, v{T}, 2, v{VML}")
    poll_addr(B, VPOLL, T, STR)
    B(f"s_lshl_b32 s49, s{S_WAVE}, 10")
    B(f"s_add_u32 s49, s49, 0x20000")
    for rb in range(3):
        B(f"s_bfe_u32 s3, s{XO[rb]}, 0x2000f")
        B(f"s_lshl_b32 s3, s3, 13")
        B(f"s_add_u32 s3, s3, s49")
        B(f"v_add_u32 v{VOW+rb}, s3, v{L}")
    for k in range(6):
        B(f"s_add_u32 s3, s{S_SPLIT}, {k + 1}")
        B(f"s_sub_u32 s49, s3, 6")
        B(f"s_cselect_b32 s3, s3, s49")
        B(f"s_mul_i32 s3, s3, 0x{OP_STRIDE:x}")
        B(f"s_add_u32 s{STR[k]}, s3, 0x{OP_OFF if not opt.get('foob') else OOB:x}")
    B(f"s_mul_i32 s3, s{S_WAVE}, {1024 - 128}")
    B(f"v_add_u32 v{VPO}, s3, v{L}")
    B(f"v_add_u32 v{VPO2}, 0x1000, v{VPO}")
    for t in vh0(VH0, T): late += [V(x) for x in t.split("\n")]
    B(f"v_xor_b32 v{VH1}, 0x1040, v{VH0}")
    B(f"v_bfe_u32 v{T}, v{L}, 5, 3")
    B(f"v_lshrrev_b32 v{T+2}, 8, v{L}")
    B(f"v_xor_b32 v{T}, v{T}, v{T+2}")
    B(f"v_bfe_u32 v{T+1}, v{L}, 4, 3")
    B(f"v_lshlrev_b32 v{T+1}, 7, v{T+1}")
    B(f"v_lshl_or_b32 v{T}, v{T}, 4, v{T+1}")
    B(f"v_bfe_u32 v{T+1}, v{L}, 7, 1")
    B(f"s_lshl_b32 s49, s{S_WAVE}, 10")
    B(f"s_sub_u32 s3, s{S_XB}, s49")
    B(f"v_lshl_add_u32 v{VBH+2}, v{T+1}, 12, v{T}")
    B(f"v_add_u32 v{VBH}, s3, v{VBH+2}")
    B(f"s_sub_u32 s3, s{S_H2}, s49")
    B(f"v_add_u32 v{VBH+2}, s3, v{VBH+2}")
    B(f"v_xor_b32 v{VBH+1}, 64, v{VBH}")
    B(f"v_xor_b32 v{VBH+3}, 64, v{VBH+2}")
    B(f"v_lshl_add_u32 v{VT0}, v{T+1}, 10, v{T}")
    B(f"v_add_u32 v{VT0}, s{S_XL}, v{VT0}")
    B(f"v_xor_b32 v{VT1}, 64, v{VT0}")
    B(f"v_add_u32 v{VTR}, s{S_XL}, v{L}")
    B(f"s_add_u32 s3, s3, 0x{0x10000 - 24576:x}")
    B(f"s_and_b32 s3, s3, 0x1ffff")
    B(f"v_add_u32 v{VZR}, s3, v{L}")
    B(f"v_add_u32 v{VZ}, s49, v{VZR}")
    B(f"s_lshl_b32 s49, s{S_WAVE}, 11")
    B(f"s_add_u32 s3, s3, s49")
    B(f"s_add_u32 s3, s3, 24576")
    B(f"v_lshl_add_u32 v{VWW}, v{L}, 1, s3")
    B(f"v_lshl_add_u32 v{VWR}, v{T+3}, 1, s3")
    B(f"v_lshrrev_b32 v{T}, 4, v{T+3}")
    B(f"v_lshlrev_b32 v{T+2}, 2, v{T+2}")
    B(f"v_sub_u32 v{T}, v{T}, v{T+2}")
    B(f"v_and_b32 v{T+1}, 1, v{T}")
    B(f"v_lshlrev_b32 v{T+1}, 4, v{T+1}")
    B(f"v_mov_b32 v{T+2}, 0xffff")
    B(f"v_lshlrev_b32 v{T+1}, v{T+1}, v{T+2}")
    B(f"v_lshrrev_b32 v{T}, 1, v{T}")
    for k in range(2):
        B(f"v_cmp_eq_u32 vcc, {k}, v{T}")
        B(f"v_cndmask_b32 v{VMK+k}, 0, v{T+1}, vcc")
    B(f"s_mov_b32 s{S_MASK}, 0xffff0000")
    order = opt.get('forder', 'i1'); order = ORDERS.get(order, order)
    D = opt.get('fd', 12)
    Lq = []; cnt = {}; bar = set()
    for ch in order:
        if ch == '|': bar.add(len(Lq) - 1); continue
        Lq.append((ch, cnt.get(ch, 0))); cnt[ch] = cnt.get(ch, 0) + 1
    assert dict(cnt, p=1, P=1) == dict(F=1, P=1, p=1, Q=1, q=1, d=1, m=3, a=32, b=32, **{'0': 6, '1': 6, '2': 6}), cnt
    wgt = lambda e: 0 if e[0] in 'FPQ' else (1 if e[1] % 3 == 2 and e[0] != '2' else 2) if e[0] in '012' else 1
    free = list(POOL); reg = {}; low = [99]; glue = set()
    MLR = ZA
    ld = opt.get('fld', ' sc1')
    pl = lambda ch: f"buffer_load_dwordx2 {vr(VP1, 2)}, v{VPOLL}, {sr(SWS)}, 0 offen offset:{8 if ch == 'p' else 0} sc1"
    def issue(z, e):
        Z = lambda t: z.append(V(t))
        ch, k = e
        if ch == 'F':
            z.append(W('ost')); stamp(Z)
            pz = []; publish(pz.append, SWS, S_FO, VDUM, opt, L)
            z.extend(VM(x, tag=e) if x.startswith('buffer') else V(x) for x in pz)
        elif ch in 'pq':
            z.append(VM(pl(ch), tag=e))
        elif ch in 'PQ':
            stamp(Z)
            z.append(V(f"v_cmp_ne_u64 vcc, {sr(S_TAG, 2)}, {vr(VP1, 2)}", needs=[(ch.lower(), 0)])); Z(f"s_nop 1\ns_cbranch_vccnz LF_spin{ch}\nLF_go{ch}:")
            stamp(Z)
        elif ch == 'd':
            z.append(VM(f"buffer_load_ushort v{VDGR}, v{VDGR}, {sr(SD)}, 0 offen", tag=e))
        elif ch == 'm':
            for u in range(2): z.append(VM(f"buffer_load_dwordx2 {vr(MLR + 4*k + 2*u, 2)}, v{VML}, {sr(SM)}, 0 offen offset:{128*(2*k + u + 1)} sc1", tag=e))
        elif ch in '012':
            r = reg[e] = free.pop(0); low[0] = min(low[0], len(free))
            rb = int(ch); j, sp = k // 3, k % 3
            gl = lambda u, rr: f"buffer_load_dwordx4 {vr(rr)}, v{VPO2 if j else VPO}, {sr(SWS)}, s{S_TMP[u]} offen{ld}"
            dl = lambda rr: f"ds_read_b128 {vr(rr)}, v{VOW+rb} offset:{j*4096}"
            for u in range(2):
                if sp == 2 and u == 1 and rb < 2:
                    z.append(LD(dl(r + 4), tag=('own', e))); continue
                Z(f"s_add_u32 s{S_TMP[u]}, s{XO[rb]}, s{STR[2*sp+u]}" if 2 * sp + u >= opt.get('fhot', 0) else f"s_mov_b32 s{S_TMP[u]}, 0x{WF_OFF + (rb * 6 + 2 * sp + u) * 8192:x}")
                if sp == 2 and u == 1:
                    Z(f"s_cmp_lt_u32 s{S_SPLIT}, 4\ns_cbranch_scc1 LF_o{j}")
                    z.append(V(gl(u, r + 4) + f"\n{dl(VDUM)}\ns_branch LF_j{j}\nLF_o{j}:\ns_mov_b32 s{S_TMP[u]}, 0x{OOB:x}"))
                    z.append(VM(gl(u, VDUM), tag=e)); z.append(LD(dl(r + 4) + f"\nLF_j{j}:", tag=('own', e)))
                    glue.update(id(x) for x in z[-3:])
                else: z.append(VM(gl(u, r + 4 * u), tag=e))
        else:
            z.append(VM(wload('ab'.index(ch), k), tag=e))
    tn = [0]
    def tmp():
        tn[0] += 1; return T + (tn[0] % 4) * 2
    diag = lambda rb, sp: DIAG + rb * 12 + sp * 4
    WTS = [WT, ZA, ZA + 8]
    def wt(z, rb):
        z.append(LD(f"ds_read_b128 {vr(WTS[rb])}, v{VWR} offset:{rb*512}"))
        z.append(LD(f"ds_read_b128 {vr(WTS[rb]+4)}, v{VWR} offset:{rb*512+16}", tag=('wt', rb)))
    def dbuild(z, rb):
        for s in range(NSPLIT):
            for k in range(2): z.append(V(f"v_and_b32 v{diag(rb, s // 2) + 2*(s % 2) + k}, v{WTS[rb]+s}, v{VMK+k}", needs=[('wt', rb)]))
        z.append(V(f"v_mov_b32 v{VIL+rb}, v{WTS[rb]+6}"))
    def dg_setup(z):
        z.append(V(f"v_lshlrev_b32 v{VDGR}, 16, v{VDGR}"))
        z.append(LD(f"ds_write_b32 v{VWW}, v{VDGR} offset:28"))
        for rb in range(3): z.append(LD(f"ds_read_b32 v{DG+rb}, v{VWR} offset:{rb*512+28}", tag='dg'))
    def weights(z):
        Z = lambda t: z.append(V(t))
        m = lambda s: MLR + 2 * s
        l = lambda s: m(s) + 1
        Z(f"v_max3_f32 v{T}, v{m(0)}, v{m(1)}, v{m(2)}")
        Z(f"v_max3_f32 v{T+1}, v{m(3)}, v{m(4)}, v{m(5)}")
        Z(f"v_max_f32 v{T}, v{T}, v{T+1}")
        Z(f"v_subrev_f32 v{T}, 0x42fe0000, v{T}")
        for s in range(NSPLIT): Z(f"v_sub_f32 v{m(s)}, v{m(s)}, v{T}")
        for s in range(NSPLIT): Z(f"v_cvt_u32_f32 v{m(s)}, v{m(s)}")
        for s in range(NSPLIT): Z(f"v_lshlrev_b32 v{T+2+s}, 23, v{m(s)}")
        Z(f"v_mul_f32 v{T}, v{T+2}, v{l(0)}")
        for s in range(1, NSPLIT): Z(f"v_fmac_f32 v{T}, v{T+2+s}, v{l(s)}")
        Z(f"v_rcp_f32 v{WT+6}, v{T}")
        for s in range(NSPLIT): Z(f"v_mul_u32_u24 v{WT+s}, 0x800080, v{m(s)}")
        z.append(LD(f"ds_write_b128 v{VWW}, {vr(WT)}"))
        z.append(LD(f"ds_write_b96 v{VWW}, {vr(WT+4, 3)} offset:16"))
        for rb in range(3): wt(z, rb)
        for rb in range(3): dbuild(z, rb)
    zw = set(); zok = set()
    acc = lambda rb, j, b: ACC + ((rb * 2 + j) * 2 + b) * 4
    un = [0]
    post = []
    def cstep(vq, ms, rb, k):
        j, sp = k // 3, k % 3
        e = (str(rb), k)
        r = reg[e]
        if sp == 0: un[0] += 1
        zd = ZA + 8 * (un[0] % 2)
        pre = [V(f"v_swap_b32 v{r+2}, v{r+4}", needs=[('own', e)] if sp == 2 else []), V(f"v_swap_b32 v{r+3}, v{r+5}")]
        for h in range(2):
            ms.append(Ins(f"{MF32} {vr(zd+4*h)}, {vr(r+4*h)}, {vr(diag(rb, sp))}, {vr(zd+4*h) if sp else 0}", 0))
        free.append(r)
        if sp == 2:
            z = [V(f"v_mul_f32 v{zd+c}, v{zd+c}, v{VIL+rb}") for c in range(8)]
            z += [V(f"v_cvt_pk_bf16_f32 v{zd+c}, v{zd+2*c}, v{zd+2*c+1}") for c in range(4)]
            z.append(LD(f"ds_write_b128 v{VZ}, {vr(zd)} offset:{rb*8192 + j*4096}", tag='z'))
            post.append(((rb, j), z))
        return pre
    nxt = {(m, rb): list(range(8)) for m in range(2) for rb in range(3)}
    groups = []; arrived = set(); barpos = [0]
    xn = [0]
    def x_read(z):
        n = xn[0]
        if n < 6: z.append(LD(f"ds_read_b128 {vr(XR[n % 3])}, v{VT0 + n % 2} offset:{(n // 2)*2048}", tag=('xr', n))); xn[0] += 1
    fdone = []
    def fma_x(z, rb):
        assert rb == len(fdone); fdone.append(rb)
        for j in range(2):
            n = 2 * rb + j; x = XR[n % 3]
            for c in range(4):
                t = tmp(); a = acc(rb, j, 0) + 2 * c
                z.append(V(f"v_lshlrev_b32 v{t}, 16, v{x+c}", needs=[('xr', n), 'dg']))
                z.append(V(f"v_and_b32 v{t+1}, s{S_MASK}, v{x+c}"))
                z.append(V(f"v_fma_f32 v{a}, v{a}, v{DG+rb}, v{t}"))
                z.append(V(f"v_fma_f32 v{a+1}, v{a+1}, v{DG+rb}, v{t+1}"))
            x_read(z)
    def ep(z, rb):
        for j in range(2):
            a = acc(rb, j, 0)
            for c in range(4): z.append(V(f"v_cvt_pk_bf16_f32 v{a+c}, v{a+2*c}, v{a+2*c+1}"))
            z.append(LD(f"ds_write_b128 v{VT0+j}, {vr(a)} offset:{rb*2048}"))
        for u in range(2): z.append(LD(f"ds_read_b128 {vr(acc(rb, u, 1))}, v{VTR} offset:{rb*2048 + u*1024}", tag=('y', rb, u)))
        stq.extend(VM(f"buffer_store_dwordx4 {vr(acc(rb, u, 1))}, v{VH0+u}, {sr(SO)}, s{XO[rb]} offen{opt.get('fst', '')}", needs=[('y', rb, u)]) for u in range(2))
    pend = []; blk = set(); stq = []
    def pick(cap):
        ms = []; n = 0
        while n < cap:
            cand = []
            for (m, rb), ts in nxt.items():
                if m == 1 and (nxt[(0, rb)] or ('fma', rb) in pend or rb in blk): continue
                for t in ts:
                    if m == 1 and (rb, t // 4) not in zok: continue
                    if ('ab'[m], 4 * t + 3) not in arrived: continue
                    cand.append((-m, rb if m else 0, t, rb)); break
            if not cand: break
            m, _, t, rb = min(cand); m = -m
            g = len(groups); groups.append((m, t, rb, barpos[0] if m == 1 or not groups else groups[-1][3], m == 0 and len(nxt[(m, rb)]) == 8))
            ms += [('G', g, b) for b in range(4)]
            nxt[(m, rb)].remove(t); n += 1
            if not nxt[(m, rb)]: pend.append(('fma' if m == 0 else 'ep', rb))
        return ms
    def merge(ms, vq):
        per = opt.get('fper', 2)
        while ms or vq:
            if ms: q.append(ms.pop(0))
            k = 0
            while vq and (k < per or not ms or id(vq[0]) in glue):
                x = vq.pop(0); q.append(x); k += 2 if (x.t or '').startswith(('v_swap', 'buffer')) else 1
    def take_pend(vq, n=9):
        blk.clear(); vq += stq; stq.clear()
        for p in list(pend)[:n]:
            pend.remove(p); (fma_x if p[0] == 'fma' else ep)(vq, p[1]); blk.add(p[1])
    def take_post(vq):
        for u, z in post: vq += z; zw.add(u)
        post.clear()
    def barrier():
        A("s_barrier"); q.append(('BAR', len(q))); barpos[0] = len(q) - 1
        stamp(A)
    ni = [0]
    def issue_n(z, k, d):
        while ni[0] < len(Lq) and sum(wgt(e) for e in Lq[k + 1:ni[0] + 1]) <= d:
            e = Lq[ni[0]]
            if e[0] in '012' and not free: break
            if e[0] in 'PQ' and (e[0].lower(), 0) not in arrived: break
            issue(z, e); ni[0] += 1
    fidx = [k for k, e in enumerate(Lq) if e[0] == 'F'][0]
    n1 = fidx - (Lq[fidx - 1][0] == 'p')
    while ni[0] < n1: issue(q, Lq[ni[0]]); ni[0] += 1
    q.extend(late)
    while ni[0] < fidx: issue(q, Lq[ni[0]]); ni[0] += 1
    if opt.get('fbf', 1): issue(q, Lq[fidx]); ni[0] += 1
    A("s_waitcnt lgkmcnt(0)")
    barrier()
    for _ in range(3): x_read(q)
    if not opt.get('fbf', 1): issue(q, Lq[fidx]); ni[0] += 1
    for k, e in enumerate(Lq):
        if e[0] not in 'FPQ': q.append(W(e))
        arrived.add(e)
        vq = []; ms = []; pre = []
        issue_n(vq, k, D)
        take_post(vq)
        take_pend(vq, 1)
        if e == ('d', 0): dg_setup(vq)
        if e == ('m', 2): weights(vq)
        if e[0] in '012': pre = cstep(vq, ms, int(e[0]), e[1])
        fill = pick(max(opt.get('fcap', 2) if e[0] in '012' else 1, (len(vq) + 7) // 8))
        if len(fill) >= 2: merge(fill[:2] + ms + fill[2:], pre + vq)
        else: q.extend(pre); merge(ms + fill, vq)
        if k in bar:
            vq = []; take_post(vq); merge(pick(opt.get('fcapb', 1)), vq)
            if zw - zok: q.append(W('z'))
            barrier()
            zok |= zw
    while any(nxt.values()) or pend or stq:
        vq = []; take_pend(vq); merge(pick(99), vq)
    NR = 6
    Fr = lambda n: BF + (n % NR) * 4
    def rd(n):
        m, t, rb = groups[n][:3]
        if m == 0: s = f"ds_read_b128 {vr(Fr(n))}, v{VBH + (rb // 2)*2 + (t & 1)} offset:{(rb % 2)*8192 + (t >> 1)*1024}"
        else: s = f"ds_read_b128 {vr(Fr(n))}, v{VZR} offset:{rb*8192 + t*1024}"
        return LD(s, tag=('f', n))
    out = []; nr = 0; done = -1
    for pos, it in enumerate(q):
        if isinstance(it, tuple) and it[0] == 'G':
            n, b = it[1], it[2]; m, t, rb, _, first = groups[n]
            assert nr > n
            a = acc(rb, b >> 1, b & 1)
            out.append(Ins(f"{MF32} {vr(a)}, {ar(m*128 + (4*t + b)*4)}, {vr(Fr(n))}, {0 if first else vr(a)}", 0, needs=[('f', n)]))
            if b == 0:
                done = n - 1
                if nr < len(groups) and nr <= done + NR and groups[nr][3] <= pos: out.append(rd(nr)); nr += 1
            if b == 3: done = n
        elif isinstance(it, tuple) and it[0] == 'BAR':
            while nr < len(groups) and nr <= done + NR - 1 and groups[nr][3] <= pos: out.append(rd(nr)); nr += 1
        else: out.append(it)
    if opt.get('fmem'):
        n0 = out.index(late[-1])
        def ok(it):
            if it.t is None: return all(isinstance(t, tuple) and t[0] in 'abmdpq012' or t == 'ost' for t in it.needs)
            if it.t.startswith('buffer_store_dwordx4'): return False
            return it.t.startswith(('s_', 'buffer_', f'v_mov_b32 v{VPF}', 'v_cmp', 'ds_read_b128 v[' + str(VDUM))) and not it.t.startswith('s_barrier') or 'LF_j' in it.t
        out = out[:n0 + 1] + [it for it in out[n0 + 1:] if ok(it)]
    em = Emitter(); em.pos['ost'] = ('vm', 0); em.cnt['vm'] = 1; em.kind.append(False)
    o = hazard.fix(em.emit(out))
    if opt.get('verbose'): print("final: min free", low[0], "lines", len(o), "nops", sum(1 for x in o if x.startswith('s_nop')))
    sp = []
    for ch in ('PQ' if 'P' in cnt else 'Q'):
        sp.append(f"LF_spin{ch}:")
        spin(sp.append, f"LF_spin2{ch}", [pl(ch.lower())], [VP1], S_SPIN)
        sp.append(f"s_branch LF_go{ch}")
    if MG[0]:
        sp.append("LF_wf:")
        spin(sp.append, "LF_wf2", [f"buffer_load_dwordx2 {vr(EV['wf'], 2)}, v{EV['wf']+2}, {sr(SWS)}, 0 offen sc1"], [EV['wf']], S_SPIN)
        sp.append("s_branch LF_wf_go")
    return o, sp


def wload(m, k):
    t, j, b = k >> 2, (k >> 1) & 1, k & 1
    return f"buffer_load_dwordx4 {ar(m*128 + 4*k)}, v{VW0 + j}, {sr(SWS)}, s{WO[m*4 + (t >> 1)]} offen offset:{(t & 1)*2048 + b*1024}{' sc1' if MG[0] else ''}"
```

```python
from layout import *
from sched import *
import hazard
import struct, math

K1_LDS = 163840
SRD_X, SRD_W1, SRD_W2, SRD_O, SRD_H = 40, 44, 48, 52, 56
S_W, S_ROLE, S_ROT, S_M0, S_XO = 60, 61, 62, 63, 64
SK1, SK2, SO, S_SC, S_EPS, S_R256, S_MASK = 66, 74, 82, 86, 88, 89, 90
VL16, VWQ, VWK, VTR, VK, VH, VQW, VQ, VHW = 16, 17, 21, 25, 29, 31, 33, 35, 36
MF32 = "v_mfma_f32_16x16x32_bf16"
DPP = " row_mask:0xf bank_mask:0x%x"


def ln_code(pre, NL, HP, LN0, VHW, opt, more, stamp, after=None):
    A = lambda t: pre.append(V(t))
    U = lambda j: LN0 + 8 * j
    SQ = LN0 + 8 * NL
    for j in range(NL):
        x, u, s = HP + 4 * j, U(j), SQ + 4 * j
        pre.append(W(('x', j)))
        if j == 0: pre += stamp()
        for k in range(4):
            A(f"v_lshlrev_b32 v{u+2*k}, 16, v{x+k}")
            A(f"v_and_b32 v{u+2*k+1}, s{S_MASK}, v{x+k}")
        if opt.get('nopk', 0) >= 3:
            A(f"v_add_f32 v{s}, v{u}, v{u+1}"); A(f"v_mul_f32 v{s+2}, v{u}, v{u}")
            A(f"v_add_f32 v{s+1}, v{u+2}, v{u+3}"); A(f"v_mul_f32 v{s+3}, v{u+1}, v{u+1}")
            for k in range(2, 8):
                if k >= 4: A(f"v_add_f32 v{s+(k&1)}, v{s+(k&1)}, v{u+k}")
                A(f"v_fmac_f32 v{s+2+(k&1)}, v{u+k}, v{u+k}")
            A(f"v_add_f32 v{s}, v{s}, v{s+1}"); A(f"v_add_f32 v{s+2}, v{s+2}, v{s+3}")
        else:
            A(f"v_pk_add_f32 {vr(s,2)}, {vr(u,2)}, {vr(u+2,2)}")
            A(f"v_pk_mul_f32 {vr(s+2,2)}, {vr(u,2)}, {vr(u,2)}")
            A(f"v_pk_add_f32 {vr(x,2)}, {vr(u+4,2)}, {vr(u+6,2)}")
            A(f"v_pk_fma_f32 {vr(s+2,2)}, {vr(u+2,2)}, {vr(u+2,2)}, {vr(s+2,2)}")
            A(f"v_pk_add_f32 {vr(s,2)}, {vr(s,2)}, {vr(x,2)}")
            A(f"v_pk_fma_f32 {vr(s+2,2)}, {vr(u+4,2)}, {vr(u+4,2)}, {vr(s+2,2)}")
            A(f"v_add_f32 v{s}, v{s}, v{s+1}")
            A(f"v_pk_fma_f32 {vr(s+2,2)}, {vr(u+6,2)}, {vr(u+6,2)}, {vr(s+2,2)}")
            A(f"v_add_f32 v{s+2}, v{s+2}, v{s+3}")
        more()
    for j in range(NL): A(f"v_permlane16_swap_b32 v{SQ+4*j}, v{SQ+4*j+2}")
    for j in range(NL): A(f"v_add_f32 v{SQ+4*j}, v{SQ+4*j}, v{SQ+4*j+2}")
    def merge(regs, mode, m0, m1, off):
        out = []
        for a in range(0, len(regs), 2):
            (ra, la) = regs[a]
            d = ra + off
            if a + 1 < len(regs):
                rb_, lb = regs[a + 1]
                A(f"v_add_f32_dpp v{d}, v{ra}, v{ra} {mode}" + DPP % m0)
                A(f"v_add_f32_dpp v{d}, v{rb_}, v{rb_} {mode}" + DPP % m1)
                sh = 8 if m1 == 0xc else 4
                out.append((d, {**la, **{k: v + sh for k, v in lb.items()}}))
            else:
                A(f"v_add_f32_dpp v{d}, v{ra}, v{ra} {mode}" + DPP % 0xf)
                out.append((d, la))
        return out
    regs = [(SQ + 4 * j, {j: 0}) for j in range(NL)]
    regs = merge(regs, "row_ror:8", 0x3, 0xc, 1)
    regs = merge(regs, "row_half_mirror", 0x5, 0xa, 1)
    for qp in ("[1,0,3,2]", "[2,3,0,1]"):
        for r, _ in regs: A(f"v_add_f32_dpp v{r}, v{r}, v{r} quad_perm:{qp}" + DPP % 0xf)
    for r, _ in regs: A(f"v_mov_b32 v{r+1}, v{r}")
    for r, _ in regs: A(f"v_permlane16_swap_b32 v{r+1}, v{r}")
    ops = lambda r: [f"v_mul_f32 v{r+1}, s{S_R256}, v{r+1}", f"v_mul_f32 v{r}, s{S_R256}, v{r}",
                     f"v_fma_f32 v{r}, -v{r+1}, v{r+1}, v{r}", f"v_cvt_pk_bf16_f32 v{r+1}, v{r+1}, v{r+1}" if not opt.get('z1') else "", f"v_max_f32 v{r}, 0, v{r}",
                     f"v_cvt_pk_bf16_f32 v{r}, v{r}, v{r}", f"v_and_b32 v{r}, s{S_MASK}, v{r}", f"v_add_f32 v{r}, s{S_EPS}, v{r}",
                     f"v_cvt_pk_bf16_f32 v{r}, v{r}, v{r}", f"v_and_b32 v{r}, s{S_MASK}, v{r}", f"v_sqrt_f32 v{r}, v{r}",
                     f"v_and_b32 v{r+1}, s{S_MASK}, v{r+1}" if not opt.get('z1') else "s_nop 0",
                     f"v_cvt_pk_bf16_f32 v{r}, v{r}, v{r}", f"v_and_b32 v{r}, s{S_MASK}, v{r}", f"v_rcp_f32 v{r}, v{r}",
                     f"v_mul_f32 v{r+1}, -v{r+1}, v{r}"]
    for tt in zip(*[ops(r) for r, _ in regs]):
        for t in tt:
            if t: A(t)
    for r, lm in regs:
        for j, ln in lm.items():
            A(f"v_mov_b64_dpp {vr(SQ+4*j,2)}, {vr(r,2)} row_newbcast:{ln} row_mask:0xf bank_mask:0xf")
    for j in range(NL):
        x, u, s = HP + 4 * j, U(j), SQ + 4 * j
        for k in range(4):
            if opt.get('nopk', 0) >= 1:
                for z in range(2): A(f"v_fma_f32 v{u+2*k+z}, v{u+2*k+z}, v{s}, v{s+1}")
            else: A(f"v_pk_fma_f32 {vr(u+2*k,2)}, {vr(u+2*k,2)}, {vr(s,2)}, {vr(s,2)} op_sel:[0,0,1] op_sel_hi:[1,0,1]")
        for k in range(4):
            A(f"v_cvt_pk_bf16_f32 v{x+k}, v{u+2*k}, v{u+2*k+1}")
        pre.append(LD(f"ds_write_b128 v{VHW+j}, {vr(x)}", tag='hw'))
        if after: after(j)
        more()


def img_addrs(A, NL, RPW, HIMG, VHW, VH):
    A("v_bfe_u32 v5, v2, 2, 3")
    A(f"v_xor_b32 v5, s{S_ROT}, v5")
    A("v_and_b32 v6, 3, v2")
    A("v_lshlrev_b32 v7, 10, v5")
    A("v_lshl_add_u32 v7, v6, 8, v7")
    A(f"v_add_u32 v7, 0x{HIMG:x}, v7")
    A("v_and_b32 v5, 1, v5")
    A("v_lshl_or_b32 v6, v5, 2, v6")
    A("v_lshrrev_b32 v5, 5, v2")
    A(f"s_mul_i32 s6, s{S_W}, {RPW}")
    for j in range(NL):
        A(f"v_add3_u32 v8, v5, s6, {2*j}")
        A("v_lshrrev_b32 v9, 4, v8")
        A("v_lshl_add_u32 v9, v9, 13, v7")
        A("v_and_b32 v8, 15, v8")
        A("v_xor_b32 v8, v8, v6")
        A(f"v_lshl_add_u32 v{VHW+j}, v8, 4, v9")
    A("v_xor_b32 v5, v3, v4")
    A("v_lshlrev_b32 v5, 4, v5")
    A("v_lshl_add_u32 v5, v4, 8, v5")
    A(f"v_add_u32 v{VH}, 0x{HIMG:x}, v5")
    A(f"v_xor_b32 v{VH+1}, 64, v{VH}")

def gemm_prog(role, opt):
    NW = opt.get('nw', 8); NF = 16 // NW; CW = 16 * NF; NPC = NF; CH = NPC * 1024; RS = 32 * NF
    main = role == 'q'
    MGD = opt.get('mg')
    NRB = opt.get('nrb', 3) if main else 4
    RPW = 16 * NRB // NW; NL = RPW // 2
    IMG = NRB * 8192
    RC = (K1_LDS - (2 if main else 1) * IMG) // NW // CH
    RC = min(RC, opt.get('rc', 8))
    WSZ = RC * CH
    HIMG = NW * WSZ; QIMG = HIMG + IMG
    assert QIMG + (IMG if main else 0) <= K1_LDS
    stx = opt.get('st', '')
    p = VHW + NL; p = (p + 3) // 4 * 4
    HP = p; p += NL * 4
    ACC1 = p; p += NF * NRB * 4
    LN0 = p
    ACC2 = p; p += NF * NRB * 4 if main else 0
    RW, RB = opt.get('rw', 6 if NW == 8 else 10), opt.get('rb', 4 if NW == 8 else 3) * NRB
    WR = p; p += RW * 4
    BR = p; p += RB * 4
    ACC3 = p; p += 12 * bool(opt.get('z1') and main)
    assert p <= 255, p
    nst = [0]
    def stamp(kind=0):
        if not opt.get('timing') or kind != opt.get('skind', 0) or (kind and not main): return []
        nst[0] += 1
        assert nst[0] <= 8
        return [V(f"s_memtime s[{14+2*nst[0]}:{15+2*nst[0]}]", cost=0)]
    pre = []
    A = lambda t: pre.append(V(t))
    A(f"v_lshlrev_b32 v{VL16}, 4, v2")
    A(f"s_mul_i32 s{S_M0}, s{S_W}, {WSZ}")
    if main:
        A(f"s_mul_i32 s6, s4, {NRB*8192}" if not MGD else "s_mov_b32 s6, s14")
        A(f"s_mul_i32 s7, s{S_W}, {RPW*512}")
        A(f"s_add_u32 s{S_XO}, s6, s7")
        A(f"s_add_u32 s{S_XO+1}, s{S_XO}, 4096")
    else:
        A("s_and_b32 s6, s4, 3")
        A(f"s_lshl_b32 s6, s6, 6")
        A(f"s_mul_i32 s7, s{S_W}, {RPW}")
        A("s_add_u32 s6, s6, s7")
        A("v_lshrrev_b32 v5, 5, v2")
        A("v_and_b32 v6, 31, v2")
        A("v_lshlrev_b32 v6, 4, v6")
        A("s_cmp_ge_u32 s4, 4")
        A("s_cselect_b64 vcc, -1, 0")
        for j in range(NL):
            A(f"v_add3_u32 v7, v5, s6, {2*j}")
            A("v_and_b32 v8, 0x80, v7")
            A("v_bfe_u32 v9, v7, 2, 1"); A("v_lshl_or_b32 v8, v9, 6, v8")
            A("v_bfe_u32 v9, v7, 4, 1"); A("v_lshl_or_b32 v8, v9, 5, v8")
            A("v_and_b32 v9, 3, v7"); A("v_lshl_or_b32 v8, v9, 3, v8")
            A("v_bfe_u32 v9, v7, 5, 2"); A("v_lshl_or_b32 v8, v9, 1, v8")
            A("v_bfe_u32 v9, v7, 3, 1"); A("v_or_b32 v8, v9, v8")
            A("v_cndmask_b32 v8, v8, v7, vcc")
            A(f"v_lshl_add_u32 v{HP+4*j}, v8, 9, v6")
    def w1setup():
        A(f"s_lshl_b32 s7, s{S_W}, {(CW*2).bit_length()-1}")
        if NW == 4:
            A("v_lshrrev_b32 v5, 3, v2")
            A("v_and_b32 v6, 7, v2")
            A("v_and_b32 v7, 2, v5")
            A("v_xor_b32 v6, v6, v7")
            A("v_lshl_add_u32 v5, v5, 9, s7")
            A(f"v_lshl_add_u32 v{VWQ}, v6, 4, v5")
            A("v_xor_b32 v6, 4, v6")
            A(f"v_lshl_add_u32 v{VWQ+1}, v6, 4, v5")
            A(f"v_add_u32 v{VWQ+1}, 0xc00, v{VWQ+1}")
            A(f"v_add_u32 v{VWQ+2}, 0x1800, v{VWQ}")
            A(f"v_add_u32 v{VWQ+3}, 0x1800, v{VWQ+1}")
        else:
            A("v_lshrrev_b32 v5, 2, v2")
            A("v_and_b32 v6, 3, v2")
            A("v_lshrrev_b32 v7, 5, v2")
            A("v_lshlrev_b32 v7, 1, v7")
            A("v_xor_b32 v6, v6, v7")
            A("v_lshl_add_u32 v5, v5, 9, s7")
            A(f"v_lshl_add_u32 v{VWQ}, v6, 4, v5")
            A(f"v_add_u32 v{VWQ+1}, 0x1c00, v{VWQ}")
        for t in range(8):
            A(f"s_xor_b32 s6, s{S_ROT}, {t}")
            A(f"s_lshl_b32 s{SK1+t}, s6, 14")
    if not opt.get('xf'): w1setup()
    A("s_waitcnt lgkmcnt(0)")
    o = []
    if main:
        srd_from(o, SRD_X, 16, 0, N * 512 if not MGD else "s15"); srd_from(o, SRD_W1, 26, 0, 131072)
    else:
        o += ["s_cmp_ge_u32 s4, 4", "s_cselect_b32 s6, s30, s24", "s_cselect_b32 s7, s31, s25"]
        srd_from(o, SRD_X, 6, 0, 131072); srd_from(o, SRD_W1, 32, 0, 131072)
    for t in o: A(t)
    xso = lambda j: f"s{S_XO + j // 4} offen offset:{(j % 4) * 1024}"
    for j in range(NL):
        if main: pre.append(VM(f"buffer_load_dwordx4 {vr(HP+4*j)}, v{VL16}, {sr(SRD_X)}, {xso(j)}", tag=('x', j)))
        else: pre.append(VM(f"buffer_load_dwordx4 {vr(HP+4*j)}, v{HP+4*j}, {sr(SRD_X)}, 0 offen", tag=('x', j)))
    if opt.get('xf'): w1setup()
    NCH = 16 if main else 8
    def dma(c, needs=()):
        srd, vw, so = (SRD_W1, VWQ, SK1 + c) if c < 8 else (SRD_W2, VWK, SK2 + c - 8)
        q = [V(f"s_add_u32 m0, s{S_M0}, 0x{(c % RC) * CH:x}", needs=needs), V("s_nop 0", cost=0)]
        for k in range(NPC):
            q.append(VM(f"buffer_load_dwordx4 v{vw+k}, {sr(srd)}, s{so} offen offset:{k*1024} lds", tag=('c', c) if k == NPC - 1 else None))
        return q
    NPRE = min(opt.get('npre', RC), RC)
    TCH = opt.get('touch', 0)
    if TCH and main:
        o = []; srd_from(o, SRD_W2, 28, 0, 131072)
        for t in o: A(t)
        A(f"s_sub_u32 s6, s5, {(opt.get('new', 32) + 8) // 8 * NW + 16}")
        A("s_lshl_b32 s7, s6, 13")
        A("s_cmp_lt_u32 s6, 16")
        A("s_cselect_b32 s7, s7, 0x7fff0000")
        pre.append(VM(f"buffer_load_dword v255, v10, {sr(SRD_W2)}, s7 offen"))
        if TCH > 1:
            A(f"s_sub_u32 s6, s6, 16")
            A("s_lshl_b32 s7, s6, 13")
            A("s_cmp_lt_u32 s6, 16")
            A("s_cselect_b32 s7, s7, 0x7fff0000")
            pre.append(VM(f"buffer_load_dword v255, v10, {sr(SRD_W1)}, s7 offen"))
    for c in range(NPRE): pre += dma(c)
    if MGD and main:
        for t in MGD: A(t)
    img_addrs(A, NL, RPW, HIMG, VHW, VH)
    A("v_lshrrev_b32 v5, 2, v3")
    A("v_and_b32 v6, 3, v3")
    A("v_and_b32 v7, 1, v4")
    if NW == 4:
        A("v_lshlrev_b32 v7, 2, v7"); A("v_and_b32 v8, 2, v5"); A("v_or_b32 v7, v7, v8")
    else:
        A("v_lshlrev_b32 v7, 1, v7")
    A("v_lshl_add_u32 v8, v4, 3, v5")
    A(f"v_lshlrev_b32 v8, {RS.bit_length()-1}, v8")
    A(f"v_add_u32 v8, s{S_M0}, v8")
    if main:
        A("v_and_b32 v9, 1, v6"); A("v_lshl_add_u32 v8, v9, 3, v8")
        A("v_lshrrev_b32 v6, 1, v6")
    A("v_xor_b32 v6, v6, v7")
    for f in range(NF):
        if main:
            A(f"v_xor_b32 v9, {2*f}, v6"); A(f"v_lshl_add_u32 v{VTR+f}, v9, 4, v8")
        elif f % 2 == 0:
            A(f"v_xor_b32 v9, {2*f}, v6"); A(f"v_lshl_add_u32 v{VTR+f}, v9, 4, v8")
        else:
            A(f"v_add_u32 v{VTR+f}, 8, v{VTR+f-1}")
    o = []
    if main:
        A("v_lshrrev_b32 v5, 3, v2")
        A("v_and_b32 v6, 7, v2")
        A("v_lshrrev_b32 v7, 1, v5")
        A("v_xor_b32 v6, v6, v7")
        A("v_and_b32 v7, 4, v5")
        A("v_add_u32 v5, v5, v7")
        A(f"s_mul_i32 s6, s{S_W}, {CW*512}")
        A("v_lshl_add_u32 v5, v5, 9, s6")
        A(f"v_lshl_add_u32 v{VWK}, v6, 4, v5")
        A("v_xor_b32 v6, 4, v6")
        A(f"v_lshl_add_u32 v{VWK+1}, v6, 4, v5")
        A(f"v_add_u32 v{VWK+1}, 0x{16*512-1024:x}, v{VWK+1}")
        if NW == 4:
            A(f"v_mov_b32 v{VWK+2}, v{VWK}")
            A(f"v_mov_b32 v{VWK+3}, v{VWK+1}")
        A(f"s_lshr_b32 s7, s{S_ROT}, 1")
        for tp in range(4):
            A(f"s_xor_b32 s6, s7, {tp}")
            A(f"s_lshl_b32 s{SK2+2*tp}, s6, 7")
            A(f"s_add_u32 s{SK2+2*tp+1}, s{SK2+2*tp}, {(4 if NW == 8 else 32)*512}")
        A(f"s_and_b32 s6, s{S_ROT}, 1"); A("s_lshl_b32 s6, s6, 2")
        A("v_lshrrev_b32 v5, 1, v3")
        A("v_xor_b32 v5, v5, v4")
        A("v_xor_b32 v5, s6, v5")
        A(f"v_lshl_add_u32 v6, v3, 7, s{S_M0}")
        A(f"v_lshl_add_u32 v{VK}, v5, 4, v6")
        A(f"v_xor_b32 v{VK+1}, 64, v{VK}")
        A(f"s_mul_i32 s6, s{S_W}, {NF//2}")
        A(f"s_xor_b32 s6, s6, s{S_ROT}")
        A("s_lshl_b32 s6, s6, 10")
        A(f"s_add_u32 s6, s6, 0x{QIMG:x}")
        A("v_lshrrev_b32 v5, 1, v4"); A("v_and_b32 v6, 1, v4")
        A("v_lshl_add_u32 v5, v5, 8, s6")
        A("v_lshl_add_u32 v5, v6, 3, v5")
        A(f"v_lshl_add_u32 v{VQW}, v3, 4, v5")
        A(f"v_xor_b32 v{VQW+1}, 0x400, v{VQW}")
        A(f"v_add_u32 v{VQ}, 0x{QIMG:x}, v{VL16}")
        srd_from(o, SRD_W2, 26 if opt.get('w2same') else 28, 0, 131072)
        srd_from(o, SRD_O, 38, QF_OFF, QF_BYTES if not MGD else "s15")
        srd_from(o, SRD_H, 38, H_OFF, NB16 * 8192 if not MGD else "s15")
        A(f"s_mul_i32 s6, s4, {NRB*8192}" if not MGD else "s_mov_b32 s6, s14")
        A(f"s_mul_i32 s7, s{S_W}, {NF//2*1024}")
        A(f"s_add_u32 s{SO}, s6, s7")
        for b in range(1, NRB): A(f"s_add_u32 s{SO+b}, s{SO}, {b*8192}")
        qs = struct.unpack('<I', struct.pack('<f', math.log2(math.e) / 16))[0]
        A(f"s_mov_b32 s{S_SC}, 0x{qs:x}"); A(f"s_mov_b32 s{S_SC+1}, 0x{qs:x}")
        A(f"s_mov_b32 s{S_EPS}, 0x3727c5ac"); A(f"s_mov_b32 s{S_R256}, 0x3b800000"); A(f"s_mov_b32 s{S_MASK}, 0xffff0000")
    else:
        srd_from(o, SRD_O, 38, WF_OFF, 262144)
        A("s_lshr_b32 s6, s4, 2"); A("s_lshl_b32 s6, s6, 17")
        A("s_and_b32 s7, s4, 3"); A("s_lshl_b32 s7, s7, 12")
        A("s_add_u32 s6, s6, s7")
        A(f"s_mul_i32 s7, s{S_W}, {NF//2*16384}")
        A(f"s_add_u32 s{SO}, s6, s7")
        A(f"s_add_u32 s{SO+1}, s{SO}, 16384")
    for t in o: A(t)
    pre += stamp()
    rest = [x for c in range(NPRE, min(RC, NCH)) for x in [dma(c)]]
    def more(force=False):
        if rest and (force or not opt.get('late')): pre.extend(rest.pop(0))
    if main:
        n0 = len(pre)
        ln_code(pre, NL, HP, LN0, VHW, opt, more, stamp)
        if opt.get('pace'):
            p0, pc = opt['pace']
            ln = pre[n0:]; del pre[n0:]
            flat = []
            for q in rest: flat += [q[:3]] + [[x] for x in q[3:]]
            rest.clear()
            for k, x in enumerate(ln):
                pre.append(x)
                if k >= p0 and (k - p0) % pc == 0 and flat and x.t and not x.t.startswith(('v_permlane', 'v_add_f32_dpp', 'v_mov_b')): pre.extend(flat.pop(0))
            for q in flat: pre.extend(q)
            if opt.get('verbose'): print("LN len", len(ln), "left", len(flat))
    else:
        if opt.get('z1'):
            U = ACC1; A("v_and_b32 v5, 31, v2"); A("v_lshlrev_b32 v5, 4, v5"); A(f"s_mov_b32 s6, {255 * 512}"); A(f"s_mov_b32 s{S_MASK}, 0xffff0000")
            pre.append(VM(f"buffer_load_dwordx4 {vr(U+16)}, v5, {sr(SRD_X)}, s6 offen", tag='r255'))
            unp = lambda d, x, nd: [V(f"v_lshlrev_b32 v{d+2*k}, 16, v{x+k}", needs=nd) for k in range(4)] + [V(f"v_and_b32 v{d+2*k+1}, s{S_MASK}, v{x+k}") for k in range(4)]
            pre += unp(U + 8, U + 16, ['r255'])
            for j in range(NL):
                pre += unp(U, HP + 4 * j, [('x', j)]) + [V(f"v_sub_f32 v{U+k}, v{U+k}, v{U+8+k}") for k in range(8)] + [V(f"v_cvt_pk_bf16_f32 v{HP+4*j+k}, v{U+2*k}, v{U+2*k+1}") for k in range(4)]
        for j in range(NL):
            pre.append(LD(f"ds_write_b128 v{VHW+j}, {vr(HP+4*j)}", tag='hw', needs=[('x', j)]))
    pre += stamp()
    while rest and opt.get('late', 0) < 2: more(True)
    Z1 = opt.get('z1') and main
    if Z1:
        o = []; srd_from(o, SRD_X, 28, 255 * 512, 512)
        for t in o + ["v_lshlrev_b32 v5, 4, v4"]: A(t)
        for t in range(8):
            A(f"s_lshr_b32 s6, s{SK1+t}, 8"); pre.append(VM(f"buffer_load_dwordx4 {ar(4*t)}, v5, {sr(SRD_X)}, s6 offen", tag='r255'))
        A("v_and_b32 v5, 31, v2"); A("v_cmp_eq_u32 vcc, 31, v5"); A("v_mov_b32 v6, 0xffff"); A("v_mov_b32 v7, 0x3f800000")
        A("v_cndmask_b32 v6, -1, v6, vcc"); A("v_cndmask_b32 v7, 0, v7, vcc")
    st = Stream(); st.pre = pre
    wf, bf = [], []
    wreg = lambda k: WR + (k % RW) * 4
    breg = lambda k: BR + (k % RB) * 4
    def use(lst, k, n):
        lst[k].setdefault('first', n); lst[k]['last'] = n
    def mf(acc, wk, bk, first):
        a, b = (wreg(wk), breg(bk)) if main else (breg(bk), wreg(wk))
        n = st.mfma(f"{MF32} {vr(acc)}, {vr(a)}, {vr(b)}, {0 if first else vr(acc)}", needs=[('w', wk), ('b', bk)])
        use(wf, wk, n); use(bf, bk, n); return n
    acc1 = lambda f, rb: ACC1 + (f * NRB + rb) * 4
    acc2 = lambda f, rb: ACC2 + (rb * NF + f) * 4
    done1, done2 = {}, {}
    for t in range(8):
        sl = (t % RC) * CH
        b0 = len(bf)
        for rb in range(NRB):
            bf.append(dict(reads=[f"ds_read_b128 {vr(breg(b0+rb))}, v{VH + (t & 1)} offset:{rb*8192 + t*1024}"], ph=0))
        for f in range(NF):
            k = len(wf); r = wreg(k)
            wf.append(dict(reads=[f"ds_read_b64_tr_b16 v[{r+2*hh}:{r+2*hh+1}], v{VTR+f} offset:{sl + hh*4*RS}" for hh in range(2)], chunk=t))
            for rb in range(NRB): done1[(f, rb)] = mf(acc1(f, rb), k, b0 + rb, t == 0)
    n1 = st.n()
    if main:
        for tp in range(4):
            b0 = len(bf)
            for e in range(2):
                for rb in range(NRB):
                    bf.append(dict(reads=[f"ds_read_b128 {vr(breg(b0+e*NRB+rb))}, v{VQ} offset:{rb*8192 + (2*tp+e)*1024}"], ph=1))
            for bh in range(2):
                c = 8 + 2 * tp + bh; sl = (c % RC) * CH
                for bl in range(NF // 2):
                    b = bh * (NF // 2) + bl
                    for e in range(2):
                        k = len(wf)
                        wf.append(dict(reads=[f"ds_read_b128 {vr(wreg(k))}, v{VK+e} offset:{sl + bl*2048}"], chunk=c))
                        for rb in range(NRB): done2[(b, rb)] = mf(acc2(b, rb), k, b0 + e * NRB + rb, tp == 0 and e == 0)
                        if Z1 and bh == 0 and bl == 0:
                            for rb in range(NRB):
                                bk = b0 + e * NRB + rb; a = ACC3 + 4 * rb
                                n3 = st.mfma(f"{MF32} {vr(a)}, {ar(4 * (2*tp + e))}, {vr(breg(bk))}, {0 if tp == 0 and e == 0 else vr(a)}", needs=['r255', ('b', bk)]); use(bf, bk, n3)
    nm = st.n()
    LAG = opt.get('lag', 3); LA = opt.get('la', 2 * NRB)
    def place_w(lo, hi, g):
        for k in range(lo, hi):
            d = wf[k]
            g = max(g, d['first'] - LA - 1, wf[k - RW]['last'] if k >= RW else -1)
            for i, r in enumerate(d['reads']):
                st.put(g, LD(r, tag=('w', k) if i == len(d['reads']) - 1 else None, needs=[('c', d['chunk'])]))
            d['g'] = g
            if k % (2 * NF) == 0:
                for s in stamp(1): st.put(g, s)
        return g
    def place_b(lo, hi, g):
        for k in range(lo, hi):
            d = bf[k]
            g = max(g, d['first'] - LA - 1, bf[k - RB]['last'] if k >= RB else -1)
            st.put(g, LD(d['reads'][0], tag=('b', k)))
        return g
    nw1, nb1 = 8 * NF, 8 * NRB
    npw = min(opt.get('npw', NF), RW)
    place_w(0, npw, -1)
    st.put(-1, W('hw')); st.put(-1, V("s_barrier"))
    for s in stamp(): st.put(-1, s)
    place_b(0, nb1, -1)
    gg = -1
    while rest:
        for x in rest.pop(0): st.put(gg, x)
        gg += opt.get('lpace', 2)
    g = place_w(npw, nw1, -1)
    if main:
        items = sorted(done1.items(), key=lambda kv: kv[1])
        for (f, rb), n in items:
            a = acc1(f, rb)
            q = [V(f"v_cvt_pk_bf16_f32 v{a}, v{a}, v{a+1}"), V(f"v_cvt_pk_bf16_f32 v{a+1}, v{a+2}, v{a+3}"),
                 LD(f"ds_write_b64 v{VQW + (f >> 1)}, v[{a}:{a+1}] offset:{rb*8192 + (f & 1)*512}", tag='qw')]
            for x in q: st.put(min(n + LAG, n1 - 1), x)
        k = nw1
        while k < len(wf) and k < nw1 + opt.get('npw2', NF) and wf[k - RW]['last'] <= n1 - 1: k += 1
        place_w(nw1, k, max(g, n1 - 1))
        for s in stamp(): st.put(n1 - 1, s)
        st.put(n1 - 1, W('qw')); st.put(n1 - 1, V("s_barrier"))
        for s in stamp(): st.put(n1 - 1, s)
        place_b(nb1, len(bf), n1 - 1)
        place_w(k, len(wf), n1 - 1)
    lastw = {}
    for k, d in enumerate(wf): lastw[d['chunk']] = k
    gl = 0
    for c in range(RC, NCH):
        k = lastw[c - RC]
        gl = wf[k]['first']
        firstk = min(kk for kk, d in enumerate(wf) if d['chunk'] == c)
        assert gl < wf[firstk]['g'], (c, gl, wf[firstk]['g'])
        dq = dma(c, [('w', k)])
        for i, x in enumerate(dq): st.put(min(gl + max(0, i - 2) * opt.get('dsp', 0), wf[firstk]['g'] - 1, nm - 1) if opt.get('dsp') else gl, x)
        assert not opt.get('dsp') or (NPC - 1) * opt['dsp'] < wf[min(k + NF, len(wf) - 1)]['first'] - gl or c == NCH - 1
    if main:
        hs = [VM(f"buffer_store_dwordx4 {vr(HP+4*j)}, v{VL16}, {sr(SRD_H)}, {xso(j)}{stx}") for j in range(NL)]
        if Z1:
            hs = [V(f"v_and_or_b32 v{HP+4*j+3}, v{HP+4*j+3}, v6, v7") for j in range(NL)] + hs
            for rb in range(NRB): st.put(n3 + LAG + 1, V(f"v_mul_f32 v{ACC3+4*rb}, s{S_SC}, v{ACC3+4*rb}"))
        st.fill(hs, gl + 1)
        items = sorted(((max(done2[(2 * u, rb)], done2[(2 * u + 1, rb)]), u, rb) for u in range(NF // 2) for rb in range(NRB)))
        for n, u, rb in items:
            a = acc2(2 * u, rb)
            if n + LAG < nm - 1 or opt.get('nopk', 0) >= 2:
                q = [V(f"v_mul_f32 v{a+r}, s{S_SC}, v{a+r}" if not Z1 else f"v_fma_f32 v{a+r}, s{S_SC}, v{a+r}, -v{ACC3+4*rb}") for r in range(8)]
            else:
                q = [V(f"v_pk_mul_f32 {vr(a+2*r,2)}, {vr(a+2*r,2)}, {sr(S_SC,2)}") for r in range(4)]
            q += [V(f"v_cvt_pk_bf16_f32 v{a+r}, v{a+2*r}, v{a+2*r+1}") for r in range(4)]
            q.append(VM(f"buffer_store_dwordx4 {vr(a)}, v{VL16}, {sr(SRD_O)}, s{SO+rb} offen offset:{u*1024}{opt.get('stq', stx)}"))
            for x in q: st.put(min(n + LAG, nm - 1), x)
    else:
        items = sorted((max(done1[(f, 2 * tl)], done1[(f, 2 * tl + 1)]), f, tl) for f in range(NF) for tl in range(2))
        for n, f, tl in items:
            a = acc1(f, 2 * tl)
            q = [V(f"v_cvt_pk_bf16_f32 v{a+r}, v{a+2*r}, v{a+2*r+1}") for r in range(4)]
            q.append(VM(f"buffer_store_dwordx4 {vr(a)}, v{VL16}, {sr(SRD_O)}, s{SO + (f >> 1)} offen offset:{tl*2048 + (f & 1)*1024}{opt.get('stw', stx)}"))
            for x in q: st.put(min(n + LAG, nm - 1), x)
    for s in stamp(): st.put(nm - 1, s)
    em = Emitter()
    o = hazard.fix(em.emit(st.seq()))
    if opt.get('twice') and main:
        i = o.index("s_barrier"); o = o[:i] + ["s_mov_b32 s13, 0", "LG_again:"] + o[i:] + ["s_waitcnt vmcnt(0)", "s_xor_b32 s13, s13, 1", "s_cbranch_scc1 LG_again"]
    if opt.get('nodma2') and main:
        i = o.index("s_barrier"); o = o[:i] + [x for x in o[i:] if not x.endswith(' lds')]
    if opt.get('verbose'): print(role, st.stats(), "regs", p, "RC", RC, "lines", len(o))
    return o


def edge_prog(opt):
    NW = opt.get('nw', 8); NEW = opt.get('new', 32); ECAP = CAPB = 4096 // NEW; PASSB = NBK * 4096 * 4
    NTH = 64 * NW
    NQ = E // NEW // 4
    NR = (NQ + NTH - 1) // NTH; LASTN = NQ - (NR - 1) * NTH
    o = []; A = o.append
    L_CNT = 65536
    D0, S0, B0, C0 = 16, 16 + 4 * NR, 16 + 8 * NR, 16 + 12 * NR
    SRD_D, SRD_S, SRD_E, SRD_C = 40, 44, 48, 52
    A(f"s_mul_i32 s6, s4, {NQ * 16}")
    A("v_lshlrev_b32 v5, 4, v0")
    A("v_lshlrev_b32 v6, 2, v2")
    A(f"v_add_u32 v6, 0x{L_CNT:x}, v6")
    A("v_mov_b32 v7, 0")
    A("ds_write_b32 v6, v7")
    for i in range(NR): A(f"s_mov_b32 s{66+i}, {i * NTH * 16}")
    A("s_waitcnt lgkmcnt(0)")
    srd_from(o, SRD_D, 20, 0, NQ * 16, 6)
    srd_from(o, SRD_S, 18, 0, NQ * 16, 6)
    for i in range(NR): A(f"buffer_load_dwordx4 {vr(D0+4*i)}, v5, {sr(SRD_D)}, s{66+i} offen")
    for i in range(NR): A(f"buffer_load_dwordx4 {vr(S0+4*i)}, v5, {sr(SRD_S)}, s{66+i} offen")
    for t in opt.get('mg') or []: A(t)
    srd_from(o, SRD_E, 38, EDGE_OFF, EDGE_BYTES)
    srd_from(o, SRD_C, 38, ECNT_OFF, NBK * NEW * 4)
    SG = segs(); KC = 240
    for i, (n0, sz, b0, mg, c) in enumerate(SG):
        A(f"v_mov_b32 v{KC+2*i}, {mg}"); A(f"v_mov_b32 v{KC+2*i+1}, 0x{c:x}")
    A(f"s_mov_b32 s11, 0x{L_CNT:x}")
    A("v_mov_b32 v7, 1")
    A(f"v_cmp_gt_u32 vcc, 0x{LASTN:x}, v0")
    A("s_mov_b64 s[12:13], vcc")
    A("s_barrier")
    for i in range(NR):
        A(f"s_waitcnt vmcnt({2*NR-1-i})")
        if i == NR - 1: A("s_mov_b64 exec, s[12:13]")
        for k in range(4):
            d, b, c = D0 + 4 * i + k, B0 + 4 * i + k, C0 + 4 * i + k
            mr, cr = KC, KC + 1
            for j in range(1, len(SG)):
                A(f"v_cmp_le_u32 vcc, {SG[j][0]}, v{d}")
                A(f"v_cndmask_b32 v{b}, v{mr}, v{KC+2*j}, vcc"); A(f"v_cndmask_b32 v{c}, v{cr}, v{KC+2*j+1}, vcc")
                mr, cr = b, c
            A(f"v_mad_u32_u24 v{b}, v{mr}, v{d}, v{cr}")
            A(f"v_lshrrev_b32 v{b}, {BSHIFT}, v{b}")
            A(f"v_lshl_add_u32 v{c}, v{b}, 2, s11")
            A(f"ds_add_rtn_u32 v{c}, v{c}, v7")
    A("s_mov_b64 exec, -1")
    for i in range(NR):
        A(f"s_waitcnt vmcnt({NR-1-i}) lgkmcnt({min(15, 4*(NR-1 if i == NR-1 else NR-2))})")
        if i == NR - 1: A("s_mov_b64 exec, s[12:13]")
        for k in range(4):
            d, s, b, c = D0 + 4 * i + k, S0 + 4 * i + k, B0 + 4 * i + k, C0 + 4 * i + k
            A(f"v_and_b32 v8, 0x{CAPB-1:x}, v{c}")
            A(f"v_lshl_or_b32 v{s}, v{d}, 18, v{s}")
            A(f"v_lshlrev_b32 v8, 2, v8")
            A(f"v_lshl_add_u32 v8, v{b}, {(CAPB*4).bit_length()-1}, v8")
            A(f"ds_write_b32 v8, v{s}")
    A("s_mov_b64 exec, -1")
    A("s_waitcnt lgkmcnt(0)")
    A("s_barrier")
    NC = 64 * CAPB * 4 // (NTH * 16)
    BPI = 1024 // (CAPB * 4)
    R0 = C0 + 4 * NR
    assert R0 <= KC and R0 + 4 * NC <= 250
    if opt.get('fuse') and not opt.get('mg'):
        import gen_f
        FS = gen_f.fstr(opt); assert NEW * 64 == gen_f.NFLAG
        srd_from(o, SRD_D, 38, gen_f.FLAG_OFF, gen_f.NFLAG * FS)
        A(f"v_mul_u32_u24 v13, {FS}, v2" if FS <= 64 else f"v_lshlrev_b32 v13, {FS.bit_length()-1}, v2")
        A("v_mov_b32 v14, 0"); A("v_mov_b32 v15, 0")
        A(f"s_mul_i32 s6, s4, {64 * FS}")
        A(f"s_cmp_eq_u32 s{S_W}, 1")
        A("s_cselect_b32 s6, s6, 0x7fff0000")
        A(f"buffer_store_dwordx2 v[14:15], v13, {sr(SRD_D)}, s6 offen sc1")
    A("ds_read_b32 v8, v6")
    A(f"s_mul_i32 s6, s{S_W}, {NC*1024}")
    A("v_lshlrev_b32 v10, 4, v2")
    A("v_add_u32 v9, s6, v10")
    for k in range(NC): A(f"ds_read_b128 {vr(R0+4*k)}, v9 offset:{k*1024}")
    if BPI > 1:
        assert BPI == 2
        A("v_lshrrev_b32 v11, 5, v2")
        A(f"v_mul_u32_u24 v11, 0x{NEW*ECAP*4 - 512:x}, v11")
        A("v_add_u32 v10, v10, v11")
    A(f"s_mul_i32 s6, s{S_W}, {NC*BPI*NEW*ECAP*4}")
    A(f"s_mul_i32 s7, s4, {ECAP*4}")
    A("s_add_u32 s6, s6, s7")
    A(f"v_lshlrev_b32 v9, 2, v2")
    A("s_lshl_b32 s8, s4, 8")
    A(f"s_cmp_eq_u32 s{S_W}, 0")
    A("s_cselect_b32 s8, s8, 0x7fff0000")
    A(f"s_waitcnt lgkmcnt({min(15, NC)})")
    A(f"buffer_store_dword v8, v9, {sr(SRD_C)}, s8 offen{opt.get('ste', '')}")
    A(f"v_cmp_lt_u32 vcc, 0x{CAPB:x}, v8")
    A("s_cbranch_vccnz L1_eslow")
    for k in range(NC):
        A(f"s_waitcnt lgkmcnt({min(15, NC-1-k)})")
        A(f"buffer_store_dwordx4 {vr(R0+4*k)}, v10, {sr(SRD_E)}, s6 offen{opt.get('ste', '')}")
        A(f"s_add_u32 s6, s6, {BPI*NEW*ECAP*4}")
    A("s_branch L1_fin")
    A("L1_eslow:")
    A(f"s_mov_b32 s9, {NEW*ECAP*4}")
    for i in range(NR):
        for k in range(4):
            b, c = B0 + 4 * i + k, C0 + 4 * i + k
            A(f"v_mul_u32_u24 v{b}, s9, v{b}")
            A(f"v_and_b32 v8, {CAPB - 1}, v{c}")
            A(f"v_lshl_add_u32 v{b}, v8, 2, v{b}")
            A(f"v_lshrrev_b32 v8, {CAPB.bit_length() - 1}, v{c}")
            A(f"v_lshl_add_u32 v{b}, v8, {PASSB.bit_length() - 1}, v{b}")
    for i in range(NR):
        if i == NR - 1: A("s_mov_b64 exec, s[12:13]")
        for k in range(4):
            A(f"buffer_store_dword v{S0 + 4 * i + k}, v{B0 + 4 * i + k}, {sr(SRD_E)}, s7 offen{opt.get('ste', '')}")
    A("s_mov_b64 exec, -1")
    return hazard.fix(o)


def gen_k1(opt=None):
    opt = opt or {}
    NW = opt.get('nw', 8); NRB = opt.get('nrb', 3); NEW = opt.get('new', 32)
    NMAIN = (NB16 + NRB - 1) // NRB
    o = []
    A = o.append
    A("s_getpc_b64 s[56:57]")
    A("s_load_dwordx16 s[16:31], s[0:1], 0")
    A("s_load_dwordx8 s[32:39], s[0:1], 64")
    if opt.get('timing'):
        A("s_memtime s[100:101]")
    A(f"s_cmp_ge_u32 s2, {opt.get('nact', NMAIN) + NEW + 8}")
    A("s_cbranch_scc1 L1_end")
    A("v_lshrrev_b32 v1, 6, v0")
    A("v_and_b32 v2, 63, v0")
    A("s_lshr_b32 s3, s2, 3")
    A(f"v_readfirstlane_b32 s{S_W}, v1")
    A(f"s_mul_i32 s5, s3, {NW}")
    A(f"s_add_u32 s5, s5, s{S_W}")
    if opt.get('cpf', 1):
        A("s_and_b32 s56, s56, 0xffffff00")
        A(f"s_mov_b32 s58, {opt.get('code_end', 'L1_end')}-k1_kernel")
        A("s_mov_b32 s59, 0x00020000")
        A("s_and_b32 s6, s5, 15")
        A("s_lshl_b32 s6, s6, 13")
        A("v_lshlrev_b32 v10, 7, v2")
        A("buffer_load_dword v255, v10, s[56:59], s6 offen")
    A("v_and_b32 v3, 15, v2")
    A("v_lshrrev_b32 v4, 4, v2")
    A(f"s_and_b32 s{S_ROT}, s3, {opt.get('rotm', 7)}")
    A(f"s_sub_u32 s4, s2, {NEW + 8}")
    A(f"s_cmp_lt_u32 s2, {NEW + 8}")
    A("s_cbranch_scc1 L1_notq")
    A(f"s_mov_b32 s{S_ROLE}, 0")
    o += gemm_prog('q', opt)
    A("s_branch L1_fin")
    A("L1_notq:")
    A(f"s_sub_u32 s4, s2, {NEW}")
    A(f"s_cmp_lt_u32 s2, {NEW}")
    A("s_cbranch_scc1 L1_edge")
    A(f"s_mov_b32 s{S_ROLE}, 1")
    o += gemm_prog('w', opt)
    A("s_branch L1_fin")
    A("L1_edge:")
    A(f"s_mov_b32 s{S_ROLE}, 4")
    A("s_mov_b32 s4, s2")
    o += edge_prog(opt)
    A("L1_fin:")
    if opt.get('timing'):
        A("s_memtime s[4:5]")
        A("s_waitcnt vmcnt(0)")
        A("s_memtime s[6:7]")
        A("s_waitcnt lgkmcnt(0)")
        for k in range(8):
            A(f"v_writelane_b32 v0, s{16+2*k}, {k}")
        A("v_writelane_b32 v0, s4, 8")
        A("v_writelane_b32 v0, s6, 9")
        A(f"v_subrev_u32 v0, s100, v0")
        A(f"v_writelane_b32 v0, s{S_ROLE}, 63")
        srd_from(o, 4, 34, 0, 1 << 20)
        A(f"s_mul_i32 s8, s2, {NW}")
        A(f"s_add_u32 s8, s8, s{S_W}")
        A(f"s_lshl_b32 s8, s8, 8")
        A(f"v_mbcnt_lo_u32_b32 v1, -1, 0")
        A(f"v_mbcnt_hi_u32_b32 v1, -1, v1")
        A(f"v_lshlrev_b32 v1, 2, v1")
        A(f"buffer_store_dword v0, v1, s[4:7], s8 offen")
    A("L1_end:")
    return "\n".join(o)


def kernel_desc(opt=None):
    opt = opt or {}
    NW = opt.get('nw', 8); NRB = opt.get('nrb', 3); NEW = opt.get('new', 32)
    return dict(name="k1_kernel", body=gen_k1(opt), vgpr=256, accum=256, grid=(NB16 + NRB - 1) // NRB + NEW + 8, block=64 * NW, lds=K1_LDS)

if __name__ == "__main__":
    import sys, json
    t = gen_k1(dict(json.loads(sys.argv[1]) if len(sys.argv) > 1 else {}, verbose=1))
    e = hazard.check(t, "k1")
    print("\n".join(e[:30])); print(len(e), "hazards;", len(t.split("\n")), "lines")
    open('k1n.s', 'w').write(t)
```

```python
from layout import *
import hazard

def Q(qb, ds): return (qb * 8 + ds) * 4
S_BASE = [128, 144]
def S(h, qb): return S_BASE[h] + qb * 4
P_BASE = [160, 176]
def P(p, qb): return P_BASE[p] + qb * 4
def NEGM(qb): return 192 + qb * 4
RING = 4
SLOT = [208, 212, 216, 220, 232, 236, 248, 252]
def F(i): return SLOT[i % RING]
R8 = [4]
LA = [224 + i for i in range(4)]
ET = [232 + i for i in range(8)]
VK = 240
VTR = [246, 247]
VDMA = 241
VT0, VT1 = 242, 248
M = [248 + i for i in range(4)]
VLANE16 = 243
KB = [VK, 230, 229]
VSP = 231
RD = 250
def O(fb, qb): return (fb * 4 + qb) * 4
VTP = [244, 245]
Z1 = [0]
DS = list(range(8))
BIAS = 40
PVC = [0]

SRD_Q, SRD_K, SRD_OP, SRD_ML = 8, 12, 20, 24
S_OFF, S_M0, S_CNT, S_THR, S_MASK, S_WAVE, S_SITE = 28, 30, 31, 32, 33, 34, 36
S_PH, S_STEP, S_NW, S_NL, S_RO = 100, 101, 39, 35, 49
STEP = ['0x4000']


def vr(b, n=4): return f"v[{b}:{b+n-1}]"
def ar(b, n=4): return f"a[{b}:{b+n-1}]"


class Seg:
    def __init__(self):
        self.mf = []
        self.gap = []
        self.pre = []

    def add_mfma(self, t):
        self.mf.append(t)
        self.gap.append([])

    def used(self, g):
        return sum(c for c, _ in self.gap[g])

    def put(self, g, text, cost=1):
        if g < 0:
            self.pre.append((cost, text))
        else:
            self.gap[g].append((cost, text))

    def fill(self, queue, g0, g1, cap=2):
        g = g0
        for cost, text in queue:
            while g < g1 and self.used(g) + cost > (cap[g % 2] if isinstance(cap, list) else cap):
                g += 1
            self.gap[g].append((cost, text))
        return g

    def text(self):
        o = [t for _, t in self.pre]
        for m, gp in zip(self.mf, self.gap):
            o.append(m)
            o += [t for _, t in gp]
        return o


def foff(kb, c): return (c >> 1) * 4096 + kb * 2048 + (c & 1) * 512

def kread(off):
    return [lambda f: f"ds_read_b128 {vr(f)}, v{VK} offset:{off}"]

def vread(off, fb, base=VTR):
    return [lambda f, kb=kb: f"ds_read_b64_tr_b16 v[{f+2*kb}:{f+2*kb+1}], v{base[fb & 1]} offset:{off + foff(kb, fb >> 1)}" for kb in range(2)]


def qk_block(h, off, cinit):
    fr = []
    for ds in range(8):
        ms = []
        for qb in range(4):
            c = (0 if Z1[0] else cinit(qb)) if ds == 0 else vr(S(h, qb))
            ms.append(lambda f, qb=qb, ds=ds, c=c: f"v_mfma_f32_16x16x32_bf16 {vr(S(h,qb))}, {vr(f)}, {vr(Q(qb,ds))}, {c}")
        fr.append((kread(off + foff(h, DS[ds])), ms))
    return fr


FAKE = [-1]
TR = [0]
def pvm(acc, f, pp):
    a, b = (pp, f) if TR[0] else (f, pp)
    return f"v_mfma_f32_16x16x32_bf16 {ar(acc)}, {vr(a)}, {vr(b)}, {ar(acc)}"


def pv_block(p, off, fb0):
    fr = []
    for fb in range(fb0, fb0 + 8):
        ms = []
        for qb in range(4):
            ms.append(lambda f, qb=qb, fb=fb: pvm(O(fb & FAKE[0], qb), f, P(p ^ (fb & 1 & ~FAKE[0]), qb)))
        fr.append((vread(off, fb), ms))
    return fr


CHAIN = [0]
SNAKE = [0]
def build_seg(frags, next_reads, ring=4, sw=None, npre=None, wg=1):
    sg = Seg()
    n = len(frags)
    assert n % ring == 0 or sw is not None and sw % ring == 0
    rds = [r for r, _ in frags] + list(next_reads)
    slot = lambda i: i % (4 if sw is not None and i >= sw else ring)
    reg = lambda i: SLOT[slot(i)]
    first = {}; last = {}; grp = {}
    i = 0
    while i < n:
        c = 1
        for cl in (4, 2):
            if cl > CHAIN[0] or cl > (2 if ring == 4 or sw is not None and i >= sw else ring // 2) or i % cl or i + cl > n: continue
            if len({tuple(m(0).split(',')[0] for m in frags[j][1]) for j in range(i, i + cl)}) == 1: c = cl; break
        for k in range(len(frags[i][1])):
            for j in (range(i, i + c) if not (SNAKE[0] and k % 2 and c == 2 and 'v[192' not in frags[i][1][0](0)) else range(i + c - 1, i - 1, -1)):
                first.setdefault(j, len(sg.mf)); last[j] = len(sg.mf); grp[j] = (i, i + c - 1); sg.add_mfma(frags[j][1][k](reg(j)))
        i += c
    nm = len(sg.mf)
    issued = []
    sg.reads = []
    ev = []
    occ = {}; late0 = []
    for i in range(len(rds)):
        pv = occ.get(slot(i)); occ[slot(i)] = i
        if pv is None:
            assert i < ring; issued += [i] * len(rds[i]); sg.reads += [(-1, last.get(i, nm), slot(i), x(reg(i))) for x in rds[i]]
            if npre is not None and i >= npre: late0 += [x(reg(i)) for x in rds[i]]
        else:
            d = 0 if last.get(pv + 1) == last[pv] + 1 or last.get(pv - 1) == last[pv] + 1 else 1
            for k, x in enumerate(rds[i]): ev.append((min(last[pv] + k * d, nm - 1), 2 if k * d and last[pv] + k < nm else 0, 'r', i, x))
        if i < n: ev.append((first[grp[i][0]] - 1, 1, 'w', i, None))
    okn = -1
    for x in late0: sg.put(-1, x)
    for g, _, kind, i, x in sorted(ev, key=lambda e: (e[0] - (e[1] == 2), e[1], e[3])):
        if kind == 'r': sg.put(g, x(reg(i))); issued.append(i); sg.reads.append((g, last.get(i, nm), slot(i), x(reg(i))))
        else:
            j = grp[i][1]
            if wg > 1 and j + 1 < n and grp[j + 1][1] // (2 * wg) == i // (2 * wg) and all(issued.count(y) == len(rds[y]) for y in range(i, grp[j + 1][1] + 1)): j = grp[j + 1][1]
            lastr = max(k for k, y in enumerate(issued) if grp[i][0] <= y <= j)
            assert all(issued.count(y) == len(rds[y]) for y in range(i, j + 1))
            if lastr > okn: sg.put(g, f"s_waitcnt lgkmcnt({min(15, len(issued) - 1 - lastr)})"); okn = lastr
    return sg


REREAD = {}
def note_site(sg, g, site):
    REREAD[site] = [t for gi, lu, sl, t in sg.reads if sl >= 4 and gi <= g < lu]


def or_check(pr, site):
    q = [(1, f"v_or3_b32 v{VT0}, {pr[0]}, {pr[1]}, {pr[2]}")] + [(1, f"v_or3_b32 v{VT0}, v{VT0}, {pr[k]}, {pr[k+1]}") for k in range(3, len(pr) - 1, 2)]
    return q + [(1, f"v_or_b32 v{VT0}, v{VT0}, {pr[-1]}"), (1, f"v_lshl_or_b32 v{VT0}, v{VT0}, 16, v{VT0}"), (1, f"v_cmp_le_u32 vcc, 2.0, v{VT0}"),
                (1, f"s_cbranch_vccnz L2_rare_site{site}\nL2_ret{site}:")]


SMPAT = ['E0 E1 E2 A0 C0 E3 A1 A2 A3 C1']
def softmax_queue(h, pn, site, pat=None, inpl=False, qs=range(4), et=None):
    lin = lout = LA
    if callable(pn):
        pf = pn; P = lambda _, qb: pf(qb)
    else:
        P = globals()['P']
    q = []
    def tok(t, qb):
        e = ET[(qb % 2) * 4:(qb % 2) * 4 + 4]; s = S(h, qb); k = int(t[1])
        if inpl: e = [s + r for r in range(4)]
        if et: e = [et(qb) + r for r in range(4)]
        if t[0] == 'E': return (2, f"v_exp_f32 v{e[k]}, v{s+k}")
        if t[0] == 'A': return (1, f"v_add_f32 v{lout[qb]}, v{lin[qb] if k == 0 else lout[qb]}, v{e[k]}")
        return (1, f"v_cvt_pk_bf16_f32 v{P(pn,qb)+2*h+k}, v{e[2*k]}, v{e[2*k+1]}")
    pat = (pat or ('E0 C1p E1 E2 C0 E3' if Z1[0] else SMPAT[0])).split()
    for qb in range(5):
        for t in pat:
            r = qb - 1 if t.endswith('p') else qb
            if r in qs: q.append(tok(t, r))
    if Z1[0]:
        q = [x for x in q if not x[1].startswith('v_add')]
        ck = or_check([x[1].split()[1].rstrip(',') for x in q if 'cvt' in x[1]], site)
        return q[:-1] + ck[:1] + q[-1:] + ck[1:]
    if len(qs) == 4:
        q.append((1, f"v_max3_f32 v{VT0}, v{lout[0]}, v{lout[1]}, v{lout[2]}"))
        q.append((1, f"v_max_f32 v{VT0}, v{VT0}, v{lout[3]}"))
    else: q.append((1, f"v_max_f32 v{VT0}, v{lout[qs[0]]}, v{lout[qs[1]]}"))
    q.append((1, f"v_cmp_lt_f32 vcc, s{S_THR}, v{VT0}"))
    q.append((1, f"s_cbranch_vccnz L2_rare_site{site}\nL2_ret{site}:"))
    return q


def body(p, kind, sites, opt):
    B = p * 16384
    Bn = (1 - p) * 16384
    negm = lambda qb: vr(NEGM(qb))
    fr = pv_block(p, B, 0)
    if kind != 'tail1':
        fr += qk_block(1, Bn, negm)
    fr += pv_block(p, B, 8)
    if kind == 'loop':
        fr += qk_block(0, B, negm)
    nxt = [vread(Bn, i) for i in range(RING)] if kind != 'tail1' else []
    sg = build_seg(fr, nxt)
    if kind == 'loop':
        gb = opt.get('gbar', 81)
        gd = opt.get('gdma', [0, 1, 2, 5, 6])
        if not opt.get('nobar'):
            sg.put(gb, "s_waitcnt vmcnt(%d)" % sum(1 for x in gd[1:] if x < gb))
            sg.put(gb, "s_barrier")
        assert all(x != gb for x in gd) and gb < 83
        sg.put(gd[0], f"s_mov_b32 m0, s{S_M0}")
        for k in range(4):
            if opt.get('nodma'): continue
            sg.put(gd[k + 1], f"buffer_load_dwordx4 v{VDMA}, s[{SRD_K}:{SRD_K+3}], s{S_OFF} offen offset:{k*1024}{opt.get('dl','')} lds")
        gs = opt.get('gs', [125, 125, 122, 126, 126])
        sg.put(gs[0], f"s_add_u32 s{S_OFF}, s{S_OFF}, {STEP[0]}")
        sg.put(gs[1], f"s_add_u32 s{S_M0}, s{S_M0}, 0x4000")
        sg.put(gs[2], f"s_sub_u32 s{S_CNT}, s{S_CNT}, 1")
        sg.put(gs[3], f"s_and_b32 s{S_M0}, s{S_M0}, 0x1ffff")
        sg.put(gs[4], f"s_cmp_eq_u32 s{S_CNT}, 0")
        assert gs[4] >= max(gs[:4])
        if p == 0:
            sg.put(70, f"v_add_u32 v{VK}, 0x8000, v{VK}")
            sg.put(70, f"v_and_b32 v{VK}, 0x1ffff, v{VK}")
    if kind == 'tail2':
        sg.put(2, "s_waitcnt vmcnt(0)")
    if p == 1 and kind != 'tail1':
        g = 84 if kind == 'loop' else 81
        sg.put(g, f"v_add_u32 v{VTR[0]}, 0x8000, v{VTR[0]}")
        sg.put(g, f"v_and_b32 v{VTR[0]}, 0x1ffff, v{VTR[0]}")
        sg.put(g + 1, f"v_xor_b32 v{VTR[1]}, 32, v{VTR[0]}")
    if kind != 'tail1' and opt.get('valu', 1):
        def flt(q):
            if opt.get('nochk'): q = q[:-4] + [(0, q[-1][1].split("\n")[1])]
            if opt.get('fakez'):
                z = []; na = 0
                for c, x in q[:-4]:
                    if x.startswith('v_add'):
                        na += 1
                        if na % 2: continue
                        r = x.split(',')[2].strip(); x = f"v_max3_f32 v{VT0}, v{VT0}, {r}, v{int(r[1:]) - 1}"
                    z.append((c, x))
                q = z + [(0, "s_nop 0"), (0, "s_nop 0")][:0] + q[-2:]
                q = q[:-2] + [(0, ""), (0, "")] + q[-2:]
            if opt.get('noexp'): q = [(1, x.replace('v_exp_f32', 'v_mov_b32')) if 'v_exp' in x else (c, x) for c, x in q]
            return q
        last = 124 if kind == 'loop' else len(sg.mf) - 1
        for h, (ga, gz) in enumerate(((opt.get('g0', 8), 71), (opt.get('g1', 72), last))):
            q = flt(softmax_queue(h, 1 - p, sites[h], opt.get('smp')))
            cs = opt.get('cs')
            if cs:
                g = sg.fill(q[:-4], ga, gz)
                for x, d in zip(q[-4:], cs): g = sg.fill([x], min(g + d, 127), 127)
            else: g = sg.fill(q, ga, gz)
            if opt.get('verbose'): print(kind, p, "sm", h, "end", g, "over", [(i, sg.used(i)) for i in range(len(sg.mf)) if sg.used(i) > 2])
    return sg


def body2(p, first, sites, opt):
    B = p * 16384; Bn = (1 - p) * 16384
    negm = lambda qb: vr(NEGM(qb))
    fr = qk_block(1, Bn, negm)
    for fb in range(8 * p, 8 * p + 8):
        for old in ((0,) if first else (1, 0)):
            fr.append((vread(Bn, fb, VTR if p else VTP) if old else vread(B, fb), [lambda f, qb=qb, fb=fb, old=old: pvm(O(fb, qb), f, P(p ^ old, qb)) for qb in range(4)]))
    fr += qk_block(0, B, negm)
    sg = build_seg(fr, [kread(B + foff(1, DS[ds])) for ds in range(R8[0])], R8[0])
    nm = len(sg.mf); sh = nm - 128
    X = lambda g: g if g < 40 else g + sh if g >= 72 else 40 + (g - 40) % 8 if first else g
    gb = X(opt.get('gbar2', 69 if R8[0] == 8 else 81)); gd = [X(g) for g in opt.get('gdma2', [52, 53, 57, 61, 65])]
    if first: gd = [33, 34, 36, 38, 41]
    if first and R8[0] == 8: gb = 30
    assert gb < min(gi for gi, lu, sl, t in sg.reads if 'b128' in t and lu >= nm - 32) and gb not in gd
    sg.put(gb, "s_waitcnt vmcnt(%d)" % sum(1 for x in gd[1:] if x < gb)); sg.put(gb, "s_barrier")
    sg.put(gd[0], f"s_mov_b32 m0, s{S_M0}")
    for k in range(4):
        sg.put(gd[k + 1], f"buffer_load_dwordx4 v{VDMA}, s[{SRD_K}:{SRD_K+3}], s{S_OFF} offen offset:{k*1024}{opt.get('dl2', opt.get('dl',''))} lds")
    gs = [X(g) for g in opt.get('gs2', [120, 120, 117, 121, 122])]
    assert min(gs[:2]) > max(gd) and gs[4] >= max(gs[:4])
    sg.put(gs[0], f"s_add_u32 s{S_OFF}, s{S_OFF}, {STEP[0]}")
    sg.put(gs[1], f"s_add_u32 s{S_M0}, s{S_M0}, 0x4000")
    sg.put(gs[2], f"s_sub_u32 s{S_CNT}, s{S_CNT}, 1")
    sg.put(gs[3], f"s_and_b32 s{S_M0}, s{S_M0}, 0x1ffff")
    if not first: sg.put(gs[4], f"s_cmp_eq_u32 s{S_CNT}, 0")
    if p == 0:
        g = opt.get('gvk', 17)
        assert all(gi < g or gi > g + 1 and lu > 31 for gi, lu, sl, t in sg.reads if 'b128' in t)
        sg.put(g, f"v_add_u32 v{VK}, 0x8000, v{VK}"); sg.put(g + 1, f"v_and_b32 v{VK}, 0x1ffff, v{VK}")
    else:
        g = opt.get('gvt', 104)
        sg.put(g, f"v_mov_b32 v{VTP[0]}, v{VTR[0]}"); sg.put(g, f"v_mov_b32 v{VTP[1]}, v{VTR[1]}")
        sg.put(g + 1, f"v_add_u32 v{VTR[0]}, 0x8000, v{VTR[0]}"); sg.put(g + 2, f"v_and_b32 v{VTR[0]}, 0x1ffff, v{VTR[0]}")
        sg.put(g + 4, f"v_xor_b32 v{VTR[1]}, 32, v{VTR[0]}")
    qs = [softmax_queue(h, 1 - p, sites[h], opt.get('smp2', 'E0 E1 E2 A0 E3 A1 A2p A3p C0 C1'), True) for h in range(2)]
    cv = [[x for x in q if 'cvt' in x[1]] for q in qs]; qs = [[x for x in q if 'cvt' not in x[1]] for q in qs]
    if opt.get('fakez2'):
        for h in range(2):
            pr = [x[1].split()[1].rstrip(',') for x in cv[h]]
            qs[h] = [x for x in qs[h][:-4] if 'v_add' not in x[1]] + [(1, f"v_or3_b32 v{VT0}, {pr[0]}, {pr[1]}, {pr[2]}"), (1, f"v_or3_b32 v{VT0}, v{VT0}, {pr[3]}, {pr[4]}"), (1, f"v_or3_b32 v{VT0}, v{VT0}, {pr[5]}, {pr[6]}"),
                     (1, f"v_and_or_b32 v{VT0}, v{VT0}, 0, {pr[7]}"), (1, f"v_and_b32 v{VT0}, 0, v{VT0}"), (1, f"v_cmp_ne_u32 vcc, 0, v{VT0}"), qs[h][-1]]
    if Z1[0]:
        cap = 3 if first else 2
        gc = [X(g) for g in opt.get('gcz', [89, 90, 91, 92, 93, 96, 97, 98])]
        for k in range(0, 8, 2 if first else 1):
            for x in cv[k % 2][k // 2 * 2:k // 2 * 2 + 2]: sg.put(gc[k], x[1])
        g = 4
        for h in range(2): g = sg.fill([x for x in qs[h] if 'exp' in x[1]], max(g, 40 * h), nm - 20 if first and h else gc[0] - 1, cap=2)
        if first: gc[4] = sg.fill(cv[1], g + 1, nm - 1, cap=cap)
        ck = or_check([f"v{P(1 - p, qb) + r}" for qb in range(4) for r in range(4)], sites[0])
        ge = g; g = sg.fill(ck[:-1], gc[4], nm - 1, cap=cap); g = sg.fill(ck[-1:], min(max(g + 3, nm - 24), nm - 1), nm - 1, cap=cap)
        if opt.get('verbose'): print("body2z", p, first, "exp end", ge, "branch", g, "over", [(i, sg.used(i)) for i in range(nm) if sg.used(i) > 2])
        sg.put(-1, f"L2_ret{sites[1]}:", 0)
        return sg
    gc = [X(g) for g in opt.get('gcv', [89, 91, 93, 97])]
    for k, x in enumerate(cv[0]): sg.put(gc[k // 2], x[1])
    cap = 3 if first else opt.get('capp', 2)
    g = 4 if first else opt.get('g02', 4)
    for h in range(2):
        g = sg.fill(qs[h][:-4], max(g, 40 * h), nm - 1, cap=cap)
        for x, d in zip(qs[h][-4:], opt['cs']): g = sg.fill([x], min(max(g + d, (gc[3] + 1) * h if x is qs[h][-1] else 0), nm - 1), nm - 1, cap=cap)
        assert g > opt.get('gvk', 17) + 1 and (h or g < gc[0])
        note_site(sg, g, sites[h])
        assert not [t for t in REREAD[sites[h]] if '_tr_' in t and g >= opt.get('gvt', 104)]
        if opt.get('verbose'): print("body2", p, first, "sm", h, "branch", g, "rereads", len(REREAD[sites[h]]))
    g = sg.fill(cv[1], g, nm - 1, cap=cap)
    if opt.get('verbose'): print("   cvt1 end", g, "over", [(i, sg.used(i)) for i in range(nm) if sg.used(i) > 2])
    return sg


def rare_code(p, h, sites, pt=None, live=None, spills=(), ka=None, cvt=True, qs=range(4), omul=False):
    if pt is None:
        pt = lambda qb: P(1 - p, qb)
        live = [lambda qb: P(p, qb)]
    lin = lout = LA
    o = []
    for st in sites:
        o.append(f"L2_rare_site{st}:")
        o.append(f"s_mov_b32 s{S_SITE}, {st}")
        o.append(f"s_branch L2_rare_{p}_{h}")
    o.append(f"L2_rare_{p}_{h}:")
    o.append("s_nop 15")
    o.append("s_nop 15")
    o.append("s_waitcnt lgkmcnt(0)")
    if ka:
        o.append(f"v_add_u32 v{RD}, 0x{ka[1] & 0x1ffff:x}, v{ka[0]}")
        o.append(f"v_and_b32 v{RD}, 0x1ffff, v{RD}")
        for ds in range(8):
            o.append(f"ds_read_b128 {vr(ET[0])}, v{RD} offset:{ka[2] + foff(h, ds)}")
            o.append("s_waitcnt lgkmcnt(0)")
            for qb in qs: o.append(f"v_mfma_f32_16x16x32_bf16 {vr(S(h,qb))}, {vr(ET[0])}, {vr(Q(qb,ds))}, {vr(S(h,qb)) if ds else vr(NEGM(qb))}")
            o.append("s_nop 7")
        o.append("s_nop 7")
    DL = ET[0:4]
    FF = ET[4:8]
    for qb in range(4):
        if qb not in qs:
            o.append(f"v_mov_b32 v{FF[qb]}, 1.0"); continue
        s = S(h, qb)
        d = DL[qb]
        for r in range(4):
            o.append(f"v_exp_f32 v{VT1}, v{s+r}")
            o.append("s_nop 0")
            o.append(f"v_sub_f32 v{lin[qb]}, v{lin[qb]}, v{VT1}")
        o.append(f"v_max_f32 v{lin[qb]}, 0, v{lin[qb]}")
        o.append(f"v_min_f32 v{lin[qb]}, s{S_THR}, v{lin[qb]}")
        o.append(f"v_log_f32 v{VT1}, v{lin[qb]}")
        o.append(f"v_max3_f32 v{d}, v{s}, v{s+1}, v{s+2}")
        o.append(f"v_max3_f32 v{d}, v{d}, v{s+3}, v{VT1}")
        o.append(f"v_mov_b32 v{VT1}, v{d}")
        o.append("s_nop 1")
        o.append(f"v_permlane32_swap_b32 v{d}, v{VT1}")
        o.append("s_nop 1")
        o.append(f"v_max_f32 v{d}, v{d}, v{VT1}")
        o.append(f"v_mov_b32 v{VT1}, v{d}")
        o.append("s_nop 1")
        o.append(f"v_permlane16_swap_b32 v{d}, v{VT1}")
        o.append("s_nop 1")
        o.append(f"v_max_f32 v{d}, v{d}, v{VT1}")
        o.append(f"v_ceil_f32 v{d}, v{d}")
        o.append(f"v_max_f32 v{d}, 0, v{d}")
        o.append(f"v_sub_f32 v{VT1}, 0, v{d}")
        o.append(f"v_exp_f32 v{FF[qb]}, v{VT1}")
        o.append("s_nop 1")
        o.append(f"v_mul_f32 v{lin[qb]}, v{lin[qb]}, v{FF[qb]}")
        if not PVC[0]: o.append(f"v_add_f32 v{M[qb]}, v{M[qb]}, v{d}")
        for r in range(4):
            o.append(f"v_sub_f32 v{NEGM(qb)+r}, v{NEGM(qb)+r}, v{d}")
            o.append(f"v_sub_f32 v{S(h,qb)+r}, v{S(h,qb)+r}, v{d}")
            o.append(f"v_{'mul' if omul else 'sub'}_f32 v{S(1-h,qb)+r}, v{S(1-h,qb)+r}, v{FF[qb] if omul else d}")
        regs = [f(qb) + r for f in live for r in range(4)] + ([] if h == 0 or omul else [pt(qb) + r for r in range(2)])
        def scale(r):
            o.append(f"v_lshlrev_b32 v{VT0}, 16, v{r}")
            o.append(f"v_and_b32 v{VT1}, 0xffff0000, v{r}")
            o.append(f"v_mul_f32 v{VT0}, v{VT0}, v{FF[qb]}")
            o.append(f"v_mul_f32 v{VT1}, v{VT1}, v{FF[qb]}")
            o.append(f"v_cvt_pk_bf16_f32 v{r}, v{VT0}, v{VT1}")
        for r in regs: scale(r)
        for k in spills:
            for hh in range(2):
                off = k * 4096 + qb * 1024 + hh * 8
                o.append(f"ds_read_b64 v[{RD}:{RD+1}], v{VSP} offset:{off}")
                o.append("s_waitcnt lgkmcnt(0)")
                scale(RD); scale(RD + 1)
                o.append(f"ds_write_b64 v{VSP}, v[{RD}:{RD+1}] offset:{off}")
                o.append("s_waitcnt lgkmcnt(0)")
    for qb in qs:
        s = S(h, qb)
        e = ET[0:4] if cvt else [s + r for r in range(4)]
        for r in range(4):
            o.append(f"v_exp_f32 v{e[r]}, v{s+r}")
        o.append("s_nop 1")
        o.append(f"v_add_f32 v{lout[qb]}, v{lin[qb]}, v{e[0]}")
        for r in range(1, 4):
            o.append(f"v_add_f32 v{lout[qb]}, v{lout[qb]}, v{e[r]}")
        if cvt:
            o.append(f"v_cvt_pk_bf16_f32 v{pt(qb)+2*h}, v{e[0]}, v{e[1]}")
            o.append(f"v_cvt_pk_bf16_f32 v{pt(qb)+2*h+1}, v{e[2]}, v{e[3]}")
    o.append("s_branch L2_rare_common")
    return o


def rare_z(name, sites, hs, pt, live, spills=(), ka=None, slot=True):
    o = []; A = o.append
    for st in sites: o += [f"L2_rare_site{st}:", f"s_mov_b32 s{S_SITE}, {st}", f"s_branch L2_rare_{name}"]
    o += [f"L2_rare_{name}:", "s_nop 15", "s_nop 15", "s_waitcnt lgkmcnt(0)"]
    SR, FR, D, T, MK, KA = 192, 200, 204, 205, 206, 207; FF = ET[4:8]; NM = LA
    A(f"v_lshrrev_b32 v{MK}, 8, v{VLANE16}"); A(f"v_add_u32 v{MK}, 1, v{MK}"); A(f"v_lshrrev_b32 v{MK}, 2, v{MK}"); A(f"v_sub_u32 v{MK}, 0, v{MK}"); A(f"v_and_b32 v{MK}, 0xffff0000, v{MK}")
    if ka: A(f"v_add_u32 v{KA}, 0x{ka[1] & 0x1ffff:x}, v{ka[0]}"); A(f"v_and_b32 v{KA}, 0x1ffff, v{KA}")
    def scale(r, qb):
        A(f"v_lshlrev_b32 v{VT0}, 16, v{r}"); A(f"v_and_b32 v{VT1}, 0xffff0000, v{r}")
        A(f"v_mul_f32 v{VT0}, v{VT0}, v{FF[qb]}"); A(f"v_mul_f32 v{VT1}, v{VT1}, v{FF[qb]}"); A(f"v_cvt_pk_bf16_f32 v{r}, v{VT0}, v{VT1}")
    for qb in range(4):
        src = {h: SR + 4 * h if ka else S(h, qb) for h in hs}
        if ka:
            for h in hs:
                for ds in range(8):
                    A(f"ds_read_b128 {vr(FR)}, v{KA} offset:{ka[2] + foff(h, DS[ds])}"); A("s_waitcnt lgkmcnt(0)")
                    A(f"v_mfma_f32_16x16x32_bf16 {vr(src[h])}, {vr(FR)}, {vr(Q(qb,ds))}, {vr(src[h]) if ds else 0}"); A("s_nop 7")
            A("s_nop 7")
        v = [src[h] + r for h in hs for r in range(4)]
        A(f"v_max_f32 v{D}, v{v[0]}, v{v[1]}")
        for k in range(2, len(v), 2): A(f"v_max3_f32 v{D}, v{D}, v{v[k]}, v{v[k+1]}")
        for sw in ("v_permlane32_swap_b32", "v_permlane16_swap_b32"):
            A(f"v_mov_b32 v{T}, v{D}"); A("s_nop 1"); A(f"{sw} v{D}, v{T}"); A("s_nop 1"); A(f"v_max_f32 v{D}, v{D}, v{T}")
        A(f"v_add_f32 v{D}, {float(BIAS)}, v{D}"); A(f"v_ceil_f32 v{D}, v{D}"); A(f"v_max_f32 v{D}, 0, v{D}")
        A(f"v_sub_f32 v{T}, v{NM[qb]}, v{D}"); A(f"v_cvt_pk_bf16_f32 v{T}, v{T}, v{T}"); A(f"v_and_b32 v{T}, 0xffff0000, v{T}")
        A(f"v_sub_f32 v{D}, v{T}, v{NM[qb]}"); A(f"v_mov_b32 v{NM[qb]}, v{T}"); A(f"v_exp_f32 v{FF[qb]}, v{D}")
        if slot: A(f"v_bfi_b32 v{Q(qb,0)+3}, v{MK}, v{T}, v{Q(qb,0)+3}")
        for r in v + [S(0 if ka else 1 - hs[0], qb) + r for r in range(4)]: A(f"v_add_f32 v{r}, v{r}, v{D}")
        for r in [f(qb) + r for f in live for r in range(4)] + ([pt(qb), pt(qb) + 1] if hs == [1] else []): scale(r, qb)
        for k in spills:
            for hh in range(2):
                off = k * 4096 + qb * 1024 + hh * 8
                A(f"ds_read_b64 v[{RD}:{RD+1}], v{VSP} offset:{off}"); A("s_waitcnt lgkmcnt(0)"); scale(RD, qb); scale(RD + 1, qb)
                A(f"ds_write_b64 v{VSP}, v[{RD}:{RD+1}] offset:{off}"); A("s_waitcnt lgkmcnt(0)")
        for h in hs:
            for r in range(4): A(f"v_exp_f32 v{ET[r]}, v{src[h]+r}")
            A("s_nop 1"); A(f"v_cvt_pk_bf16_f32 v{pt(qb)+2*h}, v{ET[0]}, v{ET[1]}"); A(f"v_cvt_pk_bf16_f32 v{pt(qb)+2*h+1}, v{ET[2]}, v{ET[3]}")
    A("s_branch L2_rare_common")
    return o


def rare_common(all_sites):
    FF = ET[4:8]
    o = ["L2_rare_common:"]
    FT = [VT0, VT1, RD, RD + 1]
    for qb in range(4):
        if TR[0]:
            o.append(f"v_lshrrev_b32 v{ET[0]}, 4, v{VLANE16}")
            o.append(f"v_and_b32 v{ET[0]}, 0x30, v{ET[0]}")
            for r in range(4): o.append(f"ds_bpermute_b32 v{FT[r]}, v{ET[0]}, v{FF[qb]} offset:{4*r}")
            o.append("s_waitcnt lgkmcnt(0)")
        for fb in range(16):
            for r in range(4):
                a = O(fb, qb) + r
                t = ET[r]
                o.append(f"v_accvgpr_read_b32 v{t}, a{a}")
            for r in range(4):
                o.append(f"v_mul_f32 v{ET[r]}, v{ET[r]}, v{FT[r] if TR[0] else FF[qb]}")
            for r in range(4):
                o.append(f"v_accvgpr_write_b32 a{O(fb,qb)+r}, v{ET[r]}")
    o.append("s_nop 3")
    for st in all_sites[:-1]:
        o.append(f"s_cmp_eq_u32 s{S_SITE}, {st}")
        o.append(f"s_cbranch_scc1 L2_rr{st}")
    for st in all_sites[::-1]:
        o += [f"L2_rr{st}:"] + REREAD.get(st, []) + ["s_waitcnt lgkmcnt(0)", f"s_branch L2_ret{st}"]
    return o


def srd(o, d, off, nbytes, extra_sgpr=None):
    o.append(f"s_add_u32 s{d}, s4, 0x{off & 0xffffffff:x}")
    o.append(f"s_addc_u32 s{d+1}, s5, 0")
    if extra_sgpr is not None:
        o.append(f"s_add_u32 s{d}, s{d}, s{extra_sgpr}")
        o.append(f"s_addc_u32 s{d+1}, s{d+1}, 0")
    o.append(f"s_mov_b32 s{d+2}, 0x{nbytes:x}")
    o.append(f"s_mov_b32 s{d+3}, 0x00020000")


def epilogue(sg_tail, opt):
    conv = []
    for t in range(8):
        q = []
        for qb in range(4):
            st = (t * 4 + qb) * 4
            tmp = [128 + (qb % 2) * 8 + r for r in range(8)]
            for k in range(8):
                q.append((1, f"v_accvgpr_read_b32 v{tmp[k]}, a{O(2*t+k//4,qb)+k%4}"))
            for r in range(4):
                q.append((1, f"v_cvt_pk_bf16_f32 v{st+r}, v{tmp[2*r]}, v{tmp[2*r+1]}"))
            so = 40 + qb if t < 4 else 44 + qb
            q.append((1, f"buffer_store_dwordx4 {vr(st)}, v{VLANE16}, s[{SRD_OP}:{SRD_OP+3}], s{so} offen offset:{(t%4)*1024}{opt.get('st','')}"))
        conv.append(q)
    nm = len(sg_tail.mf)
    assert nm == 64
    for t in range(8):
        g0 = 8 * t + 12
        if g0 <= nm - 1:
            sg_tail.fill(conv[t], g0, min(g0 + 7, nm - 1), cap=7)
        else:
            sg_tail.put(nm - 1, "s_nop 7")
            for c, x in conv[t]:
                sg_tail.put(nm - 1, x, c)
    return sg_tail.text() + ml_store(opt)


def ml_store(opt):
    o = []
    for qb in range(4):
        l = LA[qb]
        o.append(f"v_mov_b32 v{VT1}, v{l}")
        o.append("s_nop 1")
        o.append(f"v_permlane32_swap_b32 v{l}, v{VT1}")
        o.append("s_nop 1")
        o.append(f"v_add_f32 v{l}, v{l}, v{VT1}")
        o.append(f"v_mov_b32 v{VT1}, v{l}")
        o.append("s_nop 1")
        o.append(f"v_permlane16_swap_b32 v{l}, v{VT1}")
        o.append("s_nop 1")
        o.append(f"v_add_f32 v{ET[2*qb+1]}, v{l}, v{VT1}")
        o.append(f"v_mov_b32 v{ET[2*qb]}, v{M[qb]}")
    o.append(f"v_lshlrev_b32 v{VT0}, 2, v{VLANE16}")
    o.append("s_mov_b64 exec, 0xffff")
    for qb in range(4):
        o.append(f"buffer_store_dwordx2 v[{ET[2*qb]}:{ET[2*qb+1]}], v{VT0}, s[{SRD_ML}:{SRD_ML+3}], s48 offen offset:{qb*1024}{opt.get('st','')}")
    return o


def tail_run(p, T, site0, opt):
    negm = lambda qb: vr(NEGM(qb))
    C = PVC[0]; p0 = p
    if C: p = 1 - p
    VB = [VTP if C and p else VTR, [Q(0, 3), Q(0, 3) + 1], [Q(0, 3) + 2, Q(0, 3) + 3]]
    kidx = lambda k: k - 1 - p0 if C else (1 - p) + (k - 1)
    skip = lambda k, fb: k == 0 and (fb // 8 != p0 if C else fb < 4)
    G0 = 0 if C else 16; K0 = 2 if C else 1
    nsp = max(T - 3, 0)
    def ploc(k, final=True):
        if k == T - 1: return lambda qb: Q(qb, 0)
        if k < nsp and final: return lambda qb, k=k: Q(qb, 1 + k)
        return lambda qb, k=k: P((p + k) & 1, qb)
    def kfr(k, h):
        i = kidx(k)
        fr = []
        for ds in range(8):
            off = (i & 1) * 16384 + foff(h, DS[ds])
            rd = [lambda f, off=off, i=i: f"ds_read_b128 {vr(f)}, v{KB[i >> 1]} offset:{off}"]
            ms = []
            for qb in range(4):
                c = (0 if Z1[0] else negm(qb)) if ds == 0 else vr(S(h, qb))
                ms.append(lambda f, qb=qb, ds=ds, c=c: f"v_mfma_f32_16x16x32_bf16 {vr(S(h,qb))}, {vr(f)}, {vr(Q(qb,ds))}, {c}")
            fr.append((rd, ms))
        return fr
    def vfr(k, fb, final=True):
        i = p + k
        rd = [lambda f, kb=kb: f"ds_read_b64_tr_b16 v[{f+2*kb}:{f+2*kb+1}], v{VB[i >> 1][fb & 1]} offset:{(i & 1) * 16384 + foff(kb, fb >> 1)}" for kb in range(2)]
        pl = ploc(k, final)
        ms = [lambda f, qb=qb: pvm(O(fb, qb), f, pl(qb)) for qb in range(4)]
        return (rd, ms)
    fr = [vfr(0, fb, False) for fb in range(4)] if not C else []
    blocks = [(K0, 1)] + [(k, h) for k in range(K0 + 1, T) for h in range(2)]
    for k, h in blocks: fr += kfr(k, h)
    G = 4 * len(fr)
    lead = opt.get('lead', 44)
    FO = [14, 15] + list(range(14)) if Z1[0] else list(range(16))
    order = []
    fb = 0
    while 4 * len(order) < lead or fb % 2:
        order += [(k, FO[fb]) for k in range(T - 1) if not skip(k, FO[fb])]
        fb += 1
    glast = G + 4 * len(order)
    order += [(T - 1, x) for x in FO[:fb]]
    for x in FO[fb:]:
        order += [(k, x) for k in range(T) if not skip(k, x)]
    done = {}
    for i, (k, x) in enumerate(order): done[x] = G + 4 * i + 3
    fr += [vfr(k, x) for k, x in order]
    sg = build_seg(fr, [], R8[0], G // 4 - 8)
    nm = len(sg.mf)
    if opt.get('fuse'): import gen_f
    if opt.get('timing') and not opt.get('ft') and not opt.get('pt'):
        for i, gg in enumerate([30, 47, 111, G - 1, glast, (glast + nm) // 2, nm - 20]):
            sg.put(gg, f"s_memtime s[{74+2*i}:{75+2*i}]", 0)
    g = 0
    for k in range(K0 + 2, T):
        sg.put(g, f"s_mov_b32 m0, s{S_M0}")
        for j in range(4):
            sg.put(g + 1 + j, f"buffer_load_dwordx4 v{VDMA}, s[{SRD_K}:{SRD_K+3}], s{S_OFF} offen offset:{j*1024}{opt.get('dl','')} lds ; TK{k}")
        if k + 1 < T:
            sg.put(g + 5, f"s_add_u32 s{S_OFF}, s{S_OFF}, {STEP[0]}\ns_add_u32 s{S_M0}, s{S_M0}, 0x4000\ns_and_b32 s{S_M0}, s{S_M0}, 0x1ffff", 2)
        g += 6
    for k in range(K0 + 1, T):
        gb = G0 + 32 * (2 * (k - K0) - 1) - (15 if R8[0] == 4 else 23 if CHAIN[0] == 4 else 29)
        assert gb < min(gi for gi, lu, sl, t in sg.reads if 'b128' in t and lu >= G0 + 32 * (2 * (k - K0) - 1))
        sg.put(gb, f"WAIT TK{k}" if opt.get('fuse') and k > K0 + 1 else f"s_waitcnt vmcnt({4 * (T - 1 - k)})")
        sg.put(gb, "s_barrier")
    sg.put(-1 if C else 1, f"v_add_u32 v{VSP}, s50, v{VLANE16}")
    for b in (1, 2):
        if 2 * b <= kidx(T - 1):
            sg.put(12 + b - 9 * C, f"v_add_u32 v{KB[b]}, 0x{0x8000*b:x}, v{VK}")
            sg.put(12 + b - 9 * C, f"v_and_b32 v{KB[b]}, 0x1ffff, v{KB[b]}")
    GL = G - 32
    for b in (1, 2):
        if 2 * b <= p + T - 1:
            sg.put(GL + 13 + b, f"v_add_u32 v{VB[b][0]}, 0x{0x8000*b:x}, v{VB[0][0]}")
            sg.put(GL + 13 + b, f"v_and_b32 v{VB[b][0]}, 0x1ffff, v{VB[b][0]}")
            sg.put(GL + 16, f"v_xor_b32 v{VB[b][1]}, 32, v{VB[b][0]}")
    for k in range(nsp):
        gs = (0 if k == 0 else 40) if C else 16 if k == 0 else 16 + 32 * 2 * k
        for qb in range(4):
            sg.put(gs + qb, f"ds_write_b128 v{VSP}, {vr(ploc(k, False)(qb))} offset:{k*4096 + qb*1024}")
            sg.put(GL + 4 * (k + 2) + 1 + (qb & 1) + (qb >> 1) * 4, f"ds_read_b128 {vr(ploc(k)(qb))}, v{VSP} offset:{k*4096 + qb*1024}")
    rare = []
    sites = []
    sms = [(k, h) for k in range(K0, T) for h in range(2)]
    cap = opt.get('tcap', 3)
    for i, (k, h) in enumerate(sms):
        st = site0 + i
        sites.append(st)
        g0 = (5 if C else 6) if i == 0 else G0 + 32 * i + (4 if i == len(sms) - 2 else 1)
        g1 = G0 + 32 * i + 31 if i < len(sms) - 1 else glast - 2
        inpl = R8[0] == 8 and i < len(sms) - 2
        q = softmax_queue(h, ploc(k, False), st, None, inpl)
        c = 2 if (i == 0 and not C or i == len(sms) - 1) else cap
        ge = sg.fill(q[:-1], g0, g1, cap=c)
        gbr = max(ge, g1 - 2) if i == len(sms) - 2 or i == 0 or (h == 0 and 1 <= k - 1 < nsp) else min(ge + opt.get('tcs', 0), g1)
        sg.put(gbr, q[-1][1]); note_site(sg, gbr, st)
        late = i >= len(sms) - 2
        live = [ploc(j, late) for j in range(k) if late or j >= nsp or (j > 0 and i < 2 * j)]
        spl = [j for j in range(nsp) if j < k and not late and not (j > 0 and i < 2 * j)]
        if C:
            assert T == 5 and ge >= 46 or i != 1
            live = [ploc(j, late) for j in range(k) if late or j >= nsp or (j == 1 and i == 0)]
            spl = [j for j in range(nsp) if not late and not (j == 1 and i == 0)]
        assert not Z1[0] or i == len(sms) - 1 or gbr % 32 >= 8
        if Z1[0]: rare += rare_z(f"t{p}_{i}", [st], [h], ploc(k, False), live, spl, None, not late)
        else: rare += rare_code(f"t{p}_{i}", h, [st], ploc(k, False), live, spl, (KB[1], (kidx(k) // 2 - 1) * 0x8000, (kidx(k) & 1) * 16384) if inpl else None)
        if opt.get('verbose'): print("tail", p, "sm", k, h, "end", ge, "of", g1, "live", [f(0) for f in live], "spill", spl)
    if opt.get('fuse'):
        ge = sg.fill(gen_f.early1(p, opt), 6 if C else 12, 32, cap=3)
        eg = opt.get('eg2' if C else 'eg', [34, G - 60, G - 4]); eg = [x if x > 0 else G + x for x in eg]; assert eg[1] >= (96 if C else 112) and eg[2] >= G - 16 and eg[0] > (17 if C else 33)
        for f, g0 in zip((gen_f.early_x, gen_f.early_hf, gen_f.early_h), eg):
            ge = sg.fill(f(p, opt) + (gen_f.early_tlb(p, opt) if opt.get('tlb') and f is gen_f.early_x else []), max(g0, ge), nm - 1, cap=opt.get('ecap', 3))
            if opt.get('verbose'): print("early end", ge)
    g = glast
    ccap = opt.get('ccap', 3)
    def mls():
        z = ["s_mov_b32 exec_lo, 0x33333333", "s_mov_b32 exec_hi, 0x33333333"]
        for qb in range(4):
            if qb: z.append(f"s_lshr_b32 s3, s{40+qb}, 2")
            z.append(f"buffer_store_dwordx2 {vr(ET[2*qb], 2)}, v{VT0}, s[{SRD_ML}:{SRD_ML+3}], s{3 if qb else 48} offen{opt.get('st','')} ; MLS")
        return (3, "\n".join(z + ["s_mov_b64 exec, -1"]))
    if Z1[0]:
        L = VLANE16
        q = [(1, f"v_lshrrev_b32 v228, 4, v{L}"), (1, "v_and_b32 v228, 0x3c, v228")] + [(1, f"v_sub_f32 v{LA[qb]}, 0, v{LA[qb]}") for qb in range(4)]
        q += [(1, f"ds_bpermute_b32 v{ET[2*qb]}, v228, v{LA[qb]}") for qb in range(4)]
        q += [(1, x) for x in (f"v_bfe_u32 v228, v{L}, 4, 1", f"v_mul_u32_u24 v228, 768, v228", f"v_lshl_add_u32 v228, s37, 7, v228", f"v_lshrrev_b32 v{VT0}, 6, v{L}", f"v_lshl_add_u32 v{VT0}, v{VT0}, 3, v228")]
        g = gml = sg.fill(q, g, nm - 1, cap=opt['mle'])
    elif opt.get('mle'):
        q = [(1, f"v_lshlrev_b32 v{VT0}, 2, v{VLANE16}")] if not opt.get('fuse') else [(1, x) for x in gen_f.ml_addr(VT0, VLANE16, 228)]
        for f in ("v_mov_b32 v{e}, v{l}", "v_permlane32_swap_b32 v{l}, v{e}", "v_add_f32 v{l}, v{l}, v{e}", "v_mov_b32 v{e}, v{l}",
                  "v_permlane16_swap_b32 v{l}, v{e}", "v_add_f32 v{e1}, v{l}, v{e}", "v_sub_f32 v{e}, 0, v{m}"):
            q += [(1, f.format(e=ET[2*qb], e1=ET[2*qb+1], l=LA[qb], m=NEGM(qb))) for qb in range(4)]
        if opt.get('fuse'):
            z = ["s_mov_b32 exec_hi, 0"]
            for qb in range(4):
                if qb: z.append(f"s_lshr_b32 s3, s{40+qb}, 2")
                z.append(f"buffer_store_dwordx2 v[{ET[2*qb]}:{ET[2*qb+1]}], v{VT0}, s[{SRD_ML}:{SRD_ML+3}], s{3 if qb else 48} offen{opt.get('st','')} ; MLS")
            q.append((3, "\n".join(z + ["s_mov_b32 exec_hi, -1"])))
        else: q.append((3, "\n".join(ml_store(opt)[-5:] + ["s_mov_b64 exec, -1"])))
        g = sg.fill(q, g, nm - 1, cap=opt['mle'])
    for tn, t in enumerate(x // 2 for x in FO[::2]):
        q = []
        for qb in range(4):
            stg = Q(qb, 4 + t % 4)
            tmp = [128 + (qb % 4) * 8 + r for r in range(8)]
            for k in range(8):
                q.append((1, f"v_accvgpr_read_b32 v{tmp[k]}, a{O(2*t+k//4,qb)+k%4}"))
            for r in range(4):
                q.append((1, f"v_cvt_pk_bf16_f32 v{stg+r}, v{tmp[2*r]}, v{tmp[2*r+1]}"))
            so = 40 + qb if t < 4 else 44 + qb
            q.append((1, f"buffer_store_dwordx4 {vr(stg)}, v{VLANE16}, s[{SRD_OP}:{SRD_OP+3}], s{so} offen offset:{(t%4)*1024}{opt.get('st','')} ; ST{t}"))
        if opt.get('nost'): q = [x for x in q if 'store' not in x[1]]
        if opt.get('nocv'): q = [x for x in q if 'store' in x[1]]
        cc = ccap[tn] if isinstance(ccap, list) else ccap
        px = opt.get('plainx', 4 * opt.get('plain', 8))
        q = [(c, x.replace(opt.get('st', ''), '') if (4 * t + i // 13 >= px if px >= 0 else 4 * t + i // 13 < -px) else x) for i, (c, x) in enumerate(q)]
        if opt.get('half'):
            qa = [x for i, x in enumerate(q) if i % 13 in (0, 1, 2, 3, 8, 9)]
            q = [x for i, x in enumerate(q) if i % 13 not in (0, 1, 2, 3, 8, 9)]
            g = sg.fill(qa, max(g, done[2*t] + 3), nm - 1, cap=cc)
        g0 = max(g, max(done[2*t], done[2*t+1]) + 3)
        if g0 > nm - 1:
            if not opt.get('half'): sg.put(nm - 1, "s_nop 7")
            g0 = nm - 1
        if opt.get('fuse'):
            i0 = [i for i, x in enumerate(q) if 'buffer_store' in x[1]][0]
            q.insert(i0 + 1, (1, f"ds_write_b128 v{VSP}, {vr(Q(0, 4 + t % 4))} offset:{t*1024}"))
        if Z1[0] and t == 7:
            q += [(1, f"v_mov_b32_dpp v{ET[2*qb+1]}, v{132 + 8*qb + r} row_newbcast:15 row_mask:0xf bank_mask:0x{1 << r:x}") for r in range(4) for qb in range(4)] + [mls()]
        g = sg.fill(q, g0, nm - 1, cap=cc)
        assert not Z1[0] or g > gml + 16
        if opt.get('verbose'): print("  conv", t, g0, g, "of", nm)
        if opt.get('fuse') and t == opt.get('f1t', 6): g = sg.fill(gen_f.flag1(opt, opt.get('f1m', 'ST3')), g, nm - 1, cap=3)
    if opt.get('fuse'):
        return gen_f.fix_waits(sg.text() + ["WAIT HLD"]), rare + gen_f.hl_spin(p), sites
    return sg.text() + ([] if opt.get('mle') else ml_store(opt)), rare, sites


def tail_qs(p0, site0, opt):
    import gen_f
    p = 1 - p0; X = [228, 229]
    W = [VTR, X, VTP] if p0 else [VTP, VTR, X]
    kidx = lambda k: k - 1 - p0
    gen_f.EV.update(tmp=231, hf=Q(1, 7), cp=94, wf=176)
    def kfr(k, h, qs):
        i = kidx(k)
        return [([lambda f, ds=ds: f"ds_read_b128 {vr(f)}, v{KB[i >> 1]} offset:{(i & 1) * 16384 + foff(h, ds)}"],
                 [lambda f, qb=qb, ds=ds: f"v_mfma_f32_16x16x32_bf16 {vr(S(h,qb))}, {vr(f)}, {vr(Q(qb,ds))}, {vr(S(h,qb)) if ds else vr(NEGM(qb))}" for qb in qs]) for ds in range(8)]
    pa = lambda k: lambda qb: P((p + k) & 1, qb)
    pb = lambda k: pa(k) if k < 2 else lambda qb: Q(qb - 2, k - 2)
    def vfr(k, fb, qs, pl):
        i = p + k
        return (vread((i & 1) * 16384, fb, W[i >> 1]), [lambda f, qb=qb: pvm(O(fb, qb), f, pl(k)(qb)) for qb in qs])
    QA, QB = [0, 1], [2, 3]
    half = lambda k: range(8 * ((p0 + k + 1) & 1), 8 * ((p0 + k + 1) & 1) + 8)
    vv = lambda k: [vfr(j, fb, QA, pa) for fb in half(k) for j in (k - 1, k) if j < 5]
    fr = kfr(2, 1, QA) + vv(1) + kfr(3, 0, QA) + kfr(3, 1, QA) + vv(2) + kfr(4, 0, QA) + kfr(4, 1, QA) + vv(3) + vv(4) + vv(5)
    GB = 2 * len(fr); assert GB == 224
    vb = lambda k: [vfr(j, fb, QB, pb) for fb in half(k) for j in (k - 1, k)]
    fr += kfr(2, 1, QB) + vb(1) + kfr(3, 0, QB) + kfr(3, 1, QB) + vb(2) + kfr(4, 0, QB) + kfr(4, 1, QB)
    G = 2 * len(fr)
    nl = opt.get('qlead', 4)
    order = [(2, x) for x in half(3)] + [(3, x) for x in range(nl)]
    glast = G + 2 * len(order)
    order += [(4, x) for x in range(nl)] + [(k, x) for x in range(nl, 16) for k in (3, 4)]
    fr += [vfr(k, x, QB, pb) for k, x in order]
    sg = build_seg(fr, [], 8, None, R8[0], opt.get('qwg', 2))
    nm = len(sg.mf)
    done = {}
    for g, t in enumerate(sg.mf):
        if ' a[' in t: a = int(t.split('a[')[1].split(':')[0]); done[(a // 16, a // 4 % 4)] = g
    if opt.get('timing') and not opt.get('ft') and not opt.get('pt'):
        for i, gg in enumerate([30, 111, GB - 1, G - 1, glast, (glast + nm) // 2, nm - 20]): sg.put(gg, f"s_memtime s[{74+2*i}:{75+2*i}]", 0)
    sg.put(0, f"s_mov_b32 m0, s{S_M0}")
    for j in range(4): sg.put(1 + 2 * j, f"buffer_load_dwordx4 v{VDMA}, s[{SRD_K}:{SRD_K+3}], s{S_OFF} offen offset:{j*1024}{opt.get('dl','')} lds ; TK4")
    first = lambda g0: min(gi for gi, lu, sl, t in sg.reads if lu >= g0 and 'b128' in t)
    gb3, gb4 = first(48) - 2, first(112) - 2
    sg.put(gb3, "s_waitcnt vmcnt(4)"); sg.put(gb3, "s_barrier"); sg.put(gb4, "WAIT TK4"); sg.put(gb4, "s_barrier")
    for b, g in ((1, -1), (2, 20)):
        if W[b] is not VTR:
            for t in (f"v_add_u32 v{W[b][0]}, 0x{0x8000 * (b - W.index(VTR)):x}, v{VTR[0]}", f"v_and_b32 v{W[b][0]}, 0x1ffff, v{W[b][0]}", f"v_xor_b32 v{W[b][1]}, 32, v{W[b][0]}"): sg.put(g, t); g += g >= 0
    sg.put(2, f"v_add_u32 v{KB[1]}, 0x8000, v{VK}"); sg.put(4, f"v_and_b32 v{KB[1]}, 0x1ffff, v{KB[1]}")
    rare = []; sites = []; cap = opt.get('qcap', [2, 2, 3])
    g = 1
    for k in (2, 3, 4):
        b0 = 64 * (k - 2); dead = b0 + 44
        qq = [softmax_queue(h, pa(k), site0 + len(sites) + h, opt.get('smp2'), True, QA) for h in range(2)]
        cv = [[x for x in q if 'cvt' in x[1]] for q in qq]; qq = [[x for x in q if 'cvt' not in x[1]] for q in qq]
        for i, x in enumerate(cv[0]): sg.put(dead + 1 + 2 * (i // 2) + (i // 2 if k < 4 else 0), x[1])
        if k == 4:
            for i, x in enumerate(cv[1]): sg.put(dead + 2 + 2 * (i // 2), x[1])
        for h in range(2):
            st = site0 + len(sites); sites.append(st)
            lim = dead if h == 0 or k == 4 else b0 + 61
            g = sg.fill(qq[h][:-1], max(g, b0 + 5 if h == 0 and k > 2 else b0 + 21 * h), lim, cap=cap[0] + (k == 4))
            g = sg.fill(qq[h][-1:], min(max(g + 2, dead + 5 if h and k < 4 else 0), lim), lim, cap=3); note_site(sg, g, st)
            if opt.get('verbose'): print("  A sm", k, h, "branch", g, "lim", lim)
            om = h == 1 and k == 4
            rare += rare_code(f"a{p}_{k}", h, [st], pa(k), [pa(k - 1)] + ([pa(k)] if h == 0 or om else []), (), (KB[1], (kidx(k) // 2 - 1) * 0x8000, (kidx(k) & 1) * 16384), False, QA, om)
        if k < 4: g = sg.fill(cv[1], g, b0 + 63, cap=3)
    sms = [(k, h) for k in (2, 3, 4) for h in range(2)]
    for i, (k, h) in enumerate(sms):
        st = site0 + len(sites); sites.append(st)
        b0 = GB + 64 * (k - 2)
        g1 = glast - 2 if k == 4 else b0 + 47 if h == 0 else b0 + 63
        q = softmax_queue(h, pb(k), st, None, False, QB, lambda qb: Q(qb - 2, 3))
        g = sg.fill(q[:-1], opt.get('qb0', GB - 40) if i == 0 else max(g, b0 + 5 + 16 * h), g1, cap=cap[1 + (k == 4)])
        g = sg.fill(q[-1:], min(g + 2, g1), g1, cap=4); note_site(sg, g, st)
        if opt.get('verbose'): print("  B sm", k, h, "branch", g, "lim", g1)
        rare += rare_code(f"b{p}_{k}", h, [st], pb(k), [pb(j) for j in range(k)], (), None, True, QB)
    ge = sg.fill(gen_f.early1(p, opt), 8, gb3, cap=3)
    for f, g0 in zip((gen_f.early_x, gen_f.early_hf, gen_f.early_h), opt.get('egq', [0, 146, 190])):
        q = f(p, opt)
        if f is gen_f.early_h: wf = [x for x in q if f"v{178}" in x[1]]; q = [x for x in q if x not in wf]
        ge = sg.fill(q, max(g0, ge, gb3 + 1), nm - 1, cap=3)
        if opt.get('verbose'): print("  early end", ge)
    def ml(qs, r):
        q = [(1, x) for x in gen_f.ml_addr(r + 4, VLANE16, r + 5)]
        for f in ("v_mov_b32 v{e}, v{l}", "s_nop 0\nv_permlane32_swap_b32 v{l}, v{e}", "s_nop 0\nv_add_f32 v{l}, v{l}, v{e}", "v_mov_b32 v{e}, v{l}",
                  "s_nop 0\nv_permlane16_swap_b32 v{l}, v{e}", "s_nop 0\nv_add_f32 v{e1}, v{l}, v{e}", "v_sub_f32 v{e}, 0, v{m}"):
            q += [(1, f.format(e=r + 2 * (qb & 1), e1=r + 2 * (qb & 1) + 1, l=LA[qb], m=NEGM(qb))) for qb in qs]
        z = ["s_mov_b32 exec_hi, 0"]
        for qb in qs:
            if qb < 3: z.append(f"s_lshr_b32 s3, s{40+qb}, 2")
            z.append(f"buffer_store_dwordx2 {vr(r + 2 * (qb & 1), 2)}, v{r+4}, s[{SRD_ML}:{SRD_ML+3}], s{3 if qb < 3 else 48} offen{opt.get('st','')}")
        return q + [(3, "\n".join(z + ["s_mov_b32 exec_hi, -1"]))]
    cn = [0]
    def conv(t, qb, mk):
        n = cn[0]; cn[0] += 1
        stg = Q(n % 2, 4 + n // 2 % 4); tmp = [128 + (n % 2) * 16 + r for r in range(8)]
        q = [(1, f"v_accvgpr_read_b32 v{tmp[k]}, a{O(2*t+k//4,qb)+k%4}") for k in range(8)] + [(1, f"v_cvt_pk_bf16_f32 v{stg+r}, v{tmp[2*r]}, v{tmp[2*r+1]}") for r in range(4)]
        q.append((1, f"buffer_store_dwordx4 {vr(stg)}, v{VLANE16}, s[{SRD_OP}:{SRD_OP+3}], s{(40 if t < 4 else 44) + qb} offen offset:{(t%4)*1024}{opt.get('st','')} ; {mk}"))
        if qb == 3: q.append((1, f"ds_write_b128 v{VSP}, {vr(stg)} offset:{t*1024}"))
        return q
    cc = opt.get('qcc', [4, 5])
    g = 0
    for t in sorted(range(8), key=lambda t: done[(2 * t + 1, 1)]):
        for qb in QA: g = sg.fill(conv(t, qb, 'STA'), max(g, done[(2 * t + 1, qb)] + 5), nm - 1, cap=cc[0])
    tx = sg.text(); assert max(i for i, x in enumerate(tx) if 'v_cmp_ne_u64_e64' in x) < min(i for i, x in enumerate(tx) if x.startswith(f"v_cvt_pk_bf16_f32 v{Q(1, 7)},"))
    if opt.get('verbose'): print("  conv A end", g, "G", G, "glast", glast, "nm", nm)
    g = sg.fill([(1, f"v_add_u32 v{VSP}, s50, v{VLANE16}")] + ml(QA, 160) + wf, g, nm - 1, cap=cc[0])
    pq = []
    for rb in range(3): pq.append((1, f"s_lshr_b32 s{(40, 41, 44)[rb]}, s{gen_f.XO[rb]}, 13"))
    gen_f.poll_addr(lambda t: pq.append((1 + t.count("\n"), t)), 180, 182, (40, 41, 44), 's[94:95]')
    pq += [(1, f"v_lshlrev_b32 v181, 3, v{VLANE16}"), (1, f"buffer_load_dwordx2 v[182:183], v180, s[16:19], 0 offen offset:8 sc1 ; PL1")]
    tq = [(1, "WAIT PL1"), (1, f"v_cmp_ne_u64_e64 s[94:95], s[{gen_f.S_TAG}:{gen_f.S_TAG+1}], v[182:183]"),
          (4, f"s_cmp_lg_u64 s[94:95], 0\ns_cbranch_scc1 LQ_nt{p}\n" + "\n".join(f"buffer_load_dword v{164 + i}, v181, s[16:19], s{gen_f.TO[i]} offen ;cond" for i in range(4)) + f"\nLQ_nt{p}:")]
    if opt.get('qpf', 1):
        for q, d in zip((gen_f.flag1(opt, 'STA', 166), pq, tq), opt.get('qev', [20, 30, 40])):
            g = sg.fill(q, min(g + d, nm - 1), nm - 1, cap=cc[0])
            if opt.get('verbose'): print("  event end", g)
    g = sg.fill(ml(QB, 136), glast, nm - 1, cap=cc[1])
    for t in range(8):
        for qb in QB: g = sg.fill(conv(t, qb, 'STB'), min(max(g, done[(2 * t + 1, qb)] + 5), nm - 1), nm - 1, cap=cc[1])
        if opt.get('verbose'): print("  conv B", t, "end", g)
    if opt.get('verbose'): print('  units per 32 gaps', [sum(sg.used(g) for g in range(a, a + 32)) for a in range(0, nm, 32)], 'max', max(sg.used(g) for g in range(nm - 1)), 'last', sg.used(nm - 1))
    return gen_f.fix_waits(hazard.fix(sg.text()) + ["WAIT HLD"]), rare + gen_f.hl_spin(p), sites


def light(o, opt, TT):
    A = o.append
    LB0 = 0x16000
    KF = 32; VF = 96; OV = lambda fb: 160 + fb * 4 if fb < 8 else 0
    QL = lambda ds: ds * 4
    KFr = lambda h, ds: 32 + (h * 8 + ds) * 4
    VFr = lambda fb: 96 + fb * 4
    SL = [160, 164]; PL = 168; MM, LL, FF, T0, T1 = 172, 173, 174, 175, 176
    AK, AV0, AV1 = 177, 178, 179
    TM = 180
    MK = NEGM(0)
    S_N, S_SL, S_DS, S_T = 51, 52, 53, 54
    A("LT_start:")
    A("s_waitcnt lgkmcnt(0)")
    if opt.get('mg'):
        import gen_f; gen_f.poll_all(A, o, "LT_poll", SRD_K, 0, 234)
    H = opt.get('l2h')
    if H:
        A(f"s_add_u32 s{S_CNT}, s{S_CNT}, {TT - PVC[0] - H}")
        A(f"s_add_u32 s3, s{S_OFF}, {(H - 1) * 16384}")
        A("s_cmp_eq_u32 s36, 0")
        A(f"s_cselect_b32 s{S_CNT}, {H}, s{S_CNT}")
        A("s_cselect_b32 s39, s39, s3")
        A(f"s_cselect_b32 s{S_MASK}, s{S_MASK}, 0")
        A(f"s_cselect_b32 s3, 0, {H * 16384}")
        A(f"s_add_u32 s{S_OFF}, s{S_OFF}, s3")
    srd(o, SRD_K, H_OFF, 0)
    A(f"s_mov_b32 s{SRD_K+2}, s49")
    srd(o, SRD_Q, QF_OFF, QF_BYTES)
    A(f"s_mov_b32 s40, {39 * 16 * 8192}")
    A(f"s_mov_b32 s44, {39 * 16 * 8192 + 4096}")
    for ds in range(8):
        A(f"buffer_load_dwordx4 {vr(QL(ds))}, v{VLANE16}, s[{SRD_Q}:{SRD_Q+3}], s{40 if ds < 4 else 44} offen offset:{(ds%4)*1024}{opt.get('dl','')}")
    def dma(so):
        for w in range(4):
            A(f"s_add_u32 m0, s{S_DS}, {LB0 + w*4096}")
            A(f"s_add_u32 s{S_T}, s{so}, {w*128}")
            for k in range(4):
                A(f"buffer_load_dwordx4 v{VDMA}, s[{SRD_K}:{SRD_K+3}], s{S_T} offen offset:{k*1024}{opt.get('dl','')} lds")
        A(f"s_add_u32 s{S_DS}, s{S_DS}, 0x4000")
        A(f"s_and_b32 s{S_DS}, s{S_DS}, 0xffff")
    A(f"s_mov_b32 s{S_DS}, 0")
    dma(39)
    for i in range(2):
        dma(S_OFF)
        A(f"s_add_u32 s{S_OFF}, s{S_OFF}, 0x4000")
    A(f"s_mul_i32 s35, s37, 0x{OP_STRIDE:x}")
    srd(o, SRD_OP, OP_OFF, QF_BYTES, 35)
    srd(o, SRD_ML, ML_OFF, NB16 * (2048 if opt.get('fuse') else 1024))
    A(f"s_lshl_b32 s48, s37, 3")
    A(f"s_add_u32 s48, s48, {39 * 16 * 1024}")
    if opt.get('fuse'): A(f"s_mov_b32 s48, {39 * 16 * 2048}")
    lds_addrs(A)
    A(f"s_add_u32 s{S_N}, s{S_CNT}, {0 if H else TT - PVC[0] or 2}")
    A(f"s_mov_b32 s{S_SL}, {LB0}")
    A(f"v_mov_b32 v{MM}, 0xff800000")
    A(f"v_mov_b32 v{LL}, 0")
    for r in range(64): A(f"v_accvgpr_write_b32 a{r}, 0")
    A("LT_loop:")
    dma(S_OFF)
    A(f"s_add_u32 s{S_OFF}, s{S_OFF}, 0x4000")
    A(f"v_add_u32 v{AK}, s{S_SL}, v{VK}")
    A(f"v_add_u32 v{AV0}, s{S_SL}, v{VTR[0]}")
    A(f"v_add_u32 v{AV1}, s{S_SL}, v{VTR[1]}")
    A(f"s_add_u32 s{S_SL}, s{S_SL}, 0x4000")
    A(f"s_cmp_eq_u32 s{S_SL}, {LB0 + 0x10000}")
    A(f"s_cselect_b32 s{S_SL}, {LB0}, s{S_SL}")
    A("s_waitcnt vmcnt(48)")
    for ds in range(8):
        for h in range(2):
            A(f"ds_read_b128 {vr(KFr(h, ds))}, v{AK} offset:{foff(h, ds)}")
    for ds in range(8):
        A(f"s_waitcnt lgkmcnt({14 - 2*ds})")
        for h in range(2):
            A(f"v_mfma_f32_16x16x32_bf16 {vr(SL[h])}, {vr(KFr(h, ds))}, {vr(QL(ds))}, {vr(SL[h]) if ds else vr(MK)}")
    for fb in range(16):
        for kb in range(2):
            A(f"ds_read_b64_tr_b16 v[{VFr(fb)+2*kb}:{VFr(fb)+2*kb+1}], v{AV1 if fb & 1 else AV0} offset:{foff(kb, fb >> 1)}")
    for r in range(4): A(f"v_mov_b32 v{MK+r}, 0")
    A("s_nop 7")
    A(f"v_max3_f32 v{T0}, v{SL[0]}, v{SL[0]+1}, v{SL[0]+2}")
    A(f"v_max3_f32 v{T0}, v{T0}, v{SL[0]+3}, v{SL[1]}")
    A(f"v_max3_f32 v{T0}, v{T0}, v{SL[1]+1}, v{SL[1]+2}")
    A(f"v_max3_f32 v{T0}, v{T0}, v{SL[1]+3}, v{MM}")
    for sw in ("v_permlane32_swap_b32", "v_permlane16_swap_b32"):
        A(f"v_mov_b32 v{T1}, v{T0}")
        A("s_nop 1")
        A(f"{sw} v{T0}, v{T1}")
        A("s_nop 1")
        A(f"v_max_f32 v{T0}, v{T0}, v{T1}")
    if TR[0]: A(f"v_ceil_f32 v{T0}, v{T0}")
    A(f"v_sub_f32 v{FF}, v{MM}, v{T0}")
    A(f"v_exp_f32 v{FF}, v{FF}")
    A(f"v_mov_b32 v{MM}, v{T0}")
    for r in range(8): A(f"v_sub_f32 v{SL[0]+r}, v{SL[0]+r}, v{MM}")
    for r in range(8): A(f"v_exp_f32 v{SL[0]+r}, v{SL[0]+r}")
    A(f"v_mul_f32 v{LL}, v{LL}, v{FF}")
    for r in range(4): A(f"v_cvt_pk_bf16_f32 v{PL+r}, v{SL[0]+2*r}, v{SL[0]+2*r+1}")
    A(f"v_cmp_neq_f32 vcc, 1.0, v{FF}")
    for r in range(8): A(f"v_add_f32 v{LL}, v{LL}, v{SL[0]+r}")
    A("s_cbranch_vccz LT_nors")
    if TR[0]:
        A(f"v_lshrrev_b32 v{T1}, 4, v{VLANE16}")
        A(f"v_and_b32 v{T1}, 0x30, v{T1}")
        for r in range(4): A(f"ds_bpermute_b32 v{188+r}, v{T1}, v{FF} offset:{4*r}")
        A("s_waitcnt lgkmcnt(0)")
    for c in range(8):
        for r in range(8): A(f"v_accvgpr_read_b32 v{TM+r}, a{8*c+r}")
        for r in range(8): A(f"v_mul_f32 v{TM+r}, v{TM+r}, v{188 + r % 4 if TR[0] else FF}")
        for r in range(8): A(f"v_accvgpr_write_b32 a{8*c+r}, v{TM+r}")
    A("LT_nors:")
    A("s_waitcnt lgkmcnt(0)")
    A("s_nop 1")
    for fb in range(16):
        A(pvm(fb * 4, VFr(fb), PL))
    A(f"s_sub_u32 s{S_N}, s{S_N}, 1")
    A(f"s_cmp_lg_u32 s{S_N}, 0")
    A("s_cbranch_scc1 LT_loop")
    A("s_nop 15")
    if H:
        srd(o, 16, 0, 256 << 20)
        A(f"s_mul_i32 s52, s37, 0x5000"); A(f"s_add_u32 s52, s52, 0x{LT_OFF:x}")
        A(f"s_add_u32 s53, s37, {gen_f.LF0}"); A(f"s_lshl_b32 s53, s53, 7"); A(f"s_add_u32 s53, s53, 0x{gen_f.FLAG_OFF:x}")
        A("s_waitcnt vmcnt(0)")
        A("s_cmp_eq_u32 s36, 0"); A("s_cbranch_scc1 LT_merge")
        for k in range(16):
            A(f"buffer_store_dwordx4 {ar(4*k)}, v{VLANE16}, s[16:19], s52 offen offset:{(k % 4) * 1024} sc1")
            if k % 4 == 3: A("s_add_u32 s52, s52, 4096")
        A(f"buffer_store_dwordx2 v[{MM}:{LL}], v{VLANE16}, s[16:19], s52 offen sc1")
        A("s_waitcnt vmcnt(0)")
        gen_f.publish(A, 16, 53, T1, opt, VLANE16)
        A("s_branch L2_fin")
        A("LT_merge:")
        gen_f.spin(A, "LT_mw", ["buffer_load_dwordx2 v[0:1], off, s[16:19], s53 sc1"], [0])
        for k in range(16):
            A(f"buffer_load_dwordx4 {vr(96 + 4*k)}, v{VLANE16}, s[16:19], s52 offen offset:{(k % 4) * 1024} sc1")
            if k % 4 == 3: A("s_add_u32 s52, s52, 4096")
        A(f"buffer_load_dwordx2 v[0:1], v{VLANE16}, s[16:19], s52 offen sc1")
        A(f"v_lshrrev_b32 v{T1}, 4, v{VLANE16}"); A(f"v_and_b32 v{T1}, 0x30, v{T1}")
        A("s_waitcnt vmcnt(0)")
        A(f"v_max_f32 v{T0}, v{MM}, v0")
        A(f"v_sub_f32 v2, v{MM}, v{T0}"); A(f"v_sub_f32 v3, v0, v{T0}"); A(f"v_mov_b32 v{MM}, v{T0}")
        A("v_exp_f32 v2, v2"); A("v_exp_f32 v3, v3"); A("s_nop 0")
        A(f"v_mul_f32 v{LL}, v{LL}, v2"); A(f"v_fmac_f32 v{LL}, v1, v3")
        for r in range(4): A(f"ds_bpermute_b32 v{4+r}, v{T1}, v2 offset:{4*r}"); A(f"ds_bpermute_b32 v{8+r}, v{T1}, v3 offset:{4*r}")
        A("s_waitcnt lgkmcnt(0)")
    for t in range(8):
        for r in range(8): A(f"v_accvgpr_read_b32 v{TM+r}, a{8*t+r}")
        if H:
            for r in range(8): A(f"v_mul_f32 v{TM+r}, v{TM+r}, v{4 + r % 4}")
            for r in range(8): A(f"v_fmac_f32 v{TM+r}, v{96 + 8*t + r}, v{8 + r % 4}")
        for r in range(4): A(f"v_cvt_pk_bf16_f32 v{32+4*t+r}, v{TM+2*r}, v{TM+2*r+1}")
        A(f"buffer_store_dwordx4 {vr(32+4*t)}, v{VLANE16}, s[{SRD_OP}:{SRD_OP+3}], s{40 if t < 4 else 44} offen offset:{(t%4)*1024}{opt.get('st','')}")
    for sw in ("v_permlane32_swap_b32", "v_permlane16_swap_b32"):
        A(f"v_mov_b32 v{T1}, v{LL}")
        A("s_nop 1")
        A(f"{sw} v{LL}, v{T1}")
        A("s_nop 1")
        A(f"v_add_f32 v{LL}, v{LL}, v{T1}")
    A(f"v_lshlrev_b32 v{T0}, 2, v{VLANE16}")
    A("s_mov_b64 exec, 0xffff")
    if opt.get('fuse'):
        import gen_f
        A("s_mov_b64 exec, -1")
        for x in gen_f.ml_addr(T0, VLANE16, T1): A(x)
        A("s_mov_b32 exec_hi, 0")
    A(f"buffer_store_dwordx2 v[{MM}:{LL}], v{T0}, s[{SRD_ML}:{SRD_ML+3}], s48 offen{opt.get('st','')}")
    if opt.get('fuse'):
        import gen_f
        srd(o, 16, gen_f.FLAG_OFF, gen_f.NFLAG * gen_f.fstr(opt))
        A(f"s_add_u32 s48, s37, {156 * 8}")
        A(f"s_mul_i32 s48, s48, {gen_f.fstr(opt)}")
    A("s_waitcnt vmcnt(0)")
    if opt.get('fuse'): gen_f.publish(A, 16, 48, T1, opt, VLANE16)
    A("s_branch L2_fin")


def lds_addrs(A):
    L = VLANE16
    A(f"v_bfe_u32 v{VK}, v{L}, 4, 3")
    A(f"v_lshlrev_b32 v{VK}, 6, v{VK}")
    A(f"v_bfe_u32 v{VT0}, v{L}, 7, 1")
    A(f"v_lshl_or_b32 v{VK}, v{VT0}, 10, v{VK}")
    A(f"v_bfe_u32 v{VT0}, v{L}, 8, 2")
    A(f"v_lshl_or_b32 v{VK}, v{VT0}, 4, v{VK}")
    A(f"v_bfe_u32 v{VT0}, v{L}, 6, 1")
    A(f"v_lshlrev_b32 v{VT0}, 5, v{VT0}")
    A(f"v_xor_b32 v{VK}, v{VK}, v{VT0}")
    A(f"v_and_b32 v{VTR[0]}, 0x1c0, v{L}")
    A(f"v_bfe_u32 v{VT0}, v{L}, 9, 1")
    A(f"v_lshl_or_b32 v{VTR[0]}, v{VT0}, 10, v{VTR[0]}")
    A(f"v_bfe_u32 v{VT0}, v{L}, 8, 1")
    A(f"v_lshl_or_b32 v{VTR[0]}, v{VT0}, 5, v{VTR[0]}")
    A(f"v_bfe_u32 v{VT0}, v{L}, 4, 2")
    A(f"v_lshl_or_b32 v{VTR[0]}, v{VT0}, 3, v{VTR[0]}")
    A(f"v_xor_b32 v{VTR[1]}, 32, v{VTR[0]}")
    A(f"v_bfe_i32 v{VT0}, v{L}, 8, 1")
    for r in range(4):
        A(f"v_and_b32 v{NEGM(0)+r}, s{S_MASK}, v{VT0}")


def lds_addrs_list():
    z = []; lds_addrs(z.append); return z


def prologue2(o, opt, T):
    import gen_f
    A = o.append
    Z = ET[0]
    pre = opt.get('mg')
    for r in range(4):
        if not pre: A(f"v_mov_b32 v{Z+r}, 0")
    if not pre: A("s_nop 0")
    ql = lambda ds, qb: f"buffer_load_dwordx4 {vr(Q(qb,ds))}, v{VLANE16}, s[{SRD_Q}:{SRD_Q+3}], s{40 + qb if DS[ds] < 4 else 44 + qb} offen offset:{(DS[ds]%4)*1024}{opt.get('dl','')} ; Q{ds}"
    NPQ = opt.get('npq', 8)
    zi = 16 if pre else 0
    zero = lambda k: f"v_mfma_f32_32x32x16_bf16 a[{16*k}:{16*k+15}], {vr(Z)}, {vr(Z)}, 0"
    for ds in range(NPQ):
        for qb in range(4):
            A(ql(ds, qb))
            if (qb % 2 == 1 or NPQ <= 4) and zi < 16:
                A(zero(zi)); zi += 1
    T(1)
    if opt.get('mg'):
        import gen_m; A(gen_m.poll_b_load())
    late = []
    if pre and opt.get('ms'):
        for r in range(4): A(f"v_mov_b32 v{Z+r}, 0")
        z = []; gen_f.pre_rest(z.append); z = lds_addrs_list() + z
        for k, t in enumerate(z):
            A(t)
            if k % 6 == 5 and k // 6 < 16: A(zero(k // 6))
        assert len(z) >= 96
    if opt.get('fuse'):
        gen_f.prologue(late.append, late, 95)
    if opt.get('race') and len(opt['race']) == 1:
        L_ = late.append; r0 = 52 - opt['trun'] + PVC[0] - opt['race'][0] - 2; assert r0 >= 3
        L_("s_cmp_lt_u32 s37, 3"); L_("s_cselect_b32 s3, 0, 3"); L_("s_cselect_b32 s94, 0, 8"); L_("s_sub_u32 s3, s37, s3")
        L_(f"s_lshl_b32 s38, s38, 2"); L_("s_add_u32 s38, s38, s3"); L_("s_lshl_b32 s38, s38, 10"); L_(f"s_add_u32 s38, s38, 0x{gen_f.FLAG_OFF + 6 * gen_f.FS:x}")
        L_("s_add_u32 s94, s94, s38"); L_("s_xor_b32 s95, s94, 8")
        L_("s_add_u32 s49, s95, 32"); L_("s_cmp_eq_u32 s3, 2"); L_("s_cselect_b32 s35, s38, s94"); L_("s_cselect_b32 s49, s49, s95")
        L_(f"s_mov_b32 s39, {r0}")
    elif opt.get('race'):
        c, nw0, nl0, nw2, nl2 = opt['race']; rem = lambda n: n - opt['trun'] + PVC[0] - c - 2
        assert nw0 + nl0 == 104 and nw2 + nl2 == 105 and min(rem(nl0), rem(nl2)) >= 1
        late.append("s_cmp_lt_u32 s37, 3"); late.append("s_cselect_b32 s3, 0, 3"); late.append("s_sub_u32 s3, s37, s3")
        late.append("s_cmp_eq_u32 s3, 2")
        late.append(f"s_cselect_b32 s{S_NW}, {rem(nw2)}, {rem(nw0)}")
        late.append(f"s_cselect_b32 s{S_NL}, {rem(nl2)}, {rem(nl0)}")
        late.append(f"s_lshl_b32 s{S_RO}, s38, 2"); late.append(f"s_add_u32 s{S_RO}, s{S_RO}, s3"); late.append(f"s_lshl_b32 s{S_RO}, s{S_RO}, 10")
        late.append(f"s_add_u32 s{S_RO}, s{S_RO}, 0x{gen_f.FLAG_OFF + 6 * gen_f.FS:x}")
    if opt.get('qs'): gen_f.touch_setup(late.append)
    for k, t in enumerate(lds_addrs_list() if not pre else []):
        A(t)
        if k % 2 == 1 and zi < 16: A(zero(zi)); zi += 1
    assert zi == 16
    items = []
    dm = lambda k, mk: (1, f"buffer_load_dwordx4 v{VDMA}, s[{SRD_K}:{SRD_K+3}], s{S_OFF} offen offset:{k*1024}{opt.get('dl','')} lds{mk}")
    items += [dm(2, ''), dm(3, ' ; K1')]
    items.append((0, f"s_add_u32 s{S_OFF}, s{S_OFF}, {STEP[0]}\ns_add_u32 m0, s{S_M0}, 0x8000\ns_nop 0"))
    items += [dm(k, '') for k in range(4)]
    items.append((0, f"s_add_u32 s{S_OFF}, s{S_OFF}, {STEP[0]}\ns_add_u32 s{S_M0}, s{S_M0}, 0xc000"))
    if NPQ == 8: o += late; late = []
    T(2)
    A("WAIT K0")
    A("s_barrier")
    T(3)
    TB = P_BASE[1]
    dst = [S_BASE[0], S_BASE[1], TB]
    fr = []
    for ds in range(8):
        for b in range(3):
            ms = []
            for qb in range(4):
                d = vr(dst[b] + 4 * qb)
                c0 = vr(NEGM(0)) if b < 2 else '0'
                ms.append(lambda f, qb=qb, ds=ds, d=d, c0=c0: f"v_mfma_f32_16x16x32_bf16 {d}, {vr(f)}, {vr(Q(qb,ds))}, {d if ds else c0}")
            fr.append((kread((b >> 1) * 16384 + foff(b & 1, DS[ds])), ms))
    for i in range(RING):
        A(fr[i][0][0](F(i)))
    sg = build_seg(fr, [])
    per = opt.get('sper', 3)
    for ds in range(8):
        g = 12 * ds - 1
        sg.put(g, f"WAIT Q{ds}")
        gg = g + 1
        if ds + NPQ < 8:
            for qb in range(4): sg.put(gg, ql(ds + NPQ, qb)); gg += 3
            continue
        k = 0
        gg = g + 2
        while items and (k < per or ds == 7):
            v, t = items.pop(0)
            sg.put(min(gg, 95), t); k += v; gg += 2
    if late: sg.fill([(1, t) for t in late], 12 * (8 - NPQ), 95, cap=3)
    o += sg.text()
    T(6)
    R4 = range(4)
    s0 = lambda qb: S(0, qb)
    s1 = lambda qb: S(1, qb)
    for qb in R4: A(f"v_max3_f32 v{M[qb]}, v{s0(qb)}, v{s0(qb)+1}, v{s0(qb)+2}")
    for qb in R4: A(f"v_max3_f32 v{M[qb]}, v{M[qb]}, v{s0(qb)+3}, v{s1(qb)}")
    for qb in R4: A(f"v_max3_f32 v{M[qb]}, v{M[qb]}, v{s1(qb)+1}, v{s1(qb)+2}")
    for qb in R4: A(f"v_max_f32 v{M[qb]}, v{M[qb]}, v{s1(qb)+3}")
    for sw in ("v_permlane32_swap_b32", "v_permlane16_swap_b32"):
        for qb in R4: A(f"v_mov_b32 v{ET[qb]}, v{M[qb]}")
        for qb in R4: A(f"{sw} v{M[qb]}, v{ET[qb]}")
        for qb in R4: A(f"v_max_f32 v{M[qb]}, v{M[qb]}, v{ET[qb]}")
    if TR[0]:
        for qb in R4: A(f"v_ceil_f32 v{M[qb]}, v{M[qb]}")
    if Z1[0]:
        for f in ("v_add_f32 v{m}, " + str(float(BIAS)) + ", v{m}", "v_cvt_pk_bf16_f32 v{m}, v{m}, v{m}", "v_and_b32 v{m}, 0xffff0000, v{m}", "v_sub_f32 v{n}, 0, v{m}", "v_bfi_b32 v{q}, v{k}, v{n}, v{q}"):
            if 'sub' in f: A(f"v_bfe_i32 v{VT0}, v{VLANE16}, 8, 1"); A(f"v_bfe_i32 v{ET[0]}, v{VLANE16}, 9, 1"); A(f"v_and_b32 v{VT0}, v{VT0}, v{ET[0]}"); A(f"v_and_b32 v{VT0}, 0xffff0000, v{VT0}")
            for qb in R4: A(f.format(m=M[qb], n=LA[qb], q=Q(qb, 0) + 3, k=VT0))
    NG = (lambda qb: LA[qb]) if Z1[0] else NEGM
    for h in range(2):
        for qb in R4:
            for r in R4: A(f"v_sub_f32 v{S(h,qb)+r}, v{S(h,qb)+r}, v{M[qb]}" if h == 0 else f"v_add_f32 v{S(h,qb)+r}, v{S(h,qb)+r}, v{NG(qb)}")
            for r in R4: A(f"v_exp_f32 v{S(h,qb)+r}, v{S(h,qb)+r}")
            if h == 0 and not Z1[0]:
                for r in R4: A(f"v_sub_f32 v{NEGM(qb)+r}, 0, v{M[qb]}")
        if h == 0:
            A("WAIT K1")
            A("s_barrier")
            for i in range(R8[0]):
                for x in (kread(16384 + foff(1, DS[i])) if PVC[0] else vread(0, i)): A(x(SLOT[i]))
    T(7)
    for h in range(2):
        for qb in R4:
            s = S(h, qb)
            A(f"v_cvt_pk_bf16_f32 v{P(0,qb)+2*h}, v{s}, v{s+1}")
            A(f"v_cvt_pk_bf16_f32 v{P(0,qb)+2*h+1}, v{s+2}, v{s+3}")
    for qb in R4 if not Z1[0] else (): A(f"v_add_f32 v{LA[qb]}, v{s0(qb)}, v{s0(qb)+1}")
    for x in () if Z1[0] else (lambda qb: s0(qb) + 2, lambda qb: s0(qb) + 3, s1, lambda qb: s1(qb) + 1, lambda qb: s1(qb) + 2, lambda qb: s1(qb) + 3):
        for qb in R4: A(f"v_add_f32 v{LA[qb]}, v{LA[qb]}, v{x(qb)}")
    for qb in R4:
        for r in R4: A(f"v_add_f32 v{s0(qb)+r}, v{TB+4*qb+r}, v{NG(qb)}")


def gen_k2(opt=None):
    opt = opt or {}
    TR[0] = opt.get('tr', opt.get('fuse', 0))
    o = []
    A = o.append
    MGK = opt.get('mg')
    CHAIN[0] = opt.get('chain', 0)
    PVC[0] = opt.get('pvc', 0)
    R8[0] = 8 if opt.get('r8') else 4
    REREAD.clear()
    Z1[0] = opt.get('z1', 0); DS[:] = [7, 6, 0, 1, 2, 3, 4, 5] if Z1[0] else range(8)
    SNAKE[0] = opt.get('snake', 0)
    FAKE[0] = -2 if opt.get('fakepv') else -1
    if opt.get('fuse'):
        import gen_f
        gen_f.MG[0] = MGK
        gen_f.QS[0] = opt.get('qs', 0); gen_f.EV.update(tmp=228, hf=240, cp=38, wf=108)
        if MGK:
            import gen_m
            opt = dict(opt, dl=' sc1'); o += gen_m.front(opt)
        else: A(f"s_mov_b64 s[{gen_f.S_TAG}:{gen_f.S_TAG+1}], 1")
    def T(i):
        if opt.get('timing') and not (opt.get('p1t') and 0 < i + 0 < 5 or opt.get('p1t') and i == 0): A(f"s_memtime s[{74+2*i}:{75+2*i}]")
        if opt.get('timing') and opt.get('p1t') and i == 0: A("s_memtime s[84:85]")
    A("s_load_dwordx2 s[4:5], s[0:1], %d" % KA_WS)
    if opt.get('fuse'):
        import gen_f
        A("s_load_dwordx2 s[60:61], s[0:1], %d" % KA_X)
        A("s_load_dwordx2 s[52:53], s[0:1], %d" % KA_DEG)
        A("s_load_dwordx2 s[56:57], s[0:1], %d" % KA_OUT)
    if opt.get('timing'):
        A("s_memtime s[62:63]" if not MGK else "s_mov_b64 s[62:63], s[100:101]")
        A("s_memrealtime s[64:65]")
        if not opt.get('lp'): T(8)
    A("s_and_b32 s35, s2, 7")
    A("s_lshr_b32 s37, s2, 3")
    if opt.get('sp0'): A("s_add_u32 s37, s37, 30"); A("s_and_b32 s37, s37, 31")
    L2H = opt.get('l2h')
    if L2H:
        A("v_lshrrev_b32 v1, 6, v0")
        A("s_mov_b32 s36, -1")
        A("v_readfirstlane_b32 s38, v1")
        A("s_cmp_lt_u32 s37, 30")
        A("s_cbranch_scc1 L2_att")
        A("s_lshl_b32 s39, s35, 1"); A("s_add_u32 s39, s39, s37"); A("s_sub_u32 s39, s39, 30")
        A("s_cmp_lt_u32 s38, 3"); A("s_cbranch_scc1 LE_start")
        A("s_cmp_ge_u32 s39, 12"); A("s_cbranch_scc1 L2_end")
        A("s_and_b32 s36, s39, 1"); A("s_lshr_b32 s37, s39, 1"); A("s_mov_b32 s38, 39")
        A("v_and_b32 v0, 63, v0")
        A("s_branch L2_att2")
        A("L2_att:")
    else:
        A("s_cmp_ge_u32 s37, 30")
        A("s_cbranch_scc1 LE_start")
    if opt.get('map', 1) == 1:
        A("s_mul_i32 s38, s37, 52")
        A("s_lshr_b32 s38, s38, 8")
        A("s_mul_i32 s39, s38, 5")
        A("s_sub_u32 s39, s37, s39")
        A("s_mov_b32 s37, s38")
        A("s_mul_i32 s38, s35, 5")
        A("s_add_u32 s38, s38, s39")
    else:
        A("s_mul_i32 s38, s37, 26")
        A("s_lshr_b32 s38, s38, 8")
        A("s_mul_i32 s39, s38, 10")
        A("s_sub_u32 s39, s37, s39")
        A("s_and_b32 s37, s35, 1")
        A("s_mul_i32 s37, s37, 3")
        A("s_add_u32 s37, s37, s38")
        if opt.get('pd'):
            A("s_and_b32 s38, s35, 1"); A(f"s_mul_i32 s38, s38, {8 - opt['pd']}"); A("s_add_u32 s35, s35, s38"); A("s_and_b32 s35, s35, 7")
        A("s_lshr_b32 s38, s35, 1")
        A("s_mul_i32 s38, s38, 10")
        A("s_add_u32 s38, s38, s39")
    if L2H: A("L2_att2:")
    A("v_lshrrev_b32 v1, 6, v0")
    A(f"v_and_b32 v{VLANE16}, 63, v0")
    A(f"v_lshlrev_b32 v{VLANE16}, 4, v{VLANE16}")
    A(f"v_readfirstlane_b32 s{S_WAVE}, v1")
    cnts = opt.get('cnts', [52, 52, 52, 52, 52, 53])
    assert sum(cnts) == NT and len(cnts) == NSPLIT
    st = [sum(cnts[:i]) for i in range(NSPLIT)] + [NT - 1]
    pk = sum(x << (9 * i) for i, x in enumerate(st))
    A(f"s_mov_b32 s50, 0x{pk & 0xffffffff:x}")
    A(f"s_mov_b32 s51, 0x{pk >> 32:x}")
    A(f"s_mul_i32 s39, s37, 9")
    A(f"s_lshr_b64 s[50:51], s[50:51], s39")
    A(f"s_and_b32 s39, s50, 0x1ff")
    A(f"s_bfe_u32 s49, s50, 0x90009")
    A(f"s_sub_u32 s{S_CNT}, s49, s39")
    TT = opt.get('trun', 0)
    A(f"s_sub_u32 s{S_CNT}, s{S_CNT}, {TT - PVC[0] or 2}")
    A(f"s_lshl_b32 s39, s39, 14")
    A(f"s_lshl_b32 s49, s49, 14")
    A(f"s_add_u32 s{S_OFF}, s39, 0x4000")
    A(f"s_cmp_eq_u32 s37, {NSPLIT-1}")
    A(f"s_addc_u32 s{S_CNT}, s{S_CNT}, 0")
    A(f"s_cmp_eq_u32 s37, {NSPLIT-1}")
    A(f"s_cselect_b32 s{S_OFF}, s39, s{S_OFF}")
    A(f"s_cselect_b32 s39, {(NT-1)*16384}, s39")
    A(f"s_cselect_b32 s49, {N*512}, s49")
    A(f"s_cselect_b32 s{S_MASK}, 0xff800000, 0")
    A(f"s_mov_b32 s{S_THR}, 0x5d800000")
    A("v_and_b32 v2, 63, v0")
    A("v_bfe_u32 v3, v2, 3, 2")
    A("v_bfe_u32 v4, v2, 2, 1")
    A(f"v_lshlrev_b32 v{VDMA}, 12, v3")
    A(f"v_lshl_or_b32 v{VDMA}, v4, 9, v{VDMA}")
    A(f"v_lshl_or_b32 v{VDMA}, v1, 7, v{VDMA}")
    A("v_lshrrev_b32 v4, 5, v2")
    A(f"v_lshl_or_b32 v{VDMA}, v4, 6, v{VDMA}")
    A("v_and_b32 v3, 2, v3")
    A("v_and_b32 v4, 3, v2")
    A("v_xor_b32 v3, v3, v4")
    A(f"v_lshl_or_b32 v{VDMA}, v3, 4, v{VDMA}")
    if opt.get('light'):
        A("s_cmp_eq_u32 s38, 39")
        A("s_cbranch_scc1 LT_disp")
    RC = opt.get('race')
    STEP[0] = f"s{S_STEP}" if RC else '0x4000'
    if RC:
        assert opt.get('map') == 2 and TT
        A("s_cmp_lt_u32 s37, 3")
        A(f"s_cselect_b32 s{S_STEP}, 0x4000, 0xffffc000" if 0 else f"s_cselect_b32 s{S_STEP}, 1, -1")
        A("s_cselect_b32 s39, 0, 103")
        A("s_cselect_b32 s3, 0, 3")
        A("s_sub_u32 s3, s37, s3")
        A("s_mul_i32 s3, s3, 104")
        A("s_add_u32 s39, s39, s3")
        A(f"s_cmp_eq_u32 s37, 5")
        A("s_addc_u32 s39, s39, 0")
        A(f"s_lshl_b32 s{S_STEP}, s{S_STEP}, 14")
        A("s_lshl_b32 s39, s39, 14")
        A(f"s_add_u32 s{S_OFF}, s39, s{S_STEP}")
        A(f"s_mov_b32 s49, {N*512}")
        A(f"s_mov_b32 s{S_CNT}, {RC[0] - (2 if len(RC) == 1 else 0)}")
        A(f"s_mov_b32 s{S_PH}, {5 if len(RC) == 1 else 3}")
    A(f"s_lshl_b32 s{S_M0}, s{S_WAVE}, 12")
    A(f"s_lshl_b32 s50, s{S_WAVE}, 13")
    A(f"s_add_u32 s50, s50, 0x20000")
    A(f"s_mov_b32 m0, s{S_M0}")
    if opt.get('fuse'):
        gen_f.pre_wait(A, 94, 95)
        if not opt.get('ms'): gen_f.pre_rest(A)
    if MGK: gen_m.poll_addrs(A, S_OFF, opt.get('av'), STEP[0] if RC else None, opt.get('lp'))
    A("s_waitcnt lgkmcnt(0)")
    k0 = [f"buffer_load_dwordx4 v{VDMA}, s[{SRD_K}:{SRD_K+3}], s39 offen offset:{k*1024}{opt.get('dl','')} lds" for k in range(4)]
    k1 = [f"buffer_load_dwordx4 v{VDMA}, s[{SRD_K}:{SRD_K+3}], s{S_OFF} offen offset:{k*1024}{opt.get('dl','')} lds ; K0" for k in range(2)]
    if not MGK: T(0)
    srd(o, SRD_K, H_OFF, 0)
    A(f"s_mov_b32 s{SRD_K+2}, s49")
    if not MGK: o += k0; A(f"s_add_u32 m0, s{S_M0}, 0x4000")
    srd(o, SRD_Q, QF_OFF, QF_BYTES)
    if not MGK: o += k1
    A(f"s_mul_i32 s35, s37, 0x{OP_STRIDE:x}")
    srd(o, SRD_OP, OP_OFF, QF_BYTES, 35)
    srd(o, SRD_ML, ML_OFF, NB16 * (2048 if opt.get('fuse') else 1024))
    A(f"s_lshl_b32 s35, s38, 4")
    A(f"s_lshl_b32 s41, s{S_WAVE}, 2")
    A(f"s_add_u32 s35, s35, s41")
    A(f"s_lshl_b32 s40, s35, 13")
    if opt.get('fuse'):
        A("s_lshl_b32 s94, s94, 13")
        A("s_add_u32 s40, s40, s94")
    for qb in range(1, 4):
        A(f"s_{'xor_b32' if opt.get('fuse') else 'add_u32'} s{40+qb}, s40, {qb*8192}")
    for qb in range(4):
        A(f"s_add_u32 s{44+qb}, s{40+qb}, 4096")
    A(f"s_lshl_b32 s48, s35, 10")
    A(f"s_lshl_b32 s35, s37, 3")
    A(f"s_add_u32 s48, s48, s35")
    if MGK:
        if not opt.get('ms'):
            for r in range(4): A(f"v_mov_b32 v{ET[0]+r}, 0")
            lds_addrs(A)
            for k in range(16): A(f"v_mfma_f32_32x32x16_bf16 a[{16*k}:{16*k+15}], {vr(ET[0])}, {vr(ET[0])}, 0")
        gen_m.poll_a(A, o, opt)
        T(0)
        o += k0; A(f"s_add_u32 m0, s{S_M0}, 0x4000"); A("s_nop 0"); o += k1
    prologue2(o, opt, T)
    import gen_f
    o[:] = gen_f.fix_waits(o)
    if MGK: gen_m.poll_b_check(A)
    A("s_nop 1")
    if opt.get('timing'):
        A("s_memtime s[66:67]")
        A("s_waitcnt lgkmcnt(0)")
    sites = {}
    n = 0
    for kind in ('loop', 'tail2'):
        for p in (0, 1):
            sites[(kind, p)] = (n, n + 1)
            n += 2
    rares = []; alls = list(range(4 if TT else n))
    for _ in range(opt.get('diag_idle', 0)): A("s_sleep 64")
    if PVC[0]:
        alls += [4, 5]
        o += body2(0, True, (4, 5), opt).text()
        A("s_branch L2_loop1")
    A(".p2align 6")
    A("L2_loop:")
    o += (body2(0, False, sites[('loop', 0)], opt) if PVC[0] else body(0, 'loop', sites[('loop', 0)], opt)).text()
    A("s_cbranch_scc1 L2_x1" if RC else "s_cbranch_scc1 L2_tail_1")
    A("L2_loop1:")
    o += (body2(1, False, sites[('loop', 1)], opt) if PVC[0] else body(1, 'loop', sites[('loop', 1)], opt)).text()
    A("s_cbranch_scc0 L2_loop")
    if RC:
        TG = gen_f.S_TAG
        A(f"s_cmp_eq_u32 s{S_PH}, 0"); A("s_cbranch_scc1 L2_tail_0"); A("s_mov_b32 s3, 0"); A("s_branch L2_ev")
        A("L2_x1:")
        A(f"s_cmp_eq_u32 s{S_PH}, 0"); A("s_cbranch_scc1 L2_tail_1"); A("s_mov_b32 s3, 1")
        A("L2_ev:")
        A(f"s_sub_u32 s{S_PH}, s{S_PH}, 1")
        A(f"s_mov_b32 s{S_CNT}, 1")
        A("v_mov_b32 v230, 0x20000")
        if len(RC) == 1:
            sw = lambda r, so, off: A(f"buffer_atomic_swap_x2 v[{r}:{r+1}], off, s[16:19], s{so} offset:{off} sc0 sc1")
            def seen(r, op):
                A(f"v_cmp_{'eq' if op == 'sub' else 'ne'}_u64 vcc, s[{TG}:{TG+1}], v[{r}:{r+1}]"); A("s_nop 1"); A("s_bitcmp1_b32 vcc_lo, 0")
                A(f"s_{op}{'b' if op == 'sub' else 'c'}_u32 s39, s39, 0")
            tagv = lambda r: (A(f"v_mov_b32 v{r}, s{TG}"), A(f"v_mov_b32 v{r+1}, s{TG+1}"))
            A(f"s_cmp_eq_u32 s{S_PH}, 0"); A("s_cbranch_scc1 L2_ev5")
            A(f"s_cmp_lg_u32 s{S_WAVE}, 0"); A("s_cbranch_scc1 L2_evr")
            A("s_mov_b64 exec, 1")
            A(f"s_cmp_eq_u32 s{S_PH}, 4"); A("s_cbranch_scc1 L2_ev1")
            A(f"s_cmp_eq_u32 s{S_PH}, 1"); A("s_cbranch_scc1 L2_ev4")
            seen(228, 'sub'); tagv(228)
            A(f"s_cmp_eq_u32 s{S_PH}, 2"); A("s_cbranch_scc1 L2_ev3")
            sw(228, 49, 0); A("s_branch L2_evx")
            A("L2_ev1:"); tagv(228); sw(228, 95, 16); A("s_branch L2_evx")
            A("L2_ev3:"); tagv(252); sw(228, 35, 0); sw(252, 94, 16); A("s_branch L2_evx")
            A("L2_ev4:"); seen(228, 'add'); seen(252, 'add')
            A("v_mov_b32 v228, s39"); A("ds_write_b32 v230, v228")
            A("L2_evx:"); A("s_mov_b64 exec, -1"); A("s_branch L2_evr")
            A("L2_ev5:"); A("ds_read_b32 v228, v230"); A("s_waitcnt lgkmcnt(0)"); A(f"v_readfirstlane_b32 s{S_CNT}, v228")
        else:
            A(f"s_cmp_eq_u32 s{S_PH}, 0"); A("s_cbranch_scc1 L2_ev3")
            A(f"s_cmp_lg_u32 s{S_WAVE}, 0"); A("s_cbranch_scc1 L2_evr")
            A(f"s_cmp_eq_u32 s{S_PH}, 1"); A("s_cbranch_scc1 L2_ev2")
            A(f"v_mov_b32 v228, s{TG}"); A(f"v_mov_b32 v229, s{TG+1}")
            A("s_mov_b64 exec, 1")
            A(f"buffer_atomic_swap_x2 v[228:229], off, s[16:19], s{S_RO} sc0 sc1")
            A("s_mov_b64 exec, -1")
            A("s_branch L2_evr")
            A("L2_ev2:")
            A("s_mov_b64 exec, 1")
            A("ds_write_b64 v230, v[228:229]")
            A("s_mov_b64 exec, -1")
            A("s_branch L2_evr")
            A("L2_ev3:")
            A("ds_read_b64 v[228:229], v230")
            A("s_waitcnt lgkmcnt(0)")
            A(f"v_cmp_eq_u64 vcc, s[{TG}:{TG+1}], v[228:229]")
            A("s_nop 1")
            A("s_cmp_eq_u64 vcc, 0")
            A(f"s_cselect_b32 s{S_CNT}, s{S_NW}, s{S_NL}")
        A("L2_evr:")
        A("s_cmp_eq_u32 s3, 0"); A("s_cbranch_scc1 L2_loop"); A("s_branch L2_loop1")
    for p in (0, 1):
        A(f"L2_tail_{p}:")
        if opt.get('timing'):
            A("s_memtime s[68:69]")
            A("s_waitcnt lgkmcnt(0)")
        if TT:
            tl, rr, ss = tail_qs(p, len(alls), opt) if opt.get('qs') else tail_run(p, TT, len(alls), opt)
            o += tl; rares += rr; alls += ss
        else:
            o += body(p, 'tail2', sites[('tail2', p)], opt).text()
            A("s_nop 1")
            if not opt.get('lp'): T(8)
            o += epilogue(body(1 - p, 'tail1', None, opt), opt)
        if not opt.get('not9'): T(9)
        A("s_branch L2_F" if opt.get('fuse') else "s_branch L2_fin")
    if opt.get('fuse'):
        A("L2_F:")
        nfs = [0]
        def fstamp(A_):
            if opt.get('timing') and opt.get('ft') and nfs[0] < 7:
                A_(f"s_memtime s[{74+2*nfs[0]}:{75+2*nfs[0]}]"); nfs[0] += 1
        fo, fspin = gen_f.final(opt, fstamp)
        o += fo
        if opt.get('ftwice'):
            A("s_barrier\ns_xor_b32 s31, s31, 1\ns_cbranch_scc1 L2_F")
        A("s_branch L2_fin")
        o += fspin
        if MGK: o += gen_m.poll_b_spin()
        A("L2_Fend:")
    nhot = len(o)
    if opt.get('valu', 1):
        for p in (0, 1):
            for h in (0, 1):
                if Z1[0]:
                    if h == 0: o += rare_z(p, [sites[('loop', p)][0]] + ([4] if p == 0 else []), [0, 1], lambda qb, p=p: P(1 - p, qb), [lambda qb, p=p: P(p, qb)], (), (VK, 0 if p else -0x8000, (1 - p) * 16384))
                elif PVC[0]:
                    o += rare_code(p, h, [sites[('loop', p)][h]] + ([4 + h] if p == 0 else []), lambda qb, p=p: P(1 - p, qb),
                                   [lambda qb, p=p: P(p, qb)] + ([lambda qb, p=p: P(1 - p, qb)] if h == 0 else []), (), (VK, 0 if p else -0x8000, (1 - p) * 16384), False)
                else: o += rare_code(p, h, [sites[('loop', p)][h]] + ([] if TT else [sites[('tail2', p)][h]]))
        o += rares
        o += rare_common(alls)
    cold = []
    if opt.get('rl'): cold = [";;END", "s_endpgm", "L2_hot:"] + o[nhot:]; del o[nhot:]
    import gen_eg
    if opt.get('light'):
        A("LT_disp:")
        if L2H:
            A("s_cmp_ge_i32 s36, 0"); A("s_cbranch_scc1 LT_start")
        A(f"s_cmp_eq_u32 s{S_WAVE}, 0")
        A("s_cbranch_scc1 L2_end" if L2H else "s_cbranch_scc1 LT_start")
        A(f"s_mov_b32 s{gen_eg.S_W}, s{S_WAVE}")
        A(f"s_mul_i32 s{gen_eg.S_B}, s{S_WAVE}, 6")
        A(f"s_add_u32 s{gen_eg.S_B}, s{gen_eg.S_B}, s37")
        A(f"s_add_u32 s{gen_eg.S_B}, s{gen_eg.S_B}, 42")
        A(f"s_cmp_lt_u32 s{gen_eg.S_B}, {NBK}")
        A("s_cbranch_scc1 LE_common")
        A("s_branch L2_end")
        light(o, opt, TT)
    gen_eg.gen_edge(o, opt)
    A("L2_fin:")
    if opt.get('timing'):
        A("s_mov_b64 exec, -1")
        A("s_waitcnt vmcnt(0)")
        A("s_memtime s[70:71]")
        A("s_memrealtime s[72:73]")
        A("s_waitcnt lgkmcnt(0)")
        A("s_sub_u32 s66, s66, s62")
        A("s_sub_u32 s68, s68, s62")
        A("s_sub_u32 s70, s70, s62")
        for i in range(10):
            A(f"s_sub_u32 s{74+2*i}, s{74+2*i}, s62\nv_mov_b32 v{4+i}, s{74+2*i}")
        A("v_mov_b32 v14, s64\nv_mov_b32 v15, s72")
        A("s_sub_u32 s72, s72, s64")
        A("v_mov_b32 v0, s66\nv_mov_b32 v1, s68\nv_mov_b32 v2, s70\nv_mov_b32 v3, s72")
        A("s_add_u32 s60, s4, 0x%x\ns_addc_u32 s61, s5, 0" % TIM_OFF)
        A("v_mbcnt_lo_u32_b32 v243, -1, 0\nv_mbcnt_hi_u32_b32 v243, -1, v243\nv_lshlrev_b32 v243, 4, v243")
        A("s_mov_b32 s62, 0x100000\ns_mov_b32 s63, 0x00020000")
        A(f"s_lshl_b32 s35, s2, 2")
        A(f"s_add_u32 s35, s35, s{S_WAVE}")
        A(f"s_lshl_b32 s35, s35, 10")
        A(f"buffer_store_dwordx4 v[0:3], v{VLANE16}, s[60:63], s35 offen")
        A("s_add_u32 s35, s35, 0x200000\ns_mov_b32 s62, 0x800000")
        for k in range(3):
            A(f"buffer_store_dwordx4 v[{4+4*k}:{7+4*k}], v{VLANE16}, s[60:63], s35 offen")
            A("s_add_u32 s35, s35, 0x100000")
    A("L2_end:")
    o += cold
    if opt.get('rtst'):
        return "\n".join(o).replace("s_memtime", "s_memrealtime").replace("s_mov_b64 s[62:63], s[100:101]", "s_mov_b64 s[62:63], 0")
    return "\n".join(o)


def kernel_desc(opt=None):
    return dict(name="k2_kernel", body=gen_k2(opt), vgpr=512, accum=256, grid=256, block=256, lds=163840 if (opt or {}).get('trun', 0) > 3 or (opt or {}).get('light') else 131072)
```

```python
from layout import *
import gen_k1n, gen_f
from gen_f import FLAG_OFF, FS, P1F0, WFF0, HF0, AF0, EPOCH, S_TAG, SWS
from sched import *
import hazard, struct, math
MF32 = gen_f.MF32
TAGADD = [f"s_add_u32 s{S_TAG}, s{S_TAG}, 0x7f4a7c15", f"s_addc_u32 s{S_TAG+1}, s{S_TAG+1}, 0x9e3779b9"]
S_IDX = 91
VPA, VPB, VPD = 5, 230, 228


def front(opt):
    k1 = opt['k1']
    S_W, S_ROLE, S_ROT = gen_k1n.S_W, gen_k1n.S_ROLE, gen_k1n.S_ROT
    o = []; A = o.append
    tagld = [f"s_mov_b32 s{S_TAG}, 0x{FLAG_OFF + EPOCH * FS:x}", f"s_load_dwordx2 {sr(S_TAG, 2)}, s[38:39], s{S_TAG}"]
    k1 = dict(k1, mg=tagld)
    A("s_getpc_b64 s[56:57]")
    A("s_load_dwordx16 s[16:31], s[0:1], 0")
    A("s_load_dwordx8 s[32:39], s[0:1], 64")
    if opt.get('timing'): A("s_memtime s[100:101]")
    A("s_cmp_ge_u32 s2, 256")
    A("s_cbranch_scc1 L2_end")
    A("v_lshrrev_b32 v1, 6, v0")
    A("v_and_b32 v2, 63, v0")
    A("s_lshr_b32 s3, s2, 3")
    if opt.get('sp0'): A("s_add_u32 s3, s3, 30"); A("s_and_b32 s3, s3, 31")
    A(f"v_readfirstlane_b32 s{S_W}, v1")
    A("s_lshl_b32 s5, s3, 2")
    A(f"s_add_u32 s5, s5, s{S_W}")
    if k1.get('cpf', 1) and not opt.get('cps'):
        A("s_and_b32 s56, s56, 0xffffff00")
        A(f"s_mov_b32 s58, {'L2_hot' if opt.get('rl') else 'L2_end'}-k2_kernel")
        A("s_mov_b32 s59, 0x00020000")
        A(f"s_and_b32 s6, s5, {opt.get('cpm', 15)}")
        A("s_lshl_b32 s6, s6, 13")
        if opt.get('cpr'): A(f"s_cmp_lt_u32 s5, {16 * opt['cpr']}"); A("s_cselect_b32 s6, s6, 0x7fff0000")
        A("v_lshlrev_b32 v10, 7, v2")
        A("buffer_load_dword v255, v10, s[56:59], s6 offen")
    A("v_and_b32 v3, 15, v2")
    A("v_lshrrev_b32 v4, 4, v2")
    A(f"s_and_b32 s{S_ROT}, s3, {k1.get('rotm', 7)}")
    A("s_mov_b64 s[14:15], 0")
    A("s_and_b32 s8, s2, 7")
    A("s_cmp_ge_u32 s3, 30")
    A("s_cbranch_scc1 LM_edge")
    if opt.get('map', 1) == 1:
        A("s_mul_i32 s13, s3, 52"); A("s_lshr_b32 s13, s13, 8"); A("s_mul_i32 s9, s13, 5"); A("s_sub_u32 s9, s3, s9")
        A("s_mul_i32 s12, s8, 5"); A("s_add_u32 s12, s12, s9")
    else:
        A("s_mul_i32 s12, s3, 26"); A("s_lshr_b32 s12, s12, 8"); A("s_mul_i32 s9, s12, 10"); A("s_sub_u32 s9, s3, s9")
        A("s_and_b32 s13, s8, 1"); A("s_mul_i32 s13, s13, 3"); A("s_add_u32 s13, s13, s12")
        if opt.get('pd'):
            A("s_and_b32 s12, s8, 1"); A(f"s_mul_i32 s12, s12, {8 - opt['pd']}"); A("s_add_u32 s8, s8, s12"); A("s_and_b32 s8, s8, 7")
        A("s_lshr_b32 s12, s8, 1"); A("s_mul_i32 s12, s12, 10"); A("s_add_u32 s12, s12, s9")
    A(f"s_mul_i32 s{S_IDX}, s12, 6")
    A(f"s_add_u32 s{S_IDX}, s{S_IDX}, s13")
    A(f"s_mov_b32 s{S_ROLE}, 0")
    A("s_cmp_eq_u32 s12, 39")
    A("s_cbranch_scc1 LM_light")
    A("s_mul_i32 s14, s13, 3")
    A("s_min_u32 s14, s14, 14")
    A("s_lshl_b32 s9, s12, 4")
    A("s_add_u32 s14, s14, s9")
    A("s_lshl_b32 s14, s14, 13")
    A(f"s_cmp_eq_u32 s{S_IDX}, {38 * 6 + 5}")
    A("s_cselect_b32 s9, 0, s13")
    A("s_cmp_lt_u32 s9, 4")
    A("s_cselect_b32 s15, 3, 2")
    A("s_lshl_b32 s15, s15, 13")
    A("s_add_u32 s15, s15, s14")
    AV = opt.get('av')
    if opt.get('timing') and opt.get('p1t') and not AV:
        o += gen_k1n.gemm_prog('q', dict(k1, timing=1)) + ["s_waitcnt lgkmcnt(0)"] + [f"s_mov_b32 s{74 + 2*k}, s{16 + 2*x}" for k, x in enumerate(k1.get('ssel', [1, 2, 3, 4, 6]))]
    else: o += p1_prog(k1, opt) if AV else gen_k1n.gemm_prog('q', k1)
    if opt.get('lp') == 1:
        A("s_waitcnt lgkmcnt(0)"); o += TAGADD; A("s_branch L2_entry")
    A("L1_fin:")
    A(f"s_add_u32 s{S_IDX}, s{S_IDX}, {P1F0}")
    if not AV: A("s_waitcnt lgkmcnt(0)"); o += TAGADD
    A("LM_pub:")
    srd_from(o, 40, 38, FLAG_OFF, gen_f.NFLAG * FS)
    A(f"s_lshl_b32 s6, s{S_IDX}, 7")
    A(f"s_cmp_eq_u32 s{S_W}, 0")
    A(f"s_cselect_b32 s6, s6, 0x{gen_f.OOB:x}")
    A("v_lshlrev_b32 v12, 4, v2")
    A("s_waitcnt vmcnt(0) lgkmcnt(0)")
    A("s_barrier")
    gen_f.publish(A, 40, 6, 8, opt, 12)
    if opt.get('qt'):
        srd_from(o, 40, 38, QF_OFF, "s15")
        A(f"s_lshl_b32 s6, s{S_W}, 13")
        A("s_add_u32 s6, s6, s14")
        A("v_lshlrev_b32 v8, 7, v2")
        A(f"buffer_load_dword v9, v8, s[40:43], s6 offen")
    A(f"s_cmp_eq_u32 s{S_ROLE}, 0")
    A("s_cbranch_scc1 L2_entry")
    A(f"s_mov_b32 s{S_ROLE}, 0")
    if opt.get('l2h'):
        A(f"s_sub_u32 s4, s{S_IDX}, {P1F0 + 234}"); A("s_min_u32 s6, s4, 14"); A("s_cmp_lt_u32 s4, 6"); A("s_cselect_b32 s6, 0, s6"); A("s_sub_u32 s4, s4, s6")
    else: A(f"s_sub_u32 s4, s{S_IDX}, {P1F0 + 240}")
    A(f"s_add_u32 s{S_IDX}, s4, {WFF0}")
    o += gen_k1n.gemm_prog('w', k1)
    A("s_branch LM_pub")
    A("LM_light:")
    if opt.get('l2h'): A(f"s_mov_b32 s{S_ROLE}, 1")
    A("s_waitcnt lgkmcnt(0)")
    o += tagld
    if AV: A("s_waitcnt lgkmcnt(0)"); o += TAGADD
    A("s_branch L1_fin")
    A("LM_edge:")
    A("s_sub_u32 s4, s3, 30")
    A("s_lshl_b32 s8, s8, 1")
    A("s_add_u32 s4, s4, s8")
    A(f"s_add_u32 s{S_IDX}, s4, 240")
    A("s_cmp_ge_u32 s4, 14" if opt.get('l2h') else "s_cmp_lt_u32 s4, 8")
    A(f"s_cselect_b32 s{S_ROLE}, 1, 0")
    if opt.get('cps'):
        A("s_and_b32 s56, s56, 0xffffff00")
        A(f"s_mov_b32 s58, {'L2_hot' if opt.get('rl') else 'L2_end'}-k2_kernel")
        A("s_mov_b32 s59, 0x00020000")
        A("s_and_b32 s6, s5, 7"); A(f"s_lshl_b32 s6, s6, {6 + opt['cps']}")
        A(f"v_lshlrev_b32 v10, {opt['cps']}, v2")
        for k in range(131072 // (512 << opt['cps'])):
            A(f"buffer_load_dword v255, v10, s[56:59], s6 offen")
            A(f"s_add_u32 s6, s6, {512 << opt['cps']}")
    if opt.get('wt'):
        st = opt['wt']
        A(f"s_and_b32 s6, s5, 7"); A(f"s_lshl_b32 s6, s6, 14")
        A(f"v_lshlrev_b32 v10, {st}, v2")
        A("s_waitcnt lgkmcnt(0)")
        srd_from(o, 40, 26, 0, 131072); srd_from(o, 44, 28, 0, 131072)
        for m in range(2):
            for k in range(16384 // (64 << st)):
                A(f"s_add_u32 s7, s6, {k * (64 << st)}")
                A(f"buffer_load_dword v{250 + (k & 1) + 2 * m}, v10, {sr(40 + 4 * m)}, s7 offen")
    if AV: o += a_prog(k1, opt)
    o += gen_k1n.edge_prog(dict(k1, mg=["s_nop 0"]) if AV else k1)
    A("s_branch L1_fin")
    A("L2_entry:")
    return o


def a_prog(k1, opt):
    S_W = gen_k1n.S_W
    q = []; A = lambda t: q.append(V(t))
    VD, VR, VL, BF, AF, ACC = 16, 18, 20, 24, 56, 184
    A("v_lshrrev_b32 v5, 3, v2")
    A("v_and_b32 v6, 4, v5"); A("v_add_u32 v5, v5, v6")
    A("v_and_b32 v6, 7, v2"); A("v_xor_b32 v6, v6, v4")
    A("v_lshlrev_b32 v6, 4, v6")
    A(f"v_lshl_add_u32 v{VD}, v5, 9, v6")
    A(f"v_xor_b32 v{VD+1}, 0x2040, v{VD}")
    A(f"s_lshl_b32 s6, s{S_W}, 7")
    A("s_and_b32 s7, s4, 3"); A("s_lshl_b32 s7, s7, 15"); A("s_add_u32 s7, s7, s6")
    A("s_lshr_b32 s8, s4, 2"); A("s_lshl_b32 s8, s8, 15"); A("s_add_u32 s8, s8, s6")
    A(f"s_lshl_b32 s9, s{S_W}, 10")
    A("s_waitcnt lgkmcnt(0)")
    o = []; srd_from(o, 40, 26, 0, 131072); srd_from(o, 44, 28, 0, 131072)
    for t in o: A(t)
    for m in (1, 0):
        for b in range(4):
            A(f"s_add_u32 s10, s{7 + m}, {(b >> 1) * 16384 + (b & 1) * 2048}")
            for u in range(2):
                A(f"s_add_u32 m0, s9, {m * 32768 + b * 8192 + u * 4096}")
                q.append(VM(f"buffer_load_dwordx4 v{VD+u}, {sr(40 + 4*m)}, s10 offen lds", tag='w'))
    for t in k1['mg']: A(t)
    A("v_lshrrev_b32 v5, 1, v3"); A("v_xor_b32 v5, v5, v4"); A("v_lshlrev_b32 v5, 4, v5")
    A("v_and_b32 v6, 7, v3"); A("v_lshl_add_u32 v5, v6, 7, v5")
    A("v_lshrrev_b32 v6, 3, v3"); A(f"v_lshl_add_u32 v{VR}, v6, 12, v5")
    A(f"v_xor_b32 v{VR+1}, 64, v{VR}")
    A(f"s_lshl_b32 s6, s{S_W}, 13"); A(f"v_add_u32 v{VR+4}, s6, v{VR}"); A(f"v_xor_b32 v{VR+5}, 64, v{VR+4}")
    A(f"v_lshlrev_b32 v{VL}, 4, v2")
    o = []; srd_from(o, 48, 38, 0, 256 << 20)
    for t in o: A(t)
    A("s_lshr_b32 s6, s4, 2"); A("s_lshl_b32 s6, s6, 15"); A("s_and_b32 s7, s4, 3"); A("s_lshl_b32 s7, s7, 13")
    A("s_add_u32 s6, s6, s7"); A("s_add_u32 s6, s6, s9"); A(f"s_add_u32 s6, s6, 0x{A_OFF:x}"); A("s_add_u32 s7, s6, 4096")
    A(f"s_lshl_b32 s8, s4, 2"); A(f"s_add_u32 s8, s8, s{S_W}"); A(f"s_lshl_b32 s8, s8, {opt.get('afs', 7)}"); A(f"s_add_u32 s8, s8, 0x{FLAG_OFF + AF0 * FS:x}")
    A("s_mov_b32 s10, 0x%x" % struct.unpack('<I', struct.pack('<f', math.log2(math.e) / 16))[0])
    TS = lambda k: A(f"s_memtime s[{76+2*k}:{77+2*k}]") if opt.get('timing') else None
    TS(0)
    q.append(W('w')); TS(1); A("s_barrier")
    for j in range(8):
        q.append(LD(f"ds_read_b128 {vr(BF + 4*j)}, v{VR + 4 + (j & 1)} offset:{32768 + (j >> 1)*1024}"))
        for b in range(4): q.append(LD(f"ds_read_b128 {vr(AF + (j*4 + b)*4)}, v{VR + (j & 1)} offset:{b*8192 + (j >> 1)*1024}", tag=('f', j, b)))
    for j in range(8):
        for b in range(4):
            q.append(Ins(f"{MF32} {vr(ACC + 4*b)}, {vr(AF + (j*4 + b)*4)}, {vr(BF + 4*j)}, {vr(ACC + 4*b) if j else 0}", 0, needs=[('f', j, b)]))
    for t in TAGADD: A(t)
    TS(2)
    for tl in range(2):
        a = ACC + 8 * tl
        for r in range(8): A(f"v_mul_f32 v{a+r}, s10, v{a+r}")
        for r in range(4): A(f"v_cvt_pk_bf16_f32 v{a+r}, v{a+2*r}, v{a+2*r+1}")
        q.append(VM(f"buffer_store_dwordx4 {vr(a)}, v{VL}, {sr(48)}, s{6 + tl} offen sc1"))
    A("s_waitcnt vmcnt(0)")
    TS(3)
    gen_f.publish(A, 48, 8, 8, opt, VL)
    if opt.get('timing'):
        A("s_waitcnt vmcnt(0)"); TS(4); A("s_waitcnt lgkmcnt(0)")
        for k in range(5): A(f"v_writelane_b32 v254, s{76+2*k}, {8+k}")
    A("s_barrier")
    return hazard.fix(Emitter().emit(q))


def p1_prog(k1, opt):
    K = gen_k1n
    S_W, S_ROT, S_XO, SK, SO = K.S_W, K.S_ROT, K.S_XO, K.SK1, K.SO
    NL, RPW, HIMG = 6, 12, 0x20000
    VL16, VH, VHW, HP, ACC, LN0, BF, AF = 16, 31, 36, 44, 68, 68, 68 + 48, 0
    pre = []; A = lambda t: pre.append(V(t))
    nst = [0]
    def stamp():
        if not opt.get('timing') or not opt.get('p1t'): return []
        nst[0] += 1
        return [V(f"s_memtime s[{14+2*nst[0]}:{15+2*nst[0]}]", cost=0)]
    A(f"v_lshlrev_b32 v{VL16}, 4, v2")
    A(f"s_mul_i32 s7, s{S_W}, {RPW*512}")
    A(f"s_add_u32 s{S_XO}, s14, s7")
    A(f"s_add_u32 s{S_XO+1}, s{S_XO}, 4096")
    A("s_waitcnt lgkmcnt(0)")
    o = []; srd_from(o, K.SRD_X, 16, 0, "s15")
    for t in o: A(t)
    xso = lambda j: f"s{S_XO + j // 4} offen offset:{(j % 4) * 1024}"
    for j in range(NL): pre.append(VM(f"buffer_load_dwordx4 {vr(HP+4*j)}, v{VL16}, {sr(K.SRD_X)}, {xso(j)}", tag=('x', j)))
    for t in k1['mg']: A(t)
    K.img_addrs(A, NL, RPW, HIMG, VHW, VH)
    o = []
    srd_from(o, K.SRD_O, 38, QF_OFF, "s15"); srd_from(o, K.SRD_H, 38, H_OFF, "s15"); srd_from(o, K.SRD_W1, 38, 0, 256 << 20)
    for t in o: A(t)
    A(f"s_lshl_b32 s7, s{S_W}, 15"); A(f"s_add_u32 s7, s7, 0x{A_OFF:x}")
    for t in range(8):
        A(f"s_xor_b32 s6, s{S_ROT}, {t}"); A("s_lshl_b32 s6, s6, 12"); A(f"s_add_u32 s{SK+t}, s6, s7")
    A(f"s_lshl_b32 s7, s{S_W}, 11"); A(f"s_add_u32 s{SO}, s14, s7")
    for b in range(1, 3): A(f"s_add_u32 s{SO+b}, s{SO}, {b*8192}")
    A(f"s_mov_b32 s{K.S_EPS}, 0x3727c5ac"); A(f"s_mov_b32 s{K.S_R256}, 0x3b800000"); A(f"s_mov_b32 s{K.S_MASK}, 0xffff0000")
    A(f"v_lshlrev_b32 v17, {opt.get('afs', 7)}, v2"); A(f"v_add_u32 v17, 0x{FLAG_OFF + AF0 * FS:x}, v17")
    A(f"s_add_u32 s6, s{S_IDX}, {HF0}"); A("s_lshl_b32 s6, s6, 7"); A(f"s_add_u32 s6, s6, 0x{FLAG_OFF:x}")
    A(f"s_cmp_eq_u32 s{S_W}, 0"); A(f"s_cselect_b32 s74, s6, 0x{gen_f.OOB:x}")
    pre += stamp()
    K.ln_code(pre, NL, HP, LN0, VHW, k1, lambda: None, stamp,
              after=lambda j: pre.append(VM(f"buffer_store_dwordx4 {vr(HP+4*j)}, v{VL16}, {sr(K.SRD_H)}, {xso(j)} sc1")))
    A("s_waitcnt lgkmcnt(0)")
    for t in TAGADD: A(t)
    pre += stamp()
    A("s_barrier")
    for t in range(8):
        for rb in range(3): pre.append(LD(f"ds_read_b128 {vr(BF + (t*3 + rb)*4)}, v{VH + (t & 1)} offset:{rb*8192 + t*1024}", tag=('b', t)))
    em = Emitter(); em.emit(pre)
    if opt.get('w0p'): em.o += ["s_waitcnt vmcnt(0)", f"s_cmp_lg_u32 s{S_W}, 0", "s_cbranch_scc1 LM_aw_go"]
    gen_f.spin(em.o.append, "LM_aw", [f"buffer_load_dwordx2 v[18:19], v17, {sr(K.SRD_W1)}, 0 offen sc1"], [18], 75)
    em.done['vm'] = em.cnt['vm']
    st = Stream()
    ld = lambda t: [VM(f"buffer_load_dwordx4 {ar((t*4 + f)*4)}, v{VL16}, {sr(K.SRD_W1)}, s{SK+t} offen offset:{f*1024} sc1", tag=('a', t, f)) for f in range(4)]
    NA = opt.get('p1a', 3)
    if opt.get('w0p'): st.put(-1, V("s_barrier"))
    for x in stamp(): st.put(-1, x)
    for t in range(NA):
        for x in ld(t): st.put(-1, x)
    z = []; gen_f.publish(z.append, K.SRD_W1, 74, 20, opt, VL16)
    if not opt.get('w0p'): st.put(-1, V("s_barrier"))
    for x in z: st.put(-1, VM(x) if x.startswith('buffer') else V(x))
    acc = lambda f, rb: ACC + (rb * 4 + f) * 4
    done = {}
    for t in range(8):
        g0 = st.n()
        for f in range(4):
            for rb in range(3):
                done[(f, rb)] = st.mfma(f"{MF32} {vr(acc(f, rb))}, {ar((t*4 + f)*4)}, {vr(BF + (t*3 + rb)*4)}, {vr(acc(f, rb)) if t else 0}", needs=[('a', t, f), ('b', t)])
        if t + NA < 8:
            for k, x in enumerate(ld(t + NA)): st.put(g0 + 3 * k, x)
    nm = st.n()
    for u in range(2):
        for rb in range(3):
            a = acc(2 * u, rb); g = min(done[(2 * u + 1, rb)] + 3, nm - 1)
            for r in range(4): st.put(g, V(f"v_cvt_pk_bf16_f32 v{a+r}, v{a+2*r}, v{a+2*r+1}"))
            st.put(g, VM(f"buffer_store_dwordx4 {vr(a)}, v{VL16}, {sr(K.SRD_O)}, s{SO+rb} offen offset:{u*1024} sc1"))
    for x in stamp(): st.put(nm - 1, x)
    o = hazard.fix(em.emit(st.seq()))
    if nst[0]:
        o.append("s_waitcnt lgkmcnt(0)")
        o += [f"s_mov_b32 s{74 + 2*k}, s{16 + 2*k}" for k in range(nst[0])]
    return o


def sel_lanes(A, v, t, L, srcs):
    A(f"v_mov_b32 v{v}, s{srcs[0]}")
    for k, r in enumerate(srcs[1:]):
        A(f"v_mov_b32 v{t}, s{r}")
        A(f"v_cmp_lt_u32 vcc, 0x{128 * (k + 1) - 1:x}, v{L}")
        A("s_nop 1")
        A(f"v_cndmask_b32 v{v}, v{v}, v{t}, vcc")


def poll_addrs(A, S_OFF, av, step=None, lp=False):
    L = gen_f.VLANE16
    A("s_lshr_b32 s40, s39, 17"); A("s_min_u32 s40, s40, 38")
    A(f"s_lshr_b32 s41, s{S_OFF}, 17")
    A(f"s_add_u32 s3, s{S_OFF}, {step or '0x4000'}"); A("s_lshr_b32 s3, s3, 17")
    sel_lanes(A, VPA, 6, L, [38, 40, 41, 3])
    A(f"v_bfe_u32 v6, v{L}, 4, 3")
    A("v_min_u32 v6, 5, v6")
    A(f"v_mad_u32_u24 v{VPA}, v{VPA}, 6, v6")
    if lp:
        A("s_mul_i32 s3, s38, 6"); A("s_add_u32 s3, s3, s37"); A("s_xor_b32 s42, s3, 1")
        A(f"v_cmp_eq_u32 vcc, s3, v{VPA}"); A("v_mov_b32 v6, s42"); A("s_nop 0"); A(f"v_cndmask_b32 v{VPA}, v{VPA}, v6, vcc")
        A(f"s_add_u32 s3, s3, {P1F0}"); A("s_lshl_b32 s3, s3, 7"); A(f"s_add_u32 s3, s3, 0x{FLAG_OFF:x}")
        A("s_cmp_eq_u32 s34, 0"); A(f"s_cselect_b32 s91, s3, 0x{gen_f.OOB:x}")
    if av:
        A(f"v_cmp_lt_u32 vcc, 0x7f, v{L}")
        A(f"v_add_u32 v6, {HF0 - P1F0}, v{VPA}")
        A("s_nop 0")
        A(f"v_cndmask_b32 v{VPA}, v{VPA}, v6, vcc")
    A(f"v_lshlrev_b32 v{VPA}, 7, v{VPA}")
    A(f"v_add_u32 v{VPA}, 0x{FLAG_OFF + P1F0 * FS:x}, v{VPA}")
    if step:
        A(f"s_mul_i32 s3, {step}, 54"); A("s_add_u32 s3, s3, s39"); A("s_min_u32 s41, s3, s39"); A("s_max_u32 s3, s3, s39"); A("s_lshr_b32 s41, s41, 17")
    else: A("s_sub_u32 s3, s49, 1")
    A("s_min_u32 s40, s40, s41"); A("s_mul_i32 s40, s40, 6")
    A("s_lshr_b32 s3, s3, 17"); A("s_min_u32 s3, s3, 38"); A("s_mul_i32 s3, s3, 6"); A("s_add_u32 s3, s3, 5")
    A(f"v_lshrrev_b32 v{VPB}, 4, v{L}")
    A(f"v_add_u32 v{VPB}, s40, v{VPB}")
    A(f"v_min_u32 v{VPB}, s3, v{VPB}")
    A(f"v_lshlrev_b32 v{VPB}, 7, v{VPB}")
    A(f"v_add_u32 v{VPB}, 0x{FLAG_OFF + (HF0 if av else P1F0) * FS:x}, v{VPB}")


def poll_a(A, o, opt):
    srd_from(o, SWS, 4, 0, 256 << 20)
    if opt.get('w0p'): A("s_cmp_lg_u32 s34, 0"); A("s_cbranch_scc1 LM_pa_go")
    if opt.get('lp') == 1:
        A(f"buffer_load_dwordx2 v[6:7], v{VPA}, {sr(SWS)}, 0 offen sc1")
        A("s_waitcnt vmcnt(1)"); A("s_barrier")
        gen_f.publish(A, SWS, 91, 8, opt, gen_f.VLANE16)
        A("s_waitcnt vmcnt(1)"); A(f"v_cmp_ne_u64 vcc, {sr(S_TAG, 2)}, v[6:7]"); A("s_nop 1"); A("s_cbranch_vccz LM_pa_go")
    gen_f.spin(A, "LM_pa", [f"buffer_load_dwordx2 v[6:7], v{VPA}, {sr(SWS)}, 0 offen sc1"], [6], 3)
    if opt.get('w0p'): A("s_barrier")


def poll_b_load(): return f"buffer_load_dwordx2 {vr(VPD, 2)}, v{VPB}, {sr(SWS)}, 0 offen sc1"


def poll_b_check(A):
    A(f"v_cmp_ne_u64 vcc, {sr(S_TAG, 2)}, {vr(VPD, 2)}")
    A("s_nop 1")
    A("s_cbranch_vccnz LM_pb")
    A("LM_pb_ret:")


def poll_b_spin():
    o = ["LM_pb:"]
    gen_f.spin(o.append, "LM_pb2", [poll_b_load()], [VPD], 3)
    return o + ["s_branch LM_pb_ret"]
```

```python
N = 10000
D = 256
E = 160000
NB16 = 626
NT = 313
FRAGBLK = 8192
QF_OFF = 0
KF_OFF = 8 << 20
VF_OFF = 16 << 20
ME_OFF = 104 << 20
H_OFF = ME_OFF
WF_OFF = 16 << 20
A_OFF = 17 << 20
LT_OFF = 18 << 20
OP_OFF = 32 << 20
OP_STRIDE = 6 << 20
ML_OFF = 96 << 20
ML_STRIDE = 1 << 20
HL_OFF = 112 << 20
ECNT_OFF = 120 << 20
EDGE_OFF = 128 << 20
FLAG_OFF = 124 << 20
import os
if os.environ.get('COMPACT', '0') == '1':
    KB_ = 1024
    QF_OFF = 0; ME_OFF = H_OFF = 5120 * KB_; HL_OFF = 10240 * KB_; ML_OFF = 15360 * KB_; WF_OFF = 16896 * KB_; A_OFF = 17152 * KB_; LT_OFF = 17280 * KB_
    FLAG_OFF = 17408 * KB_; ECNT_OFF = 17664 * KB_; OP_OFF = 18432 * KB_; OP_STRIDE = 5120 * KB_; EDGE_OFF = 49152 * KB_
    B_ = int(os.environ.get('CBASE', '0')) << 20; OP_STRIDE = int(os.environ.get('CSTR', '5120')) * KB_; EDGE_OFF = OP_OFF + 6 * OP_STRIDE
    QF_OFF += B_; ME_OFF += B_; H_OFF += B_; HL_OFF += B_; ML_OFF += B_; WF_OFF += B_; A_OFF += B_; LT_OFF += B_; FLAG_OFF += B_; ECNT_OFF += B_; OP_OFF += B_; EDGE_OFF += B_
TIM_OFF = 208 << 20
QF_BYTES = NB16 * FRAGBLK
KF_BYTES = NB16 * FRAGBLK
VF_BYTES = NT * 16384
ME_BYTES = N * 512
HL_BYTES = N * 512
NSPLIT = 6
NQT = 40
K1_WGS = 256
EPW = E // K1_WGS
NBK = 64
BN = 157
BMAGIC, BSHIFT = 6679, 20
SEGS = [[(157, 64)]]
def segs():
    out = []; n0 = b0 = 0
    for sz, nb in SEGS[0]:
        mg = next(m for m in range((1 << BSHIFT) // sz, (1 << BSHIFT) // sz + 9) if all((x * m) >> BSHIFT == x // sz for x in range(sz * nb)))
        out.append((n0, sz, b0, mg, ((b0 << BSHIFT) - n0 * mg) & 0xffffffff)); n0 += sz * nb; b0 += nb
    assert n0 >= N and b0 == NBK
    return out
NEW = 16
ECAP = 10240
ECNT_BYTES = NBK * NEW * 4
EDGE_BYTES = NBK * NEW * ECAP * 4
assert all((d * BMAGIC) >> BSHIFT == d // BN for d in range(N)) and NBK * BN >= N
KA_X, KA_SRC, KA_DST, KA_DEG, KA_WMSG, KA_WQ, KA_WK, KA_WV, KA_WOUT, KA_OUT, KA_DBG, KA_WS = [8 * i for i in range(12)]


def vr(b, n=4): return f"v[{b}:{b+n-1}]"
def ar(b, n=4): return f"a[{b}:{b+n-1}]"
def sr(b, n=4): return f"s[{b}:{b+n-1}]"


class Seg:
    def __init__(self):
        self.mf = []
        self.gap = []
        self.pre = []

    def add_mfma(self, t):
        self.mf.append(t)
        self.gap.append([])

    def used(self, g):
        return sum(c for c, _ in self.gap[g])

    def put(self, g, text, cost=1):
        if g < 0:
            self.pre.append((cost, text))
        else:
            self.gap[g].append((cost, text))

    def fill(self, queue, g0, g1, cap=2):
        g = g0
        for cost, text in queue:
            while g < g1 and self.used(g) + cost > cap:
                g += 1
            self.gap[g].append((cost, text))
        return g

    def text(self):
        o = [t for _, t in self.pre]
        for m, gp in zip(self.mf, self.gap):
            o.append(m)
            o += [t for _, t in gp]
        return o


def srd_from(o, d, plo, off, nbytes, extra_sgpr=None):
    o.append(f"s_add_u32 s{d}, s{plo}, 0x{off & 0xffffffff:x}")
    o.append(f"s_addc_u32 s{d+1}, s{plo+1}, 0")
    if extra_sgpr is not None:
        o.append(f"s_add_u32 s{d}, s{d}, s{extra_sgpr}")
        o.append(f"s_addc_u32 s{d+1}, s{d+1}, 0")
    if isinstance(nbytes, str):
        o.append(f"s_mov_b32 s{d+2}, {nbytes}")
    else:
        o.append(f"s_mov_b32 s{d+2}, 0x{nbytes:x}")
    o.append(f"s_mov_b32 s{d+3}, 0x00020000")
```

```python
import sys, os
here = os.path.dirname(os.path.abspath(__file__))
sys.path.insert(0, here)
import gen, hazard
DEFAULTS = {"k1": {"st": " sc1", "code_end": "L3_end", "late": 1, "npre": 2, "rc": 3, "nopk": 2}, "k2": {"fuse": 1, "forder": "h4", "f1t": -1, "chain": 2, "pvc": 1, "eg2": [18, 100, -4], "smp2": "E0 E1 E2 A0 E3 A1 A2 A3 C0 C1", "gs": [66, 66, 69, 68, 122], "eg": [34, 145, -4], "segs": [[151, 36], [166, 6], [152, 6], [168, 16]], "cs": [0, 1, 1, 3], "fst": " sc1", "wt": 0, "l2h": 26, "race": [42], "pd": 3, "z1": 1, "wpf": 1, "fds": 1, "fd": 16, "rl": 1, "cpr": 2, "mg": 1, "sp0": 1, "npq": 5, "map": 2, "sper": 2, "st": " sc1", "gdma": [52, 53, 57, 61, 65], "new": 32, "light": 1, "trun": 5, "half": 1, "mle": 3, "ccap": [3, 3, 3, 2, 2, 2, 2, 2], "cnts": [52, 52, 52, 52, 53, 52]}, "k3": {"map": 1, "d": 6, "order": "m3", "nopk": 1}}
def kernels(opt=None):
    opt0 = opt or {}
    opt = {k: dict(v, **(opt0.get(k) or {})) for k, v in DEFAULTS.items()}
    if opt0.get('old') or opt0.get('emu1'): opt['k2']['new'] = 16
    if opt0.get('old'):
        del opt['k2']['gdma']
        import gen_k1, gen_k2, gen_k3
        return [gen_k1.kernel_desc(opt['k1']), gen_k2.kernel_desc(opt['k2']), gen_k3.kernel_desc(opt['k3'])]
    import gen_k2n, layout
    layout.SEGS[0] = opt['k2'].get('segs', [(157, 64)])
    ks = []
    if opt['k2'].get('fuse'):
        opt0 = dict(opt0, nok3=1); opt['k1']['fuse'] = 1; opt['k2'].setdefault('ste', ' sc1')
        if 'fstr' in opt['k2']: opt['k1']['fstr'] = opt['k2']['fstr']
    if opt0.get('nok3'): opt['k1']['code_end'] = 'L2_end'
    if opt['k2'].get('mg'):
        opt['k2']['k1'] = dict(opt['k1'], nw=4, new=16, ste=' sc1', timing=0, z1=opt['k2'].get('z1')); opt['k2']['new'] = 16
        k = gen_k2n.kernel_desc(opt['k2'])
        if opt['k2'].get('align'):
            import align; k['body'] = align.run(k['body'], *opt['k2']['align'])
        return [k]
    if opt0.get('emu1'):
        import gen_k1; ks.append(gen_k1.kernel_desc(opt['k1']))
    else:
        import gen_k1n; ks.append(gen_k1n.kernel_desc(opt['k1']))
    ks.append(gen_k2n.kernel_desc(opt['k2']))
    if not opt0.get('nok3'):
        import importlib; ks.append(importlib.import_module(opt0.get('k3mod', 'gen_k3n')).kernel_desc(opt['k3']))
    for k, o in zip(ks, (opt['k1'], opt['k2'], opt['k3'])):
        if o.get('align'):
            import align; k['body'] = align.run(k['body'], *o['align'])
    return ks
if __name__ == "__main__":
    import json
    opt = json.loads(sys.argv[2]) if len(sys.argv) > 2 else {}
    ks = kernels(opt)
    for k in ks:
        e = hazard.check(k['body'], k['name'])
        assert not e, "\n".join(e)
    out = sys.argv[1] if len(sys.argv) > 1 else os.path.join(here, "..", "standalone__hybrid_graph_tf_graphgps__graph.s")
    open(out, "w").write(gen.build_file(ks, rt=opt.get('rt', 0), plain=len(ks) == 1 and opt.get('plain', 1)))
    print("wrote", out, os.path.getsize(out))
```

```python
from layout import *

L_W0 = 4096
LIST_B = 20480
L_WS = LIST_B + 1024
PADV = 0xffff
BNMAX = 176
assert ((4096 + 3 * BNMAX) // 4 + BNMAX // 4 + 31) // 32 * 32 + 40 <= LIST_B // 16
S_BN, S_NB = 54, 55

VL = 1; VN16 = 2; VG = 3
CNT = 4; CP = 5
VOFF = 6
VCB = 7
VONE = 16; VFOUR = 17
MINV = [18, 19, 20, 21]
CB = 24
GS = 28
VS = 32; VT = 33; VT2 = 34; VCA = 35
VLB = 36
VFL = 37
VRD = 38
VST = 39
SELA = 40; SELB = 44
ACC = 48
IDXA = [52, 56]
AD = 60
PK = 64
PV = 66
VFILL = 68
VPAD = 72
IDX = 128
E = 192

S_B, S_W, S_PASS, S_LIM, S_NIT, S_IT, S_F, S_SO, S_T, S_512, S_EO = 40, 41, 42, 43, 44, 45, 46, 47, 48, 49, 50
SRD_C, SRD_E, SRD_G, SRD_H = 8, 12, 16, 20


def wave_reduce(A, v, t, op):
    for m in ("row_shr:1", "row_shr:2", "row_shr:4", "row_shr:8", "row_bcast:15 row_mask:0xa", "row_bcast:31 row_mask:0xc"):
        A("s_nop 1")
        A(f"{op}_dpp v{v}, v{v}, v{v} {m}" + (" row_mask:0xf" if "mask" not in m else "") + " bank_mask:0xf")


def gen_edge(o, opt):
    A = o.append
    timing = opt.get('timing')
    NEW = opt.get('new', 16); NPASS = 40; ECAP = 4096 // NEW; LPS = 64 // NEW; LS = LPS.bit_length() - 1; PER = 4096 // NEW
    nst = [0]
    def stamp():
        if timing:
            A("s_memtime s[88:89]")
            A("s_waitcnt lgkmcnt(0)")
            A(f"v_writelane_b32 v126, s88, {nst[0]}")
            nst[0] += 1
    A("LE_start:")
    A("s_cmp_ge_u32 s37, 32")
    A("s_cbranch_scc1 L2_end")
    A("v_lshrrev_b32 v1, 6, v0")
    A("s_sub_u32 s37, s37, 30")
    A("s_lshl_b32 s35, s35, 1")
    A(f"v_readfirstlane_b32 s{S_W}, v1")
    A("s_add_u32 s35, s35, s37")
    A("s_mul_i32 s35, s35, %d" % (3 if opt.get('light') else 4))
    A(f"s_add_u32 s{S_B}, s35, s{S_W}")
    if opt.get('light'):
        A(f"s_cmp_ge_u32 s{S_W}, 3")
        A("s_cbranch_scc1 L2_end")
    A("LE_common:")
    A(f"v_and_b32 v{VL}, 63, v0")
    if opt.get('wexit'):
        A(f"s_cmp_ge_u32 s{S_W}, {opt['wexit']}")
        A("s_cbranch_scc1 L2_end")
    for i, (n0, sz, b0, mg, c) in enumerate(segs()):
        assert sz <= BNMAX
        A(f"s_sub_u32 s36, s{S_B}, {b0}")
        A(f"s_cselect_b32 s{S_BN}, s{S_BN}, {sz}" if i else f"s_mov_b32 s{S_BN}, {sz}")
        A(f"s_mul_i32 s36, s36, {sz}")
        if i:
            A(f"s_add_u32 s36, s36, {n0}"); A(f"s_cmp_lt_u32 s{S_B}, {b0}")
        A(f"s_cselect_b32 s{S_NB}, s{S_NB}, s36" if i else f"s_mov_b32 s{S_NB}, s36")
    A(f"s_mov_b32 s{S_PASS}, 0")
    A(f"s_mov_b32 s{S_512}, 512")
    A(f"v_lshrrev_b32 v{VT}, {LS}, v{VL}")
    A(f"v_and_b32 v{VT2}, {LPS-1}, v{VL}")
    A(f"v_mul_u32_u24 v{VOFF}, 0x{ECAP*4:x}, v{VT}")
    A(f"v_lshl_add_u32 v{VOFF}, v{VT2}, 4, v{VOFF}")
    A(f"v_lshlrev_b32 v{VT}, 8, v{VT}")
    A(f"s_mul_i32 s{S_EO}, s{S_B}, {NEW*ECAP*4}")
    A(f"s_lshl_b32 s{S_T}, s{S_B}, 2")
    A("s_waitcnt lgkmcnt(0)")
    if timing:
        A("s_mov_b32 s100, s62")
        A("v_mov_b32 v126, v254")
    hl = ' sc1' if opt.get('mg') else ''
    if opt.get('mg'):
        import gen_f
        srd_from(o, SRD_C, 4, gen_f.FLAG_OFF + (gen_f.P1F0 + 240) * gen_f.FS, 16 * gen_f.FS)
        A(f"v_and_b32 v194, 15, v0"); A("v_lshlrev_b32 v194, 7, v194")
        gen_f.spin(A, "LE_poll0", [f"buffer_load_dwordx2 v[192:193], v194, {sr(SRD_C)}, 0 offen sc1"], [192])
    srd_from(o, SRD_C, 4, ECNT_OFF, NBK * NEW * 4)
    srd_from(o, SRD_E, 4, EDGE_OFF, EDGE_BYTES)
    A(f"buffer_load_dword v{CNT}, v{VT}, {sr(SRD_C)}, s{S_T} offen{hl}")
    def eloads():
        for k in range(16):
            A(f"buffer_load_dwordx4 {vr(E + k*4)}, v{VOFF}, {sr(SRD_E)}, s{S_EO} offen offset:{k*16*LPS}{hl}")
    eloads()
    srd_from(o, SRD_G, 4, ME_OFF, ME_BYTES)
    srd_from(o, SRD_H, 4, HL_OFF, HL_BYTES)
    A(f"v_lshlrev_b32 v{CP}, 2, v{VT2}")
    A(f"v_and_b32 v{VN16}, 15, v{VL}")
    A(f"v_lshrrev_b32 v{VG}, 4, v{VL}")
    A(f"v_mov_b32 v{VONE}, 1")
    A(f"v_mov_b32 v{VFOUR}, 4")
    A(f"v_and_b32 v{VT}, 1, v{VN16}")
    A(f"v_lshlrev_b32 v{VT}, 4, v{VT}")
    A(f"v_lshlrev_b32 v{VT}, v{VT}, v{VONE}")
    A(f"v_mul_u32_u24 v{VT}, 0x3f80, v{VT}")
    A(f"v_lshrrev_b32 v{VT2}, 1, v{VN16}")
    for k in range(8):
        A(f"v_cmp_eq_u32 vcc, {k}, v{VT2}")
        A("s_nop 1")
        A(f"v_cndmask_b32 v{SELA + k}, 0, v{VT}, vcc")
    A(f"v_lshlrev_b32 v{VST}, 5, v{VN16}")
    A(f"v_lshl_add_u32 v{VST}, v{VG}, 3, v{VST}")
    A(f"v_lshlrev_b32 v{VN16}, 4, v{VN16}")
    A(f"s_mul_i32 s{S_T}, s{S_W}, {L_WS}")
    A(f"s_add_u32 s{S_T}, s{S_T}, {L_W0}")
    A(f"v_mov_b32 v{VLB}, s{S_T}")
    A(f"v_lshl_add_u32 v{VRD}, v{VG}, 2, v{VLB}")
    A(f"s_lshl_b32 s36, s{S_W}, 10")
    A(f"s_lshl_b32 s35, s{S_NB}, 2")
    A(f"s_sub_u32 s35, s36, s35")
    A(f"v_mov_b32 v{VCB}, s35")
    A(f"v_lshlrev_b32 v{VCA}, 4, v{VL}")
    A(f"v_add_u32 v{VFILL}, s{S_T}, v{VCA}")
    A(f"v_add_u32 v{VCA}, s36, v{VCA}")
    A(f"v_lshlrev_b32 v{VT}, 2, v{VL}")
    for k in range(4):
        A(f"v_mov_b32 v{VPAD+k}, 0x{PADV:x}")
    for k in range(4):
        if k: A(f"v_add_u32 v{VT}, 1, v{VT}")
        A(f"v_cmp_gt_u32 vcc, s{S_BN}, v{VT}")
        A(f"v_mov_b32 v{ACC+k}, 0")
        A("s_nop 0")
        A(f"v_cndmask_b32 v{MINV[k]}, 0, v{VONE}, vcc")
    A("LE_pass:")
    A(f"ds_write_b128 v{VCA}, {vr(ACC)}")
    for k in range(LIST_B // 1024):
        A(f"ds_write_b128 v{VFILL}, {vr(VPAD)} offset:{k*1024}")
    A(f"v_lshl_add_u32 v{VS}, v{VL}, 2, v{VLB}")
    A(f"ds_write_b32 v{VS}, v{ACC} offset:{LIST_B}")
    stamp()
    A("s_waitcnt vmcnt(16)")
    stamp()
    A(f"v_sub_u32 v{VS}, v{CNT}, v{CP}")
    def slots(lab, fn, wait=False):
        for k in range(16):
            if wait: A(f"s_waitcnt vmcnt({15-k})")
            for j in range(4):
                A(f"v_cmpx_lt_i32 vcc, {4*LPS*k+j}, v{VS}")
                if j == 0: A(f"s_cbranch_execz {lab}")
                fn(4 * k + j)
        A(f"{lab}:")
        A("s_mov_b64 exec, -1")
    def f_count(s):
        A(f"v_mad_u32_u16 v{IDX+s}, v{E+s}, 1, v{VCB} op_sel:[1,0,0,0]")
        A(f"ds_add_u32 v{IDX+s}, v{VONE}")
    slots("LE_c", f_count, True)
    stamp()
    A(f"ds_read_b128 {vr(CB)}, v{VCA}")
    A("s_waitcnt lgkmcnt(0)")
    for k in range(4):
        A(f"v_add_u32 v{CB+k}, 3, v{CB+k}")
        A(f"v_lshrrev_b32 v{CB+k}, 2, v{CB+k}")
        A(f"v_max_u32 v{CB+k}, v{CB+k}, v{MINV[k]}")
    A(f"v_add_u32 v{VT}, v{CB}, v{CB+1}")
    A(f"v_add3_u32 v{VT}, v{VT}, v{CB+2}, v{CB+3}")
    A(f"v_mov_b32 v{PK}, v{VT}")
    wave_reduce(A, PK, None, "v_add_u32")
    A("s_nop 1")
    A(f"v_readlane_b32 s{S_NIT}, v{PK}, 63")
    A(f"v_sub_u32 v{GS}, v{PK}, v{VT}")
    for k in range(1, 4):
        A(f"v_add_u32 v{GS+k}, v{GS+k-1}, v{CB+k-1}")
    for k in range(4):
        A(f"v_add3_u32 v{VT}, v{GS+k}, v{CB+k}, -1")
        A(f"v_lshlrev_b32 v{VT2}, v{VT}, v{MINV[k]}")
        A(f"v_lshrrev_b32 v{VT}, 5, v{VT}")
        A(f"v_lshl_add_u32 v{VT}, v{VT}, 2, v{VLB}")
        A(f"ds_or_b32 v{VT}, v{VT2} offset:{LIST_B}")
        A(f"v_lshl_add_u32 v{GS+k}, v{GS+k}, 4, v{VLB}")
    A(f"ds_write_b128 v{VCA}, {vr(GS)}")
    A(f"s_add_u32 s{S_NIT}, s{S_NIT}, 31")
    A(f"s_lshr_b32 s{S_NIT}, s{S_NIT}, 5")
    stamp()
    slots("LE_p", lambda s: A(f"ds_add_rtn_u32 v{IDX+s}, v{IDX+s}, v{VFOUR}"))
    A(f"v_lshl_add_u32 v{VT}, v{VL}, 2, v{VLB}")
    A(f"ds_read_b32 v{VFL}, v{VT} offset:{LIST_B}")
    A("s_waitcnt lgkmcnt(0)")
    slots("LE_w", lambda s: A(f"ds_write_b32 v{IDX+s}, v{E+s}"))
    stamp()
    if opt.get('mg'):
        gen_f.poll_all(A, o, "LE_poll", SRD_C, 192)
        A(f"s_cmp_lg_u32 s{S_B}, 0")
        A("s_cbranch_scc1 LE_nobump")
        A(f"s_mov_b32 s90, {(gen_f.EPOCH - gen_f.P1F0) * gen_f.FS}")
        A(f"s_mov_b32 s{SRD_C+2}, {(gen_f.EPOCH + 1 - gen_f.P1F0) * gen_f.FS}")
        A(f"v_lshlrev_b32 v196, 4, v{VL}")
        gen_f.publish(A, SRD_C, 90, 192, opt, 196)
        A("LE_nobump:")
    A(f"v_mov_b32 v{VT2}, v{VRD}")
    NBT = 8
    def idx_read(b, par):
        i = IDXA[par]
        A(f"ds_read2_b32 v[{i}:{i+1}], v{VT2} offset0:{b*16} offset1:{b*16+4}")
        A(f"ds_read2_b32 v[{i+2}:{i+3}], v{VT2} offset0:{b*16+8} offset1:{b*16+12}")
    gl = opt.get('gl', hl)
    def issue(b):
        par = b % 2
        A("s_waitcnt lgkmcnt(0)")
        idx_read(b + 1, 1 - par)
        for i in range(4):
            A(f"v_mad_u32_u16 v{AD+i}, v{IDXA[par]+i}, s{S_512}, v{VN16}")
        for i in range(4):
            r = (b * 4 + i) * 8
            A(f"buffer_load_dwordx4 {ar(r)}, v{AD+i}, {sr(SRD_G)}, 0 offen{gl}")
            A(f"buffer_load_dwordx4 {ar(r+4)}, v{AD+i}, {sr(SRD_G)}, 0 offen offset:256{gl}")
    idx_read(0, 0)
    for b in range(NBT):
        issue(b)
    A(f"v_add_u32 v{VT2}, {NBT*64}, v{VT2}")
    A(f"s_mov_b32 s{S_IT}, 0")
    A(f"s_lshl_b32 s{S_SO}, s{S_NB}, 9")
    A("LE_loop:")
    A(f"v_readlane_b32 s{S_F}, v{VFL}, s{S_IT}")
    A(f"s_add_u32 s{S_IT}, s{S_IT}, 1")
    for b in range(NBT):
        A(f"s_waitcnt vmcnt({(NBT-1)*8})")
        for i in range(4):
            g = b * 4 + i
            r = g * 8
            A(f"v_mfma_f32_16x16x32_bf16 {vr(ACC)}, {ar(r)}, {vr(SELA)}, {vr(ACC)}")
            A(f"v_mfma_f32_16x16x32_bf16 {vr(ACC)}, {ar(r+4)}, {vr(SELB)}, {vr(ACC)}")
            A(f"s_bitcmp1_b32 s{S_F}, {g}")
            A(f"s_cbranch_scc0 LE_nf{g}")
            A(f"s_cmp_eq_u32 s{S_PASS}, 0")
            A(f"s_cbranch_scc1 LE_fl{g}")
            A(f"buffer_load_dwordx2 v[{PV}:{PV+1}], v{VST}, {sr(SRD_H)}, s{S_SO} offen sc1")
            A("s_waitcnt vmcnt(0)")
            for k in range(2):
                A(f"v_lshlrev_b32 v{PK}, 16, v{PV+k}")
                A(f"v_and_b32 v{PK+1}, 0xffff0000, v{PV+k}")
                A(f"v_add_f32 v{ACC+2*k}, v{ACC+2*k}, v{PK}")
                A(f"v_add_f32 v{ACC+2*k+1}, v{ACC+2*k+1}, v{PK+1}")
            A(f"LE_fl{g}:")
            A("s_nop 3")
            A(f"v_cvt_pk_bf16_f32 v{PK}, v{ACC}, v{ACC+1}")
            A(f"v_cvt_pk_bf16_f32 v{PK+1}, v{ACC+2}, v{ACC+3}")
            for k in range(4):
                A(f"v_mov_b32 v{ACC+k}, 0")
            A(f"buffer_store_dwordx2 v[{PK}:{PK+1}], v{VST}, {sr(SRD_H)}, s{S_SO} offen{opt.get('ste', '')}")
            A(f"s_add_u32 s{S_SO}, s{S_SO}, 512")
            A(f"LE_nf{g}:")
        issue(b)
    A(f"v_add_u32 v{VT2}, {NBT*64}, v{VT2}")
    A(f"s_cmp_lt_u32 s{S_IT}, s{S_NIT}")
    A("s_cbranch_scc1 LE_loop")
    stamp()
    A(f"s_add_u32 s{S_PASS}, s{S_PASS}, 1")
    A(f"s_mul_i32 s{S_LIM}, s{S_PASS}, {PER}")
    A(f"v_cmp_lt_u32 vcc, s{S_LIM}, v{CNT}")
    A("s_cbranch_vccz LE_done")
    A(f"s_cmp_ge_u32 s{S_PASS}, {NPASS}")
    A("s_cbranch_scc1 LE_done")
    A("s_waitcnt vmcnt(0) lgkmcnt(0)")
    A(f"s_add_u32 s{S_EO}, s{S_EO}, {NBK*4096*4}")
    A(f"v_add_u32 v{CP}, 0x{PER:x}, v{CP}")
    eloads()
    A("s_branch LE_pass")
    A("LE_done:")
    if opt.get('fuse'):
        import gen_f
        srd_from(o, 24, 4, gen_f.FLAG_OFF, gen_f.NFLAG * gen_f.fstr(opt))
        A(f"s_add_u32 s{S_T}, s{S_B}, {gen_f.HLF0}")
        A(f"s_mul_i32 s{S_T}, s{S_T}, {gen_f.fstr(opt)}")
        A("s_waitcnt vmcnt(0)")
        A(f"v_lshlrev_b32 v196, 4, v{VL}")
        gen_f.publish(A, 24, S_T, 192, opt, 196)
    if opt.get('wpf'):
        srd_from(o, 24, 4, gen_f.FLAG_OFF + gen_f.WFF0 * gen_f.FS, 8 * gen_f.FS)
        A(f"v_and_b32 v196, 7, v{VL}"); A("v_lshlrev_b32 v196, 7, v196")
        gen_f.spin(A, "LE_wf", ["buffer_load_dwordx2 v[192:193], v196, s[24:27], 0 offen sc1"], [192])
        srd_from(o, 24, 4, WF_OFF, 262144)
        A(f"s_mul_i32 s36, s{S_B}, 43"); A("s_lshr_b32 s36, s36, 8"); A("s_mul_i32 s36, s36, 6"); A(f"s_sub_u32 s36, s{S_B}, s36"); A("s_mul_i32 s36, s36, 49152")
        A(f"v_lshlrev_b32 v196, 7, v{VL}")
        for k in range(6): A(f"buffer_load_dword v{200+k}, v196, s[24:27], s36 offen"); A("s_add_u32 s36, s36, 8192")
    if opt.get('tpf'):
        A("s_getpc_b64 s[64:65]")
        A("LE_pc:")
        A("s_sub_u32 s64, s64, LE_pc-L2_tail_0")
        A("s_subb_u32 s65, s65, 0")
        A("s_mov_b32 s66, L2_Fend-L2_tail_0")
        A("s_mov_b32 s67, 0x00020000")
        A("s_mov_b64 exec, -1")
        A(f"v_lshlrev_b32 v1, 7, v{VL}")
        for k in range(4):
            A(f"s_movk_i32 s68, 0x{k*8192:x}")
            A(f"buffer_load_dword v{2+k}, v1, s[64:67], s68 offen")
    if timing:
        A("s_waitcnt vmcnt(0)")
        stamp()
        A(f"v_subrev_u32 v0, s100, v126")
        A("s_memrealtime s[88:89]")
        A("s_waitcnt lgkmcnt(0)")
        A("v_writelane_b32 v0, s88, 7")
        A("s_add_u32 s60, s4, 0x%x\ns_addc_u32 s61, s5, 0" % TIM_OFF)
        A("s_mov_b32 s62, 0x200000\ns_mov_b32 s63, 0x00020000")
        A(f"s_lshl_b32 s35, s{S_B}, 8")
        A(f"s_add_u32 s35, s35, 0x100000")
        A(f"v_lshlrev_b32 v1, 2, v{VL}")
        A(f"buffer_store_dword v0, v1, s[60:63], s35 offen")
    A("s_branch L2_end")
```

```python
from layout import *
from sched import *
import hazard

MF32 = "v_mfma_f32_16x16x32_bf16"
NFLAG = 2048
HLF0 = 1280
FS = 128
P1F0, WFF0, HF0, AF0, EPOCH = 1344, 1600, 1664, 1920, 2047
S_TAG = 98
MG = [0]
OOB = 0x70000000
MLS = 128
OWN = [[0, 4, 8], [1, 5, 12], [2, 9, 13], [6, 10, 14], [3, 7], [11, 15]]
QS = [0]
def mask(s, w):
    own = [b & 3 for b in OWN[s] if b >> 2 == w]
    if not QS[0]: return own[0] if own else 0
    return own[0] ^ 3 if own else 2 * [x for x in range(6) if not any(b >> 2 == w for b in OWN[x])].index(s)
TO = [33, 38, 60, 61]
SX, SWS, SM, SD, SO = 8, 16, 24, 52, 56
P_X = 60
S_NEED = 96
XO = [6, 7, 29]; S_FO = 51
S_WAVE, S_SPLIT, S_SPB, S_ML0 = 34, 37, 50, 48
S_XL, S_XB, S_H2 = 31, 28, 30
VLANE16, VE = 243, 241
DIAG, ACC, BF, ZA, WT, T = 0, 160, 208, 128, 144, 232
POOL = [r for r in range(48, 128, 8) if r not in (72, 104)]
VDUM, VPO2, VP1 = 36, 43, 248
XR = [104, 108, 152]
VIL, VH0, VH1, VPOLL, VPO, VPF = 40, 44, 45, 46, 47, 158
EV = dict(tmp=228, hf=240, cp=38, wf=108)
VWF_ = 108
VBH, VOW, VDGR = 72, 76, 79
VMK = 156
VW0, VW1, VML_, VT0, VT1, VTR, VWW, VWR, VZ, VZR, DG = 240, 241, 0, 245, 246, 247, 242, 250, 251, 252, 253
VML = 244
WO = [32, 33, 35, 36, 38, 39, 40, 41]
STR = [42, 43, 44, 45, 46, 47]
S_TMP = [49, 3]
S_SPIN, S_MASK = 94, 95


def fstr(opt): return FS


def pre_wait(A, s_oq, s_own):
    tab = sum((mask(sp, w) | (4 if any(b >> 2 == w for b in OWN[sp]) else 0)) << (3 * (sp * 4 + w)) for sp in range(6) for w in range(4))
    A("s_cmp_lt_u32 s37, 3")
    A(f"s_cselect_b32 s40, 0x{tab & 0xffffffff:x}, 0x{(tab >> 36) & 0xffffffff:x}" if 0 else f"s_mov_b32 s40, 0x{tab & 0xffffffff:x}")
    A(f"s_cselect_b32 s40, s40, 0x{(tab >> 36) & 0xffffffff:x}")
    A(f"s_cselect_b32 s41, {(tab >> 32) & 15}, {tab >> 68}")
    A("s_cselect_b32 s3, 0, 36")
    A(f"s_lshl_b32 s{s_oq}, s37, 2"); A(f"s_add_u32 s{s_oq}, s{s_oq}, s{S_WAVE}"); A(f"s_mul_i32 s{s_oq}, s{s_oq}, 3"); A(f"s_sub_u32 s3, s{s_oq}, s3")
    A("s_lshr_b64 s[40:41], s[40:41], s3")
    A(f"s_and_b32 s{s_oq}, s40, 3")
    A(f"s_bfe_u32 s{s_own}, s40, 0x10002")


def pre_rest(A):
    tab = 0
    for i, b in enumerate(x for l in OWN for x in l): tab |= b << (4 * i)
    A(f"s_mov_b32 s6, 0x{tab & 0xffffffff:x}")
    A(f"s_mov_b32 s7, 0x{tab >> 32:x}")
    A("s_mul_i32 s3, s37, 12")
    A("s_min_u32 s3, s3, 56")
    A("s_lshr_b64 s[6:7], s[6:7], s3")
    A("s_bfe_u32 s29, s6, 0x40008")
    A("s_bfe_u32 s7, s6, 0x40004")
    A("s_and_b32 s6, s6, 15")
    A("s_cmp_lt_u32 s37, 4")
    A("s_cselect_b32 s29, s29, 16")
    A("s_lshl_b32 s3, s38, 17")
    A(f"s_lshl_b32 s{S_FO}, s{S_WAVE}, 7")
    A(f"s_add_u32 s3, s3, s{S_FO}")
    for r in XO:
        A(f"s_lshl_b32 s{r}, s{r}, 13")
        A(f"s_add_u32 s{r}, s{r}, s3")
    A(f"s_mov_b64 s[{S_NEED}:{S_NEED+1}], 0")
    for r in XO:
        for e in (0, 15):
            A(f"s_lshr_b32 s3, s{r}, 9")
            if e: A(f"s_add_u32 s3, s3, {e}")
            for i, (n0, sz, b0, mg, c) in enumerate(segs()):
                A(f"s_mul_i32 s90, s3, {mg}")
                if i:
                    A(f"s_add_u32 s90, s90, 0x{c:x}"); A(f"s_cmp_lt_u32 s3, {n0}")
                A(f"s_cselect_b32 s91, s91, s90" if i else "s_mov_b32 s91, s90")
            A(f"s_lshr_b32 s3, s91, {BSHIFT}")
            A(f"s_bitset1_b64 s[{S_NEED}:{S_NEED+1}], s3")
    A("s_mul_i32 s3, s38, 6")
    A("s_add_u32 s3, s3, s37")
    A(f"s_cmp_eq_u32 s3, {38 * 6 + 5}")
    A("s_cselect_b32 s3, 0, s37")
    A("s_cmp_lt_u32 s3, 4")
    A(f"s_cselect_b32 s29, s29, 0x{OOB:x}")
    A(f"s_lshl_b32 s{S_FO}, s38, 5")
    A(f"s_lshl_b32 s3, s{S_WAVE}, 3")
    A(f"s_add_u32 s{S_FO}, s{S_FO}, s3")
    A(f"s_add_u32 s{S_FO}, s{S_FO}, s37")
    A(f"s_mul_i32 s{S_FO}, s{S_FO}, {FS}")
    A(f"s_add_u32 s{S_FO}, s{S_FO}, 0x{FLAG_OFF:x}")


def prologue(A, o, s_own):
    srd_from(o, SWS, 4, 0, 256 << 20)
    srd_from(o, SX, P_X, 0, N * 512)
    A(f"s_mov_b32 s{SD+2}, 0x{N*2:x}"); A(f"s_mov_b32 s{SD+3}, 0x00020000")
    A(f"s_mov_b32 s{SO+2}, 0x{N*512:x}"); A(f"s_mov_b32 s{SO+3}, 0x00020000")
    w = 3 if QS[0] else 0
    A(f"s_lshr_b32 s{S_ML0}, s{40+w}, 2")
    A(f"s_cmp_eq_u32 s{s_own}, 1")
    A(f"s_cselect_b32 s{40+w}, 0x{OOB:x}, s{40+w}")
    A(f"s_cselect_b32 s{44+w}, 0x{OOB:x}, s{44+w}")


def touch_setup(A):
    early = lambda sp, rb, k: rb < len(OWN[sp]) and ((OWN[sp][rb] & 3) ^ mask((sp + 1 + k) % 6, OWN[sp][rb] >> 2)) < 2
    tab = sum(int(early(sp, *e)) << ((sp * 4 + w) * 4 + i) for sp in range(6) for w in range(4) for i, e in enumerate([(0, w), (1, w), (2, w), (w, 4)]))
    A("s_cmp_lt_u32 s37, 4")
    A(f"s_mov_b32 s90, 0x{tab & 0xffffffff:x}"); A(f"s_cselect_b32 s90, s90, 0x{tab >> 64:x}"); A(f"s_cselect_b32 s91, 0x{(tab >> 32) & 0xffffffff:x}, 0")
    A(f"s_lshl_b32 s3, s37, 2"); A(f"s_add_u32 s3, s3, s{S_WAVE}"); A("s_lshl_b32 s3, s3, 2"); A("s_lshr_b64 s[90:91], s[90:91], s3")
    for kk, idx in ((f"s{S_WAVE}", (0, 1, 2)), ("4", (3,))):
        A(f"s_add_u32 s3, s37, {kk}"); A("s_add_u32 s3, s3, 1"); A("s_sub_u32 s91, s3, 6"); A("s_cselect_b32 s3, s3, s91")
        A(f"s_mul_i32 s3, s3, 0x{OP_STRIDE:x}"); A(f"s_add_u32 s3, s3, 0x{OP_OFF:x}")
        for i in idx:
            if i < 3: A(f"s_andn2_b32 s{TO[i]}, s{XO[i]}, 0x1fff")
            else:
                A(f"s_cmp_eq_u32 s{S_WAVE}, 1"); A(f"s_cselect_b32 s91, s{XO[1]}, s{XO[0]}"); A(f"s_cmp_eq_u32 s{S_WAVE}, 2"); A(f"s_cselect_b32 s91, s{XO[2]}, s91")
                A(f"s_andn2_b32 s{TO[i]}, s91, 0x1fff")
            A(f"s_add_u32 s{TO[i]}, s{TO[i]}, s3"); A(f"s_bitcmp1_b32 s90, {i}"); A(f"s_cselect_b32 s{TO[i]}, s{TO[i]}, 0x{OOB:x}")


def poll_addr(B, v, t, sa, cc='vcc'):
    L = VLANE16
    B(f"s_cmp_ge_u32 s{XO[2]}, 0x{OOB:x}")
    B(f"s_cselect_b32 s{sa[2]}, s{sa[1]}, s{sa[2]}")
    B(f"v_mov_b32 v{v}, s{sa[0]}")
    B(f"v_mov_b32 v{t}, s{sa[1]}")
    B(f"v_lshrrev_b32 v{t+1}, 7, v{L}")
    B(f"v_cmp_lt_u32_e64 {cc}, 0, v{t+1}")
    B(f"s_nop 1\nv_cndmask_b32_e64 v{v}, v{v}, v{t}, {cc}")
    B(f"v_cmp_lt_u32_e64 {cc}, 1, v{t+1}")
    B(f"v_mov_b32 v{t+1}, s{sa[2]}")
    B(f"v_bfe_u32 v{t}, v{L}, 4, 3")
    B(f"v_cndmask_b32_e64 v{v}, v{v}, v{t+1}, {cc}")
    B(f"v_min_u32 v{t}, 5, v{t}")
    B(f"v_lshrrev_b32 v{v}, 2, v{v}")
    B(f"v_lshl_add_u32 v{v}, v{v}, 3, v{t}")
    B(f"v_lshlrev_b32 v{v}, {FS.bit_length() - 1}, v{v}")
    B(f"v_add_u32 v{v}, 0x{FLAG_OFF:x}, v{v}")


def ml_addr(v, L, t):
    return [f"v_bfe_u32 v{v}, v{L}, 8, 1", f"v_mul_u32_u24 v{v}, 768, v{v}", f"v_lshl_add_u32 v{v}, s{S_SPLIT}, 7, v{v}",
            f"v_bfe_u32 v{t}, v{L}, 4, 4", f"v_lshl_add_u32 v{v}, v{t}, 3, v{v}"]


def publish(A, srd, soff, vt, opt, lane16):
    assert vt % 4 == 0
    for r in range(4): A(f"v_mov_b32 v{vt+r}, s{S_TAG + r % 2}")
    A("s_mov_b64 exec, 0xff")
    A(f"buffer_store_dwordx4 {vr(vt)}, v{lane16}, {sr(srd)}, s{soff} offen sc1")
    A("s_mov_b64 exec, -1")


def spin(A, lab, loads, regs, cnt=94, need=None, pair='vcc'):
    A(f"s_mov_b32 s{cnt}, 0x10000")
    A(f"{lab}:")
    for t in loads: A(t)
    A(f"s_sub_u32 s{cnt}, s{cnt}, 1")
    A("s_waitcnt vmcnt(0)")
    A(f"s_cbranch_scc1 {lab}_go")
    for r in regs:
        A(f"v_cmp_ne_u64 vcc, {sr(S_TAG, 2)}, {vr(r, 2)}")
        A("s_nop 1")
        A(f"s_cbranch_vccnz {lab}")
    A(f"{lab}_go:")


LF0 = 1610
def poll_all(A, o, lab, srd, v, n=256):
    srd_from(o, srd, 4, FLAG_OFF + P1F0 * FS, 256 * FS)
    A(f"v_and_b32 v{v+8}, 63, v0")
    A(f"v_lshlrev_b32 v{v+8}, 7, v{v+8}")
    so = ['0', 's91', 's90', 's95']
    for k in range(1, 4): A(f"s_mov_b32 {so[k]}, {k * 8192}")
    if n < 256: A(f"v_min_u32 v{v+9}, {(n - 193) * FS}, v{v+8}")
    spin(A, lab, [f"buffer_load_dwordx2 {vr(v+2*k, 2)}, v{v+8 + (k == 3 and n < 256)}, {sr(srd)}, {so[k]} offen sc1" for k in range(4)], [v + 2 * k for k in range(4)])


def vh0(v, t):
    L = VLANE16
    return [f"v_lshrrev_b32 v{v}, 4, v{L}", f"v_and_b32 v{v}, 0x30, v{v}", f"v_xor_b32 v{v}, v{v}, v{L}",
            f"v_and_b32 v{t}, 0x380, v{L}\nv_mad_u32_u24 v{v}, v{t}, 3, v{v}"]


def early1(p, opt):
    q = []
    A = lambda t, c=1: q.append((c, t))
    A(f"s_and_b32 s30, s30, 0x1c000")
    cur = p + opt['trun'] - 1; assert opt['trun'] in (4, 5)
    A(f"s_add_u32 s{S_XB}, s30, 0x{((5 if cur < 5 else 8) - cur) * 0x4000:x}")
    A(f"s_and_b32 s{S_XB}, s{S_XB}, 0x1ffff")
    A(f"s_add_u32 s30, s30, 0x{(6 - cur) * 0x4000:x}")
    A(f"s_and_b32 s30, s30, 0x1ffff")
    A(f"s_mul_i32 s{S_XL}, s{S_WAVE}, 6144")
    A(f"s_add_u32 s{S_XL}, s{S_XL}, s30")
    A(f"s_lshl_b32 s3, s{S_WAVE}, 10")
    A(f"s_add_u32 s{S_XB}, s{S_XB}, s3")
    A(f"s_add_u32 s3, s3, 24576")
    A(f"s_add_u32 s{S_H2}, s30, s3")
    for t in vh0(VE, EV['tmp']): A(t, 1 + t.count("\n"))
    return q


def dma6(A, c):
    seq = [(rb, u) for u in range(2) for rb in range(3)]
    m0 = lambda rb, u: f"s_add_u32 m0, s{S_XL}, {rb*2048 + u*1024}" if c == 'x' else f"s_add_u32 m0, s{S_XB if rb < 2 else S_H2}, {(rb % 2)*8192 + u*4096}"
    A(m0(*seq[0]), 2)
    for k, (rb, u) in enumerate(seq):
        t = f"buffer_load_dwordx4 v{VE}, {sr(SX)}, s{XO[rb]} offen lds" if c == 'x' else f"buffer_load_dwordx4 v{VE}, {sr(SWS)}, s{XO[rb]} offen sc1 lds ; HLD"
        if k < 5: t += "\n" + m0(*seq[k + 1])
        A(t, 2)
        if k == 2: A(f"v_xor_b32 v{VE}, 0x1040, v{VE}")


def early_x(p, opt):
    q = []
    dma6(lambda t, c=1: q.append((c, t)), 'x')
    return q


def early_tlb(p, opt):
    tab = sum(OWN[s][0] << (4 * s) for s in range(6)); L = VLANE16
    return [(1, x) for x in (f"v_bfe_u32 v192, v{L}, 4, 3", "v_min_u32 v192, 5, v192", "v_lshlrev_b32 v193, 2, v192", f"v_lshrrev_b32 v193, v193, v194" if 0 else f"s_mov_b32 s3, 0x{tab:x}",
            "v_lshrrev_b32_e64 v193, v193, s3", "v_and_b32 v193, 15, v193", "v_lshlrev_b32 v193, 13, v193", f"s_mov_b32 s3, 0x{OP_STRIDE:x}", "v_mad_u32_u24 v192, v192, s3, v193",
            f"s_andn2_b32 s3, s{XO[0]}, 0x1ffff", f"s_add_u32 s3, s3, 0x{OP_OFF:x}", f"buffer_load_dword v194, v192, {sr(SWS)}, s3 offen",
            f"buffer_load_dword v195, off, {sr(SO)}, s{XO[0]}", f"s_lshr_b32 s3, s{XO[0]}, 2", f"buffer_load_dword v196, off, {sr(SM)}, s3 offset:1536")]


def early_hf(p, opt):
    return [(1, f"v_lshlrev_b32 v{VE}, 3, v{VLANE16}"), (1, f"s_mov_b32 s3, 0x{FLAG_OFF + HLF0 * FS:x}"),
            (1, f"buffer_load_dwordx2 {vr(EV['hf'], 2)}, v{VE}, {sr(SWS)}, s3 offen sc1 ; HLFLAG")]


def early_h(p, opt):
    q = []
    A = lambda t, c=1: q.append((c, t))
    A("WAIT HLFLAG")
    A(f"v_cmp_ne_u64_e64 {sr(EV['cp'], 2)}, {sr(S_TAG, 2)}, {vr(EV['hf'], 2)}")
    A(f"s_and_b64 {sr(EV['cp'], 2)}, {sr(EV['cp'], 2)}, s[{S_NEED}:{S_NEED+1}]\ns_cbranch_scc1 LF_hl_{p}\nLF_hlret_{p}:", 2)
    for t in vh0(VE, EV['tmp']): A(t, 1 + t.count("\n"))
    A(f"v_add_u32 v{VE}, 0x{HL_OFF:x}, v{VE}")
    if MG[0]:
        A(f"v_and_b32 v{EV['wf']+2}, 0x70, v{VLANE16}")
        A(f"v_lshlrev_b32 v{EV['wf']+2}, 3, v{EV['wf']+2}")
        A(f"v_add_u32 v{EV['wf']+2}, 0x{FLAG_OFF + WFF0 * FS:x}, v{EV['wf']+2}")
        A(f"buffer_load_dwordx2 {vr(EV['wf'], 2)}, v{EV['wf']+2}, {sr(SWS)}, 0 offen sc1")
    dma6(A, 'h')
    return q


def fix_waits(lines):
    lines = [x for l in lines for x in l.split("\n")]
    for b, l in enumerate(lines):
        if l.startswith("WAIT "):
            a = max(i for i, x in enumerate(lines) if x.endswith("; " + l[5:]))
            n = sum(1 for x in lines[a + 1:b] if x.startswith("buffer_") and not x.endswith(";cond"))
            assert a < b and n < 64, (l, a, b, n)
            lines[b] = f"s_waitcnt vmcnt({n})"
    return lines


def hl_spin(p):
    return [f"LF_hl_{p}:", f"s_mov_b32 s{S_SPIN}, 0x10000", f"s_mov_b32 s3, 0x{FLAG_OFF + HLF0 * FS:x}", f"LF_hl2_{p}:", f"v_lshlrev_b32 v{VE}, 3, v{VLANE16}",
            f"buffer_load_dwordx2 {vr(EV['hf'], 2)}, v{VE}, {sr(SWS)}, s3 offen sc1",
            f"s_sub_u32 s{S_SPIN}, s{S_SPIN}, 1", "s_waitcnt vmcnt(0)", f"s_cbranch_scc1 LF_hlret_{p}",
            f"v_cmp_ne_u64_e64 {sr(EV['cp'], 2)}, {sr(S_TAG, 2)}, {vr(EV['hf'], 2)}", f"s_and_b64 {sr(EV['cp'], 2)}, {sr(EV['cp'], 2)}, s[{S_NEED}:{S_NEED+1}]",
            f"s_cbranch_scc1 LF_hl2_{p}", f"s_branch LF_hlret_{p}"]


R = lambda s, n: s * n
ORDERS = {
    'h2': "d" + R("a", 12) + "F" + R("a", 20) + R("b", 12) + "q" + R("b", 10) + "Q" + "mmm" + R("0b", 6) + "|" + R("1b", 4) + "11|" + "222|222|",
    'h1': "d" + R("a", 12) + "F" + R("a", 20) + "q" + R("b", 10) + "Q" + "mmm" + R("0b", 6) + "|" + R("1bb", 6) + "|" + "2bb2bb2|222|",
    'h4': "d" + R("a", 12) + "F" + R("a", 12) + "q" + R("a", 8) + "Q" + "mmm" + R("0bb", 6) + "|" + R("1bb", 6) + "|" + "2bbbb2bbbb2|222|",
    'h8': "d" + R("a", 12) + "F" + R("a", 10) + "q" + R("a", 10) + "Q" + "mmm" + "000111222|" + R("b", 16) + "000|" + R("b", 16) + "111|222|",
    'h9': "d" + R("a", 12) + "F" + R("a", 4) + "q" + R("a", 8) + "Q" + "mmm" + "000111222|000|111|222|" + R("a", 8) + R("b", 32),
    'ha': "d" + R("b", 12) + "F" + R("b", 20) + "q" + R("a", 10) + "Q" + "mmm" + "0a0a0a0a0a0a|1aa1aa1aa1aa1aa1aa|2aa2aa2|222|",
    'j1': "d" + R("a", 10) + "pF" + R("a", 4) + "Pmmm" + R("a", 10) + "q" + R("a", 8) + "Q" + R("0bb", 6) + "|" + R("1bb", 6) + "|" + "2bbbb2bbbb2|222|",
    'j2': "d" + R("a", 10) + "pF" + R("a", 4) + "Pmmm" + R("a", 18) + "q" + R("b", 10) + "Q" + R("0b", 6) + "|" + R("1bb", 6) + "|" + "2bb2bb2|222|",
    'j3': "d" + R("a", 10) + "pF" + R("a", 4) + "Pmmm" + R("a", 18) + R("b", 12) + "q" + R("b", 10) + "Q" + R("0b", 6) + "|" + R("1b", 4) + "11|" + "222|222|",
    'j4': "d" + R("a", 10) + "pF" + R("a", 4) + "Pmmm" + R("a", 10) + "q" + R("a", 8) + "Q" + "000111222|" + R("b", 16) + "000|" + R("b", 16) + "111|222|",
    'h5': "d" + R("a", 12) + "F" + R("a", 20) + R("b", 8) + "q" + R("b", 10) + "Q" + "mmm" + "0b0b0b1b1b1b2b2b2b|0b0b0b|1b1b1|222|",
    'h6': "d" + R("a", 12) + "F" + R("a", 20) + R("b", 20) + "p" + R("b", 12) + "Pqmmm000Q111222|000|111|222|",
    'h7': "d" + R("a", 12) + "F" + R("a", 16) + "p" + R("a", 4) + R("b", 8) + "Pmmm" + "0bb0bb0bb1bb1bb1bbq2bb2bb2bb|bbbbbbQ000|111|222|",
    'i1': "d" + R("a", 10) + "pF" + R("a", 8) + "Pmmm" + "0a0a0a1a1a1a2a2a2aa" + "q" + R("a", 4) + "b|" + R("b", 7) + "Q" + "0bb0bb0bb|1bb1bb1bb|2bb2bb2bb|" + R("b", 6),
    'i2': "d" + R("a", 10) + "Fp" + R("a", 10) + "Pmmm" + "0a0a0a1a1a1a2aa2aa2aa" + "|q" + R("b", 12) + "Q" + "0bb0bb0bb|1bb1bb1bb|2bb2bb2bbbb|",
    'i3': "d" + R("a", 10) + "Fp" + R("a", 22) + "Pmmm" + "0b0b0b1b1b1b2bb2bb2bb" + "|q" + R("b", 12) + "Q" + "0bb0bb0bb|1bb11|222|",
    'i4': "d" + R("a", 10) + "Fp" + R("a", 6) + "Pmmm" + "000111222" + "|q" + R("a", 16) + "Q" + "000|111|222|" + R("b", 32),
    'i5': "d" + R("a", 10) + "Fp" + R("a", 10) + "Pmmm" + "00aa01aa11aa22aa2aaaa" + "q|" + R("b", 16) + "Q" + "00bbbb0|1bbbb11bbbb|2bbbb22|",
}


def flag1(opt, mk='ST3', v=46):
    return [(1, "WAIT " + mk), (1, f"v_mov_b32 v{v}, s{S_TAG}"), (1, f"v_mov_b32 v{v+1}, s{S_TAG+1}"),
            (3, f"s_mov_b64 exec, 1\nbuffer_store_dwordx2 {vr(v, 2)}, off, {sr(SWS)}, s{S_FO} offset:8 sc1\ns_mov_b64 exec, -1")]


def final(opt, stamp=None):
    stamp = stamp or (lambda A: None)
    q = []
    A = lambda t, **k: q.append(V(t, **k))
    L = VLANE16
    if MG[0]: A(f"v_cmp_ne_u64 vcc, {sr(S_TAG, 2)}, {vr(EV['wf'], 2)}")
    A(f"s_lshl_b32 s3, s{S_WAVE}, 15")
    A(f"s_add_u32 s3, s3, 0x{WF_OFF:x}")
    if MG[0]: A("s_cbranch_vccnz LF_wf\nLF_wf_go:")
    A(f"v_add_u32 v{VW0}, s3, v{L}")
    A(f"v_add_u32 v{VW1}, 0x4000, v{VW0}")
    for k in range(8): A(f"s_mov_b32 s{WO[k]}, 0x{(k >> 2) * 131072 + (k & 3) * 4096:x}")
    for rb in range(3): A(f"s_lshr_b32 s{STR[rb]}, s{XO[rb]}, 13")
    A(f"v_mov_b32 v{VML}, s{STR[0]}")
    A(f"v_mov_b32 v{T}, s{STR[1]}")
    A(f"v_cmp_lt_u32 vcc, 0xff, v{L}")
    A(f"v_mov_b32 v{T+1}, s{STR[2]}")
    A(f"v_cndmask_b32 v{VML}, v{VML}, v{T}, vcc")
    A(f"v_cmp_lt_u32 vcc, 0x1ff, v{L}")
    A(f"v_and_b32 v{T+3}, 0xf0, v{L}")
    A(f"v_cndmask_b32 v{VML}, v{VML}, v{T+1}, vcc")
    A(f"v_lshrrev_b32 v{T}, 3, v{T+3}")
    A(f"v_lshl_add_u32 v{VDGR}, v{VML}, 5, v{T}")
    late = []
    B = lambda t: late.append(V(t))
    B(f"s_lshl_b32 s3, s{S_SPLIT}, 7")
    B(f"v_lshl_add_u32 v{VML}, v{VML}, 11, s3")
    B(f"v_lshl_add_u32 v{VML}, v{T}, 2, v{VML}")
    poll_addr(B, VPOLL, T, STR)
    B(f"s_lshl_b32 s49, s{S_WAVE}, 10")
    B(f"s_add_u32 s49, s49, 0x20000")
    for rb in range(3):
        B(f"s_bfe_u32 s3, s{XO[rb]}, 0x2000f")
        B(f"s_lshl_b32 s3, s3, 13")
        B(f"s_add_u32 s3, s3, s49")
        B(f"v_add_u32 v{VOW+rb}, s3, v{L}")
    for k in range(6):
        B(f"s_add_u32 s3, s{S_SPLIT}, {k + 1}")
        B(f"s_sub_u32 s49, s3, 6")
        B(f"s_cselect_b32 s3, s3, s49")
        B(f"s_mul_i32 s3, s3, 0x{OP_STRIDE:x}")
        B(f"s_add_u32 s{STR[k]}, s3, 0x{OP_OFF if not opt.get('foob') else OOB:x}")
    B(f"s_mul_i32 s3, s{S_WAVE}, {1024 - 128}")
    B(f"v_add_u32 v{VPO}, s3, v{L}")
    B(f"v_add_u32 v{VPO2}, 0x1000, v{VPO}")
    for t in vh0(VH0, T): late += [V(x) for x in t.split("\n")]
    B(f"v_xor_b32 v{VH1}, 0x1040, v{VH0}")
    B(f"v_bfe_u32 v{T}, v{L}, 5, 3")
    B(f"v_lshrrev_b32 v{T+2}, 8, v{L}")
    B(f"v_xor_b32 v{T}, v{T}, v{T+2}")
    B(f"v_bfe_u32 v{T+1}, v{L}, 4, 3")
    B(f"v_lshlrev_b32 v{T+1}, 7, v{T+1}")
    B(f"v_lshl_or_b32 v{T}, v{T}, 4, v{T+1}")
    B(f"v_bfe_u32 v{T+1}, v{L}, 7, 1")
    B(f"s_lshl_b32 s49, s{S_WAVE}, 10")
    B(f"s_sub_u32 s3, s{S_XB}, s49")
    B(f"v_lshl_add_u32 v{VBH+2}, v{T+1}, 12, v{T}")
    B(f"v_add_u32 v{VBH}, s3, v{VBH+2}")
    B(f"s_sub_u32 s3, s{S_H2}, s49")
    B(f"v_add_u32 v{VBH+2}, s3, v{VBH+2}")
    B(f"v_xor_b32 v{VBH+1}, 64, v{VBH}")
    B(f"v_xor_b32 v{VBH+3}, 64, v{VBH+2}")
    B(f"v_lshl_add_u32 v{VT0}, v{T+1}, 10, v{T}")
    B(f"v_add_u32 v{VT0}, s{S_XL}, v{VT0}")
    B(f"v_xor_b32 v{VT1}, 64, v{VT0}")
    B(f"v_add_u32 v{VTR}, s{S_XL}, v{L}")
    B(f"s_add_u32 s3, s3, 0x{0x10000 - 24576:x}")
    B(f"s_and_b32 s3, s3, 0x1ffff")
    B(f"v_add_u32 v{VZR}, s3, v{L}")
    B(f"v_add_u32 v{VZ}, s49, v{VZR}")
    B(f"s_lshl_b32 s49, s{S_WAVE}, 11")
    B(f"s_add_u32 s3, s3, s49")
    B(f"s_add_u32 s3, s3, 24576")
    B(f"v_lshl_add_u32 v{VWW}, v{L}, 1, s3")
    B(f"v_lshl_add_u32 v{VWR}, v{T+3}, 1, s3")
    B(f"v_lshrrev_b32 v{T}, 4, v{T+3}")
    B(f"v_lshlrev_b32 v{T+2}, 2, v{T+2}")
    B(f"v_sub_u32 v{T}, v{T}, v{T+2}")
    B(f"v_and_b32 v{T+1}, 1, v{T}")
    B(f"v_lshlrev_b32 v{T+1}, 4, v{T+1}")
    B(f"v_mov_b32 v{T+2}, 0xffff")
    B(f"v_lshlrev_b32 v{T+1}, v{T+1}, v{T+2}")
    B(f"v_lshrrev_b32 v{T}, 1, v{T}")
    for k in range(2):
        B(f"v_cmp_eq_u32 vcc, {k}, v{T}")
        B(f"v_cndmask_b32 v{VMK+k}, 0, v{T+1}, vcc")
    B(f"s_mov_b32 s{S_MASK}, 0xffff0000")
    order = opt.get('forder', 'i1'); order = ORDERS.get(order, order)
    D = opt.get('fd', 12)
    Lq = []; cnt = {}; bar = set()
    for ch in order:
        if ch == '|': bar.add(len(Lq) - 1); continue
        Lq.append((ch, cnt.get(ch, 0))); cnt[ch] = cnt.get(ch, 0) + 1
    assert dict(cnt, p=1, P=1) == dict(F=1, P=1, p=1, Q=1, q=1, d=1, m=3, a=32, b=32, **{'0': 6, '1': 6, '2': 6}), cnt
    wgt = lambda e: 0 if e[0] in 'FPQ' else (1 if e[1] % 3 == 2 and e[0] != '2' else 2) if e[0] in '012' else 1
    free = list(POOL); reg = {}; low = [99]; glue = set()
    MLR = ZA
    ld = opt.get('fld', ' sc1')
    pl = lambda ch: f"buffer_load_dwordx2 {vr(VP1, 2)}, v{VPOLL}, {sr(SWS)}, 0 offen offset:{8 if ch == 'p' else 0} sc1"
    def issue(z, e):
        Z = lambda t: z.append(V(t))
        ch, k = e
        if ch == 'F':
            z.append(W('ost')); stamp(Z)
            pz = []; publish(pz.append, SWS, S_FO, VDUM, opt, L)
            z.extend(VM(x, tag=e) if x.startswith('buffer') else V(x) for x in pz)
        elif ch in 'pq':
            z.append(VM(pl(ch), tag=e))
        elif ch in 'PQ':
            stamp(Z)
            z.append(V(f"v_cmp_ne_u64 vcc, {sr(S_TAG, 2)}, {vr(VP1, 2)}", needs=[(ch.lower(), 0)])); Z(f"s_nop 1\ns_cbranch_vccnz LF_spin{ch}\nLF_go{ch}:")
            stamp(Z)
        elif ch == 'd':
            z.append(VM(f"buffer_load_ushort v{VDGR}, v{VDGR}, {sr(SD)}, 0 offen", tag=e))
        elif ch == 'm':
            for u in range(2): z.append(VM(f"buffer_load_dwordx2 {vr(MLR + 4*k + 2*u, 2)}, v{VML}, {sr(SM)}, 0 offen offset:{128*(2*k + u + 1)} sc1", tag=e))
        elif ch in '012':
            r = reg[e] = free.pop(0); low[0] = min(low[0], len(free))
            rb = int(ch); j, sp = k // 3, k % 3
            gl = lambda u, rr: f"buffer_load_dwordx4 {vr(rr)}, v{VPO2 if j else VPO}, {sr(SWS)}, s{S_TMP[u]} offen{ld}"
            dl = lambda rr: f"ds_read_b128 {vr(rr)}, v{VOW+rb} offset:{j*4096}"
            for u in range(2):
                if sp == 2 and u == 1 and rb < 2:
                    z.append(LD(dl(r + 4), tag=('own', e))); continue
                Z(f"s_add_u32 s{S_TMP[u]}, s{XO[rb]}, s{STR[2*sp+u]}" if 2 * sp + u >= opt.get('fhot', 0) else f"s_mov_b32 s{S_TMP[u]}, 0x{WF_OFF + (rb * 6 + 2 * sp + u) * 8192:x}")
                if sp == 2 and u == 1:
                    Z(f"s_cmp_lt_u32 s{S_SPLIT}, 4\ns_cbranch_scc1 LF_o{j}")
                    z.append(V(gl(u, r + 4) + f"\n{dl(VDUM)}\ns_branch LF_j{j}\nLF_o{j}:\ns_mov_b32 s{S_TMP[u]}, 0x{OOB:x}"))
                    z.append(VM(gl(u, VDUM), tag=e)); z.append(LD(dl(r + 4) + f"\nLF_j{j}:", tag=('own', e)))
                    glue.update(id(x) for x in z[-3:])
                else: z.append(VM(gl(u, r + 4 * u), tag=e))
        else:
            z.append(VM(wload('ab'.index(ch), k), tag=e))
    tn = [0]
    def tmp():
        tn[0] += 1; return T + (tn[0] % 4) * 2
    diag = lambda rb, sp: DIAG + rb * 12 + sp * 4
    WTS = [WT, ZA, ZA + 8]
    def wt(z, rb):
        z.append(LD(f"ds_read_b128 {vr(WTS[rb])}, v{VWR} offset:{rb*512}"))
        z.append(LD(f"ds_read_b128 {vr(WTS[rb]+4)}, v{VWR} offset:{rb*512+16}", tag=('wt', rb)))
    def dbuild(z, rb):
        for s in range(NSPLIT):
            for k in range(2): z.append(V(f"v_and_b32 v{diag(rb, s // 2) + 2*(s % 2) + k}, v{WTS[rb]+s}, v{VMK+k}", needs=[('wt', rb)]))
        z.append(V(f"v_mov_b32 v{VIL+rb}, v{WTS[rb]+6}"))
    def dg_setup(z):
        z.append(V(f"v_lshlrev_b32 v{VDGR}, 16, v{VDGR}"))
        z.append(LD(f"ds_write_b32 v{VWW}, v{VDGR} offset:28"))
        for rb in range(3): z.append(LD(f"ds_read_b32 v{DG+rb}, v{VWR} offset:{rb*512+28}", tag='dg'))
    def weights(z):
        Z = lambda t: z.append(V(t))
        m = lambda s: MLR + 2 * s
        l = lambda s: m(s) + 1
        Z(f"v_max3_f32 v{T}, v{m(0)}, v{m(1)}, v{m(2)}")
        Z(f"v_max3_f32 v{T+1}, v{m(3)}, v{m(4)}, v{m(5)}")
        Z(f"v_max_f32 v{T}, v{T}, v{T+1}")
        Z(f"v_subrev_f32 v{T}, 0x42fe0000, v{T}")
        for s in range(NSPLIT): Z(f"v_sub_f32 v{m(s)}, v{m(s)}, v{T}")
        for s in range(NSPLIT): Z(f"v_cvt_u32_f32 v{m(s)}, v{m(s)}")
        for s in range(NSPLIT): Z(f"v_lshlrev_b32 v{T+2+s}, 23, v{m(s)}")
        Z(f"v_mul_f32 v{T}, v{T+2}, v{l(0)}")
        for s in range(1, NSPLIT): Z(f"v_fmac_f32 v{T}, v{T+2+s}, v{l(s)}")
        Z(f"v_rcp_f32 v{WT+6}, v{T}")
        for s in range(NSPLIT): Z(f"v_mul_u32_u24 v{WT+s}, 0x800080, v{m(s)}")
        z.append(LD(f"ds_write_b128 v{VWW}, {vr(WT)}"))
        z.append(LD(f"ds_write_b96 v{VWW}, {vr(WT+4, 3)} offset:16"))
        for rb in range(3): wt(z, rb)
        for rb in range(3): dbuild(z, rb)
    zw = set(); zok = set()
    acc = lambda rb, j, b: ACC + ((rb * 2 + j) * 2 + b) * 4
    un = [0]
    post = []
    def cstep(vq, ms, rb, k):
        j, sp = k // 3, k % 3
        e = (str(rb), k)
        r = reg[e]
        if sp == 0: un[0] += 1
        zd = ZA + 8 * (un[0] % 2)
        pre = [V(f"v_swap_b32 v{r+2}, v{r+4}", needs=[('own', e)] if sp == 2 else []), V(f"v_swap_b32 v{r+3}, v{r+5}")]
        for h in range(2):
            ms.append(Ins(f"{MF32} {vr(zd+4*h)}, {vr(r+4*h)}, {vr(diag(rb, sp))}, {vr(zd+4*h) if sp else 0}", 0))
        free.append(r)
        if sp == 2:
            z = [V(f"v_mul_f32 v{zd+c}, v{zd+c}, v{VIL+rb}") for c in range(8)]
            z += [V(f"v_cvt_pk_bf16_f32 v{zd+c}, v{zd+2*c}, v{zd+2*c+1}") for c in range(4)]
            z.append(LD(f"ds_write_b128 v{VZ}, {vr(zd)} offset:{rb*8192 + j*4096}", tag='z'))
            post.append(((rb, j), z))
        return pre
    nxt = {(m, rb): list(range(8)) for m in range(2) for rb in range(3)}
    groups = []; arrived = set(); barpos = [0]
    xn = [0]
    def x_read(z):
        n = xn[0]
        if n < 6: z.append(LD(f"ds_read_b128 {vr(XR[n % 3])}, v{VT0 + n % 2} offset:{(n // 2)*2048}", tag=('xr', n))); xn[0] += 1
    fdone = []
    def fma_x(z, rb):
        assert rb == len(fdone); fdone.append(rb)
        for j in range(2):
            n = 2 * rb + j; x = XR[n % 3]
            for c in range(4):
                t = tmp(); a = acc(rb, j, 0) + 2 * c
                z.append(V(f"v_lshlrev_b32 v{t}, 16, v{x+c}", needs=[('xr', n), 'dg']))
                z.append(V(f"v_and_b32 v{t+1}, s{S_MASK}, v{x+c}"))
                z.append(V(f"v_fma_f32 v{a}, v{a}, v{DG+rb}, v{t}"))
                z.append(V(f"v_fma_f32 v{a+1}, v{a+1}, v{DG+rb}, v{t+1}"))
            x_read(z)
    def ep(z, rb):
        for j in range(2):
            a = acc(rb, j, 0)
            for c in range(4): z.append(V(f"v_cvt_pk_bf16_f32 v{a+c}, v{a+2*c}, v{a+2*c+1}"))
            z.append(LD(f"ds_write_b128 v{VT0+j}, {vr(a)} offset:{rb*2048}"))
        for u in range(2): z.append(LD(f"ds_read_b128 {vr(acc(rb, u, 1))}, v{VTR} offset:{rb*2048 + u*1024}", tag=('y', rb, u)))
        stq.extend(VM(f"buffer_store_dwordx4 {vr(acc(rb, u, 1))}, v{VH0+u}, {sr(SO)}, s{XO[rb]} offen{opt.get('fst', '')}", needs=[('y', rb, u)]) for u in range(2))
    pend = []; blk = set(); stq = []
    def pick(cap):
        ms = []; n = 0
        while n < cap:
            cand = []
            for (m, rb), ts in nxt.items():
                if m == 1 and (nxt[(0, rb)] or ('fma', rb) in pend or rb in blk): continue
                for t in ts:
                    if m == 1 and (rb, t // 4) not in zok: continue
                    if ('ab'[m], 4 * t + 3) not in arrived: continue
                    cand.append((-m, rb if m else 0, t, rb)); break
            if not cand: break
            m, _, t, rb = min(cand); m = -m
            g = len(groups); groups.append((m, t, rb, barpos[0] if m == 1 or not groups else groups[-1][3], m == 0 and len(nxt[(m, rb)]) == 8))
            ms += [('G', g, b) for b in range(4)]
            nxt[(m, rb)].remove(t); n += 1
            if not nxt[(m, rb)]: pend.append(('fma' if m == 0 else 'ep', rb))
        return ms
    def merge(ms, vq):
        per = opt.get('fper', 2)
        while ms or vq:
            if ms: q.append(ms.pop(0))
            k = 0
            while vq and (k < per or not ms or id(vq[0]) in glue):
                x = vq.pop(0); q.append(x); k += 2 if (x.t or '').startswith(('v_swap', 'buffer')) else 1
    def take_pend(vq, n=9):
        blk.clear(); vq += stq; stq.clear()
        for p in list(pend)[:n]:
            pend.remove(p); (fma_x if p[0] == 'fma' else ep)(vq, p[1]); blk.add(p[1])
    def take_post(vq):
        for u, z in post: vq += z; zw.add(u)
        post.clear()
    def barrier():
        A("s_barrier"); q.append(('BAR', len(q))); barpos[0] = len(q) - 1
        stamp(A)
    ni = [0]
    def issue_n(z, k, d):
        while ni[0] < len(Lq) and sum(wgt(e) for e in Lq[k + 1:ni[0] + 1]) <= d:
            e = Lq[ni[0]]
            if e[0] in '012' and not free: break
            if e[0] in 'PQ' and (e[0].lower(), 0) not in arrived: break
            issue(z, e); ni[0] += 1
    fidx = [k for k, e in enumerate(Lq) if e[0] == 'F'][0]
    n1 = fidx - (Lq[fidx - 1][0] == 'p')
    while ni[0] < n1: issue(q, Lq[ni[0]]); ni[0] += 1
    q.extend(late)
    while ni[0] < fidx: issue(q, Lq[ni[0]]); ni[0] += 1
    if opt.get('fbf', 1): issue(q, Lq[fidx]); ni[0] += 1
    A("s_waitcnt lgkmcnt(0)")
    barrier()
    for _ in range(3): x_read(q)
    if not opt.get('fbf', 1): issue(q, Lq[fidx]); ni[0] += 1
    for k, e in enumerate(Lq):
        if e[0] not in 'FPQ': q.append(W(e))
        arrived.add(e)
        vq = []; ms = []; pre = []
        issue_n(vq, k, D)
        take_post(vq)
        take_pend(vq, 1)
        if e == ('d', 0): dg_setup(vq)
        if e == ('m', 2): weights(vq)
        if e[0] in '012': pre = cstep(vq, ms, int(e[0]), e[1])
        fill = pick(max(opt.get('fcap', 2) if e[0] in '012' else 1, (len(vq) + 7) // 8))
        if len(fill) >= 2: merge(fill[:2] + ms + fill[2:], pre + vq)
        else: q.extend(pre); merge(ms + fill, vq)
        if k in bar:
            vq = []; take_post(vq); merge(pick(opt.get('fcapb', 1)), vq)
            if zw - zok: q.append(W('z'))
            barrier()
            zok |= zw
    while any(nxt.values()) or pend or stq:
        vq = []; take_pend(vq); merge(pick(99), vq)
    NR = 6
    Fr = lambda n: BF + (n % NR) * 4
    def rd(n):
        m, t, rb = groups[n][:3]
        if m == 0: s = f"ds_read_b128 {vr(Fr(n))}, v{VBH + (rb // 2)*2 + (t & 1)} offset:{(rb % 2)*8192 + (t >> 1)*1024}"
        else: s = f"ds_read_b128 {vr(Fr(n))}, v{VZR} offset:{rb*8192 + t*1024}"
        return LD(s, tag=('f', n))
    out = []; nr = 0; done = -1
    for pos, it in enumerate(q):
        if isinstance(it, tuple) and it[0] == 'G':
            n, b = it[1], it[2]; m, t, rb, _, first = groups[n]
            assert nr > n
            a = acc(rb, b >> 1, b & 1)
            out.append(Ins(f"{MF32} {vr(a)}, {ar(m*128 + (4*t + b)*4)}, {vr(Fr(n))}, {0 if first else vr(a)}", 0, needs=[('f', n)]))
            if b == 0:
                done = n - 1
                if nr < len(groups) and nr <= done + NR and groups[nr][3] <= pos: out.append(rd(nr)); nr += 1
            if b == 3: done = n
        elif isinstance(it, tuple) and it[0] == 'BAR':
            while nr < len(groups) and nr <= done + NR - 1 and groups[nr][3] <= pos: out.append(rd(nr)); nr += 1
        else: out.append(it)
    if opt.get('fmem'):
        n0 = out.index(late[-1])
        def ok(it):
            if it.t is None: return all(isinstance(t, tuple) and t[0] in 'abmdpq012' or t == 'ost' for t in it.needs)
            if it.t.startswith('buffer_store_dwordx4'): return False
            return it.t.startswith(('s_', 'buffer_', f'v_mov_b32 v{VPF}', 'v_cmp', 'ds_read_b128 v[' + str(VDUM))) and not it.t.startswith('s_barrier') or 'LF_j' in it.t
        out = out[:n0 + 1] + [it for it in out[n0 + 1:] if ok(it)]
    em = Emitter(); em.pos['ost'] = ('vm', 0); em.cnt['vm'] = 1; em.kind.append(False)
    o = hazard.fix(em.emit(out))
    if opt.get('verbose'): print("final: min free", low[0], "lines", len(o), "nops", sum(1 for x in o if x.startswith('s_nop')))
    sp = []
    for ch in ('PQ' if 'P' in cnt else 'Q'):
        sp.append(f"LF_spin{ch}:")
        spin(sp.append, f"LF_spin2{ch}", [pl(ch.lower())], [VP1], S_SPIN)
        sp.append(f"s_branch LF_go{ch}")
    if MG[0]:
        sp.append("LF_wf:")
        spin(sp.append, "LF_wf2", [f"buffer_load_dwordx2 {vr(EV['wf'], 2)}, v{EV['wf']+2}, {sr(SWS)}, 0 offen sc1"], [EV['wf']], S_SPIN)
        sp.append("s_branch LF_wf_go")
    return o, sp


def wload(m, k):
    t, j, b = k >> 2, (k >> 1) & 1, k & 1
    return f"buffer_load_dwordx4 {ar(m*128 + 4*k)}, v{VW0 + j}, {sr(SWS)}, s{WO[m*4 + (t >> 1)]} offen offset:{(t & 1)*2048 + b*1024}{' sc1' if MG[0] else ''}"
```

```python
from layout import *
from sched import *
import hazard

MF32 = "v_mfma_f32_16x16x32_bf16"
NFLAG = 4096
F1OFF = 2560 * 128
AF2 = 2048
HLF0 = 1280
FS = 128
P1F0, WFF0, HF0, AF0, EPOCH = 1344, 1600, 1664, 1920, 2047
S_TAG = 98
MG = [0]
OOB = 0x70000000
MLS = 128
OWN = [[0, 4, 8], [1, 5, 12], [2, 9, 13], [6, 10, 14], [3, 7], [11, 15]]
QS = [0]
def mask(s, w):
    own = [b & 3 for b in OWN[s] if b >> 2 == w]
    if not QS[0]: return own[0] if own else 0
    return own[0] ^ 3 if own else 2 * [x for x in range(6) if not any(b >> 2 == w for b in OWN[x])].index(s)
TO = [33, 38, 60, 61]
SX, SWS, SM, SD, SO = 8, 16, 24, 52, 56
P_X = 60
S_NEED = 96
XO = [6, 7, 29]; S_FO = 51
S_WAVE, S_SPLIT, S_SPB, S_ML0 = 34, 37, 50, 48
S_XL, S_XB, S_H2 = 31, 28, 30
VLANE16, VE = 243, 241
DIAG, ACC, BF, ZA, WT, T = 0, 160, 208, 128, 144, 232
POOL = [r for r in range(48, 128, 8) if r not in (72, 104)]
VDUM, VPO2, VP1 = 36, 43, 248
XR = [104, 108, 152]
VIL, VH0, VH1, VPOLL, VPO, VPF = 40, 44, 45, 46, 47, 158
EV = dict(tmp=228, hf=240, cp=38, wf=108)
VWF_ = 108
VBH, VOW, VDGR = 72, 76, 79
VMK = 156
VW0, VW1, VML_, VT0, VT1, VTR, VWW, VWR, VZ, VZR, DG = 240, 241, 0, 245, 246, 247, 242, 250, 251, 252, 253
VML = 244
WO = [32, 33, 35, 36, 38, 39, 40, 41]
STR = [42, 43, 44, 45, 46, 47]
S_TMP = [49, 3]
S_SPIN, S_MASK = 94, 95


def fstr(opt): return FS


def pre_wait(A, s_oq, s_own):
    tab = sum((mask(sp, w) | (4 if any(b >> 2 == w for b in OWN[sp]) else 0)) << (3 * (sp * 4 + w)) for sp in range(6) for w in range(4))
    A("s_cmp_lt_u32 s37, 3")
    A(f"s_cselect_b32 s40, 0x{tab & 0xffffffff:x}, 0x{(tab >> 36) & 0xffffffff:x}" if 0 else f"s_mov_b32 s40, 0x{tab & 0xffffffff:x}")
    A(f"s_cselect_b32 s40, s40, 0x{(tab >> 36) & 0xffffffff:x}")
    A(f"s_cselect_b32 s41, {(tab >> 32) & 15}, {tab >> 68}")
    A("s_cselect_b32 s3, 0, 36")
    A(f"s_lshl_b32 s{s_oq}, s37, 2"); A(f"s_add_u32 s{s_oq}, s{s_oq}, s{S_WAVE}"); A(f"s_mul_i32 s{s_oq}, s{s_oq}, 3"); A(f"s_sub_u32 s3, s{s_oq}, s3")
    A("s_lshr_b64 s[40:41], s[40:41], s3")
    A(f"s_and_b32 s{s_oq}, s40, 3")
    A(f"s_bfe_u32 s{s_own}, s40, 0x10002")


def pre_rest(A):
    tab = 0
    for i, b in enumerate(x for l in OWN for x in l): tab |= b << (4 * i)
    A(f"s_mov_b32 s6, 0x{tab & 0xffffffff:x}")
    A(f"s_mov_b32 s7, 0x{tab >> 32:x}")
    A("s_mul_i32 s3, s37, 12")
    A("s_min_u32 s3, s3, 56")
    A("s_lshr_b64 s[6:7], s[6:7], s3")
    A("s_bfe_u32 s29, s6, 0x40008")
    A("s_bfe_u32 s7, s6, 0x40004")
    A("s_and_b32 s6, s6, 15")
    A("s_cmp_lt_u32 s37, 4")
    A("s_cselect_b32 s29, s29, 16")
    A("s_lshl_b32 s3, s38, 17")
    A(f"s_lshl_b32 s{S_FO}, s{S_WAVE}, 7")
    A(f"s_add_u32 s3, s3, s{S_FO}")
    for r in XO:
        A(f"s_lshl_b32 s{r}, s{r}, 13")
        A(f"s_add_u32 s{r}, s{r}, s3")
    A(f"s_mov_b64 s[{S_NEED}:{S_NEED+1}], 0")
    for r in XO:
        for e in (0, 15):
            A(f"s_lshr_b32 s3, s{r}, 9")
            if e: A(f"s_add_u32 s3, s3, {e}")
            for i, (n0, sz, b0, mg, c) in enumerate(segs()):
                A(f"s_mul_i32 s90, s3, {mg}")
                if i:
                    A(f"s_add_u32 s90, s90, 0x{c:x}"); A(f"s_cmp_lt_u32 s3, {n0}")
                A(f"s_cselect_b32 s91, s91, s90" if i else "s_mov_b32 s91, s90")
            A(f"s_lshr_b32 s3, s91, {BSHIFT}")
            A(f"s_bitset1_b64 s[{S_NEED}:{S_NEED+1}], s3")
    A("s_mul_i32 s3, s38, 6")
    A("s_add_u32 s3, s3, s37")
    A(f"s_cmp_eq_u32 s3, {38 * 6 + 5}")
    A("s_cselect_b32 s3, 0, s37")
    A("s_cmp_lt_u32 s3, 4")
    A(f"s_cselect_b32 s29, s29, 0x{OOB:x}")
    A(f"s_lshl_b32 s{S_FO}, s38, 5")
    A(f"s_lshl_b32 s3, s{S_WAVE}, 3")
    A(f"s_add_u32 s{S_FO}, s{S_FO}, s3")
    A(f"s_add_u32 s{S_FO}, s{S_FO}, s37")
    A(f"s_mul_i32 s{S_FO}, s{S_FO}, {FS}")
    A(f"s_add_u32 s{S_FO}, s{S_FO}, 0x{FLAG_OFF:x}")


def prologue(A, o, s_own):
    srd_from(o, SWS, 4, 0, 256 << 20)
    srd_from(o, SX, P_X, 0, N * 512)
    A(f"s_mov_b32 s{SD+2}, 0x{N*2:x}"); A(f"s_mov_b32 s{SD+3}, 0x00020000")
    A(f"s_mov_b32 s{SO+2}, 0x{N*512:x}"); A(f"s_mov_b32 s{SO+3}, 0x00020000")
    w = 3 if QS[0] else 0
    A(f"s_lshr_b32 s{S_ML0}, s{40+w}, 2")
    A(f"s_cmp_eq_u32 s{s_own}, 1")
    A(f"s_cselect_b32 s{40+w}, 0x{OOB:x}, s{40+w}")
    A(f"s_cselect_b32 s{44+w}, 0x{OOB:x}, s{44+w}")


def touch_setup(A):
    early = lambda sp, rb, k: rb < len(OWN[sp]) and ((OWN[sp][rb] & 3) ^ mask((sp + 1 + k) % 6, OWN[sp][rb] >> 2)) < 2
    tab = sum(int(early(sp, *e)) << ((sp * 4 + w) * 4 + i) for sp in range(6) for w in range(4) for i, e in enumerate([(0, w), (1, w), (2, w), (w, 4)]))
    A("s_cmp_lt_u32 s37, 4")
    A(f"s_mov_b32 s90, 0x{tab & 0xffffffff:x}"); A(f"s_cselect_b32 s90, s90, 0x{tab >> 64:x}"); A(f"s_cselect_b32 s91, 0x{(tab >> 32) & 0xffffffff:x}, 0")
    A(f"s_lshl_b32 s3, s37, 2"); A(f"s_add_u32 s3, s3, s{S_WAVE}"); A("s_lshl_b32 s3, s3, 2"); A("s_lshr_b64 s[90:91], s[90:91], s3")
    for kk, idx in ((f"s{S_WAVE}", (0, 1, 2)), ("4", (3,))):
        A(f"s_add_u32 s3, s37, {kk}"); A("s_add_u32 s3, s3, 1"); A("s_sub_u32 s91, s3, 6"); A("s_cselect_b32 s3, s3, s91")
        A(f"s_mul_i32 s3, s3, 0x{OP_STRIDE:x}"); A(f"s_add_u32 s3, s3, 0x{OP_OFF:x}")
        for i in idx:
            if i < 3: A(f"s_andn2_b32 s{TO[i]}, s{XO[i]}, 0x1fff")
            else:
                A(f"s_cmp_eq_u32 s{S_WAVE}, 1"); A(f"s_cselect_b32 s91, s{XO[1]}, s{XO[0]}"); A(f"s_cmp_eq_u32 s{S_WAVE}, 2"); A(f"s_cselect_b32 s91, s{XO[2]}, s91")
                A(f"s_andn2_b32 s{TO[i]}, s91, 0x1fff")
            A(f"s_add_u32 s{TO[i]}, s{TO[i]}, s3"); A(f"s_bitcmp1_b32 s90, {i}"); A(f"s_cselect_b32 s{TO[i]}, s{TO[i]}, 0x{OOB:x}")


def poll_addr(B, v, t, sa, cc='vcc'):
    L = VLANE16
    B(f"s_cmp_ge_u32 s{XO[2]}, 0x{OOB:x}")
    B(f"s_cselect_b32 s{sa[2]}, s{sa[1]}, s{sa[2]}")
    B(f"v_mov_b32 v{v}, s{sa[0]}")
    B(f"v_mov_b32 v{t}, s{sa[1]}")
    B(f"v_lshrrev_b32 v{t+1}, 7, v{L}")
    B(f"v_cmp_lt_u32_e64 {cc}, 0, v{t+1}")
    B(f"s_nop 1\nv_cndmask_b32_e64 v{v}, v{v}, v{t}, {cc}")
    B(f"v_cmp_lt_u32_e64 {cc}, 1, v{t+1}")
    B(f"v_mov_b32 v{t+1}, s{sa[2]}")
    B(f"v_bfe_u32 v{t}, v{L}, 4, 3")
    B(f"v_cndmask_b32_e64 v{v}, v{v}, v{t+1}, {cc}")
    B(f"v_min_u32 v{t}, 5, v{t}")
    B(f"v_lshrrev_b32 v{v}, 2, v{v}")
    B(f"v_lshl_add_u32 v{v}, v{v}, 3, v{t}")
    B(f"v_lshlrev_b32 v{v}, {FS.bit_length() - 1}, v{v}")
    B(f"v_add_u32 v{v}, 0x{FLAG_OFF:x}, v{v}")


def ml_addr(v, L, t):
    return [f"v_bfe_u32 v{v}, v{L}, 8, 1", f"v_mul_u32_u24 v{v}, 768, v{v}", f"v_lshl_add_u32 v{v}, s{S_SPLIT}, 7, v{v}",
            f"v_bfe_u32 v{t}, v{L}, 4, 4", f"v_lshl_add_u32 v{v}, v{t}, 3, v{v}"]


def publish(A, srd, soff, vt, opt, lane16):
    assert vt % 4 == 0
    for r in range(4): A(f"v_mov_b32 v{vt+r}, s{S_TAG + r % 2}")
    A("s_mov_b64 exec, 0xff")
    A(f"buffer_store_dwordx4 {vr(vt)}, v{lane16}, {sr(srd)}, s{soff} offen sc1")
    A("s_mov_b64 exec, -1")


def spin(A, lab, loads, regs, cnt=94, need=None, pair='vcc'):
    A(f"s_mov_b32 s{cnt}, 0x10000")
    A(f"{lab}:")
    for t in loads: A(t)
    A(f"s_sub_u32 s{cnt}, s{cnt}, 1")
    A("s_waitcnt vmcnt(0)")
    A(f"s_cbranch_scc1 {lab}_go")
    for r in regs:
        A(f"v_cmp_ne_u64 vcc, {sr(S_TAG, 2)}, {vr(r, 2)}")
        A("s_nop 1")
        A(f"s_cbranch_vccnz {lab}")
    A(f"{lab}_go:")


LF0 = 1610
def poll_all(A, o, lab, srd, v, n=256):
    srd_from(o, srd, 4, FLAG_OFF + P1F0 * FS, 256 * FS)
    A(f"v_and_b32 v{v+8}, 63, v0")
    A(f"v_lshlrev_b32 v{v+8}, 7, v{v+8}")
    so = ['0', 's91', 's90', 's95']
    for k in range(1, 4): A(f"s_mov_b32 {so[k]}, {k * 8192}")
    if n < 256: A(f"v_min_u32 v{v+9}, {(n - 193) * FS}, v{v+8}")
    spin(A, lab, [f"buffer_load_dwordx2 {vr(v+2*k, 2)}, v{v+8 + (k == 3 and n < 256)}, {sr(srd)}, {so[k]} offen sc1" for k in range(4)], [v + 2 * k for k in range(4)])


def vh0(v, t):
    L = VLANE16
    return [f"v_lshrrev_b32 v{v}, 4, v{L}", f"v_and_b32 v{v}, 0x30, v{v}", f"v_xor_b32 v{v}, v{v}, v{L}",
            f"v_and_b32 v{t}, 0x380, v{L}\nv_mad_u32_u24 v{v}, v{t}, 3, v{v}"]


def early1(p, opt):
    q = []
    A = lambda t, c=1: q.append((c, t))
    A(f"s_and_b32 s30, s30, 0x1c000")
    cur = p + opt['trun'] - 1; assert opt['trun'] in (4, 5)
    A(f"s_add_u32 s{S_XB}, s30, 0x{((5 if cur < 5 else 8) - cur) * 0x4000:x}")
    A(f"s_and_b32 s{S_XB}, s{S_XB}, 0x1ffff")
    A(f"s_add_u32 s30, s30, 0x{(6 - cur) * 0x4000:x}")
    A(f"s_and_b32 s30, s30, 0x1ffff")
    A(f"s_mul_i32 s{S_XL}, s{S_WAVE}, 6144")
    A(f"s_add_u32 s{S_XL}, s{S_XL}, s30")
    A(f"s_lshl_b32 s3, s{S_WAVE}, 10")
    A(f"s_add_u32 s{S_XB}, s{S_XB}, s3")
    A(f"s_add_u32 s3, s3, 24576")
    A(f"s_add_u32 s{S_H2}, s30, s3")
    for t in vh0(VE, EV['tmp']): A(t, 1 + t.count("\n"))
    return q


def dma6(A, c):
    seq = [(rb, u) for u in range(2) for rb in range(3)]
    m0 = lambda rb, u: f"s_add_u32 m0, s{S_XL}, {rb*2048 + u*1024}" if c == 'x' else f"s_add_u32 m0, s{S_XB if rb < 2 else S_H2}, {(rb % 2)*8192 + u*4096}"
    A(m0(*seq[0]), 2)
    for k, (rb, u) in enumerate(seq):
        t = f"buffer_load_dwordx4 v{VE}, {sr(SX)}, s{XO[rb]} offen lds" if c == 'x' else f"buffer_load_dwordx4 v{VE}, {sr(SWS)}, s{XO[rb]} offen sc1 lds ; HLD"
        if k < 5: t += "\n" + m0(*seq[k + 1])
        A(t, 2)
        if k == 2: A(f"v_xor_b32 v{VE}, 0x1040, v{VE}")


def early_x(p, opt):
    q = []
    dma6(lambda t, c=1: q.append((c, t)), 'x')
    return q


def early_tlb(p, opt):
    tab = sum(OWN[s][0] << (4 * s) for s in range(6)); L = VLANE16
    return [(1, x) for x in (f"v_bfe_u32 v192, v{L}, 4, 3", "v_min_u32 v192, 5, v192", "v_lshlrev_b32 v193, 2, v192", f"v_lshrrev_b32 v193, v193, v194" if 0 else f"s_mov_b32 s3, 0x{tab:x}",
            "v_lshrrev_b32_e64 v193, v193, s3", "v_and_b32 v193, 15, v193", "v_lshlrev_b32 v193, 13, v193", f"s_mov_b32 s3, 0x{OP_STRIDE:x}", "v_mad_u32_u24 v192, v192, s3, v193",
            f"s_andn2_b32 s3, s{XO[0]}, 0x1ffff", f"s_add_u32 s3, s3, 0x{OP_OFF:x}", f"buffer_load_dword v194, v192, {sr(SWS)}, s3 offen",
            f"buffer_load_dword v195, off, {sr(SO)}, s{XO[0]}", f"s_lshr_b32 s3, s{XO[0]}, 2", f"buffer_load_dword v196, off, {sr(SM)}, s3 offset:1536")]


def early_hf(p, opt):
    return [(1, f"v_lshlrev_b32 v{VE}, 3, v{VLANE16}"), (1, f"s_mov_b32 s3, 0x{FLAG_OFF + HLF0 * FS:x}"),
            (1, f"buffer_load_dwordx2 {vr(EV['hf'], 2)}, v{VE}, {sr(SWS)}, s3 offen sc1 ; HLFLAG")]


def early_h(p, opt):
    q = []
    A = lambda t, c=1: q.append((c, t))
    A("WAIT HLFLAG")
    A(f"v_cmp_ne_u64_e64 {sr(EV['cp'], 2)}, {sr(S_TAG, 2)}, {vr(EV['hf'], 2)}")
    A(f"s_and_b64 {sr(EV['cp'], 2)}, {sr(EV['cp'], 2)}, s[{S_NEED}:{S_NEED+1}]\ns_cbranch_scc1 LF_hl_{p}\nLF_hlret_{p}:", 2)
    for t in vh0(VE, EV['tmp']): A(t, 1 + t.count("\n"))
    A(f"v_add_u32 v{VE}, 0x{HL_OFF:x}, v{VE}")
    if MG[0]:
        A(f"v_and_b32 v{EV['wf']+2}, 0x70, v{VLANE16}")
        A(f"v_lshlrev_b32 v{EV['wf']+2}, 3, v{EV['wf']+2}")
        A(f"v_add_u32 v{EV['wf']+2}, 0x{FLAG_OFF + WFF0 * FS:x}, v{EV['wf']+2}")
        A(f"buffer_load_dwordx2 {vr(EV['wf'], 2)}, v{EV['wf']+2}, {sr(SWS)}, 0 offen sc1")
    dma6(A, 'h')
    return q


def fix_waits(lines):
    lines = [x for l in lines for x in l.split("\n")]
    for b, l in enumerate(lines):
        if l.startswith("WAIT "):
            a = max(i for i, x in enumerate(lines) if x.endswith("; " + l[5:]))
            n = sum(1 for x in lines[a + 1:b] if x.startswith("buffer_") and not x.endswith(";cond"))
            assert a < b and n < 64, (l, a, b, n)
            lines[b] = f"s_waitcnt vmcnt({n})"
    return lines


def hl_spin(p):
    return [f"LF_hl_{p}:", f"s_mov_b32 s{S_SPIN}, 0x10000", f"s_mov_b32 s3, 0x{FLAG_OFF + HLF0 * FS:x}", f"LF_hl2_{p}:", f"v_lshlrev_b32 v{VE}, 3, v{VLANE16}",
            f"buffer_load_dwordx2 {vr(EV['hf'], 2)}, v{VE}, {sr(SWS)}, s3 offen sc1",
            f"s_sub_u32 s{S_SPIN}, s{S_SPIN}, 1", "s_waitcnt vmcnt(0)", f"s_cbranch_scc1 LF_hlret_{p}",
            f"v_cmp_ne_u64_e64 {sr(EV['cp'], 2)}, {sr(S_TAG, 2)}, {vr(EV['hf'], 2)}", f"s_and_b64 {sr(EV['cp'], 2)}, {sr(EV['cp'], 2)}, s[{S_NEED}:{S_NEED+1}]",
            f"s_cbranch_scc1 LF_hl2_{p}", f"s_branch LF_hlret_{p}"]


R = lambda s, n: s * n
ORDERS = {
    'h2': "d" + R("a", 12) + "F" + R("a", 20) + R("b", 12) + "q" + R("b", 10) + "Q" + "mmm" + R("0b", 6) + "|" + R("1b", 4) + "11|" + "222|222|",
    'h1': "d" + R("a", 12) + "F" + R("a", 20) + "q" + R("b", 10) + "Q" + "mmm" + R("0b", 6) + "|" + R("1bb", 6) + "|" + "2bb2bb2|222|",
    'h4': "d" + R("a", 12) + "F" + R("a", 12) + "q" + R("a", 8) + "Q" + "mmm" + R("0bb", 6) + "|" + R("1bb", 6) + "|" + "2bbbb2bbbb2|222|",
    'h8': "d" + R("a", 12) + "F" + R("a", 10) + "q" + R("a", 10) + "Q" + "mmm" + "000111222|" + R("b", 16) + "000|" + R("b", 16) + "111|222|",
    'h9': "d" + R("a", 12) + "F" + R("a", 4) + "q" + R("a", 8) + "Q" + "mmm" + "000111222|000|111|222|" + R("a", 8) + R("b", 32),
    'ha': "d" + R("b", 12) + "F" + R("b", 20) + "q" + R("a", 10) + "Q" + "mmm" + "0a0a0a0a0a0a|1aa1aa1aa1aa1aa1aa|2aa2aa2|222|",
    'j1': "d" + R("a", 10) + "pF" + R("a", 4) + "Pmmm" + R("a", 10) + "q" + R("a", 8) + "Q" + R("0bb", 6) + "|" + R("1bb", 6) + "|" + "2bbbb2bbbb2|222|",
    'j2': "d" + R("a", 10) + "pF" + R("a", 4) + "Pmmm" + R("a", 18) + "q" + R("b", 10) + "Q" + R("0b", 6) + "|" + R("1bb", 6) + "|" + "2bb2bb2|222|",
    'j3': "d" + R("a", 10) + "pF" + R("a", 4) + "Pmmm" + R("a", 18) + R("b", 12) + "q" + R("b", 10) + "Q" + R("0b", 6) + "|" + R("1b", 4) + "11|" + "222|222|",
    'j4': "d" + R("a", 10) + "pF" + R("a", 4) + "Pmmm" + R("a", 10) + "q" + R("a", 8) + "Q" + "000111222|" + R("b", 16) + "000|" + R("b", 16) + "111|222|",
    'h5': "d" + R("a", 12) + "F" + R("a", 20) + R("b", 8) + "q" + R("b", 10) + "Q" + "mmm" + "0b0b0b1b1b1b2b2b2b|0b0b0b|1b1b1|222|",
    'h6': "d" + R("a", 12) + "F" + R("a", 20) + R("b", 20) + "p" + R("b", 12) + "Pqmmm000Q111222|000|111|222|",
    'h7': "d" + R("a", 12) + "F" + R("a", 16) + "p" + R("a", 4) + R("b", 8) + "Pmmm" + "0bb0bb0bb1bb1bb1bbq2bb2bb2bb|bbbbbbQ000|111|222|",
    'i1': "d" + R("a", 10) + "pF" + R("a", 8) + "Pmmm" + "0a0a0a1a1a1a2a2a2aa" + "q" + R("a", 4) + "b|" + R("b", 7) + "Q" + "0bb0bb0bb|1bb1bb1bb|2bb2bb2bb|" + R("b", 6),
    'i2': "d" + R("a", 10) + "Fp" + R("a", 10) + "Pmmm" + "0a0a0a1a1a1a2aa2aa2aa" + "|q" + R("b", 12) + "Q" + "0bb0bb0bb|1bb1bb1bb|2bb2bb2bbbb|",
    'i3': "d" + R("a", 10) + "Fp" + R("a", 22) + "Pmmm" + "0b0b0b1b1b1b2bb2bb2bb" + "|q" + R("b", 12) + "Q" + "0bb0bb0bb|1bb11|222|",
    'i4': "d" + R("a", 10) + "Fp" + R("a", 6) + "Pmmm" + "000111222" + "|q" + R("a", 16) + "Q" + "000|111|222|" + R("b", 32),
    'i5': "d" + R("a", 10) + "Fp" + R("a", 10) + "Pmmm" + "00aa01aa11aa22aa2aaaa" + "q|" + R("b", 16) + "Q" + "00bbbb0|1bbbb11bbbb|2bbbb22|",
}


def flag1(opt, mk='ST3', v=46):
    return [(1, "WAIT " + mk), (1, f"v_mov_b32 v{v}, s{S_TAG}"), (1, f"v_mov_b32 v{v+1}, s{S_TAG+1}"),
            (3, f"s_mov_b64 exec, 1\nbuffer_store_dwordx2 {vr(v, 2)}, off, {sr(SWS)}, s{S_FO} offset:8 sc1\ns_mov_b64 exec, -1")]


def final(opt, stamp=None):
    stamp = stamp or (lambda A: None)
    q = []
    A = lambda t, **k: q.append(V(t, **k))
    L = VLANE16
    if MG[0]: A(f"v_cmp_ne_u64 vcc, {sr(S_TAG, 2)}, {vr(EV['wf'], 2)}")
    A(f"s_lshl_b32 s3, s{S_WAVE}, 15")
    A(f"s_add_u32 s3, s3, 0x{WF_OFF:x}")
    if MG[0]: A("s_cbranch_vccnz LF_wf\nLF_wf_go:")
    A(f"v_add_u32 v{VW0}, s3, v{L}")
    A(f"v_add_u32 v{VW1}, 0x4000, v{VW0}")
    for k in range(8): A(f"s_mov_b32 s{WO[k]}, 0x{(k >> 2) * 131072 + (k & 3) * 4096:x}")
    for rb in range(3): A(f"s_lshr_b32 s{STR[rb]}, s{XO[rb]}, 13")
    A(f"v_mov_b32 v{VML}, s{STR[0]}")
    A(f"v_mov_b32 v{T}, s{STR[1]}")
    A(f"v_cmp_lt_u32 vcc, 0xff, v{L}")
    A(f"v_mov_b32 v{T+1}, s{STR[2]}")
    A(f"v_cndmask_b32 v{VML}, v{VML}, v{T}, vcc")
    A(f"v_cmp_lt_u32 vcc, 0x1ff, v{L}")
    A(f"v_and_b32 v{T+3}, 0xf0, v{L}")
    A(f"v_cndmask_b32 v{VML}, v{VML}, v{T+1}, vcc")
    A(f"v_lshrrev_b32 v{T}, 3, v{T+3}")
    A(f"v_lshl_add_u32 v{VDGR}, v{VML}, 5, v{T}")
    late = []
    B = lambda t: late.append(V(t))
    B(f"s_lshl_b32 s3, s{S_SPLIT}, 7")
    B(f"v_lshl_add_u32 v{VML}, v{VML}, 11, s3")
    B(f"v_lshl_add_u32 v{VML}, v{T}, 2, v{VML}")
    poll_addr(B, VPOLL, T, STR)
    B(f"s_lshl_b32 s49, s{S_WAVE}, 10")
    B(f"s_add_u32 s49, s49, 0x20000")
    for rb in range(3):
        B(f"s_bfe_u32 s3, s{XO[rb]}, 0x2000f")
        B(f"s_lshl_b32 s3, s3, 13")
        B(f"s_add_u32 s3, s3, s49")
        B(f"v_add_u32 v{VOW+rb}, s3, v{L}")
    for k in range(6):
        B(f"s_add_u32 s3, s{S_SPLIT}, {k + 1}")
        B(f"s_sub_u32 s49, s3, 6")
        B(f"s_cselect_b32 s3, s3, s49")
        B(f"s_mul_i32 s3, s3, 0x{OP_STRIDE:x}")
        B(f"s_add_u32 s{STR[k]}, s3, 0x{OP_OFF if not opt.get('foob') else OOB:x}")
    B(f"s_mul_i32 s3, s{S_WAVE}, {1024 - 128}")
    B(f"v_add_u32 v{VPO}, s3, v{L}")
    B(f"v_add_u32 v{VPO2}, 0x1000, v{VPO}")
    for t in vh0(VH0, T): late += [V(x) for x in t.split("\n")]
    B(f"v_xor_b32 v{VH1}, 0x1040, v{VH0}")
    B(f"v_bfe_u32 v{T}, v{L}, 5, 3")
    B(f"v_lshrrev_b32 v{T+2}, 8, v{L}")
    B(f"v_xor_b32 v{T}, v{T}, v{T+2}")
    B(f"v_bfe_u32 v{T+1}, v{L}, 4, 3")
    B(f"v_lshlrev_b32 v{T+1}, 7, v{T+1}")
    B(f"v_lshl_or_b32 v{T}, v{T}, 4, v{T+1}")
    B(f"v_bfe_u32 v{T+1}, v{L}, 7, 1")
    B(f"s_lshl_b32 s49, s{S_WAVE}, 10")
    B(f"s_sub_u32 s3, s{S_XB}, s49")
    B(f"v_lshl_add_u32 v{VBH+2}, v{T+1}, 12, v{T}")
    B(f"v_add_u32 v{VBH}, s3, v{VBH+2}")
    B(f"s_sub_u32 s3, s{S_H2}, s49")
    B(f"v_add_u32 v{VBH+2}, s3, v{VBH+2}")
    B(f"v_xor_b32 v{VBH+1}, 64, v{VBH}")
    B(f"v_xor_b32 v{VBH+3}, 64, v{VBH+2}")
    B(f"v_lshl_add_u32 v{VT0}, v{T+1}, 10, v{T}")
    B(f"v_add_u32 v{VT0}, s{S_XL}, v{VT0}")
    B(f"v_xor_b32 v{VT1}, 64, v{VT0}")
    B(f"v_add_u32 v{VTR}, s{S_XL}, v{L}")
    B(f"s_add_u32 s3, s3, 0x{0x10000 - 24576:x}")
    B(f"s_and_b32 s3, s3, 0x1ffff")
    B(f"v_add_u32 v{VZR}, s3, v{L}")
    B(f"v_add_u32 v{VZ}, s49, v{VZR}")
    B(f"s_lshl_b32 s49, s{S_WAVE}, 11")
    B(f"s_add_u32 s3, s3, s49")
    B(f"s_add_u32 s3, s3, 24576")
    B(f"v_lshl_add_u32 v{VWW}, v{L}, 1, s3")
    B(f"v_lshl_add_u32 v{VWR}, v{T+3}, 1, s3")
    B(f"v_lshrrev_b32 v{T}, 4, v{T+3}")
    B(f"v_lshlrev_b32 v{T+2}, 2, v{T+2}")
    B(f"v_sub_u32 v{T}, v{T}, v{T+2}")
    B(f"v_and_b32 v{T+1}, 1, v{T}")
    B(f"v_lshlrev_b32 v{T+1}, 4, v{T+1}")
    B(f"v_mov_b32 v{T+2}, 0xffff")
    B(f"v_lshlrev_b32 v{T+1}, v{T+1}, v{T+2}")
    B(f"v_lshrrev_b32 v{T}, 1, v{T}")
    for k in range(2):
        B(f"v_cmp_eq_u32 vcc, {k}, v{T}")
        B(f"v_cndmask_b32 v{VMK+k}, 0, v{T+1}, vcc")
    B(f"s_mov_b32 s{S_MASK}, 0xffff0000")
    order = opt.get('forder', 'i1'); order = ORDERS.get(order, order)
    D = opt.get('fd', 12)
    Lq = []; cnt = {}; bar = set()
    for ch in order:
        if ch == '|': bar.add(len(Lq) - 1); continue
        Lq.append((ch, cnt.get(ch, 0))); cnt[ch] = cnt.get(ch, 0) + 1
    assert dict(cnt, p=1, P=1) == dict(F=1, P=1, p=1, Q=1, q=1, d=1, m=3, a=32, b=32, **{'0': 6, '1': 6, '2': 6}), cnt
    wgt = lambda e: 0 if e[0] in 'FPQ' else (1 if e[1] % 3 == 2 and e[0] != '2' else 2) if e[0] in '012' else 1
    free = list(POOL); reg = {}; low = [99]; glue = set()
    MLR = ZA
    ld = opt.get('fld', ' sc1')
    pl = lambda ch: f"buffer_load_dwordx2 {vr(VP1, 2)}, v{VPOLL}, {sr(SWS)}, 0 offen offset:{8 if ch == 'p' else 0} sc1"
    def issue(z, e):
        Z = lambda t: z.append(V(t))
        ch, k = e
        if ch == 'F':
            z.append(W('ost')); stamp(Z)
            pz = []; publish(pz.append, SWS, S_FO, VDUM, opt, L)
            z.extend(VM(x, tag=e) if x.startswith('buffer') else V(x) for x in pz)
        elif ch in 'pq':
            z.append(VM(pl(ch), tag=e))
        elif ch in 'PQ':
            stamp(Z)
            z.append(V(f"v_cmp_ne_u64 vcc, {sr(S_TAG, 2)}, {vr(VP1, 2)}", needs=[(ch.lower(), 0)])); Z(f"s_nop 1\ns_cbranch_vccnz LF_spin{ch}\nLF_go{ch}:")
            stamp(Z)
        elif ch == 'd':
            z.append(VM(f"buffer_load_ushort v{VDGR}, v{VDGR}, {sr(SD)}, 0 offen", tag=e))
        elif ch == 'm':
            for u in range(2): z.append(VM(f"buffer_load_dwordx2 {vr(MLR + 4*k + 2*u, 2)}, v{VML}, {sr(SM)}, 0 offen offset:{128*(2*k + u + 1)} sc1", tag=e))
        elif ch in '012':
            r = reg[e] = free.pop(0); low[0] = min(low[0], len(free))
            rb = int(ch); j, sp = k // 3, k % 3
            gl = lambda u, rr: f"buffer_load_dwordx4 {vr(rr)}, v{VPO2 if j else VPO}, {sr(SWS)}, s{S_TMP[u]} offen{ld}"
            dl = lambda rr: f"ds_read_b128 {vr(rr)}, v{VOW+rb} offset:{j*4096}"
            for u in range(2):
                if sp == 2 and u == 1 and rb < 2:
                    z.append(LD(dl(r + 4), tag=('own', e))); continue
                Z(f"s_add_u32 s{S_TMP[u]}, s{XO[rb]}, s{STR[2*sp+u]}" if 2 * sp + u >= opt.get('fhot', 0) else f"s_mov_b32 s{S_TMP[u]}, 0x{WF_OFF + (rb * 6 + 2 * sp + u) * 8192:x}")
                if sp == 2 and u == 1:
                    Z(f"s_cmp_lt_u32 s{S_SPLIT}, 4\ns_cbranch_scc1 LF_o{j}")
                    z.append(V(gl(u, r + 4) + f"\n{dl(VDUM)}\ns_branch LF_j{j}\nLF_o{j}:\ns_mov_b32 s{S_TMP[u]}, 0x{OOB:x}"))
                    z.append(VM(gl(u, VDUM), tag=e)); z.append(LD(dl(r + 4) + f"\nLF_j{j}:", tag=('own', e)))
                    glue.update(id(x) for x in z[-3:])
                else: z.append(VM(gl(u, r + 4 * u), tag=e))
        else:
            z.append(VM(wload('ab'.index(ch), k), tag=e))
    tn = [0]
    def tmp():
        tn[0] += 1; return T + (tn[0] % 4) * 2
    diag = lambda rb, sp: DIAG + rb * 12 + sp * 4
    WTS = [WT, ZA, ZA + 8]
    def wt(z, rb):
        z.append(LD(f"ds_read_b128 {vr(WTS[rb])}, v{VWR} offset:{rb*512}"))
        z.append(LD(f"ds_read_b128 {vr(WTS[rb]+4)}, v{VWR} offset:{rb*512+16}", tag=('wt', rb)))
    def dbuild(z, rb):
        for s in range(NSPLIT):
            for k in range(2): z.append(V(f"v_and_b32 v{diag(rb, s // 2) + 2*(s % 2) + k}, v{WTS[rb]+s}, v{VMK+k}", needs=[('wt', rb)]))
        z.append(V(f"v_mov_b32 v{VIL+rb}, v{WTS[rb]+6}"))
    def dg_setup(z):
        z.append(V(f"v_lshlrev_b32 v{VDGR}, 16, v{VDGR}"))
        z.append(LD(f"ds_write_b32 v{VWW}, v{VDGR} offset:28"))
        for rb in range(3): z.append(LD(f"ds_read_b32 v{DG+rb}, v{VWR} offset:{rb*512+28}", tag='dg'))
    def weights(z):
        Z = lambda t: z.append(V(t))
        m = lambda s: MLR + 2 * s
        l = lambda s: m(s) + 1
        Z(f"v_max3_f32 v{T}, v{m(0)}, v{m(1)}, v{m(2)}")
        Z(f"v_max3_f32 v{T+1}, v{m(3)}, v{m(4)}, v{m(5)}")
        Z(f"v_max_f32 v{T}, v{T}, v{T+1}")
        Z(f"v_subrev_f32 v{T}, 0x42fe0000, v{T}")
        for s in range(NSPLIT): Z(f"v_sub_f32 v{m(s)}, v{m(s)}, v{T}")
        for s in range(NSPLIT): Z(f"v_cvt_u32_f32 v{m(s)}, v{m(s)}")
        for s in range(NSPLIT): Z(f"v_lshlrev_b32 v{T+2+s}, 23, v{m(s)}")
        Z(f"v_mul_f32 v{T}, v{T+2}, v{l(0)}")
        for s in range(1, NSPLIT): Z(f"v_fmac_f32 v{T}, v{T+2+s}, v{l(s)}")
        Z(f"v_rcp_f32 v{WT+6}, v{T}")
        for s in range(NSPLIT): Z(f"v_mul_u32_u24 v{WT+s}, 0x800080, v{m(s)}")
        z.append(LD(f"ds_write_b128 v{VWW}, {vr(WT)}"))
        z.append(LD(f"ds_write_b96 v{VWW}, {vr(WT+4, 3)} offset:16"))
        for rb in range(3): wt(z, rb)
        for rb in range(3): dbuild(z, rb)
    zw = set(); zok = set()
    acc = lambda rb, j, b: ACC + ((rb * 2 + j) * 2 + b) * 4
    un = [0]
    post = []
    def cstep(vq, ms, rb, k):
        j, sp = k // 3, k % 3
        e = (str(rb), k)
        r = reg[e]
        if sp == 0: un[0] += 1
        zd = ZA + 8 * (un[0] % 2)
        pre = [V(f"v_swap_b32 v{r+2}, v{r+4}", needs=[('own', e)] if sp == 2 else []), V(f"v_swap_b32 v{r+3}, v{r+5}")]
        for h in range(2):
            ms.append(Ins(f"{MF32} {vr(zd+4*h)}, {vr(r+4*h)}, {vr(diag(rb, sp))}, {vr(zd+4*h) if sp else 0}", 0))
        free.append(r)
        if sp == 2:
            z = [V(f"v_mul_f32 v{zd+c}, v{zd+c}, v{VIL+rb}") for c in range(8)]
            z += [V(f"v_cvt_pk_bf16_f32 v{zd+c}, v{zd+2*c}, v{zd+2*c+1}") for c in range(4)]
            z.append(LD(f"ds_write_b128 v{VZ}, {vr(zd)} offset:{rb*8192 + j*4096}", tag='z'))
            post.append(((rb, j), z))
        return pre
    nxt = {(m, rb): list(range(8)) for m in range(2) for rb in range(3)}
    groups = []; arrived = set(); barpos = [0]
    xn = [0]
    def x_read(z):
        n = xn[0]
        if n < 6: z.append(LD(f"ds_read_b128 {vr(XR[n % 3])}, v{VT0 + n % 2} offset:{(n // 2)*2048}", tag=('xr', n))); xn[0] += 1
    fdone = []
    def fma_x(z, rb):
        assert rb == len(fdone); fdone.append(rb)
        for j in range(2):
            n = 2 * rb + j; x = XR[n % 3]
            for c in range(4):
                t = tmp(); a = acc(rb, j, 0) + 2 * c
                z.append(V(f"v_lshlrev_b32 v{t}, 16, v{x+c}", needs=[('xr', n), 'dg']))
                z.append(V(f"v_and_b32 v{t+1}, s{S_MASK}, v{x+c}"))
                z.append(V(f"v_fma_f32 v{a}, v{a}, v{DG+rb}, v{t}"))
                z.append(V(f"v_fma_f32 v{a+1}, v{a+1}, v{DG+rb}, v{t+1}"))
            x_read(z)
    def ep(z, rb):
        for j in range(2):
            a = acc(rb, j, 0)
            for c in range(4): z.append(V(f"v_cvt_pk_bf16_f32 v{a+c}, v{a+2*c}, v{a+2*c+1}"))
            z.append(LD(f"ds_write_b128 v{VT0+j}, {vr(a)} offset:{rb*2048}"))
        for u in range(2): z.append(LD(f"ds_read_b128 {vr(acc(rb, u, 1))}, v{VTR} offset:{rb*2048 + u*1024}", tag=('y', rb, u)))
        stq.extend(VM(f"buffer_store_dwordx4 {vr(acc(rb, u, 1))}, v{VH0+u}, {sr(SO)}, s{XO[rb]} offen{opt.get('fst', '')}", needs=[('y', rb, u)]) for u in range(2))
    pend = []; blk = set(); stq = []; ni = [0]
    def pick(cap):
        ms = []; n = 0
        while n < cap:
            cand = []
            for (m, rb), ts in nxt.items():
                if m == 1 and (nxt[(0, rb)] or ('fma', rb) in pend or rb in blk): continue
                for t in ts:
                    if m == 1 and (rb, t // 4) not in zok: continue
                    if ('ab'[m], 4 * t + 3) not in arrived: continue
                    cand.append((-m, rb if m else 0, t, rb)); break
            if not cand: break
            m, _, t, rb = min(cand); m = -m
            g = len(groups); groups.append((m, t, rb, barpos[0] if m == 1 or not groups else groups[-1][3], m == 0 and len(nxt[(m, rb)]) == 8))
            ms += [('G', g, b) for b in range(4)]
            nxt[(m, rb)].remove(t); n += 1
            if not nxt[(m, rb)]: pend.append(('fma' if m == 0 else 'ep', rb))
        return ms
    def merge(ms, vq):
        per = opt.get('fper', 2)
        while ms or vq:
            if ms: q.append(ms.pop(0))
            k = 0
            while vq and (k < per or not ms or id(vq[0]) in glue):
                x = vq.pop(0); q.append(x); k += 2 if (x.t or '').startswith(('v_swap', 'buffer')) else 1
    def take_pend(vq, n=9):
        blk.clear()
        if ni[0] == len(Lq) or not opt.get('fds'): vq += stq; stq.clear()
        for p in list(pend)[:n]:
            pend.remove(p); (fma_x if p[0] == 'fma' else ep)(vq, p[1]); blk.add(p[1])
    def take_post(vq):
        for u, z in post: vq += z; zw.add(u)
        post.clear()
    def barrier():
        A("s_barrier"); q.append(('BAR', len(q))); barpos[0] = len(q) - 1
        stamp(A)
    def issue_n(z, k, d):
        while ni[0] < len(Lq) and sum(wgt(e) for e in Lq[k + 1:ni[0] + 1]) <= d:
            e = Lq[ni[0]]
            if e[0] in '012' and not free: break
            if e[0] in 'PQ' and (e[0].lower(), 0) not in arrived: break
            issue(z, e); ni[0] += 1
    fidx = [k for k, e in enumerate(Lq) if e[0] == 'F'][0]
    n1 = fidx - (Lq[fidx - 1][0] == 'p')
    while ni[0] < n1: issue(q, Lq[ni[0]]); ni[0] += 1
    q.extend(late)
    while ni[0] < fidx: issue(q, Lq[ni[0]]); ni[0] += 1
    if opt.get('fbf', 1): issue(q, Lq[fidx]); ni[0] += 1
    A("s_waitcnt lgkmcnt(0)")
    barrier()
    for _ in range(3): x_read(q)
    if not opt.get('fbf', 1): issue(q, Lq[fidx]); ni[0] += 1
    for k, e in enumerate(Lq):
        if e[0] not in 'FPQ': q.append(W(e))
        arrived.add(e)
        vq = []; ms = []; pre = []
        issue_n(vq, k, D)
        take_post(vq)
        take_pend(vq, 1)
        if e == ('d', 0): dg_setup(vq)
        if e == ('m', 2): weights(vq)
        if e[0] in '012': pre = cstep(vq, ms, int(e[0]), e[1])
        fill = pick(max(opt.get('fcap', 2) if e[0] in '012' else 1, (len(vq) + 7) // 8))
        if len(fill) >= 2: merge(fill[:2] + ms + fill[2:], pre + vq)
        else: q.extend(pre); merge(ms + fill, vq)
        if k in bar:
            vq = []; take_post(vq); merge(pick(opt.get('fcapb', 1)), vq)
            if zw - zok: q.append(W('z'))
            barrier()
            zok |= zw
    while any(nxt.values()) or pend or stq:
        vq = []; take_pend(vq); merge(pick(99), vq)
    NR = 6
    Fr = lambda n: BF + (n % NR) * 4
    def rd(n):
        m, t, rb = groups[n][:3]
        if m == 0: s = f"ds_read_b128 {vr(Fr(n))}, v{VBH + (rb // 2)*2 + (t & 1)} offset:{(rb % 2)*8192 + (t >> 1)*1024}"
        else: s = f"ds_read_b128 {vr(Fr(n))}, v{VZR} offset:{rb*8192 + t*1024}"
        return LD(s, tag=('f', n))
    out = []; nr = 0; done = -1
    for pos, it in enumerate(q):
        if isinstance(it, tuple) and it[0] == 'G':
            n, b = it[1], it[2]; m, t, rb, _, first = groups[n]
            assert nr > n
            a = acc(rb, b >> 1, b & 1)
            out.append(Ins(f"{MF32} {vr(a)}, {ar(m*128 + (4*t + b)*4)}, {vr(Fr(n))}, {0 if first else vr(a)}", 0, needs=[('f', n)]))
            if b == 0:
                done = n - 1
                if nr < len(groups) and nr <= done + NR and groups[nr][3] <= pos: out.append(rd(nr)); nr += 1
            if b == 3: done = n
        elif isinstance(it, tuple) and it[0] == 'BAR':
            while nr < len(groups) and nr <= done + NR - 1 and groups[nr][3] <= pos: out.append(rd(nr)); nr += 1
        else: out.append(it)
    if opt.get('fmem'):
        n0 = out.index(late[-1])
        def ok(it):
            if it.t is None: return all(isinstance(t, tuple) and t[0] in 'abmdpq012' or t == 'ost' for t in it.needs)
            if it.t.startswith('buffer_store_dwordx4'): return False
            return it.t.startswith(('s_', 'buffer_', f'v_mov_b32 v{VPF}', 'v_cmp', 'ds_read_b128 v[' + str(VDUM))) and not it.t.startswith('s_barrier') or 'LF_j' in it.t
        out = out[:n0 + 1] + [it for it in out[n0 + 1:] if ok(it)]
    em = Emitter(); em.pos['ost'] = ('vm', 0); em.cnt['vm'] = 1; em.kind.append(False)
    o = hazard.fix(em.emit(out))
    if opt.get('verbose'): print("final: min free", low[0], "lines", len(o), "nops", sum(1 for x in o if x.startswith('s_nop')))
    sp = []
    for ch in ('PQ' if 'P' in cnt else 'Q'):
        sp.append(f"LF_spin{ch}:")
        spin(sp.append, f"LF_spin2{ch}", [pl(ch.lower())], [VP1], S_SPIN)
        sp.append(f"s_branch LF_go{ch}")
    if MG[0]:
        sp.append("LF_wf:")
        spin(sp.append, "LF_wf2", [f"buffer_load_dwordx2 {vr(EV['wf'], 2)}, v{EV['wf']+2}, {sr(SWS)}, 0 offen sc1"], [EV['wf']], S_SPIN)
        sp.append("s_branch LF_wf_go")
    return o, sp


def wload(m, k):
    t, j, b = k >> 2, (k >> 1) & 1, k & 1
    return f"buffer_load_dwordx4 {ar(m*128 + 4*k)}, v{VW0 + j}, {sr(SWS)}, s{WO[m*4 + (t >> 1)]} offen offset:{(t & 1)*2048 + b*1024}{' sc1' if MG[0] else ''}"
```

```python
from layout import *
from sched import *
import hazard
import struct, math

K1_LDS = 163840
SRD_X, SRD_W1, SRD_W2, SRD_O, SRD_H = 40, 44, 48, 52, 56
S_W, S_ROLE, S_ROT, S_M0, S_XO = 60, 61, 62, 63, 64
SK1, SK2, SO, S_SC, S_EPS, S_R256, S_MASK = 66, 74, 82, 86, 88, 89, 90
VL16, VWQ, VWK, VTR, VK, VH, VQW, VQ, VHW = 16, 17, 21, 25, 29, 31, 33, 35, 36
MF32 = "v_mfma_f32_16x16x32_bf16"
DPP = " row_mask:0xf bank_mask:0x%x"


def ln_code(pre, NL, HP, LN0, VHW, opt, more, stamp, after=None, mid=None):
    A = lambda t: pre.append(V(t))
    U = lambda j: LN0 + 8 * j
    SQ = LN0 + 8 * NL
    for j in range(NL):
        x, u, s = HP + 4 * j, U(j), SQ + 4 * j
        pre.append(W(('x', j)))
        if j == 0: pre += stamp()
        for k in range(4):
            A(f"v_lshlrev_b32 v{u+2*k}, 16, v{x+k}")
            A(f"v_and_b32 v{u+2*k+1}, s{S_MASK}, v{x+k}")
        if opt.get('nopk', 0) >= 3:
            A(f"v_add_f32 v{s}, v{u}, v{u+1}"); A(f"v_mul_f32 v{s+2}, v{u}, v{u}")
            A(f"v_add_f32 v{s+1}, v{u+2}, v{u+3}"); A(f"v_mul_f32 v{s+3}, v{u+1}, v{u+1}")
            for k in range(2, 8):
                if k >= 4: A(f"v_add_f32 v{s+(k&1)}, v{s+(k&1)}, v{u+k}")
                A(f"v_fmac_f32 v{s+2+(k&1)}, v{u+k}, v{u+k}")
            A(f"v_add_f32 v{s}, v{s}, v{s+1}"); A(f"v_add_f32 v{s+2}, v{s+2}, v{s+3}")
        else:
            A(f"v_pk_add_f32 {vr(s,2)}, {vr(u,2)}, {vr(u+2,2)}")
            A(f"v_pk_mul_f32 {vr(s+2,2)}, {vr(u,2)}, {vr(u,2)}")
            A(f"v_pk_add_f32 {vr(x,2)}, {vr(u+4,2)}, {vr(u+6,2)}")
            A(f"v_pk_fma_f32 {vr(s+2,2)}, {vr(u+2,2)}, {vr(u+2,2)}, {vr(s+2,2)}")
            A(f"v_pk_add_f32 {vr(s,2)}, {vr(s,2)}, {vr(x,2)}")
            A(f"v_pk_fma_f32 {vr(s+2,2)}, {vr(u+4,2)}, {vr(u+4,2)}, {vr(s+2,2)}")
            A(f"v_add_f32 v{s}, v{s}, v{s+1}")
            A(f"v_pk_fma_f32 {vr(s+2,2)}, {vr(u+6,2)}, {vr(u+6,2)}, {vr(s+2,2)}")
            A(f"v_add_f32 v{s+2}, v{s+2}, v{s+3}")
        more()
    if mid: mid()
    for j in range(NL): A(f"v_permlane16_swap_b32 v{SQ+4*j}, v{SQ+4*j+2}")
    for j in range(NL): A(f"v_add_f32 v{SQ+4*j}, v{SQ+4*j}, v{SQ+4*j+2}")
    def merge(regs, mode, m0, m1, off):
        out = []
        for a in range(0, len(regs), 2):
            (ra, la) = regs[a]
            d = ra + off
            if a + 1 < len(regs):
                rb_, lb = regs[a + 1]
                A(f"v_add_f32_dpp v{d}, v{ra}, v{ra} {mode}" + DPP % m0)
                A(f"v_add_f32_dpp v{d}, v{rb_}, v{rb_} {mode}" + DPP % m1)
                sh = 8 if m1 == 0xc else 4
                out.append((d, {**la, **{k: v + sh for k, v in lb.items()}}))
            else:
                A(f"v_add_f32_dpp v{d}, v{ra}, v{ra} {mode}" + DPP % 0xf)
                out.append((d, la))
        return out
    regs = [(SQ + 4 * j, {j: 0}) for j in range(NL)]
    regs = merge(regs, "row_ror:8", 0x3, 0xc, 1)
    regs = merge(regs, "row_half_mirror", 0x5, 0xa, 1)
    for qp in ("[1,0,3,2]", "[2,3,0,1]"):
        for r, _ in regs: A(f"v_add_f32_dpp v{r}, v{r}, v{r} quad_perm:{qp}" + DPP % 0xf)
    for r, _ in regs: A(f"v_mov_b32 v{r+1}, v{r}")
    for r, _ in regs: A(f"v_permlane16_swap_b32 v{r+1}, v{r}")
    ops = lambda r: [f"v_mul_f32 v{r+1}, s{S_R256}, v{r+1}", f"v_mul_f32 v{r}, s{S_R256}, v{r}",
                     f"v_fma_f32 v{r}, -v{r+1}, v{r+1}, v{r}", f"v_cvt_pk_bf16_f32 v{r+1}, v{r+1}, v{r+1}" if not opt.get('z1') else "", f"v_max_f32 v{r}, 0, v{r}",
                     f"v_cvt_pk_bf16_f32 v{r}, v{r}, v{r}", f"v_and_b32 v{r}, s{S_MASK}, v{r}", f"v_add_f32 v{r}, s{S_EPS}, v{r}",
                     f"v_cvt_pk_bf16_f32 v{r}, v{r}, v{r}", f"v_and_b32 v{r}, s{S_MASK}, v{r}", f"v_sqrt_f32 v{r}, v{r}",
                     f"v_and_b32 v{r+1}, s{S_MASK}, v{r+1}" if not opt.get('z1') else "s_nop 0",
                     f"v_cvt_pk_bf16_f32 v{r}, v{r}, v{r}", f"v_and_b32 v{r}, s{S_MASK}, v{r}", f"v_rcp_f32 v{r}, v{r}",
                     f"v_mul_f32 v{r+1}, -v{r+1}, v{r}"]
    for tt in zip(*[ops(r) for r, _ in regs]):
        for t in tt:
            if t: A(t)
    for r, lm in regs:
        for j, ln in lm.items():
            A(f"v_mov_b64_dpp {vr(SQ+4*j,2)}, {vr(r,2)} row_newbcast:{ln} row_mask:0xf bank_mask:0xf")
    for j in range(NL):
        x, u, s = HP + 4 * j, U(j), SQ + 4 * j
        for k in range(4):
            if opt.get('nopk', 0) >= 1:
                for z in range(2): A(f"v_fma_f32 v{u+2*k+z}, v{u+2*k+z}, v{s}, v{s+1}")
            else: A(f"v_pk_fma_f32 {vr(u+2*k,2)}, {vr(u+2*k,2)}, {vr(s,2)}, {vr(s,2)} op_sel:[0,0,1] op_sel_hi:[1,0,1]")
        for k in range(4):
            A(f"v_cvt_pk_bf16_f32 v{x+k}, v{u+2*k}, v{u+2*k+1}")
        pre.append(LD(f"ds_write_b128 v{VHW+j}, {vr(x)}", tag='hw'))
        if after: after(j)
        more()


def img_addrs(A, NL, RPW, HIMG, VHW, VH):
    A("v_bfe_u32 v5, v2, 2, 3")
    A(f"v_xor_b32 v5, s{S_ROT}, v5")
    A("v_and_b32 v6, 3, v2")
    A("v_lshlrev_b32 v7, 10, v5")
    A("v_lshl_add_u32 v7, v6, 8, v7")
    A(f"v_add_u32 v7, 0x{HIMG:x}, v7")
    A("v_and_b32 v5, 1, v5")
    A("v_lshl_or_b32 v6, v5, 2, v6")
    A("v_lshrrev_b32 v5, 5, v2")
    A(f"s_mul_i32 s6, s{S_W}, {RPW}")
    for j in range(NL):
        A(f"v_add3_u32 v8, v5, s6, {2*j}")
        A("v_lshrrev_b32 v9, 4, v8")
        A("v_lshl_add_u32 v9, v9, 13, v7")
        A("v_and_b32 v8, 15, v8")
        A("v_xor_b32 v8, v8, v6")
        A(f"v_lshl_add_u32 v{VHW+j}, v8, 4, v9")
    A("v_xor_b32 v5, v3, v4")
    A("v_lshlrev_b32 v5, 4, v5")
    A("v_lshl_add_u32 v5, v4, 8, v5")
    A(f"v_add_u32 v{VH}, 0x{HIMG:x}, v5")
    A(f"v_xor_b32 v{VH+1}, 64, v{VH}")

def gemm_prog(role, opt):
    NW = opt.get('nw', 8); NF = 16 // NW; CW = 16 * NF; NPC = NF; CH = NPC * 1024; RS = 32 * NF
    main = role == 'q'
    MGD = opt.get('mg')
    NRB = opt.get('nrb', 3) if main else 4
    RPW = 16 * NRB // NW; NL = RPW // 2
    IMG = NRB * 8192
    RC = (K1_LDS - (2 if main else 1) * IMG) // NW // CH
    RC = min(RC, opt.get('rc', 8))
    WSZ = RC * CH
    HIMG = NW * WSZ; QIMG = HIMG + IMG
    assert QIMG + (IMG if main else 0) <= K1_LDS
    stx = opt.get('st', '')
    p = VHW + NL; p = (p + 3) // 4 * 4
    HP = p; p += NL * 4
    ACC1 = p; p += NF * NRB * 4
    LN0 = p
    ACC2 = p; p += NF * NRB * 4 if main else 0
    RW, RB = opt.get('rw', 6 if NW == 8 else 10), opt.get('rb', 4 if NW == 8 else 3) * NRB
    WR = p; p += RW * 4
    BR = p; p += RB * 4
    ACC3 = p; p += 12 * bool(opt.get('z1') and main)
    assert p <= 255, p
    nst = [0]
    def stamp(kind=0):
        if not opt.get('timing') or kind != opt.get('skind', 0) or (kind and not main): return []
        nst[0] += 1
        assert nst[0] <= 8
        return [V(f"s_memtime s[{14+2*nst[0]}:{15+2*nst[0]}]", cost=0)]
    pre = []
    A = lambda t: pre.append(V(t))
    A(f"v_lshlrev_b32 v{VL16}, 4, v2")
    A(f"s_mul_i32 s{S_M0}, s{S_W}, {WSZ}")
    if main:
        A(f"s_mul_i32 s6, s4, {NRB*8192}" if not MGD else "s_mov_b32 s6, s14")
        A(f"s_mul_i32 s7, s{S_W}, {RPW*512}")
        A(f"s_add_u32 s{S_XO}, s6, s7")
        A(f"s_add_u32 s{S_XO+1}, s{S_XO}, 4096")
    else:
        A("s_and_b32 s6, s4, 3")
        A(f"s_lshl_b32 s6, s6, 6")
        A(f"s_mul_i32 s7, s{S_W}, {RPW}")
        A("s_add_u32 s6, s6, s7")
        A("v_lshrrev_b32 v5, 5, v2")
        A("v_and_b32 v6, 31, v2")
        A("v_lshlrev_b32 v6, 4, v6")
        A("s_cmp_ge_u32 s4, 4")
        A("s_cselect_b64 vcc, -1, 0")
        for j in range(NL):
            A(f"v_add3_u32 v7, v5, s6, {2*j}")
            A("v_and_b32 v8, 0x80, v7")
            A("v_bfe_u32 v9, v7, 2, 1"); A("v_lshl_or_b32 v8, v9, 6, v8")
            A("v_bfe_u32 v9, v7, 4, 1"); A("v_lshl_or_b32 v8, v9, 5, v8")
            A("v_and_b32 v9, 3, v7"); A("v_lshl_or_b32 v8, v9, 3, v8")
            A("v_bfe_u32 v9, v7, 5, 2"); A("v_lshl_or_b32 v8, v9, 1, v8")
            A("v_bfe_u32 v9, v7, 3, 1"); A("v_or_b32 v8, v9, v8")
            A("v_cndmask_b32 v8, v8, v7, vcc")
            A(f"v_lshl_add_u32 v{HP+4*j}, v8, 9, v6")
    def w1setup():
        A(f"s_lshl_b32 s7, s{S_W}, {(CW*2).bit_length()-1}")
        if NW == 4:
            A("v_lshrrev_b32 v5, 3, v2")
            A("v_and_b32 v6, 7, v2")
            A("v_and_b32 v7, 2, v5")
            A("v_xor_b32 v6, v6, v7")
            A("v_lshl_add_u32 v5, v5, 9, s7")
            A(f"v_lshl_add_u32 v{VWQ}, v6, 4, v5")
            A("v_xor_b32 v6, 4, v6")
            A(f"v_lshl_add_u32 v{VWQ+1}, v6, 4, v5")
            A(f"v_add_u32 v{VWQ+1}, 0xc00, v{VWQ+1}")
            A(f"v_add_u32 v{VWQ+2}, 0x1800, v{VWQ}")
            A(f"v_add_u32 v{VWQ+3}, 0x1800, v{VWQ+1}")
        else:
            A("v_lshrrev_b32 v5, 2, v2")
            A("v_and_b32 v6, 3, v2")
            A("v_lshrrev_b32 v7, 5, v2")
            A("v_lshlrev_b32 v7, 1, v7")
            A("v_xor_b32 v6, v6, v7")
            A("v_lshl_add_u32 v5, v5, 9, s7")
            A(f"v_lshl_add_u32 v{VWQ}, v6, 4, v5")
            A(f"v_add_u32 v{VWQ+1}, 0x1c00, v{VWQ}")
        for t in range(8):
            A(f"s_xor_b32 s6, s{S_ROT}, {t}")
            A(f"s_lshl_b32 s{SK1+t}, s6, 14")
    if not opt.get('xf'): w1setup()
    A("s_waitcnt lgkmcnt(0)")
    o = []
    if main:
        srd_from(o, SRD_X, 16, 0, N * 512 if not MGD else "s15"); srd_from(o, SRD_W1, 26, 0, 131072)
    else:
        o += ["s_cmp_ge_u32 s4, 4", "s_cselect_b32 s6, s30, s24", "s_cselect_b32 s7, s31, s25"]
        srd_from(o, SRD_X, 6, 0, 131072); srd_from(o, SRD_W1, 32, 0, 131072)
    for t in o: A(t)
    xso = lambda j: f"s{S_XO + j // 4} offen offset:{(j % 4) * 1024}"
    for j in range(NL):
        if main: pre.append(VM(f"buffer_load_dwordx4 {vr(HP+4*j)}, v{VL16}, {sr(SRD_X)}, {xso(j)}", tag=('x', j)))
        else: pre.append(VM(f"buffer_load_dwordx4 {vr(HP+4*j)}, v{HP+4*j}, {sr(SRD_X)}, 0 offen", tag=('x', j)))
    if opt.get('xf'): w1setup()
    NCH = 16 if main else 8
    def dma(c, needs=()):
        srd, vw, so = (SRD_W1, VWQ, SK1 + c) if c < 8 else (SRD_W2, VWK, SK2 + c - 8)
        q = [V(f"s_add_u32 m0, s{S_M0}, 0x{(c % RC) * CH:x}", needs=needs), V("s_nop 0", cost=0)]
        for k in range(NPC):
            q.append(VM(f"buffer_load_dwordx4 v{vw+k}, {sr(srd)}, s{so} offen offset:{k*1024} lds", tag=('c', c) if k == NPC - 1 else None))
        return q
    NPRE = min(opt.get('npre', RC), RC)
    TCH = opt.get('touch', 0)
    if TCH and main:
        o = []; srd_from(o, SRD_W2, 28, 0, 131072)
        for t in o: A(t)
        A(f"s_sub_u32 s6, s5, {(opt.get('new', 32) + 8) // 8 * NW + 16}")
        A("s_lshl_b32 s7, s6, 13")
        A("s_cmp_lt_u32 s6, 16")
        A("s_cselect_b32 s7, s7, 0x7fff0000")
        pre.append(VM(f"buffer_load_dword v255, v10, {sr(SRD_W2)}, s7 offen"))
        if TCH > 1:
            A(f"s_sub_u32 s6, s6, 16")
            A("s_lshl_b32 s7, s6, 13")
            A("s_cmp_lt_u32 s6, 16")
            A("s_cselect_b32 s7, s7, 0x7fff0000")
            pre.append(VM(f"buffer_load_dword v255, v10, {sr(SRD_W1)}, s7 offen"))
    for c in range(NPRE): pre += dma(c)
    if MGD and main:
        for t in MGD: A(t)
    img_addrs(A, NL, RPW, HIMG, VHW, VH)
    A("v_lshrrev_b32 v5, 2, v3")
    A("v_and_b32 v6, 3, v3")
    A("v_and_b32 v7, 1, v4")
    if NW == 4:
        A("v_lshlrev_b32 v7, 2, v7"); A("v_and_b32 v8, 2, v5"); A("v_or_b32 v7, v7, v8")
    else:
        A("v_lshlrev_b32 v7, 1, v7")
    A("v_lshl_add_u32 v8, v4, 3, v5")
    A(f"v_lshlrev_b32 v8, {RS.bit_length()-1}, v8")
    A(f"v_add_u32 v8, s{S_M0}, v8")
    if main:
        A("v_and_b32 v9, 1, v6"); A("v_lshl_add_u32 v8, v9, 3, v8")
        A("v_lshrrev_b32 v6, 1, v6")
    A("v_xor_b32 v6, v6, v7")
    for f in range(NF):
        if main:
            A(f"v_xor_b32 v9, {2*f}, v6"); A(f"v_lshl_add_u32 v{VTR+f}, v9, 4, v8")
        elif f % 2 == 0:
            A(f"v_xor_b32 v9, {2*f}, v6"); A(f"v_lshl_add_u32 v{VTR+f}, v9, 4, v8")
        else:
            A(f"v_add_u32 v{VTR+f}, 8, v{VTR+f-1}")
    o = []
    if main:
        A("v_lshrrev_b32 v5, 3, v2")
        A("v_and_b32 v6, 7, v2")
        A("v_lshrrev_b32 v7, 1, v5")
        A("v_xor_b32 v6, v6, v7")
        A("v_and_b32 v7, 4, v5")
        A("v_add_u32 v5, v5, v7")
        A(f"s_mul_i32 s6, s{S_W}, {CW*512}")
        A("v_lshl_add_u32 v5, v5, 9, s6")
        A(f"v_lshl_add_u32 v{VWK}, v6, 4, v5")
        A("v_xor_b32 v6, 4, v6")
        A(f"v_lshl_add_u32 v{VWK+1}, v6, 4, v5")
        A(f"v_add_u32 v{VWK+1}, 0x{16*512-1024:x}, v{VWK+1}")
        if NW == 4:
            A(f"v_mov_b32 v{VWK+2}, v{VWK}")
            A(f"v_mov_b32 v{VWK+3}, v{VWK+1}")
        A(f"s_lshr_b32 s7, s{S_ROT}, 1")
        for tp in range(4):
            A(f"s_xor_b32 s6, s7, {tp}")
            A(f"s_lshl_b32 s{SK2+2*tp}, s6, 7")
            A(f"s_add_u32 s{SK2+2*tp+1}, s{SK2+2*tp}, {(4 if NW == 8 else 32)*512}")
        A(f"s_and_b32 s6, s{S_ROT}, 1"); A("s_lshl_b32 s6, s6, 2")
        A("v_lshrrev_b32 v5, 1, v3")
        A("v_xor_b32 v5, v5, v4")
        A("v_xor_b32 v5, s6, v5")
        A(f"v_lshl_add_u32 v6, v3, 7, s{S_M0}")
        A(f"v_lshl_add_u32 v{VK}, v5, 4, v6")
        A(f"v_xor_b32 v{VK+1}, 64, v{VK}")
        A(f"s_mul_i32 s6, s{S_W}, {NF//2}")
        A(f"s_xor_b32 s6, s6, s{S_ROT}")
        A("s_lshl_b32 s6, s6, 10")
        A(f"s_add_u32 s6, s6, 0x{QIMG:x}")
        A("v_lshrrev_b32 v5, 1, v4"); A("v_and_b32 v6, 1, v4")
        A("v_lshl_add_u32 v5, v5, 8, s6")
        A("v_lshl_add_u32 v5, v6, 3, v5")
        A(f"v_lshl_add_u32 v{VQW}, v3, 4, v5")
        A(f"v_xor_b32 v{VQW+1}, 0x400, v{VQW}")
        A(f"v_add_u32 v{VQ}, 0x{QIMG:x}, v{VL16}")
        srd_from(o, SRD_W2, 26 if opt.get('w2same') else 28, 0, 131072)
        srd_from(o, SRD_O, 38, QF_OFF, QF_BYTES if not MGD else "s15")
        srd_from(o, SRD_H, 38, H_OFF, NB16 * 8192 if not MGD else "s15")
        A(f"s_mul_i32 s6, s4, {NRB*8192}" if not MGD else "s_mov_b32 s6, s14")
        A(f"s_mul_i32 s7, s{S_W}, {NF//2*1024}")
        A(f"s_add_u32 s{SO}, s6, s7")
        for b in range(1, NRB): A(f"s_add_u32 s{SO+b}, s{SO}, {b*8192}")
        qs = struct.unpack('<I', struct.pack('<f', math.log2(math.e) / 16))[0]
        A(f"s_mov_b32 s{S_SC}, 0x{qs:x}"); A(f"s_mov_b32 s{S_SC+1}, 0x{qs:x}")
        A(f"s_mov_b32 s{S_EPS}, 0x3727c5ac"); A(f"s_mov_b32 s{S_R256}, 0x3b800000"); A(f"s_mov_b32 s{S_MASK}, 0xffff0000")
    else:
        srd_from(o, SRD_O, 38, WF_OFF, 262144)
        A("s_lshr_b32 s6, s4, 2"); A("s_lshl_b32 s6, s6, 17")
        A("s_and_b32 s7, s4, 3"); A("s_lshl_b32 s7, s7, 12")
        A("s_add_u32 s6, s6, s7")
        A(f"s_mul_i32 s7, s{S_W}, {NF//2*16384}")
        A(f"s_add_u32 s{SO}, s6, s7")
        A(f"s_add_u32 s{SO+1}, s{SO}, 16384")
    for t in o: A(t)
    pre += stamp()
    rest = [x for c in range(NPRE, min(RC, NCH)) for x in [dma(c)]]
    def more(force=False):
        if rest and (force or not opt.get('late')): pre.extend(rest.pop(0))
    if main:
        n0 = len(pre)
        ln_code(pre, NL, HP, LN0, VHW, opt, more, stamp)
        if opt.get('pace'):
            p0, pc = opt['pace']
            ln = pre[n0:]; del pre[n0:]
            flat = []
            for q in rest: flat += [q[:3]] + [[x] for x in q[3:]]
            rest.clear()
            for k, x in enumerate(ln):
                pre.append(x)
                if k >= p0 and (k - p0) % pc == 0 and flat and x.t and not x.t.startswith(('v_permlane', 'v_add_f32_dpp', 'v_mov_b')): pre.extend(flat.pop(0))
            for q in flat: pre.extend(q)
            if opt.get('verbose'): print("LN len", len(ln), "left", len(flat))
    else:
        if opt.get('z1'):
            U = ACC1; A("v_and_b32 v5, 31, v2"); A("v_lshlrev_b32 v5, 4, v5"); A(f"s_mov_b32 s6, {255 * 512}"); A(f"s_mov_b32 s{S_MASK}, 0xffff0000")
            pre.append(VM(f"buffer_load_dwordx4 {vr(U+16)}, v5, {sr(SRD_X)}, s6 offen", tag='r255'))
            unp = lambda d, x, nd: [V(f"v_lshlrev_b32 v{d+2*k}, 16, v{x+k}", needs=nd) for k in range(4)] + [V(f"v_and_b32 v{d+2*k+1}, s{S_MASK}, v{x+k}") for k in range(4)]
            pre += unp(U + 8, U + 16, ['r255'])
            for j in range(NL):
                pre += unp(U, HP + 4 * j, [('x', j)]) + [V(f"v_sub_f32 v{U+k}, v{U+k}, v{U+8+k}") for k in range(8)] + [V(f"v_cvt_pk_bf16_f32 v{HP+4*j+k}, v{U+2*k}, v{U+2*k+1}") for k in range(4)]
        for j in range(NL):
            pre.append(LD(f"ds_write_b128 v{VHW+j}, {vr(HP+4*j)}", tag='hw', needs=[('x', j)]))
    pre += stamp()
    while rest and opt.get('late', 0) < 2: more(True)
    Z1 = opt.get('z1') and main
    if Z1:
        o = []; srd_from(o, SRD_X, 28, 255 * 512, 512)
        for t in o + ["v_lshlrev_b32 v5, 4, v4"]: A(t)
        for t in range(8):
            A(f"s_lshr_b32 s6, s{SK1+t}, 8"); pre.append(VM(f"buffer_load_dwordx4 {ar(4*t)}, v5, {sr(SRD_X)}, s6 offen", tag='r255'))
        A("v_and_b32 v5, 31, v2"); A("v_cmp_eq_u32 vcc, 31, v5"); A("v_mov_b32 v6, 0xffff"); A("v_mov_b32 v7, 0x3f800000")
        A("v_cndmask_b32 v6, -1, v6, vcc"); A("v_cndmask_b32 v7, 0, v7, vcc")
    st = Stream(); st.pre = pre
    wf, bf = [], []
    wreg = lambda k: WR + (k % RW) * 4
    breg = lambda k: BR + (k % RB) * 4
    def use(lst, k, n):
        lst[k].setdefault('first', n); lst[k]['last'] = n
    def mf(acc, wk, bk, first):
        a, b = (wreg(wk), breg(bk)) if main else (breg(bk), wreg(wk))
        n = st.mfma(f"{MF32} {vr(acc)}, {vr(a)}, {vr(b)}, {0 if first else vr(acc)}", needs=[('w', wk), ('b', bk)])
        use(wf, wk, n); use(bf, bk, n); return n
    acc1 = lambda f, rb: ACC1 + (f * NRB + rb) * 4
    acc2 = lambda f, rb: ACC2 + (rb * NF + f) * 4
    done1, done2 = {}, {}
    for t in range(8):
        sl = (t % RC) * CH
        b0 = len(bf)
        for rb in range(NRB):
            bf.append(dict(reads=[f"ds_read_b128 {vr(breg(b0+rb))}, v{VH + (t & 1)} offset:{rb*8192 + t*1024}"], ph=0))
        for f in range(NF):
            k = len(wf); r = wreg(k)
            wf.append(dict(reads=[f"ds_read_b64_tr_b16 v[{r+2*hh}:{r+2*hh+1}], v{VTR+f} offset:{sl + hh*4*RS}" for hh in range(2)], chunk=t))
            for rb in range(NRB): done1[(f, rb)] = mf(acc1(f, rb), k, b0 + rb, t == 0)
    n1 = st.n()
    if main:
        for tp in range(4):
            b0 = len(bf)
            for e in range(2):
                for rb in range(NRB):
                    bf.append(dict(reads=[f"ds_read_b128 {vr(breg(b0+e*NRB+rb))}, v{VQ} offset:{rb*8192 + (2*tp+e)*1024}"], ph=1))
            for bh in range(2):
                c = 8 + 2 * tp + bh; sl = (c % RC) * CH
                for bl in range(NF // 2):
                    b = bh * (NF // 2) + bl
                    for e in range(2):
                        k = len(wf)
                        wf.append(dict(reads=[f"ds_read_b128 {vr(wreg(k))}, v{VK+e} offset:{sl + bl*2048}"], chunk=c))
                        for rb in range(NRB): done2[(b, rb)] = mf(acc2(b, rb), k, b0 + e * NRB + rb, tp == 0 and e == 0)
                        if Z1 and bh == 0 and bl == 0:
                            for rb in range(NRB):
                                bk = b0 + e * NRB + rb; a = ACC3 + 4 * rb
                                n3 = st.mfma(f"{MF32} {vr(a)}, {ar(4 * (2*tp + e))}, {vr(breg(bk))}, {0 if tp == 0 and e == 0 else vr(a)}", needs=['r255', ('b', bk)]); use(bf, bk, n3)
    nm = st.n()
    LAG = opt.get('lag', 3); LA = opt.get('la', 2 * NRB)
    def place_w(lo, hi, g):
        for k in range(lo, hi):
            d = wf[k]
            g = max(g, d['first'] - LA - 1, wf[k - RW]['last'] if k >= RW else -1)
            for i, r in enumerate(d['reads']):
                st.put(g, LD(r, tag=('w', k) if i == len(d['reads']) - 1 else None, needs=[('c', d['chunk'])]))
            d['g'] = g
            if k % (2 * NF) == 0:
                for s in stamp(1): st.put(g, s)
        return g
    def place_b(lo, hi, g):
        for k in range(lo, hi):
            d = bf[k]
            g = max(g, d['first'] - LA - 1, bf[k - RB]['last'] if k >= RB else -1)
            st.put(g, LD(d['reads'][0], tag=('b', k)))
        return g
    nw1, nb1 = 8 * NF, 8 * NRB
    npw = min(opt.get('npw', NF), RW)
    place_w(0, npw, -1)
    st.put(-1, W('hw')); st.put(-1, V("s_barrier"))
    for s in stamp(): st.put(-1, s)
    place_b(0, nb1, -1)
    gg = -1
    while rest:
        for x in rest.pop(0): st.put(gg, x)
        gg += opt.get('lpace', 2)
    g = place_w(npw, nw1, -1)
    if main:
        items = sorted(done1.items(), key=lambda kv: kv[1])
        for (f, rb), n in items:
            a = acc1(f, rb)
            q = [V(f"v_cvt_pk_bf16_f32 v{a}, v{a}, v{a+1}"), V(f"v_cvt_pk_bf16_f32 v{a+1}, v{a+2}, v{a+3}"),
                 LD(f"ds_write_b64 v{VQW + (f >> 1)}, v[{a}:{a+1}] offset:{rb*8192 + (f & 1)*512}", tag='qw')]
            for x in q: st.put(min(n + LAG, n1 - 1), x)
        k = nw1
        while k < len(wf) and k < nw1 + opt.get('npw2', NF) and wf[k - RW]['last'] <= n1 - 1: k += 1
        place_w(nw1, k, max(g, n1 - 1))
        for s in stamp(): st.put(n1 - 1, s)
        if opt.get('hf'): st.put(n1 - 1, W('hs'))
        st.put(n1 - 1, W('qw')); st.put(n1 - 1, V("s_barrier"))
        for x in opt.get('hf') or []: st.put(n1 + 2, VM(x) if x.startswith('buffer') else V(x))
        for s in stamp(): st.put(n1 - 1, s)
        place_b(nb1, len(bf), n1 - 1)
        place_w(k, len(wf), n1 - 1)
    lastw = {}
    for k, d in enumerate(wf): lastw[d['chunk']] = k
    gl = 0
    for c in range(RC, NCH):
        k = lastw[c - RC]
        gl = wf[k]['first']
        firstk = min(kk for kk, d in enumerate(wf) if d['chunk'] == c)
        assert gl < wf[firstk]['g'], (c, gl, wf[firstk]['g'])
        dq = dma(c, [('w', k)])
        for i, x in enumerate(dq): st.put(min(gl + max(0, i - 2) * opt.get('dsp', 0), wf[firstk]['g'] - 1, nm - 1) if opt.get('dsp') else gl, x)
        assert not opt.get('dsp') or (NPC - 1) * opt['dsp'] < wf[min(k + NF, len(wf) - 1)]['first'] - gl or c == NCH - 1
    if main:
        hs = [VM(f"buffer_store_dwordx4 {vr(HP+4*j)}, v{VL16}, {sr(SRD_H)}, {xso(j)}{stx}", tag='hs') for j in range(NL)]
        if Z1:
            hs = [V(f"v_and_or_b32 v{HP+4*j+3}, v{HP+4*j+3}, v6, v7") for j in range(NL)] + hs
            for rb in range(NRB): st.put(n3 + LAG + 1, V(f"v_mul_f32 v{ACC3+4*rb}, s{S_SC}, v{ACC3+4*rb}"))
        if opt.get('hf'):
            for k, x in enumerate(hs): st.put(opt.get('hg', 4) + (k // 2 if x.cls is None else 3 + 9 * (k - len(hs) + NL)), x)
        else: st.fill(hs, gl + 1)
        items = sorted(((max(done2[(2 * u, rb)], done2[(2 * u + 1, rb)]), u, rb) for u in range(NF // 2) for rb in range(NRB)))
        for n, u, rb in items:
            a = acc2(2 * u, rb)
            if n + LAG < nm - 1 or opt.get('nopk', 0) >= 2:
                q = [V(f"v_mul_f32 v{a+r}, s{S_SC}, v{a+r}" if not Z1 else f"v_fma_f32 v{a+r}, s{S_SC}, v{a+r}, -v{ACC3+4*rb}") for r in range(8)]
            else:
                q = [V(f"v_pk_mul_f32 {vr(a+2*r,2)}, {vr(a+2*r,2)}, {sr(S_SC,2)}") for r in range(4)]
            q += [V(f"v_cvt_pk_bf16_f32 v{a+r}, v{a+2*r}, v{a+2*r+1}") for r in range(4)]
            q.append(VM(f"buffer_store_dwordx4 {vr(a)}, v{VL16}, {sr(SRD_O)}, s{SO+rb} offen offset:{u*1024}{opt.get('stq', stx)}"))
            for x in q: st.put(min(n + LAG, nm - 1), x)
    else:
        items = sorted((max(done1[(f, 2 * tl)], done1[(f, 2 * tl + 1)]), f, tl) for f in range(NF) for tl in range(2))
        for n, f, tl in items:
            a = acc1(f, 2 * tl)
            q = [V(f"v_cvt_pk_bf16_f32 v{a+r}, v{a+2*r}, v{a+2*r+1}") for r in range(4)]
            q.append(VM(f"buffer_store_dwordx4 {vr(a)}, v{VL16}, {sr(SRD_O)}, s{SO + (f >> 1)} offen offset:{tl*2048 + (f & 1)*1024}{opt.get('stw', stx)}"))
            for x in q: st.put(min(n + LAG, nm - 1), x)
    for s in stamp(): st.put(nm - 1, s)
    em = Emitter()
    o = hazard.fix(em.emit(st.seq()))
    if opt.get('twice') and main:
        i = o.index("s_barrier"); o = o[:i] + ["s_mov_b32 s13, 0", "LG_again:"] + o[i:] + ["s_waitcnt vmcnt(0)", "s_xor_b32 s13, s13, 1", "s_cbranch_scc1 LG_again"]
    if opt.get('nodma2') and main:
        i = o.index("s_barrier"); o = o[:i] + [x for x in o[i:] if not x.endswith(' lds')]
    if opt.get('verbose'): print(role, st.stats(), "regs", p, "RC", RC, "lines", len(o))
    return o


def edge_prog(opt):
    NW = opt.get('nw', 8); NEW = opt.get('new', 32); ECAP = CAPB = 4096 // NEW; PASSB = NBK * 4096 * 4
    NTH = 64 * NW
    NQ = E // NEW // 4
    NR = (NQ + NTH - 1) // NTH; LASTN = NQ - (NR - 1) * NTH
    o = []; A = o.append
    L_CNT = 65536
    D0, S0, B0, C0 = 16, 16 + 4 * NR, 16 + 8 * NR, 16 + 12 * NR
    SRD_D, SRD_S, SRD_E, SRD_C = 40, 44, 48, 52
    A(f"s_mul_i32 s6, s4, {NQ * 16}")
    A("v_lshlrev_b32 v5, 4, v0")
    A("v_lshlrev_b32 v6, 2, v2")
    A(f"v_add_u32 v6, 0x{L_CNT:x}, v6")
    A("v_mov_b32 v7, 0")
    A("ds_write_b32 v6, v7")
    for i in range(NR): A(f"s_mov_b32 s{66+i}, {i * NTH * 16}")
    A("s_waitcnt lgkmcnt(0)")
    srd_from(o, SRD_D, 20, 0, NQ * 16, 6)
    srd_from(o, SRD_S, 18, 0, NQ * 16, 6)
    for i in range(NR): A(f"buffer_load_dwordx4 {vr(D0+4*i)}, v5, {sr(SRD_D)}, s{66+i} offen")
    for i in range(NR): A(f"buffer_load_dwordx4 {vr(S0+4*i)}, v5, {sr(SRD_S)}, s{66+i} offen")
    for t in opt.get('mg') or []: A(t)
    srd_from(o, SRD_E, 38, EDGE_OFF, EDGE_BYTES)
    srd_from(o, SRD_C, 38, ECNT_OFF, NBK * NEW * 4)
    SG = segs(); KC = 240
    for i, (n0, sz, b0, mg, c) in enumerate(SG):
        A(f"v_mov_b32 v{KC+2*i}, {mg}"); A(f"v_mov_b32 v{KC+2*i+1}, 0x{c:x}")
    A(f"s_mov_b32 s11, 0x{L_CNT:x}")
    A("v_mov_b32 v7, 1")
    A(f"v_cmp_gt_u32 vcc, 0x{LASTN:x}, v0")
    A("s_mov_b64 s[12:13], vcc")
    A("s_barrier")
    for i in range(NR):
        A(f"s_waitcnt vmcnt({2*NR-1-i})")
        if i == NR - 1: A("s_mov_b64 exec, s[12:13]")
        for k in range(4):
            d, b, c = D0 + 4 * i + k, B0 + 4 * i + k, C0 + 4 * i + k
            mr, cr = KC, KC + 1
            for j in range(1, len(SG)):
                A(f"v_cmp_le_u32 vcc, {SG[j][0]}, v{d}")
                A(f"v_cndmask_b32 v{b}, v{mr}, v{KC+2*j}, vcc"); A(f"v_cndmask_b32 v{c}, v{cr}, v{KC+2*j+1}, vcc")
                mr, cr = b, c
            A(f"v_mad_u32_u24 v{b}, v{mr}, v{d}, v{cr}")
            A(f"v_lshrrev_b32 v{b}, {BSHIFT}, v{b}")
            A(f"v_lshl_add_u32 v{c}, v{b}, 2, s11")
            A(f"ds_add_rtn_u32 v{c}, v{c}, v7")
    A("s_mov_b64 exec, -1")
    for i in range(NR):
        A(f"s_waitcnt vmcnt({NR-1-i}) lgkmcnt({min(15, 4*(NR-1 if i == NR-1 else NR-2))})")
        if i == NR - 1: A("s_mov_b64 exec, s[12:13]")
        for k in range(4):
            d, s, b, c = D0 + 4 * i + k, S0 + 4 * i + k, B0 + 4 * i + k, C0 + 4 * i + k
            A(f"v_and_b32 v8, 0x{CAPB-1:x}, v{c}")
            A(f"v_lshl_or_b32 v{s}, v{d}, 18, v{s}")
            A(f"v_lshlrev_b32 v8, 2, v8")
            A(f"v_lshl_add_u32 v8, v{b}, {(CAPB*4).bit_length()-1}, v8")
            A(f"ds_write_b32 v8, v{s}")
    A("s_mov_b64 exec, -1")
    A("s_waitcnt lgkmcnt(0)")
    A("s_barrier")
    NC = 64 * CAPB * 4 // (NTH * 16)
    BPI = 1024 // (CAPB * 4)
    R0 = C0 + 4 * NR
    assert R0 <= KC and R0 + 4 * NC <= 250
    if opt.get('fuse') and not opt.get('mg'):
        import gen_f
        FS = gen_f.fstr(opt); assert 1
        srd_from(o, SRD_D, 38, gen_f.FLAG_OFF, gen_f.NFLAG * FS)
        A(f"v_mul_u32_u24 v13, {FS}, v2" if FS <= 64 else f"v_lshlrev_b32 v13, {FS.bit_length()-1}, v2")
        A("v_mov_b32 v14, 0"); A("v_mov_b32 v15, 0")
        A(f"s_mul_i32 s6, s4, {64 * FS}")
        A(f"s_cmp_eq_u32 s{S_W}, 1")
        A("s_cselect_b32 s6, s6, 0x7fff0000")
        A(f"buffer_store_dwordx2 v[14:15], v13, {sr(SRD_D)}, s6 offen sc1")
    A("ds_read_b32 v8, v6")
    A(f"s_mul_i32 s6, s{S_W}, {NC*1024}")
    A("v_lshlrev_b32 v10, 4, v2")
    A("v_add_u32 v9, s6, v10")
    for k in range(NC): A(f"ds_read_b128 {vr(R0+4*k)}, v9 offset:{k*1024}")
    if BPI > 1:
        assert BPI == 2
        A("v_lshrrev_b32 v11, 5, v2")
        A(f"v_mul_u32_u24 v11, 0x{NEW*ECAP*4 - 512:x}, v11")
        A("v_add_u32 v10, v10, v11")
    A(f"s_mul_i32 s6, s{S_W}, {NC*BPI*NEW*ECAP*4}")
    A(f"s_mul_i32 s7, s4, {ECAP*4}")
    A("s_add_u32 s6, s6, s7")
    A(f"v_lshlrev_b32 v9, 2, v2")
    A("s_lshl_b32 s8, s4, 8")
    A(f"s_cmp_eq_u32 s{S_W}, 0")
    A("s_cselect_b32 s8, s8, 0x7fff0000")
    A(f"s_waitcnt lgkmcnt({min(15, NC)})")
    A(f"buffer_store_dword v8, v9, {sr(SRD_C)}, s8 offen{opt.get('ste', '')}")
    A(f"v_cmp_lt_u32 vcc, 0x{CAPB:x}, v8")
    A("s_cbranch_vccnz L1_eslow")
    for k in range(NC):
        A(f"s_waitcnt lgkmcnt({min(15, NC-1-k)})")
        A(f"buffer_store_dwordx4 {vr(R0+4*k)}, v10, {sr(SRD_E)}, s6 offen{opt.get('ste', '')}")
        A(f"s_add_u32 s6, s6, {BPI*NEW*ECAP*4}")
    A("s_branch L1_fin")
    A("L1_eslow:")
    A(f"s_mov_b32 s9, {NEW*ECAP*4}")
    for i in range(NR):
        for k in range(4):
            b, c = B0 + 4 * i + k, C0 + 4 * i + k
            A(f"v_mul_u32_u24 v{b}, s9, v{b}")
            A(f"v_and_b32 v8, {CAPB - 1}, v{c}")
            A(f"v_lshl_add_u32 v{b}, v8, 2, v{b}")
            A(f"v_lshrrev_b32 v8, {CAPB.bit_length() - 1}, v{c}")
            A(f"v_lshl_add_u32 v{b}, v8, {PASSB.bit_length() - 1}, v{b}")
    for i in range(NR):
        if i == NR - 1: A("s_mov_b64 exec, s[12:13]")
        for k in range(4):
            A(f"buffer_store_dword v{S0 + 4 * i + k}, v{B0 + 4 * i + k}, {sr(SRD_E)}, s7 offen{opt.get('ste', '')}")
    A("s_mov_b64 exec, -1")
    return hazard.fix(o)


def gen_k1(opt=None):
    opt = opt or {}
    NW = opt.get('nw', 8); NRB = opt.get('nrb', 3); NEW = opt.get('new', 32)
    NMAIN = (NB16 + NRB - 1) // NRB
    o = []
    A = o.append
    A("s_getpc_b64 s[56:57]")
    A("s_load_dwordx16 s[16:31], s[0:1], 0")
    A("s_load_dwordx8 s[32:39], s[0:1], 64")
    if opt.get('timing'):
        A("s_memtime s[100:101]")
    A(f"s_cmp_ge_u32 s2, {opt.get('nact', NMAIN) + NEW + 8}")
    A("s_cbranch_scc1 L1_end")
    A("v_lshrrev_b32 v1, 6, v0")
    A("v_and_b32 v2, 63, v0")
    A("s_lshr_b32 s3, s2, 3")
    A(f"v_readfirstlane_b32 s{S_W}, v1")
    A(f"s_mul_i32 s5, s3, {NW}")
    A(f"s_add_u32 s5, s5, s{S_W}")
    if opt.get('cpf', 1):
        A("s_and_b32 s56, s56, 0xffffff00")
        A(f"s_mov_b32 s58, {opt.get('code_end', 'L1_end')}-k1_kernel")
        A("s_mov_b32 s59, 0x00020000")
        A("s_and_b32 s6, s5, 15")
        A("s_lshl_b32 s6, s6, 13")
        A("v_lshlrev_b32 v10, 7, v2")
        A("buffer_load_dword v255, v10, s[56:59], s6 offen")
    A("v_and_b32 v3, 15, v2")
    A("v_lshrrev_b32 v4, 4, v2")
    A(f"s_and_b32 s{S_ROT}, s3, {opt.get('rotm', 7)}")
    A(f"s_sub_u32 s4, s2, {NEW + 8}")
    A(f"s_cmp_lt_u32 s2, {NEW + 8}")
    A("s_cbranch_scc1 L1_notq")
    A(f"s_mov_b32 s{S_ROLE}, 0")
    o += gemm_prog('q', opt)
    A("s_branch L1_fin")
    A("L1_notq:")
    A(f"s_sub_u32 s4, s2, {NEW}")
    A(f"s_cmp_lt_u32 s2, {NEW}")
    A("s_cbranch_scc1 L1_edge")
    A(f"s_mov_b32 s{S_ROLE}, 1")
    o += gemm_prog('w', opt)
    A("s_branch L1_fin")
    A("L1_edge:")
    A(f"s_mov_b32 s{S_ROLE}, 4")
    A("s_mov_b32 s4, s2")
    o += edge_prog(opt)
    A("L1_fin:")
    if opt.get('timing'):
        A("s_memtime s[4:5]")
        A("s_waitcnt vmcnt(0)")
        A("s_memtime s[6:7]")
        A("s_waitcnt lgkmcnt(0)")
        for k in range(8):
            A(f"v_writelane_b32 v0, s{16+2*k}, {k}")
        A("v_writelane_b32 v0, s4, 8")
        A("v_writelane_b32 v0, s6, 9")
        A(f"v_subrev_u32 v0, s100, v0")
        A(f"v_writelane_b32 v0, s{S_ROLE}, 63")
        srd_from(o, 4, 34, 0, 1 << 20)
        A(f"s_mul_i32 s8, s2, {NW}")
        A(f"s_add_u32 s8, s8, s{S_W}")
        A(f"s_lshl_b32 s8, s8, 8")
        A(f"v_mbcnt_lo_u32_b32 v1, -1, 0")
        A(f"v_mbcnt_hi_u32_b32 v1, -1, v1")
        A(f"v_lshlrev_b32 v1, 2, v1")
        A(f"buffer_store_dword v0, v1, s[4:7], s8 offen")
    A("L1_end:")
    return "\n".join(o)


def kernel_desc(opt=None):
    opt = opt or {}
    NW = opt.get('nw', 8); NRB = opt.get('nrb', 3); NEW = opt.get('new', 32)
    return dict(name="k1_kernel", body=gen_k1(opt), vgpr=256, accum=256, grid=(NB16 + NRB - 1) // NRB + NEW + 8, block=64 * NW, lds=K1_LDS)

if __name__ == "__main__":
    import sys, json
    t = gen_k1(dict(json.loads(sys.argv[1]) if len(sys.argv) > 1 else {}, verbose=1))
    e = hazard.check(t, "k1")
    print("\n".join(e[:30])); print(len(e), "hazards;", len(t.split("\n")), "lines")
    open('k1n.s', 'w').write(t)
```

```python
from layout import *
import hazard

def Q(qb, ds): return (qb * 8 + ds) * 4
S_BASE = [128, 144]
def S(h, qb): return S_BASE[h] + qb * 4
P_BASE = [160, 176]
def P(p, qb): return P_BASE[p] + qb * 4
def NEGM(qb): return 192 + qb * 4
RING = 4
SLOT = [208, 212, 216, 220, 232, 236, 248, 252]
def F(i): return SLOT[i % RING]
R8 = [4]
LA = [224 + i for i in range(4)]
ET = [232 + i for i in range(8)]
VK = 240
VTR = [246, 247]
VDMA = 241
VT0, VT1 = 242, 248
M = [248 + i for i in range(4)]
VLANE16 = 243
KB = [VK, 230, 229]
VSP = 231
RD = 250
def O(fb, qb): return (fb * 4 + qb) * 4
VTP = [244, 245]
Z1 = [0]
DS = list(range(8))
BIAS = 40
PVC = [0]

SRD_Q, SRD_K, SRD_OP, SRD_ML = 8, 12, 20, 24
S_OFF, S_M0, S_CNT, S_THR, S_MASK, S_WAVE, S_SITE = 28, 30, 31, 32, 33, 34, 36
S_PH, S_STEP, S_NW, S_NL, S_RO = 100, 101, 39, 35, 49
STEP = ['0x4000']


def vr(b, n=4): return f"v[{b}:{b+n-1}]"
def ar(b, n=4): return f"a[{b}:{b+n-1}]"


class Seg:
    def __init__(self):
        self.mf = []
        self.gap = []
        self.pre = []

    def add_mfma(self, t):
        self.mf.append(t)
        self.gap.append([])

    def used(self, g):
        return sum(c for c, _ in self.gap[g])

    def put(self, g, text, cost=1):
        if g < 0:
            self.pre.append((cost, text))
        else:
            self.gap[g].append((cost, text))

    def fill(self, queue, g0, g1, cap=2):
        g = g0
        for cost, text in queue:
            while g < g1 and self.used(g) + cost > (cap[g % 2] if isinstance(cap, list) else cap):
                g += 1
            self.gap[g].append((cost, text))
        return g

    def text(self):
        o = [t for _, t in self.pre]
        for m, gp in zip(self.mf, self.gap):
            o.append(m)
            o += [t for _, t in gp]
        return o


def foff(kb, c): return (c >> 1) * 4096 + kb * 2048 + (c & 1) * 512

def kread(off):
    return [lambda f: f"ds_read_b128 {vr(f)}, v{VK} offset:{off}"]

def vread(off, fb, base=VTR):
    return [lambda f, kb=kb: f"ds_read_b64_tr_b16 v[{f+2*kb}:{f+2*kb+1}], v{base[fb & 1]} offset:{off + foff(kb, fb >> 1)}" for kb in range(2)]


def qk_block(h, off, cinit):
    fr = []
    for ds in range(8):
        ms = []
        for qb in range(4):
            c = (0 if Z1[0] else cinit(qb)) if ds == 0 else vr(S(h, qb))
            ms.append(lambda f, qb=qb, ds=ds, c=c: f"v_mfma_f32_16x16x32_bf16 {vr(S(h,qb))}, {vr(f)}, {vr(Q(qb,ds))}, {c}")
        fr.append((kread(off + foff(h, DS[ds])), ms))
    return fr


FAKE = [-1]
TR = [0]
def pvm(acc, f, pp):
    a, b = (pp, f) if TR[0] else (f, pp)
    return f"v_mfma_f32_16x16x32_bf16 {ar(acc)}, {vr(a)}, {vr(b)}, {ar(acc)}"


def pv_block(p, off, fb0):
    fr = []
    for fb in range(fb0, fb0 + 8):
        ms = []
        for qb in range(4):
            ms.append(lambda f, qb=qb, fb=fb: pvm(O(fb & FAKE[0], qb), f, P(p ^ (fb & 1 & ~FAKE[0]), qb)))
        fr.append((vread(off, fb), ms))
    return fr


CHAIN = [0]
SNAKE = [0]
def build_seg(frags, next_reads, ring=4, sw=None, npre=None, wg=1):
    sg = Seg()
    n = len(frags)
    assert n % ring == 0 or sw is not None and sw % ring == 0
    rds = [r for r, _ in frags] + list(next_reads)
    slot = lambda i: i % (4 if sw is not None and i >= sw else ring)
    reg = lambda i: SLOT[slot(i)]
    first = {}; last = {}; grp = {}
    i = 0
    while i < n:
        c = 1
        for cl in (4, 2):
            if cl > CHAIN[0] or cl > (2 if ring == 4 or sw is not None and i >= sw else ring // 2) or i % cl or i + cl > n: continue
            if len({tuple(m(0).split(',')[0] for m in frags[j][1]) for j in range(i, i + cl)}) == 1: c = cl; break
        for k in range(len(frags[i][1])):
            for j in (range(i, i + c) if not (SNAKE[0] and k % 2 and c == 2 and 'v[192' not in frags[i][1][0](0)) else range(i + c - 1, i - 1, -1)):
                first.setdefault(j, len(sg.mf)); last[j] = len(sg.mf); grp[j] = (i, i + c - 1); sg.add_mfma(frags[j][1][k](reg(j)))
        i += c
    nm = len(sg.mf)
    issued = []
    sg.reads = []
    ev = []
    occ = {}; late0 = []
    for i in range(len(rds)):
        pv = occ.get(slot(i)); occ[slot(i)] = i
        if pv is None:
            assert i < ring; issued += [i] * len(rds[i]); sg.reads += [(-1, last.get(i, nm), slot(i), x(reg(i))) for x in rds[i]]
            if npre is not None and i >= npre: late0 += [x(reg(i)) for x in rds[i]]
        else:
            d = 0 if last.get(pv + 1) == last[pv] + 1 or last.get(pv - 1) == last[pv] + 1 else 1
            for k, x in enumerate(rds[i]): ev.append((min(last[pv] + k * d, nm - 1), 2 if k * d and last[pv] + k < nm else 0, 'r', i, x))
        if i < n: ev.append((first[grp[i][0]] - 1, 1, 'w', i, None))
    okn = -1
    for x in late0: sg.put(-1, x)
    for g, _, kind, i, x in sorted(ev, key=lambda e: (e[0] - (e[1] == 2), e[1], e[3])):
        if kind == 'r': sg.put(g, x(reg(i))); issued.append(i); sg.reads.append((g, last.get(i, nm), slot(i), x(reg(i))))
        else:
            j = grp[i][1]
            if wg > 1 and j + 1 < n and grp[j + 1][1] // (2 * wg) == i // (2 * wg) and all(issued.count(y) == len(rds[y]) for y in range(i, grp[j + 1][1] + 1)): j = grp[j + 1][1]
            lastr = max(k for k, y in enumerate(issued) if grp[i][0] <= y <= j)
            assert all(issued.count(y) == len(rds[y]) for y in range(i, j + 1))
            if lastr > okn: sg.put(g, f"s_waitcnt lgkmcnt({min(15, len(issued) - 1 - lastr)})"); okn = lastr
    return sg


REREAD = {}
def note_site(sg, g, site):
    REREAD[site] = [t for gi, lu, sl, t in sg.reads if sl >= 4 and gi <= g < lu]


def or_check(pr, site):
    q = [(1, f"v_or3_b32 v{VT0}, {pr[0]}, {pr[1]}, {pr[2]}")] + [(1, f"v_or3_b32 v{VT0}, v{VT0}, {pr[k]}, {pr[k+1]}") for k in range(3, len(pr) - 1, 2)]
    return q + [(1, f"v_or_b32 v{VT0}, v{VT0}, {pr[-1]}"), (1, f"v_lshl_or_b32 v{VT0}, v{VT0}, 16, v{VT0}"), (1, f"v_cmp_le_u32 vcc, 2.0, v{VT0}"),
                (1, f"s_cbranch_vccnz L2_rare_site{site}\nL2_ret{site}:")]


SMPAT = ['E0 E1 E2 A0 C0 E3 A1 A2 A3 C1']
def softmax_queue(h, pn, site, pat=None, inpl=False, qs=range(4), et=None):
    lin = lout = LA
    if callable(pn):
        pf = pn; P = lambda _, qb: pf(qb)
    else:
        P = globals()['P']
    q = []
    def tok(t, qb):
        e = ET[(qb % 2) * 4:(qb % 2) * 4 + 4]; s = S(h, qb); k = int(t[1])
        if inpl: e = [s + r for r in range(4)]
        if et: e = [et(qb) + r for r in range(4)]
        if t[0] == 'E': return (2, f"v_exp_f32 v{e[k]}, v{s+k}")
        if t[0] == 'A': return (1, f"v_add_f32 v{lout[qb]}, v{lin[qb] if k == 0 else lout[qb]}, v{e[k]}")
        return (1, f"v_cvt_pk_bf16_f32 v{P(pn,qb)+2*h+k}, v{e[2*k]}, v{e[2*k+1]}")
    pat = (pat or ('E0 C1p E1 E2 C0 E3' if Z1[0] else SMPAT[0])).split()
    for qb in range(5):
        for t in pat:
            r = qb - 1 if t.endswith('p') else qb
            if r in qs: q.append(tok(t, r))
    if Z1[0]:
        q = [x for x in q if not x[1].startswith('v_add')]
        ck = or_check([x[1].split()[1].rstrip(',') for x in q if 'cvt' in x[1]], site)
        return q[:-1] + ck[:1] + q[-1:] + ck[1:]
    if len(qs) == 4:
        q.append((1, f"v_max3_f32 v{VT0}, v{lout[0]}, v{lout[1]}, v{lout[2]}"))
        q.append((1, f"v_max_f32 v{VT0}, v{VT0}, v{lout[3]}"))
    else: q.append((1, f"v_max_f32 v{VT0}, v{lout[qs[0]]}, v{lout[qs[1]]}"))
    q.append((1, f"v_cmp_lt_f32 vcc, s{S_THR}, v{VT0}"))
    q.append((1, f"s_cbranch_vccnz L2_rare_site{site}\nL2_ret{site}:"))
    return q


def body(p, kind, sites, opt):
    B = p * 16384
    Bn = (1 - p) * 16384
    negm = lambda qb: vr(NEGM(qb))
    fr = pv_block(p, B, 0)
    if kind != 'tail1':
        fr += qk_block(1, Bn, negm)
    fr += pv_block(p, B, 8)
    if kind == 'loop':
        fr += qk_block(0, B, negm)
    nxt = [vread(Bn, i) for i in range(RING)] if kind != 'tail1' else []
    sg = build_seg(fr, nxt)
    if kind == 'loop':
        gb = opt.get('gbar', 81)
        gd = opt.get('gdma', [0, 1, 2, 5, 6])
        if not opt.get('nobar'):
            sg.put(gb, "s_waitcnt vmcnt(%d)" % sum(1 for x in gd[1:] if x < gb))
            sg.put(gb, "s_barrier")
        assert all(x != gb for x in gd) and gb < 83
        sg.put(gd[0], f"s_mov_b32 m0, s{S_M0}")
        for k in range(4):
            if opt.get('nodma'): continue
            sg.put(gd[k + 1], f"buffer_load_dwordx4 v{VDMA}, s[{SRD_K}:{SRD_K+3}], s{S_OFF} offen offset:{k*1024}{opt.get('dl','')} lds")
        gs = opt.get('gs', [125, 125, 122, 126, 126])
        sg.put(gs[0], f"s_add_u32 s{S_OFF}, s{S_OFF}, {STEP[0]}")
        sg.put(gs[1], f"s_add_u32 s{S_M0}, s{S_M0}, 0x4000")
        sg.put(gs[2], f"s_sub_u32 s{S_CNT}, s{S_CNT}, 1")
        sg.put(gs[3], f"s_and_b32 s{S_M0}, s{S_M0}, 0x1ffff")
        sg.put(gs[4], f"s_cmp_eq_u32 s{S_CNT}, 0")
        assert gs[4] >= max(gs[:4])
        if p == 0:
            sg.put(70, f"v_add_u32 v{VK}, 0x8000, v{VK}")
            sg.put(70, f"v_and_b32 v{VK}, 0x1ffff, v{VK}")
    if kind == 'tail2':
        sg.put(2, "s_waitcnt vmcnt(0)")
    if p == 1 and kind != 'tail1':
        g = 84 if kind == 'loop' else 81
        sg.put(g, f"v_add_u32 v{VTR[0]}, 0x8000, v{VTR[0]}")
        sg.put(g, f"v_and_b32 v{VTR[0]}, 0x1ffff, v{VTR[0]}")
        sg.put(g + 1, f"v_xor_b32 v{VTR[1]}, 32, v{VTR[0]}")
    if kind != 'tail1' and opt.get('valu', 1):
        def flt(q):
            if opt.get('nochk'): q = q[:-4] + [(0, q[-1][1].split("\n")[1])]
            if opt.get('fakez'):
                z = []; na = 0
                for c, x in q[:-4]:
                    if x.startswith('v_add'):
                        na += 1
                        if na % 2: continue
                        r = x.split(',')[2].strip(); x = f"v_max3_f32 v{VT0}, v{VT0}, {r}, v{int(r[1:]) - 1}"
                    z.append((c, x))
                q = z + [(0, "s_nop 0"), (0, "s_nop 0")][:0] + q[-2:]
                q = q[:-2] + [(0, ""), (0, "")] + q[-2:]
            if opt.get('noexp'): q = [(1, x.replace('v_exp_f32', 'v_mov_b32')) if 'v_exp' in x else (c, x) for c, x in q]
            return q
        last = 124 if kind == 'loop' else len(sg.mf) - 1
        for h, (ga, gz) in enumerate(((opt.get('g0', 8), 71), (opt.get('g1', 72), last))):
            q = flt(softmax_queue(h, 1 - p, sites[h], opt.get('smp')))
            cs = opt.get('cs')
            if cs:
                g = sg.fill(q[:-4], ga, gz)
                for x, d in zip(q[-4:], cs): g = sg.fill([x], min(g + d, 127), 127)
            else: g = sg.fill(q, ga, gz)
            if opt.get('verbose'): print(kind, p, "sm", h, "end", g, "over", [(i, sg.used(i)) for i in range(len(sg.mf)) if sg.used(i) > 2])
    return sg


def body2(p, first, sites, opt):
    B = p * 16384; Bn = (1 - p) * 16384
    negm = lambda qb: vr(NEGM(qb))
    fr = qk_block(1, Bn, negm)
    for fb in range(8 * p, 8 * p + 8):
        for old in ((0,) if first else (1, 0)):
            fr.append((vread(Bn, fb, VTR if p else VTP) if old else vread(B, fb), [lambda f, qb=qb, fb=fb, old=old: pvm(O(fb, qb), f, P(p ^ old, qb)) for qb in range(4)]))
    fr += qk_block(0, B, negm)
    sg = build_seg(fr, [kread(B + foff(1, DS[ds])) for ds in range(R8[0])], R8[0])
    nm = len(sg.mf); sh = nm - 128
    X = lambda g: g if g < 40 else g + sh if g >= 72 else 40 + (g - 40) % 8 if first else g
    gb = X(opt.get('gbar2', 69 if R8[0] == 8 else 81)); gd = [X(g) for g in opt.get('gdma2', [52, 53, 57, 61, 65])]
    if first: gd = [33, 34, 36, 38, 41]
    if first and R8[0] == 8: gb = 30
    assert gb < min(gi for gi, lu, sl, t in sg.reads if 'b128' in t and lu >= nm - 32) and gb not in gd
    sg.put(gb, "s_waitcnt vmcnt(%d)" % sum(1 for x in gd[1:] if x < gb)); sg.put(gb, "s_barrier")
    sg.put(gd[0], f"s_mov_b32 m0, s{S_M0}")
    for k in range(4):
        sg.put(gd[k + 1], f"buffer_load_dwordx4 v{VDMA}, s[{SRD_K}:{SRD_K+3}], s{S_OFF} offen offset:{k*1024}{opt.get('dl2', opt.get('dl',''))} lds")
    gs = [X(g) for g in opt.get('gs2', [120, 120, 117, 121, 122])]
    assert min(gs[:2]) > max(gd) and gs[4] >= max(gs[:4])
    sg.put(gs[0], f"s_add_u32 s{S_OFF}, s{S_OFF}, {STEP[0]}")
    sg.put(gs[1], f"s_add_u32 s{S_M0}, s{S_M0}, 0x4000")
    sg.put(gs[2], f"s_sub_u32 s{S_CNT}, s{S_CNT}, 1")
    sg.put(gs[3], f"s_and_b32 s{S_M0}, s{S_M0}, 0x1ffff")
    if not first: sg.put(gs[4], f"s_cmp_eq_u32 s{S_CNT}, 0")
    if p == 0:
        g = opt.get('gvk', 17)
        assert all(gi < g or gi > g + 1 and lu > 31 for gi, lu, sl, t in sg.reads if 'b128' in t)
        sg.put(g, f"v_add_u32 v{VK}, 0x8000, v{VK}"); sg.put(g + 1, f"v_and_b32 v{VK}, 0x1ffff, v{VK}")
    else:
        g = opt.get('gvt', 104)
        sg.put(g, f"v_mov_b32 v{VTP[0]}, v{VTR[0]}"); sg.put(g, f"v_mov_b32 v{VTP[1]}, v{VTR[1]}")
        sg.put(g + 1, f"v_add_u32 v{VTR[0]}, 0x8000, v{VTR[0]}"); sg.put(g + 2, f"v_and_b32 v{VTR[0]}, 0x1ffff, v{VTR[0]}")
        sg.put(g + 4, f"v_xor_b32 v{VTR[1]}, 32, v{VTR[0]}")
    qs = [softmax_queue(h, 1 - p, sites[h], opt.get('smp2', 'E0 E1 E2 A0 E3 A1 A2p A3p C0 C1'), True) for h in range(2)]
    cv = [[x for x in q if 'cvt' in x[1]] for q in qs]; qs = [[x for x in q if 'cvt' not in x[1]] for q in qs]
    if opt.get('fakez2'):
        for h in range(2):
            pr = [x[1].split()[1].rstrip(',') for x in cv[h]]
            qs[h] = [x for x in qs[h][:-4] if 'v_add' not in x[1]] + [(1, f"v_or3_b32 v{VT0}, {pr[0]}, {pr[1]}, {pr[2]}"), (1, f"v_or3_b32 v{VT0}, v{VT0}, {pr[3]}, {pr[4]}"), (1, f"v_or3_b32 v{VT0}, v{VT0}, {pr[5]}, {pr[6]}"),
                     (1, f"v_and_or_b32 v{VT0}, v{VT0}, 0, {pr[7]}"), (1, f"v_and_b32 v{VT0}, 0, v{VT0}"), (1, f"v_cmp_ne_u32 vcc, 0, v{VT0}"), qs[h][-1]]
    if Z1[0]:
        cap = 3 if first else 2
        gc = [X(g) for g in opt.get('gcz', [89, 90, 91, 92, 93, 96, 97, 98])]
        for k in range(0, 8, 2 if first else 1):
            for x in cv[k % 2][k // 2 * 2:k // 2 * 2 + 2]: sg.put(gc[k], x[1])
        g = 4
        for h in range(2):
            g = max(g, 40 * h)
            for x in [x for x in qs[h] if 'exp' in x[1]]: g = sg.fill([x], g, nm - 20 if first and h else gc[0] - 1, cap=2) + (0 if first else opt.get('esp', 0))
        if first: gc[4] = sg.fill(cv[1], g + 1, nm - 1, cap=cap)
        ck = or_check([f"v{P(1 - p, qb) + r}" for qb in range(4) for r in range(4)], sites[0])
        ge = g; g = sg.fill(ck[:-1], gc[4], nm - 1, cap=cap); g = sg.fill(ck[-1:], min(max(g + 3, nm - 24), nm - 1), nm - 1, cap=cap)
        if opt.get('verbose'): print("body2z", p, first, "exp end", ge, "branch", g, "over", [(i, sg.used(i)) for i in range(nm) if sg.used(i) > 2])
        sg.put(-1, f"L2_ret{sites[1]}:", 0)
        return sg
    gc = [X(g) for g in opt.get('gcv', [89, 91, 93, 97])]
    for k, x in enumerate(cv[0]): sg.put(gc[k // 2], x[1])
    cap = 3 if first else opt.get('capp', 2)
    g = 4 if first else opt.get('g02', 4)
    for h in range(2):
        g = sg.fill(qs[h][:-4], max(g, 40 * h), nm - 1, cap=cap)
        for x, d in zip(qs[h][-4:], opt['cs']): g = sg.fill([x], min(max(g + d, (gc[3] + 1) * h if x is qs[h][-1] else 0), nm - 1), nm - 1, cap=cap)
        assert g > opt.get('gvk', 17) + 1 and (h or g < gc[0])
        note_site(sg, g, sites[h])
        assert not [t for t in REREAD[sites[h]] if '_tr_' in t and g >= opt.get('gvt', 104)]
        if opt.get('verbose'): print("body2", p, first, "sm", h, "branch", g, "rereads", len(REREAD[sites[h]]))
    g = sg.fill(cv[1], g, nm - 1, cap=cap)
    if opt.get('verbose'): print("   cvt1 end", g, "over", [(i, sg.used(i)) for i in range(nm) if sg.used(i) > 2])
    return sg


def rare_code(p, h, sites, pt=None, live=None, spills=(), ka=None, cvt=True, qs=range(4), omul=False):
    if pt is None:
        pt = lambda qb: P(1 - p, qb)
        live = [lambda qb: P(p, qb)]
    lin = lout = LA
    o = []
    for st in sites:
        o.append(f"L2_rare_site{st}:")
        o.append(f"s_mov_b32 s{S_SITE}, {st}")
        o.append(f"s_branch L2_rare_{p}_{h}")
    o.append(f"L2_rare_{p}_{h}:")
    o.append("s_nop 15")
    o.append("s_nop 15")
    o.append("s_waitcnt lgkmcnt(0)")
    if ka:
        o.append(f"v_add_u32 v{RD}, 0x{ka[1] & 0x1ffff:x}, v{ka[0]}")
        o.append(f"v_and_b32 v{RD}, 0x1ffff, v{RD}")
        for ds in range(8):
            o.append(f"ds_read_b128 {vr(ET[0])}, v{RD} offset:{ka[2] + foff(h, ds)}")
            o.append("s_waitcnt lgkmcnt(0)")
            for qb in qs: o.append(f"v_mfma_f32_16x16x32_bf16 {vr(S(h,qb))}, {vr(ET[0])}, {vr(Q(qb,ds))}, {vr(S(h,qb)) if ds else vr(NEGM(qb))}")
            o.append("s_nop 7")
        o.append("s_nop 7")
    DL = ET[0:4]
    FF = ET[4:8]
    for qb in range(4):
        if qb not in qs:
            o.append(f"v_mov_b32 v{FF[qb]}, 1.0"); continue
        s = S(h, qb)
        d = DL[qb]
        for r in range(4):
            o.append(f"v_exp_f32 v{VT1}, v{s+r}")
            o.append("s_nop 0")
            o.append(f"v_sub_f32 v{lin[qb]}, v{lin[qb]}, v{VT1}")
        o.append(f"v_max_f32 v{lin[qb]}, 0, v{lin[qb]}")
        o.append(f"v_min_f32 v{lin[qb]}, s{S_THR}, v{lin[qb]}")
        o.append(f"v_log_f32 v{VT1}, v{lin[qb]}")
        o.append(f"v_max3_f32 v{d}, v{s}, v{s+1}, v{s+2}")
        o.append(f"v_max3_f32 v{d}, v{d}, v{s+3}, v{VT1}")
        o.append(f"v_mov_b32 v{VT1}, v{d}")
        o.append("s_nop 1")
        o.append(f"v_permlane32_swap_b32 v{d}, v{VT1}")
        o.append("s_nop 1")
        o.append(f"v_max_f32 v{d}, v{d}, v{VT1}")
        o.append(f"v_mov_b32 v{VT1}, v{d}")
        o.append("s_nop 1")
        o.append(f"v_permlane16_swap_b32 v{d}, v{VT1}")
        o.append("s_nop 1")
        o.append(f"v_max_f32 v{d}, v{d}, v{VT1}")
        o.append(f"v_ceil_f32 v{d}, v{d}")
        o.append(f"v_max_f32 v{d}, 0, v{d}")
        o.append(f"v_sub_f32 v{VT1}, 0, v{d}")
        o.append(f"v_exp_f32 v{FF[qb]}, v{VT1}")
        o.append("s_nop 1")
        o.append(f"v_mul_f32 v{lin[qb]}, v{lin[qb]}, v{FF[qb]}")
        if not PVC[0]: o.append(f"v_add_f32 v{M[qb]}, v{M[qb]}, v{d}")
        for r in range(4):
            o.append(f"v_sub_f32 v{NEGM(qb)+r}, v{NEGM(qb)+r}, v{d}")
            o.append(f"v_sub_f32 v{S(h,qb)+r}, v{S(h,qb)+r}, v{d}")
            o.append(f"v_{'mul' if omul else 'sub'}_f32 v{S(1-h,qb)+r}, v{S(1-h,qb)+r}, v{FF[qb] if omul else d}")
        regs = [f(qb) + r for f in live for r in range(4)] + ([] if h == 0 or omul else [pt(qb) + r for r in range(2)])
        def scale(r):
            o.append(f"v_lshlrev_b32 v{VT0}, 16, v{r}")
            o.append(f"v_and_b32 v{VT1}, 0xffff0000, v{r}")
            o.append(f"v_mul_f32 v{VT0}, v{VT0}, v{FF[qb]}")
            o.append(f"v_mul_f32 v{VT1}, v{VT1}, v{FF[qb]}")
            o.append(f"v_cvt_pk_bf16_f32 v{r}, v{VT0}, v{VT1}")
        for r in regs: scale(r)
        for k in spills:
            for hh in range(2):
                off = k * 4096 + qb * 1024 + hh * 8
                o.append(f"ds_read_b64 v[{RD}:{RD+1}], v{VSP} offset:{off}")
                o.append("s_waitcnt lgkmcnt(0)")
                scale(RD); scale(RD + 1)
                o.append(f"ds_write_b64 v{VSP}, v[{RD}:{RD+1}] offset:{off}")
                o.append("s_waitcnt lgkmcnt(0)")
    for qb in qs:
        s = S(h, qb)
        e = ET[0:4] if cvt else [s + r for r in range(4)]
        for r in range(4):
            o.append(f"v_exp_f32 v{e[r]}, v{s+r}")
        o.append("s_nop 1")
        o.append(f"v_add_f32 v{lout[qb]}, v{lin[qb]}, v{e[0]}")
        for r in range(1, 4):
            o.append(f"v_add_f32 v{lout[qb]}, v{lout[qb]}, v{e[r]}")
        if cvt:
            o.append(f"v_cvt_pk_bf16_f32 v{pt(qb)+2*h}, v{e[0]}, v{e[1]}")
            o.append(f"v_cvt_pk_bf16_f32 v{pt(qb)+2*h+1}, v{e[2]}, v{e[3]}")
    o.append("s_branch L2_rare_common")
    return o


def rare_z(name, sites, hs, pt, live, spills=(), ka=None, slot=True, qs=range(4)):
    o = []; A = o.append
    for st in sites: o += [f"L2_rare_site{st}:", f"s_mov_b32 s{S_SITE}, {st}", f"s_branch L2_rare_{name}"]
    o += [f"L2_rare_{name}:", "s_nop 15", "s_nop 15", "s_waitcnt lgkmcnt(0)"]
    SR, FR, D, T, MK, KA = 192, 200, 204, 205, 206, 207; FF = ET[4:8]; NM = LA
    if len(qs) < 4: D, T, MK = 249, 252, 253
    A(f"v_lshrrev_b32 v{MK}, 8, v{VLANE16}"); A(f"v_add_u32 v{MK}, 1, v{MK}"); A(f"v_lshrrev_b32 v{MK}, 2, v{MK}"); A(f"v_sub_u32 v{MK}, 0, v{MK}"); A(f"v_and_b32 v{MK}, 0xffff0000, v{MK}")
    if ka: A(f"v_add_u32 v{KA}, 0x{ka[1] & 0x1ffff:x}, v{ka[0]}"); A(f"v_and_b32 v{KA}, 0x1ffff, v{KA}")
    def scale(r, qb):
        A(f"v_lshlrev_b32 v{VT0}, 16, v{r}"); A(f"v_and_b32 v{VT1}, 0xffff0000, v{r}")
        A(f"v_mul_f32 v{VT0}, v{VT0}, v{FF[qb]}"); A(f"v_mul_f32 v{VT1}, v{VT1}, v{FF[qb]}"); A(f"v_cvt_pk_bf16_f32 v{r}, v{VT0}, v{VT1}")
    for qb in range(4):
        if qb not in qs:
            A(f"v_mov_b32 v{FF[qb]}, 1.0"); continue
        src = {h: SR + 4 * h if ka else S(h, qb) for h in hs}
        if ka:
            for h in hs:
                for ds in range(8):
                    A(f"ds_read_b128 {vr(FR)}, v{KA} offset:{ka[2] + foff(h, DS[ds])}"); A("s_waitcnt lgkmcnt(0)")
                    A(f"v_mfma_f32_16x16x32_bf16 {vr(src[h])}, {vr(FR)}, {vr(Q(qb,ds))}, {vr(src[h]) if ds else 0}"); A("s_nop 7")
            A("s_nop 7")
        v = [src[h] + r for h in hs for r in range(4)]
        A(f"v_max_f32 v{D}, v{v[0]}, v{v[1]}")
        for k in range(2, len(v), 2): A(f"v_max3_f32 v{D}, v{D}, v{v[k]}, v{v[k+1]}")
        for sw in ("v_permlane32_swap_b32", "v_permlane16_swap_b32"):
            A(f"v_mov_b32 v{T}, v{D}"); A("s_nop 1"); A(f"{sw} v{D}, v{T}"); A("s_nop 1"); A(f"v_max_f32 v{D}, v{D}, v{T}")
        A(f"v_add_f32 v{D}, {float(BIAS)}, v{D}"); A(f"v_ceil_f32 v{D}, v{D}"); A(f"v_max_f32 v{D}, 0, v{D}")
        A(f"v_sub_f32 v{T}, v{NM[qb]}, v{D}"); A(f"v_cvt_pk_bf16_f32 v{T}, v{T}, v{T}"); A(f"v_and_b32 v{T}, 0xffff0000, v{T}")
        A(f"v_sub_f32 v{D}, v{T}, v{NM[qb]}"); A(f"v_mov_b32 v{NM[qb]}, v{T}"); A(f"v_exp_f32 v{FF[qb]}, v{D}")
        if slot: A(f"v_bfi_b32 v{Q(qb,0)+3}, v{MK}, v{T}, v{Q(qb,0)+3}")
        for r in v + [S(0 if ka else 1 - hs[0], qb) + r for r in range(4)]: A(f"v_add_f32 v{r}, v{r}, v{D}")
        for r in [f(qb) + r for f in live for r in range(4)] + ([pt(qb), pt(qb) + 1] if hs == [1] else []): scale(r, qb)
        for k in spills:
            for hh in range(2):
                off = k * 4096 + qb * 1024 + hh * 8
                A(f"ds_read_b64 v[{RD}:{RD+1}], v{VSP} offset:{off}"); A("s_waitcnt lgkmcnt(0)"); scale(RD, qb); scale(RD + 1, qb)
                A(f"ds_write_b64 v{VSP}, v[{RD}:{RD+1}] offset:{off}"); A("s_waitcnt lgkmcnt(0)")
        for h in hs:
            for r in range(4): A(f"v_exp_f32 v{ET[r]}, v{src[h]+r}")
            A("s_nop 1"); A(f"v_cvt_pk_bf16_f32 v{pt(qb)+2*h}, v{ET[0]}, v{ET[1]}"); A(f"v_cvt_pk_bf16_f32 v{pt(qb)+2*h+1}, v{ET[2]}, v{ET[3]}")
    A("s_branch L2_rare_common")
    return o


def rare_common(all_sites):
    FF = ET[4:8]
    o = ["L2_rare_common:"]
    FT = [VT0, VT1, RD, RD + 1]
    for qb in range(4):
        if TR[0]:
            o.append(f"v_lshrrev_b32 v{ET[0]}, 4, v{VLANE16}")
            o.append(f"v_and_b32 v{ET[0]}, 0x30, v{ET[0]}")
            for r in range(4): o.append(f"ds_bpermute_b32 v{FT[r]}, v{ET[0]}, v{FF[qb]} offset:{4*r}")
            o.append("s_waitcnt lgkmcnt(0)")
        for fb in range(16):
            for r in range(4):
                a = O(fb, qb) + r
                t = ET[r]
                o.append(f"v_accvgpr_read_b32 v{t}, a{a}")
            for r in range(4):
                o.append(f"v_mul_f32 v{ET[r]}, v{ET[r]}, v{FT[r] if TR[0] else FF[qb]}")
            for r in range(4):
                o.append(f"v_accvgpr_write_b32 a{O(fb,qb)+r}, v{ET[r]}")
    o.append("s_nop 3")
    for st in all_sites[:-1]:
        o.append(f"s_cmp_eq_u32 s{S_SITE}, {st}")
        o.append(f"s_cbranch_scc1 L2_rr{st}")
    for st in all_sites[::-1]:
        o += [f"L2_rr{st}:"] + REREAD.get(st, []) + ["s_waitcnt lgkmcnt(0)", f"s_branch L2_ret{st}"]
    return o


def srd(o, d, off, nbytes, extra_sgpr=None):
    o.append(f"s_add_u32 s{d}, s4, 0x{off & 0xffffffff:x}")
    o.append(f"s_addc_u32 s{d+1}, s5, 0")
    if extra_sgpr is not None:
        o.append(f"s_add_u32 s{d}, s{d}, s{extra_sgpr}")
        o.append(f"s_addc_u32 s{d+1}, s{d+1}, 0")
    o.append(f"s_mov_b32 s{d+2}, 0x{nbytes:x}")
    o.append(f"s_mov_b32 s{d+3}, 0x00020000")


def epilogue(sg_tail, opt):
    conv = []
    for t in range(8):
        q = []
        for qb in range(4):
            st = (t * 4 + qb) * 4
            tmp = [128 + (qb % 2) * 8 + r for r in range(8)]
            for k in range(8):
                q.append((1, f"v_accvgpr_read_b32 v{tmp[k]}, a{O(2*t+k//4,qb)+k%4}"))
            for r in range(4):
                q.append((1, f"v_cvt_pk_bf16_f32 v{st+r}, v{tmp[2*r]}, v{tmp[2*r+1]}"))
            so = 40 + qb if t < 4 else 44 + qb
            q.append((1, f"buffer_store_dwordx4 {vr(st)}, v{VLANE16}, s[{SRD_OP}:{SRD_OP+3}], s{so} offen offset:{(t%4)*1024}{opt.get('st','')}"))
        conv.append(q)
    nm = len(sg_tail.mf)
    assert nm == 64
    for t in range(8):
        g0 = 8 * t + 12
        if g0 <= nm - 1:
            sg_tail.fill(conv[t], g0, min(g0 + 7, nm - 1), cap=7)
        else:
            sg_tail.put(nm - 1, "s_nop 7")
            for c, x in conv[t]:
                sg_tail.put(nm - 1, x, c)
    return sg_tail.text() + ml_store(opt)


def ml_store(opt):
    o = []
    for qb in range(4):
        l = LA[qb]
        o.append(f"v_mov_b32 v{VT1}, v{l}")
        o.append("s_nop 1")
        o.append(f"v_permlane32_swap_b32 v{l}, v{VT1}")
        o.append("s_nop 1")
        o.append(f"v_add_f32 v{l}, v{l}, v{VT1}")
        o.append(f"v_mov_b32 v{VT1}, v{l}")
        o.append("s_nop 1")
        o.append(f"v_permlane16_swap_b32 v{l}, v{VT1}")
        o.append("s_nop 1")
        o.append(f"v_add_f32 v{ET[2*qb+1]}, v{l}, v{VT1}")
        o.append(f"v_mov_b32 v{ET[2*qb]}, v{M[qb]}")
    o.append(f"v_lshlrev_b32 v{VT0}, 2, v{VLANE16}")
    o.append("s_mov_b64 exec, 0xffff")
    for qb in range(4):
        o.append(f"buffer_store_dwordx2 v[{ET[2*qb]}:{ET[2*qb+1]}], v{VT0}, s[{SRD_ML}:{SRD_ML+3}], s48 offen offset:{qb*1024}{opt.get('st','')}")
    return o


def tail_run(p, T, site0, opt):
    negm = lambda qb: vr(NEGM(qb))
    C = PVC[0]; p0 = p
    if C: p = 1 - p
    VB = [VTP if C and p else VTR, [Q(0, 3), Q(0, 3) + 1], [Q(0, 3) + 2, Q(0, 3) + 3]]
    kidx = lambda k: k - 1 - p0 if C else (1 - p) + (k - 1)
    skip = lambda k, fb: k == 0 and (fb // 8 != p0 if C else fb < 4)
    G0 = 0 if C else 16; K0 = 2 if C else 1
    nsp = max(T - 3, 0)
    def ploc(k, final=True):
        if k == T - 1: return lambda qb: Q(qb, 0)
        if k < nsp and final: return lambda qb, k=k: Q(qb, 1 + k)
        return lambda qb, k=k: P((p + k) & 1, qb)
    def kfr(k, h):
        i = kidx(k)
        fr = []
        for ds in range(8):
            off = (i & 1) * 16384 + foff(h, DS[ds])
            rd = [lambda f, off=off, i=i: f"ds_read_b128 {vr(f)}, v{KB[i >> 1]} offset:{off}"]
            ms = []
            for qb in range(4):
                c = (0 if Z1[0] else negm(qb)) if ds == 0 else vr(S(h, qb))
                ms.append(lambda f, qb=qb, ds=ds, c=c: f"v_mfma_f32_16x16x32_bf16 {vr(S(h,qb))}, {vr(f)}, {vr(Q(qb,ds))}, {c}")
            fr.append((rd, ms))
        return fr
    def vfr(k, fb, final=True):
        i = p + k
        rd = [lambda f, kb=kb: f"ds_read_b64_tr_b16 v[{f+2*kb}:{f+2*kb+1}], v{VB[i >> 1][fb & 1]} offset:{(i & 1) * 16384 + foff(kb, fb >> 1)}" for kb in range(2)]
        pl = ploc(k, final)
        ms = [lambda f, qb=qb: pvm(O(fb, qb), f, pl(qb)) for qb in range(4)]
        return (rd, ms)
    fr = [vfr(0, fb, False) for fb in range(4)] if not C else []
    blocks = [(K0, 1)] + [(k, h) for k in range(K0 + 1, T) for h in range(2)]
    for k, h in blocks: fr += kfr(k, h)
    G = 4 * len(fr)
    lead = opt.get('lead', 44)
    FO = [14, 15] + list(range(14)) if Z1[0] else list(range(16))
    order = []
    fb = 0
    while 4 * len(order) < lead or fb % 2:
        order += [(k, FO[fb]) for k in range(T - 1) if not skip(k, FO[fb])]
        fb += 1
    glast = G + 4 * len(order)
    order += [(T - 1, x) for x in FO[:fb]]
    for x in FO[fb:]:
        order += [(k, x) for k in range(T) if not skip(k, x)]
    done = {}
    for i, (k, x) in enumerate(order): done[x] = G + 4 * i + 3
    fr += [vfr(k, x) for k, x in order]
    sg = build_seg(fr, [], R8[0], G // 4 - 8)
    nm = len(sg.mf)
    if opt.get('fuse'): import gen_f
    if opt.get('timing') and not opt.get('ft') and not opt.get('pt'):
        for i, gg in enumerate([30, 47, 111, G - 1, glast, (glast + nm) // 2, nm - 20]):
            sg.put(gg, f"s_memtime s[{74+2*i}:{75+2*i}]", 0)
    g = 0
    for k in range(K0 + 2, T):
        sg.put(g, f"s_mov_b32 m0, s{S_M0}")
        for j in range(4):
            sg.put(g + 1 + j, f"buffer_load_dwordx4 v{VDMA}, s[{SRD_K}:{SRD_K+3}], s{S_OFF} offen offset:{j*1024}{opt.get('dl','')} lds ; TK{k}")
        if k + 1 < T:
            sg.put(g + 5, f"s_add_u32 s{S_OFF}, s{S_OFF}, {STEP[0]}\ns_add_u32 s{S_M0}, s{S_M0}, 0x4000\ns_and_b32 s{S_M0}, s{S_M0}, 0x1ffff", 2)
        g += 6
    for k in range(K0 + 1, T):
        gb = G0 + 32 * (2 * (k - K0) - 1) - (15 if R8[0] == 4 else 23 if CHAIN[0] == 4 else 29)
        assert gb < min(gi for gi, lu, sl, t in sg.reads if 'b128' in t and lu >= G0 + 32 * (2 * (k - K0) - 1))
        sg.put(gb, f"WAIT TK{k}" if opt.get('fuse') and k > K0 + 1 else f"s_waitcnt vmcnt({4 * (T - 1 - k)})")
        sg.put(gb, "s_barrier")
    sg.put(-1 if C else 1, f"v_add_u32 v{VSP}, s50, v{VLANE16}")
    for b in (1, 2):
        if 2 * b <= kidx(T - 1):
            sg.put(12 + b - 9 * C, f"v_add_u32 v{KB[b]}, 0x{0x8000*b:x}, v{VK}")
            sg.put(12 + b - 9 * C, f"v_and_b32 v{KB[b]}, 0x1ffff, v{KB[b]}")
    GL = G - 32
    for b in (1, 2):
        if 2 * b <= p + T - 1:
            sg.put(GL + 13 + b, f"v_add_u32 v{VB[b][0]}, 0x{0x8000*b:x}, v{VB[0][0]}")
            sg.put(GL + 13 + b, f"v_and_b32 v{VB[b][0]}, 0x1ffff, v{VB[b][0]}")
            sg.put(GL + 16, f"v_xor_b32 v{VB[b][1]}, 32, v{VB[b][0]}")
    for k in range(nsp):
        gs = (0 if k == 0 else 40) if C else 16 if k == 0 else 16 + 32 * 2 * k
        for qb in range(4):
            sg.put(gs + qb, f"ds_write_b128 v{VSP}, {vr(ploc(k, False)(qb))} offset:{k*4096 + qb*1024}")
            sg.put(GL + 4 * (k + 2) + 1 + (qb & 1) + (qb >> 1) * 4, f"ds_read_b128 {vr(ploc(k)(qb))}, v{VSP} offset:{k*4096 + qb*1024}")
    rare = []
    sites = []
    sms = [(k, h) for k in range(K0, T) for h in range(2)]
    cap = opt.get('tcap', 3)
    for i, (k, h) in enumerate(sms):
        st = site0 + i
        sites.append(st)
        g0 = (5 if C else 6) if i == 0 else G0 + 32 * i + (4 if i == len(sms) - 2 else 1)
        g1 = G0 + 32 * i + 31 if i < len(sms) - 1 else glast - 2
        inpl = R8[0] == 8 and i < len(sms) - 2
        q = softmax_queue(h, ploc(k, False), st, None, inpl)
        c = 2 if (i == 0 and not C or i == len(sms) - 1) else cap
        ge = sg.fill(q[:-1], g0, g1, cap=c)
        gbr = max(ge, g1 - 2) if i == len(sms) - 2 or i == 0 or (h == 0 and 1 <= k - 1 < nsp) else min(ge + opt.get('tcs', 0), g1)
        sg.put(gbr, q[-1][1]); note_site(sg, gbr, st)
        late = i >= len(sms) - 2
        live = [ploc(j, late) for j in range(k) if late or j >= nsp or (j > 0 and i < 2 * j)]
        spl = [j for j in range(nsp) if j < k and not late and not (j > 0 and i < 2 * j)]
        if C:
            assert T == 5 and ge >= 46 or i != 1
            live = [ploc(j, late) for j in range(k) if late or j >= nsp or (j == 1 and i == 0)]
            spl = [j for j in range(nsp) if not late and not (j == 1 and i == 0)]
        assert not Z1[0] or i == len(sms) - 1 or gbr % 32 >= 8
        if Z1[0]: rare += rare_z(f"t{p}_{i}", [st], [h], ploc(k, False), live, spl, None, not late)
        else: rare += rare_code(f"t{p}_{i}", h, [st], ploc(k, False), live, spl, (KB[1], (kidx(k) // 2 - 1) * 0x8000, (kidx(k) & 1) * 16384) if inpl else None)
        if opt.get('verbose'): print("tail", p, "sm", k, h, "end", ge, "of", g1, "live", [f(0) for f in live], "spill", spl)
    if opt.get('fuse'):
        ge = sg.fill(gen_f.early1(p, opt), 6 if C else 12, 32, cap=3)
        eg = opt.get('eg2' if C else 'eg', [34, G - 60, G - 4]); eg = [x if x > 0 else G + x for x in eg]; assert eg[1] >= (96 if C else 112) and eg[2] >= G - 16 and eg[0] > (17 if C else 33)
        for f, g0 in zip((gen_f.early_x, gen_f.early_hf, gen_f.early_h), eg):
            ge = sg.fill(f(p, opt) + (gen_f.early_tlb(p, opt) if opt.get('tlb') and f is gen_f.early_x else []), max(g0, ge), nm - 1, cap=opt.get('ecap', 3))
            if opt.get('verbose'): print("early end", ge)
    g = glast
    ccap = opt.get('ccap', 3)
    def mls():
        z = ["s_mov_b32 exec_lo, 0x33333333", "s_mov_b32 exec_hi, 0x33333333"]
        for qb in range(4):
            if qb: z.append(f"s_lshr_b32 s3, s{40+qb}, 2")
            z.append(f"buffer_store_dwordx2 {vr(ET[2*qb], 2)}, v{VT0}, s[{SRD_ML}:{SRD_ML+3}], s{3 if qb else 48} offen{opt.get('st','')} ; MLS")
        return (3, "\n".join(z + ["s_mov_b64 exec, -1"]))
    if Z1[0]:
        L = VLANE16
        q = [(1, f"v_lshrrev_b32 v228, 4, v{L}"), (1, "v_and_b32 v228, 0x3c, v228")] + [(1, f"v_sub_f32 v{LA[qb]}, 0, v{LA[qb]}") for qb in range(4)]
        q += [(1, f"ds_bpermute_b32 v{ET[2*qb]}, v228, v{LA[qb]}") for qb in range(4)]
        q += [(1, x) for x in (f"v_bfe_u32 v228, v{L}, 4, 1", f"v_mul_u32_u24 v228, 768, v228", f"v_lshl_add_u32 v228, s37, 7, v228", f"v_lshrrev_b32 v{VT0}, 6, v{L}", f"v_lshl_add_u32 v{VT0}, v{VT0}, 3, v228")]
        g = gml = sg.fill(q, g, nm - 1, cap=opt['mle'])
    elif opt.get('mle'):
        q = [(1, f"v_lshlrev_b32 v{VT0}, 2, v{VLANE16}")] if not opt.get('fuse') else [(1, x) for x in gen_f.ml_addr(VT0, VLANE16, 228)]
        for f in ("v_mov_b32 v{e}, v{l}", "v_permlane32_swap_b32 v{l}, v{e}", "v_add_f32 v{l}, v{l}, v{e}", "v_mov_b32 v{e}, v{l}",
                  "v_permlane16_swap_b32 v{l}, v{e}", "v_add_f32 v{e1}, v{l}, v{e}", "v_sub_f32 v{e}, 0, v{m}"):
            q += [(1, f.format(e=ET[2*qb], e1=ET[2*qb+1], l=LA[qb], m=NEGM(qb))) for qb in range(4)]
        if opt.get('fuse'):
            z = ["s_mov_b32 exec_hi, 0"]
            for qb in range(4):
                if qb: z.append(f"s_lshr_b32 s3, s{40+qb}, 2")
                z.append(f"buffer_store_dwordx2 v[{ET[2*qb]}:{ET[2*qb+1]}], v{VT0}, s[{SRD_ML}:{SRD_ML+3}], s{3 if qb else 48} offen{opt.get('st','')} ; MLS")
            q.append((3, "\n".join(z + ["s_mov_b32 exec_hi, -1"])))
        else: q.append((3, "\n".join(ml_store(opt)[-5:] + ["s_mov_b64 exec, -1"])))
        g = sg.fill(q, g, nm - 1, cap=opt['mle'])
    for tn, t in enumerate(x // 2 for x in FO[::2]):
        q = []
        for qb in range(4):
            stg = Q(qb, 4 + t % 4)
            tmp = [128 + (qb % 4) * 8 + r for r in range(8)]
            for k in range(8):
                q.append((1, f"v_accvgpr_read_b32 v{tmp[k]}, a{O(2*t+k//4,qb)+k%4}"))
            for r in range(4):
                q.append((1, f"v_cvt_pk_bf16_f32 v{stg+r}, v{tmp[2*r]}, v{tmp[2*r+1]}"))
            so = 40 + qb if t < 4 else 44 + qb
            q.append((1, f"buffer_store_dwordx4 {vr(stg)}, v{VLANE16}, s[{SRD_OP}:{SRD_OP+3}], s{so} offen offset:{(t%4)*1024}{opt.get('st','')} ; ST{t}"))
        if opt.get('nost'): q = [x for x in q if 'store' not in x[1]]
        if opt.get('nocv'): q = [x for x in q if 'store' in x[1]]
        cc = ccap[tn] if isinstance(ccap, list) else ccap
        px = opt.get('plainx', 4 * opt.get('plain', 8))
        q = [(c, x.replace(opt.get('st', ''), '') if (4 * t + i // 13 >= px if px >= 0 else 4 * t + i // 13 < -px) else x) for i, (c, x) in enumerate(q)]
        if opt.get('half'):
            qa = [x for i, x in enumerate(q) if i % 13 in (0, 1, 2, 3, 8, 9)]
            q = [x for i, x in enumerate(q) if i % 13 not in (0, 1, 2, 3, 8, 9)]
            g = sg.fill(qa, max(g, done[2*t] + 3), nm - 1, cap=cc)
        g0 = max(g, max(done[2*t], done[2*t+1]) + 3)
        if g0 > nm - 1:
            if not opt.get('half'): sg.put(nm - 1, "s_nop 7")
            g0 = nm - 1
        if opt.get('fuse'):
            i0 = [i for i, x in enumerate(q) if 'buffer_store' in x[1]][0]
            q.insert(i0 + 1, (1, f"ds_write_b128 v{VSP}, {vr(Q(0, 4 + t % 4))} offset:{t*1024}"))
        if Z1[0] and t == 7:
            q += [(1, f"v_mov_b32_dpp v{ET[2*qb+1]}, v{132 + 8*qb + r} row_newbcast:15 row_mask:0xf bank_mask:0x{1 << r:x}") for r in range(4) for qb in range(4)] + [mls()]
        g = sg.fill(q, g0, nm - 1, cap=cc)
        assert not Z1[0] or g > gml + 16
        if opt.get('verbose'): print("  conv", t, g0, g, "of", nm)
        if opt.get('fuse') and t == opt.get('f1t', 6): g = sg.fill(gen_f.flag1(opt, opt.get('f1m', 'ST3')), g, nm - 1, cap=3)
    if opt.get('fuse'):
        return gen_f.fix_waits(sg.text() + ["WAIT HLD"]), rare + gen_f.hl_spin(p), sites
    return sg.text() + ([] if opt.get('mle') else ml_store(opt)), rare, sites


def tail_qs(p0, site0, opt):
    import gen_f
    p = 1 - p0; X = [228, 229]
    W = [VTR, X, VTP] if p0 else [VTP, VTR, X]
    kidx = lambda k: k - 1 - p0
    gen_f.EV.update(tmp=231, hf=Q(1, 7), cp=94, wf=176)
    def kfr(k, h, qs):
        i = kidx(k)
        return [([lambda f, ds=ds: f"ds_read_b128 {vr(f)}, v{KB[i >> 1]} offset:{(i & 1) * 16384 + foff(h, DS[ds])}"],
                 [lambda f, qb=qb, ds=ds: f"v_mfma_f32_16x16x32_bf16 {vr(S(h,qb))}, {vr(f)}, {vr(Q(qb,ds))}, {vr(S(h,qb)) if ds else 0}" for qb in qs]) for ds in range(8)]
    assert Z1[0]
    pa = lambda k: (lambda qb: 192 + 4 * qb) if k == 2 else lambda qb: P((p + k % 3) & 1, qb)
    pb = lambda k: pa(k) if k < 2 else lambda qb: Q(qb - 2, k - 2)
    FO = [14, 15] + list(range(14))
    def vfr(k, fb, qs, pl):
        i = p + k
        return (vread((i & 1) * 16384, fb, W[i >> 1]), [lambda f, qb=qb: pvm(O(fb, qb), f, pl(k)(qb)) for qb in qs])
    QA, QB = [0, 1], [2, 3]
    half = lambda k: range(8 * ((p0 + k + 1) & 1), 8 * ((p0 + k + 1) & 1) + 8)
    vv = lambda k: [vfr(j, fb, QA, pa) for fb in half(k) for j in (k - 1, k) if j < 5]
    fr = kfr(2, 1, QA) + vv(1) + kfr(3, 0, QA) + kfr(3, 1, QA) + vv(2) + kfr(4, 0, QA) + kfr(4, 1, QA) + vv(3) + vv(4) + vv(5)
    GB = 2 * len(fr); assert GB == 224
    vb = lambda k: [vfr(j, fb, QB, pb) for fb in half(k) for j in (k - 1, k)]
    fr += kfr(2, 1, QB) + vb(1) + kfr(3, 0, QB) + kfr(3, 1, QB) + vb(2) + kfr(4, 0, QB) + kfr(4, 1, QB)
    G = 2 * len(fr)
    nl = opt.get('qlead', 4)
    order = [(2, x) for x in half(3)] + [(3, x) for x in FO[:nl]]
    glast = G + 2 * len(order)
    order += [(4, x) for x in FO[:nl]] + [(k, x) for x in FO[nl:] for k in (3, 4)]
    fr += [vfr(k, x, QB, pb) for k, x in order]
    sg = build_seg(fr, [], 8, None, R8[0], opt.get('qwg', 2))
    nm = len(sg.mf)
    done = {}
    for g, t in enumerate(sg.mf):
        if ' a[' in t: a = int(t.split('a[')[1].split(':')[0]); done[(a // 16, a // 4 % 4)] = g
    if opt.get('timing') and not opt.get('ft') and not opt.get('pt'):
        for i, gg in enumerate([30, 111, GB - 1, G - 1, glast, (glast + nm) // 2, nm - 20]): sg.put(gg, f"s_memtime s[{74+2*i}:{75+2*i}]", 0)
    sg.put(0, f"s_mov_b32 m0, s{S_M0}")
    for j in range(4): sg.put(1 + 2 * j, f"buffer_load_dwordx4 v{VDMA}, s[{SRD_K}:{SRD_K+3}], s{S_OFF} offen offset:{j*1024}{opt.get('dl','')} lds ; TK4")
    first = lambda g0: min(gi for gi, lu, sl, t in sg.reads if lu >= g0 and 'b128' in t)
    gb3, gb4 = first(48) - 2, first(112) - 2
    sg.put(gb3, "s_waitcnt vmcnt(4)"); sg.put(gb3, "s_barrier"); sg.put(gb4, "WAIT TK4"); sg.put(gb4, "s_barrier")
    for b, g in ((1, -1), (2, 20)):
        if W[b] is not VTR:
            for t in (f"v_add_u32 v{W[b][0]}, 0x{0x8000 * (b - W.index(VTR)):x}, v{VTR[0]}", f"v_and_b32 v{W[b][0]}, 0x1ffff, v{W[b][0]}", f"v_xor_b32 v{W[b][1]}, 32, v{W[b][0]}"): sg.put(g, t); g += g >= 0
    sg.put(2, f"v_add_u32 v{KB[1]}, 0x8000, v{VK}"); sg.put(4, f"v_and_b32 v{KB[1]}, 0x1ffff, v{KB[1]}")
    rare = []; sites = []; cap = opt.get('qcap', [3, 3, 3])
    g = 1
    for qs, G0, pl, et, gend in ((QA, 0, pa, lambda qb: 200 + 4 * qb, 174), (QB, GB, pb, lambda qb: Q(qb - 2, 3), glast - 2)):
        for k in (2, 3, 4):
            for h in range(2):
                st = site0 + len(sites); sites.append(st); b0 = G0 + 64 * (k - 2)
                g1 = gend if k == 4 else b0 + 47 if h == 0 else b0 + 63
                q = softmax_queue(h, pl(k), st, None, False, qs, et)
                g0 = max(g, b0 + 5 + 16 * h) if k > 2 or h else 1 if not G0 else opt.get('qb0', 180)
                g = sg.fill(q[:-1], g0, g1, cap=cap[(G0 > 0) + (k == 4)])
                gs = min(g + 2, g1)
                while 0 <= (gs - G0) and ((gs - G0) % 64 < 4 or 48 <= (gs - G0) % 64 < 52) and gs - G0 < 144: gs += 1
                assert gs <= g1
                sg.put(gs, q[-1][1]); note_site(sg, gs, st); g = gs
                if opt.get('verbose'): print("  sm", qs, k, h, "branch", g, "lim", g1)
                rare += rare_z(f"q{p}_{st}", [st], [h], pl(k), [pl(j) for j in range(k) if G0 and j >= k - 3 or j >= k - 2], (), None, k < 4, qs)
    ge = sg.fill(gen_f.early1(p, opt), 8, gb3, cap=3)
    for f, g0 in zip((gen_f.early_x, gen_f.early_hf, gen_f.early_h), opt.get('egq', [0, 146, 190])):
        q = f(p, opt)
        if f is gen_f.early_h: wf = [x for x in q if f"v{178}" in x[1]]; q = [x for x in q if x not in wf]
        ge = sg.fill(q, max(g0, ge, gb3 + 1), nm - 1, cap=3)
        if opt.get('verbose'): print("  early end", ge)
    L = VLANE16
    def ml1(qs, r):
        q = [f"v_lshrrev_b32 v{r+5}, 4, v{L}", f"v_and_b32 v{r+5}, 0x3c, v{r+5}"] + [f"v_sub_f32 v{LA[qb]}, 0, v{LA[qb]}" for qb in qs] + [f"ds_bpermute_b32 v{r + 2 * (qb & 1)}, v{r+5}, v{LA[qb]}" for qb in qs]
        q += [f"v_bfe_u32 v{r+5}, v{L}, 4, 1", f"v_mul_u32_u24 v{r+5}, 768, v{r+5}", f"v_lshl_add_u32 v{r+5}, s37, 7, v{r+5}", f"v_lshrrev_b32 v{r+4}, 6, v{L}", f"v_lshl_add_u32 v{r+4}, v{r+4}, 3, v{r+5}"]
        return [(1, x) for x in q]
    def ml2(qb, r, tmp):
        return [(1, f"v_mov_b32_dpp v{r + 2 * (qb & 1) + 1}, v{tmp[4 + k]} row_newbcast:15 row_mask:0xf bank_mask:0x{1 << k:x}") for k in range(4)] + \
               [(3, "s_mov_b32 exec_lo, 0x33333333\ns_mov_b32 exec_hi, 0x33333333\n" + (f"s_lshr_b32 s3, s{40+qb}, 2\n" if qb < 3 else "") +
                 f"buffer_store_dwordx2 {vr(r + 2 * (qb & 1), 2)}, v{r+4}, s[{SRD_ML}:{SRD_ML+3}], s{3 if qb < 3 else 48} offen{opt.get('st','')}\ns_mov_b64 exec, -1")]
    cn = [0]
    def conv(t, qb, mk):
        n = cn[0]; cn[0] += 1
        stg = Q(n % 2, 4 + n // 2 % 4); tmp = [128 + (n % 2) * 16 + r for r in range(8)]
        q = [(1, f"v_accvgpr_read_b32 v{tmp[k]}, a{O(2*t+k//4,qb)+k%4}") for k in range(8)] + [(1, f"v_cvt_pk_bf16_f32 v{stg+r}, v{tmp[2*r]}, v{tmp[2*r+1]}") for r in range(4)]
        q.append((1, f"buffer_store_dwordx4 {vr(stg)}, v{VLANE16}, s[{SRD_OP}:{SRD_OP+3}], s{(40 if t < 4 else 44) + qb} offen offset:{(t%4)*1024}{opt.get('st','')} ; {mk}"))
        if qb == 3: q.append((1, f"ds_write_b128 v{VSP}, {vr(stg)} offset:{t*1024}"))
        if t == 7: q += ml2(qb, 200 if qb < 2 else 192, tmp)
        return q
    cc = opt.get('qcc', [4, 5])
    g = sg.fill(ml1(QA, 200), 176, nm - 1, cap=3)
    for t in sorted(range(8), key=lambda t: done[(2 * t + 1, 1)]):
        for qb in QA: g = sg.fill(conv(t, qb, 'STA'), max(g, done[(2 * t + 1, qb)] + 5), nm - 1, cap=cc[0])
    tx = sg.text(); assert max(i for i, x in enumerate(tx) if 'v_cmp_ne_u64_e64' in x) < min(i for i, x in enumerate(tx) if x.startswith(f"v_cvt_pk_bf16_f32 v{Q(1, 7)},"))
    if opt.get('verbose'): print("  conv A end", g, "G", G, "glast", glast, "nm", nm)
    g = sg.fill([(1, f"v_add_u32 v{VSP}, s50, v{VLANE16}")] + wf, max(g, GB), nm - 1, cap=cc[0])
    pq = []
    for rb in range(3): pq.append((1, f"s_lshr_b32 s{(40, 41, 44)[rb]}, s{gen_f.XO[rb]}, 13"))
    gen_f.poll_addr(lambda t: pq.append((1 + t.count("\n"), t)), 180, 182, (40, 41, 44), 's[94:95]')
    pq += [(1, f"v_lshlrev_b32 v181, 3, v{VLANE16}"), (1, f"buffer_load_dwordx2 v[182:183], v180, s[16:19], s44 offen sc1 ; PL1")]
    pq.insert(-1, (1, f"s_mov_b32 s44, {gen_f.F1OFF}"))
    tq = [(1, "WAIT PL1"), (1, f"v_cmp_ne_u64_e64 s[94:95], s[{gen_f.S_TAG}:{gen_f.S_TAG+1}], v[182:183]"),
          (4, f"s_cmp_lg_u64 s[94:95], 0\ns_cbranch_scc1 LQ_nt{p}\n" + "\n".join(f"buffer_load_dword v{164 + i}, v181, s[16:19], s{gen_f.TO[i]} offen ;cond" for i in range(4)) + f"\nLQ_nt{p}:")]
    f1 = [(1, "WAIT STA")] + [(1, f"v_mov_b32 v{164+r}, s{gen_f.S_TAG + r % 2}") for r in range(4)] + [(1, f"s_add_u32 s45, s{gen_f.S_FO}, {gen_f.F1OFF}"),
          (3, f"s_mov_b64 exec, 0xff\nbuffer_store_dwordx4 v[164:167], v{L}, s[16:19], s45 offen sc1\ns_mov_b64 exec, -1")]
    post = []
    if opt.get('qpf', 0):
        e1, e2 = opt.get('qev', [368, 425])
        g = sg.fill(pq[:-1], g, nm - 1, cap=3); g = sg.fill(f1, max(g, e1), nm - 1, cap=4); sg.put(max(g, e2), pq[-1][1]); post = [x for _, x in tq]
    g = sg.fill(ml1(QB, 192), glast - 1, nm - 1, cap=cc[1])
    for t in [7] + list(range(7)):
        for qb in QB: g = sg.fill(conv(t, qb, 'STB'), min(max(g, done[(2 * t + 1, qb)] + 5), nm - 1), nm - 1, cap=cc[1])
        if opt.get('verbose'): print("  conv B", t, "end", g)
    if opt.get('verbose'): print('  units per 32 gaps', [sum(sg.used(g) for g in range(a, a + 32)) for a in range(0, nm, 32)], 'max', max(sg.used(g) for g in range(nm - 1)), 'last', sg.used(nm - 1))
    return gen_f.fix_waits(hazard.fix(sg.text() + post) + ["WAIT HLD"]), rare + gen_f.hl_spin(p), sites


def light(o, opt, TT):
    A = o.append
    LB0 = 0x16000
    KF = 32; VF = 96; OV = lambda fb: 160 + fb * 4 if fb < 8 else 0
    QL = lambda ds: ds * 4
    KFr = lambda h, ds: 32 + (h * 8 + ds) * 4
    VFr = lambda fb: 96 + fb * 4
    SL = [160, 164]; PL = 168; MM, LL, FF, T0, T1 = 172, 173, 174, 175, 176
    AK, AV0, AV1 = 177, 178, 179
    TM = 180
    MK = NEGM(0)
    S_N, S_SL, S_DS, S_T = 51, 52, 53, 54
    A("LT_start:")
    A("s_waitcnt lgkmcnt(0)")
    if opt.get('mg'):
        import gen_f; gen_f.poll_all(A, o, "LT_poll", SRD_K, 0, 234)
    H = opt.get('l2h')
    if H:
        A(f"s_add_u32 s{S_CNT}, s{S_CNT}, {TT - PVC[0] - H}")
        A(f"s_add_u32 s3, s{S_OFF}, {(H - 1) * 16384}")
        A("s_cmp_eq_u32 s36, 0")
        A(f"s_cselect_b32 s{S_CNT}, {H}, s{S_CNT}")
        A("s_cselect_b32 s39, s39, s3")
        A(f"s_cselect_b32 s{S_MASK}, s{S_MASK}, 0")
        A(f"s_cselect_b32 s3, 0, {H * 16384}")
        A(f"s_add_u32 s{S_OFF}, s{S_OFF}, s3")
    srd(o, SRD_K, H_OFF, 0)
    A(f"s_mov_b32 s{SRD_K+2}, s49")
    srd(o, SRD_Q, QF_OFF, QF_BYTES)
    A(f"s_mov_b32 s40, {39 * 16 * 8192}")
    A(f"s_mov_b32 s44, {39 * 16 * 8192 + 4096}")
    for ds in range(8):
        A(f"buffer_load_dwordx4 {vr(QL(ds))}, v{VLANE16}, s[{SRD_Q}:{SRD_Q+3}], s{40 if ds < 4 else 44} offen offset:{(ds%4)*1024}{opt.get('dl','')}")
    def dma(so):
        for w in range(4):
            A(f"s_add_u32 m0, s{S_DS}, {LB0 + w*4096}")
            A(f"s_add_u32 s{S_T}, s{so}, {w*128}")
            for k in range(4):
                A(f"buffer_load_dwordx4 v{VDMA}, s[{SRD_K}:{SRD_K+3}], s{S_T} offen offset:{k*1024}{opt.get('dl','')} lds")
        A(f"s_add_u32 s{S_DS}, s{S_DS}, 0x4000")
        A(f"s_and_b32 s{S_DS}, s{S_DS}, 0xffff")
    A(f"s_mov_b32 s{S_DS}, 0")
    dma(39)
    for i in range(2):
        dma(S_OFF)
        A(f"s_add_u32 s{S_OFF}, s{S_OFF}, 0x4000")
    A(f"s_mul_i32 s35, s37, 0x{OP_STRIDE:x}")
    srd(o, SRD_OP, OP_OFF, QF_BYTES, 35)
    srd(o, SRD_ML, ML_OFF, NB16 * (2048 if opt.get('fuse') else 1024))
    A(f"s_lshl_b32 s48, s37, 3")
    A(f"s_add_u32 s48, s48, {39 * 16 * 1024}")
    if opt.get('fuse'): A(f"s_mov_b32 s48, {39 * 16 * 2048}")
    lds_addrs(A)
    A(f"s_add_u32 s{S_N}, s{S_CNT}, {0 if H else TT - PVC[0] or 2}")
    A(f"s_mov_b32 s{S_SL}, {LB0}")
    A(f"v_mov_b32 v{MM}, 0xff800000")
    A(f"v_mov_b32 v{LL}, 0")
    for r in range(64): A(f"v_accvgpr_write_b32 a{r}, 0")
    A("LT_loop:")
    dma(S_OFF)
    A(f"s_add_u32 s{S_OFF}, s{S_OFF}, 0x4000")
    A(f"v_add_u32 v{AK}, s{S_SL}, v{VK}")
    A(f"v_add_u32 v{AV0}, s{S_SL}, v{VTR[0]}")
    A(f"v_add_u32 v{AV1}, s{S_SL}, v{VTR[1]}")
    A(f"s_add_u32 s{S_SL}, s{S_SL}, 0x4000")
    A(f"s_cmp_eq_u32 s{S_SL}, {LB0 + 0x10000}")
    A(f"s_cselect_b32 s{S_SL}, {LB0}, s{S_SL}")
    A("s_waitcnt vmcnt(48)")
    for ds in range(8):
        for h in range(2):
            A(f"ds_read_b128 {vr(KFr(h, ds))}, v{AK} offset:{foff(h, ds)}")
    for ds in range(8):
        A(f"s_waitcnt lgkmcnt({14 - 2*ds})")
        for h in range(2):
            A(f"v_mfma_f32_16x16x32_bf16 {vr(SL[h])}, {vr(KFr(h, ds))}, {vr(QL(ds))}, {vr(SL[h]) if ds else vr(MK)}")
    for fb in range(16):
        for kb in range(2):
            A(f"ds_read_b64_tr_b16 v[{VFr(fb)+2*kb}:{VFr(fb)+2*kb+1}], v{AV1 if fb & 1 else AV0} offset:{foff(kb, fb >> 1)}")
    for r in range(4): A(f"v_mov_b32 v{MK+r}, 0")
    A("s_nop 7")
    A(f"v_max3_f32 v{T0}, v{SL[0]}, v{SL[0]+1}, v{SL[0]+2}")
    A(f"v_max3_f32 v{T0}, v{T0}, v{SL[0]+3}, v{SL[1]}")
    A(f"v_max3_f32 v{T0}, v{T0}, v{SL[1]+1}, v{SL[1]+2}")
    A(f"v_max3_f32 v{T0}, v{T0}, v{SL[1]+3}, v{MM}")
    for sw in ("v_permlane32_swap_b32", "v_permlane16_swap_b32"):
        A(f"v_mov_b32 v{T1}, v{T0}")
        A("s_nop 1")
        A(f"{sw} v{T0}, v{T1}")
        A("s_nop 1")
        A(f"v_max_f32 v{T0}, v{T0}, v{T1}")
    if TR[0]: A(f"v_ceil_f32 v{T0}, v{T0}")
    A(f"v_sub_f32 v{FF}, v{MM}, v{T0}")
    A(f"v_exp_f32 v{FF}, v{FF}")
    A(f"v_mov_b32 v{MM}, v{T0}")
    for r in range(8): A(f"v_sub_f32 v{SL[0]+r}, v{SL[0]+r}, v{MM}")
    for r in range(8): A(f"v_exp_f32 v{SL[0]+r}, v{SL[0]+r}")
    A(f"v_mul_f32 v{LL}, v{LL}, v{FF}")
    for r in range(4): A(f"v_cvt_pk_bf16_f32 v{PL+r}, v{SL[0]+2*r}, v{SL[0]+2*r+1}")
    A(f"v_cmp_neq_f32 vcc, 1.0, v{FF}")
    for r in range(8): A(f"v_add_f32 v{LL}, v{LL}, v{SL[0]+r}")
    A("s_cbranch_vccz LT_nors")
    if TR[0]:
        A(f"v_lshrrev_b32 v{T1}, 4, v{VLANE16}")
        A(f"v_and_b32 v{T1}, 0x30, v{T1}")
        for r in range(4): A(f"ds_bpermute_b32 v{188+r}, v{T1}, v{FF} offset:{4*r}")
        A("s_waitcnt lgkmcnt(0)")
    for c in range(8):
        for r in range(8): A(f"v_accvgpr_read_b32 v{TM+r}, a{8*c+r}")
        for r in range(8): A(f"v_mul_f32 v{TM+r}, v{TM+r}, v{188 + r % 4 if TR[0] else FF}")
        for r in range(8): A(f"v_accvgpr_write_b32 a{8*c+r}, v{TM+r}")
    A("LT_nors:")
    A("s_waitcnt lgkmcnt(0)")
    A("s_nop 1")
    for fb in range(16):
        A(pvm(fb * 4, VFr(fb), PL))
    A(f"s_sub_u32 s{S_N}, s{S_N}, 1")
    A(f"s_cmp_lg_u32 s{S_N}, 0")
    A("s_cbranch_scc1 LT_loop")
    A("s_nop 15")
    if H:
        srd(o, 16, 0, 256 << 20)
        A(f"s_mul_i32 s52, s37, 0x5000"); A(f"s_add_u32 s52, s52, 0x{LT_OFF:x}")
        A(f"s_add_u32 s53, s37, {gen_f.LF0}"); A(f"s_lshl_b32 s53, s53, 7"); A(f"s_add_u32 s53, s53, 0x{gen_f.FLAG_OFF:x}")
        A("s_waitcnt vmcnt(0)")
        A("s_cmp_eq_u32 s36, 0"); A("s_cbranch_scc1 LT_merge")
        for k in range(16):
            A(f"buffer_store_dwordx4 {ar(4*k)}, v{VLANE16}, s[16:19], s52 offen offset:{(k % 4) * 1024} sc1")
            if k % 4 == 3: A("s_add_u32 s52, s52, 4096")
        A(f"buffer_store_dwordx2 v[{MM}:{LL}], v{VLANE16}, s[16:19], s52 offen sc1")
        A("s_waitcnt vmcnt(0)")
        gen_f.publish(A, 16, 53, T1, opt, VLANE16)
        A("s_branch L2_fin")
        A("LT_merge:")
        gen_f.spin(A, "LT_mw", ["buffer_load_dwordx2 v[0:1], off, s[16:19], s53 sc1"], [0])
        for k in range(16):
            A(f"buffer_load_dwordx4 {vr(96 + 4*k)}, v{VLANE16}, s[16:19], s52 offen offset:{(k % 4) * 1024} sc1")
            if k % 4 == 3: A("s_add_u32 s52, s52, 4096")
        A(f"buffer_load_dwordx2 v[0:1], v{VLANE16}, s[16:19], s52 offen sc1")
        A(f"v_lshrrev_b32 v{T1}, 4, v{VLANE16}"); A(f"v_and_b32 v{T1}, 0x30, v{T1}")
        A("s_waitcnt vmcnt(0)")
        A(f"v_max_f32 v{T0}, v{MM}, v0")
        A(f"v_sub_f32 v2, v{MM}, v{T0}"); A(f"v_sub_f32 v3, v0, v{T0}"); A(f"v_mov_b32 v{MM}, v{T0}")
        A("v_exp_f32 v2, v2"); A("v_exp_f32 v3, v3"); A("s_nop 0")
        A(f"v_mul_f32 v{LL}, v{LL}, v2"); A(f"v_fmac_f32 v{LL}, v1, v3")
        for r in range(4): A(f"ds_bpermute_b32 v{4+r}, v{T1}, v2 offset:{4*r}"); A(f"ds_bpermute_b32 v{8+r}, v{T1}, v3 offset:{4*r}")
        A("s_waitcnt lgkmcnt(0)")
    for t in range(8):
        for r in range(8): A(f"v_accvgpr_read_b32 v{TM+r}, a{8*t+r}")
        if H:
            for r in range(8): A(f"v_mul_f32 v{TM+r}, v{TM+r}, v{4 + r % 4}")
            for r in range(8): A(f"v_fmac_f32 v{TM+r}, v{96 + 8*t + r}, v{8 + r % 4}")
        for r in range(4): A(f"v_cvt_pk_bf16_f32 v{32+4*t+r}, v{TM+2*r}, v{TM+2*r+1}")
        A(f"buffer_store_dwordx4 {vr(32+4*t)}, v{VLANE16}, s[{SRD_OP}:{SRD_OP+3}], s{40 if t < 4 else 44} offen offset:{(t%4)*1024}{opt.get('st','')}")
    for sw in ("v_permlane32_swap_b32", "v_permlane16_swap_b32"):
        A(f"v_mov_b32 v{T1}, v{LL}")
        A("s_nop 1")
        A(f"{sw} v{LL}, v{T1}")
        A("s_nop 1")
        A(f"v_add_f32 v{LL}, v{LL}, v{T1}")
    A(f"v_lshlrev_b32 v{T0}, 2, v{VLANE16}")
    A("s_mov_b64 exec, 0xffff")
    if opt.get('fuse'):
        import gen_f
        A("s_mov_b64 exec, -1")
        for x in gen_f.ml_addr(T0, VLANE16, T1): A(x)
        A("s_mov_b32 exec_hi, 0")
    A(f"buffer_store_dwordx2 v[{MM}:{LL}], v{T0}, s[{SRD_ML}:{SRD_ML+3}], s48 offen{opt.get('st','')}")
    if opt.get('fuse'):
        import gen_f
        srd(o, 16, gen_f.FLAG_OFF, gen_f.NFLAG * gen_f.fstr(opt))
        A(f"s_add_u32 s48, s37, {156 * 8}")
        A(f"s_mul_i32 s48, s48, {gen_f.fstr(opt)}")
    A("s_waitcnt vmcnt(0)")
    if opt.get('fuse'): gen_f.publish(A, 16, 48, T1, opt, VLANE16)
    if opt.get('qpf'): A(f"s_add_u32 s48, s48, {gen_f.F1OFF}"); gen_f.publish(A, 16, 48, T1, opt, VLANE16)
    A("s_branch L2_fin")


def lds_addrs(A):
    L = VLANE16
    A(f"v_bfe_u32 v{VK}, v{L}, 4, 3")
    A(f"v_lshlrev_b32 v{VK}, 6, v{VK}")
    A(f"v_bfe_u32 v{VT0}, v{L}, 7, 1")
    A(f"v_lshl_or_b32 v{VK}, v{VT0}, 10, v{VK}")
    A(f"v_bfe_u32 v{VT0}, v{L}, 8, 2")
    A(f"v_lshl_or_b32 v{VK}, v{VT0}, 4, v{VK}")
    A(f"v_bfe_u32 v{VT0}, v{L}, 6, 1")
    A(f"v_lshlrev_b32 v{VT0}, 5, v{VT0}")
    A(f"v_xor_b32 v{VK}, v{VK}, v{VT0}")
    A(f"v_and_b32 v{VTR[0]}, 0x1c0, v{L}")
    A(f"v_bfe_u32 v{VT0}, v{L}, 9, 1")
    A(f"v_lshl_or_b32 v{VTR[0]}, v{VT0}, 10, v{VTR[0]}")
    A(f"v_bfe_u32 v{VT0}, v{L}, 8, 1")
    A(f"v_lshl_or_b32 v{VTR[0]}, v{VT0}, 5, v{VTR[0]}")
    A(f"v_bfe_u32 v{VT0}, v{L}, 4, 2")
    A(f"v_lshl_or_b32 v{VTR[0]}, v{VT0}, 3, v{VTR[0]}")
    A(f"v_xor_b32 v{VTR[1]}, 32, v{VTR[0]}")
    A(f"v_bfe_i32 v{VT0}, v{L}, 8, 1")
    for r in range(4):
        A(f"v_and_b32 v{NEGM(0)+r}, s{S_MASK}, v{VT0}")


def lds_addrs_list():
    z = []; lds_addrs(z.append); return z


def k_items(opt):
    items = []
    dm = lambda k, mk: (1, f"buffer_load_dwordx4 v{VDMA}, s[{SRD_K}:{SRD_K+3}], s{S_OFF} offen offset:{k*1024}{opt.get('dl','')} lds{mk}")
    items += [dm(2, ''), dm(3, ' ; K1')]
    items.append((0, f"s_add_u32 s{S_OFF}, s{S_OFF}, {STEP[0]}\ns_add_u32 m0, s{S_M0}, 0x8000\ns_nop 0"))
    items += [dm(k, '') for k in range(4)]
    items.append((0, f"s_add_u32 s{S_OFF}, s{S_OFF}, {STEP[0]}\ns_add_u32 s{S_M0}, s{S_M0}, 0xc000"))
    return items


def prologue2(o, opt, T):
    import gen_f
    A = o.append
    Z = ET[0]
    pre = opt.get('mg')
    for r in range(4):
        if not pre: A(f"v_mov_b32 v{Z+r}, 0")
    if not pre: A("s_nop 0")
    ql = lambda ds, qb: f"buffer_load_dwordx4 {vr(Q(qb,ds))}, v{VLANE16}, s[{SRD_Q}:{SRD_Q+3}], s{40 + qb if DS[ds] < 4 else 44 + qb} offen offset:{(DS[ds]%4)*1024}{opt.get('dl','')} ; Q{ds}"
    NPQ = opt.get('npq', 8)
    zi = 16 if pre else 0
    zero = lambda k: f"v_mfma_f32_32x32x16_bf16 a[{16*k}:{16*k+15}], {vr(Z)}, {vr(Z)}, 0"
    for ds in range(NPQ):
        for qb in range(4):
            A(ql(ds, qb))
            if (qb % 2 == 1 or NPQ <= 4) and zi < 16:
                A(zero(zi)); zi += 1
    T(1)
    if opt.get('mg'):
        import gen_m; A(gen_m.poll_b_load())
    late = []
    if pre and opt.get('ms'):
        for r in range(4): A(f"v_mov_b32 v{Z+r}, 0")
        z = []; gen_f.pre_rest(z.append); z = lds_addrs_list() + z
        for k, t in enumerate(z):
            A(t)
            if k % 6 == 5 and k // 6 < 16: A(zero(k // 6))
        assert len(z) >= 96
    if opt.get('fuse'):
        gen_f.prologue(late.append, late, 95)
    if opt.get('race') and len(opt['race']) == 1:
        L_ = late.append; r0 = 52 - opt['trun'] + PVC[0] - opt['race'][0] - 2; assert r0 >= 3
        L_("s_cmp_lt_u32 s37, 3"); L_("s_cselect_b32 s3, 0, 3"); L_("s_cselect_b32 s94, 0, 8"); L_("s_sub_u32 s3, s37, s3")
        L_(f"s_lshl_b32 s38, s38, 2"); L_("s_add_u32 s38, s38, s3"); L_("s_lshl_b32 s38, s38, 10"); L_(f"s_add_u32 s38, s38, 0x{gen_f.FLAG_OFF + 6 * gen_f.FS:x}")
        L_("s_add_u32 s94, s94, s38"); L_("s_xor_b32 s95, s94, 8")
        L_("s_add_u32 s49, s95, 32"); L_("s_cmp_eq_u32 s3, 2"); L_("s_cselect_b32 s35, s38, s94"); L_("s_cselect_b32 s49, s49, s95")
        L_(f"s_mov_b32 s39, {r0}")
    elif opt.get('race'):
        c, nw0, nl0, nw2, nl2 = opt['race']; rem = lambda n: n - opt['trun'] + PVC[0] - c - 2
        assert nw0 + nl0 == 104 and nw2 + nl2 == 105 and min(rem(nl0), rem(nl2)) >= 1
        late.append("s_cmp_lt_u32 s37, 3"); late.append("s_cselect_b32 s3, 0, 3"); late.append("s_sub_u32 s3, s37, s3")
        late.append("s_cmp_eq_u32 s3, 2")
        late.append(f"s_cselect_b32 s{S_NW}, {rem(nw2)}, {rem(nw0)}")
        late.append(f"s_cselect_b32 s{S_NL}, {rem(nl2)}, {rem(nl0)}")
        late.append(f"s_lshl_b32 s{S_RO}, s38, 2"); late.append(f"s_add_u32 s{S_RO}, s{S_RO}, s3"); late.append(f"s_lshl_b32 s{S_RO}, s{S_RO}, 10")
        late.append(f"s_add_u32 s{S_RO}, s{S_RO}, 0x{gen_f.FLAG_OFF + 6 * gen_f.FS:x}")
    if opt.get('qs'): gen_f.touch_setup(late.append)
    for k, t in enumerate(lds_addrs_list() if not pre else []):
        A(t)
        if k % 2 == 1 and zi < 16: A(zero(zi)); zi += 1
    assert zi == 16
    items = k_items(opt) if not opt.get('hf') else []
    if NPQ == 8: o += late; late = []
    T(2)
    A("WAIT K0")
    A("s_barrier")
    T(3)
    TB = P_BASE[1]
    dst = [S_BASE[0], S_BASE[1], TB]
    fr = []
    for ds in range(8):
        for b in range(3):
            ms = []
            for qb in range(4):
                d = vr(dst[b] + 4 * qb)
                c0 = vr(NEGM(0)) if b < 2 else '0'
                ms.append(lambda f, qb=qb, ds=ds, d=d, c0=c0: f"v_mfma_f32_16x16x32_bf16 {d}, {vr(f)}, {vr(Q(qb,ds))}, {d if ds else c0}")
            fr.append((kread((b >> 1) * 16384 + foff(b & 1, DS[ds])), ms))
    for i in range(RING):
        A(fr[i][0][0](F(i)))
    sg = build_seg(fr, [])
    per = opt.get('sper', 3)
    for ds in range(8):
        g = 12 * ds - 1
        sg.put(g, f"WAIT Q{ds}")
        gg = g + 1
        if ds + NPQ < 8:
            for qb in range(4): sg.put(gg, ql(ds + NPQ, qb)); gg += 3
            continue
        k = 0
        gg = g + 2
        while items and (k < per or ds == 7):
            v, t = items.pop(0)
            sg.put(min(gg, 95), t); k += v; gg += 2
    if late: sg.fill([(1, t) for t in late], 12 * (8 - NPQ), 95, cap=3)
    o += sg.text()
    T(6)
    R4 = range(4)
    s0 = lambda qb: S(0, qb)
    s1 = lambda qb: S(1, qb)
    for qb in R4: A(f"v_max3_f32 v{M[qb]}, v{s0(qb)}, v{s0(qb)+1}, v{s0(qb)+2}")
    for qb in R4: A(f"v_max3_f32 v{M[qb]}, v{M[qb]}, v{s0(qb)+3}, v{s1(qb)}")
    for qb in R4: A(f"v_max3_f32 v{M[qb]}, v{M[qb]}, v{s1(qb)+1}, v{s1(qb)+2}")
    for qb in R4: A(f"v_max_f32 v{M[qb]}, v{M[qb]}, v{s1(qb)+3}")
    for sw in ("v_permlane32_swap_b32", "v_permlane16_swap_b32"):
        for qb in R4: A(f"v_mov_b32 v{ET[qb]}, v{M[qb]}")
        for qb in R4: A(f"{sw} v{M[qb]}, v{ET[qb]}")
        for qb in R4: A(f"v_max_f32 v{M[qb]}, v{M[qb]}, v{ET[qb]}")
    if TR[0]:
        for qb in R4: A(f"v_ceil_f32 v{M[qb]}, v{M[qb]}")
    if Z1[0]:
        for f in ("v_add_f32 v{m}, " + str(float(BIAS)) + ", v{m}", "v_cvt_pk_bf16_f32 v{m}, v{m}, v{m}", "v_and_b32 v{m}, 0xffff0000, v{m}", "v_sub_f32 v{n}, 0, v{m}", "v_bfi_b32 v{q}, v{k}, v{n}, v{q}"):
            if 'sub' in f: A(f"v_bfe_i32 v{VT0}, v{VLANE16}, 8, 1"); A(f"v_bfe_i32 v{ET[0]}, v{VLANE16}, 9, 1"); A(f"v_and_b32 v{VT0}, v{VT0}, v{ET[0]}"); A(f"v_and_b32 v{VT0}, 0xffff0000, v{VT0}")
            for qb in R4: A(f.format(m=M[qb], n=LA[qb], q=Q(qb, 0) + 3, k=VT0))
    NG = (lambda qb: LA[qb]) if Z1[0] else NEGM
    for h in range(2):
        for qb in R4:
            for r in R4: A(f"v_sub_f32 v{S(h,qb)+r}, v{S(h,qb)+r}, v{M[qb]}" if h == 0 else f"v_add_f32 v{S(h,qb)+r}, v{S(h,qb)+r}, v{NG(qb)}")
            for r in R4: A(f"v_exp_f32 v{S(h,qb)+r}, v{S(h,qb)+r}")
            if h == 0 and not Z1[0]:
                for r in R4: A(f"v_sub_f32 v{NEGM(qb)+r}, 0, v{M[qb]}")
        if h == 0:
            A("WAIT K1")
            A("s_barrier")
            for i in range(R8[0]):
                for x in (kread(16384 + foff(1, DS[i])) if PVC[0] else vread(0, i)): A(x(SLOT[i]))
    T(7)
    for h in range(2):
        for qb in R4:
            s = S(h, qb)
            A(f"v_cvt_pk_bf16_f32 v{P(0,qb)+2*h}, v{s}, v{s+1}")
            A(f"v_cvt_pk_bf16_f32 v{P(0,qb)+2*h+1}, v{s+2}, v{s+3}")
    for qb in R4 if not Z1[0] else (): A(f"v_add_f32 v{LA[qb]}, v{s0(qb)}, v{s0(qb)+1}")
    for x in () if Z1[0] else (lambda qb: s0(qb) + 2, lambda qb: s0(qb) + 3, s1, lambda qb: s1(qb) + 1, lambda qb: s1(qb) + 2, lambda qb: s1(qb) + 3):
        for qb in R4: A(f"v_add_f32 v{LA[qb]}, v{LA[qb]}, v{x(qb)}")
    for qb in R4:
        for r in R4: A(f"v_add_f32 v{s0(qb)+r}, v{TB+4*qb+r}, v{NG(qb)}")


def gen_k2(opt=None):
    opt = opt or {}
    TR[0] = opt.get('tr', opt.get('fuse', 0))
    o = []
    A = o.append
    MGK = opt.get('mg')
    CHAIN[0] = opt.get('chain', 0)
    PVC[0] = opt.get('pvc', 0)
    R8[0] = 8 if opt.get('r8') else 4
    REREAD.clear()
    Z1[0] = opt.get('z1', 0); DS[:] = [7, 6, 0, 1, 2, 3, 4, 5] if Z1[0] else range(8)
    SNAKE[0] = opt.get('snake', 0)
    FAKE[0] = -2 if opt.get('fakepv') else -1
    if opt.get('fuse'):
        import gen_f
        gen_f.MG[0] = MGK
        gen_f.QS[0] = opt.get('qs', 0); gen_f.EV.update(tmp=228, hf=240, cp=38, wf=108)
        if MGK:
            import gen_m
            opt = dict(opt, dl=' sc1'); o += gen_m.front(opt)
        else: A(f"s_mov_b64 s[{gen_f.S_TAG}:{gen_f.S_TAG+1}], 1")
    def T(i):
        if opt.get('timing') and not (opt.get('p1t') and 0 < i + 0 < 5 or opt.get('p1t') and i == 0): A(f"s_memtime s[{74+2*i}:{75+2*i}]")
        if opt.get('timing') and opt.get('p1t') and i == 0: A("s_memtime s[84:85]")
    A("s_load_dwordx2 s[4:5], s[0:1], %d" % KA_WS)
    if opt.get('fuse'):
        import gen_f
        A("s_load_dwordx2 s[60:61], s[0:1], %d" % KA_X)
        A("s_load_dwordx2 s[52:53], s[0:1], %d" % KA_DEG)
        A("s_load_dwordx2 s[56:57], s[0:1], %d" % KA_OUT)
    if opt.get('timing'):
        A("s_memtime s[62:63]" if not MGK else "s_mov_b64 s[62:63], s[100:101]")
        A("s_memrealtime s[64:65]")
        if not opt.get('lp'): T(8)
    A("s_and_b32 s35, s2, 7")
    A("s_lshr_b32 s37, s2, 3")
    if opt.get('sp0'): A("s_add_u32 s37, s37, 30"); A("s_and_b32 s37, s37, 31")
    L2H = opt.get('l2h')
    if L2H:
        A("v_lshrrev_b32 v1, 6, v0")
        A("s_mov_b32 s36, -1")
        A("v_readfirstlane_b32 s38, v1")
        A("s_cmp_lt_u32 s37, 30")
        A("s_cbranch_scc1 L2_att")
        A("s_lshl_b32 s39, s35, 1"); A("s_add_u32 s39, s39, s37"); A("s_sub_u32 s39, s39, 30")
        A("s_cmp_lt_u32 s38, 3"); A("s_cbranch_scc1 LE_start")
        A("s_cmp_ge_u32 s39, 12"); A("s_cbranch_scc1 L2_end")
        A("s_and_b32 s36, s39, 1"); A("s_lshr_b32 s37, s39, 1"); A("s_mov_b32 s38, 39")
        A("v_and_b32 v0, 63, v0")
        A("s_branch L2_att2")
        A("L2_att:")
    else:
        A("s_cmp_ge_u32 s37, 30")
        A("s_cbranch_scc1 LE_start")
    if opt.get('map', 1) == 1:
        A("s_mul_i32 s38, s37, 52")
        A("s_lshr_b32 s38, s38, 8")
        A("s_mul_i32 s39, s38, 5")
        A("s_sub_u32 s39, s37, s39")
        A("s_mov_b32 s37, s38")
        A("s_mul_i32 s38, s35, 5")
        A("s_add_u32 s38, s38, s39")
    else:
        A("s_mul_i32 s38, s37, 26")
        A("s_lshr_b32 s38, s38, 8")
        A("s_mul_i32 s39, s38, 10")
        A("s_sub_u32 s39, s37, s39")
        A("s_and_b32 s37, s35, 1")
        A("s_mul_i32 s37, s37, 3")
        A("s_add_u32 s37, s37, s38")
        if opt.get('pd'):
            A("s_and_b32 s38, s35, 1"); A(f"s_mul_i32 s38, s38, {8 - opt['pd']}"); A("s_add_u32 s35, s35, s38"); A("s_and_b32 s35, s35, 7")
        A("s_lshr_b32 s38, s35, 1")
        A("s_mul_i32 s38, s38, 10")
        A("s_add_u32 s38, s38, s39")
    if L2H: A("L2_att2:")
    A("v_lshrrev_b32 v1, 6, v0")
    A(f"v_and_b32 v{VLANE16}, 63, v0")
    A(f"v_lshlrev_b32 v{VLANE16}, 4, v{VLANE16}")
    A(f"v_readfirstlane_b32 s{S_WAVE}, v1")
    cnts = opt.get('cnts', [52, 52, 52, 52, 52, 53])
    assert sum(cnts) == NT and len(cnts) == NSPLIT
    st = [sum(cnts[:i]) for i in range(NSPLIT)] + [NT - 1]
    pk = sum(x << (9 * i) for i, x in enumerate(st))
    A(f"s_mov_b32 s50, 0x{pk & 0xffffffff:x}")
    A(f"s_mov_b32 s51, 0x{pk >> 32:x}")
    A(f"s_mul_i32 s39, s37, 9")
    A(f"s_lshr_b64 s[50:51], s[50:51], s39")
    A(f"s_and_b32 s39, s50, 0x1ff")
    A(f"s_bfe_u32 s49, s50, 0x90009")
    A(f"s_sub_u32 s{S_CNT}, s49, s39")
    TT = opt.get('trun', 0)
    A(f"s_sub_u32 s{S_CNT}, s{S_CNT}, {TT - PVC[0] or 2}")
    A(f"s_lshl_b32 s39, s39, 14")
    A(f"s_lshl_b32 s49, s49, 14")
    A(f"s_add_u32 s{S_OFF}, s39, 0x4000")
    A(f"s_cmp_eq_u32 s37, {NSPLIT-1}")
    A(f"s_addc_u32 s{S_CNT}, s{S_CNT}, 0")
    A(f"s_cmp_eq_u32 s37, {NSPLIT-1}")
    A(f"s_cselect_b32 s{S_OFF}, s39, s{S_OFF}")
    A(f"s_cselect_b32 s39, {(NT-1)*16384}, s39")
    A(f"s_cselect_b32 s49, {N*512}, s49")
    A(f"s_cselect_b32 s{S_MASK}, 0xff800000, 0")
    A(f"s_mov_b32 s{S_THR}, 0x5d800000")
    A("v_and_b32 v2, 63, v0")
    A("v_bfe_u32 v3, v2, 3, 2")
    A("v_bfe_u32 v4, v2, 2, 1")
    A(f"v_lshlrev_b32 v{VDMA}, 12, v3")
    A(f"v_lshl_or_b32 v{VDMA}, v4, 9, v{VDMA}")
    A(f"v_lshl_or_b32 v{VDMA}, v1, 7, v{VDMA}")
    A("v_lshrrev_b32 v4, 5, v2")
    A(f"v_lshl_or_b32 v{VDMA}, v4, 6, v{VDMA}")
    A("v_and_b32 v3, 2, v3")
    A("v_and_b32 v4, 3, v2")
    A("v_xor_b32 v3, v3, v4")
    A(f"v_lshl_or_b32 v{VDMA}, v3, 4, v{VDMA}")
    if opt.get('light'):
        A("s_cmp_eq_u32 s38, 39")
        A("s_cbranch_scc1 LT_disp")
    RC = opt.get('race')
    STEP[0] = f"s{S_STEP}" if RC else '0x4000'
    if RC:
        assert opt.get('map') == 2 and TT
        A("s_cmp_lt_u32 s37, 3")
        A(f"s_cselect_b32 s{S_STEP}, 0x4000, 0xffffc000" if 0 else f"s_cselect_b32 s{S_STEP}, 1, -1")
        A("s_cselect_b32 s39, 0, 103")
        A("s_cselect_b32 s3, 0, 3")
        A("s_sub_u32 s3, s37, s3")
        A("s_mul_i32 s3, s3, 104")
        A("s_add_u32 s39, s39, s3")
        A(f"s_cmp_eq_u32 s37, 5")
        A("s_addc_u32 s39, s39, 0")
        A(f"s_lshl_b32 s{S_STEP}, s{S_STEP}, 14")
        A("s_lshl_b32 s39, s39, 14")
        A(f"s_add_u32 s{S_OFF}, s39, s{S_STEP}")
        A(f"s_mov_b32 s49, {N*512}")
        A(f"s_mov_b32 s{S_CNT}, {RC[0] - (2 if len(RC) == 1 else 0)}")
        A(f"s_mov_b32 s{S_PH}, {5 if len(RC) == 1 else 3}")
    A(f"s_lshl_b32 s{S_M0}, s{S_WAVE}, 12")
    A(f"s_lshl_b32 s50, s{S_WAVE}, 13")
    A(f"s_add_u32 s50, s50, 0x20000")
    A(f"s_mov_b32 m0, s{S_M0}")
    if opt.get('fuse'):
        gen_f.pre_wait(A, 94, 95)
        if not opt.get('ms'): gen_f.pre_rest(A)
    if MGK: gen_m.poll_addrs(A, S_OFF, opt.get('av') or opt.get('hf'), STEP[0] if RC else None, opt.get('lp'))
    A("s_waitcnt lgkmcnt(0)")
    k0 = [f"buffer_load_dwordx4 v{VDMA}, s[{SRD_K}:{SRD_K+3}], s39 offen offset:{k*1024}{opt.get('dl','')} lds" for k in range(4)]
    k1 = [f"buffer_load_dwordx4 v{VDMA}, s[{SRD_K}:{SRD_K+3}], s{S_OFF} offen offset:{k*1024}{opt.get('dl','')} lds ; K0" for k in range(2)]
    if not MGK: T(0)
    srd(o, SRD_K, H_OFF, 0)
    A(f"s_mov_b32 s{SRD_K+2}, s49")
    if not MGK: o += k0; A(f"s_add_u32 m0, s{S_M0}, 0x4000")
    srd(o, SRD_Q, QF_OFF, QF_BYTES)
    if not MGK: o += k1
    A(f"s_mul_i32 s35, s37, 0x{OP_STRIDE:x}")
    srd(o, SRD_OP, OP_OFF, QF_BYTES, 35)
    srd(o, SRD_ML, ML_OFF, NB16 * (2048 if opt.get('fuse') else 1024))
    A(f"s_lshl_b32 s35, s38, 4")
    A(f"s_lshl_b32 s41, s{S_WAVE}, 2")
    A(f"s_add_u32 s35, s35, s41")
    A(f"s_lshl_b32 s40, s35, 13")
    if opt.get('fuse'):
        A("s_lshl_b32 s94, s94, 13")
        A("s_add_u32 s40, s40, s94")
    for qb in range(1, 4):
        A(f"s_{'xor_b32' if opt.get('fuse') else 'add_u32'} s{40+qb}, s40, {qb*8192}")
    for qb in range(4):
        A(f"s_add_u32 s{44+qb}, s{40+qb}, 4096")
    A(f"s_lshl_b32 s48, s35, 10")
    A(f"s_lshl_b32 s35, s37, 3")
    A(f"s_add_u32 s48, s48, s35")
    if MGK:
        if not opt.get('ms'):
            for r in range(4): A(f"v_mov_b32 v{ET[0]+r}, 0")
            lds_addrs(A)
            for k in range(16): A(f"v_mfma_f32_32x32x16_bf16 a[{16*k}:{16*k+15}], {vr(ET[0])}, {vr(ET[0])}, 0")
        kd = k0 + [f"s_add_u32 m0, s{S_M0}, 0x4000", "s_nop 0"] + k1
        if opt.get('hf'): kd += [t for _, t in k_items(opt)]
        gen_m.poll_a(A, o, opt, kd)
        T(0)
        if not opt.get('hf'): o += kd
    prologue2(o, opt, T)
    import gen_f
    o[:] = gen_f.fix_waits(o)
    if MGK: gen_m.poll_b_check(A)
    A("s_nop 1")
    if opt.get('timing'):
        A("s_memtime s[66:67]")
        A("s_waitcnt lgkmcnt(0)")
    sites = {}
    n = 0
    for kind in ('loop', 'tail2'):
        for p in (0, 1):
            sites[(kind, p)] = (n, n + 1)
            n += 2
    rares = []; alls = list(range(4 if TT else n))
    for _ in range(opt.get('diag_idle', 0)): A("s_sleep 64")
    if PVC[0]:
        alls += [4, 5]
        o += body2(0, True, (4, 5), opt).text()
        A("s_branch L2_loop1")
    A(".p2align 6")
    A("L2_loop:")
    o += (body2(0, False, sites[('loop', 0)], opt) if PVC[0] else body(0, 'loop', sites[('loop', 0)], opt)).text()
    A("s_cbranch_scc1 L2_x1" if RC else "s_cbranch_scc1 L2_tail_1")
    A("L2_loop1:")
    o += (body2(1, False, sites[('loop', 1)], opt) if PVC[0] else body(1, 'loop', sites[('loop', 1)], opt)).text()
    A("s_cbranch_scc0 L2_loop")
    if RC:
        TG = gen_f.S_TAG
        A(f"s_cmp_eq_u32 s{S_PH}, 0"); A("s_cbranch_scc1 L2_tail_0"); A("s_mov_b32 s3, 0"); A("s_branch L2_ev")
        A("L2_x1:")
        A(f"s_cmp_eq_u32 s{S_PH}, 0"); A("s_cbranch_scc1 L2_tail_1"); A("s_mov_b32 s3, 1")
        A("L2_ev:")
        A(f"s_sub_u32 s{S_PH}, s{S_PH}, 1")
        A(f"s_mov_b32 s{S_CNT}, 1")
        A("v_mov_b32 v230, 0x20000")
        if len(RC) == 1:
            sw = lambda r, so, off: A(f"buffer_atomic_swap_x2 v[{r}:{r+1}], off, s[16:19], s{so} offset:{off} sc0 sc1")
            def seen(r, op):
                A(f"v_cmp_{'eq' if op == 'sub' else 'ne'}_u64 vcc, s[{TG}:{TG+1}], v[{r}:{r+1}]"); A("s_nop 1"); A("s_bitcmp1_b32 vcc_lo, 0")
                A(f"s_{op}{'b' if op == 'sub' else 'c'}_u32 s39, s39, 0")
            tagv = lambda r: (A(f"v_mov_b32 v{r}, s{TG}"), A(f"v_mov_b32 v{r+1}, s{TG+1}"))
            A(f"s_cmp_eq_u32 s{S_PH}, 0"); A("s_cbranch_scc1 L2_ev5")
            A(f"s_cmp_lg_u32 s{S_WAVE}, 0"); A("s_cbranch_scc1 L2_evr")
            A("s_mov_b64 exec, 1")
            A(f"s_cmp_eq_u32 s{S_PH}, 4"); A("s_cbranch_scc1 L2_ev1")
            A(f"s_cmp_eq_u32 s{S_PH}, 1"); A("s_cbranch_scc1 L2_ev4")
            seen(228, 'sub'); tagv(228)
            A(f"s_cmp_eq_u32 s{S_PH}, 2"); A("s_cbranch_scc1 L2_ev3")
            sw(228, 49, 0); A("s_branch L2_evx")
            A("L2_ev1:"); tagv(228); sw(228, 95, 16); A("s_branch L2_evx")
            A("L2_ev3:"); tagv(252); sw(228, 35, 0); sw(252, 94, 16); A("s_branch L2_evx")
            A("L2_ev4:"); seen(228, 'add'); seen(252, 'add')
            A("v_mov_b32 v228, s39"); A("ds_write_b32 v230, v228")
            A("L2_evx:"); A("s_mov_b64 exec, -1"); A("s_branch L2_evr")
            A("L2_ev5:"); A("ds_read_b32 v228, v230"); A("s_waitcnt lgkmcnt(0)"); A(f"v_readfirstlane_b32 s{S_CNT}, v228")
        else:
            A(f"s_cmp_eq_u32 s{S_PH}, 0"); A("s_cbranch_scc1 L2_ev3")
            A(f"s_cmp_lg_u32 s{S_WAVE}, 0"); A("s_cbranch_scc1 L2_evr")
            A(f"s_cmp_eq_u32 s{S_PH}, 1"); A("s_cbranch_scc1 L2_ev2")
            A(f"v_mov_b32 v228, s{TG}"); A(f"v_mov_b32 v229, s{TG+1}")
            A("s_mov_b64 exec, 1")
            A(f"buffer_atomic_swap_x2 v[228:229], off, s[16:19], s{S_RO} sc0 sc1")
            A("s_mov_b64 exec, -1")
            A("s_branch L2_evr")
            A("L2_ev2:")
            A("s_mov_b64 exec, 1")
            A("ds_write_b64 v230, v[228:229]")
            A("s_mov_b64 exec, -1")
            A("s_branch L2_evr")
            A("L2_ev3:")
            A("ds_read_b64 v[228:229], v230")
            A("s_waitcnt lgkmcnt(0)")
            A(f"v_cmp_eq_u64 vcc, s[{TG}:{TG+1}], v[228:229]")
            A("s_nop 1")
            A("s_cmp_eq_u64 vcc, 0")
            A(f"s_cselect_b32 s{S_CNT}, s{S_NW}, s{S_NL}")
        A("L2_evr:")
        A("s_cmp_eq_u32 s3, 0"); A("s_cbranch_scc1 L2_loop"); A("s_branch L2_loop1")
    for p in (0, 1):
        A(f"L2_tail_{p}:")
        if opt.get('timing'):
            A("s_memtime s[68:69]")
            A("s_waitcnt lgkmcnt(0)")
        if TT:
            tl, rr, ss = tail_qs(p, len(alls), opt) if opt.get('qs') else tail_run(p, TT, len(alls), opt)
            o += tl; rares += rr; alls += ss
        else:
            o += body(p, 'tail2', sites[('tail2', p)], opt).text()
            A("s_nop 1")
            if not opt.get('lp'): T(8)
            o += epilogue(body(1 - p, 'tail1', None, opt), opt)
        if not opt.get('not9'): T(9)
        A("s_branch L2_F" if opt.get('fuse') else "s_branch L2_fin")
    if opt.get('fuse'):
        A("L2_F:")
        nfs = [0]
        def fstamp(A_):
            if opt.get('timing') and opt.get('ft') and nfs[0] < 7:
                A_(f"s_memtime s[{74+2*nfs[0]}:{75+2*nfs[0]}]"); nfs[0] += 1
        fo, fspin = gen_f.final(opt, fstamp)
        o += fo
        if opt.get('ftwice'):
            A("s_barrier\ns_xor_b32 s31, s31, 1\ns_cbranch_scc1 L2_F")
        A("s_branch L2_fin")
        o += fspin
        if MGK: o += gen_m.poll_b_spin()
        A("L2_Fend:")
    nhot = len(o)
    if opt.get('valu', 1):
        for p in (0, 1):
            for h in (0, 1):
                if Z1[0]:
                    if h == 0: o += rare_z(p, [sites[('loop', p)][0]] + ([4] if p == 0 else []), [0, 1], lambda qb, p=p: P(1 - p, qb), [lambda qb, p=p: P(p, qb)], (), (VK, 0 if p else -0x8000, (1 - p) * 16384))
                elif PVC[0]:
                    o += rare_code(p, h, [sites[('loop', p)][h]] + ([4 + h] if p == 0 else []), lambda qb, p=p: P(1 - p, qb),
                                   [lambda qb, p=p: P(p, qb)] + ([lambda qb, p=p: P(1 - p, qb)] if h == 0 else []), (), (VK, 0 if p else -0x8000, (1 - p) * 16384), False)
                else: o += rare_code(p, h, [sites[('loop', p)][h]] + ([] if TT else [sites[('tail2', p)][h]]))
        o += rares
        o += rare_common(alls)
    cold = []
    if opt.get('rl'): cold = [";;END", "s_endpgm", "L2_hot:"] + o[nhot:]; del o[nhot:]
    import gen_eg
    if opt.get('light'):
        A("LT_disp:")
        if L2H:
            A("s_cmp_ge_i32 s36, 0"); A("s_cbranch_scc1 LT_start")
        A(f"s_cmp_eq_u32 s{S_WAVE}, 0")
        A("s_cbranch_scc1 L2_end" if L2H else "s_cbranch_scc1 LT_start")
        A(f"s_mov_b32 s{gen_eg.S_W}, s{S_WAVE}")
        A(f"s_mul_i32 s{gen_eg.S_B}, s{S_WAVE}, 6")
        A(f"s_add_u32 s{gen_eg.S_B}, s{gen_eg.S_B}, s37")
        A(f"s_add_u32 s{gen_eg.S_B}, s{gen_eg.S_B}, 42")
        A(f"s_cmp_lt_u32 s{gen_eg.S_B}, {NBK}")
        A("s_cbranch_scc1 LE_common")
        A("s_branch L2_end")
        light(o, opt, TT)
    gen_eg.gen_edge(o, opt)
    A("L2_fin:")
    if opt.get('timing'):
        A("s_mov_b64 exec, -1")
        A("s_waitcnt vmcnt(0)")
        A("s_memtime s[70:71]")
        A("s_memrealtime s[72:73]")
        A("s_waitcnt lgkmcnt(0)")
        A("s_sub_u32 s66, s66, s62")
        A("s_sub_u32 s68, s68, s62")
        A("s_sub_u32 s70, s70, s62")
        for i in range(10):
            A(f"s_sub_u32 s{74+2*i}, s{74+2*i}, s62\nv_mov_b32 v{4+i}, s{74+2*i}")
        A("v_mov_b32 v14, s64\nv_mov_b32 v15, s72")
        A("s_sub_u32 s72, s72, s64")
        A("v_mov_b32 v0, s66\nv_mov_b32 v1, s68\nv_mov_b32 v2, s70\nv_mov_b32 v3, s72")
        A("s_add_u32 s60, s4, 0x%x\ns_addc_u32 s61, s5, 0" % TIM_OFF)
        A("v_mbcnt_lo_u32_b32 v243, -1, 0\nv_mbcnt_hi_u32_b32 v243, -1, v243\nv_lshlrev_b32 v243, 4, v243")
        A("s_mov_b32 s62, 0x100000\ns_mov_b32 s63, 0x00020000")
        A(f"s_lshl_b32 s35, s2, 2")
        A(f"s_add_u32 s35, s35, s{S_WAVE}")
        A(f"s_lshl_b32 s35, s35, 10")
        A(f"buffer_store_dwordx4 v[0:3], v{VLANE16}, s[60:63], s35 offen")
        A("s_add_u32 s35, s35, 0x200000\ns_mov_b32 s62, 0x800000")
        for k in range(3):
            A(f"buffer_store_dwordx4 v[{4+4*k}:{7+4*k}], v{VLANE16}, s[60:63], s35 offen")
            A("s_add_u32 s35, s35, 0x100000")
    A("L2_end:")
    o += cold
    if opt.get('rtst'):
        return "\n".join(o).replace("s_memtime", "s_memrealtime").replace("s_mov_b64 s[62:63], s[100:101]", "s_mov_b64 s[62:63], 0")
    return "\n".join(o)


def kernel_desc(opt=None):
    return dict(name="k2_kernel", body=gen_k2(opt), vgpr=512, accum=256, grid=256, block=256, lds=163840 if (opt or {}).get('trun', 0) > 3 or (opt or {}).get('light') else 131072)
```

```python
from layout import *
import gen_k1n, gen_f
from gen_f import FLAG_OFF, FS, P1F0, WFF0, HF0, AF0, EPOCH, S_TAG, SWS
from sched import *
import hazard, struct, math
MF32 = gen_f.MF32
TAGADD = [f"s_add_u32 s{S_TAG}, s{S_TAG}, 0x7f4a7c15", f"s_addc_u32 s{S_TAG+1}, s{S_TAG+1}, 0x9e3779b9"]
S_IDX = 91
VPA, VPB, VPD = 5, 230, 228


def front(opt):
    k1 = opt['k1']
    S_W, S_ROLE, S_ROT = gen_k1n.S_W, gen_k1n.S_ROLE, gen_k1n.S_ROT
    o = []; A = o.append
    tagld = [f"s_mov_b32 s{S_TAG}, 0x{FLAG_OFF + EPOCH * FS:x}", f"s_load_dwordx2 {sr(S_TAG, 2)}, s[38:39], s{S_TAG}"]
    k1 = dict(k1, mg=tagld)
    A("s_getpc_b64 s[56:57]")
    A("s_load_dwordx16 s[16:31], s[0:1], 0")
    A("s_load_dwordx8 s[32:39], s[0:1], 64")
    if opt.get('timing'): A("s_memtime s[100:101]")
    A("s_cmp_ge_u32 s2, 256")
    A("s_cbranch_scc1 L2_end")
    A("v_lshrrev_b32 v1, 6, v0")
    A("v_and_b32 v2, 63, v0")
    A("s_lshr_b32 s3, s2, 3")
    if opt.get('sp0'): A("s_add_u32 s3, s3, 30"); A("s_and_b32 s3, s3, 31")
    A(f"v_readfirstlane_b32 s{S_W}, v1")
    A("s_lshl_b32 s5, s3, 2")
    A(f"s_add_u32 s5, s5, s{S_W}")
    if k1.get('cpf', 1) and not opt.get('cps'):
        A("s_and_b32 s56, s56, 0xffffff00")
        A(f"s_mov_b32 s58, {'L2_hot' if opt.get('rl') else 'L2_end'}-k2_kernel")
        A("s_mov_b32 s59, 0x00020000")
        A(f"s_and_b32 s6, s5, {opt.get('cpm', 15)}")
        A("s_lshl_b32 s6, s6, 13")
        if opt.get('cpr'): A(f"s_cmp_lt_u32 s5, {16 * opt['cpr']}"); A("s_cselect_b32 s6, s6, 0x7fff0000")
        A("v_lshlrev_b32 v10, 7, v2")
        A("buffer_load_dword v255, v10, s[56:59], s6 offen")
    A("v_and_b32 v3, 15, v2")
    A("v_lshrrev_b32 v4, 4, v2")
    A(f"s_and_b32 s{S_ROT}, s3, {k1.get('rotm', 7)}")
    A("s_mov_b64 s[14:15], 0")
    A("s_and_b32 s8, s2, 7")
    A("s_cmp_ge_u32 s3, 30")
    A("s_cbranch_scc1 LM_edge")
    if opt.get('map', 1) == 1:
        A("s_mul_i32 s13, s3, 52"); A("s_lshr_b32 s13, s13, 8"); A("s_mul_i32 s9, s13, 5"); A("s_sub_u32 s9, s3, s9")
        A("s_mul_i32 s12, s8, 5"); A("s_add_u32 s12, s12, s9")
    else:
        A("s_mul_i32 s12, s3, 26"); A("s_lshr_b32 s12, s12, 8"); A("s_mul_i32 s9, s12, 10"); A("s_sub_u32 s9, s3, s9")
        A("s_and_b32 s13, s8, 1"); A("s_mul_i32 s13, s13, 3"); A("s_add_u32 s13, s13, s12")
        if opt.get('pd'):
            A("s_and_b32 s12, s8, 1"); A(f"s_mul_i32 s12, s12, {8 - opt['pd']}"); A("s_add_u32 s8, s8, s12"); A("s_and_b32 s8, s8, 7")
        A("s_lshr_b32 s12, s8, 1"); A("s_mul_i32 s12, s12, 10"); A("s_add_u32 s12, s12, s9")
    A(f"s_mul_i32 s{S_IDX}, s12, 6")
    A(f"s_add_u32 s{S_IDX}, s{S_IDX}, s13")
    A(f"s_mov_b32 s{S_ROLE}, 0")
    A("s_cmp_eq_u32 s12, 39")
    A("s_cbranch_scc1 LM_light")
    A("s_mul_i32 s14, s13, 3")
    A("s_min_u32 s14, s14, 14")
    A("s_lshl_b32 s9, s12, 4")
    A("s_add_u32 s14, s14, s9")
    A("s_lshl_b32 s14, s14, 13")
    A(f"s_cmp_eq_u32 s{S_IDX}, {38 * 6 + 5}")
    A("s_cselect_b32 s9, 0, s13")
    A("s_cmp_lt_u32 s9, 4")
    A("s_cselect_b32 s15, 3, 2")
    A("s_lshl_b32 s15, s15, 13")
    A("s_add_u32 s15, s15, s14")
    AV = opt.get('av')
    if opt.get('a2'): o += p2_prog(k1, opt)
    elif opt.get('hf'):
        z = ["s_waitcnt lgkmcnt(0)"] + TAGADD; srd_from(z, 40, 38, FLAG_OFF, gen_f.NFLAG * FS)
        z += [f"s_add_u32 s6, s{S_IDX}, {HF0}", "s_lshl_b32 s6, s6, 7", f"s_cmp_eq_u32 s{S_W}, 0", f"s_cselect_b32 s6, s6, 0x{gen_f.OOB:x}"]
        gen_f.publish(z.append, 40, 6, 8, opt, gen_k1n.VL16); k1q = dict(k1, hf=z)
        o += gen_k1n.gemm_prog('q', k1q) + [f"s_add_u32 s{S_IDX}, s{S_IDX}, {P1F0}", "s_branch LM_pub"]
    elif opt.get('timing') and opt.get('p1t') and not AV:
        o += gen_k1n.gemm_prog('q', dict(k1, timing=1)) + ["s_waitcnt lgkmcnt(0)"] + [f"s_mov_b32 s{74 + 2*k}, s{16 + 2*x}" for k, x in enumerate(k1.get('ssel', [1, 2, 3, 4, 6]))]
    else: o += p1_prog(k1, opt) if AV else gen_k1n.gemm_prog('q', k1)
    if opt.get('lp') == 1:
        A("s_waitcnt lgkmcnt(0)"); o += TAGADD; A("s_branch L2_entry")
    A("L1_fin:")
    A(f"s_add_u32 s{S_IDX}, s{S_IDX}, {P1F0}")
    if not AV: A("s_waitcnt lgkmcnt(0)"); o += TAGADD
    A("LM_pub:")
    srd_from(o, 40, 38, FLAG_OFF, gen_f.NFLAG * FS)
    A(f"s_lshl_b32 s6, s{S_IDX}, 7")
    A(f"s_cmp_eq_u32 s{S_W}, 0")
    A(f"s_cselect_b32 s6, s6, 0x{gen_f.OOB:x}")
    A("v_lshlrev_b32 v12, 4, v2")
    A("s_waitcnt vmcnt(0) lgkmcnt(0)")
    A("s_barrier")
    gen_f.publish(A, 40, 6, 8, opt, 12)
    if opt.get('qt'):
        srd_from(o, 40, 38, QF_OFF, "s15")
        A(f"s_lshl_b32 s6, s{S_W}, 13")
        A("s_add_u32 s6, s6, s14")
        A("v_lshlrev_b32 v8, 7, v2")
        A(f"buffer_load_dword v9, v8, s[40:43], s6 offen")
    A(f"s_cmp_eq_u32 s{S_ROLE}, 0")
    A("s_cbranch_scc1 L2_entry")
    A(f"s_mov_b32 s{S_ROLE}, 0")
    if opt.get('l2h'):
        A(f"s_sub_u32 s4, s{S_IDX}, {P1F0 + 234}"); A("s_min_u32 s6, s4, 14"); A("s_cmp_lt_u32 s4, 6"); A("s_cselect_b32 s6, 0, s6"); A("s_sub_u32 s4, s4, s6")
    else: A(f"s_sub_u32 s4, s{S_IDX}, {P1F0 + 240}")
    A(f"s_add_u32 s{S_IDX}, s4, {WFF0}")
    o += gen_k1n.gemm_prog('w', k1)
    A("s_branch LM_pub")
    A("LM_light:")
    if opt.get('l2h'): A(f"s_mov_b32 s{S_ROLE}, 1")
    A("s_waitcnt lgkmcnt(0)")
    o += tagld
    if AV: A("s_waitcnt lgkmcnt(0)"); o += TAGADD
    A("s_branch L1_fin")
    A("LM_edge:")
    A("s_sub_u32 s4, s3, 30")
    A("s_lshl_b32 s8, s8, 1")
    A("s_add_u32 s4, s4, s8")
    A(f"s_add_u32 s{S_IDX}, s4, 240")
    A("s_cmp_ge_u32 s4, 14" if opt.get('l2h') else "s_cmp_lt_u32 s4, 8")
    A(f"s_cselect_b32 s{S_ROLE}, 1, 0")
    if opt.get('cps'):
        A("s_and_b32 s56, s56, 0xffffff00")
        A(f"s_mov_b32 s58, {'L2_hot' if opt.get('rl') else 'L2_end'}-k2_kernel")
        A("s_mov_b32 s59, 0x00020000")
        A("s_and_b32 s6, s5, 7"); A(f"s_lshl_b32 s6, s6, {6 + opt['cps']}")
        A(f"v_lshlrev_b32 v10, {opt['cps']}, v2")
        for k in range(131072 // (512 << opt['cps'])):
            A(f"buffer_load_dword v255, v10, s[56:59], s6 offen")
            A(f"s_add_u32 s6, s6, {512 << opt['cps']}")
    if opt.get('wt'):
        st = opt['wt']
        A(f"s_and_b32 s6, s5, 7"); A(f"s_lshl_b32 s6, s6, 14")
        A(f"v_lshlrev_b32 v10, {st}, v2")
        A("s_waitcnt lgkmcnt(0)")
        srd_from(o, 40, 26, 0, 131072); srd_from(o, 44, 28, 0, 131072)
        for m in range(2):
            for k in range(16384 // (64 << st)):
                A(f"s_add_u32 s7, s6, {k * (64 << st)}")
                A(f"buffer_load_dword v{250 + (k & 1) + 2 * m}, v10, {sr(40 + 4 * m)}, s7 offen")
    if AV: o += a_prog(k1, opt)
    o += gen_k1n.edge_prog(dict(k1, mg=["s_nop 0"]) if AV else k1)
    A("s_branch L1_fin")
    A("L2_entry:")
    return o


def a_prog(k1, opt):
    S_W = gen_k1n.S_W
    q = []; A = lambda t: q.append(V(t))
    VD, VR, VL, BF, AF, ACC = 16, 18, 20, 24, 56, 184
    A("v_lshrrev_b32 v5, 3, v2")
    A("v_and_b32 v6, 4, v5"); A("v_add_u32 v5, v5, v6")
    A("v_and_b32 v6, 7, v2"); A("v_xor_b32 v6, v6, v4")
    A("v_lshlrev_b32 v6, 4, v6")
    A(f"v_lshl_add_u32 v{VD}, v5, 9, v6")
    A(f"v_xor_b32 v{VD+1}, 0x2040, v{VD}")
    A(f"s_lshl_b32 s6, s{S_W}, 7")
    A("s_and_b32 s7, s4, 3"); A("s_lshl_b32 s7, s7, 15"); A("s_add_u32 s7, s7, s6")
    A("s_lshr_b32 s8, s4, 2"); A("s_lshl_b32 s8, s8, 15"); A("s_add_u32 s8, s8, s6")
    A(f"s_lshl_b32 s9, s{S_W}, 10")
    A("s_waitcnt lgkmcnt(0)")
    o = []; srd_from(o, 40, 26, 0, 131072); srd_from(o, 44, 28, 0, 131072)
    for t in o: A(t)
    for m in (1, 0):
        for b in range(4):
            A(f"s_add_u32 s10, s{7 + m}, {(b >> 1) * 16384 + (b & 1) * 2048}")
            for u in range(2):
                A(f"s_add_u32 m0, s9, {m * 32768 + b * 8192 + u * 4096}")
                q.append(VM(f"buffer_load_dwordx4 v{VD+u}, {sr(40 + 4*m)}, s10 offen lds", tag='w'))
    for t in k1['mg']: A(t)
    A("v_lshrrev_b32 v5, 1, v3"); A("v_xor_b32 v5, v5, v4"); A("v_lshlrev_b32 v5, 4, v5")
    A("v_and_b32 v6, 7, v3"); A("v_lshl_add_u32 v5, v6, 7, v5")
    A("v_lshrrev_b32 v6, 3, v3"); A(f"v_lshl_add_u32 v{VR}, v6, 12, v5")
    A(f"v_xor_b32 v{VR+1}, 64, v{VR}")
    A(f"s_lshl_b32 s6, s{S_W}, 13"); A(f"v_add_u32 v{VR+4}, s6, v{VR}"); A(f"v_xor_b32 v{VR+5}, 64, v{VR+4}")
    A(f"v_lshlrev_b32 v{VL}, 4, v2")
    o = []; srd_from(o, 48, 38, 0, 256 << 20)
    for t in o: A(t)
    A("s_lshr_b32 s6, s4, 2"); A("s_lshl_b32 s6, s6, 15"); A("s_and_b32 s7, s4, 3"); A("s_lshl_b32 s7, s7, 13")
    A("s_add_u32 s6, s6, s7"); A("s_add_u32 s6, s6, s9"); A(f"s_add_u32 s6, s6, 0x{A_OFF:x}"); A("s_add_u32 s7, s6, 4096")
    A(f"s_lshl_b32 s8, s4, 2"); A(f"s_add_u32 s8, s8, s{S_W}"); A(f"s_lshl_b32 s8, s8, {opt.get('afs', 7)}"); A(f"s_add_u32 s8, s8, 0x{FLAG_OFF + AF0 * FS:x}")
    A("s_mov_b32 s10, 0x%x" % struct.unpack('<I', struct.pack('<f', math.log2(math.e) / 16))[0])
    TS = lambda k: A(f"s_memtime s[{76+2*k}:{77+2*k}]") if opt.get('timing') else None
    TS(0)
    q.append(W('w')); TS(1); A("s_barrier")
    for j in range(8):
        q.append(LD(f"ds_read_b128 {vr(BF + 4*j)}, v{VR + 4 + (j & 1)} offset:{32768 + (j >> 1)*1024}"))
        for b in range(4): q.append(LD(f"ds_read_b128 {vr(AF + (j*4 + b)*4)}, v{VR + (j & 1)} offset:{b*8192 + (j >> 1)*1024}", tag=('f', j, b)))
    for j in range(8):
        for b in range(4):
            q.append(Ins(f"{MF32} {vr(ACC + 4*b)}, {vr(AF + (j*4 + b)*4)}, {vr(BF + 4*j)}, {vr(ACC + 4*b) if j else 0}", 0, needs=[('f', j, b)]))
    for t in TAGADD: A(t)
    TS(2)
    for tl in range(2):
        a = ACC + 8 * tl
        for r in range(8): A(f"v_mul_f32 v{a+r}, s10, v{a+r}")
        for r in range(4): A(f"v_cvt_pk_bf16_f32 v{a+r}, v{a+2*r}, v{a+2*r+1}")
        q.append(VM(f"buffer_store_dwordx4 {vr(a)}, v{VL}, {sr(48)}, s{6 + tl} offen sc1"))
    A("s_waitcnt vmcnt(0)")
    TS(3)
    gen_f.publish(A, 48, 8, 8, opt, VL)
    if opt.get('timing'):
        A("s_waitcnt vmcnt(0)"); TS(4); A("s_waitcnt lgkmcnt(0)")
        for k in range(5): A(f"v_writelane_b32 v254, s{76+2*k}, {8+k}")
    A("s_barrier")
    return hazard.fix(Emitter().emit(q))


def p1_prog(k1, opt):
    K = gen_k1n
    S_W, S_ROT, S_XO, SK, SO = K.S_W, K.S_ROT, K.S_XO, K.SK1, K.SO
    NL, RPW, HIMG = 6, 12, 0x20000
    VL16, VH, VHW, HP, ACC, LN0, BF, AF = 16, 31, 36, 44, 68, 68, 68 + 48, 0
    pre = []; A = lambda t: pre.append(V(t))
    nst = [0]
    def stamp():
        if not opt.get('timing') or not opt.get('p1t'): return []
        nst[0] += 1
        return [V(f"s_memtime s[{14+2*nst[0]}:{15+2*nst[0]}]", cost=0)]
    A(f"v_lshlrev_b32 v{VL16}, 4, v2")
    A(f"s_mul_i32 s7, s{S_W}, {RPW*512}")
    A(f"s_add_u32 s{S_XO}, s14, s7")
    A(f"s_add_u32 s{S_XO+1}, s{S_XO}, 4096")
    A("s_waitcnt lgkmcnt(0)")
    o = []; srd_from(o, K.SRD_X, 16, 0, "s15")
    for t in o: A(t)
    xso = lambda j: f"s{S_XO + j // 4} offen offset:{(j % 4) * 1024}"
    for j in range(NL): pre.append(VM(f"buffer_load_dwordx4 {vr(HP+4*j)}, v{VL16}, {sr(K.SRD_X)}, {xso(j)}", tag=('x', j)))
    for t in k1['mg']: A(t)
    K.img_addrs(A, NL, RPW, HIMG, VHW, VH)
    o = []
    srd_from(o, K.SRD_O, 38, QF_OFF, "s15"); srd_from(o, K.SRD_H, 38, H_OFF, "s15"); srd_from(o, K.SRD_W1, 38, 0, 256 << 20)
    for t in o: A(t)
    A(f"s_lshl_b32 s7, s{S_W}, 15"); A(f"s_add_u32 s7, s7, 0x{A_OFF:x}")
    for t in range(8):
        A(f"s_xor_b32 s6, s{S_ROT}, {t}"); A("s_lshl_b32 s6, s6, 12"); A(f"s_add_u32 s{SK+t}, s6, s7")
    A(f"s_lshl_b32 s7, s{S_W}, 11"); A(f"s_add_u32 s{SO}, s14, s7")
    for b in range(1, 3): A(f"s_add_u32 s{SO+b}, s{SO}, {b*8192}")
    A(f"s_mov_b32 s{K.S_EPS}, 0x3727c5ac"); A(f"s_mov_b32 s{K.S_R256}, 0x3b800000"); A(f"s_mov_b32 s{K.S_MASK}, 0xffff0000")
    A(f"v_lshlrev_b32 v17, {opt.get('afs', 7)}, v2"); A(f"v_add_u32 v17, 0x{FLAG_OFF + AF0 * FS:x}, v17")
    A(f"s_add_u32 s6, s{S_IDX}, {HF0}"); A("s_lshl_b32 s6, s6, 7"); A(f"s_add_u32 s6, s6, 0x{FLAG_OFF:x}")
    A(f"s_cmp_eq_u32 s{S_W}, 0"); A(f"s_cselect_b32 s74, s6, 0x{gen_f.OOB:x}")
    pre += stamp()
    K.ln_code(pre, NL, HP, LN0, VHW, k1, lambda: None, stamp,
              after=lambda j: pre.append(VM(f"buffer_store_dwordx4 {vr(HP+4*j)}, v{VL16}, {sr(K.SRD_H)}, {xso(j)} sc1")))
    A("s_waitcnt lgkmcnt(0)")
    for t in TAGADD: A(t)
    pre += stamp()
    A("s_barrier")
    for t in range(8):
        for rb in range(3): pre.append(LD(f"ds_read_b128 {vr(BF + (t*3 + rb)*4)}, v{VH + (t & 1)} offset:{rb*8192 + t*1024}", tag=('b', t)))
    em = Emitter(); em.emit(pre)
    if opt.get('w0p'): em.o += ["s_waitcnt vmcnt(0)", f"s_cmp_lg_u32 s{S_W}, 0", "s_cbranch_scc1 LM_aw_go"]
    gen_f.spin(em.o.append, "LM_aw", [f"buffer_load_dwordx2 v[18:19], v17, {sr(K.SRD_W1)}, 0 offen sc1"], [18], 75)
    em.done['vm'] = em.cnt['vm']
    st = Stream()
    ld = lambda t: [VM(f"buffer_load_dwordx4 {ar((t*4 + f)*4)}, v{VL16}, {sr(K.SRD_W1)}, s{SK+t} offen offset:{f*1024} sc1", tag=('a', t, f)) for f in range(4)]
    NA = opt.get('p1a', 3)
    if opt.get('w0p'): st.put(-1, V("s_barrier"))
    for x in stamp(): st.put(-1, x)
    for t in range(NA):
        for x in ld(t): st.put(-1, x)
    z = []; gen_f.publish(z.append, K.SRD_W1, 74, 20, opt, VL16)
    if not opt.get('w0p'): st.put(-1, V("s_barrier"))
    for x in z: st.put(-1, VM(x) if x.startswith('buffer') else V(x))
    acc = lambda f, rb: ACC + (rb * 4 + f) * 4
    done = {}
    for t in range(8):
        g0 = st.n()
        for f in range(4):
            for rb in range(3):
                done[(f, rb)] = st.mfma(f"{MF32} {vr(acc(f, rb))}, {ar((t*4 + f)*4)}, {vr(BF + (t*3 + rb)*4)}, {vr(acc(f, rb)) if t else 0}", needs=[('a', t, f), ('b', t)])
        if t + NA < 8:
            for k, x in enumerate(ld(t + NA)): st.put(g0 + 3 * k, x)
    nm = st.n()
    for u in range(2):
        for rb in range(3):
            a = acc(2 * u, rb); g = min(done[(2 * u + 1, rb)] + 3, nm - 1)
            for r in range(4): st.put(g, V(f"v_cvt_pk_bf16_f32 v{a+r}, v{a+2*r}, v{a+2*r+1}"))
            st.put(g, VM(f"buffer_store_dwordx4 {vr(a)}, v{VL16}, {sr(K.SRD_O)}, s{SO+rb} offen offset:{u*1024} sc1"))
    for x in stamp(): st.put(nm - 1, x)
    o = hazard.fix(em.emit(st.seq()))
    if nst[0]:
        o.append("s_waitcnt lgkmcnt(0)")
        o += [f"s_mov_b32 s{74 + 2*k}, s{16 + 2*k}" for k in range(nst[0])]
    return o


def p2_prog(k1, opt):
    K = gen_k1n
    S_W, S_ROT, S_XO, SK, SO = K.S_W, K.S_ROT, K.S_XO, K.SK1, K.SO
    NL, RPW, HIMG = 6, 12, 0x20000
    VL16, VH, VHW, HP, ACC, LN0, BF = 16, 31, 36, 44, 68, 68, 68 + 48
    VD, VR, TF, TA = 18, 20, 140, 236
    pre = []; A = lambda t: pre.append(V(t))
    nst = [0]
    def stamp():
        if not opt.get('timing') or not opt.get('p1t'): return []
        nst[0] += 1
        return [V(f"s_memtime s[{14+2*nst[0]}:{15+2*nst[0]}]", cost=0)]
    A("v_lshrrev_b32 v5, 3, v2"); A("v_and_b32 v6, 4, v5"); A("v_add_u32 v5, v5, v6")
    A("v_and_b32 v6, 7, v2"); A("v_xor_b32 v6, v6, v4"); A("v_lshlrev_b32 v6, 4, v6")
    A(f"v_lshl_add_u32 v{VD}, v5, 9, v6"); A(f"v_xor_b32 v{VD+1}, 0x2040, v{VD}")
    A(f"s_lshl_b32 s6, s{S_W}, 7")
    A(f"s_bfe_u32 s7, s{S_IDX}, 0x30002"); A("s_lshl_b32 s7, s7, 14"); A("s_add_u32 s7, s7, s6"); A("s_add_u32 s8, s7, 2048")
    A(f"s_lshr_b32 s9, s{S_IDX}, 5"); A("s_lshl_b32 s9, s9, 15"); A("s_add_u32 s9, s9, s6")
    A(f"s_bfe_u32 s10, s{S_IDX}, 0x10001"); A("s_lshl_b32 s10, s10, 14"); A("s_add_u32 s9, s9, s10")
    A(f"s_and_b32 s10, s{S_IDX}, 1"); A("s_lshl_b32 s10, s10, 11"); A("s_add_u32 s9, s9, s10")
    A(f"s_cmp_lt_u32 s{S_IDX}, 128"); A("s_cselect_b32 s11, 0x20000, 0")
    A(f"s_lshl_b32 s10, s{S_W}, 10")
    A(f"v_lshlrev_b32 v{VL16}, 4, v2")
    A(f"s_mul_i32 s6, s{S_W}, {RPW*512}"); A(f"s_add_u32 s{S_XO}, s14, s6"); A(f"s_add_u32 s{S_XO+1}, s{S_XO}, 4096")
    A("s_waitcnt lgkmcnt(0)")
    o = []; srd_from(o, K.SRD_W1, 26, 0, "s11"); srd_from(o, K.SRD_W2, 28, 0, "s11")
    for t in o: A(t)
    for b, (srd, so) in enumerate(((K.SRD_W1, 7), (K.SRD_W1, 8), (K.SRD_W2, 9))):
        for u in range(2):
            A(f"s_add_u32 m0, s10, {b * 8192 + u * 4096}"); pre.append(VM(f"buffer_load_dwordx4 v{VD+u}, {sr(srd)}, s{so} offen lds", tag='w'))
    A("v_lshlrev_b32 v5, 4, v4"); A(f"s_cmp_eq_u32 s{S_W}, 3"); A(f"s_mov_b32 s6, 0x{gen_f.OOB:x}"); A(f"s_cselect_b32 s6, {255 * 512}, s6")
    for j in range(8): pre.append(VM(f"buffer_load_dwordx4 {ar(4*j)}, v5, {sr(K.SRD_W2)}, s6 offen offset:{64*j}", tag='w'))
    o = []; srd_from(o, K.SRD_X, 16, 0, "s15")
    for t in o: A(t)
    xso = lambda j: f"s{S_XO + j // 4} offen offset:{(j % 4) * 1024}"
    for j in range(NL): pre.append(VM(f"buffer_load_dwordx4 {vr(HP+4*j)}, v{VL16}, {sr(K.SRD_X)}, {xso(j)}", tag=('x', j)))
    for t in k1['mg']: A(t)
    A("v_lshrrev_b32 v5, 1, v3"); A("v_xor_b32 v5, v5, v4"); A("v_lshlrev_b32 v5, 4, v5"); A("v_and_b32 v6, 7, v3"); A("v_lshl_add_u32 v5, v6, 7, v5")
    A("v_lshrrev_b32 v6, 3, v3"); A(f"v_lshl_add_u32 v{VR}, v6, 12, v5"); A(f"v_xor_b32 v{VR+1}, 64, v{VR}")
    K.img_addrs(A, NL, RPW, HIMG, VHW, VH)
    o = []
    srd_from(o, K.SRD_O, 38, QF_OFF, "s15"); srd_from(o, K.SRD_H, 38, H_OFF, "s15"); srd_from(o, K.SRD_W1, 38, 0, 256 << 20)
    for t in o: A(t)
    A(f"s_lshl_b32 s7, s{S_W}, 15"); A(f"s_add_u32 s7, s7, 0x{A_OFF:x}")
    for t in range(8):
        A(f"s_xor_b32 s6, s{S_ROT}, {t}"); A("s_lshl_b32 s6, s6, 12"); A(f"s_add_u32 s{SK+t}, s6, s7")
    A(f"s_lshl_b32 s7, s{S_W}, 11"); A(f"s_add_u32 s{SO}, s14, s7")
    for b in range(1, 3): A(f"s_add_u32 s{SO+b}, s{SO}, {b*8192}")
    A(f"s_mov_b32 s{K.S_EPS}, 0x3727c5ac"); A(f"s_mov_b32 s{K.S_R256}, 0x3b800000"); A(f"s_mov_b32 s{K.S_MASK}, 0xffff0000")
    A("v_lshlrev_b32 v17, 7, v2"); A(f"v_add_u32 v17, 0x{FLAG_OFF + gen_f.AF2 * FS:x}, v17")
    A(f"s_lshl_b32 s74, s{S_IDX}, 10"); A(f"s_add_u32 s74, s74, 0x{A_OFF:x}"); A(f"s_lshl_b32 s75, s{S_IDX}, 7"); A(f"s_add_u32 s75, s75, 0x{FLAG_OFF + gen_f.AF2 * FS:x}")
    A(f"s_cmp_eq_u32 s{S_W}, 3"); A("s_cselect_b32 s11, s11, 0"); A("s_cmp_lg_u32 s11, 0"); A(f"s_cselect_b32 s75, s75, 0x{gen_f.OOB:x}")
    A("s_mov_b32 s76, 0x2000"); A("s_mov_b32 s10, 0x%x" % struct.unpack('<I', struct.pack('<f', math.log2(math.e) / 16))[0])
    A("v_and_b32 v5, 31, v2"); A("v_cmp_eq_u32 vcc, 31, v5"); A("v_mov_b32 v6, 0xffff"); A("v_mov_b32 v7, 0x3f800000")
    A("v_cndmask_b32 v6, -1, v6, vcc"); A("v_cndmask_b32 v7, 0, v7, vcc")
    pre += stamp()
    pre.append(W('w')); A("s_barrier"); A("s_waitcnt lgkmcnt(0)")
    for t in TAGADD: A(t)
    em = Emitter(); em.emit(pre)
    tk = []
    for j in range(8):
        for b in range(3): tk.append(LD(f"ds_read_b128 {vr(TF + (j*3 + b)*4)}, v{VR + (j & 1)} offset:{b*8192 + (j >> 1)*1024}", tag=('f', j)))
    for j in range(8):
        for b in range(2):
            tk.append(Ins(f"{MF32} {vr(TA + 4*b)}, {vr(TF + (j*3 + b)*4)}, {vr(TF + (j*3 + 2)*4)}, {vr(TA + 4*b) if j else 0}", 0, needs=[('f', j)]))
            tk.append(Ins(f"{MF32} {vr(TA + 8 + 4*b)}, {vr(TF + (j*3 + b)*4)}, {ar(4*j)}, {vr(TA + 8 + 4*b) if j else 0}", 0))
    tk += [V(f"v_sub_f32 v{TA+r}, v{TA+r}, v{TA+8+r}") for r in range(8)] + [V(f"v_mul_f32 v{TA+r}, s10, v{TA+r}") for r in range(8)]
    tk += [V(f"v_cvt_pk_bf16_f32 v{TA+r}, v{TA+2*r}, v{TA+2*r+1}") for r in range(4)]
    em.o += ["s_cmp_eq_u32 s11, 0", f"s_cselect_b32 s74, 0x{gen_f.OOB:x}, s74", "s_cbranch_scc1 LM_nt2"] + hazard.fix(Emitter().emit(tk)) + ["LM_nt2:"]
    pre = [VM(f"buffer_store_dwordx4 {vr(TA)}, v{VL16}, {sr(K.SRD_W1)}, s74 offen sc1", tag='as')] + stamp()
    def mid():
        z = []; gen_f.publish(z.append, K.SRD_W1, 75, 8, opt, VL16)
        pre.append(W('as')); pre.extend(VM(x) if x.startswith('buffer') else V(x) for x in z)
    K.ln_code(pre, NL, HP, LN0, VHW, k1, lambda: None, lambda: [], mid=mid)
    pre += stamp()
    pre.append(W('hw'))
    em.emit(pre)
    if opt.get('w0p', 1): em.o += [f"s_cmp_lg_u32 s{S_W}, 0", "s_cbranch_scc1 LM_aw_go"]
    gen_f.spin(em.o.append, "LM_aw", [f"buffer_load_dwordx2 v[18:19], v17, {sr(K.SRD_W1)}, 0 offen sc1", f"buffer_load_dwordx2 v[20:21], v17, {sr(K.SRD_W1)}, s76 offen sc1"], [18, 20], 77)
    st = Stream()
    ld = lambda t: [VM(f"buffer_load_dwordx4 {ar((t*4 + f)*4)}, v{VL16}, {sr(K.SRD_W1)}, s{SK+t} offen offset:{f*1024} sc1", tag=('a', t, f)) for f in range(4)]
    NA = opt.get('p1a', 3)
    st.put(-1, V("s_barrier"))
    for x in stamp(): st.put(-1, x)
    for t in range(NA):
        for x in ld(t): st.put(-1, x)
    for t in range(8):
        for rb in range(3): st.put(-1, LD(f"ds_read_b128 {vr(BF + (t*3 + rb)*4)}, v{VH + (t & 1)} offset:{rb*8192 + t*1024}", tag=('b', t)))
    for j in range(NL): st.put(-1, V(f"v_and_or_b32 v{HP+4*j+3}, v{HP+4*j+3}, v6, v7"))
    acc = lambda f, rb: ACC + (rb * 4 + f) * 4
    done = {}
    for t in range(8):
        g0 = st.n()
        for f in range(4):
            for rb in range(3):
                done[(f, rb)] = st.mfma(f"{MF32} {vr(acc(f, rb))}, {ar((t*4 + f)*4)}, {vr(BF + (t*3 + rb)*4)}, {vr(acc(f, rb)) if t else 0}", needs=[('a', t, f), ('b', t)])
        if t + NA < 8:
            for k, x in enumerate(ld(t + NA)): st.put(g0 + 3 * k, x)
    nm = st.n()
    for j in range(NL): st.put(12 * (8 - NA) + 4 * j, VM(f"buffer_store_dwordx4 {vr(HP+4*j)}, v{VL16}, {sr(K.SRD_H)}, {xso(j)} sc1"))
    for u in range(2):
        for rb in range(3):
            a = acc(2 * u, rb); g = min(done[(2 * u + 1, rb)] + 3, nm - 1)
            for r in range(4): st.put(g, V(f"v_cvt_pk_bf16_f32 v{a+r}, v{a+2*r}, v{a+2*r+1}"))
            st.put(g, VM(f"buffer_store_dwordx4 {vr(a)}, v{VL16}, {sr(K.SRD_O)}, s{SO+rb} offen offset:{u*1024} sc1"))
    for x in stamp(): st.put(nm - 1, x)
    o = hazard.fix(em.emit(st.seq()))
    if nst[0]:
        o.append("s_waitcnt lgkmcnt(0)")
        o += [f"s_mov_b32 s{74 + 2*k}, s{16 + 2*k}" for k in range(nst[0])]
    return o + [f"s_add_u32 s{S_IDX}, s{S_IDX}, {P1F0}", "s_branch LM_pub"]


def sel_lanes(A, v, t, L, srcs):
    A(f"v_mov_b32 v{v}, s{srcs[0]}")
    for k, r in enumerate(srcs[1:]):
        A(f"v_mov_b32 v{t}, s{r}")
        A(f"v_cmp_lt_u32 vcc, 0x{128 * (k + 1) - 1:x}, v{L}")
        A("s_nop 1")
        A(f"v_cndmask_b32 v{v}, v{v}, v{t}, vcc")


def poll_addrs(A, S_OFF, av, step=None, lp=False):
    L = gen_f.VLANE16
    A("s_lshr_b32 s40, s39, 17"); A("s_min_u32 s40, s40, 38")
    A(f"s_lshr_b32 s41, s{S_OFF}, 17")
    A(f"s_add_u32 s3, s{S_OFF}, {step or '0x4000'}"); A("s_lshr_b32 s3, s3, 17")
    sel_lanes(A, VPA, 6, L, [38, 40, 41, 3])
    A(f"v_bfe_u32 v6, v{L}, 4, 3")
    A("v_min_u32 v6, 5, v6")
    A(f"v_mad_u32_u24 v{VPA}, v{VPA}, 6, v6")
    if lp:
        A("s_mul_i32 s3, s38, 6"); A("s_add_u32 s3, s3, s37"); A("s_xor_b32 s42, s3, 1")
        A(f"v_cmp_eq_u32 vcc, s3, v{VPA}"); A("v_mov_b32 v6, s42"); A("s_nop 0"); A(f"v_cndmask_b32 v{VPA}, v{VPA}, v6, vcc")
        A(f"s_add_u32 s3, s3, {P1F0}"); A("s_lshl_b32 s3, s3, 7"); A(f"s_add_u32 s3, s3, 0x{FLAG_OFF:x}")
        A("s_cmp_eq_u32 s34, 0"); A(f"s_cselect_b32 s91, s3, 0x{gen_f.OOB:x}")
    if av:
        A(f"v_cmp_lt_u32 vcc, 0x7f, v{L}")
        A(f"v_add_u32 v6, {HF0 - P1F0}, v{VPA}")
        A("s_nop 0")
        A(f"v_cndmask_b32 v{VPA}, v{VPA}, v6, vcc")
    A(f"v_lshlrev_b32 v{VPA}, 7, v{VPA}")
    A(f"v_add_u32 v{VPA}, 0x{FLAG_OFF + P1F0 * FS:x}, v{VPA}")
    if step:
        A(f"s_mul_i32 s3, {step}, 54"); A("s_add_u32 s3, s3, s39"); A("s_min_u32 s41, s3, s39"); A("s_max_u32 s3, s3, s39"); A("s_lshr_b32 s41, s41, 17")
    else: A("s_sub_u32 s3, s49, 1")
    A("s_min_u32 s40, s40, s41"); A("s_mul_i32 s40, s40, 6")
    A("s_lshr_b32 s3, s3, 17"); A("s_min_u32 s3, s3, 38"); A("s_mul_i32 s3, s3, 6"); A("s_add_u32 s3, s3, 5")
    A(f"v_lshrrev_b32 v{VPB}, 4, v{L}")
    A(f"v_add_u32 v{VPB}, s40, v{VPB}")
    A(f"v_min_u32 v{VPB}, s3, v{VPB}")
    A(f"v_lshlrev_b32 v{VPB}, 7, v{VPB}")
    A(f"v_add_u32 v{VPB}, 0x{FLAG_OFF + (HF0 if av else P1F0) * FS:x}, v{VPB}")


def poll_a(A, o, opt, kd=()):
    srd_from(o, SWS, 4, 0, 256 << 20)
    if opt.get('w0p'): A("s_cmp_lg_u32 s34, 0"); A("s_cbranch_scc1 LM_pa_go")
    if opt.get('lp') == 1:
        A(f"buffer_load_dwordx2 v[6:7], v{VPA}, {sr(SWS)}, 0 offen sc1")
        A("s_waitcnt vmcnt(1)"); A("s_barrier")
        gen_f.publish(A, SWS, 91, 8, opt, gen_f.VLANE16)
        A("s_waitcnt vmcnt(1)"); A(f"v_cmp_ne_u64 vcc, {sr(S_TAG, 2)}, v[6:7]"); A("s_nop 1"); A("s_cbranch_vccz LM_pa_go")
    if opt.get('hf'):
        A("s_mov_b32 exec_lo, 0xffffff00")
        gen_f.spin(A, "LM_ph", [f"buffer_load_dwordx2 v[6:7], v{VPA}, {sr(SWS)}, 0 offen sc1"], [6], 3)
        A("s_mov_b32 exec_lo, -1")
        o += kd
        A("s_mov_b64 exec, 0xff")
        A("s_mov_b32 s3, 0x10000"); A("LM_pa:"); A(f"buffer_load_dwordx2 v[6:7], v{VPA}, {sr(SWS)}, 0 offen sc1"); A("s_sub_u32 s3, s3, 1"); A("s_waitcnt vmcnt(0)"); A("s_cbranch_scc1 LM_pa_go")
        A(f"v_cmp_ne_u64 vcc, {sr(S_TAG, 2)}, v[6:7]"); A("s_nop 1"); A("s_cbranch_vccnz LM_pa"); A("LM_pa_go:"); A("s_mov_b64 exec, -1")
        return
    gen_f.spin(A, "LM_pa", [f"buffer_load_dwordx2 v[6:7], v{VPA}, {sr(SWS)}, 0 offen sc1"], [6], 3)
    if opt.get('w0p'): A("s_barrier")


def poll_b_load(): return f"buffer_load_dwordx2 {vr(VPD, 2)}, v{VPB}, {sr(SWS)}, 0 offen sc1"


def poll_b_check(A):
    A(f"v_cmp_ne_u64 vcc, {sr(S_TAG, 2)}, {vr(VPD, 2)}")
    A("s_nop 1")
    A("s_cbranch_vccnz LM_pb")
    A("LM_pb_ret:")


def poll_b_spin():
    o = ["LM_pb:"]
    gen_f.spin(o.append, "LM_pb2", [poll_b_load()], [VPD], 3)
    return o + ["s_branch LM_pb_ret"]
```
